```python
import torch

def _softmax(x, axis=-1):
    return torch.softmax(x, dim=axis)
def _gelu(x):
    return torch.nn.functional.gelu(x, approximate="tanh")
def _silu(x):
    return torch.nn.functional.silu(x)
def _sigmoid(x):
    return torch.sigmoid(x)
def _layernorm(x, axis=-1, eps=1e-5):
    m = x.mean(dim=axis, keepdim=True)
    v = x.var(dim=axis, keepdim=True, unbiased=False)
    return (x - m) / torch.sqrt(v + eps)
def _scatter_add(tgt, idx, src, axis=0):
    return tgt.clone().index_add_(axis, idx, src)
def _segment_sum(src, seg, n):
    out = torch.zeros((n,) + src.shape[1:], dtype=src.dtype)
    return out.index_add_(0, seg, src)
def _pad(x, pw):
    flat = tuple(v for pair in reversed(pw) for v in pair)
    return torch.nn.functional.pad(x, flat)

kernel_name = 'gated_mix__linear_attn_block__mha_block__prompt'

def setup_inputs():

    _w = (lambda a: (lambda t: t.to(torch.bfloat16) if t.is_floating_point() else t)(torch.as_tensor(a)))
    def _A_setup():
        B, S, D = 1, 2048, 448
        return {
            "x": _w((lambda *s: torch.randn(*s, dtype=torch.bfloat16) * 0.05)(B, S, D)),
            "wqkv": _w((lambda *s: torch.randn(*s, dtype=torch.bfloat16) * 3.2)(D, 3 * D)),
            "wo": _w((lambda *s: torch.randn(*s, dtype=torch.bfloat16) * 0.4)(D, D)),
        }
    _A_in = _A_setup()

    def _B_setup():
        B, S, D, H = 1, 2048, 448, 16
        return {
            "x": _w((lambda *s: torch.randn(*s, dtype=torch.bfloat16) * 0.05)(B, S, D)),
            "wqkv": _w((lambda *s: torch.randn(*s, dtype=torch.bfloat16) * 1.6)(D, 3 * D)),
            "wo": _w((lambda *s: torch.randn(*s, dtype=torch.bfloat16) * 0.05)(D, D)),
        }
    _B_in = _B_setup()

    return {
        "A_x": _A_in["x"],
        "A_wqkv": _A_in["wqkv"],
        "A_wo": _A_in["wo"],
        "B_x": _B_in["x"],
        "B_wqkv": _B_in["wqkv"],
        "B_wo": _B_in["wo"],
        "gate_w": _w((lambda *s: torch.randn(*s, dtype=torch.bfloat16) * 0.05)(448) * 16.0),
    }

def reference(A_x, A_wqkv, A_wo, B_x, B_wqkv, B_wo, gate_w):
    def _A_ref(x, wqkv, wo):
        B, S, D = x.shape
        H = 16; Dh = D // H
        qkv = (lambda x, *d: x.permute(*d))((x @ wqkv).reshape(B, S, 3, H, Dh), 2, 0, 3, 1, 4)
        q, k, v = qkv[0], qkv[1], qkv[2]
        phi = lambda t: torch.where(t > 0, t + 1, torch.exp(t)) + 1e-6
        pq, pk = phi(q), phi(k)
        kv = torch.einsum("bhsd,bhse->bhde", pk, v)
        z = torch.einsum("bhsd->bhd", pk)
        num = torch.einsum("bhqd,bhde->bhqe", pq, kv)
        den = torch.einsum("bhqd,bhd->bhq", pq, z)[..., None] + 1e-6
        o = num / den
        return (lambda x, *d: x.permute(*d))(o, 0, 2, 1, 3).reshape(B, S, D) @ wo

    def _B_ref(x, wqkv, wo):
        B, S, D = x.shape
        H = 16
        Dh = D // H
        qkv = (lambda x, *d: x.permute(*d))((x @ wqkv).reshape(B, S, 3, H, Dh), 2, 0, 3, 1, 4)
        q, k, v = qkv[0], qkv[1], qkv[2]
        scores = torch.einsum("bhqd,bhkd->bhqk", q, k) * (Dh ** -0.5)
        p = _softmax(scores, axis=-1)
        o = torch.einsum("bhqk,bhkd->bhqd", p, v)
        return (lambda x, *d: x.permute(*d))(o, 0, 2, 1, 3).reshape(B, S, D) @ wo

    x = A_x
    g = _sigmoid((x * gate_w).sum(-1, keepdims=True))
    a = _A_ref(x, A_wqkv, A_wo)
    b = _B_ref(x, B_wqkv, B_wo)
    return g * a + (1 - g) * b
```

```python
class Asm:
    def __init__(self):
        self.lines = []
    def __call__(self, s=""):
        for l in s.split("\n"):
            l = l.rstrip()
            if not l:
                continue
            if l.endswith(":") or l.startswith("."):
                self.lines.append(l.strip())
            else:
                self.lines.append("    " + l.strip())
    def c(self, s):
        self.lines.append("    ; " + s)
    def label(self, s):
        self.lines.append(s + ":")
    def text(self):
        return "\n".join(self.lines) + "\n"

def vr(b, n=1):
    return f"v{b}" if n == 1 else f"v[{b}:{b+n-1}]"
def sr(b, n=1):
    return f"s{b}" if n == 1 else f"s[{b}:{b+n-1}]"
def ar(b, n=1):
    return f"a{b}" if n == 1 else f"a[{b}:{b+n-1}]"

def kernel_head(a, name):
    a(f".globl {name}")
    a(".p2align 8")
    a(f".type {name},@function")
    a.label(name)

def kernel_desc(name, vgpr, sgpr=96, accum=None):
    accum = accum if accum is not None else (min(vgpr, 256) + 3) // 4 * 4
    return f""".p2align 6
.amdhsa_kernel {name}
  .amdhsa_next_free_vgpr {vgpr}
  .amdhsa_next_free_sgpr {sgpr}
  .amdhsa_accum_offset {accum}
  .amdhsa_group_segment_fixed_size 0
  .amdhsa_kernarg_size 80
  .amdhsa_user_sgpr_count 2
  .amdhsa_user_sgpr_kernarg_segment_ptr 1
  .amdhsa_system_sgpr_workgroup_id_x 1
  .amdhsa_float_denorm_mode_32 3
.end_amdhsa_kernel
"""
import struct
def f32(x):
    return "0x%08x" % struct.unpack("<I", struct.pack("<f", x))[0]
```

```python
import math, sys
from asmlib import *

NAME = "gated_mix__linear_attn_block__mha_block__prompt"
WS_KV  = 0
WS_QB  = 4 << 20
WS_PQ  = 6 << 20
WS_KVP = 8 << 20
WS_G   = 9 << 20
WS_OF  = 10 << 20
WS_SIZE = 16 << 20
LOG2E = 1.4426950408889634
QSCALE = LOG2E * 28 ** -0.5
EPS = 1e-6
ONE2 = 0x3F803F80

def srd(a, d, lo, hi, size):
    a(f"s_mov_b32 s{d}, s{lo}")
    a(f"s_mov_b32 s{d+1}, s{hi}")
    a(f"s_mov_b32 s{d+2}, {size}")
    a(f"s_mov_b32 s{d+3}, 0x20000")

def dma_lane_w(a, vdst, vt0, vt1, rowstride):
    a(f"v_lshrrev_b32 v{vt0}, 4, v0")
    a(f"v_bfe_u32 v{vt1}, v0, 2, 2")
    a(f"v_and_b32 v{vdst}, 1, v{vt0}")
    a(f"v_xor_b32 v{vt1}, v{vt1}, v{vdst}")
    a(f"v_lshrrev_b32 v{vdst}, 1, v{vt1}")
    a(f"v_lshl_add_u32 v{vt0}, v{vt0}, 1, v{vdst}")
    a(f"v_mul_u32_u24 v{vt0}, {rowstride}, v{vt0}")
    a(f"v_and_b32 v{vt1}, 1, v{vt1}")
    a(f"v_lshl_add_u32 v{vt0}, v{vt1}, 6, v{vt0}")
    a(f"v_and_b32 v{vt1}, 3, v0")
    a(f"v_lshl_add_u32 v{vdst}, v{vt1}, 4, v{vt0}")

def tr_lane_addr(a, vdst, vb, vt0, vt1):
    a(f"v_bfe_u32 v{vt0}, v0, 4, 1")
    a(f"v_lshl_add_u32 v{vb}, v{vt0}, 5, v{vb}")
    a(f"v_and_b32 v{vt0}, 3, v0")
    a(f"v_lshl_add_u32 v{vb}, v{vt0}, 3, v{vb}")
    a(f"v_bfe_u32 v{vt0}, v0, 2, 1")
    a(f"v_lshrrev_b32 v{vt1}, 6, v{vb}")
    a(f"v_lshl_add_u32 v{vt0}, v{vt0}, 1, v{vt1}")
    a(f"v_bfe_u32 v{vt1}, v0, 3, 1")
    a(f"v_xor_b32 v{vt0}, v{vt0}, v{vt1}")
    a(f"v_and_b32 v{vb}, 63, v{vb}")
    a(f"v_lshl_add_u32 v{vb}, v{vt0}, 6, v{vb}")
    a(f"v_lshrrev_b32 v{vt0}, 5, v0")
    a(f"v_lshl_add_u32 v{vt0}, v{vt0}, 2, v{vt1}")
    a(f"v_lshl_add_u32 v{vdst}, v{vt0}, 8, v{vb}")

MF = "v_mfma_f32_32x32x16_bf16"
SM = "v_smfmac_f32_32x32x32_bf16"

def gen_k1(a):
    kernel_head(a, "k1_kernel")
    SX, SW, SWS, SG = 28, 32, 36, 40
    a("s_cmp_ge_u32 s2, 256")
    a("s_cbranch_scc1 K1_END")
    a("s_load_dwordx16 s[4:19], s[0:1], 0")
    a("s_load_dwordx2 s[20:21], s[0:1], 72")
    a("s_and_b32 s22, s2, 7")
    a("s_lshr_b32 s23, s2, 3")
    a("s_and_b32 s24, s22, 1")
    a("s_lshr_b32 s25, s22, 1")
    a("s_lshl_b32 s25, s25, 2")
    a("s_lshr_b32 s26, s23, 3")
    a("s_add_u32 s25, s25, s26")
    a("s_and_b32 s26, s23, 7")
    a("v_lshrrev_b32 v1, 6, v0")
    a("v_and_b32 v0, 63, v0")
    a("v_readfirstlane_b32 s27, v1")
    a("s_nop 3")
    a("s_cmp_ge_u32 s27, 4")
    a("s_cbranch_scc0 K1_COMPUTE")
    a("s_sub_u32 s27, s27, 4")
    a("v_lshrrev_b32 v1, 3, v0")
    a("s_lshl_b32 s44, s25, 7")
    a("s_lshl_b32 s45, s27, 5")
    a("s_add_u32 s44, s44, s45")
    a("v_add_u32 v1, s44, v1")
    a("v_mul_u32_u24 v1, 896, v1")
    a("v_lshrrev_b32 v2, 4, v0")
    a("v_and_b32 v3, 7, v0")
    a("v_xor_b32 v2, v2, v3")
    a("v_lshl_add_u32 v2, v2, 4, v1")
    a("v_xor_b32 v3, 64, v2")
    a("v_add_u32 v3, 7168, v3")
    dma_lane_w(a, 4, 5, 6, 2688)
    a("s_mul_i32 s44, s27, 43008")
    a("s_mul_i32 s45, s26, 112")
    a("s_add_u32 s44, s44, s45")
    a("v_add_u32 v4, s44, v4")
    a("s_mov_b32 s46, 0")
    a("s_mov_b32 s47, 0")
    a("s_mov_b32 s48, 0")
    a("s_lshl_b32 s51, s27, 12")
    a("s_lshl_b32 s52, s27, 11")
    a("s_add_u32 s52, s52, 65536")
    a("s_mov_b32 s49, s51")
    a("s_mov_b32 s50, s52")
    a("s_waitcnt lgkmcnt(0)")
    srd(a, SX, 4, 5, 1835008)
    a("s_cmp_eq_u32 s24, 0")
    a(f"s_cselect_b32 s{SW}, s6, s12")
    a(f"s_cselect_b32 s{SW+1}, s7, s13")
    a(f"s_mov_b32 s{SW+2}, 1204224")
    a(f"s_mov_b32 s{SW+3}, 0x20000")
    a.label("K1_LD_LOOP")
    xs = [(0, 2, 0), (1, 3, 0), (2, 2, 14336), (3, 3, 14336)]
    wsl = [(pt, u) for u in range(2) for pt in range(3)]
    seq = [("x", xs[0]), ("w", wsl[0]), ("w", wsl[1]), ("x", xs[1]), ("w", wsl[2]), ("w", wsl[3]),
           ("x", xs[2]), ("w", wsl[4]), ("x", xs[3]), ("w", wsl[5])]
    for kind, it in seq:
        if kind == "x":
            q, v, so = it
            a(f"s_add_u32 m0, s49, {q*1024}")
            a(f"s_add_u32 s53, s47, {so}")
            a(f"buffer_load_dwordx4 v{v}, s[{SX}:{SX+3}], s53 offen lds")
        else:
            pt, u = it
            a(f"s_add_u32 m0, s50, {pt*32768 + u*1024}")
            a(f"s_add_u32 s53, s48, {pt*896 + u*21504}")
            a(f"buffer_load_dwordx4 v4, s[{SW}:{SW+3}], s53 offen lds")
    a("s_add_u32 s46, s46, 1")
    a("s_add_u32 s47, s47, 128")
    a("s_add_u32 s48, s48, 172032")
    a("s_and_b32 s53, s46, 3")
    a("s_lshl_b32 s49, s53, 14")
    a("s_add_u32 s49, s49, s51")
    a("s_lshl_b32 s50, s53, 13")
    a("s_add_u32 s50, s50, s52")
    a("s_cmp_lt_u32 s46, 4")
    a("s_cbranch_scc1 K1_LD_LOOP")
    a("s_cmp_eq_u32 s46, 4")
    a("s_cbranch_scc0 K1_LD_NOT4")
    a("s_waitcnt vmcnt(30)")
    a("s_barrier")
    a.label("K1_LD_NOT4")
    a("s_waitcnt vmcnt(20)")
    a("s_barrier")
    a("s_cmp_lt_u32 s46, 7")
    a("s_cbranch_scc1 K1_LD_LOOP")
    a("s_waitcnt vmcnt(10)")
    a("s_barrier")
    a("s_waitcnt vmcnt(0)")
    a("s_barrier")
    a("s_cmp_eq_u32 s24, 0")
    a("s_cbranch_scc1 K1_END")
    a("s_cmp_ge_u32 s27, 2")
    a("s_cbranch_scc1 K1_END")
    srd(a, SG, 16, 17, 896)
    srd(a, SWS, 20, 21, WS_SIZE)
    a("s_lshl_b32 s44, s25, 7")
    a("s_lshl_b32 s45, s26, 4")
    a("s_add_u32 s44, s44, s45")
    a("s_lshl_b32 s45, s27, 3")
    a("s_add_u32 s44, s44, s45")
    a("v_lshrrev_b32 v1, 3, v0")
    a("v_add_u32 v1, s44, v1")
    a("v_and_b32 v2, 7, v0")
    a("v_lshlrev_b32 v3, 4, v2")
    a("v_mul_u32_u24 v4, 896, v1")
    a("v_add_u32 v4, v4, v3")
    for n in range(7):
        a(f"buffer_load_dwordx4 v[{8+4*n}:{11+4*n}], v4, s[{SX}:{SX+3}], 0 offen offset:{128*n}")
        a(f"buffer_load_dwordx4 v[{36+4*n}:{39+4*n}], v3, s[{SG}:{SG+3}], 0 offen offset:{128*n}")
    for i in range(4):
        a(f"v_mov_b32 v{64+i}, 0")
    a("s_waitcnt vmcnt(0)")
    for n in range(28):
        a(f"v_dot2_f32_bf16 v{64+(n&3)}, v{8+n}, v{36+n}, v{64+(n&3)}")
    a("s_nop 3")
    a("v_add_f32 v64, v64, v65")
    a("v_add_f32 v66, v66, v67")
    a("v_add_f32 v64, v64, v66")
    a("s_nop 1")
    a("v_add_f32_dpp v64, v64, v64 quad_perm:[1,0,3,2] row_mask:0xf bank_mask:0xf")
    a("s_nop 1")
    a("v_add_f32_dpp v64, v64, v64 quad_perm:[2,3,0,1] row_mask:0xf bank_mask:0xf")
    a("s_nop 1")
    a("v_add_f32_dpp v64, v64, v64 row_half_mirror row_mask:0xf bank_mask:0xf")
    a(f"v_mul_f32 v64, {f32(-LOG2E)}, v64")
    a("v_exp_f32 v64, v64")
    a("s_nop 0")
    a("v_add_f32 v64, 1.0, v64")
    a("v_rcp_f32 v64, v64")
    a("v_lshlrev_b32 v1, 2, v1")
    a(f"s_mov_b32 s44, {WS_G}")
    a("v_cmp_eq_u32 vcc, 0, v2")
    a("s_and_saveexec_b64 s[54:55], vcc")
    a(f"buffer_store_dword v64, v1, s[{SWS}:{SWS+3}], s44 offen")
    a("s_endpgm")

    a.label("K1_COMPUTE")
    XB, WB, XA, WA0, WA1 = 2, 6, 7, 11, 12
    FR = 16; ACC = 56; PK = 152
    accQ = [ACC, ACC+16]; accK = [ACC+32, ACC+48]; accV = [ACC+64, ACC+80]
    pQ = [PK, PK+8]; pKk = [PK+16, PK+24]; pV = [PK+32, PK+40]
    a("s_lshr_b32 s44, s27, 1")
    a("s_and_b32 s45, s27, 1")
    a("v_and_b32 v13, 31, v0")
    a("v_lshrrev_b32 v14, 5, v0")
    a("v_bfe_u32 v15, v0, 1, 3")
    a("v_xor_b32 v15, v15, v14")
    a("s_lshl_b32 s46, s44, 6")
    a("v_add_u32 v1, s46, v13")
    a("v_lshlrev_b32 v1, 7, v1")
    for ks in range(4):
        a(f"v_xor_b32 v{XB+ks}, {2*ks}, v15")
        a(f"v_lshl_add_u32 v{XB+ks}, v{XB+ks}, 4, v1")
        a(f"v_mov_b32 v{XA+ks}, v{XB+ks}")
    a("s_mul_i32 s46, s45, 56")
    a(f"v_mov_b32 v{WA0}, s46")
    tr_lane_addr(a, WB, WA0, 1, 15)
    a(f"v_add_u32 v{WB}, 65536, v{WB}")
    a(f"v_mov_b32 v{WA0}, v{WB}")
    a(f"v_add_u32 v{WA1}, 65536, v{WB}")
    a("v_cmp_eq_u32 vcc, 28, v13")
    a(f"v_mov_b32 v1, {ONE2}")
    a("s_nop 0")
    a("v_cndmask_b32 v15, 0, v1, vcc")
    for s in range(2):
        for i in range(8):
            a(f"v_mov_b32 v{pV[s]+i}, v15")
    a("s_mov_b32 s56, 0x0fffffff")
    a("s_mov_b32 s57, 0x0fffffff")
    a("s_mov_b32 s58, -1")
    a("s_mov_b32 s59, 0")
    a("s_mov_b32 s60, 0")
    a("s_mov_b32 s61, -1")
    a("s_lshl_b32 s46, s26, 1")
    a("s_add_u32 s46, s46, s45")
    a("s_lshl_b32 s47, s25, 2")
    a("s_lshl_b32 s48, s44, 1")
    a("s_add_u32 s47, s47, s48")
    a("s_lshl_b32 s48, s46, 17")
    a("s_lshl_b32 s49, s47, 11")
    a("s_add_u32 s48, s48, s49")
    a("s_waitcnt lgkmcnt(0)")
    srd(a, SWS, 20, 21, WS_SIZE)
    a("s_cmp_eq_u32 s24, 0")
    a("s_cbranch_scc1 K1_A")

    def reads(buf, ks):
        f = FR + 20*buf
        r = []
        r.append(f"ds_read_b128 v[{f}:{f+3}], v{XA+ks}")
        r.append(f"ds_read_b64_tr_b16 v[{f+8}:{f+9}], v{WA0} offset:{ks*2048}")
        r.append(f"ds_read_b64_tr_b16 v[{f+10}:{f+11}], v{WA0} offset:{ks*2048+512}")
        r.append(f"ds_read_b128 v[{f+4}:{f+7}], v{XA+ks} offset:4096")
        r.append(f"ds_read_b64_tr_b16 v[{f+12}:{f+13}], v{WA0} offset:{32768+ks*2048}")
        r.append(f"ds_read_b64_tr_b16 v[{f+14}:{f+15}], v{WA0} offset:{32768+ks*2048+512}")
        r.append(f"ds_read_b64_tr_b16 v[{f+16}:{f+17}], v{WA1} offset:{ks*2048}")
        r.append(f"ds_read_b64_tr_b16 v[{f+18}:{f+19}], v{WA1} offset:{ks*2048+512}")
        return r
    def mfmas(buf, kT):
        f = FR + 20*buf
        X = [vr(f, 4), vr(f+4, 4)]; Wq, Wk, Wv = vr(f+8, 4), vr(f+12, 4), vr(f+16, 4)
        m = []
        for s in range(2): m.append(f"{MF} {vr(accQ[s],16)}, {Wq}, {X[s]}, {vr(accQ[s],16)}")
        for s in range(2):
            if kT: m.append(f"{MF} {vr(accK[s],16)}, {Wk}, {X[s]}, {vr(accK[s],16)}")
            else:  m.append(f"{MF} {vr(accK[s],16)}, {X[s]}, {Wk}, {vr(accK[s],16)}")
        for s in range(2): m.append(f"{MF} {vr(accV[s],16)}, {X[s]}, {Wv}, {vr(accV[s],16)}")
        return m
    def mainloop(tag, kT):
        a("s_mov_b32 s50, 0")
        a("s_barrier")
        for r in reads(0, 0): a(r)
        a(".p2align 6")
        a.label(f"K1_{tag}_LOOP")
        for ks in range(4):
            m = mfmas(ks & 1, kT); r = reads((ks+1) & 1, (ks+1) & 3)
            if ks < 3:
                a("s_waitcnt lgkmcnt(5)"); a(m[0]); a(r[0]); a(r[1])
                a("s_waitcnt lgkmcnt(6)"); a(m[1]); a(r[2]); a(r[3])
                a("s_waitcnt lgkmcnt(6)"); a(m[2]); a(r[4]); a(r[5])
                a(m[3]); a(r[6]); a(r[7])
                if ks == 2:
                    a("s_add_u32 s50, s50, 1")
                    a("s_and_b32 s51, s50, 3")
                    a("s_lshl_b32 s52, s51, 14")
                    a("s_lshl_b32 s51, s51, 13")
                a("s_waitcnt lgkmcnt(8)"); a(m[4]); a(m[5])
            else:
                a(f"v_add_u32 v{XA}, s52, v{XB}")
                a(f"v_add_u32 v{WA0}, s51, v{WB}")
                a("s_cmp_eq_u32 s50, 7")
                a("s_waitcnt lgkmcnt(0)")
                a(f"s_cbranch_scc1 K1_{tag}_NOBAR")
                a("s_barrier")
                a.label(f"K1_{tag}_NOBAR")
                a(m[0]); a(r[0])
                a(f"v_add_u32 v{WA1}, 65536, v{WA0}")
                a(r[1])
                a(m[1]); a(r[2]); a(r[3])
                a(m[2]); a(r[4]); a(r[5])
                a(m[3]); a(r[6]); a(r[7])
                a(m[4])
                for k2 in range(1, 4):
                    a(f"v_add_u32 v{XA+k2}, s52, v{XB+k2}")
                a(m[5])
        a(f"s_cbranch_scc0 K1_{tag}_LOOP")
        a("s_nop 7")
    def cvt(dst, src, lo=0, hi=8):
        for i in range(lo, hi):
            a(f"v_cvt_pk_bf16_f32 v{dst+i}, v{src+2*i}, v{src+2*i+1}")

    for i in range(96):
        a(f"v_mov_b32 v{ACC+i}, 0")
    for s in range(2):
        a(f"v_mov_b32 v{pQ[s]+6}, 0"); a(f"v_mov_b32 v{pQ[s]+7}, 0")
        a(f"v_mov_b32 v{pKk[s]+6}, v1"); a(f"v_mov_b32 v{pKk[s]+7}, v1")
    a("v_and_b32 v15, 0x33, v0")
    a("v_bfe_u32 v1, v0, 2, 1")
    a("v_lshl_add_u32 v15, v1, 3, v15")
    a("v_bfe_u32 v1, v0, 3, 1")
    a("v_lshl_add_u32 v15, v1, 2, v15")
    a("v_lshlrev_b32 v15, 4, v15")
    a("v_lshlrev_b32 v14, 4, v0")
    a("s_lshl_b32 s53, s48, 1")
    a("s_add_u32 s54, s53, 4096")
    a(f"s_add_u32 s48, s48, {WS_QB}")
    a(f"s_mov_b32 s62, {f32(QSCALE)}")
    a(f"s_mov_b32 s63, {f32(QSCALE)}")
    mainloop("B", True)
    for s in range(2):
        for i in range(8):
            a(f"v_pk_mul_f32 {vr(accQ[s]+2*i,2)}, {vr(accQ[s]+2*i,2)}, s[62:63]")
    for s in range(2):
        cvt(pQ[s], accQ[s], 0, 6)
        cvt(pKk[s], accK[s], 0, 6)
    a("s_mov_b64 exec, s[58:59]")
    for s in range(2):
        cvt(pQ[s], accQ[s], 6, 8)
        cvt(pKk[s], accK[s], 6, 8)
    a("s_mov_b64 exec, -1")
    a("s_nop 1")
    for s in range(2):
        a(f"{MF} {vr(accQ[s],16)}, {vr(pKk[s],4)}, {vr(pQ[s],4)}, 0")
    for s in range(2):
        a(f"{MF} {vr(accQ[s],16)}, {vr(pKk[s]+4,4)}, {vr(pQ[s]+4,4)}, {vr(accQ[s],16)}")
    for s in range(2):
        so = "s53" if s == 0 else "s54"
        a(f"buffer_store_dwordx4 {vr(pKk[s],4)}, v15, s[{SWS}:{SWS+3}], {so} offen")
        a(f"buffer_store_dwordx4 {vr(pKk[s]+4,4)}, v15, s[{SWS}:{SWS+3}], {so} offen offset:1024")
    a("s_mov_b64 exec, s[56:57]")
    for s in range(2):
        cvt(pV[s], accV[s])
    a("s_mov_b64 exec, -1")
    for s in range(2):
        so = "s53" if s == 0 else "s54"
        a(f"buffer_store_dwordx4 {vr(pV[s],4)}, v14, s[{SWS}:{SWS+3}], {so} offen offset:2048")
        a(f"buffer_store_dwordx4 {vr(pV[s]+4,4)}, v14, s[{SWS}:{SWS+3}], {so} offen offset:3072")
        a(f"buffer_store_dwordx4 {vr(pQ[s],4)}, v14, s[{SWS}:{SWS+3}], s48 offen offset:{s*2048}")
    for s in range(2):
        b = accQ[s]
        a(f"v_max3_f32 v{2+s}, v{b}, v{b+1}, v{b+2}")
    for i in range(6):
        for s in range(2):
            b = accQ[s]
            a(f"v_max3_f32 v{2+s}, v{2+s}, v{b+3+2*i}, v{b+4+2*i}")
    for s in range(2):
        a(f"v_max_f32 v{2+s}, v{2+s}, v{accQ[s]+15}")
    for s in range(2):
        a(f"v_mov_b32 v{4+s}, v{2+s}")
    a("s_nop 1")
    for s in range(2):
        a(f"v_permlane32_swap_b32 v{2+s}, v{4+s}")
    for s in range(2):
        a(f"v_max_f32 v{2+s}, v{2+s}, v{4+s}")
    a("s_mov_b64 exec, s[60:61]")
    for s in range(2):
        a(f"v_cvt_pk_bf16_f32 v{pQ[s]+6}, -v{2+s}, 0")
    a("s_mov_b64 exec, -1")
    for s in range(2):
        a(f"buffer_store_dwordx4 {vr(pQ[s]+4,4)}, v14, s[{SWS}:{SWS+3}], s48 offen offset:{s*2048+1024}")
    a("s_endpgm")

    a.label("K1_A")
    a(f"v_mov_b32 v1, {f32(1.0+EPS)}")
    for i in range(64):
        a(f"v_mov_b32 v{ACC+i}, v1")
    for i in range(64, 96):
        a(f"v_mov_b32 v{ACC+i}, 0")
    for s in range(2):
        a(f"v_mov_b32 v{pQ[s]+6}, 0"); a(f"v_mov_b32 v{pQ[s]+7}, 0")
        for i in range(8):
            a(f"v_mov_b32 v{pKk[s]+i}, 0")
    a("v_lshlrev_b32 v14, 4, v0")
    a(f"s_add_u32 s48, s48, {WS_PQ}")
    a("s_lshl_b32 s53, s46, 16")
    a("s_lshl_b32 s54, s25, 12")
    a("s_add_u32 s53, s53, s54")
    a("s_lshl_b32 s54, s44, 11")
    a("s_add_u32 s53, s53, s54")
    a(f"s_add_u32 s53, s53, {WS_KVP}")
    import struct
    one_eps = struct.unpack("<f", struct.pack("<f", 1.0+EPS))[0]
    a(f"s_mov_b32 s62, {f32(LOG2E)}")
    a(f"s_mov_b32 s63, {f32(LOG2E)}")
    a(f"s_mov_b32 s64, {f32(EPS)}")
    a(f"s_mov_b32 s65, {f32(EPS)}")
    a(f"v_mov_b32 v200, {f32(-one_eps*LOG2E)}")
    a(f"v_mov_b32 v201, {f32(-one_eps*LOG2E)}")
    a("s_lshl_b32 s54, s27, 11")
    a("v_add_u32 v15, s54, v14")
    a("v_xor_b32 v13, 4096, v15")
    mainloop("A", False)
    T = FR
    a("s_waitcnt lgkmcnt(0)")
    def phi(src):
        for i in range(8):
            a(f"v_pk_fma_f32 {vr(T+2*i,2)}, {vr(src+2*i,2)}, s[62:63], v[200:201]")
        for i in range(16):
            a(f"v_exp_f32_e64 v{T+i}, v{T+i} clamp")
        for i in range(8):
            a(f"v_pk_add_f32 {vr(T+2*i,2)}, {vr(T+2*i,2)}, s[64:65]")
        for i in range(16):
            a(f"v_max_f32 v{src+i}, v{src+i}, v{T+i}")
    for s in range(2):
        phi(accK[s])
    a("s_mov_b64 exec, s[56:57]")
    for s in range(2):
        cvt(pKk[s], accK[s])
        cvt(pV[s], accV[s])
    a("s_mov_b64 exec, -1")
    a("s_nop 1")
    D = accK[0]
    a(f"{MF} {vr(D,16)}, {vr(pKk[0],4)}, {vr(pV[0],4)}, 0")
    a(f"{MF} {vr(D,16)}, {vr(pKk[0]+4,4)}, {vr(pV[0]+4,4)}, {vr(D,16)}")
    a(f"{MF} {vr(D,16)}, {vr(pKk[1],4)}, {vr(pV[1],4)}, {vr(D,16)}")
    a(f"{MF} {vr(D,16)}, {vr(pKk[1]+4,4)}, {vr(pV[1]+4,4)}, {vr(D,16)}")
    phi(accQ[0])
    a("s_cmp_eq_u32 s44, 0")
    a("s_cbranch_scc1 K1_A_RH0")
    for i in range(8):
        a(f"v_swap_b32 v{D+i}, v{D+8+i}")
    a.label("K1_A_RH0")
    a(f"ds_write_b128 v15, {vr(D+8,4)}")
    a(f"ds_write_b128 v15, {vr(D+12,4)} offset:1024")
    cvt(pQ[0], accQ[0], 0, 6)
    a("s_mov_b64 exec, s[58:59]")
    cvt(pQ[0], accQ[0], 6, 8)
    a("s_mov_b64 exec, -1")
    a(f"buffer_store_dwordx4 {vr(pQ[0],4)}, v14, s[{SWS}:{SWS+3}], s48 offen")
    a(f"buffer_store_dwordx4 {vr(pQ[0]+4,4)}, v14, s[{SWS}:{SWS+3}], s48 offen offset:1024")
    a("s_waitcnt lgkmcnt(0)")
    a("s_barrier")
    a(f"ds_read_b128 {vr(D+8,4)}, v13")
    a(f"ds_read_b128 {vr(D+12,4)}, v13 offset:1024")
    phi(accQ[1])
    a("s_waitcnt lgkmcnt(0)")
    for i in range(8):
        a(f"v_add_f32 v{D+i}, v{D+i}, v{D+8+i}")
    a(f"buffer_store_dwordx4 {vr(D,4)}, v14, s[{SWS}:{SWS+3}], s53 offen")
    a(f"buffer_store_dwordx4 {vr(D+4,4)}, v14, s[{SWS}:{SWS+3}], s53 offen offset:1024")
    cvt(pQ[1], accQ[1], 0, 6)
    a("s_mov_b64 exec, s[58:59]")
    cvt(pQ[1], accQ[1], 6, 8)
    a("s_mov_b64 exec, -1")
    a(f"buffer_store_dwordx4 {vr(pQ[1],4)}, v14, s[{SWS}:{SWS+3}], s48 offen offset:2048")
    a(f"buffer_store_dwordx4 {vr(pQ[1]+4,4)}, v14, s[{SWS}:{SWS+3}], s48 offen offset:3072")
    a.label("K1_END")
    a("s_endpgm")
    return kernel_desc("k1_kernel", 208)

def gen_k2(a):
    kernel_head(a, "k2_kernel")
    SWS = 8
    Q = [16, 24]; O = [32, 48]; S = [64, 80, 96, 112]; KV = [128, 144, 160, 176]
    KP, KL, PQ, KF = 192, 196, 204, 212
    a("s_cmp_ge_u32 s2, 256")
    a("s_cbranch_scc1 K2_END")
    a("s_load_dwordx2 s[4:5], s[0:1], 72")
    a("s_and_b32 s12, s2, 15")
    a("s_lshr_b32 s13, s2, 4")
    a("v_lshrrev_b32 v1, 6, v0")
    a("v_and_b32 v0, 63, v0")
    a("v_readfirstlane_b32 s14, v1")
    a("v_lshlrev_b32 v1, 4, v0")
    a("v_mov_b32 v2, 0xdddd")
    a("s_nop 1")
    a("s_and_b32 s15, s14, 1")
    a("s_lshr_b32 s16, s14, 1")
    a("s_lshl_b32 s17, s13, 2")
    a("s_lshl_b32 s18, s15, 1")
    a("s_add_u32 s17, s17, s18")
    a("s_add_u32 s17, s17, s16")
    a("s_xor_b32 s18, s17, 1")
    a("s_lshl_b32 s19, s12, 17")
    a("s_lshl_b32 s20, s17, 11")
    a("s_add_u32 s20, s20, s19")
    a("s_lshl_b32 s21, s18, 11")
    a("s_add_u32 s21, s21, s19")
    a(f"s_add_u32 s22, s20, {WS_PQ}")
    a(f"s_add_u32 s20, s20, {WS_QB}")
    a(f"s_add_u32 s21, s21, {WS_QB}")
    a("s_lshl_b32 s23, s12, 18")
    a("s_lshl_b32 s24, s16, 17")
    a("s_add_u32 s24, s24, s23")
    a("s_lshl_b32 s25, s12, 16")
    a("s_lshl_b32 s26, s14, 10")
    a("s_add_u32 s25, s25, s26")
    a(f"s_add_u32 s25, s25, {WS_KVP}")
    a("s_add_u32 s26, s25, 4096")
    a("s_waitcnt lgkmcnt(0)")
    srd(a, SWS, 4, 5, WS_SIZE)
    W = f"s[{SWS}:{SWS+3}]"
    def ld(dst, so, off=0):
        return f"buffer_load_dwordx4 {vr(dst,4)}, v1, {W}, {so} offen" + (f" offset:{off}" if off else "")
    a(ld(Q[0], "s20")); a(ld(KV[0], "s24")); a(ld(Q[0]+4, "s20", 1024)); a(ld(KV[0]+4, "s24", 1024))
    a(ld(Q[1], "s21")); a(ld(Q[1]+4, "s21", 1024))
    a(ld(KV[0]+8, "s24", 2048)); a(ld(KV[0]+12, "s24", 3072))
    for n in (1, 2):
        a("s_add_u32 s24, s24, 4096")
        for f in range(4): a(ld(KV[n]+4*f, "s24", 1024*f))
    a("s_add_u32 s24, s24, 4096")
    a(ld(PQ, "s22")); a(ld(PQ+4, "s22", 1024))
    for i in range(32): a(f"v_mov_b32 v{O[0]+i}, 0")
    for i in range(8): a(f"v_mov_b32 v{S[3]+8+i}, 0")
    for i in range(4): a(f"v_mov_b32 v{KV[3]+12+i}, 0")
    for i in range(12): a(f"v_mov_b32 v{KP+i}, 0")
    a("s_mov_b32 s27, 8")
    a("s_waitcnt vmcnt(14)")
    a(f"{MF} {vr(S[0],16)}, {vr(KV[0],4)}, {vr(Q[0],4)}, 0")
    a(f"{MF} {vr(S[0],16)}, {vr(KV[0]+4,4)}, {vr(Q[0]+4,4)}, {vr(S[0],16)}")
    a("s_waitcnt vmcnt(10)")
    a("s_nop 9")
    a(".p2align 6")
    a.label("K2_LOOP")
    for u in range(8):
        n = u >> 1; sub = u & 1
        cur = S[u & 3]; nxt = S[(u+1) & 3]; prv = S[(u-1) & 3]
        kn = KV[((u+1) >> 1) & 3]; qn = Q[(u+1) & 1]
        vp = KV[((u-1) >> 1) & 3]; vc = KV[n & 3]
        lb = KV[(n+3) & 3]
        e = [f"v_exp_f32 v{cur+i}, v{cur+i}" for i in range(16)]
        a(f"{MF} {vr(nxt,16)}, {vr(kn,4)}, {vr(qn,4)}, 0")
        if sub == 1: a(ld(lb+8, "s24", 2048))
        for x in e[0:4]: a(x)
        a(f"{SM} {vr(O[(u-1)&1],16)}, {vr(vp+12,4)}, {vr(prv+8,8)}, v2")
        if u == 0:
            for i in range(4): a(f"v_add_f32 v{KP+i}, v{KP+i}, v{KL+i}")
            for i in range(4): a(f"v_add_f32 v{KP+i}, v{KP+i}, v{KL+4+i}")
            a(ld(KL, "s25")); a(ld(KL+4, "s26"))
            a("s_add_u32 s25, s25, 8192")
            a("s_add_u32 s26, s26, 8192")
        if sub == 0: a(ld(lb, "s24"))
        for x in e[4:6]: a(x)
        for x in e[6:8]: a(x)
        a(f"{MF} {vr(nxt,16)}, {vr(kn+4,4)}, {vr(qn+4,4)}, {vr(nxt,16)}")
        if sub == 1: a(ld(lb+12, "s24", 3072))
        for x in e[8:12]: a(x)
        a(f"{SM} {vr(O[sub],16)}, {vr(vc+8,4)}, {vr(cur,8)}, v2")
        if sub == 0:
            a(ld(lb+4, "s24", 1024))
            a(f"s_waitcnt vmcnt({8 if u == 0 else 6})")
        else:
            a("s_add_u32 s24, s24, 4096")
            if u == 5: a("s_sub_u32 s27, s27, 1")
            if u == 7: a("s_cmp_lg_u32 s27, 0")
        for x in e[12:16]: a(x)
    a("s_cbranch_scc1 K2_LOOP")
    a("s_nop 0")
    a(f"{SM} {vr(O[1],16)}, {vr(KV[3]+12,4)}, {vr(S[3]+8,8)}, v2")
    a("s_waitcnt vmcnt(12)")
    for i in range(4): a(f"v_add_f32 v{KP+i}, v{KP+i}, v{KL+i}")
    for i in range(4): a(f"v_add_f32 v{KP+i}, v{KP+i}, v{KL+4+i}")
    a(f"v_cvt_pk_bf16_f32 v{KP}, v{KP}, v{KP+1}")
    a(f"v_cvt_pk_bf16_f32 v{KP+1}, v{KP+2}, v{KP+3}")
    a("s_lshl_b32 s28, s16, 10")
    a("s_lshl_b32 s29, s15, 3")
    a("s_add_u32 s28, s28, s29")
    a("v_add_u32 v3, s28, v1")
    a(f"ds_write_b64 v3, {vr(KP,2)} offset:16384")
    a("s_lshl_b32 s28, s14, 12")
    a("v_add_u32 v3, s28, v1")
    a("v_xor_b32 v4, 8192, v3")
    a("s_nop 3")
    for i in range(4):
        a(f"ds_write_b128 v3, {vr(O[1]+4*i,4)} offset:{1024*i}")
    a("s_mul_i32 s28, s12, 7")
    a("v_lshrrev_b32 v5, 5, v0")
    a("v_add_u32 v5, s28, v5")
    a("v_lshrrev_b32 v6, 1, v5")
    a("v_and_b32 v5, 1, v5")
    a("v_lshlrev_b32 v5, 3, v5")
    a("v_lshl_add_u32 v5, v6, 9, v5")
    a("v_and_b32 v6, 31, v0")
    a("v_lshl_add_u32 v5, v6, 4, v5")
    a("s_mul_i32 s28, s17, 57344")
    a(f"s_add_u32 s28, s28, {WS_OF}")
    a("s_add_u32 s29, s28, 28672")
    a("s_waitcnt lgkmcnt(0)")
    a("s_barrier")
    a(f"ds_read_b128 {vr(KF,4)}, v1 offset:16384")
    a(f"ds_read_b128 {vr(KF+4,4)}, v1 offset:17408")
    for i in range(4):
        a(f"ds_read_b128 {vr(S[1]+4*i,4)}, v4 offset:{1024*i}")
    a("s_waitcnt lgkmcnt(4)")
    a(f"{MF} {vr(S[0],16)}, {vr(KF,4)}, {vr(PQ,4)}, 0")
    a(f"{MF} {vr(S[0],16)}, {vr(KF+4,4)}, {vr(PQ+4,4)}, {vr(S[0],16)}")
    a("s_waitcnt lgkmcnt(0)")
    for i in range(16): a(f"v_add_f32 v{O[0]+i}, v{O[0]+i}, v{S[1]+i}")
    a.label("K2_FIN")
    a(f"v_mov_b32 v6, v{O[0]+12}")
    a(f"v_mov_b32 v7, v{O[0]+12}")
    a("s_nop 1")
    a("v_permlane32_swap_b32 v6, v7")
    a(f"s_mov_b32 s30, {f32(2.0**-30)}")
    a(f"s_mov_b32 s31, {f32(2.0**64)}")
    a("v_cmp_nge_f32 vcc, v7, s30")
    a("v_cmp_nle_f32 s[32:33], v7, s31")
    a("v_rcp_f32 v7, v7")
    a("s_or_b64 vcc, vcc, s[32:33]")
    a("s_cbranch_scc1 K2_FALLBACK")
    a.label("K2_FIN2")
    def fin(src, dst, so):
        for i in range(8):
            a(f"v_pk_mul_f32 {vr(src+2*i,2)}, {vr(src+2*i,2)}, v[6:7] op_sel:[0,1] op_sel_hi:[1,1]")
        for i in range(8):
            a(f"v_cvt_pk_bf16_f32 v{dst+i}, v{src+2*i}, v{src+2*i+1}")
        for i in range(3):
            a(f"buffer_store_dwordx2 {vr(dst+2*i,2)}, v5, {W}, {so} offen offset:{512*i}")
        a("s_mov_b32 exec_hi, 0")
        a(f"buffer_store_dwordx2 {vr(dst+6,2)}, v5, {W}, {so} offen offset:1536")
        a("s_mov_b32 exec_hi, -1")
    fin(O[0], S[2], "s29")
    a(f"v_mov_b32 v6, v{S[0]+12}")
    a(f"v_mov_b32 v7, v{S[0]+12}")
    a("s_nop 1")
    a("v_permlane32_swap_b32 v6, v7")
    a(f"v_add_f32 v7, {f32(EPS)}, v7")
    a("v_rcp_f32 v7, v7")
    a("s_nop 0")
    fin(S[0], S[2]+8, "s28")
    a.label("K2_END")
    a("s_endpgm")
    a.label("K2_FALLBACK")
    a("s_waitcnt vmcnt(0)")
    a("s_mov_b32 s34, s23")
    a("s_mov_b32 s27, 64")
    a(f"v_mov_b32 v8, {f32(float('-inf'))}")
    a.label("K2_FB1")
    a(ld(KV[0], "s34")); a(ld(KV[0]+4, "s34", 1024))
    a("s_waitcnt vmcnt(0)")
    a(f"{MF} {vr(S[1],16)}, {vr(KV[0],4)}, {vr(Q[0],4)}, 0")
    a(f"{MF} {vr(S[1],16)}, {vr(KV[0]+4,4)}, {vr(Q[0]+4,4)}, {vr(S[1],16)}")
    a("s_add_u32 s34, s34, 4096")
    a("s_sub_u32 s27, s27, 1")
    a("s_nop 15")
    for i in range(8):
        a(f"v_max3_f32 v8, v8, v{S[1]+2*i}, v{S[1]+2*i+1}")
    a("s_cmp_lg_u32 s27, 0")
    a("s_cbranch_scc1 K2_FB1")
    a("v_mov_b32 v9, v8")
    a("s_nop 1")
    a("v_permlane32_swap_b32 v8, v9")
    a("v_max_f32 v8, v8, v9")
    a("v_and_b32 v9, 0xffff0000, v8")
    a("v_sub_f32 v8, v8, v9")
    a("v_and_b32 v10, 0xffff0000, v8")
    a("v_sub_f32 v8, v8, v10")
    a("s_mov_b32 exec_lo, 0")
    a(f"v_and_b32 v{Q[0]+6}, 0xffff, v{Q[0]+6}")
    a("v_xor_b32 v9, 0x80000000, v9")
    a(f"v_or_b32 v{Q[0]+6}, v{Q[0]+6}, v9")
    a(f"v_cvt_pk_bf16_f32 v{Q[0]+7}, -v10, -v8")
    a("s_mov_b32 exec_lo, -1")
    for i in range(16): a(f"v_mov_b32 v{O[0]+i}, 0")
    a("s_mov_b32 s34, s23")
    a("s_mov_b32 s27, 64")
    a.label("K2_FB2")
    for f in range(4): a(ld(KV[0]+4*f, "s34", 1024*f))
    a("s_waitcnt vmcnt(0)")
    a(f"{MF} {vr(S[1],16)}, {vr(KV[0],4)}, {vr(Q[0],4)}, 0")
    a(f"{MF} {vr(S[1],16)}, {vr(KV[0]+4,4)}, {vr(Q[0]+4,4)}, {vr(S[1],16)}")
    a("s_add_u32 s34, s34, 4096")
    a("s_sub_u32 s27, s27, 1")
    a("s_nop 15")
    for i in range(16): a(f"v_exp_f32 v{S[1]+i}, v{S[1]+i}")
    a("s_nop 1")
    a(f"{SM} {vr(O[0],16)}, {vr(KV[0]+8,4)}, {vr(S[1],8)}, v2")
    a(f"{SM} {vr(O[0],16)}, {vr(KV[0]+12,4)}, {vr(S[1]+8,8)}, v2")
    a("s_cmp_lg_u32 s27, 0")
    a("s_cbranch_scc1 K2_FB2")
    a("s_nop 15")
    a(f"v_mov_b32 v6, v{O[0]+12}")
    a(f"v_mov_b32 v7, v{O[0]+12}")
    a("s_nop 1")
    a("v_permlane32_swap_b32 v6, v7")
    a("v_rcp_f32 v7, v7")
    a("s_nop 0")
    a("s_branch K2_FIN2")
    return kernel_desc("k2_kernel", 224)

def gen_k3(a):
    kernel_head(a, "k3_kernel")
    SWS, SWO, SO = 20, 24, 28
    WF = [16, 24]; ACC = [32, 48]; OFR = 64
    a("s_cmp_ge_u32 s2, 224")
    a("s_cbranch_scc1 K3_END")
    a("s_load_dwordx2 s[4:5], s[0:1], 16")
    a("s_load_dwordx2 s[6:7], s[0:1], 40")
    a("s_load_dwordx2 s[8:9], s[0:1], 56")
    a("s_load_dwordx2 s[10:11], s[0:1], 72")
    a("s_and_b32 s12, s2, 7")
    a("s_lshr_b32 s13, s2, 3")
    a("s_mul_i32 s14, s13, 37")
    a("s_lshr_b32 s14, s14, 8")
    a("s_mul_i32 s15, s14, 7")
    a("s_sub_u32 s15, s13, s15")
    a("s_lshl_b32 s12, s12, 2")
    a("s_add_u32 s14, s14, s12")
    a("v_lshrrev_b32 v1, 6, v0")
    a("v_and_b32 v0, 63, v0")
    a("v_readfirstlane_b32 s16, v1")
    a("v_lshlrev_b32 v1, 4, v0")
    dma_lane_w(a, 2, 3, 4, 896)
    a("s_and_b32 s17, s16, 1")
    a("s_lshr_b32 s18, s16, 1")
    a("s_mul_i32 s32, s17, 7168")
    a("s_lshl_b32 s33, s15, 7")
    a("s_add_u32 s32, s32, s33")
    a("s_mul_i32 s33, s18, 57344")
    a("s_lshl_b32 s34, s17, 10")
    a("s_add_u32 s34, s34, s33")
    a("s_lshl_b32 s35, s14, 1")
    a("s_add_u32 s35, s35, s17")
    a("s_mul_i32 s36, s35, 57344")
    a("s_mul_i32 s37, s18, 28672")
    a("s_add_u32 s36, s36, s37")
    a(f"s_add_u32 s36, s36, {WS_OF}")
    a("v_mov_b32 v4, 0")
    tr_lane_addr(a, 3, 4, 5, 6)
    a("v_add_u32 v3, s33, v3")
    a("v_xor_b32 v4, 64, v3")
    a("v_and_b32 v5, 31, v0")
    a("s_lshl_b32 s37, s35, 5")
    a("v_add_u32 v5, s37, v5")
    a("v_lshlrev_b32 v6, 2, v5")
    a(f"s_mov_b32 s38, {WS_G}")
    a("s_waitcnt lgkmcnt(0)")
    srd(a, SWS, 10, 11, WS_SIZE)
    a("s_cmp_eq_u32 s18, 0")
    a(f"s_cselect_b32 s{SWO}, s4, s6")
    a(f"s_cselect_b32 s{SWO+1}, s5, s7")
    a(f"s_mov_b32 s{SWO+2}, 401408")
    a(f"s_mov_b32 s{SWO+3}, 0x20000")
    srd(a, SO, 8, 9, 1835008)
    W = f"s[{SWS}:{SWS+3}]"
    def loads(ks):
        r = [f"s_mov_b32 m0, s34",
             f"s_add_u32 s34, s34, 2048",
             f"buffer_load_dwordx4 v2, s[{SWO}:{SWO+3}], s32 offen lds",
             f"s_add_u32 s32, s32, 14336",
             f"buffer_load_dwordx4 {vr(OFR+4*ks,4)}, v1, {W}, s36 offen" + (f" offset:{1024*(ks&3)}" if ks & 3 else "")]
        if ks & 3 == 3: r.append("s_add_u32 s36, s36, 4096")
        return r
    a(f"buffer_load_dword v10, v6, {W}, s38 offen")
    PD = 8
    for ks in range(PD):
        for x in loads(ks): a(x)
    for i in range(32): a(f"v_mov_b32 v{ACC[0]+i}, 0")
    def reads(ks):
        f = WF[ks & 1]
        return [f"ds_read_b64_tr_b16 {vr(f,2)}, v3 offset:{ks*2048}",
                f"ds_read_b64_tr_b16 {vr(f+2,2)}, v3 offset:{ks*2048+512}",
                f"ds_read_b64_tr_b16 {vr(f+4,2)}, v4 offset:{ks*2048}",
                f"ds_read_b64_tr_b16 {vr(f+6,2)}, v4 offset:{ks*2048+512}"]
    issued = PD
    a(f"s_waitcnt vmcnt({2*(issued-4)})")
    a("s_barrier")
    for x in reads(0): a(x)
    for ks in range(28):
        f = WF[ks & 1]
        nxt = ks + 1
        if nxt < 28 and nxt % 4 == 0:
            a(f"s_waitcnt vmcnt({2*(issued-(nxt+4))})")
            a("s_barrier")
        a("s_waitcnt lgkmcnt(2)")
        a(f"{MF} {vr(ACC[0],16)}, {vr(f,4)}, {vr(OFR+4*ks,4)}, {vr(ACC[0],16)}")
        rd = reads(nxt) if nxt < 28 else []
        for x in rd[:2]: a(x)
        a(f"s_waitcnt lgkmcnt({2 if rd else 0})")
        a(f"{MF} {vr(ACC[1],16)}, {vr(f+4,4)}, {vr(OFR+4*ks,4)}, {vr(ACC[1],16)}")
        for x in rd[2:]: a(x)
        if issued < 28:
            for x in loads(issued): a(x)
            issued += 1
    a("v_sub_f32 v11, 1.0, v10")
    a("s_cmp_eq_u32 s18, 0")
    a("s_cbranch_scc1 K3_BR0")
    a("v_mov_b32 v10, v11")
    a("s_nop 7")
    for i in range(16):
        a(f"v_swap_b32 v{ACC[0]+i}, v{ACC[1]+i}")
    a.label("K3_BR0")
    a("s_lshl_b32 s37, s16, 12")
    a("s_add_u32 s37, s37, 114688")
    a("v_add_u32 v7, s37, v1")
    a("v_xor_b32 v8, 8192, v7")
    a("s_nop 7")
    for i in range(8):
        a(f"v_pk_mul_f32 {vr(ACC[1]+2*i,2)}, {vr(ACC[1]+2*i,2)}, v[10:11] op_sel_hi:[1,0]")
    for i in range(4):
        a(f"ds_write_b128 v7, {vr(ACC[1]+4*i,4)} offset:{1024*i}")
    a("v_mul_u32_u24 v5, 896, v5")
    a("v_lshrrev_b32 v6, 5, v0")
    a("v_lshl_add_u32 v5, v6, 4, v5")
    a("s_lshl_b32 s37, s15, 7")
    a("s_lshl_b32 s38, s18, 6")
    a("s_add_u32 s37, s37, s38")
    a("s_waitcnt lgkmcnt(0)")
    a("s_barrier")
    for i in range(4):
        a(f"ds_read_b128 {vr(ACC[1]+4*i,4)}, v8 offset:{1024*i}")
    for q in range(4):
        a(f"s_waitcnt lgkmcnt({3-q})")
        for i in range(2*q, 2*q+2):
            a(f"v_pk_fma_f32 {vr(ACC[0]+2*i,2)}, {vr(ACC[0]+2*i,2)}, v[10:11], {vr(ACC[1]+2*i,2)} op_sel_hi:[1,0,1]")
    for i in range(8):
        a(f"v_cvt_pk_bf16_f32 v{16+i}, v{ACC[0]+2*i}, v{ACC[0]+2*i+1}")
    a("s_nop 1")
    a("v_permlane32_swap_b32 v16, v18")
    a("v_permlane32_swap_b32 v17, v19")
    a("v_permlane32_swap_b32 v20, v22")
    a("v_permlane32_swap_b32 v21, v23")
    a(f"buffer_store_dwordx4 v[16:19], v5, s[{SO}:{SO+3}], s37 offen")
    a(f"buffer_store_dwordx4 v[20:23], v5, s[{SO}:{SO+3}], s37 offen offset:32")
    a.label("K3_END")
    a("s_endpgm")
    return kernel_desc("k3_kernel", 176)

def main():
    a = Asm()
    head = """; gated mix of a linear-attention block and a softmax-attention block (S=2048, D=448, H=16)
; @launch kernel=k1_kernel grid=(256,1,1) block=(512,1,1) lds=163840
; @launch kernel=k2_kernel grid=(256,1,1) block=(256,1,1) lds=18432
; @launch kernel=k3_kernel grid=(224,1,1) block=(256,1,1) lds=131072
.amdgcn_target "amdgcn-amd-amdhsa--gfx950"
.text
"""
    d = [gen_k1(a), gen_k2(a), gen_k3(a)]
    out = head + a.text() + '.section .rodata,"a"\n' + "".join(d)
    path = sys.argv[1] if len(sys.argv) > 1 else f"cdna_kernels/{NAME}.s"
    open(path, "w").write(out)
main()
```

```python
import math, sys, os, struct
from asmlib import *

NAME = "gated_mix__linear_attn_block__mha_block__prompt"
KN = NAME + "_kernel"
WS_KV  = 0
WS_CNT = 5 << 20
WS_KVP = 6 << 20
WS_OF  = 8 << 20
PAD = int(os.environ.get("PAD", "69632"))
WS_ST  = 14 << 20
WS_SIZE = 16 << 20
LOG2E = 1.4426950408889634
QSCALE = LOG2E * 28 ** -0.5
EPS = 1e-6
ONE2 = 0x3F803F80
RING = 114688
L_KVD = RING
L_G   = RING + 16384 + 4096
L_KVF = RING + 16384 + 12288
L_CNT = RING + 16384 + 14336
L_QD  = RING + 32768
L_PQ  = RING + 32768 + 8192
STAMP = int(os.environ.get("STAMP", "0"))
X = set(os.environ.get("X", "").split(","))
MF = "v_mfma_f32_32x32x16_bf16"
SM = "v_smfmac_f32_32x32x32_bf16"
SX, SW, SWA, SWB, SWS, SD, SG = 36, 40, 44, 48, 52, 56, 60
WSR = f"s[{SWS}:{SWS+3}]"
SPIN = 200000

def srd(a, d, lo, size):
    a(f"s_mov_b32 s{d}, s{lo}")
    a(f"s_mov_b32 s{d+1}, s{lo+1}")
    a(f"s_mov_b32 s{d+2}, {size}")
    a(f"s_mov_b32 s{d+3}, 0x20000")
def R(d): return f"s[{d}:{d+3}]"

def stamp(a, i, mode=1):
    if not STAMP: return
    if mode is not None and mode != STAMP: return
    if i == 0: a("s_memrealtime s[96:97]")
    a(f"s_memtime s[94:95]")
    a("s_waitcnt lgkmcnt(0)")
    a(f"s_mov_b32 s{70+i}, s94")
def stampc(a, i):
    stamp(a, i, None)
def stamp_out(a, n):
    if not STAMP: return
    a("s_memrealtime s[98:99]")
    a("s_waitcnt lgkmcnt(0)")
    a("s_mov_b64 exec, 1")
    a("s_lshl_b32 s94, s2, 3")
    a("s_add_u32 s94, s94, s35")
    a("s_lshl_b32 s94, s94, 7")
    a(f"s_add_u32 s94, s94, {WS_ST}")
    a("v_mov_b32 v1, 0")
    for i in range(n):
        a(f"v_mov_b32 v2, s{70+i}")
        a(f"buffer_store_dword v2, v1, {WSR}, s94 offen offset:{4*i}")
    a("v_mov_b32 v2, s96")
    a(f"buffer_store_dword v2, v1, {WSR}, s94 offen offset:120")
    a("v_mov_b32 v2, s98")
    a(f"buffer_store_dword v2, v1, {WSR}, s94 offen offset:124")

def dma_lane_w(a, vdst, vt0, vt1, rowstride):
    a(f"v_lshrrev_b32 v{vt0}, 4, v0")
    a(f"v_bfe_u32 v{vt1}, v0, 2, 2")
    a(f"v_and_b32 v{vdst}, 1, v{vt0}")
    if "noswz" not in X: a(f"v_xor_b32 v{vt1}, v{vt1}, v{vdst}")
    a(f"v_lshrrev_b32 v{vdst}, 1, v{vt1}")
    a(f"v_lshl_add_u32 v{vt0}, v{vt0}, 1, v{vdst}")
    a(f"v_mul_u32_u24 v{vt0}, {rowstride}, v{vt0}")
    a(f"v_and_b32 v{vt1}, 1, v{vt1}")
    a(f"v_lshl_add_u32 v{vt0}, v{vt1}, 6, v{vt0}")
    a(f"v_and_b32 v{vt1}, 3, v0")
    a(f"v_lshl_add_u32 v{vdst}, v{vt1}, 4, v{vt0}")

def tr_lane_addr(a, vdst, vb, vt0, vt1, hlshift):
    a(f"v_bfe_u32 v{vt0}, v0, 4, 1")
    a(f"v_lshl_add_u32 v{vb}, v{vt0}, 5, v{vb}")
    a(f"v_and_b32 v{vt0}, 3, v0")
    a(f"v_lshl_add_u32 v{vb}, v{vt0}, 3, v{vb}")
    a(f"v_bfe_u32 v{vt0}, v0, 2, 1")
    a(f"v_lshrrev_b32 v{vt1}, 6, v{vb}")
    a(f"v_lshl_add_u32 v{vt0}, v{vt0}, 1, v{vt1}")
    a(f"v_bfe_u32 v{vt1}, v0, 3, 1")
    a(f"v_xor_b32 v{vt0}, v{vt0}, v{vt1}")
    a(f"v_and_b32 v{vb}, 63, v{vb}")
    a(f"v_lshl_add_u32 v{vb}, v{vt0}, 6, v{vb}")
    a(f"v_lshrrev_b32 v{vt0}, 5, v0")
    a(f"v_lshl_add_u32 v{vt0}, v{vt0}, {hlshift}, v{vt1}")
    a(f"v_lshl_add_u32 v{vdst}, v{vt0}, 8, v{vb}")

C_KV, C_A, C_OA, C_OB = WS_CNT, WS_CNT + 32*128, WS_CNT + 40*128, WS_CNT + 72*128
def poll(a, tag, srdreg, soff, target, vz, vt, sleep=0):
    a("s_mov_b64 exec, 1")
    a(f"s_mov_b32 s68, {SPIN}")
    if sleep:
        a(f"s_branch POLL_{tag}")
        a.label(f"POLLS_{tag}")
        a(f"s_sleep {sleep}")
    a.label(f"POLL_{tag}")
    a(f"buffer_load_dword v{vt}, v{vz}, {srdreg}, {soff} offen sc1")
    a("s_waitcnt vmcnt(0)")
    a(f"v_readfirstlane_b32 s69, v{vt}")
    a("s_sub_u32 s68, s68, 1")
    a(f"s_cbranch_scc1 POLLX_{tag}")
    a(f"s_cmp_ge_u32 s69, {target}")
    a(f"s_cbranch_scc0 POLL{'S' if sleep else ''}_{tag}")
    a.label(f"POLLX_{tag}")
    a("s_mov_b64 exec, -1")

def signal(a, soff, vz, vt):
    a("s_mov_b64 exec, 1")
    a(f"v_mov_b32 v{vt}, 1")
    a(f"buffer_atomic_add v{vt}, v{vz}, {WSR}, {soff} offen sc1")
    a("s_mov_b64 exec, -1")

def cvt(a, dst, src, lo=0, hi=8):
    for i in range(lo, hi):
        a(f"v_cvt_pk_bf16_f32 v{dst+i}, v{src+2*i}, v{src+2*i+1}")

def vadd(a, dst, src, n):
    for i in range(n): a(f"v_add_f32 v{dst+i}, v{dst+i}, v{src+i}")
def vmul(a, dst, mul, n):
    for i in range(n): a(f"v_mul_f32 v{dst+i}, {mul}, v{dst+i}")

def phi(a, src, T):
    for i in range(8):
        if "pkphi" in X:
            a(f"v_pk_fma_f32 {vr(T+2*i,2)}, {vr(src+2*i,2)}, s[64:65], s[64:65] neg_lo:[0,0,1] neg_hi:[0,0,1]")
        else:
            for k in range(2): a(f"v_fma_f32 v{T+2*i+k}, v{src+2*i+k}, s64, -s64")
    for i in range(16):
        a(f"v_exp_f32_e64 v{T+i}, v{T+i} clamp")
    for i in range(16):
        a(f"v_max_f32 v{src+i}, v{src+i}, v{T+i}")
    for i in range(8):
        if "pkphi" in X:
            a(f"v_pk_add_f32 {vr(src+2*i,2)}, {vr(src+2*i,2)}, s[66:67]")
        else:
            for k in range(2): a(f"v_add_f32 v{src+2*i+k}, s66, v{src+2*i+k}")

def p3_addr(a, v0a, mat_off_sgpr, vt0, vt1):
    a(f"v_mov_b32 v{v0a+1}, 0")
    tr_lane_addr(a, v0a, v0a+1, vt0, vt1, 1)
    a(f"v_add_u32 v{v0a}, {mat_off_sgpr}, v{v0a}")
    a(f"v_xor_b32 v{v0a+1}, 64, v{v0a}")
    a(f"v_lshrrev_b32 v{vt0}, 5, v0")
    a(f"v_lshlrev_b32 v{vt0}, 9, v{vt0}")
    a(f"v_sub_u32 v{v0a+2}, v{v0a}, v{vt0}")
    a(f"v_sub_u32 v{v0a+3}, v{v0a+1}, v{vt0}")

def p3_gemm(a, va, ACC, WF, first_zero, vmwait):
    def reads(ks):
        f = WF[ks & 1]; hh, m = ks >> 1, ks & 1
        o = (14*hh + 8*m) * 256
        last = (ks == 15)
        return [f"ds_read_b64_tr_b16 {vr(f,2)}, v{va} offset:{o}",
                f"ds_read_b64_tr_b16 {vr(f+2,2)}, v{va+2 if last else va} offset:{o+1024}",
                f"ds_read_b64_tr_b16 {vr(f+4,2)}, v{va+1} offset:{o}",
                f"ds_read_b64_tr_b16 {vr(f+6,2)}, v{va+3 if last else va+1} offset:{o+1024}"]
    for x in reads(0): a(x)
    for ks in range(16):
        f = WF[ks & 1]
        rd = reads(ks+1) if ks < 15 else []
        c0 = "0" if (first_zero and ks == 0) else vr(ACC[0], 16)
        c1 = "0" if (first_zero and ks == 0) else vr(ACC[1], 16)
        if vmwait: a(f"s_waitcnt vmcnt({15-ks}) lgkmcnt(2)")
        else: a("s_waitcnt lgkmcnt(2)")
        a(f"{MF} {vr(ACC[0],16)}, {vr(f,4)}, {ar(4*ks,4)}, {c0}")
        for x in rd[:2]: a(x)
        a(f"s_waitcnt lgkmcnt({2 if rd else 0})")
        a(f"{MF} {vr(ACC[1],16)}, {vr(f+4,4)}, {ar(4*ks,4)}, {c1}")
        for x in rd[2:]: a(x)

def p3_oloads(a, vlane16, so):
    for ks in range(16):
        a(f"buffer_load_dwordx4 {ar(4*ks,4)}, v{vlane16}, {WSR}, {so} offen offset:{1024*(ks&3)} sc1")
        if ks & 3 == 3 and ks < 15: a(f"s_add_u32 {so}, {so}, 4096")

def gen(a):
    kernel_head(a, KN)
    a("s_cmp_ge_u32 s2, 256")
    a("s_cbranch_scc1 L_END")
    a("s_load_dwordx16 s[4:19], s[0:1], 0")
    a("s_load_dwordx4 s[20:23], s[0:1], 64")
    if STAMP:
        a("s_memrealtime s[96:97]")
        a("s_memtime s[70:71]")
    a("s_and_b32 s64, s2, 7")
    a("s_lshr_b32 s32, s2, 3")
    a("s_lshr_b32 s34, s64, 1")
    a("s_and_b32 s33, s64, 1")
    a("s_lshr_b32 s29, s32, 3")
    a("s_lshl_b32 s24, s34, 2")
    a("s_add_u32 s24, s24, s29")
    a("s_and_b32 s26, s32, 1")
    a("s_bfe_u32 s25, s32, 0x20001")
    a("s_lshl_b32 s65, s33, 2")
    a("s_add_u32 s25, s25, s65")
    a("s_lshl_b32 s28, s25, 1")
    a("s_cmp_eq_u32 s26, s33")
    a("s_addc_u32 s28, s28, 0")
    a("s_mul_i32 s30, s32, 37")
    a("s_lshr_b32 s30, s30, 8")
    a("s_mul_i32 s31, s30, 7")
    a("s_sub_u32 s31, s32, s31")
    a("s_lshl_b32 s64, s64, 2")
    a("s_add_u32 s30, s30, s64")
    a("v_lshrrev_b32 v1, 6, v0")
    a("v_and_b32 v0, 63, v0")
    a("v_readfirstlane_b32 s27, v1")
    a("s_nop 3")
    a("s_mov_b32 s35, s27")
    a("s_cmp_ge_u32 s27, 4")
    a("s_cbranch_scc0 L_COMPUTE")
    helper(a)
    compute(a)
    a.label("L_END")
    a("s_endpgm")
    a.label("L_CODE_END")

def helper(a):
    a("s_sub_u32 s27, s27, 4")
    a("s_setprio " + os.environ.get("PRIO", "2"))
    ROT = os.environ.get("ROT", "2")
    a("s_and_b32 s64, s32, 7")
    a("s_add_u32 s64, s64, s29")
    if ROT == "0":
        a("s_mov_b32 s84, 0")
    elif ROT == "2":
        a("s_add_u32 s64, s64, s34")
        a("s_and_b32 s64, s64, 1")
        a("s_mul_i32 s84, s64, 3")
    elif ROT == "3":
        a("s_add_u32 s64, s64, s34")
        a("s_mul_i32 s65, s64, 86")
        a("s_lshr_b32 s65, s65, 8")
        a("s_mul_i32 s65, s65, 3")
        a("s_sub_u32 s64, s64, s65")
        a("s_mul_i32 s84, s64, 5")
        a("s_lshr_b32 s84, s84, 1")
    elif ROT == "4":
        a("s_add_u32 s64, s64, s34")
        a("s_and_b32 s64, s64, 3")
        a("s_lshl_b32 s84, s64, 1")
    elif ROT == "7":
        a("s_add_u32 s64, s64, s29")
        a("s_add_u32 s64, s64, s34")
        a("s_mul_i32 s65, s64, 37")
        a("s_lshr_b32 s65, s65, 8")
        a("s_mul_i32 s65, s65, 7")
        a("s_sub_u32 s84, s64, s65")
    for i in range(1, 7):
        a(f"s_add_u32 s{84+i}, s{83+i}, 1")
        a(f"s_cmp_eq_u32 s{84+i}, 7")
        a(f"s_cselect_b32 s{84+i}, 0, s{84+i}")
    a("v_lshrrev_b32 v1, 3, v0")
    a("s_lshl_b32 s64, s24, 7")
    a("s_lshl_b32 s65, s27, 5")
    a("s_add_u32 s64, s64, s65")
    a("v_add_u32 v1, s64, v1")
    a("v_mul_u32_u24 v1, 896, v1")
    a("v_lshrrev_b32 v2, 4, v0")
    a("v_and_b32 v3, 7, v0")
    a("v_xor_b32 v2, v2, v3")
    a("v_lshl_add_u32 v2, v2, 4, v1")
    a("v_xor_b32 v3, 64, v2")
    a("v_add_u32 v3, 7168, v3")
    a("v_add_u32 v4, 14336, v2")
    a("v_add_u32 v5, 14336, v3")
    dma_lane_w(a, 6, 10, 11, 2688)
    a("s_mul_i32 s64, s27, 43008")
    a("s_mul_i32 s65, s25, %d" % (128 if "al128" in X else 64 if "al64" in X else 112))
    a("s_add_u32 s64, s64, s65")
    a("s_add_u32 s64, s64, 896")
    a("v_add_u32 v6, s64, v6")
    a("v_add_u32 v7, 21504, v6")
    a("v_add_u32 v8, 896, v6")
    a("v_add_u32 v9, 896, v7")
    a("s_lshl_b32 s66, s27, 12")
    a("s_lshl_b32 s67, s27, 11")
    a(f"s_add_u32 s67, s67, {RING}")
    a("s_waitcnt lgkmcnt(0)")
    srd(a, SX, 4, 1835008)
    a("s_cmp_eq_u32 s26, 0")
    a(f"s_cselect_b32 s{SW}, s6, s12")
    a(f"s_cselect_b32 s{SW+1}, s7, s13")
    a(f"s_mov_b32 s{SW+2}, 1204224")
    a(f"s_mov_b32 s{SW+3}, 0x20000")
    vm = []
    def xload(c):
        a(f"s_lshl_b32 s64, s{84+c}, 7")
        for q in range(4):
            a(f"s_add_u32 m0, s66, {c*16384 + q*1024}")
            a("s_nop 0")
            a(f"buffer_load_dwordx4 v{2+q}, {R(SX)}, s64 offen lds"); vm.append(("x", c))
    def wload(c):
        a(f"s_mul_i32 s65, s{84+c}, 172032")
        for pt in range(2):
            for u in range(2):
                a(f"s_add_u32 m0, s67, {(c%3)*16384 + pt*8192 + u*1024}")
                a("s_nop 0")
                a(f"buffer_load_dwordx4 v{6+2*pt+u}, {R(SW)}, s65 offen lds"); vm.append(("w", c))
    def qload(d):
        a("s_cmp_ge_u32 s27, 2")
        a(f"s_cselect_b32 s65, s{84+min(2*d+1,6)}, s{84+2*d}")
        a("s_mul_i32 s65, s65, 172032")
        for mat in range(2):
            for u in range(2):
                a(f"s_add_u32 m0, s67, {((7+d)%3)*16384 + mat*8192 + u*1024}")
                a("s_nop 0")
                a(f"buffer_load_dwordx4 v{10+u}, {R(SWA if mat == 0 else SWB)}, s65 offen lds"); vm.append(("q", d))
    def waitfor(*tags):
        last = max(i for i, tg in enumerate(vm) if tg in tags)
        a(f"s_waitcnt vmcnt({len(vm)-1-last})")
    def patch(d):
        a("s_mov_b32 exec_hi, 0")
        a(f"ds_write_b16 v16, v{12+d} offset:{((7+d)%3)*16384}")
        a("s_mov_b32 exec_hi, -1")
        a("s_waitcnt lgkmcnt(0)")
    if "nodma" in X:
        srd(a, SWS, 22, WS_SIZE)
        stamp_out(a, 11)
        a("s_endpgm")
    if "free" in X:
        srd(a, SWS, 22, WS_SIZE)
        stamp(a, 1, 2)
        for c in range(7):
            if "nox" not in X: xload(c)
            if "now" not in X: wload(c)
        stamp(a, 2, 2)
        a("s_waitcnt vmcnt(0)")
        stamp(a, 3, 2)
        stamp_out(a, 11)
        a("s_endpgm")
    stamp(a, 1, 2)
    for c in range(2):
        xload(c); wload(c)
    stamp(a, 1); stamp(a, 2, 2)
    srd(a, SWA, 6, 1204224); srd(a, SWB, 12, 1204224)
    srd(a, SWS, 22, WS_SIZE); srd(a, SD, 20, 256); srd(a, SG, 16, 896)
    a("v_lshrrev_b32 v10, 2, v0")
    a("s_and_b32 s64, s27, 1")
    a("s_lshl_b32 s64, s64, 5")
    a("v_add_u32 v10, s64, v10")
    a("v_mul_u32_u24 v10, 2688, v10")
    a("v_and_b32 v11, 3, v0")
    a("v_lshl_add_u32 v10, v11, 4, v10")
    a("s_mul_i32 s65, s28, 56")
    a("v_add_u32 v10, s65, v10")
    a("v_add_u32 v11, 43008, v10")
    a("v_add_u32 v17, s64, v0")
    a("v_lshlrev_b32 v17, 1, v17")
    a("s_lshl_b32 s64, s27, 11")
    a(f"s_add_u32 s64, s64, {RING + 8192 + 56}")
    a("v_lshl_add_u32 v16, v0, 6, s64")
    a("s_lshl_b32 s64, s32, 1")
    a("s_and_b32 s65, s27, 1")
    a("s_add_u32 s64, s64, s65")
    a("s_mul_i32 s64, s64, 28")
    a("v_add_u32 v20, s64, v0")
    a("v_lshrrev_b32 v21, 2, v20")
    a("v_mul_u32_u24 v21, 2688, v21")
    a("v_and_b32 v20, 3, v20")
    a("v_lshl_add_u32 v20, v20, 7, v21")
    a("s_mul_i32 s64, s33, 384")
    a("v_add_u32 v20, s64, v20")
    a("s_lshl_b32 s64, s32, 1")
    a("s_add_u32 s64, s64, s65")
    a("s_mul_i32 s64, s64, 49")
    a("v_add_u32 v21, s64, v0")
    a("v_lshlrev_b32 v21, 7, v21")
    a("v_mov_b32 v18, 0")
    waitfor(("x",0),("w",0)); a("s_barrier"); stamp(a, 3, 2)
    stamp(a, 2)
    xload(2); wload(2)
    waitfor(("x",1),("w",1)); a("s_barrier"); stamp(a, 4, 2)
    xload(3); wload(3)
    for d in range(4):
        a("s_cmp_ge_u32 s27, 2")
        a(f"s_cselect_b32 s65, s{84+min(2*d+1,6)}, s{84+2*d}")
        a("s_lshl_b32 s65, s65, 7")
        a(f"buffer_load_ushort v{12+d}, v17, {R(SG)}, s65 offen"); vm.append(("g", d))
    waitfor(("x",2),("w",2)); a("s_barrier"); stamp(a, 5, 2)
    xload(4); wload(4)
    waitfor(("x",3),("w",3)); a("s_barrier"); stamp(a, 6, 2)
    xload(5); wload(5)
    a(f"buffer_load_dword v17, v18, {R(SD)}, 0 offen sc1"); vm.append(("d", 0))
    waitfor(("x",4),("w",4)); a("s_barrier"); stamp(a, 7, 2)
    xload(6); wload(6)
    if "nopq" not in X:
        a("s_cmp_ge_u32 s27, 2")
        a(f"s_cselect_b32 s{SG}, s12, s6")
        a(f"s_cselect_b32 s{SG+1}, s13, s7")
        a(f"s_mov_b32 s{SG+2}, 1204224")
        a("s_mov_b32 exec_lo, 0x0fffffff")
        a("s_mov_b32 exec_hi, 0")
        a(f"buffer_load_dword v22, v20, {R(SG)}, 0 offen"); vm.append(("p", 0))
        a("s_mov_b64 exec, -1")
    waitfor(("x",5),("w",5)); a("s_barrier"); stamp(a, 8, 2)
    qload(0)
    waitfor(("x",6),("w",6)); a("s_barrier"); stamp(a, 9, 2)
    qload(1)
    waitfor(("q",0)); patch(0); a("s_barrier"); stamp(a, 10, 2)
    if "memonly" in X:
        stamp_out(a, 11)
        a("s_endpgm")
    qload(2)
    waitfor(("q",1)); patch(1)
    a("v_readfirstlane_b32 s69, v17")
    a("s_nop 0")
    a("s_cmp_lg_u32 s69, 0")
    a("s_cbranch_scc1 H_INIT_OK")
    poll(a, "INIT", R(SD), "0", 1, 18, 17)
    a.label("H_INIT_OK")
    a("s_barrier")
    a("s_cmp_ge_u32 s27, 2")
    a("s_cbranch_scc1 H_NOQ3")
    qload(3)
    waitfor(("q",2)); patch(2)
    a("s_branch H_Q3")
    a.label("H_NOQ3")
    a("s_waitcnt vmcnt(0)"); patch(2)
    a.label("H_Q3")
    if "nopwo" not in X:
        a("s_cmp_ge_u32 s27, 2")
        a(f"s_cselect_b32 s{SG}, s14, s8")
        a(f"s_cselect_b32 s{SG+1}, s15, s9")
        a(f"s_mov_b32 s{SG+2}, 401408")
        a("s_mov_b32 exec_hi, 0x1ffff")
        a(f"buffer_load_dword a64, v21, {R(SG)}, 0 offen")
        a("s_mov_b64 exec, -1")
    a("s_barrier")
    a("s_cmp_eq_u32 s27, 3")
    a("s_cselect_b32 s64, s26, 0")
    a("s_cmp_eq_u32 s64, 0")
    a("s_cbranch_scc1 H_NOSIGKV")
    a("s_lshl_b32 s64, s25, 2")
    a("s_add_u32 s64, s64, s34")
    a("s_lshl_b32 s64, s64, 7")
    a(f"s_add_u32 s64, s64, {C_KV}")
    signal(a, "s64", 18, 19)
    a.label("H_NOSIGKV")
    a(f"s_waitcnt vmcnt({0 if 'nopwo' in X else 1})")
    a("s_cmp_ge_u32 s27, 2")
    a("s_cbranch_scc1 H_NOP3")
    patch(3)
    a.label("H_NOP3")
    a("s_barrier")
    a(f"v_mov_b32 v1, {L_CNT}")
    a("v_mov_b32 v10, 0")
    a("v_mov_b32 v11, 0")
    a("ds_write_b64 v1, v[10:11]")
    a("v_lshlrev_b32 v2, 4, v0")
    dma_lane_w(a, 3, 4, 5, 896)
    a("s_mul_i32 s64, s27, 7168")
    a("s_lshl_b32 s65, s31, 7")
    a("s_add_u32 s64, s64, s65")
    a("v_add_u32 v3, s64, v3")
    a("s_lshr_b32 s64, s27, 1")
    a("s_mul_i32 s64, s64, 28672")
    p3_addr(a, 4, "s64", 8, 9)
    srd(a, SWA, 8, 401408); srd(a, SWB, 14, 401408)
    a("s_waitcnt lgkmcnt(0)")
    a("s_barrier")
    stamp(a, 3); stamp(a, 1, 3)
    if "hidle" in X:
        a("s_endpgm")
    PQ, G, KF, NUM, PA = 80, 88, 92, 100, 116
    a("s_lshl_b32 s64, s27, 11")
    a("v_add_u32 v8, s64, v2")
    a(f"v_add_u32 v8, {L_PQ}, v8")
    a(f"ds_read_b128 {vr(PQ,4)}, v8")
    a(f"ds_read_b128 {vr(PQ+4,4)}, v8 offset:1024")
    a("s_lshl_b32 s64, s27, 8")
    a(f"s_add_u32 s64, s64, {L_G}")
    a("v_lshl_add_u32 v8, v0, 2, s64")
    a(f"ds_read_b32 v{G}, v8")
    a("s_cmp_eq_u32 s27, 3")
    a("s_cselect_b32 s64, s26, 1")
    a("s_cmp_eq_u32 s64, 0")
    a("s_cbranch_scc0 H_NOKVP")
    a(f"v_add_u32 v8, {L_KVD}, v2")
    for i in range(16):
        a(f"ds_read_b128 {vr(16+4*i,4)}, v8 offset:{1024*i}")
        if i == 11: a("s_waitcnt lgkmcnt(8)")
    a(f"s_mul_i32 s64, s25, {2*PAD}")
    a("s_lshl_b32 s65, s24, 12")
    a("s_add_u32 s64, s64, s65")
    a(f"s_add_u32 s64, s64, {WS_KVP}")
    a(f"s_add_u32 s65, s64, {PAD}")
    a("s_waitcnt lgkmcnt(0)")
    for j in range(2):
        vadd(a, 16+16*j, 48+16*j, 16)
        for q in range(4):
            a(f"buffer_store_dwordx4 {vr(16+16*j+4*q,4)}, v2, {WSR}, s{64+j} offen offset:{1024*q} sc1")
    a("s_lshl_b32 s64, s25, 7")
    a(f"s_add_u32 s64, s64, {C_A}")
    a("s_waitcnt vmcnt(0)")
    signal(a, "s64", 10, 11)
    a.label("H_NOKVP")
    def wo_dma(tag, end):
        a.label(f"H_WO{tag}")
        a("s_mov_b32 m0, s66")
        a("s_add_u32 s67, s66, 57344")
        a(f"buffer_load_dwordx4 v3, {R(SWA)}, s63 offen lds")
        a("s_mov_b32 m0, s67")
        a("s_add_u32 s66, s66, 4096")
        a(f"buffer_load_dwordx4 v3, {R(SWB)}, s63 offen lds")
        a("s_add_u32 s63, s63, 28672")
        a("s_waitcnt vmcnt(%s)" % os.environ.get("WOD", "4"))
        a(f"s_cmp_lt_u32 s63, {end*28672}")
        a(f"s_cbranch_scc1 H_WO{tag}")
    a("s_lshl_b32 s66, s27, 10")
    a("s_mov_b32 s63, 0")
    a("s_cmp_ge_u32 s32, 28")
    a("s_cbranch_scc1 H_NOWOA")
    wo_dma("A", 14)
    a.label("H_NOWOA")
    stamp(a, 2, 3)
    a("s_lshl_b32 s64, s25, 7")
    a(f"s_add_u32 s64, s64, {C_A}")
    poll(a, "A", WSR, "s64", 16, 10, 11, 2)
    stamp(a, 4); stamp(a, 3, 3)
    a(f"s_mul_i32 s64, s28, {PAD}")
    a("s_lshl_b32 s65, s27, 10")
    a("s_add_u32 s64, s64, s65")
    a(f"s_add_u32 s64, s64, {WS_KVP}")
    def kvadd(j):
        if "noadd" in X: return
        if "pkadd" in X:
            for k in range(2):
                a(f"v_pk_add_f32 {vr(16+2*k,2)}, {vr(16+2*k,2)}, {vr(16+4*j+2*k,2)}")
        else:
            for k in range(4):
                a(f"v_add_f32 v{16+k}, v{16+k}, v{16+4*j+k}")
    for i in range(16):
        a(f"buffer_load_dwordx4 {vr(16+4*i,4)}, v2, {WSR}, s64 offen" + ("" if "kvplain" in X else " sc1"))
        a("s_add_u32 s64, s64, 4096")
        if i >= 3:
            a("s_waitcnt vmcnt(3)")
            j = i - 3
            if j >= 1:
                kvadd(j)
    stamp(a, 4, 3)
    for j in (13, 14, 15):
        a(f"s_waitcnt vmcnt({15-j})")
        kvadd(j)
    stamp(a, 5, 3)
    a("v_cvt_pk_bf16_f32 v16, v16, v17")
    a("v_cvt_pk_bf16_f32 v17, v18, v19")
    a("s_lshr_b32 s64, s27, 1")
    a("s_lshl_b32 s64, s64, 10")
    a("s_and_b32 s65, s27, 1")
    a("s_lshl_b32 s65, s65, 3")
    a("s_add_u32 s64, s64, s65")
    a(f"s_add_u32 s64, s64, {L_KVF}")
    a("v_add_u32 v8, s64, v2")
    a("ds_write_b64 v8, v[16:17]")
    a("v_mov_b32 v11, 1")
    a("s_waitcnt lgkmcnt(0)")
    a("s_mov_b64 exec, 1")
    a("ds_add_u32 v1, v11")
    a(f"s_mov_b32 s68, {SPIN}")
    a.label("H_SPIN1")
    a("ds_read_b32 v9, v1")
    a("s_waitcnt lgkmcnt(0)")
    a("v_readfirstlane_b32 s69, v9")
    a("s_sub_u32 s68, s68, 1")
    a("s_cbranch_scc1 H_SPIN1X")
    a("s_cmp_ge_u32 s69, 4")
    a("s_cbranch_scc0 H_SPIN1")
    a.label("H_SPIN1X")
    stamp(a, 6, 3)
    a("s_mov_b64 exec, -1")
    a(f"v_add_u32 v8, {L_KVF}, v2")
    a(f"ds_read_b128 {vr(KF,4)}, v8")
    a(f"ds_read_b128 {vr(KF+4,4)}, v8 offset:1024")
    a("s_waitcnt lgkmcnt(0)")
    a(f"{MF} {vr(NUM,16)}, {vr(KF,4)}, {vr(PQ,4)}, 0")
    a(f"{MF} {vr(NUM,16)}, {vr(KF+4,4)}, {vr(PQ+4,4)}, {vr(NUM,16)}")
    a("s_lshl_b32 s64, s24, 2")
    a("s_add_u32 s64, s64, s27")
    a(f"s_mul_i32 s64, s64, {PAD}")
    a("s_lshl_b32 s65, s28, 11")
    a("s_add_u32 s64, s64, s65")
    a(f"s_add_u32 s64, s64, {WS_OF}")
    a(f"v_mov_b32 v{PA+6}, 0")
    a(f"v_mov_b32 v{PA+7}, 0")
    a("s_nop 7")
    a(f"v_mov_b32 v8, v{NUM+12}")
    a(f"v_mov_b32 v9, v{NUM+12}")
    a("s_nop 1")
    a("v_permlane32_swap_b32 v8, v9")
    a(f"v_add_f32 v9, {f32(EPS)}, v9")
    a("v_rcp_f32 v9, v9")
    a("s_nop 0")
    a(f"v_mul_f32 v9, v9, v{G}")
    vmul(a, NUM, "v9", 16)
    cvt(a, PA, NUM, 0, 6)
    a("s_mov_b32 exec_hi, 0")
    cvt(a, PA, NUM, 6, 8)
    a("s_mov_b32 exec_hi, -1")
    a(f"buffer_store_dwordx4 {vr(PA,4)}, v2, {WSR}, s64 offen sc1")
    a(f"buffer_store_dwordx4 {vr(PA+4,4)}, v2, {WSR}, s64 offen offset:1024 sc1")
    stamp(a, 7, 3)
    a("s_waitcnt vmcnt(0)")
    stamp(a, 8, 3)
    a("s_mov_b64 exec, 1")
    a("ds_add_rtn_u32 v9, v1, v11 offset:4")
    a("s_waitcnt lgkmcnt(0)")
    a("v_readfirstlane_b32 s69, v9")
    a("s_mov_b64 exec, -1")
    a("s_cmp_eq_u32 s69, 3")
    a("s_cbranch_scc0 H_NOSIGOA")
    a("s_lshl_b32 s64, s24, 1")
    a("s_add_u32 s64, s64, s33")
    a("s_lshl_b32 s64, s64, 7")
    a(f"s_add_u32 s64, s64, {C_OA}")
    signal(a, "s64", 10, 11)
    a.label("H_NOSIGOA")
    stamp(a, 5)
    a("s_barrier")
    a("s_cmp_ge_u32 s32, 28")
    a("s_cbranch_scc1 H_NOP3B")
    stamp(a, 6); stamp(a, 9, 3)
    a("s_and_b32 s64, s30, 0xfe")
    a("s_lshr_b32 s65, s27, 1")
    a("s_add_u32 s64, s64, s65")
    a("s_lshl_b32 s64, s64, 7")
    a(f"s_add_u32 s64, s64, {C_OA}")
    poll(a, "OA", WSR, "s64", 8, 10, 11, 2)
    a("s_and_b32 s64, s27, 1")
    a("s_lshl_b32 s65, s30, 1")
    a("s_add_u32 s64, s64, s65")
    a(f"s_mul_i32 s64, s64, {PAD}")
    a("s_lshr_b32 s65, s27, 1")
    a("s_lshl_b32 s65, s65, 14")
    a("s_add_u32 s64, s64, s65")
    a(f"s_add_u32 s64, s64, {WS_OF}")
    p3_oloads(a, 2, "s64")
    a.label("H_NOP3B")
    stamp(a, 7); stamp(a, 10, 3)
    a("s_waitcnt vmcnt(0)")
    a("s_barrier")
    stamp(a, 8)
    a("s_setprio 0")
    a("s_cmp_ge_u32 s32, 28")
    a("s_cbranch_scc1 H_NOP3C")
    p3_gemm(a, 4, [16, 32], [48, 56], True, False)
    a.label("H_NOP3C")
    stamp(a, 9)
    a("s_barrier")
    a("s_cmp_eq_u32 s27, 0")
    a("s_cbranch_scc0 H_NOSIGOB")
    a("s_lshl_b32 s64, s24, 1")
    a("s_add_u32 s64, s64, s33")
    a("s_lshl_b32 s64, s64, 7")
    a(f"s_add_u32 s64, s64, {C_OB}")
    signal(a, "s64", 10, 11)
    a.label("H_NOSIGOB")
    a("s_cmp_ge_u32 s32, 28")
    a("s_cbranch_scc1 H_EXIT")
    a("s_lshl_b32 s64, s27, 13")
    a(f"s_add_u32 s64, s64, {RING}")
    a("v_add_u32 v8, s64, v2")
    a("s_nop 7")
    for i in range(8):
        a(f"ds_write_b128 v8, {vr(16+4*i,4)} offset:{1024*i}")
    a("s_waitcnt lgkmcnt(0)")
    a("s_barrier")
    a.label("H_EXIT")
    stamp(a, 10)
    stamp_out(a, 11)
    a("s_endpgm")

def compute(a):
    a.label("L_COMPUTE")
    XA, WA, WB, XQ, WQ = 2, 6, 7, 8, 12
    FR = 16; accK = [64, 80]; accV = [96, 112]; pK = [128, 136]; pV = [144, 152]
    a("s_lshr_b32 s92, s27, 1")
    a("s_and_b32 s93, s27, 1")
    a("v_and_b32 v13, 31, v0")
    a("v_lshrrev_b32 v14, 5, v0")
    a("v_bfe_u32 v15, v0, 1, 3")
    a("v_xor_b32 v15, v15, v14")
    a("s_lshl_b32 s64, s92, 13")
    a("v_lshl_add_u32 v1, v13, 7, s64")
    a("s_lshl_b32 s65, s27, 12")
    a("s_sub_u32 s65, s65, s64")
    for ks in range(4):
        a(f"v_xor_b32 v{XA+ks}, {2*ks}, v15")
        a(f"v_lshl_add_u32 v{XA+ks}, v{XA+ks}, 4, v1")
        a(f"v_add_u32 v{XQ+ks}, s65, v{XA+ks}")
    a("s_mul_i32 s64, s93, 56")
    a(f"v_mov_b32 v{WA}, s64")
    tr_lane_addr(a, WB, WA, 1, 15, 2)
    a(f"v_add_u32 v{WB}, {RING}, v{WB}")
    a(f"v_mov_b32 v{WA}, v{WB}")
    a("v_bfe_u32 v1, v0, 2, 2")
    a("v_lshl_add_u32 v1, v14, 3, v1")
    a("v_lshlrev_b32 v1, 1, v1")
    a("v_bfe_u32 v15, v0, 4, 1")
    a("v_add_u32 v1, v1, v15")
    a("v_lshlrev_b32 v1, 2, v1")
    a("v_and_b32 v15, 3, v0")
    a("v_add_u32 v1, v1, v15")
    a("v_lshlrev_b32 v1, 3, v1")
    a(f"v_add_u32 v{WQ}, {RING}, v1")
    a("s_waitcnt lgkmcnt(0)")
    srd(a, SWS, 22, WS_SIZE)
    a("s_or_b32 s64, s2, s27")
    a("s_cmp_eq_u32 s64, 0")
    a("s_cbranch_scc0 C_NOINIT")
    srd(a, SD, 20, 256)
    a("v_lshlrev_b32 v17, 7, v0")
    a("v_mov_b32 v21, 0")
    a(f"s_mov_b32 s64, {WS_CNT}")
    a(f"buffer_store_dword v21, v17, {WSR}, s64 offen sc1")
    a("s_add_u32 s64, s64, 8192")
    a(f"buffer_store_dword v21, v17, {WSR}, s64 offen sc1")
    a("v_mov_b32 v22, 1")
    a("s_waitcnt vmcnt(0)")
    a("s_mov_b64 exec, 1")
    a(f"buffer_store_dword v22, v21, {R(SD)}, 0 offen sc1")
    a("s_mov_b64 exec, -1")
    a.label("C_NOINIT")
    if "nopc" not in X:
        a("s_cmp_eq_u32 s27, 1")
        a("s_cbranch_scc0 C_PFD")
        a("s_getpc_b64 s[64:65]")
        a.label("C_PC")
        a(f"s_sub_u32 s64, s64, C_PC-{KN}")
        a("s_subb_u32 s65, s65, 0")
        a(f"s_mov_b32 s66, L_CODE_END-{KN}")
        a("s_mov_b32 s67, 0x20000")
        a("s_mul_i32 s68, s32, 6")
        a("v_add_u32 v17, s68, v0")
        a("v_lshlrev_b32 v17, 7, v17")
        a("s_mov_b64 exec, 63")
        a("buffer_load_dword a93, v17, s[64:67], 0 offen")
        a("s_mov_b64 exec, -1")
        a.label("C_PFD")
    if "touch" in X:
        a("s_cmp_eq_u32 s27, 3")
        a("s_cbranch_scc1 C_TD")
        a("s_cmp_eq_u32 s27, 0")
        a("s_cbranch_scc0 C_T1")
        srd(a, SX, 4, 1835008)
        a("s_lshl_b32 s64, s34, 9")
        a("s_lshl_b32 s65, s32, 4")
        a("s_add_u32 s64, s64, s65")
        a("v_and_b32 v17, 15, v0")
        a("v_add_u32 v17, s64, v17")
        a("v_mul_u32_u24 v17, 896, v17")
        a("v_lshrrev_b32 v16, 4, v0")
        a("v_lshl_add_u32 v17, v16, 7, v17")
        a(f"buffer_load_dword a92, v17, {R(SX)}, 0 offen")
        a("s_mov_b32 exec_hi, 0xffff")
        a(f"buffer_load_dword a94, v17, {R(SX)}, 0 offen offset:512")
        a("s_mov_b64 exec, -1")
        a("s_branch C_TD")
        a.label("C_T1")
        a("s_cmp_eq_u32 s27, 1")
        a(f"s_cselect_b32 s{SW}, s6, s12")
        a(f"s_cselect_b32 s{SW+1}, s7, s13")
        a(f"s_mov_b32 s{SW+2}, 1204224")
        a(f"s_mov_b32 s{SW+3}, 0x20000")
        a("v_lshrrev_b32 v17, 4, v0")
        a("v_lshlrev_b32 v17, 6, v17")
        a("v_bfe_u32 v16, v0, 3, 1")
        a("s_lshl_b32 s64, s32, 1")
        a("v_add3_u32 v17, v17, v16, s64")
        a("v_mul_u32_u24 v17, 2688, v17")
        a("v_bfe_u32 v16, v0, 2, 1")
        a("v_mul_u32_u24 v16, 896, v16")
        a("v_add_u32 v17, v17, v16")
        a("v_and_b32 v16, 3, v0")
        a("v_lshl_add_u32 v17, v16, 7, v17")
        a("s_mul_i32 s66, s33, 384")
        a("s_add_u32 s66, s66, 896")
        a(f"buffer_load_dword a92, v17, {R(SW)}, s66 offen")
        a(f"s_add_u32 s66, s66, {4*172032}")
        a(f"buffer_load_dword a94, v17, {R(SW)}, s66 offen")
        a.label("C_TD")
    if "touchm" in X:
        a("s_cmp_eq_u32 s27, 3")
        a("s_cbranch_scc1 C_TD")
        a("s_cmp_eq_u32 s27, 0")
        a("s_cbranch_scc0 C_T1")
        srd(a, SX, 4, 1835008)
        a("s_lshl_b32 s64, s34, 9")
        a("s_lshl_b32 s65, s33, 8")
        a("s_add_u32 s64, s64, s65")
        a("s_lshl_b32 s65, s32, 3")
        a("s_add_u32 s64, s64, s65")
        a("v_and_b32 v17, 7, v0")
        a("v_add_u32 v17, s64, v17")
        a("v_mul_u32_u24 v17, 896, v17")
        a("v_lshrrev_b32 v16, 3, v0")
        a("v_lshl_add_u32 v17, v16, 7, v17")
        a("s_mov_b32 exec_hi, 0xffffff")
        a(f"buffer_load_dword a92, v17, {R(SX)}, 0 offen")
        a("s_mov_b64 exec, -1")
        a("s_branch C_TD")
        a.label("C_T1")
        a("s_cmp_eq_u32 s27, 1")
        a(f"s_cselect_b32 s{SW}, s6, s12")
        a(f"s_cselect_b32 s{SW+1}, s7, s13")
        a(f"s_mov_b32 s{SW+2}, 1204224")
        a(f"s_mov_b32 s{SW+3}, 0x20000")
        a("s_mul_i32 s64, s32, 42")
        a("v_add_u32 v16, s64, v0")
        a("v_mul_u32_u24 v17, 5462, v16")
        a("v_lshrrev_b32 v17, 16, v17")
        a("v_mul_u32_u24 v18, 12, v17")
        a("v_sub_u32 v16, v16, v18")
        a("v_lshl_add_u32 v17, v17, 2, s34")
        a("v_mul_u32_u24 v17, 2688, v17")
        a("v_lshrrev_b32 v18, 2, v16")
        a("v_mul_u32_u24 v18, 896, v18")
        a("v_and_b32 v16, 3, v16")
        a("v_lshl_add_u32 v17, v16, 7, v17")
        a("v_add_u32 v17, v17, v18")
        a("s_mul_i32 s66, s33, 384")
        a("s_mov_b32 exec_hi, 0x3ff")
        a(f"buffer_load_dword a92, v17, {R(SW)}, s66 offen")
        a("s_mov_b64 exec, -1")
        a.label("C_TD")
    if "memonly" in X:
        stampc(a, 1)
        a("s_waitcnt vmcnt(0)")
        stampc(a, 2)
        stamp_out(a, 16)
        a("s_endpgm")
    a("v_cmp_eq_u32 vcc, 28, v13")
    a(f"v_mov_b32 v1, {ONE2}")
    a("s_nop 0")
    a("v_cndmask_b32 v15, 0, v1, vcc")
    for s in range(2):
        for i in range(8):
            a(f"v_mov_b32 v{pV[s]+i}, v15")
    a("s_mov_b32 s56, 0x0fffffff")
    a("s_mov_b32 s57, 0x0fffffff")
    a(f"s_mov_b32 s64, {f32(LOG2E)}")
    a(f"s_mov_b32 s65, {f32(LOG2E)}")
    a(f"s_mov_b32 s66, {f32(EPS)}")
    a(f"s_mov_b32 s67, {f32(EPS)}")
    for i in range(32):
        a(f"v_mov_b32 v{accV[0]+i}, 0")
    a("v_lshlrev_b32 v13, 4, v0")
    a("s_cmp_eq_u32 s26, 0")
    a("s_cbranch_scc1 C_A")

    def reads(buf, ks):
        f = FR + 16*buf
        return [f"ds_read_b128 {vr(f,4)}, v{XA+ks}",
                f"ds_read_b64_tr_b16 {vr(f+8,2)}, v{WA} offset:{ks*2048}",
                f"ds_read_b64_tr_b16 {vr(f+10,2)}, v{WA} offset:{ks*2048+512}",
                f"ds_read_b128 {vr(f+4,4)}, v{XA+ks} offset:4096",
                f"ds_read_b64_tr_b16 {vr(f+12,2)}, v{WA} offset:{8192+ks*2048}",
                f"ds_read_b64_tr_b16 {vr(f+14,2)}, v{WA} offset:{8192+ks*2048+512}"]
    def mfmas(buf, kT):
        f = FR + 16*buf
        Xf = [vr(f, 4), vr(f+4, 4)]; Wk, Wv = vr(f+8, 4), vr(f+12, 4)
        m = []
        for s in range(2):
            if kT: m.append(f"{MF} {vr(accK[s],16)}, {Wk}, {Xf[s]}, {vr(accK[s],16)}")
            else:  m.append(f"{MF} {vr(accK[s],16)}, {Xf[s]}, {Wk}, {vr(accK[s],16)}")
        for s in range(2): m.append(f"{MF} {vr(accV[s],16)}, {Xf[s]}, {Wv}, {vr(accV[s],16)}")
        return m
    def mainloop(tag, kT):
        a("s_mov_b32 s60, 0")
        a("s_mov_b32 s61, 0")
        if STAMP != 4: stampc(a, 1)
        a("s_barrier")
        if STAMP != 4: stampc(a, 2)
        for r in reads(0, 0): a(r)
        a(".p2align 6")
        a.label(f"C_{tag}_LOOP")
        for ks in range(4):
            m = mfmas(ks & 1, kT); r = reads((ks+1) & 1, (ks+1) & 3)
            if ks < 3:
                a("s_waitcnt lgkmcnt(3)"); a(m[0]); a(r[0]); a(r[1]); a(r[2])
                a("s_waitcnt lgkmcnt(5)"); a(m[1]); a(r[3]); a(r[4]); a(r[5])
                a("s_waitcnt lgkmcnt(6)"); a(m[2])
                a(f"v_add_u32 v{XA+ks}, 16384, v{XA+ks}")
                if ks == 2:
                    a("s_add_u32 s60, s60, 1")
                    a("s_add_u32 s61, s61, 16384")
                    a("s_cmp_eq_u32 s61, 49152")
                    a("s_cselect_b32 s61, 0, s61")
                a(m[3])
            else:
                a(f"v_add_u32 v{WA}, s61, v{WB}")
                a("s_cmp_eq_u32 s60, 7")
                a("s_waitcnt lgkmcnt(0)")
                a("s_barrier")
                a(f"s_cbranch_scc1 C_{tag}_TAIL")
                a(m[0]); a(r[0]); a(r[1]); a(r[2])
                a(m[1]); a(r[3]); a(r[4]); a(r[5])
                a(m[2])
                a(f"v_add_u32 v{XA+3}, 16384, v{XA+3}")
                a(m[3])
                a(f"s_branch C_{tag}_LOOP")
                a.label(f"C_{tag}_TAIL")
                for x in m: a(x)
        stampc(a, 3)

    for i in range(32): a(f"v_mov_b32 v{accK[0]+i}, 0")
    for s in range(2):
        a(f"v_mov_b32 v{pK[s]+6}, v1"); a(f"v_mov_b32 v{pK[s]+7}, v1")
    a("v_and_b32 v15, 0x33, v0")
    a("v_bfe_u32 v1, v0, 2, 1")
    a("v_lshl_add_u32 v15, v1, 3, v15")
    a("v_bfe_u32 v1, v0, 3, 1")
    a("v_lshl_add_u32 v15, v1, 2, v15")
    a("v_lshlrev_b32 v15, 4, v15")
    a("s_lshl_b32 s58, s25, 1")
    a("s_add_u32 s58, s58, s93")
    a("s_lshl_b32 s58, s58, 2")
    a("s_add_u32 s58, s58, s34")
    a(f"s_mul_i32 s58, s58, {PAD}")
    a("s_lshl_b32 s59, s29, 1")
    a("s_add_u32 s59, s59, s92")
    a("s_lshl_b32 s59, s59, 13")
    a("s_add_u32 s58, s58, s59")
    a("s_add_u32 s59, s58, 4096")
    mainloop("B", True)
    a("s_nop 9")
    for s in range(2):
        cvt(a, pK[s], accK[s], 0, 6)
        a("s_mov_b32 exec_hi, 0")
        cvt(a, pK[s], accK[s], 6, 8)
        a("s_mov_b32 exec_hi, -1")
        a(f"buffer_store_dwordx4 {vr(pK[s],4)}, v15, {WSR}, s{58+s} offen sc1")
        a(f"buffer_store_dwordx4 {vr(pK[s]+4,4)}, v15, {WSR}, s{58+s} offen offset:1024 sc1")
    for s in range(2):
        a("s_mov_b64 exec, s[56:57]")
        cvt(a, pV[s], accV[s])
        a("s_mov_b64 exec, -1")
        a(f"buffer_store_dwordx4 {vr(pV[s],4)}, v13, {WSR}, s{58+s} offen offset:2048 sc1")
        a(f"buffer_store_dwordx4 {vr(pV[s]+4,4)}, v13, {WSR}, s{58+s} offen offset:3072 sc1")
    a("s_branch C_1B")

    a.label("C_A")
    for i in range(32): a(f"v_mov_b32 v{accK[0]+i}, 1.0")
    for s in range(2):
        for i in range(8): a(f"v_mov_b32 v{pK[s]+i}, 0")
    mainloop("A", False)
    a("s_nop 9")
    for s in range(2): phi(a, accK[s], FR)
    a("s_mov_b64 exec, s[56:57]")
    for s in range(2):
        cvt(a, pK[s], accK[s]); cvt(a, pV[s], accV[s])
    a("s_mov_b64 exec, -1")
    a("s_nop 1")
    D = accV[0]
    a(f"{MF} {vr(D,16)}, {vr(pK[0],4)}, {vr(pV[0],4)}, 0")
    a(f"{MF} {vr(D,16)}, {vr(pK[0]+4,4)}, {vr(pV[0]+4,4)}, {vr(D,16)}")
    a(f"{MF} {vr(D,16)}, {vr(pK[1],4)}, {vr(pV[1],4)}, {vr(D,16)}")
    a(f"{MF} {vr(D,16)}, {vr(pK[1]+4,4)}, {vr(pV[1]+4,4)}, {vr(D,16)}")

    a.label("C_1B")
    stampc(a, 4)
    QA, QB = 64, 80
    def qreads(k):
        f = FR + 12*(k & 3); d, kk = k >> 3, k & 7
        c = k >> 2
        o = ((7+d) % 3)*16384 + kk*1024
        return [f"ds_read_b128 {vr(f,4)}, v{XQ+(k&3)} offset:{(c&3)*16384}",
                f"ds_read_b64_tr_b16 {vr(f+4,2)}, v{WQ} offset:{o}",
                f"ds_read_b64_tr_b16 {vr(f+6,2)}, v{WQ} offset:{o+256}",
                f"ds_read_b64_tr_b16 {vr(f+8,2)}, v{WQ} offset:{o+8192}",
                f"ds_read_b64_tr_b16 {vr(f+10,2)}, v{WQ} offset:{o+8192+256}"]
    for k in (0, 1):
        for r in qreads(k): a(r)
    for k in range(28):
        f = FR + 12*(k & 3)
        r = qreads(k+2) if k+2 < 28 else []
        nout = 5 if k+1 < 28 else 0
        bar = (k+2) < 28 and (k+2) % 8 == 0
        if bar:
            if k == 14: a("s_waitcnt vmcnt(0) lgkmcnt(0)")
            else: a("s_waitcnt lgkmcnt(0)")
            a("s_barrier")
        else:
            a(f"s_waitcnt lgkmcnt({nout+2})")
        a(f"{MF} {vr(QA,16)}, {vr(f+4,4)}, {vr(f,4)}, {'1.0' if k == 0 else vr(QA,16)}")
        for x in r[:3]: a(x)
        if not bar: a(f"s_waitcnt lgkmcnt({nout + len(r[:3])})")
        a(f"{MF} {vr(QB,16)}, {vr(f+8,4)}, {vr(f,4)}, {'0' if k == 0 else vr(QB,16)}")
        for x in r[3:]: a(x)
        if 10 <= k <= 13:
            a(f"v_add_u32 v{XQ+((k+2)&3)}, 65536, v{XQ+((k+2)&3)}")
    stampc(a, 5)
    a("s_lshl_b32 s60, s27, 12")
    a(f"s_add_u32 s60, s60, {L_KVD}")
    a("v_add_u32 v1, s60, v13")
    for q in range(4):
        a(f"ds_write_b128 v1, {vr(D+4*q,4)} offset:{1024*q}")
    a("s_lshl_b32 s60, s27, 11")
    a(f"s_add_u32 s60, s60, {L_QD}")
    a("v_add_u32 v1, s60, v13")
    for i in (38, 39, 46, 47): a(f"v_mov_b32 v{i}, 0")
    a("s_nop 1")
    phi(a, QA, FR)
    a(f"v_mov_b32 v14, v{QB+12}")
    a(f"v_mov_b32 v15, v{QB+12}")
    a(f"s_mov_b32 s62, {f32(QSCALE)}")
    a(f"s_mov_b32 s63, {f32(QSCALE)}")
    a("v_permlane32_swap_b32 v15, v14")
    a(f"v_mul_f32 v14, {f32(-LOG2E)}, v14")
    a("v_exp_f32 v14, v14")
    vmul(a, QB, "s62", 16)
    a("v_add_f32 v14, 1.0, v14")
    a("v_rcp_f32 v14, v14")
    cvt(a, 32, QB, 0, 6); cvt(a, 40, QA, 0, 6)
    a("s_mov_b32 exec_hi, 0")
    cvt(a, 32, QB, 6, 8); cvt(a, 40, QA, 6, 8)
    a("s_mov_b32 exec_hi, -1")
    a("ds_write_b128 v1, v[32:35]")
    a("ds_write_b128 v1, v[36:39] offset:1024")
    a("ds_write_b128 v1, v[40:43] offset:8192")
    a("ds_write_b128 v1, v[44:47] offset:9216")
    a("s_lshl_b32 s60, s27, 8")
    a(f"s_add_u32 s60, s60, {L_G}")
    a("v_lshl_add_u32 v1, v0, 2, s60")
    a("ds_write_b32 v1, v14")
    a("v_sub_f32 v14, 1.0, v14")
    O = [16, 32, 48, 64]; S = [80, 96, 112, 128]; Q = [0, 8, 16, 24]; KV = [32, 48, 64, 80]
    RA = 144
    for s in range(4):
        a(f"s_add_u32 s60, s27, {1+s}")
        a("s_and_b32 s60, s60, 3")
        a("s_lshl_b32 s61, s60, 11")
        a(f"s_add_u32 s61, s61, {L_QD}")
        a(f"v_add_u32 v{RA+4+s}, s61, v13")
        a("s_mul_i32 s60, s60, 12288")
        a(f"s_add_u32 s60, s60, {RING + (4096*s if s < 3 else 0)}")
        a(f"v_add_u32 v{RA+s}, s60, v13")
    a("s_waitcnt lgkmcnt(0)")
    a("s_barrier")
    stampc(a, 6)
    for s in range(4):
        a(f"ds_read_b128 {ar(Q[s],4)}, v{RA+4+s}")
        a(f"ds_read_b128 {ar(Q[s]+4,4)}, v{RA+4+s} offset:1024")
    for i in range(64): a(f"v_mov_b32 v{O[0]+i}, 0")
    for i in range(8): a(f"v_mov_b32 v{S[3]+8+i}, 0")
    for i in range(4): a(f"v_accvgpr_write_b32 a{KV[3]+12+i}, 0")
    a("v_mov_b32 v2, 0xdddd")
    a("v_mov_b32 v3, 0")
    a(f"s_mul_i32 s60, s28, {4*PAD}")
    a("v_add_u32 v4, s60, v13")
    a(f"s_mul_i32 s60, s27, {PAD}")
    a("v_add_u32 v1, s60, v4")
    a("s_mov_b32 s58, 0")
    a("s_lshl_b32 s60, s25, 2")
    a("s_add_u32 s60, s60, s27")
    a("s_lshl_b32 s60, s60, 7")
    a(f"s_add_u32 s60, s60, {C_KV}")
    poll(a, "KV", WSR, "s60", 4, 3, 5)
    stampc(a, 7)
    def ld(dst, off, v="v1", so="s58"):
        return f"buffer_load_dwordx4 {ar(dst,4)}, {v}, {WSR}, {so} offen" + (f" offset:{off}" if off else "") + " sc1"
    adv = ["s_add_u32 s58, s58, 4096"]
    for n in range(3):
        for f in range(4): a(ld(KV[n]+4*f, 1024*f))
        for x in adv: a(x)
    a("s_mov_b32 s59, 3")
    a("s_waitcnt vmcnt(10) lgkmcnt(0)")
    stampc(a, 8)
    a(f"{MF} {vr(S[0],16)}, {ar(KV[0],4)}, {ar(Q[0],4)}, 0")
    a(f"{MF} {vr(S[0],16)}, {ar(KV[0]+4,4)}, {ar(Q[0]+4,4)}, {vr(S[0],16)}")
    a("s_waitcnt vmcnt(8)")
    a("s_nop 9")
    def unit(n, s, last):
        cur = S[s]; nxt = S[(s+1) & 3]; prv = S[(s-1) & 3]
        kn = KV[(n + (1 if s == 3 else 0)) & 3]; qn = Q[(s+1) & 3]
        vp = KV[(n - (1 if s == 0 else 0)) & 3]; vc = KV[n]
        lb = KV[(n+3) & 3]
        fin = last and n == 3
        e = [f"v_exp_f32 v{cur+i}, v{cur+i}" for i in range(16)]
        slot = [[], [], [], []]
        if not last or n == 0:
            slot[2].append("s_nop 0" if "noload" in X else ld(lb + 4*s, 1024*s))
            if s == 3: slot[3] += adv
        if s == 2 and not fin:
            slot[3].append(f"s_waitcnt vmcnt({7 if (not last or n == 0) else 4*(2-n)})")
        if not last and n == 3 and s == 1: slot[3].append("s_sub_u32 s59, s59, 1")
        if fin and s >= 2:
            for q in range(4):
                slot[q].append(f"ds_write_b128 v{RA+s-2}, {vr(O[s-2]+4*q,4)} offset:{1024*q}")
        if not (fin and s == 3): a(f"{MF} {vr(nxt,16)}, {ar(kn,4)}, {ar(qn,4)}, 0")
        for x in slot[0]: a(x)
        for x in e[0:4]: a(x)
        a(f"{SM} {vr(O[(s-1)&3],16)}, {ar(vp+12,4)}, {vr(prv+8,8)}, v2")
        for x in slot[1]: a(x)
        for x in e[4:8]: a(x)
        if not (fin and s == 3): a(f"{MF} {vr(nxt,16)}, {ar(kn+4,4)}, {ar(qn+4,4)}, {vr(nxt,16)}")
        for x in slot[2]: a(x)
        for x in e[8:12]: a(x)
        a(f"{SM} {vr(O[s],16)}, {ar(vc+8,4)}, {vr(cur,8)}, v2")
        for x in slot[3]: a(x)
        if len(slot[2]) + len(slot[3]) < 2 and not (fin and s == 3):
            a("s_nop 0") if len(slot[2]) + len(slot[3]) == 1 else (a("s_nop 0"), a("s_nop 0"))
        for x in e[12:16]: a(x)
    a(".p2align 6")
    a.label("C_ATT")
    for n in range(4):
        for s in range(4): unit(n, s, False)
    a("s_cmp_lg_u32 s59, 0")
    a("s_cbranch_scc1 C_ATT")
    for n in range(4):
        for s in range(4): unit(n, s, True)
        if n == 0:
            if STAMP == 4: stampc(a, 1)
            a("s_barrier")
            if STAMP == 4: stampc(a, 2)
    a("s_nop 1")
    a(f"{SM} {vr(O[3],16)}, {ar(KV[3]+12,4)}, {vr(S[3]+8,8)}, v2")
    stampc(a, 9)
    if "hidle" in X:
        stamp_out(a, 16)
        a("s_endpgm")
    for q in range(4):
        a(f"ds_write_b128 v{RA+2}, {vr(O[2]+4*q,4)} offset:{1024*q}")
    a("s_lshl_b32 s60, s24, 2")
    a("s_add_u32 s60, s60, s27")
    a(f"s_mul_i32 s60, s60, {PAD}")
    a("s_lshl_b32 s61, s28, 11")
    a("s_add_u32 s60, s60, s61")
    a(f"s_add_u32 s60, s60, {WS_OF + 32768}")
    a("v_mov_b32 v22, 0")
    a("v_mov_b32 v23, 0")
    a("s_setprio 1")
    a("s_waitcnt lgkmcnt(0)")
    a("s_barrier")
    for i in range(12):
        a(f"ds_read_b128 {vr(S[0]+4*i,4)}, v{RA+3} offset:{1024*i}")
    for j in range(3):
        for q in range(4):
            a(f"s_waitcnt lgkmcnt({11-4*j-q})")
            vadd(a, O[3]+4*q, S[j]+4*q, 4)
    a(f"v_mov_b32 v6, v{O[3]+12}")
    a(f"v_mov_b32 v7, v{O[3]+12}")
    a(f"s_mov_b32 s62, {f32(2.0**-40)}")
    a(f"s_mov_b32 s63, {f32(2.0**40)}")
    a("v_permlane32_swap_b32 v6, v7")
    a("v_cmp_nge_f32 vcc, v7, s62")
    a("v_cmp_nle_f32 s[64:65], v7, s63")
    a("v_rcp_f32 v7, v7")
    a("s_or_b64 vcc, vcc, s[64:65]")
    a("s_cbranch_scc1 C_FALLBACK")
    a.label("C_FIN")
    a("v_mul_f32 v7, v7, v14")
    vmul(a, O[3], "v7", 16)
    cvt(a, 16, O[3], 0, 4)
    a(f"buffer_store_dwordx4 v[16:19], v13, {WSR}, s60 offen sc1")
    cvt(a, 16, O[3], 4, 6)
    a("s_mov_b32 exec_hi, 0")
    cvt(a, 16, O[3], 6, 8)
    a("s_mov_b32 exec_hi, -1")
    a(f"buffer_store_dwordx4 v[20:23], v13, {WSR}, s60 offen offset:1024 sc1")
    stampc(a, 10)
    a("s_mul_i32 s60, s92, 28672")
    a("s_add_u32 s60, s60, 57344")
    p3_addr(a, 4, "s60", 8, 9)
    a("s_lshl_b32 s60, s27, 13")
    a(f"s_add_u32 s60, s60, {RING}")
    a("v_add_u32 v8, s60, v13")
    a("s_lshl_b32 s60, s27, 12")
    a(f"s_add_u32 s60, s60, {RING + 32768}")
    a("v_add_u32 v9, s60, v13")
    a("v_xor_b32 v10, 8192, v9")
    a("s_lshl_b32 s60, s30, 1")
    a("s_add_u32 s60, s60, s93")
    a("v_and_b32 v11, 31, v0")
    a("s_lshl_b32 s61, s60, 5")
    a("v_add_u32 v11, s61, v11")
    a("v_mul_u32_u24 v11, 896, v11")
    a("v_lshrrev_b32 v12, 5, v0")
    a("v_lshl_add_u32 v11, v12, 4, v11")
    a(f"s_mul_i32 s60, s60, {PAD}")
    a("s_lshl_b32 s61, s92, 14")
    a("s_add_u32 s60, s60, s61")
    a(f"s_add_u32 s60, s60, {WS_OF + 32768}")
    a("s_and_b32 s61, s30, 0xfe")
    a("s_add_u32 s61, s61, s92")
    a("s_lshl_b32 s61, s61, 7")
    a(f"s_add_u32 s61, s61, {C_OB}")
    a("s_lshl_b32 s62, s31, 7")
    a("s_lshl_b32 s63, s92, 6")
    a("s_add_u32 s62, s62, s63")
    srd(a, SX, 18, 1835008)
    a("s_waitcnt vmcnt(0)")
    a("s_barrier")
    stampc(a, 11)
    a("s_cmp_ge_u32 s32, 28")
    a("s_cbranch_scc1 C_EXIT")
    a("s_barrier")
    for i in range(8):
        a(f"ds_read_b128 {vr(16+4*i,4)}, v8 offset:{1024*i}")
    poll(a, "OB", WSR, "s61", 8, 3, 12)
    stampc(a, 12)
    p3_oloads(a, 13, "s60")
    p3_gemm(a, 4, [16, 32], [48, 56], False, True)
    stampc(a, 13)
    a("s_cmp_eq_u32 s92, 0")
    a("s_cbranch_scc1 C_KH0")
    a("s_nop 9")
    for i in range(16):
        a(f"v_swap_b32 v{16+i}, v{32+i}")
    a.label("C_KH0")
    a("s_nop 9")
    for i in range(4):
        a(f"ds_write_b128 v9, {vr(32+4*i,4)} offset:{1024*i}")
    a("s_waitcnt lgkmcnt(0)")
    a("s_barrier")
    for i in range(4):
        a(f"ds_read_b128 {vr(32+4*i,4)}, v10 offset:{1024*i}")
    for q in range(4):
        a(f"s_waitcnt lgkmcnt({3-q})")
        vadd(a, 16+4*q, 32+4*q, 4)
    cvt(a, 48, 16)
    a("s_nop 1")
    a("v_permlane32_swap_b32 v48, v50")
    a("v_permlane32_swap_b32 v49, v51")
    a("v_permlane32_swap_b32 v52, v54")
    a("v_permlane32_swap_b32 v53, v55")
    a(f"buffer_store_dwordx4 v[48:51], v11, {R(SX)}, s62 offen")
    a(f"buffer_store_dwordx4 v[52:55], v11, {R(SX)}, s62 offen offset:32")
    a.label("C_EXIT")
    stampc(a, 14)
    if STAMP: a("s_waitcnt vmcnt(0)")
    stampc(a, 15)
    stamp_out(a, 16)
    a("s_endpgm")
    a.label("C_FALLBACK")
    Qo = Q[3]; K0 = KV[0]; Sx = S[0]
    a("s_mov_b32 s58, 0")
    a("s_mov_b32 s59, 0")
    a(f"v_mov_b32 v8, {f32(float('-inf'))}")
    a.label("C_FB1")
    a(ld(K0, 0, "v4")); a(ld(K0+4, 1024, "v4"))
    a("s_waitcnt vmcnt(0)")
    a(f"{MF} {vr(Sx,16)}, {ar(K0,4)}, {ar(Qo,4)}, 0")
    a(f"{MF} {vr(Sx,16)}, {ar(K0+4,4)}, {ar(Qo+4,4)}, {vr(Sx,16)}")
    a("s_add_u32 s58, s58, 4096")
    a("s_add_u32 s59, s59, 1")
    a("s_and_b32 s61, s59, 15")
    a(f"s_cselect_b32 s61, 0, {PAD-65536}")
    a("s_add_u32 s58, s58, s61")
    a("s_nop 15")
    for i in range(8):
        a(f"v_max3_f32 v8, v8, v{Sx+2*i}, v{Sx+2*i+1}")
    a("s_cmp_lt_u32 s59, 64")
    a("s_cbranch_scc1 C_FB1")
    a("v_mov_b32 v9, v8")
    a("s_nop 1")
    a("v_permlane32_swap_b32 v8, v9")
    a("v_max_f32 v8, v8, v9")
    a("v_and_b32 v9, 0xffff0000, v8")
    a("v_sub_f32 v8, v8, v9")
    a("v_and_b32 v10, 0xffff0000, v8")
    a("v_sub_f32 v8, v8, v10")
    a("v_cvt_pk_bf16_f32 v9, -v9, -v10")
    a("v_cvt_pk_bf16_f32 v8, -v8, 0")
    a("s_mov_b32 exec_lo, 0")
    a(f"v_accvgpr_write_b32 a{Qo+6}, v9")
    a(f"v_accvgpr_write_b32 a{Qo+7}, v8")
    a("s_mov_b32 exec_lo, -1")
    for i in range(16): a(f"v_mov_b32 v{O[3]+i}, 0")
    a("s_mov_b32 s58, 0")
    a("s_mov_b32 s59, 0")
    a.label("C_FB2")
    for f in range(4): a(ld(K0+4*f, 1024*f, "v4"))
    a("s_waitcnt vmcnt(0)")
    a(f"{MF} {vr(Sx,16)}, {ar(K0,4)}, {ar(Qo,4)}, 0")
    a(f"{MF} {vr(Sx,16)}, {ar(K0+4,4)}, {ar(Qo+4,4)}, {vr(Sx,16)}")
    a("s_add_u32 s58, s58, 4096")
    a("s_add_u32 s59, s59, 1")
    a("s_and_b32 s61, s59, 15")
    a(f"s_cselect_b32 s61, 0, {PAD-65536}")
    a("s_add_u32 s58, s58, s61")
    a("s_nop 15")
    for i in range(16): a(f"v_exp_f32 v{Sx+i}, v{Sx+i}")
    a("s_nop 1")
    a(f"{SM} {vr(O[3],16)}, {ar(K0+8,4)}, {vr(Sx,8)}, v2")
    a(f"{SM} {vr(O[3],16)}, {ar(K0+12,4)}, {vr(Sx+8,8)}, v2")
    a("s_cmp_lt_u32 s59, 64")
    a("s_cbranch_scc1 C_FB2")
    a("s_nop 15")
    a(f"v_mov_b32 v6, v{O[3]+12}")
    a(f"v_mov_b32 v7, v{O[3]+12}")
    a("s_nop 1")
    a("v_permlane32_swap_b32 v6, v7")
    a("v_rcp_f32 v7, v7")
    a("s_nop 0")
    a("s_branch C_FIN")

def main():
    a = Asm()
    head = f"""; gated mix of a linear-attention block and a softmax-attention block (S=2048, D=448, H=16), one launch
; @launch grid=(256,1,1) block=(512,1,1) lds=163840
.amdgcn_target "amdgcn-amd-amdhsa--gfx950"
.text
"""
    gen(a)
    out = head + a.text() + '.section .rodata,"a"\n' + kernel_desc(KN, 256, 102, 160)
    path = sys.argv[1] if len(sys.argv) > 1 else f"cdna_kernels/{NAME}.s"
    open(path, "w").write(out)
main()
```

```python
import math, sys, os, struct
from asmlib import *

NAME = "gated_mix__linear_attn_block__mha_block__prompt"
KN = NAME + "_kernel"
WS_KV  = 0
WS_CNT = 5 << 20
WS_KVP = 6 << 20
WS_OF  = 8 << 20
PAD = int(os.environ.get("PAD", "69632"))
WS_ST  = 14 << 20
WS_SIZE = 16 << 20
LOG2E = 1.4426950408889634
QSCALE = LOG2E * 28 ** -0.5
EPS = 1e-6
ONE2 = 0x3F803F80
RING = 114688
L_KVD = RING
L_G   = RING + 16384 + 4096
L_KVF = RING + 16384 + 12288
L_CNT = RING + 16384 + 14336
L_QD  = RING + 32768
L_PQ  = RING + 32768 + 8192
STAMP = int(os.environ.get("STAMP", "0"))
X = set(os.environ.get("X", "").split(","))
MF = "v_mfma_f32_32x32x16_bf16"
SM = "v_smfmac_f32_32x32x32_bf16"
SX, SW, SWA, SWB, SWS, SD, SG = 36, 40, 44, 48, 52, 56, 60
WSR = f"s[{SWS}:{SWS+3}]"
SPIN = 200000

def srd(a, d, lo, size):
    a(f"s_mov_b32 s{d}, s{lo}")
    a(f"s_mov_b32 s{d+1}, s{lo+1}")
    a(f"s_mov_b32 s{d+2}, {size}")
    a(f"s_mov_b32 s{d+3}, 0x20000")
def R(d): return f"s[{d}:{d+3}]"

def stamp(a, i, mode=1):
    if not STAMP: return
    if mode is not None and mode != STAMP: return
    if i == 0: a("s_memrealtime s[96:97]")
    a(f"s_memtime s[94:95]")
    a("s_waitcnt lgkmcnt(0)")
    a(f"s_mov_b32 s{70+i}, s94")
def stampc(a, i):
    stamp(a, i, None)
def stamp_out(a, n):
    if not STAMP: return
    a("s_memrealtime s[98:99]")
    a("s_waitcnt lgkmcnt(0)")
    a("s_mov_b64 exec, 1")
    a("s_lshl_b32 s94, s2, 3")
    a("s_add_u32 s94, s94, s35")
    a("s_lshl_b32 s94, s94, 7")
    a(f"s_add_u32 s94, s94, {WS_ST}")
    a("v_mov_b32 v1, 0")
    for i in range(n):
        a(f"v_mov_b32 v2, s{70+i}")
        a(f"buffer_store_dword v2, v1, {WSR}, s94 offen offset:{4*i}")
    a("v_mov_b32 v2, s96")
    a(f"buffer_store_dword v2, v1, {WSR}, s94 offen offset:120")
    a("v_mov_b32 v2, s98")
    a(f"buffer_store_dword v2, v1, {WSR}, s94 offen offset:124")

def dma_lane_w(a, vdst, vt0, vt1, rowstride):
    a(f"v_lshrrev_b32 v{vt0}, 4, v0")
    a(f"v_bfe_u32 v{vt1}, v0, 2, 2")
    a(f"v_and_b32 v{vdst}, 1, v{vt0}")
    if "noswz" not in X: a(f"v_xor_b32 v{vt1}, v{vt1}, v{vdst}")
    a(f"v_lshrrev_b32 v{vdst}, 1, v{vt1}")
    a(f"v_lshl_add_u32 v{vt0}, v{vt0}, 1, v{vdst}")
    a(f"v_mul_u32_u24 v{vt0}, {rowstride}, v{vt0}")
    a(f"v_and_b32 v{vt1}, 1, v{vt1}")
    a(f"v_lshl_add_u32 v{vt0}, v{vt1}, 6, v{vt0}")
    a(f"v_and_b32 v{vt1}, 3, v0")
    a(f"v_lshl_add_u32 v{vdst}, v{vt1}, 4, v{vt0}")

def tr_lane_addr(a, vdst, vb, vt0, vt1, hlshift):
    a(f"v_bfe_u32 v{vt0}, v0, 4, 1")
    a(f"v_lshl_add_u32 v{vb}, v{vt0}, 5, v{vb}")
    a(f"v_and_b32 v{vt0}, 3, v0")
    a(f"v_lshl_add_u32 v{vb}, v{vt0}, 3, v{vb}")
    a(f"v_bfe_u32 v{vt0}, v0, 2, 1")
    a(f"v_lshrrev_b32 v{vt1}, 6, v{vb}")
    a(f"v_lshl_add_u32 v{vt0}, v{vt0}, 1, v{vt1}")
    a(f"v_bfe_u32 v{vt1}, v0, 3, 1")
    a(f"v_xor_b32 v{vt0}, v{vt0}, v{vt1}")
    a(f"v_and_b32 v{vb}, 63, v{vb}")
    a(f"v_lshl_add_u32 v{vb}, v{vt0}, 6, v{vb}")
    a(f"v_lshrrev_b32 v{vt0}, 5, v0")
    a(f"v_lshl_add_u32 v{vt0}, v{vt0}, {hlshift}, v{vt1}")
    a(f"v_lshl_add_u32 v{vdst}, v{vt0}, 8, v{vb}")

C_KV, C_A, C_OA, C_OB = WS_CNT, WS_CNT + 32*128, WS_CNT + 40*128, WS_CNT + 72*128
def poll(a, tag, srdreg, soff, target, vz, vt, sleep=0):
    a("s_mov_b64 exec, 1")
    a(f"s_mov_b32 s68, {SPIN}")
    if sleep:
        a(f"s_branch POLL_{tag}")
        a.label(f"POLLS_{tag}")
        a(f"s_sleep {sleep}")
    a.label(f"POLL_{tag}")
    a(f"buffer_load_dword v{vt}, v{vz}, {srdreg}, {soff} offen sc1")
    a("s_waitcnt vmcnt(0)")
    a(f"v_readfirstlane_b32 s69, v{vt}")
    a("s_sub_u32 s68, s68, 1")
    a(f"s_cbranch_scc1 POLLX_{tag}")
    a(f"s_cmp_ge_u32 s69, {target}")
    a(f"s_cbranch_scc0 POLL{'S' if sleep else ''}_{tag}")
    a.label(f"POLLX_{tag}")
    a("s_mov_b64 exec, -1")

def signal(a, soff, vz, vt):
    a("s_mov_b64 exec, 1")
    a(f"v_mov_b32 v{vt}, 1")
    a(f"buffer_atomic_add v{vt}, v{vz}, {WSR}, {soff} offen sc1")
    a("s_mov_b64 exec, -1")

def cvt(a, dst, src, lo=0, hi=8):
    for i in range(lo, hi):
        a(f"v_cvt_pk_bf16_f32 v{dst+i}, v{src+2*i}, v{src+2*i+1}")

def vadd(a, dst, src, n):
    for i in range(n): a(f"v_add_f32 v{dst+i}, v{dst+i}, v{src+i}")
def vmul(a, dst, mul, n):
    for i in range(n): a(f"v_mul_f32 v{dst+i}, {mul}, v{dst+i}")

def phi(a, src, T):
    for i in range(8):
        if "pkphi" in X:
            a(f"v_pk_fma_f32 {vr(T+2*i,2)}, {vr(src+2*i,2)}, s[64:65], s[64:65] neg_lo:[0,0,1] neg_hi:[0,0,1]")
        else:
            for k in range(2): a(f"v_fma_f32 v{T+2*i+k}, v{src+2*i+k}, s64, -s64")
    for i in range(16):
        a(f"v_exp_f32_e64 v{T+i}, v{T+i} clamp")
    for i in range(16):
        a(f"v_max_f32 v{src+i}, v{src+i}, v{T+i}")
    for i in range(8):
        if "pkphi" in X:
            a(f"v_pk_add_f32 {vr(src+2*i,2)}, {vr(src+2*i,2)}, s[66:67]")
        else:
            for k in range(2): a(f"v_add_f32 v{src+2*i+k}, s66, v{src+2*i+k}")

def p3_addr(a, v0a, mat_off_sgpr, vt0, vt1):
    a(f"v_mov_b32 v{v0a+1}, 0")
    tr_lane_addr(a, v0a, v0a+1, vt0, vt1, 1)
    a(f"v_add_u32 v{v0a}, {mat_off_sgpr}, v{v0a}")
    a(f"v_xor_b32 v{v0a+1}, 64, v{v0a}")
    a(f"v_lshrrev_b32 v{vt0}, 5, v0")
    a(f"v_lshlrev_b32 v{vt0}, 9, v{vt0}")
    a(f"v_sub_u32 v{v0a+2}, v{v0a}, v{vt0}")
    a(f"v_sub_u32 v{v0a+3}, v{v0a+1}, v{vt0}")

def p3_gemm(a, va, ACC, WF, first_zero, vmwait):
    def reads(ks):
        f = WF[ks & 1]; hh, m = ks >> 1, ks & 1
        o = (14*hh + 8*m) * 256
        last = (ks == 15)
        return [f"ds_read_b64_tr_b16 {vr(f,2)}, v{va} offset:{o}",
                f"ds_read_b64_tr_b16 {vr(f+2,2)}, v{va+2 if last else va} offset:{o+1024}",
                f"ds_read_b64_tr_b16 {vr(f+4,2)}, v{va+1} offset:{o}",
                f"ds_read_b64_tr_b16 {vr(f+6,2)}, v{va+3 if last else va+1} offset:{o+1024}"]
    for x in reads(0): a(x)
    for ks in range(16):
        f = WF[ks & 1]
        rd = reads(ks+1) if ks < 15 else []
        c0 = "0" if (first_zero and ks == 0) else vr(ACC[0], 16)
        c1 = "0" if (first_zero and ks == 0) else vr(ACC[1], 16)
        if vmwait: a(f"s_waitcnt vmcnt({15-ks}) lgkmcnt(2)")
        else: a("s_waitcnt lgkmcnt(2)")
        a(f"{MF} {vr(ACC[0],16)}, {vr(f,4)}, {ar(4*ks,4)}, {c0}")
        for x in rd[:2]: a(x)
        a(f"s_waitcnt lgkmcnt({2 if rd else 0})")
        a(f"{MF} {vr(ACC[1],16)}, {vr(f+4,4)}, {ar(4*ks,4)}, {c1}")
        for x in rd[2:]: a(x)

def p3_oloads(a, vlane16, so):
    for ks in range(16):
        a(f"buffer_load_dwordx4 {ar(4*ks,4)}, v{vlane16}, {WSR}, {so} offen offset:{1024*(ks&3)} sc1")
        if ks & 3 == 3 and ks < 15: a(f"s_add_u32 {so}, {so}, 4096")

def gen(a):
    kernel_head(a, KN)
    a("s_cmp_ge_u32 s2, 256")
    a("s_cbranch_scc1 L_END")
    a("s_load_dwordx16 s[4:19], s[0:1], 0")
    a("s_load_dwordx4 s[20:23], s[0:1], 64")
    if STAMP or "span" in X:
        a("s_memrealtime s[96:97]")
        a("s_memtime s[70:71]")
    a("s_and_b32 s64, s2, 7")
    a("s_lshr_b32 s32, s2, 3")
    a("s_lshr_b32 s34, s64, 1")
    a("s_and_b32 s33, s64, 1")
    a("s_lshr_b32 s29, s32, 3")
    a("s_lshl_b32 s24, s34, 2")
    a("s_add_u32 s24, s24, s29")
    a("s_and_b32 s26, s32, 1")
    a("s_bfe_u32 s25, s32, 0x20001")
    a("s_lshl_b32 s65, s33, 2")
    a("s_add_u32 s25, s25, s65")
    a("s_lshl_b32 s28, s25, 1")
    a("s_cmp_eq_u32 s26, s33")
    a("s_addc_u32 s28, s28, 0")
    a("s_mul_i32 s30, s32, 37")
    a("s_lshr_b32 s30, s30, 8")
    a("s_mul_i32 s31, s30, 7")
    a("s_sub_u32 s31, s32, s31")
    a("s_lshl_b32 s64, s64, 2")
    a("s_add_u32 s30, s30, s64")
    a("v_lshrrev_b32 v1, 6, v0")
    a("v_and_b32 v0, 63, v0")
    a("v_readfirstlane_b32 s27, v1")
    a("s_nop 3")
    a("s_mov_b32 s35, s27")
    a("s_cmp_ge_u32 s27, 4")
    a("s_cbranch_scc0 L_COMPUTE")
    helper(a)
    compute(a)
    a.label("L_END")
    a("s_endpgm")
    a.label("L_CODE_END")

def helper(a):
    a("s_sub_u32 s27, s27, 4")
    a("s_setprio " + os.environ.get("PRIO", "2"))
    ROT = os.environ.get("ROT", "2")
    a("s_and_b32 s64, s32, 7")
    a("s_add_u32 s64, s64, s29")
    if ROT == "0":
        a("s_mov_b32 s84, 0")
    elif ROT == "2":
        a("s_add_u32 s64, s64, s34")
        a("s_and_b32 s64, s64, 1")
        a("s_mul_i32 s84, s64, 3")
    elif ROT == "3":
        a("s_add_u32 s64, s64, s34")
        a("s_mul_i32 s65, s64, 86")
        a("s_lshr_b32 s65, s65, 8")
        a("s_mul_i32 s65, s65, 3")
        a("s_sub_u32 s64, s64, s65")
        a("s_mul_i32 s84, s64, 5")
        a("s_lshr_b32 s84, s84, 1")
    elif ROT == "4":
        a("s_add_u32 s64, s64, s34")
        a("s_and_b32 s64, s64, 3")
        a("s_lshl_b32 s84, s64, 1")
    elif ROT == "7":
        a("s_add_u32 s64, s64, s29")
        a("s_add_u32 s64, s64, s34")
        a("s_mul_i32 s65, s64, 37")
        a("s_lshr_b32 s65, s65, 8")
        a("s_mul_i32 s65, s65, 7")
        a("s_sub_u32 s84, s64, s65")
    for i in range(1, 7):
        a(f"s_add_u32 s{84+i}, s{83+i}, 1")
        a(f"s_cmp_eq_u32 s{84+i}, 7")
        a(f"s_cselect_b32 s{84+i}, 0, s{84+i}")
    a("v_lshrrev_b32 v1, 3, v0")
    a("s_lshl_b32 s64, s24, 7")
    a("s_lshl_b32 s65, s27, 5")
    a("s_add_u32 s64, s64, s65")
    a("v_add_u32 v1, s64, v1")
    a("v_mul_u32_u24 v1, 896, v1")
    a("v_lshrrev_b32 v2, 4, v0")
    a("v_and_b32 v3, 7, v0")
    a("v_xor_b32 v2, v2, v3")
    a("v_lshl_add_u32 v2, v2, 4, v1")
    a("v_xor_b32 v3, 64, v2")
    a("v_add_u32 v3, 7168, v3")
    a("v_add_u32 v4, 14336, v2")
    a("v_add_u32 v5, 14336, v3")
    dma_lane_w(a, 6, 10, 11, 2688)
    a("s_mul_i32 s64, s27, 43008")
    a("s_mul_i32 s65, s25, %d" % (128 if "al128" in X else 64 if "al64" in X else 112))
    a("s_add_u32 s64, s64, s65")
    a("s_add_u32 s64, s64, 896")
    a("v_add_u32 v6, s64, v6")
    a("v_add_u32 v7, 21504, v6")
    a("v_add_u32 v8, 896, v6")
    a("v_add_u32 v9, 896, v7")
    a("s_lshl_b32 s66, s27, 12")
    a("s_lshl_b32 s67, s27, 11")
    a(f"s_add_u32 s67, s67, {RING}")
    a("s_waitcnt lgkmcnt(0)")
    srd(a, SX, 4, 1835008)
    a("s_cmp_eq_u32 s26, 0")
    a(f"s_cselect_b32 s{SW}, s6, s12")
    a(f"s_cselect_b32 s{SW+1}, s7, s13")
    a(f"s_mov_b32 s{SW+2}, 1204224")
    a(f"s_mov_b32 s{SW+3}, 0x20000")
    vm = []
    def xload(c):
        a(f"s_lshl_b32 s64, s{84+c}, 7")
        for q in range(4):
            a(f"s_add_u32 m0, s66, {c*16384 + q*1024}")
            a("s_nop 0")
            a(f"buffer_load_dwordx4 v{2+q}, {R(SX)}, s64 offen lds"); vm.append(("x", c))
    def wload(c):
        a(f"s_mul_i32 s65, s{84+c}, 172032")
        for pt in range(2):
            for u in range(2):
                a(f"s_add_u32 m0, s67, {(c%3)*16384 + pt*8192 + u*1024}")
                a("s_nop 0")
                a(f"buffer_load_dwordx4 v{6+2*pt+u}, {R(SW)}, s65 offen lds"); vm.append(("w", c))
    def qload(d):
        a("s_cmp_ge_u32 s27, 2")
        a(f"s_cselect_b32 s65, s{84+min(2*d+1,6)}, s{84+2*d}")
        a("s_mul_i32 s65, s65, 172032")
        for mat in range(2):
            for u in range(2):
                a(f"s_add_u32 m0, s67, {((7+d)%3)*16384 + mat*8192 + u*1024}")
                a("s_nop 0")
                a(f"buffer_load_dwordx4 v{10+u}, {R(SWA if mat == 0 else SWB)}, s65 offen lds"); vm.append(("q", d))
    def waitfor(*tags):
        last = max(i for i, tg in enumerate(vm) if tg in tags)
        a(f"s_waitcnt vmcnt({len(vm)-1-last})")
    def patch(d):
        a("s_mov_b32 exec_hi, 0")
        a(f"ds_write_b16 v16, v{12+d} offset:{((7+d)%3)*16384}")
        a("s_mov_b32 exec_hi, -1")
        a("s_waitcnt lgkmcnt(0)")
    if "nodma" in X:
        srd(a, SWS, 22, WS_SIZE)
        stamp_out(a, 11)
        a("s_endpgm")
    if "free" in X:
        srd(a, SWS, 22, WS_SIZE)
        stamp(a, 1, 2)
        for c in range(7):
            if "nox" not in X: xload(c)
            if "now" not in X: wload(c)
        stamp(a, 2, 2)
        a("s_waitcnt vmcnt(0)")
        stamp(a, 3, 2)
        stamp_out(a, 11)
        a("s_endpgm")
    stamp(a, 1, 2)
    for c in range(2):
        xload(c); wload(c)
    stamp(a, 1); stamp(a, 2, 2)
    srd(a, SWA, 6, 1204224); srd(a, SWB, 12, 1204224)
    srd(a, SWS, 22, WS_SIZE); srd(a, SD, 20, 256); srd(a, SG, 16, 896)
    a("v_lshrrev_b32 v10, 2, v0")
    a("s_and_b32 s64, s27, 1")
    a("s_lshl_b32 s64, s64, 5")
    a("v_add_u32 v10, s64, v10")
    a("v_mul_u32_u24 v10, 2688, v10")
    a("v_and_b32 v11, 3, v0")
    a("v_lshl_add_u32 v10, v11, 4, v10")
    a("s_mul_i32 s65, s28, 56")
    a("v_add_u32 v10, s65, v10")
    a("v_add_u32 v11, 43008, v10")
    a("v_add_u32 v17, s64, v0")
    a("v_lshlrev_b32 v17, 1, v17")
    a("s_lshl_b32 s64, s27, 11")
    a(f"s_add_u32 s64, s64, {RING + 8192 + 56}")
    a("v_lshl_add_u32 v16, v0, 6, s64")
    a("s_lshl_b32 s64, s32, 1")
    a("s_and_b32 s65, s27, 1")
    a("s_add_u32 s64, s64, s65")
    a("s_mul_i32 s64, s64, 28")
    a("v_add_u32 v20, s64, v0")
    a("v_lshrrev_b32 v21, 2, v20")
    a("v_mul_u32_u24 v21, 2688, v21")
    a("v_and_b32 v20, 3, v20")
    a("v_lshl_add_u32 v20, v20, 7, v21")
    a("s_mul_i32 s64, s33, 384")
    a("v_add_u32 v20, s64, v20")
    a("s_lshl_b32 s64, s32, 1")
    a("s_add_u32 s64, s64, s65")
    a("s_mul_i32 s64, s64, 49")
    a("v_add_u32 v21, s64, v0")
    a("v_lshlrev_b32 v21, 7, v21")
    a("v_mov_b32 v18, 0")
    waitfor(("x",0),("w",0)); a("s_barrier"); stamp(a, 3, 2)
    stamp(a, 2)
    xload(2); wload(2)
    waitfor(("x",1),("w",1)); a("s_barrier"); stamp(a, 4, 2)
    xload(3); wload(3)
    for d in range(4):
        a("s_cmp_ge_u32 s27, 2")
        a(f"s_cselect_b32 s65, s{84+min(2*d+1,6)}, s{84+2*d}")
        a("s_lshl_b32 s65, s65, 7")
        a(f"buffer_load_ushort v{12+d}, v17, {R(SG)}, s65 offen"); vm.append(("g", d))
    waitfor(("x",2),("w",2)); a("s_barrier"); stamp(a, 5, 2)
    xload(4); wload(4)
    waitfor(("x",3),("w",3)); a("s_barrier"); stamp(a, 6, 2)
    xload(5); wload(5)
    a(f"buffer_load_dword v17, v18, {R(SD)}, 0 offen sc1"); vm.append(("d", 0))
    waitfor(("x",4),("w",4)); a("s_barrier"); stamp(a, 7, 2)
    xload(6); wload(6)
    if "nopq" not in X:
        a("s_cmp_ge_u32 s27, 2")
        a(f"s_cselect_b32 s{SG}, s12, s6")
        a(f"s_cselect_b32 s{SG+1}, s13, s7")
        a(f"s_mov_b32 s{SG+2}, 1204224")
        a("s_mov_b32 exec_lo, 0x0fffffff")
        a("s_mov_b32 exec_hi, 0")
        a(f"buffer_load_dword v22, v20, {R(SG)}, 0 offen"); vm.append(("p", 0))
        a("s_mov_b64 exec, -1")
    waitfor(("x",5),("w",5)); a("s_barrier"); stamp(a, 8, 2)
    qload(0)
    waitfor(("x",6),("w",6)); a("s_barrier"); stamp(a, 9, 2)
    qload(1)
    waitfor(("q",0)); patch(0); a("s_barrier"); stamp(a, 10, 2)
    if "memonly" in X:
        stamp_out(a, 11)
        a("s_endpgm")
    qload(2)
    waitfor(("q",1)); patch(1)
    a("v_readfirstlane_b32 s69, v17")
    a("s_nop 0")
    a("s_cmp_lg_u32 s69, 0")
    a("s_cbranch_scc1 H_INIT_OK")
    poll(a, "INIT", R(SD), "0", 1, 18, 17)
    a.label("H_INIT_OK")
    a("s_barrier")
    a("s_cmp_ge_u32 s27, 2")
    a("s_cbranch_scc1 H_NOQ3")
    qload(3)
    waitfor(("q",2)); patch(2)
    a("s_branch H_Q3")
    a.label("H_NOQ3")
    a("s_waitcnt vmcnt(0)"); patch(2)
    a.label("H_Q3")
    if "nopwo" not in X:
        a("s_cmp_ge_u32 s27, 2")
        a(f"s_cselect_b32 s{SG}, s14, s8")
        a(f"s_cselect_b32 s{SG+1}, s15, s9")
        a(f"s_mov_b32 s{SG+2}, 401408")
        a("s_mov_b32 exec_hi, 0x1ffff")
        a(f"buffer_load_dword a64, v21, {R(SG)}, 0 offen")
        a("s_mov_b64 exec, -1")
    a("s_barrier")
    a("s_cmp_eq_u32 s27, 3")
    a("s_cselect_b32 s64, s26, 0")
    a("s_cmp_eq_u32 s64, 0")
    a("s_cbranch_scc1 H_NOSIGKV")
    a("s_lshl_b32 s64, s25, 2")
    a("s_add_u32 s64, s64, s34")
    a("s_lshl_b32 s64, s64, 7")
    a(f"s_add_u32 s64, s64, {C_KV}")
    signal(a, "s64", 18, 19)
    a.label("H_NOSIGKV")
    a(f"s_waitcnt vmcnt({0 if 'nopwo' in X else 1})")
    a("s_cmp_ge_u32 s27, 2")
    a("s_cbranch_scc1 H_NOP3")
    patch(3)
    a.label("H_NOP3")
    a("s_barrier")
    a(f"v_mov_b32 v1, {L_CNT}")
    a("v_mov_b32 v10, 0")
    a("v_mov_b32 v11, 0")
    a("ds_write_b64 v1, v[10:11]")
    a("v_lshlrev_b32 v2, 4, v0")
    dma_lane_w(a, 3, 4, 5, 896)
    a("s_mul_i32 s64, s27, 7168")
    a("s_lshl_b32 s65, s31, 7")
    a("s_add_u32 s64, s64, s65")
    a("v_add_u32 v3, s64, v3")
    a("s_lshr_b32 s64, s27, 1")
    a("s_mul_i32 s64, s64, 28672")
    p3_addr(a, 4, "s64", 8, 9)
    srd(a, SWA, 8, 401408); srd(a, SWB, 14, 401408)
    a("s_waitcnt lgkmcnt(0)")
    a("s_barrier")
    stamp(a, 3); stamp(a, 1, 3)
    if "hidle" in X:
        a("s_endpgm")
    PQ, G, KF, NUM, PA = 80, 88, 92, 100, 116
    a("s_lshl_b32 s64, s27, 11")
    a("v_add_u32 v8, s64, v2")
    a(f"v_add_u32 v8, {L_PQ}, v8")
    a(f"ds_read_b128 {vr(PQ,4)}, v8")
    a(f"ds_read_b128 {vr(PQ+4,4)}, v8 offset:1024")
    a("s_lshl_b32 s64, s27, 8")
    a(f"s_add_u32 s64, s64, {L_G}")
    a("v_lshl_add_u32 v8, v0, 2, s64")
    a(f"ds_read_b32 v{G}, v8")
    a("s_cmp_eq_u32 s27, 3")
    a("s_cselect_b32 s64, s26, 1")
    a("s_cmp_eq_u32 s64, 0")
    a("s_cbranch_scc0 H_NOKVP")
    a(f"v_add_u32 v8, {L_KVD}, v2")
    for i in range(16):
        a(f"ds_read_b128 {vr(16+4*i,4)}, v8 offset:{1024*i}")
        if i == 11: a("s_waitcnt lgkmcnt(8)")
    a(f"s_mul_i32 s64, s25, {2*PAD}")
    a("s_lshl_b32 s65, s24, 12")
    a("s_add_u32 s64, s64, s65")
    a(f"s_add_u32 s64, s64, {WS_KVP}")
    a(f"s_add_u32 s65, s64, {PAD}")
    a("s_waitcnt lgkmcnt(0)")
    for j in range(2):
        vadd(a, 16+16*j, 48+16*j, 16)
        for q in range(4):
            a(f"buffer_store_dwordx4 {vr(16+16*j+4*q,4)}, v2, {WSR}, s{64+j} offen offset:{1024*q} sc1")
    a("s_lshl_b32 s64, s25, 7")
    a(f"s_add_u32 s64, s64, {C_A}")
    a("s_waitcnt vmcnt(0)")
    signal(a, "s64", 10, 11)
    a.label("H_NOKVP")
    def wo_dma(tag, end):
        a.label(f"H_WO{tag}")
        a("s_mov_b32 m0, s66")
        a("s_add_u32 s67, s66, 57344")
        a(f"buffer_load_dwordx4 v3, {R(SWA)}, s63 offen lds")
        a("s_mov_b32 m0, s67")
        a("s_add_u32 s66, s66, 4096")
        a(f"buffer_load_dwordx4 v3, {R(SWB)}, s63 offen lds")
        a("s_add_u32 s63, s63, 28672")
        a("s_waitcnt vmcnt(%s)" % os.environ.get("WOD", "4"))
        a(f"s_cmp_lt_u32 s63, {end*28672}")
        a(f"s_cbranch_scc1 H_WO{tag}")
    a("s_lshl_b32 s66, s27, 10")
    a("s_mov_b32 s63, 0")
    a("s_cmp_ge_u32 s32, 28")
    a("s_cbranch_scc1 H_NOWOA")
    wo_dma("A", 14)
    a.label("H_NOWOA")
    stamp(a, 2, 3)
    a("s_lshl_b32 s64, s25, 7")
    a(f"s_add_u32 s64, s64, {C_A}")
    poll(a, "A", WSR, "s64", 16, 10, 11, 2)
    stamp(a, 4); stamp(a, 3, 3)
    a(f"s_mul_i32 s64, s28, {PAD}")
    a("s_lshl_b32 s65, s27, 10")
    a("s_add_u32 s64, s64, s65")
    a(f"s_add_u32 s64, s64, {WS_KVP}")
    def kvadd(j):
        if "noadd" in X: return
        if "pkadd" in X:
            for k in range(2):
                a(f"v_pk_add_f32 {vr(16+2*k,2)}, {vr(16+2*k,2)}, {vr(16+4*j+2*k,2)}")
        else:
            for k in range(4):
                a(f"v_add_f32 v{16+k}, v{16+k}, v{16+4*j+k}")
    for i in range(16):
        a(f"buffer_load_dwordx4 {vr(16+4*i,4)}, v2, {WSR}, s64 offen" + ("" if "kvplain" in X else " sc1"))
        a("s_add_u32 s64, s64, 4096")
        if i >= 3:
            a("s_waitcnt vmcnt(3)")
            j = i - 3
            if j >= 1:
                kvadd(j)
    stamp(a, 4, 3)
    for j in (13, 14, 15):
        a(f"s_waitcnt vmcnt({15-j})")
        kvadd(j)
    stamp(a, 5, 3)
    a("v_cvt_pk_bf16_f32 v16, v16, v17")
    a("v_cvt_pk_bf16_f32 v17, v18, v19")
    a("s_lshr_b32 s64, s27, 1")
    a("s_lshl_b32 s64, s64, 10")
    a("s_and_b32 s65, s27, 1")
    a("s_lshl_b32 s65, s65, 3")
    a("s_add_u32 s64, s64, s65")
    a(f"s_add_u32 s64, s64, {L_KVF}")
    a("v_add_u32 v8, s64, v2")
    a("ds_write_b64 v8, v[16:17]")
    a("v_mov_b32 v11, 1")
    a("s_waitcnt lgkmcnt(0)")
    a("s_mov_b64 exec, 1")
    a("ds_add_u32 v1, v11")
    a(f"s_mov_b32 s68, {SPIN}")
    a.label("H_SPIN1")
    a("ds_read_b32 v9, v1")
    a("s_waitcnt lgkmcnt(0)")
    a("v_readfirstlane_b32 s69, v9")
    a("s_sub_u32 s68, s68, 1")
    a("s_cbranch_scc1 H_SPIN1X")
    a("s_cmp_ge_u32 s69, 4")
    a("s_cbranch_scc0 H_SPIN1")
    a.label("H_SPIN1X")
    stamp(a, 6, 3)
    a("s_mov_b64 exec, -1")
    a(f"v_add_u32 v8, {L_KVF}, v2")
    a(f"ds_read_b128 {vr(KF,4)}, v8")
    a(f"ds_read_b128 {vr(KF+4,4)}, v8 offset:1024")
    a("s_waitcnt lgkmcnt(0)")
    a(f"{MF} {vr(NUM,16)}, {vr(KF,4)}, {vr(PQ,4)}, 0")
    a(f"{MF} {vr(NUM,16)}, {vr(KF+4,4)}, {vr(PQ+4,4)}, {vr(NUM,16)}")
    a("s_lshl_b32 s64, s24, 2")
    a("s_add_u32 s64, s64, s27")
    a(f"s_mul_i32 s64, s64, {PAD}")
    a("s_lshl_b32 s65, s28, 11")
    a("s_add_u32 s64, s64, s65")
    a(f"s_add_u32 s64, s64, {WS_OF}")
    a(f"v_mov_b32 v{PA+6}, 0")
    a(f"v_mov_b32 v{PA+7}, 0")
    a("s_nop 7")
    a(f"v_mov_b32 v8, v{NUM+12}")
    a(f"v_mov_b32 v9, v{NUM+12}")
    a("s_nop 1")
    a("v_permlane32_swap_b32 v8, v9")
    a(f"v_add_f32 v9, {f32(EPS)}, v9")
    a("v_rcp_f32 v9, v9")
    a("s_nop 0")
    a(f"v_mul_f32 v9, v9, v{G}")
    vmul(a, NUM, "v9", 16)
    cvt(a, PA, NUM, 0, 6)
    a("s_mov_b32 exec_hi, 0")
    cvt(a, PA, NUM, 6, 8)
    a("s_mov_b32 exec_hi, -1")
    a(f"buffer_store_dwordx4 {vr(PA,4)}, v2, {WSR}, s64 offen sc1")
    a(f"buffer_store_dwordx4 {vr(PA+4,4)}, v2, {WSR}, s64 offen offset:1024 sc1")
    stamp(a, 7, 3)
    a("s_waitcnt vmcnt(0)")
    stamp(a, 8, 3)
    a("s_mov_b64 exec, 1")
    a("ds_add_rtn_u32 v9, v1, v11 offset:4")
    a("s_waitcnt lgkmcnt(0)")
    a("v_readfirstlane_b32 s69, v9")
    a("s_mov_b64 exec, -1")
    a("s_cmp_eq_u32 s69, 3")
    a("s_cbranch_scc0 H_NOSIGOA")
    a("s_lshl_b32 s64, s24, 1")
    a("s_add_u32 s64, s64, s33")
    a("s_lshl_b32 s64, s64, 7")
    a(f"s_add_u32 s64, s64, {C_OA}")
    signal(a, "s64", 10, 11)
    a.label("H_NOSIGOA")
    stamp(a, 5)
    a("s_barrier")
    a("s_cmp_ge_u32 s32, 28")
    a("s_cbranch_scc1 H_NOP3B")
    stamp(a, 6); stamp(a, 9, 3)
    a("s_and_b32 s64, s30, 0xfe")
    a("s_lshr_b32 s65, s27, 1")
    a("s_add_u32 s64, s64, s65")
    a("s_lshl_b32 s64, s64, 7")
    a(f"s_add_u32 s64, s64, {C_OA}")
    poll(a, "OA", WSR, "s64", 8, 10, 11, 2)
    a("s_and_b32 s64, s27, 1")
    a("s_lshl_b32 s65, s30, 1")
    a("s_add_u32 s64, s64, s65")
    a(f"s_mul_i32 s64, s64, {PAD}")
    a("s_lshr_b32 s65, s27, 1")
    a("s_lshl_b32 s65, s65, 14")
    a("s_add_u32 s64, s64, s65")
    a(f"s_add_u32 s64, s64, {WS_OF}")
    p3_oloads(a, 2, "s64")
    a.label("H_NOP3B")
    stamp(a, 7); stamp(a, 10, 3)
    a("s_waitcnt vmcnt(0)")
    a("s_barrier")
    stamp(a, 8)
    a("s_setprio 0")
    a("s_cmp_ge_u32 s32, 28")
    a("s_cbranch_scc1 H_NOP3C")
    p3_gemm(a, 4, [16, 32], [48, 56], True, False)
    a.label("H_NOP3C")
    stamp(a, 9)
    a("s_barrier")
    a("s_cmp_eq_u32 s27, 0")
    a("s_cbranch_scc0 H_NOSIGOB")
    a("s_lshl_b32 s64, s24, 1")
    a("s_add_u32 s64, s64, s33")
    a("s_lshl_b32 s64, s64, 7")
    a(f"s_add_u32 s64, s64, {C_OB}")
    signal(a, "s64", 10, 11)
    a.label("H_NOSIGOB")
    a("s_cmp_ge_u32 s32, 28")
    a("s_cbranch_scc1 H_EXIT")
    a("s_lshl_b32 s64, s27, 13")
    a(f"s_add_u32 s64, s64, {RING}")
    a("v_add_u32 v8, s64, v2")
    a("s_nop 7")
    for i in range(8):
        a(f"ds_write_b128 v8, {vr(16+4*i,4)} offset:{1024*i}")
    a("s_waitcnt lgkmcnt(0)")
    a("s_barrier")
    a.label("H_EXIT")
    stamp(a, 10)
    stamp_out(a, 11)
    a("s_endpgm")

def compute(a):
    a.label("L_COMPUTE")
    XA, WA, WB, XQ, WQ = 2, 6, 7, 8, 12
    FR = 16; accK = [64, 80]; accV = [96, 112]; pK = [128, 136]; pV = [144, 152]
    a("s_lshr_b32 s92, s27, 1")
    a("s_and_b32 s93, s27, 1")
    a("v_and_b32 v13, 31, v0")
    a("v_lshrrev_b32 v14, 5, v0")
    a("v_bfe_u32 v15, v0, 1, 3")
    a("v_xor_b32 v15, v15, v14")
    a("s_lshl_b32 s64, s92, 13")
    a("v_lshl_add_u32 v1, v13, 7, s64")
    a("s_lshl_b32 s65, s27, 12")
    a("s_sub_u32 s65, s65, s64")
    for ks in range(4):
        a(f"v_xor_b32 v{XA+ks}, {2*ks}, v15")
        a(f"v_lshl_add_u32 v{XA+ks}, v{XA+ks}, 4, v1")
        a(f"v_add_u32 v{XQ+ks}, s65, v{XA+ks}")
    a("s_mul_i32 s64, s93, 56")
    a(f"v_mov_b32 v{WA}, s64")
    tr_lane_addr(a, WB, WA, 1, 15, 2)
    a(f"v_add_u32 v{WB}, {RING}, v{WB}")
    a(f"v_mov_b32 v{WA}, v{WB}")
    a("v_bfe_u32 v1, v0, 2, 2")
    a("v_lshl_add_u32 v1, v14, 3, v1")
    a("v_lshlrev_b32 v1, 1, v1")
    a("v_bfe_u32 v15, v0, 4, 1")
    a("v_add_u32 v1, v1, v15")
    a("v_lshlrev_b32 v1, 2, v1")
    a("v_and_b32 v15, 3, v0")
    a("v_add_u32 v1, v1, v15")
    a("v_lshlrev_b32 v1, 3, v1")
    a(f"v_add_u32 v{WQ}, {RING}, v1")
    a("s_waitcnt lgkmcnt(0)")
    srd(a, SWS, 22, WS_SIZE)
    a("s_or_b32 s64, s2, s27")
    a("s_cmp_eq_u32 s64, 0")
    a("s_cbranch_scc0 C_NOINIT")
    srd(a, SD, 20, 256)
    a("v_lshlrev_b32 v17, 7, v0")
    a("v_mov_b32 v21, 0")
    a(f"s_mov_b32 s64, {WS_CNT}")
    a(f"buffer_store_dword v21, v17, {WSR}, s64 offen sc1")
    a("s_add_u32 s64, s64, 8192")
    a(f"buffer_store_dword v21, v17, {WSR}, s64 offen sc1")
    a("v_mov_b32 v22, 1")
    a("s_waitcnt vmcnt(0)")
    a("s_mov_b64 exec, 1")
    a(f"buffer_store_dword v22, v21, {R(SD)}, 0 offen sc1")
    a("s_mov_b64 exec, -1")
    a.label("C_NOINIT")
    if "nopc" not in X:
        a("s_cmp_eq_u32 s27, 1")
        a("s_cbranch_scc0 C_PFD")
        a("s_getpc_b64 s[64:65]")
        a.label("C_PC")
        a(f"s_sub_u32 s64, s64, C_PC-{KN}")
        a("s_subb_u32 s65, s65, 0")
        a(f"s_mov_b32 s66, L_CODE_END-{KN}")
        a("s_mov_b32 s67, 0x20000")
        a("s_mul_i32 s68, s32, 6")
        a("v_add_u32 v17, s68, v0")
        a("v_lshlrev_b32 v17, 7, v17")
        a("s_mov_b64 exec, 63")
        a("buffer_load_dword a93, v17, s[64:67], 0 offen")
        a("s_mov_b64 exec, -1")
        a.label("C_PFD")
    if "touch" in X:
        a("s_cmp_eq_u32 s27, 3")
        a("s_cbranch_scc1 C_TD")
        a("s_cmp_eq_u32 s27, 0")
        a("s_cbranch_scc0 C_T1")
        srd(a, SX, 4, 1835008)
        a("s_lshl_b32 s64, s34, 9")
        a("s_lshl_b32 s65, s32, 4")
        a("s_add_u32 s64, s64, s65")
        a("v_and_b32 v17, 15, v0")
        a("v_add_u32 v17, s64, v17")
        a("v_mul_u32_u24 v17, 896, v17")
        a("v_lshrrev_b32 v16, 4, v0")
        a("v_lshl_add_u32 v17, v16, 7, v17")
        a(f"buffer_load_dword a92, v17, {R(SX)}, 0 offen")
        a("s_mov_b32 exec_hi, 0xffff")
        a(f"buffer_load_dword a94, v17, {R(SX)}, 0 offen offset:512")
        a("s_mov_b64 exec, -1")
        a("s_branch C_TD")
        a.label("C_T1")
        a("s_cmp_eq_u32 s27, 1")
        a(f"s_cselect_b32 s{SW}, s6, s12")
        a(f"s_cselect_b32 s{SW+1}, s7, s13")
        a(f"s_mov_b32 s{SW+2}, 1204224")
        a(f"s_mov_b32 s{SW+3}, 0x20000")
        a("v_lshrrev_b32 v17, 4, v0")
        a("v_lshlrev_b32 v17, 6, v17")
        a("v_bfe_u32 v16, v0, 3, 1")
        a("s_lshl_b32 s64, s32, 1")
        a("v_add3_u32 v17, v17, v16, s64")
        a("v_mul_u32_u24 v17, 2688, v17")
        a("v_bfe_u32 v16, v0, 2, 1")
        a("v_mul_u32_u24 v16, 896, v16")
        a("v_add_u32 v17, v17, v16")
        a("v_and_b32 v16, 3, v0")
        a("v_lshl_add_u32 v17, v16, 7, v17")
        a("s_mul_i32 s66, s33, 384")
        a("s_add_u32 s66, s66, 896")
        a(f"buffer_load_dword a92, v17, {R(SW)}, s66 offen")
        a(f"s_add_u32 s66, s66, {4*172032}")
        a(f"buffer_load_dword a94, v17, {R(SW)}, s66 offen")
        a.label("C_TD")
    if "touchm" in X:
        a("s_cmp_eq_u32 s27, 3")
        a("s_cbranch_scc1 C_TD")
        a("s_cmp_eq_u32 s27, 0")
        a("s_cbranch_scc0 C_T1")
        srd(a, SX, 4, 1835008)
        a("s_lshl_b32 s64, s34, 9")
        a("s_lshl_b32 s65, s33, 8")
        a("s_add_u32 s64, s64, s65")
        a("s_lshl_b32 s65, s32, 3")
        a("s_add_u32 s64, s64, s65")
        a("v_and_b32 v17, 7, v0")
        a("v_add_u32 v17, s64, v17")
        a("v_mul_u32_u24 v17, 896, v17")
        a("v_lshrrev_b32 v16, 3, v0")
        a("v_lshl_add_u32 v17, v16, 7, v17")
        a("s_mov_b32 exec_hi, 0xffffff")
        a(f"buffer_load_dword a92, v17, {R(SX)}, 0 offen")
        a("s_mov_b64 exec, -1")
        a("s_branch C_TD")
        a.label("C_T1")
        a("s_cmp_eq_u32 s27, 1")
        a(f"s_cselect_b32 s{SW}, s6, s12")
        a(f"s_cselect_b32 s{SW+1}, s7, s13")
        a(f"s_mov_b32 s{SW+2}, 1204224")
        a(f"s_mov_b32 s{SW+3}, 0x20000")
        a("s_mul_i32 s64, s32, 42")
        a("v_add_u32 v16, s64, v0")
        a("v_mul_u32_u24 v17, 5462, v16")
        a("v_lshrrev_b32 v17, 16, v17")
        a("v_mul_u32_u24 v18, 12, v17")
        a("v_sub_u32 v16, v16, v18")
        a("v_lshl_add_u32 v17, v17, 2, s34")
        a("v_mul_u32_u24 v17, 2688, v17")
        a("v_lshrrev_b32 v18, 2, v16")
        a("v_mul_u32_u24 v18, 896, v18")
        a("v_and_b32 v16, 3, v16")
        a("v_lshl_add_u32 v17, v16, 7, v17")
        a("v_add_u32 v17, v17, v18")
        a("s_mul_i32 s66, s33, 384")
        a("s_mov_b32 exec_hi, 0x3ff")
        a(f"buffer_load_dword a92, v17, {R(SW)}, s66 offen")
        a("s_mov_b64 exec, -1")
        a.label("C_TD")
    if "memonly" in X:
        stampc(a, 1)
        a("s_waitcnt vmcnt(0)")
        stampc(a, 2)
        stamp_out(a, 16)
        a("s_endpgm")
    a("v_cmp_eq_u32 vcc, 28, v13")
    a(f"v_mov_b32 v1, {ONE2}")
    a("s_nop 0")
    a("v_cndmask_b32 v15, 0, v1, vcc")
    for s in range(2):
        for i in range(8):
            a(f"v_mov_b32 v{pV[s]+i}, v15")
    a("s_mov_b32 s56, 0x0fffffff")
    a("s_mov_b32 s57, 0x0fffffff")
    a(f"s_mov_b32 s64, {f32(LOG2E)}")
    a(f"s_mov_b32 s65, {f32(LOG2E)}")
    a(f"s_mov_b32 s66, {f32(EPS)}")
    a(f"s_mov_b32 s67, {f32(EPS)}")
    for i in range(32):
        a(f"v_mov_b32 v{accV[0]+i}, 0")
    a("v_lshlrev_b32 v13, 4, v0")
    a("s_cmp_eq_u32 s26, 0")
    a("s_cbranch_scc1 C_A")

    def reads(buf, ks):
        f = FR + 16*buf
        return [f"ds_read_b128 {vr(f,4)}, v{XA+ks}",
                f"ds_read_b64_tr_b16 {vr(f+8,2)}, v{WA} offset:{ks*2048}",
                f"ds_read_b64_tr_b16 {vr(f+10,2)}, v{WA} offset:{ks*2048+512}",
                f"ds_read_b128 {vr(f+4,4)}, v{XA+ks} offset:4096",
                f"ds_read_b64_tr_b16 {vr(f+12,2)}, v{WA} offset:{8192+ks*2048}",
                f"ds_read_b64_tr_b16 {vr(f+14,2)}, v{WA} offset:{8192+ks*2048+512}"]
    def mfmas(buf, kT):
        f = FR + 16*buf
        Xf = [vr(f, 4), vr(f+4, 4)]; Wk, Wv = vr(f+8, 4), vr(f+12, 4)
        m = []
        for s in range(2):
            if kT: m.append(f"{MF} {vr(accK[s],16)}, {Wk}, {Xf[s]}, {vr(accK[s],16)}")
            else:  m.append(f"{MF} {vr(accK[s],16)}, {Xf[s]}, {Wk}, {vr(accK[s],16)}")
        for s in range(2): m.append(f"{MF} {vr(accV[s],16)}, {Xf[s]}, {Wv}, {vr(accV[s],16)}")
        return m
    def mainloop(tag, kT):
        a("s_mov_b32 s60, 0")
        a("s_mov_b32 s61, 0")
        if STAMP != 4: stampc(a, 1)
        a("s_barrier")
        if STAMP != 4: stampc(a, 2)
        for r in reads(0, 0): a(r)
        a(".p2align 6")
        a.label(f"C_{tag}_LOOP")
        for ks in range(4):
            m = mfmas(ks & 1, kT); r = reads((ks+1) & 1, (ks+1) & 3)
            if ks < 3:
                a("s_waitcnt lgkmcnt(3)"); a(m[0]); a(r[0]); a(r[1]); a(r[2])
                a("s_waitcnt lgkmcnt(5)"); a(m[1]); a(r[3]); a(r[4]); a(r[5])
                a("s_waitcnt lgkmcnt(6)"); a(m[2])
                a(f"v_add_u32 v{XA+ks}, 16384, v{XA+ks}")
                if ks == 2:
                    a("s_add_u32 s60, s60, 1")
                    a("s_add_u32 s61, s61, 16384")
                    a("s_cmp_eq_u32 s61, 49152")
                    a("s_cselect_b32 s61, 0, s61")
                a(m[3])
            else:
                a(f"v_add_u32 v{WA}, s61, v{WB}")
                a("s_cmp_eq_u32 s60, 7")
                a("s_waitcnt lgkmcnt(0)")
                a("s_barrier")
                a(f"s_cbranch_scc1 C_{tag}_TAIL")
                a(m[0]); a(r[0]); a(r[1]); a(r[2])
                a(m[1]); a(r[3]); a(r[4]); a(r[5])
                a(m[2])
                a(f"v_add_u32 v{XA+3}, 16384, v{XA+3}")
                a(m[3])
                a(f"s_branch C_{tag}_LOOP")
                a.label(f"C_{tag}_TAIL")
                for x in m: a(x)
        stampc(a, 3)

    for i in range(32): a(f"v_mov_b32 v{accK[0]+i}, 0")
    for s in range(2):
        a(f"v_mov_b32 v{pK[s]+6}, v1"); a(f"v_mov_b32 v{pK[s]+7}, v1")
    a("v_and_b32 v15, 0x33, v0")
    a("v_bfe_u32 v1, v0, 2, 1")
    a("v_lshl_add_u32 v15, v1, 3, v15")
    a("v_bfe_u32 v1, v0, 3, 1")
    a("v_lshl_add_u32 v15, v1, 2, v15")
    a("v_lshlrev_b32 v15, 4, v15")
    a("s_lshl_b32 s58, s25, 1")
    a("s_add_u32 s58, s58, s93")
    a("s_lshl_b32 s58, s58, 2")
    a("s_add_u32 s58, s58, s34")
    a(f"s_mul_i32 s58, s58, {PAD}")
    a("s_lshl_b32 s59, s29, 1")
    a("s_add_u32 s59, s59, s92")
    a("s_lshl_b32 s59, s59, 13")
    a("s_add_u32 s58, s58, s59")
    a("s_add_u32 s59, s58, 4096")
    mainloop("B", True)
    a("s_nop 9")
    for s in range(2):
        cvt(a, pK[s], accK[s], 0, 6)
        a("s_mov_b32 exec_hi, 0")
        cvt(a, pK[s], accK[s], 6, 8)
        a("s_mov_b32 exec_hi, -1")
        a(f"buffer_store_dwordx4 {vr(pK[s],4)}, v15, {WSR}, s{58+s} offen sc1")
        a(f"buffer_store_dwordx4 {vr(pK[s]+4,4)}, v15, {WSR}, s{58+s} offen offset:1024 sc1")
    for s in range(2):
        a("s_mov_b64 exec, s[56:57]")
        cvt(a, pV[s], accV[s])
        a("s_mov_b64 exec, -1")
        a(f"buffer_store_dwordx4 {vr(pV[s],4)}, v13, {WSR}, s{58+s} offen offset:2048 sc1")
        a(f"buffer_store_dwordx4 {vr(pV[s]+4,4)}, v13, {WSR}, s{58+s} offen offset:3072 sc1")
    a("s_branch C_1B")

    a.label("C_A")
    for i in range(32): a(f"v_mov_b32 v{accK[0]+i}, 1.0")
    for s in range(2):
        for i in range(8): a(f"v_mov_b32 v{pK[s]+i}, 0")
    mainloop("A", False)
    a("s_nop 9")
    for s in range(2): phi(a, accK[s], FR)
    a("s_mov_b64 exec, s[56:57]")
    for s in range(2):
        cvt(a, pK[s], accK[s]); cvt(a, pV[s], accV[s])
    a("s_mov_b64 exec, -1")
    a("s_nop 1")
    D = accV[0]
    a(f"{MF} {vr(D,16)}, {vr(pK[0],4)}, {vr(pV[0],4)}, 0")
    a(f"{MF} {vr(D,16)}, {vr(pK[0]+4,4)}, {vr(pV[0]+4,4)}, {vr(D,16)}")
    a(f"{MF} {vr(D,16)}, {vr(pK[1],4)}, {vr(pV[1],4)}, {vr(D,16)}")
    a(f"{MF} {vr(D,16)}, {vr(pK[1]+4,4)}, {vr(pV[1]+4,4)}, {vr(D,16)}")

    a.label("C_1B")
    stampc(a, 4)
    QA, QB = 64, 80
    def qreads(k):
        f = FR + 12*(k & 3); d, kk = k >> 3, k & 7
        c = k >> 2
        o = ((7+d) % 3)*16384 + kk*1024
        return [f"ds_read_b128 {vr(f,4)}, v{XQ+(k&3)} offset:{(c&3)*16384}",
                f"ds_read_b64_tr_b16 {vr(f+4,2)}, v{WQ} offset:{o}",
                f"ds_read_b64_tr_b16 {vr(f+6,2)}, v{WQ} offset:{o+256}",
                f"ds_read_b64_tr_b16 {vr(f+8,2)}, v{WQ} offset:{o+8192}",
                f"ds_read_b64_tr_b16 {vr(f+10,2)}, v{WQ} offset:{o+8192+256}"]
    for k in (0, 1):
        for r in qreads(k): a(r)
    for k in range(28):
        f = FR + 12*(k & 3)
        r = qreads(k+2) if k+2 < 28 else []
        nout = 5 if k+1 < 28 else 0
        bar = (k+2) < 28 and (k+2) % 8 == 0
        if bar:
            if k == 14: a("s_waitcnt vmcnt(0) lgkmcnt(0)")
            else: a("s_waitcnt lgkmcnt(0)")
            a("s_barrier")
        else:
            a(f"s_waitcnt lgkmcnt({nout+2})")
        a(f"{MF} {vr(QA,16)}, {vr(f+4,4)}, {vr(f,4)}, {'1.0' if k == 0 else vr(QA,16)}")
        for x in r[:3]: a(x)
        if not bar: a(f"s_waitcnt lgkmcnt({nout + len(r[:3])})")
        a(f"{MF} {vr(QB,16)}, {vr(f+8,4)}, {vr(f,4)}, {'0' if k == 0 else vr(QB,16)}")
        for x in r[3:]: a(x)
        if 10 <= k <= 13:
            a(f"v_add_u32 v{XQ+((k+2)&3)}, 65536, v{XQ+((k+2)&3)}")
    stampc(a, 5)
    a("s_lshl_b32 s60, s27, 12")
    a(f"s_add_u32 s60, s60, {L_KVD}")
    a("v_add_u32 v1, s60, v13")
    for q in range(4):
        a(f"ds_write_b128 v1, {vr(D+4*q,4)} offset:{1024*q}")
    a("s_lshl_b32 s60, s27, 11")
    a(f"s_add_u32 s60, s60, {L_QD}")
    a("v_add_u32 v1, s60, v13")
    for i in (38, 39, 46, 47): a(f"v_mov_b32 v{i}, 0")
    a("s_nop 1")
    phi(a, QA, FR)
    a(f"v_mov_b32 v14, v{QB+12}")
    a(f"v_mov_b32 v15, v{QB+12}")
    a(f"s_mov_b32 s62, {f32(QSCALE)}")
    a(f"s_mov_b32 s63, {f32(QSCALE)}")
    a("v_permlane32_swap_b32 v15, v14")
    a(f"v_mul_f32 v14, {f32(-LOG2E)}, v14")
    a("v_exp_f32 v14, v14")
    vmul(a, QB, "s62", 16)
    a("v_add_f32 v14, 1.0, v14")
    a("v_rcp_f32 v14, v14")
    cvt(a, 32, QB, 0, 6); cvt(a, 40, QA, 0, 6)
    a("s_mov_b32 exec_hi, 0")
    cvt(a, 32, QB, 6, 8); cvt(a, 40, QA, 6, 8)
    a("s_mov_b32 exec_hi, -1")
    a("ds_write_b128 v1, v[32:35]")
    a("ds_write_b128 v1, v[36:39] offset:1024")
    a("ds_write_b128 v1, v[40:43] offset:8192")
    a("ds_write_b128 v1, v[44:47] offset:9216")
    a("s_lshl_b32 s60, s27, 8")
    a(f"s_add_u32 s60, s60, {L_G}")
    a("v_lshl_add_u32 v1, v0, 2, s60")
    a("ds_write_b32 v1, v14")
    a("v_sub_f32 v14, 1.0, v14")
    O = [16, 32, 48, 64]; S = [80, 96, 112, 128]; Q = [0, 8, 16, 24]; KV = [32, 48, 64, 80]
    RA = 144
    for s in range(4):
        a(f"s_add_u32 s60, s27, {1+s}")
        a("s_and_b32 s60, s60, 3")
        a("s_lshl_b32 s61, s60, 11")
        a(f"s_add_u32 s61, s61, {L_QD}")
        a(f"v_add_u32 v{RA+4+s}, s61, v13")
        a("s_mul_i32 s60, s60, 12288")
        a(f"s_add_u32 s60, s60, {RING + (4096*s if s < 3 else 0)}")
        a(f"v_add_u32 v{RA+s}, s60, v13")
    a("s_waitcnt lgkmcnt(0)")
    a("s_barrier")
    stampc(a, 6)
    for s in range(4):
        a(f"ds_read_b128 {ar(Q[s],4)}, v{RA+4+s}")
        a(f"ds_read_b128 {ar(Q[s]+4,4)}, v{RA+4+s} offset:1024")
    for i in range(64): a(f"v_mov_b32 v{O[0]+i}, 0")
    for i in range(8): a(f"v_mov_b32 v{S[3]+8+i}, 0")
    for i in range(4): a(f"v_accvgpr_write_b32 a{KV[3]+12+i}, 0")
    a("v_mov_b32 v2, 0xdddd")
    a("v_mov_b32 v3, 0")
    a(f"s_mul_i32 s60, s28, {4*PAD}")
    a("v_add_u32 v4, s60, v13")
    a(f"s_mul_i32 s60, s27, {PAD}")
    a("v_add_u32 v1, s60, v4")
    a("s_mov_b32 s58, 0")
    a("s_lshl_b32 s60, s25, 2")
    a("s_add_u32 s60, s60, s27")
    a("s_lshl_b32 s60, s60, 7")
    a(f"s_add_u32 s60, s60, {C_KV}")
    poll(a, "KV", WSR, "s60", 4, 3, 5)
    stampc(a, 7)
    def ld(dst, off, v="v1", so="s58"):
        return f"buffer_load_dwordx4 {ar(dst,4)}, {v}, {WSR}, {so} offen" + (f" offset:{off}" if off else "") + " sc1"
    adv = ["s_add_u32 s58, s58, 4096"]
    for n in range(3):
        for f in range(4): a(ld(KV[n]+4*f, 1024*f))
        for x in adv: a(x)
    a("s_mov_b32 s59, 3")
    a("s_waitcnt vmcnt(10) lgkmcnt(0)")
    stampc(a, 8)
    a(f"{MF} {vr(S[0],16)}, {ar(KV[0],4)}, {ar(Q[0],4)}, 0")
    a(f"{MF} {vr(S[0],16)}, {ar(KV[0]+4,4)}, {ar(Q[0]+4,4)}, {vr(S[0],16)}")
    a("s_waitcnt vmcnt(8)")
    a("s_nop 9")
    def unit(n, s, last):
        cur = S[s]; nxt = S[(s+1) & 3]; prv = S[(s-1) & 3]
        kn = KV[(n + (1 if s == 3 else 0)) & 3]; qn = Q[(s+1) & 3]
        vp = KV[(n - (1 if s == 0 else 0)) & 3]; vc = KV[n]
        lb = KV[(n+3) & 3]
        fin = last and n == 3
        e = [f"v_exp_f32 v{cur+i}, v{cur+i}" for i in range(16)]
        slot = [[], [], [], []]
        if not last or n == 0:
            slot[2].append("s_nop 0" if "noload" in X else ld(lb + 4*s, 1024*s))
            if s == 3: slot[3] += adv
        if s == 2 and not fin:
            slot[3].append(f"s_waitcnt vmcnt({7 if (not last or n == 0) else 4*(2-n)})")
        if not last and n == 3 and s == 1: slot[3].append("s_sub_u32 s59, s59, 1")
        if fin and s >= 2:
            for q in range(4):
                slot[q].append(f"ds_write_b128 v{RA+s-2}, {vr(O[s-2]+4*q,4)} offset:{1024*q}")
        if not (fin and s == 3): a(f"{MF} {vr(nxt,16)}, {ar(kn,4)}, {ar(qn,4)}, 0")
        for x in slot[0]: a(x)
        for x in e[0:4]: a(x)
        a(f"{SM} {vr(O[(s-1)&3],16)}, {ar(vp+12,4)}, {vr(prv+8,8)}, v2")
        for x in slot[1]: a(x)
        for x in e[4:8]: a(x)
        if not (fin and s == 3): a(f"{MF} {vr(nxt,16)}, {ar(kn+4,4)}, {ar(qn+4,4)}, {vr(nxt,16)}")
        for x in slot[2]: a(x)
        for x in e[8:12]: a(x)
        a(f"{SM} {vr(O[s],16)}, {ar(vc+8,4)}, {vr(cur,8)}, v2")
        for x in slot[3]: a(x)
        if len(slot[2]) + len(slot[3]) < 2 and not (fin and s == 3):
            a("s_nop 0") if len(slot[2]) + len(slot[3]) == 1 else (a("s_nop 0"), a("s_nop 0"))
        for x in e[12:16]: a(x)
    a(".p2align 6")
    a.label("C_ATT")
    for n in range(4):
        for s in range(4): unit(n, s, False)
    a("s_cmp_lg_u32 s59, 0")
    a("s_cbranch_scc1 C_ATT")
    for n in range(4):
        for s in range(4): unit(n, s, True)
        if n == 0:
            if STAMP == 4: stampc(a, 1)
            a("s_barrier")
            if STAMP == 4: stampc(a, 2)
    a("s_nop 1")
    a(f"{SM} {vr(O[3],16)}, {ar(KV[3]+12,4)}, {vr(S[3]+8,8)}, v2")
    stampc(a, 9)
    if "hidle" in X:
        stamp_out(a, 16)
        a("s_endpgm")
    for q in range(4):
        a(f"ds_write_b128 v{RA+2}, {vr(O[2]+4*q,4)} offset:{1024*q}")
    a("s_lshl_b32 s60, s24, 2")
    a("s_add_u32 s60, s60, s27")
    a(f"s_mul_i32 s60, s60, {PAD}")
    a("s_lshl_b32 s61, s28, 11")
    a("s_add_u32 s60, s60, s61")
    a(f"s_add_u32 s60, s60, {WS_OF + 32768}")
    a("v_mov_b32 v22, 0")
    a("v_mov_b32 v23, 0")
    a("s_setprio 1")
    a("s_waitcnt lgkmcnt(0)")
    a("s_barrier")
    for i in range(12):
        a(f"ds_read_b128 {vr(S[0]+4*i,4)}, v{RA+3} offset:{1024*i}")
    for j in range(3):
        for q in range(4):
            a(f"s_waitcnt lgkmcnt({11-4*j-q})")
            vadd(a, O[3]+4*q, S[j]+4*q, 4)
    a(f"v_mov_b32 v6, v{O[3]+12}")
    a(f"v_mov_b32 v7, v{O[3]+12}")
    a(f"s_mov_b32 s62, {f32(2.0**-40)}")
    a(f"s_mov_b32 s63, {f32(2.0**40)}")
    a("v_permlane32_swap_b32 v6, v7")
    a("v_cmp_nge_f32 vcc, v7, s62")
    a("v_cmp_nle_f32 s[64:65], v7, s63")
    a("v_rcp_f32 v7, v7")
    a("s_or_b64 vcc, vcc, s[64:65]")
    a("s_cbranch_scc1 C_FALLBACK")
    a.label("C_FIN")
    a("v_mul_f32 v7, v7, v14")
    vmul(a, O[3], "v7", 16)
    cvt(a, 16, O[3], 0, 4)
    a(f"buffer_store_dwordx4 v[16:19], v13, {WSR}, s60 offen sc1")
    cvt(a, 16, O[3], 4, 6)
    a("s_mov_b32 exec_hi, 0")
    cvt(a, 16, O[3], 6, 8)
    a("s_mov_b32 exec_hi, -1")
    a(f"buffer_store_dwordx4 v[20:23], v13, {WSR}, s60 offen offset:1024 sc1")
    stampc(a, 10)
    a("s_mul_i32 s60, s92, 28672")
    a("s_add_u32 s60, s60, 57344")
    p3_addr(a, 4, "s60", 8, 9)
    a("s_lshl_b32 s60, s27, 13")
    a(f"s_add_u32 s60, s60, {RING}")
    a("v_add_u32 v8, s60, v13")
    a("s_lshl_b32 s60, s27, 12")
    a(f"s_add_u32 s60, s60, {RING + 32768}")
    a("v_add_u32 v9, s60, v13")
    a("v_xor_b32 v10, 8192, v9")
    a("s_lshl_b32 s60, s30, 1")
    a("s_add_u32 s60, s60, s93")
    a("v_and_b32 v11, 31, v0")
    a("s_lshl_b32 s61, s60, 5")
    a("v_add_u32 v11, s61, v11")
    a("v_mul_u32_u24 v11, 896, v11")
    a("v_lshrrev_b32 v12, 5, v0")
    a("v_lshl_add_u32 v11, v12, 4, v11")
    a(f"s_mul_i32 s60, s60, {PAD}")
    a("s_lshl_b32 s61, s92, 14")
    a("s_add_u32 s60, s60, s61")
    a(f"s_add_u32 s60, s60, {WS_OF + 32768}")
    a("s_and_b32 s61, s30, 0xfe")
    a("s_add_u32 s61, s61, s92")
    a("s_lshl_b32 s61, s61, 7")
    a(f"s_add_u32 s61, s61, {C_OB}")
    a("s_lshl_b32 s62, s31, 7")
    a("s_lshl_b32 s63, s92, 6")
    a("s_add_u32 s62, s62, s63")
    srd(a, SX, 18, 1835008)
    a("s_waitcnt vmcnt(0)")
    a("s_barrier")
    stampc(a, 11)
    a("s_cmp_ge_u32 s32, 28")
    a("s_cbranch_scc1 C_EXIT")
    a("s_barrier")
    for i in range(8):
        a(f"ds_read_b128 {vr(16+4*i,4)}, v8 offset:{1024*i}")
    poll(a, "OB", WSR, "s61", 8, 3, 12)
    stampc(a, 12)
    p3_oloads(a, 13, "s60")
    p3_gemm(a, 4, [16, 32], [48, 56], False, True)
    stampc(a, 13)
    a("s_cmp_eq_u32 s92, 0")
    a("s_cbranch_scc1 C_KH0")
    a("s_nop 9")
    for i in range(16):
        a(f"v_swap_b32 v{16+i}, v{32+i}")
    a.label("C_KH0")
    a("s_nop 9")
    for i in range(4):
        a(f"ds_write_b128 v9, {vr(32+4*i,4)} offset:{1024*i}")
    a("s_waitcnt lgkmcnt(0)")
    a("s_barrier")
    for i in range(4):
        a(f"ds_read_b128 {vr(32+4*i,4)}, v10 offset:{1024*i}")
    for q in range(4):
        a(f"s_waitcnt lgkmcnt({3-q})")
        vadd(a, 16+4*q, 32+4*q, 4)
    cvt(a, 48, 16)
    a("s_nop 1")
    a("v_permlane32_swap_b32 v48, v50")
    a("v_permlane32_swap_b32 v49, v51")
    a("v_permlane32_swap_b32 v52, v54")
    a("v_permlane32_swap_b32 v53, v55")
    a(f"buffer_store_dwordx4 v[48:51], v11, {R(SX)}, s62 offen")
    a(f"buffer_store_dwordx4 v[52:55], v11, {R(SX)}, s62 offen offset:32")
    a.label("C_EXIT")
    if "span" in X:
        a("s_waitcnt vmcnt(0)")
        a("s_memrealtime s[98:99]")
        a("s_memtime s[72:73]")
        srd(a, SD, 20, 256)
        a("s_waitcnt lgkmcnt(0)")
        a("s_mov_b64 exec, 1")
        a("v_mov_b32 v1, 0")
        a("s_not_b32 s96, s96")
        a("v_mov_b32 v2, s96")
        a(f"buffer_atomic_umax v2, v1, {R(SD)}, 0 offen offset:16")
        a("v_mov_b32 v2, s98")
        a(f"buffer_atomic_umax v2, v1, {R(SD)}, 0 offen offset:20")
        a("s_sub_u32 s72, s72, s70")
        a("v_mov_b32 v2, s72")
        a(f"buffer_atomic_umax v2, v1, {R(SD)}, 0 offen offset:24")
    stampc(a, 14)
    if STAMP: a("s_waitcnt vmcnt(0)")
    stampc(a, 15)
    stamp_out(a, 16)
    a("s_endpgm")
    a.label("C_FALLBACK")
    Qo = Q[3]; K0 = KV[0]; Sx = S[0]
    a("s_mov_b32 s58, 0")
    a("s_mov_b32 s59, 0")
    a(f"v_mov_b32 v8, {f32(float('-inf'))}")
    a.label("C_FB1")
    a(ld(K0, 0, "v4")); a(ld(K0+4, 1024, "v4"))
    a("s_waitcnt vmcnt(0)")
    a(f"{MF} {vr(Sx,16)}, {ar(K0,4)}, {ar(Qo,4)}, 0")
    a(f"{MF} {vr(Sx,16)}, {ar(K0+4,4)}, {ar(Qo+4,4)}, {vr(Sx,16)}")
    a("s_add_u32 s58, s58, 4096")
    a("s_add_u32 s59, s59, 1")
    a("s_and_b32 s61, s59, 15")
    a(f"s_cselect_b32 s61, 0, {PAD-65536}")
    a("s_add_u32 s58, s58, s61")
    a("s_nop 15")
    for i in range(8):
        a(f"v_max3_f32 v8, v8, v{Sx+2*i}, v{Sx+2*i+1}")
    a("s_cmp_lt_u32 s59, 64")
    a("s_cbranch_scc1 C_FB1")
    a("v_mov_b32 v9, v8")
    a("s_nop 1")
    a("v_permlane32_swap_b32 v8, v9")
    a("v_max_f32 v8, v8, v9")
    a("v_and_b32 v9, 0xffff0000, v8")
    a("v_sub_f32 v8, v8, v9")
    a("v_and_b32 v10, 0xffff0000, v8")
    a("v_sub_f32 v8, v8, v10")
    a("v_cvt_pk_bf16_f32 v9, -v9, -v10")
    a("v_cvt_pk_bf16_f32 v8, -v8, 0")
    a("s_mov_b32 exec_lo, 0")
    a(f"v_accvgpr_write_b32 a{Qo+6}, v9")
    a(f"v_accvgpr_write_b32 a{Qo+7}, v8")
    a("s_mov_b32 exec_lo, -1")
    for i in range(16): a(f"v_mov_b32 v{O[3]+i}, 0")
    a("s_mov_b32 s58, 0")
    a("s_mov_b32 s59, 0")
    a.label("C_FB2")
    for f in range(4): a(ld(K0+4*f, 1024*f, "v4"))
    a("s_waitcnt vmcnt(0)")
    a(f"{MF} {vr(Sx,16)}, {ar(K0,4)}, {ar(Qo,4)}, 0")
    a(f"{MF} {vr(Sx,16)}, {ar(K0+4,4)}, {ar(Qo+4,4)}, {vr(Sx,16)}")
    a("s_add_u32 s58, s58, 4096")
    a("s_add_u32 s59, s59, 1")
    a("s_and_b32 s61, s59, 15")
    a(f"s_cselect_b32 s61, 0, {PAD-65536}")
    a("s_add_u32 s58, s58, s61")
    a("s_nop 15")
    for i in range(16): a(f"v_exp_f32 v{Sx+i}, v{Sx+i}")
    a("s_nop 1")
    a(f"{SM} {vr(O[3],16)}, {ar(K0+8,4)}, {vr(Sx,8)}, v2")
    a(f"{SM} {vr(O[3],16)}, {ar(K0+12,4)}, {vr(Sx+8,8)}, v2")
    a("s_cmp_lt_u32 s59, 64")
    a("s_cbranch_scc1 C_FB2")
    a("s_nop 15")
    a(f"v_mov_b32 v6, v{O[3]+12}")
    a(f"v_mov_b32 v7, v{O[3]+12}")
    a("s_nop 1")
    a("v_permlane32_swap_b32 v6, v7")
    a("v_rcp_f32 v7, v7")
    a("s_nop 0")
    a("s_branch C_FIN")

def main():
    a = Asm()
    head = f"""; gated mix of a linear-attention block and a softmax-attention block (S=2048, D=448, H=16), one launch
; @launch grid=(256,1,1) block=(512,1,1) lds=163840
.amdgcn_target "amdgcn-amd-amdhsa--gfx950"
.text
"""
    gen(a)
    out = head + a.text() + '.section .rodata,"a"\n' + kernel_desc(KN, 256, 102, 160)
    path = sys.argv[1] if len(sys.argv) > 1 else f"cdna_kernels/{NAME}.s"
    open(path, "w").write(out)
main()
```

```python
import math, sys, os, struct
from asmlib import *

NAME = "gated_mix__linear_attn_block__mha_block__prompt"
KN = NAME + "_kernel"
WS_KV  = 0
WS_CNT = 5 << 20
WS_KVP = 6 << 20
WS_OF  = 8 << 20
PAD = int(os.environ.get("PAD", "69632"))
WS_ST  = 14 << 20
WS_SIZE = 16 << 20
LOG2E = 1.4426950408889634
QSCALE = LOG2E * 28 ** -0.5
EPS = 1e-6
ONE2 = 0x3F803F80
RING = 114688
L_KVD = RING
L_G   = RING + 16384 + 4096
L_KVF = RING + 16384 + 12288
L_CNT = RING + 16384 + 14336
L_QD  = RING + 32768
L_PQ  = RING + 32768 + 8192
STAMP = int(os.environ.get("STAMP", "0"))
X = set(os.environ.get("X", "").split(","))
MF = "v_mfma_f32_32x32x16_bf16"
SM = "v_smfmac_f32_32x32x32_bf16"
SX, SW, SWA, SWB, SWS, SD, SG = 36, 40, 44, 48, 52, 56, 60
WSR = f"s[{SWS}:{SWS+3}]"
SPIN = 200000
WFL = os.environ.get("WFL", "")
XFL = os.environ.get("XFL", "")

def srd(a, d, lo, size):
    a(f"s_mov_b32 s{d}, s{lo}")
    a(f"s_mov_b32 s{d+1}, s{lo+1}")
    a(f"s_mov_b32 s{d+2}, {size}")
    a(f"s_mov_b32 s{d+3}, 0x20000")
def R(d): return f"s[{d}:{d+3}]"

def stamp(a, i, mode=1):
    if not STAMP: return
    if mode is not None and mode != STAMP: return
    if i == 0: a("s_memrealtime s[96:97]")
    a(f"s_memtime s[94:95]")
    a("s_waitcnt lgkmcnt(0)")
    a(f"s_mov_b32 s{70+i}, s94")
def stampc(a, i):
    stamp(a, i, None)
def stamp_out(a, n):
    if not STAMP: return
    a("s_memrealtime s[98:99]")
    a("s_waitcnt lgkmcnt(0)")
    a("s_mov_b64 exec, 1")
    a("s_lshl_b32 s94, s2, 3")
    a("s_add_u32 s94, s94, s35")
    a("s_lshl_b32 s94, s94, 7")
    a(f"s_add_u32 s94, s94, {WS_ST}")
    a("v_mov_b32 v1, 0")
    for i in range(n):
        a(f"v_mov_b32 v2, s{70+i}")
        a(f"buffer_store_dword v2, v1, {WSR}, s94 offen offset:{4*i}")
    a("v_mov_b32 v2, s96")
    a(f"buffer_store_dword v2, v1, {WSR}, s94 offen offset:120")
    a("v_mov_b32 v2, s98")
    a(f"buffer_store_dword v2, v1, {WSR}, s94 offen offset:124")

def dma_lane_w(a, vdst, vt0, vt1, rowstride):
    a(f"v_lshrrev_b32 v{vt0}, 4, v0")
    a(f"v_bfe_u32 v{vt1}, v0, 2, 2")
    a(f"v_and_b32 v{vdst}, 1, v{vt0}")
    if "noswz" not in X: a(f"v_xor_b32 v{vt1}, v{vt1}, v{vdst}")
    a(f"v_lshrrev_b32 v{vdst}, 1, v{vt1}")
    a(f"v_lshl_add_u32 v{vt0}, v{vt0}, 1, v{vdst}")
    a(f"v_mul_u32_u24 v{vt0}, {rowstride}, v{vt0}")
    a(f"v_and_b32 v{vt1}, 1, v{vt1}")
    a(f"v_lshl_add_u32 v{vt0}, v{vt1}, 6, v{vt0}")
    a(f"v_and_b32 v{vt1}, 3, v0")
    a(f"v_lshl_add_u32 v{vdst}, v{vt1}, 4, v{vt0}")

def tr_lane_addr(a, vdst, vb, vt0, vt1, hlshift):
    a(f"v_bfe_u32 v{vt0}, v0, 4, 1")
    a(f"v_lshl_add_u32 v{vb}, v{vt0}, 5, v{vb}")
    a(f"v_and_b32 v{vt0}, 3, v0")
    a(f"v_lshl_add_u32 v{vb}, v{vt0}, 3, v{vb}")
    a(f"v_bfe_u32 v{vt0}, v0, 2, 1")
    a(f"v_lshrrev_b32 v{vt1}, 6, v{vb}")
    a(f"v_lshl_add_u32 v{vt0}, v{vt0}, 1, v{vt1}")
    a(f"v_bfe_u32 v{vt1}, v0, 3, 1")
    a(f"v_xor_b32 v{vt0}, v{vt0}, v{vt1}")
    a(f"v_and_b32 v{vb}, 63, v{vb}")
    a(f"v_lshl_add_u32 v{vb}, v{vt0}, 6, v{vb}")
    a(f"v_lshrrev_b32 v{vt0}, 5, v0")
    a(f"v_lshl_add_u32 v{vt0}, v{vt0}, {hlshift}, v{vt1}")
    a(f"v_lshl_add_u32 v{vdst}, v{vt0}, 8, v{vb}")

C_KV, C_A, C_OA, C_OB = WS_CNT, WS_CNT + 32*128, WS_CNT + 40*128, WS_CNT + 72*128
def poll(a, tag, srdreg, soff, target, vz, vt, sleep=0):
    a("s_mov_b64 exec, 1")
    a(f"s_mov_b32 s68, {SPIN}")
    if sleep:
        a(f"s_branch POLL_{tag}")
        a.label(f"POLLS_{tag}")
        a(f"s_sleep {sleep}")
    a.label(f"POLL_{tag}")
    a(f"buffer_load_dword v{vt}, v{vz}, {srdreg}, {soff} offen sc1")
    a("s_waitcnt vmcnt(0)")
    a(f"v_readfirstlane_b32 s69, v{vt}")
    a("s_sub_u32 s68, s68, 1")
    a(f"s_cbranch_scc1 POLLX_{tag}")
    a(f"s_cmp_ge_u32 s69, {target}")
    a(f"s_cbranch_scc0 POLL{'S' if sleep else ''}_{tag}")
    a.label(f"POLLX_{tag}")
    a("s_mov_b64 exec, -1")

def signal(a, soff, vz, vt):
    a("s_mov_b64 exec, 1")
    a(f"v_mov_b32 v{vt}, 1")
    a(f"buffer_atomic_add v{vt}, v{vz}, {WSR}, {soff} offen sc1")
    a("s_mov_b64 exec, -1")

def cvt(a, dst, src, lo=0, hi=8):
    for i in range(lo, hi):
        a(f"v_cvt_pk_bf16_f32 v{dst+i}, v{src+2*i}, v{src+2*i+1}")

def vadd(a, dst, src, n):
    for i in range(n): a(f"v_add_f32 v{dst+i}, v{dst+i}, v{src+i}")
def vmul(a, dst, mul, n):
    for i in range(n): a(f"v_mul_f32 v{dst+i}, {mul}, v{dst+i}")

def phi(a, src, T):
    for i in range(8):
        if "pkphi" in X:
            a(f"v_pk_fma_f32 {vr(T+2*i,2)}, {vr(src+2*i,2)}, s[64:65], s[64:65] neg_lo:[0,0,1] neg_hi:[0,0,1]")
        else:
            for k in range(2): a(f"v_fma_f32 v{T+2*i+k}, v{src+2*i+k}, s64, -s64")
    for i in range(16):
        a(f"v_exp_f32_e64 v{T+i}, v{T+i} clamp")
    for i in range(16):
        a(f"v_max_f32 v{src+i}, v{src+i}, v{T+i}")
    for i in range(8):
        if "pkphi" in X:
            a(f"v_pk_add_f32 {vr(src+2*i,2)}, {vr(src+2*i,2)}, s[66:67]")
        else:
            for k in range(2): a(f"v_add_f32 v{src+2*i+k}, s66, v{src+2*i+k}")

def p3_addr(a, v0a, mat_off_sgpr, vt0, vt1):
    a(f"v_mov_b32 v{v0a+1}, 0")
    tr_lane_addr(a, v0a, v0a+1, vt0, vt1, 1)
    a(f"v_add_u32 v{v0a}, {mat_off_sgpr}, v{v0a}")
    a(f"v_xor_b32 v{v0a+1}, 64, v{v0a}")
    a(f"v_lshrrev_b32 v{vt0}, 5, v0")
    a(f"v_lshlrev_b32 v{vt0}, 9, v{vt0}")
    a(f"v_sub_u32 v{v0a+2}, v{v0a}, v{vt0}")
    a(f"v_sub_u32 v{v0a+3}, v{v0a+1}, v{vt0}")

def p3_gemm(a, va, ACC, WF, first_zero, vmwait):
    def reads(ks):
        f = WF[ks & 1]; hh, m = ks >> 1, ks & 1
        o = (14*hh + 8*m) * 256
        last = (ks == 15)
        return [f"ds_read_b64_tr_b16 {vr(f,2)}, v{va} offset:{o}",
                f"ds_read_b64_tr_b16 {vr(f+2,2)}, v{va+2 if last else va} offset:{o+1024}",
                f"ds_read_b64_tr_b16 {vr(f+4,2)}, v{va+1} offset:{o}",
                f"ds_read_b64_tr_b16 {vr(f+6,2)}, v{va+3 if last else va+1} offset:{o+1024}"]
    for x in reads(0): a(x)
    for ks in range(16):
        f = WF[ks & 1]
        rd = reads(ks+1) if ks < 15 else []
        c0 = "0" if (first_zero and ks == 0) else vr(ACC[0], 16)
        c1 = "0" if (first_zero and ks == 0) else vr(ACC[1], 16)
        if vmwait: a(f"s_waitcnt vmcnt({15-ks}) lgkmcnt(2)")
        else: a("s_waitcnt lgkmcnt(2)")
        a(f"{MF} {vr(ACC[0],16)}, {vr(f,4)}, {ar(4*ks,4)}, {c0}")
        for x in rd[:2]: a(x)
        a(f"s_waitcnt lgkmcnt({2 if rd else 0})")
        a(f"{MF} {vr(ACC[1],16)}, {vr(f+4,4)}, {ar(4*ks,4)}, {c1}")
        for x in rd[2:]: a(x)

def p3_oloads(a, vlane16, so):
    for ks in range(16):
        a(f"buffer_load_dwordx4 {ar(4*ks,4)}, v{vlane16}, {WSR}, {so} offen offset:{1024*(ks&3)} sc1")
        if ks & 3 == 3 and ks < 15: a(f"s_add_u32 {so}, {so}, 4096")

def gen(a):
    kernel_head(a, KN)
    a("s_cmp_ge_u32 s2, 256")
    a("s_cbranch_scc1 L_END")
    a("s_load_dwordx16 s[4:19], s[0:1], 0")
    a("s_load_dwordx4 s[20:23], s[0:1], 64")
    if STAMP or "span" in X or os.environ.get("DIAGT"):
        a("s_memrealtime s[96:97]")
        a("s_memtime s[70:71]")
    a("s_and_b32 s64, s2, 7")
    a("s_lshr_b32 s32, s2, 3")
    a("s_lshr_b32 s34, s64, 1")
    a("s_and_b32 s33, s64, 1")
    a("s_lshr_b32 s29, s32, 3")
    a("s_lshl_b32 s24, s34, 2")
    a("s_add_u32 s24, s24, s29")
    a("s_and_b32 s26, s32, 1")
    a("s_bfe_u32 s25, s32, 0x20001")
    a("s_lshl_b32 s65, s33, 2")
    a("s_add_u32 s25, s25, s65")
    a("s_lshl_b32 s28, s25, 1")
    a("s_cmp_eq_u32 s26, s33")
    a("s_addc_u32 s28, s28, 0")
    a("s_mul_i32 s30, s32, 37")
    a("s_lshr_b32 s30, s30, 8")
    a("s_mul_i32 s31, s30, 7")
    a("s_sub_u32 s31, s32, s31")
    a("s_lshl_b32 s64, s64, 2")
    a("s_add_u32 s30, s30, s64")
    a("v_lshrrev_b32 v1, 6, v0")
    a("v_and_b32 v0, 63, v0")
    a("v_readfirstlane_b32 s27, v1")
    a("s_nop 3")
    a("s_mov_b32 s35, s27")
    a("s_cmp_ge_u32 s27, 4")
    a("s_cbranch_scc0 L_COMPUTE")
    helper(a)
    compute(a)
    a.label("L_END")
    a("s_endpgm")
    a.label("L_CODE_END")

def helper(a):
    a("s_sub_u32 s27, s27, 4")
    a("s_setprio " + os.environ.get("PRIO", "2"))
    ROT = os.environ.get("ROT", "2")
    a("s_and_b32 s64, s32, 7")
    a("s_add_u32 s64, s64, s29")
    if ROT == "0":
        a("s_mov_b32 s84, 0")
    elif ROT == "2":
        a("s_add_u32 s64, s64, s34")
        a("s_and_b32 s64, s64, 1")
        a("s_mul_i32 s84, s64, 3")
    elif ROT == "3":
        a("s_add_u32 s64, s64, s34")
        a("s_mul_i32 s65, s64, 86")
        a("s_lshr_b32 s65, s65, 8")
        a("s_mul_i32 s65, s65, 3")
        a("s_sub_u32 s64, s64, s65")
        a("s_mul_i32 s84, s64, 5")
        a("s_lshr_b32 s84, s84, 1")
    elif ROT == "4":
        a("s_add_u32 s64, s64, s34")
        a("s_and_b32 s64, s64, 3")
        a("s_lshl_b32 s84, s64, 1")
    elif ROT == "7":
        a("s_add_u32 s64, s64, s29")
        a("s_add_u32 s64, s64, s34")
        a("s_mul_i32 s65, s64, 37")
        a("s_lshr_b32 s65, s65, 8")
        a("s_mul_i32 s65, s65, 7")
        a("s_sub_u32 s84, s64, s65")
    for i in range(1, 7):
        a(f"s_add_u32 s{84+i}, s{83+i}, 1")
        a(f"s_cmp_eq_u32 s{84+i}, 7")
        a(f"s_cselect_b32 s{84+i}, 0, s{84+i}")
    a("v_lshrrev_b32 v1, 3, v0")
    a("s_lshl_b32 s64, s24, 7")
    a("s_lshl_b32 s65, s27, 5")
    a("s_add_u32 s64, s64, s65")
    a("v_add_u32 v1, s64, v1")
    a("v_mul_u32_u24 v1, 896, v1")
    a("v_lshrrev_b32 v2, 4, v0")
    a("v_and_b32 v3, 7, v0")
    a("v_xor_b32 v2, v2, v3")
    a("v_lshl_add_u32 v2, v2, 4, v1")
    a("v_xor_b32 v3, 64, v2")
    a("v_add_u32 v3, 7168, v3")
    a("v_add_u32 v4, 14336, v2")
    a("v_add_u32 v5, 14336, v3")
    dma_lane_w(a, 6, 10, 11, 2688)
    a("s_mul_i32 s64, s27, 43008")
    a("s_mul_i32 s65, s25, %d" % (128 if "al128" in X else 64 if "al64" in X else 112))
    a("s_add_u32 s64, s64, s65")
    a("s_add_u32 s64, s64, 896")
    a("v_add_u32 v6, s64, v6")
    a("v_add_u32 v7, 21504, v6")
    a("v_add_u32 v8, 896, v6")
    a("v_add_u32 v9, 896, v7")
    a("s_lshl_b32 s66, s27, 12")
    a("s_lshl_b32 s67, s27, 11")
    a(f"s_add_u32 s67, s67, {RING}")
    a("s_waitcnt lgkmcnt(0)")
    srd(a, SX, 4, 1835008)
    a("s_cmp_eq_u32 s26, 0")
    a(f"s_cselect_b32 s{SW}, s6, s12")
    a(f"s_cselect_b32 s{SW+1}, s7, s13")
    a(f"s_mov_b32 s{SW+2}, 1204224")
    a(f"s_mov_b32 s{SW+3}, 0x20000")
    vm = []
    def xload(c):
        a(f"s_lshl_b32 s64, s{84+c}, 7")
        for q in range(4):
            a(f"s_add_u32 m0, s66, {c*16384 + q*1024}")
            a("s_nop 0")
            a(f"buffer_load_dwordx4 v{2+q}, {R(SX)}, s64 offen {XFL} lds"); vm.append(("x", c))
    def wload(c):
        a(f"s_mul_i32 s65, s{84+c}, 172032")
        for pt in range(2):
            for u in range(2):
                a(f"s_add_u32 m0, s67, {(c%3)*16384 + pt*8192 + u*1024}")
                a("s_nop 0")
                a(f"buffer_load_dwordx4 v{6+2*pt+u}, {R(SW)}, s65 offen {WFL} lds"); vm.append(("w", c))
    def qload(d):
        a("s_cmp_ge_u32 s27, 2")
        a(f"s_cselect_b32 s65, s{84+min(2*d+1,6)}, s{84+2*d}")
        a("s_mul_i32 s65, s65, 172032")
        for mat in range(2):
            for u in range(2):
                a(f"s_add_u32 m0, s67, {((7+d)%3)*16384 + mat*8192 + u*1024}")
                a("s_nop 0")
                a(f"buffer_load_dwordx4 v{10+u}, {R(SWA if mat == 0 else SWB)}, s65 offen {WFL} lds"); vm.append(("q", d))
    def waitfor(*tags):
        last = max(i for i, tg in enumerate(vm) if tg in tags)
        a(f"s_waitcnt vmcnt({len(vm)-1-last})")
    def patch(d):
        a("s_mov_b32 exec_hi, 0")
        a(f"ds_write_b16 v16, v{12+d} offset:{((7+d)%3)*16384}")
        a("s_mov_b32 exec_hi, -1")
        a("s_waitcnt lgkmcnt(0)")
    if "nodma" in X:
        srd(a, SWS, 22, WS_SIZE)
        stamp_out(a, 11)
        a("s_endpgm")
    if "free" in X:
        srd(a, SWS, 22, WS_SIZE)
        stamp(a, 1, 2)
        for c in range(7):
            if "nox" not in X: xload(c)
            if "now" not in X: wload(c)
        stamp(a, 2, 2)
        a("s_waitcnt vmcnt(0)")
        stamp(a, 3, 2)
        stamp_out(a, 11)
        a("s_endpgm")
    stamp(a, 1, 2)
    for c in range(2):
        xload(c); wload(c)
    stamp(a, 1); stamp(a, 2, 2)
    srd(a, SWA, 6, 1204224); srd(a, SWB, 12, 1204224)
    srd(a, SWS, 22, WS_SIZE); srd(a, SD, 20, 256); srd(a, SG, 16, 896)
    a("v_lshrrev_b32 v10, 2, v0")
    a("s_and_b32 s64, s27, 1")
    a("s_lshl_b32 s64, s64, 5")
    a("v_add_u32 v10, s64, v10")
    a("v_mul_u32_u24 v10, 2688, v10")
    a("v_and_b32 v11, 3, v0")
    a("v_lshl_add_u32 v10, v11, 4, v10")
    a("s_mul_i32 s65, s28, 56")
    a("v_add_u32 v10, s65, v10")
    a("v_add_u32 v11, 43008, v10")
    a("v_add_u32 v17, s64, v0")
    a("v_lshlrev_b32 v17, 1, v17")
    a("s_lshl_b32 s64, s27, 11")
    a(f"s_add_u32 s64, s64, {RING + 8192 + 56}")
    a("v_lshl_add_u32 v16, v0, 6, s64")
    a("s_lshl_b32 s64, s32, 1")
    a("s_and_b32 s65, s27, 1")
    a("s_add_u32 s64, s64, s65")
    a("s_mul_i32 s64, s64, 28")
    a("v_add_u32 v20, s64, v0")
    a("v_lshrrev_b32 v21, 2, v20")
    a("v_mul_u32_u24 v21, 2688, v21")
    a("v_and_b32 v20, 3, v20")
    a("v_lshl_add_u32 v20, v20, 7, v21")
    a("s_mul_i32 s64, s33, 384")
    a("v_add_u32 v20, s64, v20")
    a("s_lshl_b32 s64, s32, 1")
    a("s_add_u32 s64, s64, s65")
    a("s_mul_i32 s64, s64, 49")
    a("v_add_u32 v21, s64, v0")
    a("v_lshlrev_b32 v21, 7, v21")
    a("v_mov_b32 v18, 0")
    waitfor(("x",0),("w",0)); a("s_barrier"); stamp(a, 3, 2)
    stamp(a, 2)
    xload(2); wload(2)
    waitfor(("x",1),("w",1)); a("s_barrier"); stamp(a, 4, 2)
    xload(3); wload(3)
    for d in range(4):
        a("s_cmp_ge_u32 s27, 2")
        a(f"s_cselect_b32 s65, s{84+min(2*d+1,6)}, s{84+2*d}")
        a("s_lshl_b32 s65, s65, 7")
        a(f"buffer_load_ushort v{12+d}, v17, {R(SG)}, s65 offen"); vm.append(("g", d))
    waitfor(("x",2),("w",2)); a("s_barrier"); stamp(a, 5, 2)
    xload(4); wload(4)
    waitfor(("x",3),("w",3)); a("s_barrier"); stamp(a, 6, 2)
    xload(5); wload(5)
    a(f"buffer_load_dword v17, v18, {R(SD)}, 0 offen sc1"); vm.append(("d", 0))
    waitfor(("x",4),("w",4)); a("s_barrier"); stamp(a, 7, 2)
    xload(6); wload(6)
    if "nopq" not in X:
        a("s_cmp_ge_u32 s27, 2")
        a(f"s_cselect_b32 s{SG}, s12, s6")
        a(f"s_cselect_b32 s{SG+1}, s13, s7")
        a(f"s_mov_b32 s{SG+2}, 1204224")
        a("s_mov_b32 exec_lo, 0x0fffffff")
        a("s_mov_b32 exec_hi, 0")
        a(f"buffer_load_dword v22, v20, {R(SG)}, 0 offen"); vm.append(("p", 0))
        a("s_mov_b64 exec, -1")
    waitfor(("x",5),("w",5)); a("s_barrier"); stamp(a, 8, 2)
    qload(0)
    waitfor(("x",6),("w",6)); a("s_barrier"); stamp(a, 9, 2)
    qload(1)
    waitfor(("q",0)); patch(0); a("s_barrier"); stamp(a, 10, 2)
    if "memonly" in X:
        stamp_out(a, 11)
        a("s_endpgm")
    qload(2)
    waitfor(("q",1)); patch(1)
    a("v_readfirstlane_b32 s69, v17")
    a("s_nop 0")
    a("s_cmp_lg_u32 s69, 0")
    a("s_cbranch_scc1 H_INIT_OK")
    poll(a, "INIT", R(SD), "0", 1, 18, 17)
    a.label("H_INIT_OK")
    a("s_barrier")
    a("s_cmp_ge_u32 s27, 2")
    a("s_cbranch_scc1 H_NOQ3")
    qload(3)
    waitfor(("q",2)); patch(2)
    a("s_branch H_Q3")
    a.label("H_NOQ3")
    a("s_waitcnt vmcnt(0)"); patch(2)
    a.label("H_Q3")
    if "nopwo" not in X:
        a("s_cmp_ge_u32 s27, 2")
        a(f"s_cselect_b32 s{SG}, s14, s8")
        a(f"s_cselect_b32 s{SG+1}, s15, s9")
        a(f"s_mov_b32 s{SG+2}, 401408")
        a("s_mov_b32 exec_hi, 0x1ffff")
        a(f"buffer_load_dword a64, v21, {R(SG)}, 0 offen")
        a("s_mov_b64 exec, -1")
    a("s_barrier")
    a("s_cmp_eq_u32 s27, 3")
    a("s_cselect_b32 s64, s26, 0")
    a("s_cmp_eq_u32 s64, 0")
    a("s_cbranch_scc1 H_NOSIGKV")
    a("s_lshl_b32 s64, s25, 2")
    a("s_add_u32 s64, s64, s34")
    a("s_lshl_b32 s64, s64, 7")
    a(f"s_add_u32 s64, s64, {C_KV}")
    signal(a, "s64", 18, 19)
    a.label("H_NOSIGKV")
    a(f"s_waitcnt vmcnt({0 if 'nopwo' in X else 1})")
    a("s_cmp_ge_u32 s27, 2")
    a("s_cbranch_scc1 H_NOP3")
    patch(3)
    a.label("H_NOP3")
    a("s_barrier")
    a(f"v_mov_b32 v1, {L_CNT}")
    a("v_mov_b32 v10, 0")
    a("v_mov_b32 v11, 0")
    a("ds_write_b64 v1, v[10:11]")
    a("v_lshlrev_b32 v2, 4, v0")
    dma_lane_w(a, 3, 4, 5, 896)
    a("s_mul_i32 s64, s27, 7168")
    a("s_lshl_b32 s65, s31, 7")
    a("s_add_u32 s64, s64, s65")
    a("v_add_u32 v3, s64, v3")
    a("s_lshr_b32 s64, s27, 1")
    a("s_mul_i32 s64, s64, 28672")
    p3_addr(a, 4, "s64", 8, 9)
    srd(a, SWA, 8, 401408); srd(a, SWB, 14, 401408)
    a("s_waitcnt lgkmcnt(0)")
    a("s_barrier")
    stamp(a, 3); stamp(a, 1, 3)
    if "hidle" in X:
        a("s_endpgm")
    PQ, G, KF, NUM, PA = 80, 88, 92, 100, 116
    a("s_lshl_b32 s64, s27, 11")
    a("v_add_u32 v8, s64, v2")
    a(f"v_add_u32 v8, {L_PQ}, v8")
    a(f"ds_read_b128 {vr(PQ,4)}, v8")
    a(f"ds_read_b128 {vr(PQ+4,4)}, v8 offset:1024")
    a("s_lshl_b32 s64, s27, 8")
    a(f"s_add_u32 s64, s64, {L_G}")
    a("v_lshl_add_u32 v8, v0, 2, s64")
    a(f"ds_read_b32 v{G}, v8")
    a("s_cmp_eq_u32 s27, 3")
    a("s_cselect_b32 s64, s26, 1")
    a("s_cmp_eq_u32 s64, 0")
    a("s_cbranch_scc0 H_NOKVP")
    a(f"v_add_u32 v8, {L_KVD}, v2")
    for i in range(16):
        a(f"ds_read_b128 {vr(16+4*i,4)}, v8 offset:{1024*i}")
        if i == 11: a("s_waitcnt lgkmcnt(8)")
    a(f"s_mul_i32 s64, s25, {2*PAD}")
    a("s_lshl_b32 s65, s24, 12")
    a("s_add_u32 s64, s64, s65")
    a(f"s_add_u32 s64, s64, {WS_KVP}")
    a(f"s_add_u32 s65, s64, {PAD}")
    a("s_waitcnt lgkmcnt(0)")
    for j in range(2):
        vadd(a, 16+16*j, 48+16*j, 16)
        for q in range(4):
            a(f"buffer_store_dwordx4 {vr(16+16*j+4*q,4)}, v2, {WSR}, s{64+j} offen offset:{1024*q} sc1")
    a("s_lshl_b32 s64, s25, 7")
    a(f"s_add_u32 s64, s64, {C_A}")
    a("s_waitcnt vmcnt(0)")
    signal(a, "s64", 10, 11)
    a.label("H_NOKVP")
    def wo_dma(tag, end):
        a.label(f"H_WO{tag}")
        a("s_mov_b32 m0, s66")
        a("s_add_u32 s67, s66, 57344")
        a(f"buffer_load_dwordx4 v3, {R(SWA)}, s63 offen lds")
        a("s_mov_b32 m0, s67")
        a("s_add_u32 s66, s66, 4096")
        a(f"buffer_load_dwordx4 v3, {R(SWB)}, s63 offen lds")
        a("s_add_u32 s63, s63, 28672")
        a("s_waitcnt vmcnt(%s)" % os.environ.get("WOD", "4"))
        a(f"s_cmp_lt_u32 s63, {end*28672}")
        a(f"s_cbranch_scc1 H_WO{tag}")
    a("s_lshl_b32 s66, s27, 10")
    a("s_mov_b32 s63, 0")
    a("s_cmp_ge_u32 s32, 28")
    a("s_cbranch_scc1 H_NOWOA")
    wo_dma("A", 14)
    a.label("H_NOWOA")
    stamp(a, 2, 3)
    a("s_lshl_b32 s64, s25, 7")
    a(f"s_add_u32 s64, s64, {C_A}")
    poll(a, "A", WSR, "s64", 16, 10, 11, 2)
    stamp(a, 4); stamp(a, 3, 3)
    a(f"s_mul_i32 s64, s28, {PAD}")
    a("s_lshl_b32 s65, s27, 10")
    a("s_add_u32 s64, s64, s65")
    a(f"s_add_u32 s64, s64, {WS_KVP}")
    def kvadd(j):
        if "noadd" in X: return
        if "pkadd" in X:
            for k in range(2):
                a(f"v_pk_add_f32 {vr(16+2*k,2)}, {vr(16+2*k,2)}, {vr(16+4*j+2*k,2)}")
        else:
            for k in range(4):
                a(f"v_add_f32 v{16+k}, v{16+k}, v{16+4*j+k}")
    for i in range(16):
        a(f"buffer_load_dwordx4 {vr(16+4*i,4)}, v2, {WSR}, s64 offen" + ("" if "kvplain" in X else " sc1"))
        a("s_add_u32 s64, s64, 4096")
        if i >= 3:
            a("s_waitcnt vmcnt(3)")
            j = i - 3
            if j >= 1:
                kvadd(j)
    stamp(a, 4, 3)
    for j in (13, 14, 15):
        a(f"s_waitcnt vmcnt({15-j})")
        kvadd(j)
    stamp(a, 5, 3)
    a("v_cvt_pk_bf16_f32 v16, v16, v17")
    a("v_cvt_pk_bf16_f32 v17, v18, v19")
    a("s_lshr_b32 s64, s27, 1")
    a("s_lshl_b32 s64, s64, 10")
    a("s_and_b32 s65, s27, 1")
    a("s_lshl_b32 s65, s65, 3")
    a("s_add_u32 s64, s64, s65")
    a(f"s_add_u32 s64, s64, {L_KVF}")
    a("v_add_u32 v8, s64, v2")
    a("ds_write_b64 v8, v[16:17]")
    a("v_mov_b32 v11, 1")
    a("s_waitcnt lgkmcnt(0)")
    a("s_mov_b64 exec, 1")
    a("ds_add_u32 v1, v11")
    a(f"s_mov_b32 s68, {SPIN}")
    a.label("H_SPIN1")
    a("ds_read_b32 v9, v1")
    a("s_waitcnt lgkmcnt(0)")
    a("v_readfirstlane_b32 s69, v9")
    a("s_sub_u32 s68, s68, 1")
    a("s_cbranch_scc1 H_SPIN1X")
    a("s_cmp_ge_u32 s69, 4")
    a("s_cbranch_scc0 H_SPIN1")
    a.label("H_SPIN1X")
    stamp(a, 6, 3)
    a("s_mov_b64 exec, -1")
    a(f"v_add_u32 v8, {L_KVF}, v2")
    a(f"ds_read_b128 {vr(KF,4)}, v8")
    a(f"ds_read_b128 {vr(KF+4,4)}, v8 offset:1024")
    a("s_waitcnt lgkmcnt(0)")
    a(f"{MF} {vr(NUM,16)}, {vr(KF,4)}, {vr(PQ,4)}, 0")
    a(f"{MF} {vr(NUM,16)}, {vr(KF+4,4)}, {vr(PQ+4,4)}, {vr(NUM,16)}")
    a("s_lshl_b32 s64, s24, 2")
    a("s_add_u32 s64, s64, s27")
    a(f"s_mul_i32 s64, s64, {PAD}")
    a("s_lshl_b32 s65, s28, 11")
    a("s_add_u32 s64, s64, s65")
    a(f"s_add_u32 s64, s64, {WS_OF}")
    a(f"v_mov_b32 v{PA+6}, 0")
    a(f"v_mov_b32 v{PA+7}, 0")
    a("s_nop 7")
    a(f"v_mov_b32 v8, v{NUM+12}")
    a(f"v_mov_b32 v9, v{NUM+12}")
    a("s_nop 1")
    a("v_permlane32_swap_b32 v8, v9")
    a(f"v_add_f32 v9, {f32(EPS)}, v9")
    a("v_rcp_f32 v9, v9")
    a("s_nop 0")
    a(f"v_mul_f32 v9, v9, v{G}")
    vmul(a, NUM, "v9", 16)
    cvt(a, PA, NUM, 0, 6)
    a("s_mov_b32 exec_hi, 0")
    cvt(a, PA, NUM, 6, 8)
    a("s_mov_b32 exec_hi, -1")
    a(f"buffer_store_dwordx4 {vr(PA,4)}, v2, {WSR}, s64 offen sc1")
    a(f"buffer_store_dwordx4 {vr(PA+4,4)}, v2, {WSR}, s64 offen offset:1024 sc1")
    stamp(a, 7, 3)
    a("s_waitcnt vmcnt(0)")
    stamp(a, 8, 3)
    a("s_mov_b64 exec, 1")
    a("ds_add_rtn_u32 v9, v1, v11 offset:4")
    a("s_waitcnt lgkmcnt(0)")
    a("v_readfirstlane_b32 s69, v9")
    a("s_mov_b64 exec, -1")
    a("s_cmp_eq_u32 s69, 3")
    a("s_cbranch_scc0 H_NOSIGOA")
    a("s_lshl_b32 s64, s24, 1")
    a("s_add_u32 s64, s64, s33")
    a("s_lshl_b32 s64, s64, 7")
    a(f"s_add_u32 s64, s64, {C_OA}")
    signal(a, "s64", 10, 11)
    a.label("H_NOSIGOA")
    stamp(a, 5)
    a("s_barrier")
    a("s_cmp_ge_u32 s32, 28")
    a("s_cbranch_scc1 H_NOP3B")
    stamp(a, 6); stamp(a, 9, 3)
    a("s_and_b32 s64, s30, 0xfe")
    a("s_lshr_b32 s65, s27, 1")
    a("s_add_u32 s64, s64, s65")
    a("s_lshl_b32 s64, s64, 7")
    a(f"s_add_u32 s64, s64, {C_OA}")
    poll(a, "OA", WSR, "s64", 8, 10, 11, 2)
    a("s_and_b32 s64, s27, 1")
    a("s_lshl_b32 s65, s30, 1")
    a("s_add_u32 s64, s64, s65")
    a(f"s_mul_i32 s64, s64, {PAD}")
    a("s_lshr_b32 s65, s27, 1")
    a("s_lshl_b32 s65, s65, 14")
    a("s_add_u32 s64, s64, s65")
    a(f"s_add_u32 s64, s64, {WS_OF}")
    p3_oloads(a, 2, "s64")
    a.label("H_NOP3B")
    stamp(a, 7); stamp(a, 10, 3)
    a("s_waitcnt vmcnt(0)")
    a("s_barrier")
    stamp(a, 8)
    a("s_setprio 0")
    a("s_cmp_ge_u32 s32, 28")
    a("s_cbranch_scc1 H_NOP3C")
    p3_gemm(a, 4, [16, 32], [48, 56], True, False)
    a.label("H_NOP3C")
    stamp(a, 9)
    a("s_barrier")
    a("s_cmp_eq_u32 s27, 0")
    a("s_cbranch_scc0 H_NOSIGOB")
    a("s_lshl_b32 s64, s24, 1")
    a("s_add_u32 s64, s64, s33")
    a("s_lshl_b32 s64, s64, 7")
    a(f"s_add_u32 s64, s64, {C_OB}")
    signal(a, "s64", 10, 11)
    a.label("H_NOSIGOB")
    a("s_cmp_ge_u32 s32, 28")
    a("s_cbranch_scc1 H_EXIT")
    a("s_lshl_b32 s64, s27, 13")
    a(f"s_add_u32 s64, s64, {RING}")
    a("v_add_u32 v8, s64, v2")
    a("s_nop 7")
    for i in range(8):
        a(f"ds_write_b128 v8, {vr(16+4*i,4)} offset:{1024*i}")
    a("s_waitcnt lgkmcnt(0)")
    a("s_barrier")
    a.label("H_EXIT")
    stamp(a, 10)
    stamp_out(a, 11)
    a("s_endpgm")

def compute(a):
    a.label("L_COMPUTE")
    XA, WA, WB, XQ, WQ = 2, 6, 7, 8, 12
    FR = 16; accK = [64, 80]; accV = [96, 112]; pK = [128, 136]; pV = [144, 152]
    a("s_lshr_b32 s92, s27, 1")
    a("s_and_b32 s93, s27, 1")
    a("v_and_b32 v13, 31, v0")
    a("v_lshrrev_b32 v14, 5, v0")
    a("v_bfe_u32 v15, v0, 1, 3")
    a("v_xor_b32 v15, v15, v14")
    a("s_lshl_b32 s64, s92, 13")
    a("v_lshl_add_u32 v1, v13, 7, s64")
    a("s_lshl_b32 s65, s27, 12")
    a("s_sub_u32 s65, s65, s64")
    for ks in range(4):
        a(f"v_xor_b32 v{XA+ks}, {2*ks}, v15")
        a(f"v_lshl_add_u32 v{XA+ks}, v{XA+ks}, 4, v1")
        a(f"v_add_u32 v{XQ+ks}, s65, v{XA+ks}")
    a("s_mul_i32 s64, s93, 56")
    a(f"v_mov_b32 v{WA}, s64")
    tr_lane_addr(a, WB, WA, 1, 15, 2)
    a(f"v_add_u32 v{WB}, {RING}, v{WB}")
    a(f"v_mov_b32 v{WA}, v{WB}")
    a("v_bfe_u32 v1, v0, 2, 2")
    a("v_lshl_add_u32 v1, v14, 3, v1")
    a("v_lshlrev_b32 v1, 1, v1")
    a("v_bfe_u32 v15, v0, 4, 1")
    a("v_add_u32 v1, v1, v15")
    a("v_lshlrev_b32 v1, 2, v1")
    a("v_and_b32 v15, 3, v0")
    a("v_add_u32 v1, v1, v15")
    a("v_lshlrev_b32 v1, 3, v1")
    a(f"v_add_u32 v{WQ}, {RING}, v1")
    a("s_waitcnt lgkmcnt(0)")
    srd(a, SWS, 22, WS_SIZE)
    a("s_or_b32 s64, s2, s27")
    a("s_cmp_eq_u32 s64, 0")
    a("s_cbranch_scc0 C_NOINIT")
    srd(a, SD, 20, 256)
    a("v_lshlrev_b32 v17, 7, v0")
    a("v_mov_b32 v21, 0")
    a(f"s_mov_b32 s64, {WS_CNT}")
    a(f"buffer_store_dword v21, v17, {WSR}, s64 offen sc1")
    a("s_add_u32 s64, s64, 8192")
    a(f"buffer_store_dword v21, v17, {WSR}, s64 offen sc1")
    a("v_mov_b32 v22, 1")
    a("s_waitcnt vmcnt(0)")
    a("s_mov_b64 exec, 1")
    a(f"buffer_store_dword v22, v21, {R(SD)}, 0 offen sc1")
    a("s_mov_b64 exec, -1")
    a.label("C_NOINIT")
    if "nopc" not in X:
        a("s_cmp_eq_u32 s27, 1")
        a("s_cbranch_scc0 C_PFD")
        a("s_getpc_b64 s[64:65]")
        a.label("C_PC")
        a(f"s_sub_u32 s64, s64, C_PC-{KN}")
        a("s_subb_u32 s65, s65, 0")
        a(f"s_mov_b32 s66, L_CODE_END-{KN}")
        a("s_mov_b32 s67, 0x20000")
        a("s_mul_i32 s68, s32, 6")
        a("v_add_u32 v17, s68, v0")
        a("v_lshlrev_b32 v17, 7, v17")
        a("s_mov_b64 exec, 63")
        a("buffer_load_dword a93, v17, s[64:67], 0 offen")
        a("s_mov_b64 exec, -1")
        a.label("C_PFD")
    if "touch" in X:
        a("s_cmp_eq_u32 s27, 3")
        a("s_cbranch_scc1 C_TD")
        a("s_cmp_eq_u32 s27, 0")
        a("s_cbranch_scc0 C_T1")
        srd(a, SX, 4, 1835008)
        a("s_lshl_b32 s64, s34, 9")
        a("s_lshl_b32 s65, s32, 4")
        a("s_add_u32 s64, s64, s65")
        a("v_and_b32 v17, 15, v0")
        a("v_add_u32 v17, s64, v17")
        a("v_mul_u32_u24 v17, 896, v17")
        a("v_lshrrev_b32 v16, 4, v0")
        a("v_lshl_add_u32 v17, v16, 7, v17")
        a(f"buffer_load_dword a92, v17, {R(SX)}, 0 offen")
        a("s_mov_b32 exec_hi, 0xffff")
        a(f"buffer_load_dword a94, v17, {R(SX)}, 0 offen offset:512")
        a("s_mov_b64 exec, -1")
        a("s_branch C_TD")
        a.label("C_T1")
        a("s_cmp_eq_u32 s27, 1")
        a(f"s_cselect_b32 s{SW}, s6, s12")
        a(f"s_cselect_b32 s{SW+1}, s7, s13")
        a(f"s_mov_b32 s{SW+2}, 1204224")
        a(f"s_mov_b32 s{SW+3}, 0x20000")
        a("v_lshrrev_b32 v17, 4, v0")
        a("v_lshlrev_b32 v17, 6, v17")
        a("v_bfe_u32 v16, v0, 3, 1")
        a("s_lshl_b32 s64, s32, 1")
        a("v_add3_u32 v17, v17, v16, s64")
        a("v_mul_u32_u24 v17, 2688, v17")
        a("v_bfe_u32 v16, v0, 2, 1")
        a("v_mul_u32_u24 v16, 896, v16")
        a("v_add_u32 v17, v17, v16")
        a("v_and_b32 v16, 3, v0")
        a("v_lshl_add_u32 v17, v16, 7, v17")
        a("s_mul_i32 s66, s33, 384")
        a("s_add_u32 s66, s66, 896")
        a(f"buffer_load_dword a92, v17, {R(SW)}, s66 offen")
        a(f"s_add_u32 s66, s66, {4*172032}")
        a(f"buffer_load_dword a94, v17, {R(SW)}, s66 offen")
        a.label("C_TD")
    if "touchm" in X:
        a("s_cmp_eq_u32 s27, 3")
        a("s_cbranch_scc1 C_TD")
        a("s_cmp_eq_u32 s27, 0")
        a("s_cbranch_scc0 C_T1")
        srd(a, SX, 4, 1835008)
        a("s_lshl_b32 s64, s34, 9")
        a("s_lshl_b32 s65, s33, 8")
        a("s_add_u32 s64, s64, s65")
        a("s_lshl_b32 s65, s32, 3")
        a("s_add_u32 s64, s64, s65")
        a("v_and_b32 v17, 7, v0")
        a("v_add_u32 v17, s64, v17")
        a("v_mul_u32_u24 v17, 896, v17")
        a("v_lshrrev_b32 v16, 3, v0")
        a("v_lshl_add_u32 v17, v16, 7, v17")
        a("s_mov_b32 exec_hi, 0xffffff")
        a(f"buffer_load_dword a92, v17, {R(SX)}, 0 offen")
        a("s_mov_b64 exec, -1")
        a("s_branch C_TD")
        a.label("C_T1")
        a("s_cmp_eq_u32 s27, 1")
        a(f"s_cselect_b32 s{SW}, s6, s12")
        a(f"s_cselect_b32 s{SW+1}, s7, s13")
        a(f"s_mov_b32 s{SW+2}, 1204224")
        a(f"s_mov_b32 s{SW+3}, 0x20000")
        a("s_mul_i32 s64, s32, 42")
        a("v_add_u32 v16, s64, v0")
        a("v_mul_u32_u24 v17, 5462, v16")
        a("v_lshrrev_b32 v17, 16, v17")
        a("v_mul_u32_u24 v18, 12, v17")
        a("v_sub_u32 v16, v16, v18")
        a("v_lshl_add_u32 v17, v17, 2, s34")
        a("v_mul_u32_u24 v17, 2688, v17")
        a("v_lshrrev_b32 v18, 2, v16")
        a("v_mul_u32_u24 v18, 896, v18")
        a("v_and_b32 v16, 3, v16")
        a("v_lshl_add_u32 v17, v16, 7, v17")
        a("v_add_u32 v17, v17, v18")
        a("s_mul_i32 s66, s33, 384")
        a("s_mov_b32 exec_hi, 0x3ff")
        a(f"buffer_load_dword a92, v17, {R(SW)}, s66 offen")
        a("s_mov_b64 exec, -1")
        a.label("C_TD")
    if "memonly" in X:
        stampc(a, 1)
        a("s_waitcnt vmcnt(0)")
        stampc(a, 2)
        stamp_out(a, 16)
        a("s_endpgm")
    a("v_cmp_eq_u32 vcc, 28, v13")
    a(f"v_mov_b32 v1, {ONE2}")
    a("s_nop 0")
    a("v_cndmask_b32 v15, 0, v1, vcc")
    for s in range(2):
        for i in range(8):
            a(f"v_mov_b32 v{pV[s]+i}, v15")
    a("s_mov_b32 s56, 0x0fffffff")
    a("s_mov_b32 s57, 0x0fffffff")
    a(f"s_mov_b32 s64, {f32(LOG2E)}")
    a(f"s_mov_b32 s65, {f32(LOG2E)}")
    a(f"s_mov_b32 s66, {f32(EPS)}")
    a(f"s_mov_b32 s67, {f32(EPS)}")
    for i in range(32):
        a(f"v_mov_b32 v{accV[0]+i}, 0")
    a("v_lshlrev_b32 v13, 4, v0")
    a("s_cmp_eq_u32 s26, 0")
    a("s_cbranch_scc1 C_A")

    def reads(buf, ks):
        f = FR + 16*buf
        return [f"ds_read_b128 {vr(f,4)}, v{XA+ks}",
                f"ds_read_b64_tr_b16 {vr(f+8,2)}, v{WA} offset:{ks*2048}",
                f"ds_read_b64_tr_b16 {vr(f+10,2)}, v{WA} offset:{ks*2048+512}",
                f"ds_read_b128 {vr(f+4,4)}, v{XA+ks} offset:4096",
                f"ds_read_b64_tr_b16 {vr(f+12,2)}, v{WA} offset:{8192+ks*2048}",
                f"ds_read_b64_tr_b16 {vr(f+14,2)}, v{WA} offset:{8192+ks*2048+512}"]
    def mfmas(buf, kT):
        f = FR + 16*buf
        Xf = [vr(f, 4), vr(f+4, 4)]; Wk, Wv = vr(f+8, 4), vr(f+12, 4)
        m = []
        for s in range(2):
            if kT: m.append(f"{MF} {vr(accK[s],16)}, {Wk}, {Xf[s]}, {vr(accK[s],16)}")
            else:  m.append(f"{MF} {vr(accK[s],16)}, {Xf[s]}, {Wk}, {vr(accK[s],16)}")
        for s in range(2): m.append(f"{MF} {vr(accV[s],16)}, {Xf[s]}, {Wv}, {vr(accV[s],16)}")
        return m
    def mainloop(tag, kT):
        a("s_mov_b32 s60, 0")
        a("s_mov_b32 s61, 0")
        if STAMP != 4: stampc(a, 1)
        a("s_barrier")
        if STAMP != 4: stampc(a, 2)
        for r in reads(0, 0): a(r)
        a(".p2align 6")
        a.label(f"C_{tag}_LOOP")
        for ks in range(4):
            m = mfmas(ks & 1, kT); r = reads((ks+1) & 1, (ks+1) & 3)
            if ks < 3:
                a("s_waitcnt lgkmcnt(3)"); a(m[0]); a(r[0]); a(r[1]); a(r[2])
                a("s_waitcnt lgkmcnt(5)"); a(m[1]); a(r[3]); a(r[4]); a(r[5])
                a("s_waitcnt lgkmcnt(6)"); a(m[2])
                a(f"v_add_u32 v{XA+ks}, 16384, v{XA+ks}")
                if ks == 2:
                    a("s_add_u32 s60, s60, 1")
                    a("s_add_u32 s61, s61, 16384")
                    a("s_cmp_eq_u32 s61, 49152")
                    a("s_cselect_b32 s61, 0, s61")
                a(m[3])
            else:
                a(f"v_add_u32 v{WA}, s61, v{WB}")
                a("s_cmp_eq_u32 s60, 7")
                a("s_waitcnt lgkmcnt(0)")
                a("s_barrier")
                a(f"s_cbranch_scc1 C_{tag}_TAIL")
                a(m[0]); a(r[0]); a(r[1]); a(r[2])
                a(m[1]); a(r[3]); a(r[4]); a(r[5])
                a(m[2])
                a(f"v_add_u32 v{XA+3}, 16384, v{XA+3}")
                a(m[3])
                a(f"s_branch C_{tag}_LOOP")
                a.label(f"C_{tag}_TAIL")
                for x in m: a(x)
        stampc(a, 3)

    for i in range(32): a(f"v_mov_b32 v{accK[0]+i}, 0")
    for s in range(2):
        a(f"v_mov_b32 v{pK[s]+6}, v1"); a(f"v_mov_b32 v{pK[s]+7}, v1")
    a("v_and_b32 v15, 0x33, v0")
    a("v_bfe_u32 v1, v0, 2, 1")
    a("v_lshl_add_u32 v15, v1, 3, v15")
    a("v_bfe_u32 v1, v0, 3, 1")
    a("v_lshl_add_u32 v15, v1, 2, v15")
    a("v_lshlrev_b32 v15, 4, v15")
    a("s_lshl_b32 s58, s25, 1")
    a("s_add_u32 s58, s58, s93")
    a("s_lshl_b32 s58, s58, 2")
    a("s_add_u32 s58, s58, s34")
    a(f"s_mul_i32 s58, s58, {PAD}")
    a("s_lshl_b32 s59, s29, 1")
    a("s_add_u32 s59, s59, s92")
    a("s_lshl_b32 s59, s59, 13")
    a("s_add_u32 s58, s58, s59")
    a("s_add_u32 s59, s58, 4096")
    mainloop("B", True)
    a("s_nop 9")
    for s in range(2):
        cvt(a, pK[s], accK[s], 0, 6)
        a("s_mov_b32 exec_hi, 0")
        cvt(a, pK[s], accK[s], 6, 8)
        a("s_mov_b32 exec_hi, -1")
        a(f"buffer_store_dwordx4 {vr(pK[s],4)}, v15, {WSR}, s{58+s} offen sc1")
        a(f"buffer_store_dwordx4 {vr(pK[s]+4,4)}, v15, {WSR}, s{58+s} offen offset:1024 sc1")
    for s in range(2):
        a("s_mov_b64 exec, s[56:57]")
        cvt(a, pV[s], accV[s])
        a("s_mov_b64 exec, -1")
        a(f"buffer_store_dwordx4 {vr(pV[s],4)}, v13, {WSR}, s{58+s} offen offset:2048 sc1")
        a(f"buffer_store_dwordx4 {vr(pV[s]+4,4)}, v13, {WSR}, s{58+s} offen offset:3072 sc1")
    a("s_branch C_1B")

    a.label("C_A")
    for i in range(32): a(f"v_mov_b32 v{accK[0]+i}, 1.0")
    for s in range(2):
        for i in range(8): a(f"v_mov_b32 v{pK[s]+i}, 0")
    mainloop("A", False)
    a("s_nop 9")
    for s in range(2): phi(a, accK[s], FR)
    a("s_mov_b64 exec, s[56:57]")
    for s in range(2):
        cvt(a, pK[s], accK[s]); cvt(a, pV[s], accV[s])
    a("s_mov_b64 exec, -1")
    a("s_nop 1")
    D = accV[0]
    a(f"{MF} {vr(D,16)}, {vr(pK[0],4)}, {vr(pV[0],4)}, 0")
    a(f"{MF} {vr(D,16)}, {vr(pK[0]+4,4)}, {vr(pV[0]+4,4)}, {vr(D,16)}")
    a(f"{MF} {vr(D,16)}, {vr(pK[1],4)}, {vr(pV[1],4)}, {vr(D,16)}")
    a(f"{MF} {vr(D,16)}, {vr(pK[1]+4,4)}, {vr(pV[1]+4,4)}, {vr(D,16)}")

    a.label("C_1B")
    stampc(a, 4)
    QA, QB = 64, 80
    def qreads(k):
        f = FR + 12*(k & 3); d, kk = k >> 3, k & 7
        c = k >> 2
        o = ((7+d) % 3)*16384 + kk*1024
        return [f"ds_read_b128 {vr(f,4)}, v{XQ+(k&3)} offset:{(c&3)*16384}",
                f"ds_read_b64_tr_b16 {vr(f+4,2)}, v{WQ} offset:{o}",
                f"ds_read_b64_tr_b16 {vr(f+6,2)}, v{WQ} offset:{o+256}",
                f"ds_read_b64_tr_b16 {vr(f+8,2)}, v{WQ} offset:{o+8192}",
                f"ds_read_b64_tr_b16 {vr(f+10,2)}, v{WQ} offset:{o+8192+256}"]
    for k in (0, 1):
        for r in qreads(k): a(r)
    for k in range(28):
        f = FR + 12*(k & 3)
        r = qreads(k+2) if k+2 < 28 else []
        nout = 5 if k+1 < 28 else 0
        bar = (k+2) < 28 and (k+2) % 8 == 0
        if bar:
            if k == 14: a("s_waitcnt vmcnt(0) lgkmcnt(0)")
            else: a("s_waitcnt lgkmcnt(0)")
            a("s_barrier")
        else:
            a(f"s_waitcnt lgkmcnt({nout+2})")
        a(f"{MF} {vr(QA,16)}, {vr(f+4,4)}, {vr(f,4)}, {'1.0' if k == 0 else vr(QA,16)}")
        for x in r[:3]: a(x)
        if not bar: a(f"s_waitcnt lgkmcnt({nout + len(r[:3])})")
        a(f"{MF} {vr(QB,16)}, {vr(f+8,4)}, {vr(f,4)}, {'0' if k == 0 else vr(QB,16)}")
        for x in r[3:]: a(x)
        if 10 <= k <= 13:
            a(f"v_add_u32 v{XQ+((k+2)&3)}, 65536, v{XQ+((k+2)&3)}")
    stampc(a, 5)
    a("s_lshl_b32 s60, s27, 12")
    a(f"s_add_u32 s60, s60, {L_KVD}")
    a("v_add_u32 v1, s60, v13")
    for q in range(4):
        a(f"ds_write_b128 v1, {vr(D+4*q,4)} offset:{1024*q}")
    a("s_lshl_b32 s60, s27, 11")
    a(f"s_add_u32 s60, s60, {L_QD}")
    a("v_add_u32 v1, s60, v13")
    for i in (38, 39, 46, 47): a(f"v_mov_b32 v{i}, 0")
    a("s_nop 1")
    phi(a, QA, FR)
    a(f"v_mov_b32 v14, v{QB+12}")
    a(f"v_mov_b32 v15, v{QB+12}")
    a(f"s_mov_b32 s62, {f32(QSCALE)}")
    a(f"s_mov_b32 s63, {f32(QSCALE)}")
    a("v_permlane32_swap_b32 v15, v14")
    a(f"v_mul_f32 v14, {f32(-LOG2E)}, v14")
    a("v_exp_f32 v14, v14")
    vmul(a, QB, "s62", 16)
    a("v_add_f32 v14, 1.0, v14")
    a("v_rcp_f32 v14, v14")
    cvt(a, 32, QB, 0, 6); cvt(a, 40, QA, 0, 6)
    a("s_mov_b32 exec_hi, 0")
    cvt(a, 32, QB, 6, 8); cvt(a, 40, QA, 6, 8)
    a("s_mov_b32 exec_hi, -1")
    a("ds_write_b128 v1, v[32:35]")
    a("ds_write_b128 v1, v[36:39] offset:1024")
    a("ds_write_b128 v1, v[40:43] offset:8192")
    a("ds_write_b128 v1, v[44:47] offset:9216")
    a("s_lshl_b32 s60, s27, 8")
    a(f"s_add_u32 s60, s60, {L_G}")
    a("v_lshl_add_u32 v1, v0, 2, s60")
    a("ds_write_b32 v1, v14")
    a("v_sub_f32 v14, 1.0, v14")
    O = [16, 32, 48, 64]; S = [80, 96, 112, 128]; Q = [0, 8, 16, 24]; KV = [32, 48, 64, 80]
    RA = 144
    for s in range(4):
        a(f"s_add_u32 s60, s27, {1+s}")
        a("s_and_b32 s60, s60, 3")
        a("s_lshl_b32 s61, s60, 11")
        a(f"s_add_u32 s61, s61, {L_QD}")
        a(f"v_add_u32 v{RA+4+s}, s61, v13")
        a("s_mul_i32 s60, s60, 12288")
        a(f"s_add_u32 s60, s60, {RING + (4096*s if s < 3 else 0)}")
        a(f"v_add_u32 v{RA+s}, s60, v13")
    a("s_waitcnt lgkmcnt(0)")
    a("s_barrier")
    stampc(a, 6)
    for s in range(4):
        a(f"ds_read_b128 {ar(Q[s],4)}, v{RA+4+s}")
        a(f"ds_read_b128 {ar(Q[s]+4,4)}, v{RA+4+s} offset:1024")
    for i in range(64): a(f"v_mov_b32 v{O[0]+i}, 0")
    for i in range(8): a(f"v_mov_b32 v{S[3]+8+i}, 0")
    for i in range(4): a(f"v_accvgpr_write_b32 a{KV[3]+12+i}, 0")
    a("v_mov_b32 v2, 0xdddd")
    a("v_mov_b32 v3, 0")
    a(f"s_mul_i32 s60, s28, {4*PAD}")
    a("v_add_u32 v4, s60, v13")
    a(f"s_mul_i32 s60, s27, {PAD}")
    a("v_add_u32 v1, s60, v4")
    a("s_mov_b32 s58, 0")
    a("s_lshl_b32 s60, s25, 2")
    a("s_add_u32 s60, s60, s27")
    a("s_lshl_b32 s60, s60, 7")
    a(f"s_add_u32 s60, s60, {C_KV}")
    poll(a, "KV", WSR, "s60", 4, 3, 5)
    stampc(a, 7)
    def ld(dst, off, v="v1", so="s58"):
        return f"buffer_load_dwordx4 {ar(dst,4)}, {v}, {WSR}, {so} offen" + (f" offset:{off}" if off else "") + " sc1"
    adv = ["s_add_u32 s58, s58, 4096"]
    for n in range(3):
        for f in range(4): a(ld(KV[n]+4*f, 1024*f))
        for x in adv: a(x)
    a("s_mov_b32 s59, 3")
    a("s_waitcnt vmcnt(10) lgkmcnt(0)")
    stampc(a, 8)
    a(f"{MF} {vr(S[0],16)}, {ar(KV[0],4)}, {ar(Q[0],4)}, 0")
    a(f"{MF} {vr(S[0],16)}, {ar(KV[0]+4,4)}, {ar(Q[0]+4,4)}, {vr(S[0],16)}")
    a("s_waitcnt vmcnt(8)")
    a("s_nop 9")
    def unit(n, s, last):
        cur = S[s]; nxt = S[(s+1) & 3]; prv = S[(s-1) & 3]
        kn = KV[(n + (1 if s == 3 else 0)) & 3]; qn = Q[(s+1) & 3]
        vp = KV[(n - (1 if s == 0 else 0)) & 3]; vc = KV[n]
        lb = KV[(n+3) & 3]
        fin = last and n == 3
        e = [f"v_exp_f32 v{cur+i}, v{cur+i}" for i in range(16)]
        slot = [[], [], [], []]
        if not last or n == 0:
            slot[2].append("s_nop 0" if "noload" in X else ld(lb + 4*s, 1024*s))
            if s == 3: slot[3] += adv
        if s == 2 and not fin:
            slot[3].append(f"s_waitcnt vmcnt({7 if (not last or n == 0) else 4*(2-n)})")
        if not last and n == 3 and s == 1: slot[3].append("s_sub_u32 s59, s59, 1")
        if fin and s >= 2:
            for q in range(4):
                slot[q].append(f"ds_write_b128 v{RA+s-2}, {vr(O[s-2]+4*q,4)} offset:{1024*q}")
        if not (fin and s == 3): a(f"{MF} {vr(nxt,16)}, {ar(kn,4)}, {ar(qn,4)}, 0")
        for x in slot[0]: a(x)
        for x in e[0:4]: a(x)
        a(f"{SM} {vr(O[(s-1)&3],16)}, {ar(vp+12,4)}, {vr(prv+8,8)}, v2")
        for x in slot[1]: a(x)
        for x in e[4:8]: a(x)
        if not (fin and s == 3): a(f"{MF} {vr(nxt,16)}, {ar(kn+4,4)}, {ar(qn+4,4)}, {vr(nxt,16)}")
        for x in slot[2]: a(x)
        for x in e[8:12]: a(x)
        a(f"{SM} {vr(O[s],16)}, {ar(vc+8,4)}, {vr(cur,8)}, v2")
        for x in slot[3]: a(x)
        if len(slot[2]) + len(slot[3]) < 2 and not (fin and s == 3):
            a("s_nop 0") if len(slot[2]) + len(slot[3]) == 1 else (a("s_nop 0"), a("s_nop 0"))
        for x in e[12:16]: a(x)
    a(".p2align 6")
    a.label("C_ATT")
    for n in range(4):
        for s in range(4): unit(n, s, False)
    a("s_cmp_lg_u32 s59, 0")
    a("s_cbranch_scc1 C_ATT")
    for n in range(4):
        for s in range(4): unit(n, s, True)
        if n == 0:
            if STAMP == 4: stampc(a, 1)
            a("s_barrier")
            if STAMP == 4: stampc(a, 2)
    a("s_nop 1")
    a(f"{SM} {vr(O[3],16)}, {ar(KV[3]+12,4)}, {vr(S[3]+8,8)}, v2")
    stampc(a, 9)
    if "hidle" in X:
        stamp_out(a, 16)
        a("s_endpgm")
    for q in range(4):
        a(f"ds_write_b128 v{RA+2}, {vr(O[2]+4*q,4)} offset:{1024*q}")
    a("s_lshl_b32 s60, s24, 2")
    a("s_add_u32 s60, s60, s27")
    a(f"s_mul_i32 s60, s60, {PAD}")
    a("s_lshl_b32 s61, s28, 11")
    a("s_add_u32 s60, s60, s61")
    a(f"s_add_u32 s60, s60, {WS_OF + 32768}")
    a("v_mov_b32 v22, 0")
    a("v_mov_b32 v23, 0")
    a("s_setprio 1")
    a("s_waitcnt lgkmcnt(0)")
    a("s_barrier")
    for i in range(12):
        a(f"ds_read_b128 {vr(S[0]+4*i,4)}, v{RA+3} offset:{1024*i}")
    for j in range(3):
        for q in range(4):
            a(f"s_waitcnt lgkmcnt({11-4*j-q})")
            vadd(a, O[3]+4*q, S[j]+4*q, 4)
    a(f"v_mov_b32 v6, v{O[3]+12}")
    a(f"v_mov_b32 v7, v{O[3]+12}")
    a(f"s_mov_b32 s62, {f32(2.0**-40)}")
    a(f"s_mov_b32 s63, {f32(2.0**40)}")
    a("v_permlane32_swap_b32 v6, v7")
    a("v_cmp_nge_f32 vcc, v7, s62")
    a("v_cmp_nle_f32 s[64:65], v7, s63")
    a("v_rcp_f32 v7, v7")
    a("s_or_b64 vcc, vcc, s[64:65]")
    a("s_cbranch_scc1 C_FALLBACK")
    a.label("C_FIN")
    a("v_mul_f32 v7, v7, v14")
    vmul(a, O[3], "v7", 16)
    cvt(a, 16, O[3], 0, 4)
    a(f"buffer_store_dwordx4 v[16:19], v13, {WSR}, s60 offen sc1")
    cvt(a, 16, O[3], 4, 6)
    a("s_mov_b32 exec_hi, 0")
    cvt(a, 16, O[3], 6, 8)
    a("s_mov_b32 exec_hi, -1")
    a(f"buffer_store_dwordx4 v[20:23], v13, {WSR}, s60 offen offset:1024 sc1")
    stampc(a, 10)
    a("s_mul_i32 s60, s92, 28672")
    a("s_add_u32 s60, s60, 57344")
    p3_addr(a, 4, "s60", 8, 9)
    a("s_lshl_b32 s60, s27, 13")
    a(f"s_add_u32 s60, s60, {RING}")
    a("v_add_u32 v8, s60, v13")
    a("s_lshl_b32 s60, s27, 12")
    a(f"s_add_u32 s60, s60, {RING + 32768}")
    a("v_add_u32 v9, s60, v13")
    a("v_xor_b32 v10, 8192, v9")
    a("s_lshl_b32 s60, s30, 1")
    a("s_add_u32 s60, s60, s93")
    a("v_and_b32 v11, 31, v0")
    a("s_lshl_b32 s61, s60, 5")
    a("v_add_u32 v11, s61, v11")
    a("v_mul_u32_u24 v11, 896, v11")
    a("v_lshrrev_b32 v12, 5, v0")
    a("v_lshl_add_u32 v11, v12, 4, v11")
    a(f"s_mul_i32 s60, s60, {PAD}")
    a("s_lshl_b32 s61, s92, 14")
    a("s_add_u32 s60, s60, s61")
    a(f"s_add_u32 s60, s60, {WS_OF + 32768}")
    a("s_and_b32 s61, s30, 0xfe")
    a("s_add_u32 s61, s61, s92")
    a("s_lshl_b32 s61, s61, 7")
    a(f"s_add_u32 s61, s61, {C_OB}")
    a("s_lshl_b32 s62, s31, 7")
    a("s_lshl_b32 s63, s92, 6")
    a("s_add_u32 s62, s62, s63")
    srd(a, SX, 18, 1835008)
    a("s_waitcnt vmcnt(0)")
    a("s_barrier")
    stampc(a, 11)
    a("s_cmp_ge_u32 s32, 28")
    a("s_cbranch_scc1 C_EXIT")
    a("s_barrier")
    for i in range(8):
        a(f"ds_read_b128 {vr(16+4*i,4)}, v8 offset:{1024*i}")
    poll(a, "OB", WSR, "s61", 8, 3, 12)
    stampc(a, 12)
    p3_oloads(a, 13, "s60")
    p3_gemm(a, 4, [16, 32], [48, 56], False, True)
    stampc(a, 13)
    a("s_cmp_eq_u32 s92, 0")
    a("s_cbranch_scc1 C_KH0")
    a("s_nop 9")
    for i in range(16):
        a(f"v_swap_b32 v{16+i}, v{32+i}")
    a.label("C_KH0")
    a("s_nop 9")
    for i in range(4):
        a(f"ds_write_b128 v9, {vr(32+4*i,4)} offset:{1024*i}")
    a("s_waitcnt lgkmcnt(0)")
    a("s_barrier")
    for i in range(4):
        a(f"ds_read_b128 {vr(32+4*i,4)}, v10 offset:{1024*i}")
    for q in range(4):
        a(f"s_waitcnt lgkmcnt({3-q})")
        vadd(a, 16+4*q, 32+4*q, 4)
    cvt(a, 48, 16)
    a("s_nop 1")
    a("v_permlane32_swap_b32 v48, v50")
    a("v_permlane32_swap_b32 v49, v51")
    a("v_permlane32_swap_b32 v52, v54")
    a("v_permlane32_swap_b32 v53, v55")
    OFL = os.environ.get("OFL", "")
    a(f"buffer_store_dwordx4 v[48:51], v11, {R(SX)}, s62 offen {OFL}")
    a(f"buffer_store_dwordx4 v[52:55], v11, {R(SX)}, s62 offen offset:32 {OFL}")
    a.label("C_EXIT")
    if os.environ.get("DIAGT"):
        a("s_or_b32 s64, s2, s27")
        a("s_cmp_eq_u32 s64, 0")
        a("s_cbranch_scc0 C_DX")
        a.label("C_DL")
        a("s_memrealtime s[98:99]")
        a("s_waitcnt lgkmcnt(0)")
        a("s_sub_u32 s98, s98, s96")
        a("s_cmp_lt_u32 s98, %s" % os.environ["DIAGT"])
        a("s_cbranch_scc1 C_DL")
        a.label("C_DX")
    if "span" in X:
        a("s_waitcnt vmcnt(0)")
        a("s_memrealtime s[98:99]")
        a("s_memtime s[72:73]")
        srd(a, SD, 20, 256)
        a("s_waitcnt lgkmcnt(0)")
        a("s_mov_b64 exec, 1")
        a("v_mov_b32 v1, 0")
        a("s_not_b32 s96, s96")
        a("v_mov_b32 v2, s96")
        a(f"buffer_atomic_umax v2, v1, {R(SD)}, 0 offen offset:16")
        a("v_mov_b32 v2, s98")
        a(f"buffer_atomic_umax v2, v1, {R(SD)}, 0 offen offset:20")
        a("s_sub_u32 s72, s72, s70")
        a("v_mov_b32 v2, s72")
        a(f"buffer_atomic_umax v2, v1, {R(SD)}, 0 offen offset:24")
    stampc(a, 14)
    if STAMP: a("s_waitcnt vmcnt(0)")
    stampc(a, 15)
    stamp_out(a, 16)
    a("s_endpgm")
    a.label("C_FALLBACK")
    Qo = Q[3]; K0 = KV[0]; Sx = S[0]
    a("s_mov_b32 s58, 0")
    a("s_mov_b32 s59, 0")
    a(f"v_mov_b32 v8, {f32(float('-inf'))}")
    a.label("C_FB1")
    a(ld(K0, 0, "v4")); a(ld(K0+4, 1024, "v4"))
    a("s_waitcnt vmcnt(0)")
    a(f"{MF} {vr(Sx,16)}, {ar(K0,4)}, {ar(Qo,4)}, 0")
    a(f"{MF} {vr(Sx,16)}, {ar(K0+4,4)}, {ar(Qo+4,4)}, {vr(Sx,16)}")
    a("s_add_u32 s58, s58, 4096")
    a("s_add_u32 s59, s59, 1")
    a("s_and_b32 s61, s59, 15")
    a(f"s_cselect_b32 s61, 0, {PAD-65536}")
    a("s_add_u32 s58, s58, s61")
    a("s_nop 15")
    for i in range(8):
        a(f"v_max3_f32 v8, v8, v{Sx+2*i}, v{Sx+2*i+1}")
    a("s_cmp_lt_u32 s59, 64")
    a("s_cbranch_scc1 C_FB1")
    a("v_mov_b32 v9, v8")
    a("s_nop 1")
    a("v_permlane32_swap_b32 v8, v9")
    a("v_max_f32 v8, v8, v9")
    a("v_and_b32 v9, 0xffff0000, v8")
    a("v_sub_f32 v8, v8, v9")
    a("v_and_b32 v10, 0xffff0000, v8")
    a("v_sub_f32 v8, v8, v10")
    a("v_cvt_pk_bf16_f32 v9, -v9, -v10")
    a("v_cvt_pk_bf16_f32 v8, -v8, 0")
    a("s_mov_b32 exec_lo, 0")
    a(f"v_accvgpr_write_b32 a{Qo+6}, v9")
    a(f"v_accvgpr_write_b32 a{Qo+7}, v8")
    a("s_mov_b32 exec_lo, -1")
    for i in range(16): a(f"v_mov_b32 v{O[3]+i}, 0")
    a("s_mov_b32 s58, 0")
    a("s_mov_b32 s59, 0")
    a.label("C_FB2")
    for f in range(4): a(ld(K0+4*f, 1024*f, "v4"))
    a("s_waitcnt vmcnt(0)")
    a(f"{MF} {vr(Sx,16)}, {ar(K0,4)}, {ar(Qo,4)}, 0")
    a(f"{MF} {vr(Sx,16)}, {ar(K0+4,4)}, {ar(Qo+4,4)}, {vr(Sx,16)}")
    a("s_add_u32 s58, s58, 4096")
    a("s_add_u32 s59, s59, 1")
    a("s_and_b32 s61, s59, 15")
    a(f"s_cselect_b32 s61, 0, {PAD-65536}")
    a("s_add_u32 s58, s58, s61")
    a("s_nop 15")
    for i in range(16): a(f"v_exp_f32 v{Sx+i}, v{Sx+i}")
    a("s_nop 1")
    a(f"{SM} {vr(O[3],16)}, {ar(K0+8,4)}, {vr(Sx,8)}, v2")
    a(f"{SM} {vr(O[3],16)}, {ar(K0+12,4)}, {vr(Sx+8,8)}, v2")
    a("s_cmp_lt_u32 s59, 64")
    a("s_cbranch_scc1 C_FB2")
    a("s_nop 15")
    a(f"v_mov_b32 v6, v{O[3]+12}")
    a(f"v_mov_b32 v7, v{O[3]+12}")
    a("s_nop 1")
    a("v_permlane32_swap_b32 v6, v7")
    a("v_rcp_f32 v7, v7")
    a("s_nop 0")
    a("s_branch C_FIN")

def main():
    a = Asm()
    head = f"""; gated mix of a linear-attention block and a softmax-attention block (S=2048, D=448, H=16), one launch
; @launch grid=(256,1,1) block=(512,1,1) lds=163840
.amdgcn_target "amdgcn-amd-amdhsa--gfx950"
.text
"""
    gen(a)
    out = head + a.text() + '.section .rodata,"a"\n' + kernel_desc(KN, 256, 102, 160)
    path = sys.argv[1] if len(sys.argv) > 1 else f"cdna_kernels/{NAME}.s"
    open(path, "w").write(out)
main()
```

```python
import math, sys, os, struct
from asmlib import *

NAME = "gated_mix__linear_attn_block__mha_block__prompt"
KN = NAME + "_kernel"
WS_KV  = 0
WS_CNT = 5 << 20
WS_KVP = 6 << 20
WS_OF  = 8 << 20
PAD = int(os.environ.get("PAD", "69632"))
WS_ST  = 14 << 20
WS_SIZE = 16 << 20
LOG2E = 1.4426950408889634
QSCALE = LOG2E * 28 ** -0.5
EPS = 1e-6
ONE2 = 0x3F803F80
RING = 114688
L_KVD = RING
L_G   = RING + 16384 + 4096
L_KVF = RING + 16384 + 12288
L_CNT = RING + 16384 + 14336
L_QD  = RING + 32768
L_PQ  = RING + 32768 + 8192
STAMP = int(os.environ.get("STAMP", "0"))
X = set(os.environ.get("X", "").split(","))
MF = "v_mfma_f32_32x32x16_bf16"
SM = "v_smfmac_f32_32x32x32_bf16"
SX, SW, SWA, SWB, SWS, SD, SG = 36, 40, 44, 48, 52, 56, 60
WSR = f"s[{SWS}:{SWS+3}]"
SPIN = 200000
WFL = os.environ.get("WFL", "")
XFL = os.environ.get("XFL", "")

def srd(a, d, lo, size):
    a(f"s_mov_b32 s{d}, s{lo}")
    a(f"s_mov_b32 s{d+1}, s{lo+1}")
    a(f"s_mov_b32 s{d+2}, {size}")
    a(f"s_mov_b32 s{d+3}, 0x20000")
def R(d): return f"s[{d}:{d+3}]"

def stamp(a, i, mode=1):
    if not STAMP: return
    if mode is not None and mode != STAMP: return
    if i == 0: a("s_memrealtime s[96:97]")
    a("s_memrealtime s[94:95]" if os.environ.get("RT") else "s_memtime s[94:95]")
    a("s_waitcnt lgkmcnt(0)")
    a(f"s_mov_b32 s{70+i}, s94")
def stampc(a, i):
    if STAMP == 5: return
    stamp(a, i, None)
def stamp_out(a, n):
    if not STAMP: return
    a("s_memrealtime s[98:99]")
    a("s_waitcnt lgkmcnt(0)")
    a("s_mov_b64 exec, 1")
    a("s_lshl_b32 s94, s2, 3")
    a("s_add_u32 s94, s94, s35")
    a("s_lshl_b32 s94, s94, 7")
    a(f"s_add_u32 s94, s94, {WS_ST}")
    a("v_mov_b32 v1, 0")
    for i in range(n if STAMP != 5 else 0):
        a(f"v_mov_b32 v2, s{70+i}")
        a(f"buffer_store_dword v2, v1, {WSR}, s94 offen offset:{4*i}")
    a("v_mov_b32 v2, s96")
    a(f"buffer_store_dword v2, v1, {WSR}, s94 offen offset:120")
    a("v_mov_b32 v2, s98")
    a(f"buffer_store_dword v2, v1, {WSR}, s94 offen offset:124")

def dma_lane_w(a, vdst, vt0, vt1, rowstride):
    a(f"v_lshrrev_b32 v{vt0}, 4, v0")
    a(f"v_bfe_u32 v{vt1}, v0, 2, 2")
    a(f"v_and_b32 v{vdst}, 1, v{vt0}")
    if "noswz" not in X: a(f"v_xor_b32 v{vt1}, v{vt1}, v{vdst}")
    a(f"v_lshrrev_b32 v{vdst}, 1, v{vt1}")
    a(f"v_lshl_add_u32 v{vt0}, v{vt0}, 1, v{vdst}")
    a(f"v_mul_u32_u24 v{vt0}, {rowstride}, v{vt0}")
    a(f"v_and_b32 v{vt1}, 1, v{vt1}")
    a(f"v_lshl_add_u32 v{vt0}, v{vt1}, 6, v{vt0}")
    a(f"v_and_b32 v{vt1}, 3, v0")
    a(f"v_lshl_add_u32 v{vdst}, v{vt1}, 4, v{vt0}")

def tr_lane_addr(a, vdst, vb, vt0, vt1, hlshift):
    a(f"v_bfe_u32 v{vt0}, v0, 4, 1")
    a(f"v_lshl_add_u32 v{vb}, v{vt0}, 5, v{vb}")
    a(f"v_and_b32 v{vt0}, 3, v0")
    a(f"v_lshl_add_u32 v{vb}, v{vt0}, 3, v{vb}")
    a(f"v_bfe_u32 v{vt0}, v0, 2, 1")
    a(f"v_lshrrev_b32 v{vt1}, 6, v{vb}")
    a(f"v_lshl_add_u32 v{vt0}, v{vt0}, 1, v{vt1}")
    a(f"v_bfe_u32 v{vt1}, v0, 3, 1")
    a(f"v_xor_b32 v{vt0}, v{vt0}, v{vt1}")
    a(f"v_and_b32 v{vb}, 63, v{vb}")
    a(f"v_lshl_add_u32 v{vb}, v{vt0}, 6, v{vb}")
    a(f"v_lshrrev_b32 v{vt0}, 5, v0")
    a(f"v_lshl_add_u32 v{vt0}, v{vt0}, {hlshift}, v{vt1}")
    a(f"v_lshl_add_u32 v{vdst}, v{vt0}, 8, v{vb}")

C_KV, C_A, C_OA, C_OB = WS_CNT, WS_CNT + 128*128, WS_CNT + 256*128, WS_CNT + 512*128
NFLAG = 768
def poll(a, tag, srdreg, soff, nl, vl, vt, sleep=0, first=True):
    a(f"s_mov_b64 exec, {(1 << nl) - 1}")
    a(f"s_mov_b32 s68, {SPIN}")
    if sleep and first: a(f"s_branch POLL_{tag}")
    a.label(f"POLLS_{tag}")
    if sleep: a(f"s_sleep {sleep}")
    a.label(f"POLL_{tag}")
    a(f"buffer_load_dword v{vt}, v{vl}, {srdreg}, {soff} offen sc1")
    a("s_sub_u32 s68, s68, 1")
    a(f"s_cbranch_scc1 POLLX_{tag}")
    a("s_waitcnt vmcnt(0)")
    a(f"v_cmp_eq_u32 vcc, 0, v{vt}")
    a(f"s_cbranch_vccnz POLLS_{tag}")
    a.label(f"POLLX_{tag}")
    a("s_mov_b64 exec, -1")

def lds_wait(a, tag, vaddr, off, target, vt, sleep=1):
    a("s_mov_b64 exec, 1")
    a(f"s_mov_b32 s68, {SPIN}")
    a.label(f"LW_{tag}")
    a(f"s_sleep {sleep}")
    a(f"ds_read_b32 v{vt}, v{vaddr} offset:{off}")
    a("s_waitcnt lgkmcnt(0)")
    a(f"v_readfirstlane_b32 s69, v{vt}")
    a("s_sub_u32 s68, s68, 1")
    a(f"s_cbranch_scc1 LWX_{tag}")
    a(f"s_cmp_ge_u32 s69, {target}")
    a(f"s_cbranch_scc0 LW_{tag}")
    a.label(f"LWX_{tag}")
    a("s_mov_b64 exec, -1")

def signal(a, soff, vz, vt):
    a("s_mov_b64 exec, 1")
    a(f"v_mov_b32 v{vt}, 1")
    a(f"buffer_store_dword v{vt}, v{vz}, {WSR}, {soff} offen sc1")
    a("s_mov_b64 exec, -1")

def cvt(a, dst, src, lo=0, hi=8):
    for i in range(lo, hi):
        a(f"v_cvt_pk_bf16_f32 v{dst+i}, v{src+2*i}, v{src+2*i+1}")

def vadd(a, dst, src, n):
    for i in range(n): a(f"v_add_f32 v{dst+i}, v{dst+i}, v{src+i}")
def vmul(a, dst, mul, n):
    for i in range(n): a(f"v_mul_f32 v{dst+i}, {mul}, v{dst+i}")

def phi_list(src, T, n=16, grp=8):
    o = []
    for g0 in range(0, n, grp):
        o += [f"v_fma_f32 v{T+i}, v{src+g0+i}, s64, -s64" for i in range(grp)]
        o += [f"v_exp_f32_e64 v{T+i}, v{T+i} clamp" for i in range(grp)]
        o += [f"v_max_f32 v{src+g0+i}, v{src+g0+i}, v{T+i}" for i in range(grp)]
        o += [f"v_add_f32 v{src+g0+i}, s66, v{src+g0+i}" for i in range(grp)]
    return o

def p3_addr(a, v0a, mat_off_sgpr, swap_sgpr, vt0, vt1):
    a(f"v_mov_b32 v{v0a+1}, 0")
    tr_lane_addr(a, v0a, v0a+1, vt0, vt1, 1)
    a(f"v_add_u32 v{v0a}, {mat_off_sgpr}, v{v0a}")
    a(f"v_xor_b32 v{v0a}, {swap_sgpr}, v{v0a}")
    a(f"v_xor_b32 v{v0a+1}, 64, v{v0a}")
    a(f"v_lshrrev_b32 v{vt0}, 5, v0")
    a(f"v_lshlrev_b32 v{vt0}, 9, v{vt0}")
    a(f"v_sub_u32 v{v0a+2}, v{v0a}, v{vt0}")
    a(f"v_sub_u32 v{v0a+3}, v{v0a+1}, v{vt0}")

def p3_oload(ks, vlane16, so):
    o = [f"buffer_load_dwordx4 {ar(4*ks,4)}, v{vlane16}, {WSR}, {so} offen offset:{1024*(ks&3)} sc1"]
    if ks & 3 == 3 and ks < 15: o.append(f"s_add_u32 {so}, {so}, 4096")
    return o

def p3_gemm(a, va, ACC, WF, first_zero, npre, vlane16, so):
    def reads(ks):
        f = WF[ks & 1]; hh, m = ks >> 1, ks & 1
        o = (14*hh + 8*m) * 256
        last = (ks == 15)
        return [f"ds_read_b64_tr_b16 {vr(f,2)}, v{va} offset:{o}",
                f"ds_read_b64_tr_b16 {vr(f+2,2)}, v{va+2 if last else va} offset:{o+1024}",
                f"ds_read_b64_tr_b16 {vr(f+4,2)}, v{va+1} offset:{o}",
                f"ds_read_b64_tr_b16 {vr(f+6,2)}, v{va+3 if last else va+1} offset:{o+1024}"]
    for x in reads(0): a(x)
    issued = npre
    for ks in range(16):
        f = WF[ks & 1]
        rd = reads(ks+1) if ks < 15 else []
        c0 = "0" if (first_zero and ks == 0) else vr(ACC[0], 16)
        c1 = "0" if (first_zero and ks == 0) else vr(ACC[1], 16)
        if issued < 16:
            for x in p3_oload(issued, vlane16, so): a(x)
            issued += 1
        a(f"s_waitcnt vmcnt({issued-1-ks}) lgkmcnt(2)")
        a(f"{MF} {vr(ACC[0],16)}, {vr(f,4)}, {ar(4*ks,4)}, {c0}")
        for x in rd[:2]: a(x)
        a(f"s_waitcnt lgkmcnt({2 if rd else 0})")
        a(f"{MF} {vr(ACC[1],16)}, {vr(f+4,4)}, {ar(4*ks,4)}, {c1}")
        for x in rd[2:]: a(x)

def p3_oloads(a, vlane16, so, n):
    for ks in range(n):
        for x in p3_oload(ks, vlane16, so): a(x)

E = lambda k, d: os.environ.get(k, d)
SIGK = int(E("SIGK", "6"))
def gen(a):
    kernel_head(a, KN)
    a("s_cmp_ge_u32 s2, 256")
    a("s_cbranch_scc1 L_END")
    a("s_load_dwordx16 s[4:19], s[0:1], 0")
    a("s_load_dwordx4 s[20:23], s[0:1], 64")
    if STAMP or E("DIAGT", ""):
        a("s_memrealtime s[96:97]")
        a("s_memtime s[70:71]")
    a("v_lshrrev_b32 v1, 6, v0")
    a("v_and_b32 v0, 63, v0")
    a("v_readfirstlane_b32 s27, v1")
    a("s_and_b32 s64, s2, 7")
    a("s_lshr_b32 s32, s2, 3")
    a("s_lshr_b32 s34, s64, 1")
    a("s_and_b32 s33, s64, 1")
    a("s_lshr_b32 s29, s32, 3")
    a("s_lshl_b32 s24, s34, 2")
    a("s_add_u32 s24, s24, s29")
    a("s_and_b32 s26, s32, 1")
    a("s_bfe_u32 s25, s32, 0x20001")
    a("s_lshl_b32 s65, s33, 2")
    a("s_add_u32 s25, s25, s65")
    a("s_lshl_b32 s28, s25, 1")
    a("s_cmp_eq_u32 s26, s33" if E("HS", "0") == "0" else "s_cmp_lg_u32 s26, s33")
    a("s_addc_u32 s28, s28, 0")
    a("s_mul_i32 s30, s32, 37")
    a("s_lshr_b32 s30, s30, 8")
    a("s_mul_i32 s31, s30, 7")
    a("s_sub_u32 s31, s32, s31")
    a("s_lshl_b32 s64, s64, 2")
    a("s_add_u32 s30, s30, s64")
    a("s_mov_b32 s35, s27")
    a("s_cmp_ge_u32 s27, 4")
    a("s_cbranch_scc0 L_COMPUTE")
    helper(a)
    compute(a)
    a.label("L_END")
    a("s_endpgm")
    a.label("L_CODE_END")

def helper(a):
    a("s_sub_u32 s27, s27, 4")
    a("v_lshrrev_b32 v1, 3, v0")
    a("s_lshl_b32 s64, s24, 7")
    a("s_lshl_b32 s65, s27, 5")
    a("s_add_u32 s64, s64, s65")
    a("v_add_u32 v1, s64, v1")
    a("v_mul_u32_u24 v1, 896, v1")
    a("v_lshrrev_b32 v2, 4, v0")
    a("v_and_b32 v3, 7, v0")
    a("v_xor_b32 v2, v2, v3")
    a("v_lshl_add_u32 v2, v2, 4, v1")
    a("v_xor_b32 v3, 64, v2")
    a("v_add_u32 v3, 7168, v3")
    a("v_add_u32 v4, 14336, v2")
    a("v_add_u32 v5, 14336, v3")
    dma_lane_w(a, 6, 10, 11, 2688)
    a("s_mul_i32 s64, s27, 43008")
    a("s_mul_i32 s65, s25, 112")
    a("s_add_u32 s64, s64, s65")
    a("s_add_u32 s64, s64, 896")
    a("v_add_u32 v6, s64, v6")
    a("v_add_u32 v7, 21504, v6")
    a("v_add_u32 v8, 896, v6")
    a("v_add_u32 v9, 896, v7")
    a("s_lshl_b32 s66, s27, 12")
    a("s_lshl_b32 s67, s27, 11")
    a(f"s_add_u32 s67, s67, {RING}")
    a(f"s_mov_b32 s{SX+2}, 1835008")
    a(f"s_mov_b32 s{SX+3}, 0x20000")
    a(f"s_mov_b32 s{SW+2}, 1204224")
    a(f"s_mov_b32 s{SW+3}, 0x20000")
    a("s_cmp_eq_u32 s26, 0")
    a("s_waitcnt lgkmcnt(0)")
    a(f"s_mov_b32 s{SX}, s4")
    a(f"s_mov_b32 s{SX+1}, s5")
    a(f"s_cselect_b32 s{SW}, s6, s12")
    a(f"s_cselect_b32 s{SW+1}, s7, s13")
    vm = []
    def xload(c):
        for q in range(4):
            a(f"s_add_u32 m0, s66, {c*16384 + q*1024}")
            a(f"s_mov_b32 s64, {c*128}" if q == 0 else "s_nop 0")
            a(f"buffer_load_dwordx4 v{2+q}, {R(SX)}, s64 offen lds"); vm.append(("x", c))
    def wload(c):
        for pt in range(2):
            for u in range(2):
                a(f"s_add_u32 m0, s67, {(c%3)*16384 + pt*8192 + u*1024}")
                a(f"s_mov_b32 s65, {c*172032}" if pt + u == 0 else "s_nop 0")
                a(f"buffer_load_dwordx4 v{6+2*pt+u}, {R(SW)}, s65 offen lds"); vm.append(("w", c))
    def qload(d):
        for mat in range(2):
            for u in range(2):
                a(f"s_add_u32 m0, s67, {((7+d)%3)*16384 + mat*8192 + u*1024}")
                a(f"s_mov_b32 s65, {d*344064}" if mat + u == 0 else "s_nop 0")
                a(f"buffer_load_dwordx4 v{10+u}, {R(SWA if mat == 0 else SWB)}, s65 offen lds"); vm.append(("q", d))
    def waitfor(*tags):
        last = max(i for i, tg in enumerate(vm) if tg in tags)
        a(f"s_waitcnt vmcnt({len(vm)-1-last})")
    def patch(d):
        a("s_mov_b32 exec_hi, 0")
        a(f"ds_write_b16 v16, v{12+d} offset:{((7+d)%3)*16384}")
        a("s_mov_b32 exec_hi, -1")
        a("s_waitcnt lgkmcnt(0)")
    def initcheck(tag):
        a("v_readfirstlane_b32 s69, v17")
        a("s_nop 0")
        a("s_cmp_lg_u32 s69, 0")
        a(f"s_cbranch_scc1 H_INIT_OK{tag}")
        poll(a, "INIT" + tag, R(SD), "0", 1, 18, 17)
        a.label(f"H_INIT_OK{tag}")
    stamp(a, 1, 2)
    xload(0); wload(0)
    srd(a, SWA, 6, 1204224); srd(a, SWB, 12, 1204224)
    srd(a, SWS, 22, WS_SIZE); srd(a, SD, 20, 256); srd(a, SG, 16, 896)
    a("v_lshrrev_b32 v10, 2, v0")
    a("s_lshl_b32 s64, s27, 5")
    a("v_add_u32 v10, s64, v10")
    a("v_mul_u32_u24 v10, 2688, v10")
    a("v_and_b32 v11, 3, v0")
    a("v_lshl_add_u32 v10, v11, 4, v10")
    a("s_mul_i32 s65, s28, 56")
    a("v_add_u32 v10, s65, v10")
    a("v_add_u32 v11, 43008, v10")
    a("v_add_u32 v17, s64, v0")
    a("v_lshlrev_b32 v16, 6, v17")
    a(f"v_add_u32 v16, {RING + 8192 + 56}, v16")
    a("v_lshlrev_b32 v17, 1, v17")
    a("s_and_b32 s64, s32, 0x1e")
    a("s_and_b32 s65, s27, 1")
    a("s_add_u32 s64, s64, s65")
    a("s_mul_i32 s64, s64, 14")
    a("v_lshrrev_b32 v20, 2, v0")
    a("v_add_u32 v20, s64, v20")
    a("v_mul_u32_u24 v20, 2688, v20")
    a("v_and_b32 v21, 3, v0")
    a("v_lshl_add_u32 v20, v21, 7, v20")
    a("s_mul_i32 s64, s33, 384")
    a("v_add_u32 v20, s64, v20")
    a("v_mov_b32 v18, 0")
    a("s_barrier")
    if E("AF", "1") == "1":
        a("s_cmp_eq_u32 s26, 0")
        a("s_cbranch_scc0 H_C1B")
        a("s_waitcnt vmcnt(0)")
        a("s_barrier")
        xload(1); wload(1)
        a("s_branch H_C1D")
        a.label("H_C1B")
        del vm[8:]
    xload(1); wload(1)
    stamp(a, 1); stamp(a, 2, 2)
    for c in range(5):
        waitfor(("x", c), ("w", c)); a("s_barrier"); stamp(a, 3+c, 2)
        if c == 0:
            stamp(a, 2)
            a.label("H_C1D")
        xload(c+2); wload(c+2)
        if c == 1:
            for d in range(4):
                a(f"buffer_load_ushort v{12+d}, v17, {R(SG)}, 0 offen offset:{256*d}"); vm.append(("g", d))
        if c == 3:
            a(f"buffer_load_dword v17, v18, {R(SD)}, 0 offen sc1"); vm.append(("d", 0))
    a("s_cmp_eq_u32 s26, 0")
    if E("PQ", "0") == "1":
        a("s_cbranch_scc0 H_NOPQ")
        a("s_cmp_ge_u32 s27, 2")
        a("s_cselect_b32 s88, s12, s6")
        a("s_cselect_b32 s89, s13, s7")
        a("s_mov_b32 s90, 1204224")
        a("s_mov_b32 s91, 0x20000")
        a("s_mov_b32 exec_hi, 0xffffff")
        a("buffer_load_dword a64, v20, s[88:91], 0 offen")
        a("s_mov_b64 exec, -1")
        a("s_waitcnt vmcnt(9)")
        a("s_branch H_PQD")
        a.label("H_NOPQ")
    waitfor(("x",5),("w",5))
    a.label("H_PQD")
    a("s_barrier"); stamp(a, 8, 2)
    qload(0)
    a("s_cmp_eq_u32 s26, 0")
    a("s_cbranch_scc0 H_B6B")
    if E("PQ", "0") == "1": a("s_waitcnt vmcnt(5)")
    else: a("s_waitcnt vmcnt(4)")
    a("s_barrier")
    qload(1)
    a("s_waitcnt vmcnt(4)"); patch(0); a("s_barrier")
    qload(2)
    a("s_waitcnt vmcnt(4)")
    patch(1)
    initcheck("A")
    a("s_barrier")
    a("s_branch H_B7D")
    a.label("H_B6B")
    a("s_waitcnt vmcnt(4)")
    a("s_barrier")
    a("s_waitcnt vmcnt(0)"); patch(0); a("s_barrier")
    qload(1)
    a("s_lshl_b32 s64, s25, 4")
    a("s_add_u32 s64, s64, s24")
    a("s_lshl_b32 s64, s64, 7")
    a(f"s_add_u32 s64, s64, {C_KV}")
    initcheck("B")
    a("s_cmp_eq_u32 s27, 3")
    a("s_barrier")
    a("s_cbranch_scc0 H_NOSIGKV")
    signal(a, "s64", 18, 19)
    qload(2)
    a("s_waitcnt vmcnt(5)")
    a("s_branch H_SIGD")
    a.label("H_NOSIGKV")
    qload(2)
    a("s_waitcnt vmcnt(4)")
    a.label("H_SIGD")
    patch(1)
    a.label("H_B7D")
    stamp(a, 10, 2)
    a("s_barrier")
    a("s_cmp_ge_u32 s27, 2")
    a("s_cbranch_scc1 H_NOQ3")
    qload(3)
    a("s_waitcnt vmcnt(4)"); patch(2)
    a("s_branch H_Q3")
    a.label("H_NOQ3")
    a("s_waitcnt vmcnt(0)"); patch(2)
    a.label("H_Q3")
    a("s_barrier")
    a("s_waitcnt vmcnt(0)")
    a("s_cmp_ge_u32 s27, 2")
    a("s_cbranch_scc1 H_NOP3")
    patch(3)
    a.label("H_NOP3")
    a("s_barrier")
    a(f"v_mov_b32 v1, {L_CNT}")
    for i in range(8, 12): a(f"v_mov_b32 v{i}, 0")
    a("ds_write_b128 v1, v[8:11]")
    a("ds_write_b128 v1, v[8:11] offset:16")
    a("v_lshlrev_b32 v2, 4, v0")
    dma_lane_w(a, 3, 4, 5, 896)
    a("s_mul_i32 s64, s27, 7168")
    a("s_lshl_b32 s65, s31, 7")
    a("s_add_u32 s64, s64, s65")
    a("v_add_u32 v3, s64, v3")
    a("s_lshr_b32 s65, s27, 1")
    a("s_mul_i32 s64, s65, 28672")
    a("s_lshl_b32 s65, s65, 6")
    p3_addr(a, 4, "s64", "s65", 8, 9)
    srd(a, SWA, 8, 401408); srd(a, SWB, 14, 401408)
    a("s_lshl_b32 s65, s25, 2")
    a("s_add_u32 s65, s65, s27")
    a("s_lshl_b32 s65, s65, 9")
    a(f"s_add_u32 s65, s65, {C_KV}")
    a("v_lshlrev_b32 v10, 7, v0")
    stamp(a, 3)
    poll(a, "KV", WSR, "s65", 4, 10, 11, int(E("KS", "1")))
    a("s_waitcnt lgkmcnt(0)")
    a("s_barrier")
    a("s_setprio 2")
    stamp(a, 4); stamp(a, 1, 3); stamp(a, 1, 7)
    PQ, G, KF, NUM, PA = 80, 88, 92, 100, 116
    def wo_dma(tag, srdreg, base, lo, hi, depth):
        if hi <= lo: return
        a("s_lshl_b32 s66, s27, 10")
        a(f"s_add_u32 s66, s66, {base + lo*4096}")
        a(f"s_mov_b32 s63, {lo*28672}")
        a.label(f"H_WO{tag}")
        a("s_mov_b32 m0, s66")
        a("s_add_u32 s66, s66, 4096")
        a(f"buffer_load_dwordx4 v3, {R(srdreg)}, s63 offen lds")
        a("s_add_u32 s63, s63, 28672")
        a(f"s_waitcnt vmcnt({depth})")
        a(f"s_cmp_lt_u32 s63, {hi*28672}")
        a(f"s_cbranch_scc1 H_WO{tag}")
    W1 = int(E("W1", "0"))
    a("s_cmp_ge_u32 s32, 28")
    a("s_cbranch_scc1 H_NOWO0")
    wo_dma("0", SWA, 0, 0, W1, int(E("WOD0", "2")))
    a.label("H_NOWO0")
    if "hskip" in X:
        a("s_branch H_SKIP")
    lds_wait(a, "C0", 1, 8, 4, 9)
    stamp(a, 2, 7)
    a("s_lshl_b32 s64, s27, 11")
    a(f"s_add_u32 s64, s64, {L_PQ}")
    a("v_add_u32 v8, s64, v2")
    a(f"ds_read_b128 {vr(PQ,4)}, v8")
    a(f"ds_read_b128 {vr(PQ+4,4)}, v8 offset:1024")
    a("s_lshl_b32 s64, s27, 8")
    a(f"s_add_u32 s64, s64, {L_G}")
    a("v_lshl_add_u32 v8, v0, 2, s64")
    a(f"ds_read_b32 v{G}, v8")
    a("s_cmp_ge_u32 s27, 2")
    a("s_cselect_b32 s64, s26, 1")
    a("s_cmp_eq_u32 s64, 0")
    a("s_cbranch_scc0 H_NOKVP")
    a("s_and_b32 s65, s27, 1")
    a("s_lshl_b32 s64, s65, 12")
    a(f"s_add_u32 s64, s64, {L_KVD}")
    a("v_add_u32 v8, s64, v2")
    for i in range(8):
        a(f"ds_read_b128 {vr(16+4*i,4)}, v8 offset:{1024*(i&3) + 8192*(i>>2)}")
    a("s_lshl_b32 s64, s25, 1")
    a("s_add_u32 s64, s64, s65")
    a(f"s_mul_i32 s64, s64, {PAD}")
    a("s_lshl_b32 s65, s24, 12")
    a("s_add_u32 s64, s64, s65")
    a(f"s_add_u32 s64, s64, {WS_KVP}")
    a("s_waitcnt lgkmcnt(0)")
    vadd(a, 16, 32, 16)
    for q in range(4):
        a(f"buffer_store_dwordx4 {vr(16+4*q,4)}, v2, {WSR}, s64 offen offset:{1024*q} sc1")
    a("s_lshl_b32 s64, s25, 4")
    a("s_add_u32 s64, s64, s24")
    a("s_lshl_b32 s64, s64, 7")
    a(f"s_add_u32 s64, s64, {C_A}")
    a("v_mov_b32 v11, 1")
    stamp(a, 3, 7)
    a("s_waitcnt vmcnt(0)")
    stamp(a, 4, 7)
    a("s_mov_b64 exec, 1")
    a("ds_add_rtn_u32 v9, v1, v11 offset:12")
    a("s_waitcnt lgkmcnt(0)")
    a("v_readfirstlane_b32 s69, v9")
    a("s_mov_b64 exec, -1")
    a("s_cmp_eq_u32 s69, 1")
    a("s_cbranch_scc0 H_NOKVP")
    signal(a, "s64", 10, 11)
    a.label("H_NOKVP")
    stamp(a, 5, 7)
    a("s_cmp_ge_u32 s32, 28")
    a("s_cbranch_scc1 H_NOWOA")
    wo_dma("A", SWA, 0, W1, 14, int(E("WOD", "5")))
    wo_dma("B", SWB, 57344, 0, 14, int(E("WOD", "5")))
    a.label("H_NOWOA")
    stamp(a, 2, 3); stamp(a, 6, 7)
    a("s_lshl_b32 s64, s25, 11")
    a(f"s_add_u32 s64, s64, {C_A}")
    if "nopolla" not in X:
        a("s_cmp_eq_u32 s27, 0")
        a("s_cbranch_scc0 H_AW")
        poll(a, "A", WSR, "s64", 16, 10, 11, int(E("AS", "16")))
        a("v_mov_b32 v11, 1")
        a("ds_write_b32 v1, v11 offset:16")
        a("s_branch H_AD")
        a.label("H_AW")
        lds_wait(a, "A", 1, 16, 1, 9, 4)
        a.label("H_AD")
    stamp(a, 3, 3); stamp(a, 7, 7)
    a(f"s_mul_i32 s64, s28, {PAD}")
    a("s_lshl_b32 s65, s27, 10")
    a("s_add_u32 s64, s64, s65")
    a(f"s_add_u32 s64, s64, {WS_KVP}")
    KD = int(E("KD", "2"))
    for i in range(16):
        if "nokvl" not in X: a(f"buffer_load_dwordx4 {vr(16+4*i,4)}, v2, {WSR}, s64 offen sc1")
        a("s_add_u32 s64, s64, 4096")
        if i > KD:
            a(f"s_waitcnt vmcnt({KD})")
            if "nokva" not in X: vadd(a, 16, 16+4*(i-KD), 4)
    stamp(a, 4, 3)
    for j in range(16-KD, 16):
        a(f"s_waitcnt vmcnt({15-j})")
        vadd(a, 16, 16+4*j, 4)
    stamp(a, 5, 3)
    a("v_cvt_pk_bf16_f32 v16, v16, v17")
    a("v_cvt_pk_bf16_f32 v17, v18, v19")
    a("s_lshr_b32 s64, s27, 1")
    a("s_lshl_b32 s64, s64, 10")
    a("s_and_b32 s65, s27, 1")
    a("s_lshl_b32 s65, s65, 3")
    a("s_add_u32 s64, s64, s65")
    a(f"s_add_u32 s64, s64, {L_KVF}")
    a("v_add_u32 v8, s64, v2")
    a("ds_write_b64 v8, v[16:17]")
    a("v_mov_b32 v11, 1")
    a("s_waitcnt lgkmcnt(0)")
    a("s_mov_b64 exec, 1")
    a("ds_add_u32 v1, v11")
    lds_wait(a, "C1", 1, 0, 4, 9)
    stamp(a, 6, 3)
    a(f"v_add_u32 v8, {L_KVF}, v2")
    a(f"ds_read_b128 {vr(KF,4)}, v8")
    a(f"ds_read_b128 {vr(KF+4,4)}, v8 offset:1024")
    a("s_waitcnt lgkmcnt(0)")
    a(f"{MF} {vr(NUM,16)}, {vr(KF,4)}, {vr(PQ,4)}, 0")
    a(f"{MF} {vr(NUM,16)}, {vr(KF+4,4)}, {vr(PQ+4,4)}, {vr(NUM,16)}")
    a("s_lshl_b32 s64, s24, 2")
    a("s_add_u32 s64, s64, s27")
    a(f"s_mul_i32 s64, s64, {PAD}")
    a("s_lshl_b32 s65, s28, 11")
    a("s_add_u32 s64, s64, s65")
    a(f"s_add_u32 s64, s64, {WS_OF}")
    a(f"v_mov_b32 v{PA+6}, 0")
    a(f"v_mov_b32 v{PA+7}, 0")
    a("s_nop 15")
    a(f"v_mov_b32 v8, v{NUM+12}")
    a(f"v_mov_b32 v9, v{NUM+12}")
    a("s_nop 1")
    a("v_permlane32_swap_b32 v8, v9")
    a(f"v_add_f32 v9, {f32(EPS)}, v9")
    a("v_rcp_f32 v9, v9")
    a("s_nop 0")
    a(f"v_mul_f32 v9, v9, v{G}")
    vmul(a, NUM, "v9", 16)
    cvt(a, PA, NUM, 0, 6)
    a("s_mov_b32 exec_hi, 0")
    cvt(a, PA, NUM, 6, 8)
    a("s_mov_b32 exec_hi, -1")
    a(f"buffer_store_dwordx4 {vr(PA,4)}, v2, {WSR}, s64 offen sc1")
    a(f"buffer_store_dwordx4 {vr(PA+4,4)}, v2, {WSR}, s64 offen offset:1024 sc1")
    stamp(a, 7, 3)
    a("s_waitcnt vmcnt(0)")
    stamp(a, 8, 3)
    a("s_mov_b64 exec, 1")
    a("ds_add_rtn_u32 v9, v1, v11 offset:4")
    a("s_waitcnt lgkmcnt(0)")
    a("v_readfirstlane_b32 s69, v9")
    a("s_mov_b64 exec, -1")
    a("s_cmp_eq_u32 s69, 3")
    a("s_cbranch_scc0 H_NOSIGOA")
    if "hskip" in X:
        a.label("H_SKIP")
        a("s_cmp_eq_u32 s27, 0")
        a("s_cbranch_scc0 H_NOSIGOA")
    a("s_lshl_b32 s64, s24, 4")
    a("s_add_u32 s64, s64, s28")
    a("s_lshl_b32 s64, s64, 7")
    a(f"s_add_u32 s64, s64, {C_OA}")
    signal(a, "s64", 10, 11)
    a.label("H_NOSIGOA")
    stamp(a, 5); stamp(a, 9, 3)
    a("s_setprio 0")
    a("s_barrier")
    a("s_cmp_ge_u32 s32, 28")
    a("s_cbranch_scc1 H_NOP3B")
    stamp(a, 6)
    a("s_and_b32 s64, s30, 0xfe")
    a("s_lshr_b32 s65, s27, 1")
    a("s_add_u32 s64, s64, s65")
    a("s_lshl_b32 s64, s64, 10")
    a(f"s_add_u32 s64, s64, {C_OA}")
    a("s_and_b32 s62, s27, 1")
    a("s_lshl_b32 s65, s30, 1")
    a("s_add_u32 s62, s62, s65")
    a(f"s_mul_i32 s62, s62, {PAD}")
    a("s_lshr_b32 s65, s27, 1")
    a("s_lshl_b32 s65, s65, 14")
    a("s_add_u32 s62, s62, s65")
    a(f"s_add_u32 s62, s62, {WS_OF}")
    NE = int(E("NE", "8"))
    a("s_mov_b64 exec, 0xff")
    a(f"buffer_load_dword v11, v10, {WSR}, s64 offen sc1")
    a("s_waitcnt vmcnt(0)")
    a("v_cmp_eq_u32 vcc, 0, v11")
    a("s_mov_b64 exec, -1")
    a("s_cbranch_vccnz H_OALATE")
    p3_oloads(a, 2, "s62", NE)
    a("s_barrier")
    a("s_barrier")
    a("s_branch H_OADONE")
    a.label("H_OALATE")
    a("s_barrier")
    a("s_barrier")
    poll(a, "OA", WSR, "s64", 8, 10, 11, 2)
    p3_oloads(a, 2, "s62", NE)
    a.label("H_OADONE")
    NPRE = 16
    for ks in range(NE, 16):
        for x in p3_oload(ks, 2, "s62"): a(x)
    stamp(a, 7); stamp(a, 10, 3)
    p3_gemm(a, 4, [16, 32], [48, 56], True, NPRE, 2, "s62")
    stamp(a, 8)
    a("s_lshl_b32 s64, s27, 13")
    a(f"s_add_u32 s64, s64, {RING}")
    a("v_add_u32 v8, s64, v2")
    a("s_nop 9")
    for i in range(8):
        a(f"ds_write_b128 v8, {vr(16+4*i,4)} offset:{1024*i}")
    a("s_waitcnt lgkmcnt(0)")
    stamp(a, 9)
    a("s_barrier")
    a("s_branch H_EXIT")
    a.label("H_NOP3B")
    a("s_barrier")
    a("s_barrier")
    a.label("H_EXIT")
    stamp(a, 10)
    stamp_out(a, 11)
    a("s_endpgm")

def compute(a):
    a.label("L_COMPUTE")
    XA, WA, WB, XQ, WQ = 2, 6, 7, 8, 12
    FR = 16; accK = [64, 80]; accV = [96, 112]; pK = [128, 136]; pV = [144, 152]
    QA, QB = 96, 112
    def touch(tag, c0, n, withq):
        a("s_lshr_b32 s60, s32, 1")
        a("s_cmp_eq_u32 s27, 3")
        if withq:
            a(f"s_cbranch_scc0 C_T0{tag}")
            srd(a, SWA, 6, 1204224); srd(a, SWB, 12, 1204224)
            a("s_mul_i32 s60, s60, 7")
            a("v_lshrrev_b32 v17, 2, v0")
            a("v_add_u32 v17, s60, v17")
            a("v_lshl_add_u32 v17, v17, 2, s34")
            a("v_mul_u32_u24 v17, 2688, v17")
            a("v_and_b32 v16, 3, v0")
            a("v_lshl_add_u32 v17, v16, 7, v17")
            a("s_mul_i32 s62, s33, 384")
            a("s_mov_b64 exec, 0x0fffffff")
            a(f"buffer_load_dword a88, v17, {R(SWA)}, s62 offen")
            a(f"buffer_load_dword a89, v17, {R(SWB)}, s62 offen")
            if E("TWO", "1") == "1":
                srd(a, SWA, 8, 401408); srd(a, SWB, 14, 401408)
                a("s_lshr_b32 s60, s32, 1")
                a("s_lshl_b32 s60, s60, 3")
                a("s_and_b32 s61, s2, 7")
                a("s_add_u32 s60, s60, s61")
                a("s_mul_i32 s60, s60, 25")
                a("v_add_u32 v17, s60, v0")
                a("v_lshlrev_b32 v17, 7, v17")
                a("s_mov_b64 exec, 0x1ffffff")
                a(f"buffer_load_dword a90, v17, {R(SWA)}, 0 offen")
                a(f"buffer_load_dword a91, v17, {R(SWB)}, 0 offen")
            a("s_mov_b64 exec, -1")
            a(f"s_branch C_TD{tag}")
            a.label(f"C_T0{tag}")
        else:
            a(f"s_cbranch_scc1 C_TD{tag}")
        a("s_cmp_eq_u32 s27, 0")
        a(f"s_cbranch_scc0 C_T1{tag}")
        srd(a, SW, 4, 1835008)
        a("s_lshl_b32 s61, s34, 9")
        a("s_lshl_b32 s60, s60, 5")
        a("s_add_u32 s60, s60, s61")
        a("v_and_b32 v17, 31, v0")
        a("v_add_u32 v17, s60, v17")
        a("v_mul_u32_u24 v17, 896, v17")
        a("v_lshrrev_b32 v16, 5, v0")
        a("v_lshl_add_u32 v17, v16, 7, v17")
        a(f"s_mov_b32 s62, {128*c0}")
        a("s_mov_b32 s63, 256")
        a(f"s_branch C_T2{tag}")
        a.label(f"C_T1{tag}")
        a("s_cmp_eq_u32 s27, 1")
        a(f"s_cselect_b32 s{SW}, s12, s6")
        a(f"s_cselect_b32 s{SW+1}, s13, s7")
        a(f"s_mov_b32 s{SW+2}, 1204224")
        a(f"s_mov_b32 s{SW+3}, 0x20000")
        a("v_lshrrev_b32 v17, 5, v0")
        a("v_lshlrev_b32 v17, 6, v17")
        a("v_bfe_u32 v16, v0, 3, 2")
        a("s_lshl_b32 s60, s60, 2")
        a("v_add3_u32 v17, v17, v16, s60")
        a("v_mul_u32_u24 v17, 2688, v17")
        a("v_bfe_u32 v16, v0, 2, 1")
        a("v_mul_u32_u24 v16, 896, v16")
        a("v_add_u32 v17, v17, v16")
        a("v_and_b32 v16, 3, v0")
        a("v_lshl_add_u32 v17, v16, 7, v17")
        a("s_mul_i32 s62, s33, 384")
        a(f"s_add_u32 s62, s62, {896 + 172032*c0}")
        a(f"s_mov_b32 s63, {2*172032}")
        a.label(f"C_T2{tag}")
        for i in range((n+1)//2):
            if 2*i+1 == n: a("s_mov_b32 exec_hi, 0")
            a(f"buffer_load_dword a{88+i}, v17, {R(SW)}, s62 offen")
            if 2*i+1 == n: a("s_mov_b32 exec_hi, -1")
            if 2*i+2 < n: a("s_add_u32 s62, s62, s63")
        a.label(f"C_TD{tag}")
    TB = [int(v) for v in E("TB", "1,3").split(",")]
    TA = [int(v) for v in E("TA", "4,3").split(",")]
    a("s_waitcnt lgkmcnt(0)")
    if TB[1]:
        a("s_cmp_eq_u32 s26, 0")
        a("s_cbranch_scc1 C_NTB")
        touch("B", TB[0], TB[1], E("TQ", "A") == "B")
        a.label("C_NTB")
    TAE = E("TAE", "0")
    if TA[1] and TAE == "1":
        a("s_cmp_eq_u32 s26, 0")
        a("s_cbranch_scc0 C_NTA")
        touch("A", TA[0], TA[1], E("TQ", "A") == "A")
        a.label("C_NTA")
    srd(a, SWS, 22, WS_SIZE)
    a("s_xor_b32 s64, s27, 3")
    a("s_xor_b32 s65, s2, 8")
    a("s_or_b32 s64, s65, s64")
    a("s_cmp_eq_u32 s64, 0")
    a("s_cbranch_scc0 C_NOINIT")
    srd(a, SD, 20, 256)
    a("v_lshlrev_b32 v17, 7, v0")
    a("v_mov_b32 v21, 0")
    a(f"s_mov_b32 s64, {WS_CNT}")
    for i in range(NFLAG // 64):
        a(f"buffer_store_dword v21, v17, {WSR}, s64 offen sc1")
        a("s_add_u32 s64, s64, 8192")
    a("v_mov_b32 v22, 1")
    a("s_waitcnt vmcnt(0)")
    a("s_mov_b64 exec, 1")
    a(f"buffer_store_dword v22, v21, {R(SD)}, 0 offen sc1")
    a("s_mov_b64 exec, -1")
    a.label("C_NOINIT")
    a("s_lshr_b32 s92, s27, 1")
    a("s_and_b32 s93, s27, 1")
    a("v_and_b32 v13, 31, v0")
    a("v_lshrrev_b32 v14, 5, v0")
    a("v_bfe_u32 v15, v0, 1, 3")
    a("v_xor_b32 v15, v15, v14")
    a("s_lshl_b32 s64, s92, 13")
    a("v_lshl_add_u32 v1, v13, 7, s64")
    a("s_lshl_b32 s65, s27, 12")
    a("s_sub_u32 s65, s65, s64")
    for ks in range(4):
        a(f"v_xor_b32 v{XA+ks}, {2*ks}, v15")
        a(f"v_lshl_add_u32 v{XA+ks}, v{XA+ks}, 4, v1")
        a(f"v_add_u32 v{XQ+ks}, s65, v{XA+ks}")
    a("s_mul_i32 s64, s93, 56")
    a(f"v_mov_b32 v{WA}, s64")
    tr_lane_addr(a, WB, WA, 1, 15, 2)
    a(f"v_add_u32 v{WB}, {RING}, v{WB}")
    a(f"v_mov_b32 v{WA}, v{WB}")
    a("v_bfe_u32 v1, v0, 2, 2")
    a("v_lshl_add_u32 v1, v14, 3, v1")
    a("v_lshlrev_b32 v1, 1, v1")
    a("v_bfe_u32 v15, v0, 4, 1")
    a("v_add_u32 v1, v1, v15")
    a("v_lshlrev_b32 v1, 2, v1")
    a("v_and_b32 v15, 3, v0")
    a("v_add_u32 v1, v1, v15")
    a("v_lshlrev_b32 v1, 3, v1")
    a(f"v_add_u32 v{WQ}, {RING}, v1")
    if TA[1] and TAE == "2":
        a("s_cmp_eq_u32 s26, 0")
        a("s_cbranch_scc0 C_NTA")
        touch("A", TA[0], TA[1], E("TQ", "A") == "A")
        a("s_barrier")
        a.label("C_NTA")
    a("v_cmp_eq_u32 vcc, 28, v13")
    a(f"v_mov_b32 v1, {ONE2}")
    a("s_nop 0")
    a("v_cndmask_b32 v15, 0, v1, vcc")
    for s in range(2):
        for i in range(8):
            a(f"v_mov_b32 v{pV[s]+i}, v15")
    a("s_mov_b32 s56, 0x0fffffff")
    a("s_mov_b32 s57, 0x0fffffff")
    a(f"s_mov_b32 s64, {f32(LOG2E)}")
    a(f"s_mov_b32 s65, {f32(QSCALE)}")
    a(f"s_mov_b32 s66, {f32(EPS)}")
    for i in range(32):
        a(f"v_mov_b32 v{accV[0]+i}, 0")
    a("v_lshlrev_b32 v13, 4, v0")
    a("s_cmp_eq_u32 s26, 0")
    a("s_cbranch_scc1 C_A")

    def scalars():
        for s in range(4):
            a(f"s_add_u32 s60, s27, {1+s}")
            a("s_and_b32 s60, s60, 3")
            a(f"s_lshl_b32 s{36+s}, s60, 11")
            a(f"s_add_u32 s{36+s}, s{36+s}, {L_QD}")
            a(f"s_mul_i32 s{40+s}, s60, 12288")
            a(f"s_add_u32 s{40+s}, s{40+s}, {RING + (4096*s if s < 3 else 0)}")
        a(f"s_mul_i32 s44, s28, {4*PAD}")
        a(f"s_mul_i32 s45, s27, {PAD}")
        a("s_add_u32 s45, s45, s44")
        a("s_lshl_b32 s46, s24, 2")
        a("s_add_u32 s46, s46, s27")
        a(f"s_mul_i32 s46, s46, {PAD}")
        a("s_lshl_b32 s60, s28, 11")
        a("s_add_u32 s46, s46, s60")
        a(f"s_add_u32 s46, s46, {WS_OF + 32768}")
        a("s_lshl_b32 s47, s27, 12")
        a(f"s_add_u32 s47, s47, {L_KVD}")
        a("s_lshl_b32 s48, s27, 8")
        a(f"s_add_u32 s48, s48, {L_G}")
    def reads(buf, ks):
        f = FR + 16*buf
        return [f"ds_read_b128 {vr(f,4)}, v{XA+ks}",
                f"ds_read_b64_tr_b16 {vr(f+8,2)}, v{WA} offset:{ks*2048}",
                f"ds_read_b64_tr_b16 {vr(f+10,2)}, v{WA} offset:{ks*2048+512}",
                f"ds_read_b128 {vr(f+4,4)}, v{XA+ks} offset:4096",
                f"ds_read_b64_tr_b16 {vr(f+12,2)}, v{WA} offset:{8192+ks*2048}",
                f"ds_read_b64_tr_b16 {vr(f+14,2)}, v{WA} offset:{8192+ks*2048+512}"]
    def mfmas(buf, kT):
        f = FR + 16*buf
        Xf = [vr(f, 4), vr(f+4, 4)]; Wk, Wv = vr(f+8, 4), vr(f+12, 4)
        m = []
        for s in range(2): m.append(f"{MF} {vr(accV[s],16)}, {Xf[s]}, {Wk}, {vr(accV[s],16)}")
        for s in range(2):
            if kT: m.append(f"{MF} {vr(accK[s],16)}, {Wv}, {Xf[s]}, {vr(accK[s],16)}")
            else:  m.append(f"{MF} {vr(accK[s],16)}, {Xf[s]}, {Wv}, {vr(accK[s],16)}")
        return m
    def mainloop(tag, kT):
        a("s_mov_b32 s60, 0")
        a("s_mov_b32 s61, 0")
        if STAMP != 4: stampc(a, 1)
        a("s_barrier")
        if STAMP != 4: stampc(a, 2)
        for r in reads(0, 0): a(r)
        a(".p2align 6")
        a.label(f"C_{tag}_LOOP")
        for ks in range(4):
            m = mfmas(ks & 1, kT); r = reads((ks+1) & 1, (ks+1) & 3)
            if ks < 3:
                a("s_waitcnt lgkmcnt(3)"); a(m[0]); a(r[0]); a(r[1]); a(r[2])
                a("s_waitcnt lgkmcnt(5)"); a(m[1]); a(r[3]); a(r[4]); a(r[5])
                a("s_waitcnt lgkmcnt(6)"); a(m[2])
                a(f"v_add_u32 v{XA+ks}, 16384, v{XA+ks}")
                if ks == 2:
                    a("s_add_u32 s60, s60, 1")
                    a("s_add_u32 s61, s61, 16384")
                    a("s_cmp_eq_u32 s61, 49152")
                    a("s_cselect_b32 s61, 0, s61")
                a(m[3])
            else:
                a(f"v_add_u32 v{WA}, s61, v{WB}")
                a("s_cmp_eq_u32 s60, 7")
                a("s_waitcnt lgkmcnt(0)")
                a(f"s_cbranch_scc1 C_{tag}_TAIL")
                a("s_barrier")
                a(m[0]); a(r[0]); a(r[1]); a(r[2])
                a(m[1]); a(r[3]); a(r[4]); a(r[5])
                a(m[2])
                a(f"v_add_u32 v{XA+3}, 16384, v{XA+3}")
                a(m[3])
                a(f"s_branch C_{tag}_LOOP")
                a.label(f"C_{tag}_TAIL")
                for x in m: a(x)
        stampc(a, 3)
    _reads = reads
    def reads(buf, ks):
        r = _reads(buf, ks)
        f = FR + 16*buf
        r[1] = f"ds_read_b64_tr_b16 {vr(f+8,2)}, v{WA} offset:{8192+ks*2048}"
        r[2] = f"ds_read_b64_tr_b16 {vr(f+10,2)}, v{WA} offset:{8192+ks*2048+512}"
        r[4] = f"ds_read_b64_tr_b16 {vr(f+12,2)}, v{WA} offset:{ks*2048}"
        r[5] = f"ds_read_b64_tr_b16 {vr(f+14,2)}, v{WA} offset:{ks*2048+512}"
        return r
    def cvt_v():
        a("s_nop 9")
        a("s_mov_b64 exec, s[56:57]")
        for s in range(2): cvt(a, pV[s], accV[s])
        a("s_mov_b64 exec, -1")
    def phase1b(fill):
        def qreads(k):
            f = FR + 12*(k % 3); d, kk = k >> 3, k & 7
            c = k >> 2
            o = ((7+d) % 3)*16384 + kk*1024
            return [f"ds_read_b128 {vr(f,4)}, v{XQ+(k&3)} offset:{(c&3)*16384}",
                    f"ds_read_b64_tr_b16 {vr(f+8,2)}, v{WQ} offset:{o+8192}",
                    f"ds_read_b64_tr_b16 {vr(f+10,2)}, v{WQ} offset:{o+8192+256}",
                    f"ds_read_b64_tr_b16 {vr(f+4,2)}, v{WQ} offset:{o}",
                    f"ds_read_b64_tr_b16 {vr(f+6,2)}, v{WQ} offset:{o+256}"]
        stampc(a, 4)
        a("s_barrier")
        if STAMP == 6: stampc(a, 15)
        for k in (0, 1):
            for r in qreads(k): a(r)
        for k in range(28):
            f = FR + 12*(k % 3)
            r = qreads(k+2) if k+2 < 28 else []
            nout = 5 if k+1 < 28 else 0
            bar = (k+2) < 28 and (k+2) % 8 == 0
            if k == SIGK:
                a("s_waitcnt vmcnt(0)")
                a("s_barrier")
            if bar:
                if STAMP == 6: stampc(a, 9 + 2*(k // 8))
                a("s_barrier")
                if STAMP == 6: stampc(a, 10 + 2*(k // 8))
            a(f"s_waitcnt lgkmcnt({nout+2})")
            a(f"{MF} {vr(QB,16)}, {vr(f+8,4)}, {vr(f,4)}, {'0' if k == 0 else vr(QB,16)}")
            for x in r[:3]: a(x)
            for x in fill(k, 0): a(x)
            a(f"s_waitcnt lgkmcnt({nout + len(r[:3])})")
            a(f"{MF} {vr(QA,16)}, {vr(f+4,4)}, {vr(f,4)}, {'1.0' if k == 0 else vr(QA,16)}")
            for x in r[3:]: a(x)
            for x in fill(k, 1): a(x)
            if 10 <= k <= 13:
                a(f"v_add_u32 v{XQ+((k+2)&3)}, 65536, v{XQ+((k+2)&3)}")
        stampc(a, 5)
        a("v_add_u32 v1, s39, v13")
        a("v_mov_b32 v22, 0")
        a("v_mov_b32 v23, 0")
        a("s_nop 7")
        a(f"v_mov_b32 v14, v{QB+12}")
        a(f"v_mov_b32 v15, v{QB+12}")
        vmul(a, QB, "s65", 8)
        a("v_permlane32_swap_b32 v15, v14")
        cvt(a, 16, QB, 0, 4)
        a("ds_write_b128 v1, v[16:19]")
        vmul(a, QB+8, "s65", 8)
        cvt(a, 16, QB, 4, 6)
        a("s_mov_b32 exec_hi, 0")
        cvt(a, 16, QB, 6, 8)
        a("s_mov_b32 exec_hi, -1")
        a("ds_write_b128 v1, v[20:23] offset:1024")
    def defer_q(a, mats):
        PP = QB + 8
        w = [f"v_mul_f32 v14, {f32(-LOG2E)}, v14", "v_exp_f32 v14, v14", f"v_mov_b32 v{PP+6}, 0", f"v_mov_b32 v{PP+7}, 0",
             "v_add_f32 v14, 1.0, v14", "v_rcp_f32 v14, v14"] + phi_list(QA, QB)
        for i, x in enumerate(w):
            if mats and i % 7 == 0: a(mats.pop(0))
            a(x)
        for x in mats: a(x)
        cvt(a, PP, QA, 0, 6)
        a("s_mov_b32 exec_hi, 0")
        cvt(a, PP, QA, 6, 8)
        a("s_mov_b32 exec_hi, -1")
        a(f"ds_write_b128 v1, {vr(PP,4)} offset:8192")
        a(f"ds_write_b128 v1, {vr(PP+4,4)} offset:9216")
        a("v_lshl_add_u32 v15, v0, 2, s48")
        a("ds_write_b32 v15, v14")
        a("v_sub_f32 v14, 1.0, v14")
    O = [16, 32, 48, 64]; S = [80, 96, 112, 128]; Q = [0, 8, 16, 24]; KV = [32, 48, 64, 80]
    RA = 144
    def ld(dst, off, v="v1", so="s58"):
        return f"buffer_load_dwordx4 {ar(dst,4)}, {v}, {WSR}, {so} offen" + (f" offset:{off}" if off else "") + " sc1"
    adv = ["s_add_u32 s58, s58, 4096"]
    ZR = ar(KV[3]+12, 4)
    zero = lambda d: f"{MF} {vr(d,16)}, {ZR}, {ZR}, 0"
    def pre(a):
        for i in range(4): a(f"v_accvgpr_write_b32 a{KV[3]+12+i}, 0")
        a("v_add_u32 v4, s44, v13")
        a(f"v_mov_b32 v5, {L_CNT}")
        a("v_mov_b32 v6, 1")
    def first_loads(work):
        stampc(a, 7)
        a("v_add_u32 v7, s45, v13")
        a("s_mov_b32 s58, 4096")
        a("s_mov_b32 s59, 8192")
        for f in range(4):
            a(ld(KV[0]+4*f, 1024*f, "v7", "0"))
            a(f"v_add_u32 v{8+f}, s{36+f}, v13")
            a(f"ds_read_b128 {ar(Q[f],4)}, v{8+f}")
            a(f"ds_read_b128 {ar(Q[f]+4,4)}, v{8+f} offset:1024")
        sub = Asm(); work(sub)
        lines = sub.lines
        rest = [ld(KV[n]+4*f, 1024*f, "v7", f"s{57+n}") for n in (1, 2) for f in range(4)]
        gap = int(E("LG", "8")); full = True
        for i, l in enumerate(lines):
            a.lines.append(l)
            if "exec" in l and l.strip().startswith("s_mov"): full = l.strip().endswith("-1")
            if rest and full and i % gap == gap - 1: a(rest.pop(0))
        for x in rest: a(x)
        a("s_mov_b32 s58, 12288")

    for i in range(32): a(f"v_mov_b32 v{accK[0]+i}, 0")
    for s in range(2):
        a(f"v_mov_b32 v{pK[s]+6}, v1"); a(f"v_mov_b32 v{pK[s]+7}, v1")
    a("v_and_b32 v15, 0x33, v0")
    a("v_bfe_u32 v1, v0, 2, 1")
    a("v_lshl_add_u32 v15, v1, 3, v15")
    a("v_bfe_u32 v1, v0, 3, 1")
    a("v_lshl_add_u32 v15, v1, 2, v15")
    a("v_lshlrev_b32 v15, 4, v15")
    a("s_lshl_b32 s58, s25, 1")
    a("s_add_u32 s58, s58, s93")
    a("s_lshl_b32 s58, s58, 2")
    a("s_add_u32 s58, s58, s34")
    a(f"s_mul_i32 s58, s58, {PAD}")
    a("s_lshl_b32 s59, s29, 1")
    a("s_add_u32 s59, s59, s92")
    a("s_lshl_b32 s59, s59, 13")
    a("s_add_u32 s58, s58, s59")
    a("s_add_u32 s59, s58, 4096")
    a("s_barrier")
    scalars()
    mainloop("B", True)
    cvt_v()
    st = []
    for s in range(2):
        st.append(f"buffer_store_dwordx4 {vr(pV[s],4)}, v13, {WSR}, s{58+s} offen offset:2048 sc1")
        st.append(f"buffer_store_dwordx4 {vr(pV[s]+4,4)}, v13, {WSR}, s{58+s} offen offset:3072 sc1")
    for s in range(2):
        st.append(f"buffer_store_dwordx4 {vr(pK[s],4)}, v15, {WSR}, s{58+s} offen sc1")
        st.append(f"buffer_store_dwordx4 {vr(pK[s]+4,4)}, v15, {WSR}, s{58+s} offen offset:1024 sc1")
    for x in st[:4]: a(x)
    for s in range(2):
        cvt(a, pK[s], accK[s], 0, 6)
        a("s_mov_b32 exec_hi, 0")
        cvt(a, pK[s], accK[s], 6, 8)
        a("s_mov_b32 exec_hi, -1")
        for x in st[4+2*s:6+2*s]: a(x)
    phase1b(lambda k, slot: [])
    a("s_waitcnt lgkmcnt(0)")
    stampc(a, 6)
    a("s_barrier")
    def workB(a):
        pre(a)
        defer_q(a, [zero(d) for d in O + [S[3]]])
    first_loads(workB)
    a("s_branch C_2")

    a.label("C_A")
    for i in range(32): a(f"v_mov_b32 v{accK[0]+i}, 1.0")
    for s in range(2):
        for i in range(8): a(f"v_mov_b32 v{pK[s]+i}, 0")
    if TA[1] and TAE == "0": touch("A", TA[0], TA[1], E("TQ", "A") == "A")
    if TAE != "2": a("s_barrier")
    scalars()
    mainloop("A", False)
    cvt_v()
    pend = phi_list(accK[0], 52) + phi_list(accK[1], 52)
    NF = int(E("NF", "1"))
    def fillA(k, slot):
        if k == 0: return []
        o = pend[:NF]; del pend[:NF]
        return o
    phase1b(fillA)
    a("s_waitcnt lgkmcnt(0)")
    stampc(a, 6)
    a("s_barrier")
    D = accK[1]
    def workA(a):
        pre(a)
        z = [zero(d) for d in O[:2]]
        for i, x in enumerate(pend):
            if z and i % 7 == 0: a(z.pop(0))
            a(x)
        a("s_mov_b64 exec, s[56:57]")
        for s in range(2): cvt(a, pK[s], accK[s])
        a("s_mov_b64 exec, -1")
        a("s_nop 1")
        defer_q(a, [f"{MF} {vr(D,16)}, {vr(pK[0],4)}, {vr(pV[0],4)}, 0",
                    f"{MF} {vr(D,16)}, {vr(pK[0]+4,4)}, {vr(pV[0]+4,4)}, {vr(D,16)}",
                    f"{MF} {vr(D,16)}, {vr(pK[1],4)}, {vr(pV[1],4)}, {vr(D,16)}",
                    f"{MF} {vr(D,16)}, {vr(pK[1]+4,4)}, {vr(pV[1]+4,4)}, {vr(D,16)}"] + z + [zero(O[2]), zero(O[3]), zero(S[3])])
        a("v_add_u32 v15, s47, v13")
        for q in range(4):
            a(f"ds_write_b128 v15, {vr(D+4*q,4)} offset:{1024*q}")
    first_loads(workA)

    a.label("C_2")
    a("v_mov_b32 v2, 0xdddd")
    a("v_mov_b32 v3, 0")
    a("v_mov_b32 v1, v7")
    a("s_mov_b32 s59, 3")
    for s in range(4): a(f"v_add_u32 v{RA+s}, s{40+s}, v13")
    a("s_waitcnt vmcnt(10) lgkmcnt(0)")
    stampc(a, 8)
    a("s_mov_b64 exec, 1")
    a("ds_add_u32 v5, v6 offset:8")
    a("s_mov_b64 exec, -1")
    a(f"{MF} {vr(S[0],16)}, {ar(KV[0],4)}, {ar(Q[0],4)}, 0")
    a(f"{MF} {vr(S[0],16)}, {ar(KV[0]+4,4)}, {ar(Q[0]+4,4)}, {vr(S[0],16)}")
    a("s_waitcnt vmcnt(8)")
    a("s_nop 9")
    def unit(pos, cur, nxt, prv, slot):
        sc = S[pos & 3]; sn = S[(pos+1) & 3]; sp = S[(pos-1) & 3]
        e = [f"v_exp_f32 v{sc+i}, v{sc+i}" for i in range(16)]
        if nxt: a(f"{MF} {vr(sn,16)}, {ar(KV[nxt[0]],4)}, {ar(Q[nxt[1]],4)}, 0")
        for x in slot[0]: a(x)
        for x in e[0:4]: a(x)
        a(f"{SM} {vr(O[prv[1]],16)}, {ar(KV[prv[0]]+12,4)}, {vr(sp+8,8)}, v2")
        for x in slot[1]: a(x)
        for x in e[4:8]: a(x)
        if nxt: a(f"{MF} {vr(sn,16)}, {ar(KV[nxt[0]]+4,4)}, {ar(Q[nxt[1]]+4,4)}, {vr(sn,16)}")
        for x in slot[2]: a(x)
        for x in e[8:12]: a(x)
        a(f"{SM} {vr(O[cur[1]],16)}, {ar(KV[cur[0]]+8,4)}, {vr(sc,8)}, v2")
        for x in slot[3]: a(x)
        if nxt:
            for _ in range(2 - min(2, len(slot[2]) + len(slot[3]))): a("s_nop 0")
        for x in e[12:16]: a(x)
    LP = int(E("LP", "2"))
    def plain(n, s):
        slot = [[], [], [], []]
        slot[LP].append(ld(KV[(n+3) & 3] + 4*s, 1024*s))
        if s == 3: slot[3] += adv
        if s == 2: slot[3].append("s_waitcnt vmcnt(7)")
        return slot
    a(".p2align 6")
    a.label("C_ATT")
    for n in range(4):
        for s in range(4):
            slot = plain(n, s)
            if n == 3 and s == 1: slot[3].append("s_sub_u32 s59, s59, 1")
            if n == 3 and s == 3: slot[3].append("s_cmp_lg_u32 s59, 0")
            unit(s, (n, s), ((n + (s == 3)) & 3, (s+1) & 3), ((n - (s == 0)) & 3, (s-1) & 3), slot)
    a("s_cbranch_scc1 C_ATT")
    seq = [(0, s) for s in range(4)] + [(1, s) for s in range(4)] + [(n, s) for s in range(4) for n in (2, 3)]
    for i, cur in enumerate(seq):
        nxt = seq[i+1] if i < 15 else None
        prv = seq[i-1] if i > 0 else (3, 3)
        slot = plain(*cur) if i < 4 else [[], [], [], []]
        if i == 6: slot[3].append("s_waitcnt vmcnt(0)")
        w = {11: 0, 13: 1, 15: 2}
        for first, s_ in ((11, 0), (13, 1)):
            if i in (first, first+1):
                for q in range(2):
                    qq = 2*(i - first) + q
                    slot[1 + 2*q].append(f"ds_write_b128 v{RA+s_}, {vr(O[s_]+4*qq,4)} offset:{1024*qq}")
        if i == 15:
            for q in range(4):
                slot[q].append(f"ds_write_b128 v{RA+2}, {vr(O[2]+4*q,4)} offset:{1024*q}")
        unit(i, cur, nxt, prv, slot)
        if i == int(E("XP", "10")):
            if STAMP == 4: stampc(a, 1)
            a("s_barrier")
            if STAMP == 4: stampc(a, 2)
    a("s_setprio 1")
    a("v_mov_b32 v22, 0")
    a(f"{SM} {vr(O[3],16)}, {ar(KV[3]+12,4)}, {vr(S[3]+8,8)}, v2")
    a("v_mov_b32 v23, 0")
    a(f"s_mov_b32 s62, {f32(2.0**-40)}")
    a(f"s_mov_b32 s63, {f32(2.0**40)}")
    a("s_waitcnt lgkmcnt(0)")
    a("s_barrier")
    if STAMP != 6: stampc(a, 9)
    for i in range(12):
        a(f"ds_read_b128 {vr(S[0]+4*i,4)}, v{RA+3} offset:{1024*((i % 3)*4 + i // 3)}")
    for q in range(4):
        a(f"s_waitcnt lgkmcnt({9-3*q})")
        b = S[0] + 12*q
        vadd(a, b, b+4, 4)
        vadd(a, O[3]+4*q, b+8, 4)
        vadd(a, O[3]+4*q, b, 4)
    a(f"v_mov_b32 v6, v{O[3]+12}")
    a(f"v_mov_b32 v7, v{O[3]+12}")
    a("s_nop 1")
    a("v_permlane32_swap_b32 v6, v7")
    a("v_cmp_nge_f32 vcc, v7, s62")
    a("v_cmp_nle_f32 s[64:65], v7, s63")
    a("v_rcp_f32 v7, v7")
    a("s_or_b64 vcc, vcc, s[64:65]")
    a("s_cbranch_scc1 C_FALLBACK")
    a.label("C_FIN")
    a(f"v_mov_b32 v5, {RING + 49152 - 16}")
    a("s_cmp_eq_u32 s27, 3")
    a("s_cbranch_scc0 C_NOCLR")
    a("ds_write_b32 v5, v3")
    a.label("C_NOCLR")
    a("v_mul_f32 v7, v7, v14")
    vmul(a, O[3], "v7", 8)
    cvt(a, 16, O[3], 0, 4)
    a(f"buffer_store_dwordx4 v[16:19], v13, {WSR}, s46 offen sc1")
    vmul(a, O[3]+8, "v7", 8)
    cvt(a, 16, O[3], 4, 6)
    a("s_mov_b32 exec_hi, 0")
    cvt(a, 16, O[3], 6, 8)
    a("s_mov_b32 exec_hi, -1")
    a(f"buffer_store_dwordx4 v[20:23], v13, {WSR}, s46 offen offset:1024 sc1")
    a("s_waitcnt lgkmcnt(0)")
    a("s_barrier")
    if STAMP != 6: stampc(a, 10)
    a("s_mul_i32 s60, s92, 28672")
    a("s_add_u32 s60, s60, 57344")
    a("s_lshl_b32 s61, s92, 6")
    a("v_mov_b32 v1, v5")
    p3_addr(a, 4, "s60", "s61", 8, 9)
    a("s_lshl_b32 s60, s27, 13")
    a(f"s_add_u32 s60, s60, {RING}")
    a("v_add_u32 v8, s60, v13")
    a("s_lshl_b32 s60, s27, 12")
    a(f"s_add_u32 s60, s60, {RING + 32768}")
    a("v_add_u32 v9, s60, v13")
    a("v_xor_b32 v10, 8192, v9")
    a("s_lshl_b32 s60, s30, 1")
    a("s_add_u32 s60, s60, s93")
    a("v_and_b32 v11, 31, v0")
    a("s_lshl_b32 s61, s60, 5")
    a("v_add_u32 v11, s61, v11")
    a("v_mul_u32_u24 v11, 896, v11")
    a("v_lshrrev_b32 v12, 5, v0")
    a("v_lshl_add_u32 v11, v12, 4, v11")
    a(f"s_mul_i32 s60, s60, {PAD}")
    a("s_lshl_b32 s61, s92, 14")
    a("s_add_u32 s60, s60, s61")
    a(f"s_add_u32 s60, s60, {WS_OF + 32768}")
    a("s_and_b32 s61, s30, 0xfe")
    a("s_lshl_b32 s61, s61, 10")
    a(f"s_add_u32 s61, s61, {C_OB}")
    a("s_lshl_b32 s62, s31, 7")
    a("s_lshl_b32 s63, s92, 6")
    a("s_add_u32 s62, s62, s63")
    srd(a, SX, 18, 1835008)
    a("s_lshl_b32 s64, s24, 4")
    a("s_add_u32 s64, s64, s28")
    a("s_lshl_b32 s64, s64, 7")
    a(f"s_add_u32 s64, s64, {C_OB}")
    a("v_mov_b32 v12, 1")
    a("s_mov_b64 exec, 1")
    a("s_waitcnt vmcnt(0)")
    a("ds_add_rtn_u32 v14, v1, v12")
    a("s_waitcnt lgkmcnt(0)")
    a("v_readfirstlane_b32 s69, v14")
    a("s_nop 0")
    a("s_cmp_eq_u32 s69, 3")
    a("s_cbranch_scc0 C_NOSIG")
    a(f"buffer_store_dword v12, v3, {WSR}, s64 offen sc1")
    a.label("C_NOSIG")
    a("s_mov_b64 exec, -1")
    if STAMP != 6: stampc(a, 11)
    a("s_cmp_ge_u32 s32, 28")
    a("s_cbranch_scc1 C_EXIT")
    a("s_cmp_eq_u32 s27, 0")
    a("s_cbranch_scc0 C_OBD")
    a("v_lshlrev_b32 v14, 7, v0")
    poll(a, "OB", WSR, "s61", 16, 14, 12, int(E("OBS", "2")), False)
    a.label("C_OBD")
    a("s_barrier")
    if STAMP != 6: stampc(a, 12)
    NPRE = int(E("NPRE", "10"))
    p3_oloads(a, 13, "s60", NPRE)
    for i in range(8):
        a(f"ds_read_b128 {vr(16+4*i,4)}, v8 offset:{1024*i}")
    p3_gemm(a, 4, [16, 32], [48, 56], False, NPRE, 13, "s60")
    if STAMP != 6: stampc(a, 13)
    a("s_nop 11")
    for i in range(4):
        a(f"ds_write_b128 v9, {vr(32+4*i,4)} offset:{1024*i}")
    a("s_waitcnt lgkmcnt(0)")
    a("s_barrier")
    for i in range(4):
        a(f"ds_read_b128 {vr(32+4*i,4)}, v10 offset:{1024*i}")
    OFL = E("OFL", "")
    for hf in range(2):
        for q in (2*hf, 2*hf+1):
            a(f"s_waitcnt lgkmcnt({3-q})")
            vadd(a, 16+4*q, 32+4*q, 4)
        cvt(a, 48, 16, 4*hf, 4*hf+4)
        a("s_nop 1")
        a(f"v_permlane32_swap_b32 v{48+4*hf}, v{50+4*hf}")
        a(f"v_permlane32_swap_b32 v{49+4*hf}, v{51+4*hf}")
        a(f"buffer_store_dwordx4 {vr(48+4*hf,4)}, v11, {R(SX)}, s62 offen offset:{32*hf} {OFL}")
    a.label("C_EXIT")
    if E("DIAGT", ""):
        a("s_or_b32 s64, s2, s27")
        a("s_cmp_eq_u32 s64, 0")
        a("s_cbranch_scc0 C_DX")
        a.label("C_DL")
        a("s_memrealtime s[98:99]")
        a("s_waitcnt lgkmcnt(0)")
        a("s_sub_u32 s98, s98, s96")
        a("s_cmp_lt_u32 s98, %s" % E("DIAGT", ""))
        a("s_cbranch_scc1 C_DL")
        a.label("C_DX")
    if STAMP != 6: stampc(a, 14)
    if STAMP: a("s_waitcnt vmcnt(0)")
    if STAMP != 6: stampc(a, 15)
    stamp_out(a, 16)
    a("s_endpgm")
    a.label("C_FALLBACK")
    Qo = Q[3]; K0 = KV[0]; Sx = S[0]
    def fb_adv():
        a("s_add_u32 s58, s58, 4096")
        a("s_add_u32 s59, s59, 1")
        a("s_and_b32 s61, s59, 15")
        a(f"s_cselect_b32 s61, 0, {PAD-65536}")
        a("s_add_u32 s58, s58, s61")
        a("s_nop 15")
    a("s_mov_b32 s58, 0")
    a("s_mov_b32 s59, 0")
    a(f"v_mov_b32 v8, {f32(float('-inf'))}")
    a.label("C_FB1")
    a(ld(K0, 0, "v4")); a(ld(K0+4, 1024, "v4"))
    a("s_waitcnt vmcnt(0)")
    a(f"{MF} {vr(Sx,16)}, {ar(K0,4)}, {ar(Qo,4)}, 0")
    a(f"{MF} {vr(Sx,16)}, {ar(K0+4,4)}, {ar(Qo+4,4)}, {vr(Sx,16)}")
    fb_adv()
    a("s_nop 15")
    for i in range(8):
        a(f"v_max3_f32 v8, v8, v{Sx+2*i}, v{Sx+2*i+1}")
    a("s_cmp_lt_u32 s59, 64")
    a("s_cbranch_scc1 C_FB1")
    a("v_mov_b32 v9, v8")
    a("s_nop 1")
    a("v_permlane32_swap_b32 v8, v9")
    a("v_max_f32 v8, v8, v9")
    a("v_and_b32 v9, 0xffff0000, v8")
    a("v_sub_f32 v8, v8, v9")
    a("v_and_b32 v10, 0xffff0000, v8")
    a("v_sub_f32 v8, v8, v10")
    a("v_cvt_pk_bf16_f32 v9, -v9, -v10")
    a("v_cvt_pk_bf16_f32 v8, -v8, 0")
    a("s_mov_b32 exec_lo, 0")
    a(f"v_accvgpr_write_b32 a{Qo+6}, v9")
    a(f"v_accvgpr_write_b32 a{Qo+7}, v8")
    a("s_mov_b32 exec_lo, -1")
    for i in range(16): a(f"v_mov_b32 v{O[3]+i}, 0")
    a("s_mov_b32 s58, 0")
    a("s_mov_b32 s59, 0")
    a.label("C_FB2")
    for f in range(4): a(ld(K0+4*f, 1024*f, "v4"))
    a("s_waitcnt vmcnt(0)")
    a(f"{MF} {vr(Sx,16)}, {ar(K0,4)}, {ar(Qo,4)}, 0")
    a(f"{MF} {vr(Sx,16)}, {ar(K0+4,4)}, {ar(Qo+4,4)}, {vr(Sx,16)}")
    fb_adv()
    a("s_nop 15")
    for i in range(16): a(f"v_exp_f32 v{Sx+i}, v{Sx+i}")
    a("s_nop 1")
    a(f"{SM} {vr(O[3],16)}, {ar(K0+8,4)}, {vr(Sx,8)}, v2")
    a(f"{SM} {vr(O[3],16)}, {ar(K0+12,4)}, {vr(Sx+8,8)}, v2")
    a("s_cmp_lt_u32 s59, 64")
    a("s_cbranch_scc1 C_FB2")
    a("s_nop 15")
    a("s_nop 15")
    a(f"v_mov_b32 v6, v{O[3]+12}")
    a(f"v_mov_b32 v7, v{O[3]+12}")
    a("s_nop 1")
    a("v_permlane32_swap_b32 v6, v7")
    a("v_rcp_f32 v7, v7")
    a("s_nop 0")
    a("s_branch C_FIN")

def main():
    a = Asm()
    head = f"""; gated mix of a linear-attention block and a softmax-attention block (S=2048, D=448, H=16), one launch
; @launch grid=(256,1,1) block=(512,1,1) lds=163840
.amdgcn_target "amdgcn-amd-amdhsa--gfx950"
.text
"""
    gen(a)
    out = head + a.text() + '.section .rodata,"a"\n' + kernel_desc(KN, 256, 102, 160)
    path = sys.argv[1] if len(sys.argv) > 1 else f"cdna_kernels/{NAME}.s"
    open(path, "w").write(out)
main()
```

```python
import math, sys, os, struct
from asmlib import *

NAME = "gated_mix__linear_attn_block__mha_block__prompt"
KN = NAME + "_kernel"
WS_KV  = 0
WS_CNT = 5 << 20
WS_KVP = 6 << 20
WS_OF  = 8 << 20
PAD = int(os.environ.get("PAD", "69632"))
WS_ST  = 14 << 20
WS_SIZE = 16 << 20
LOG2E = 1.4426950408889634
QSCALE = LOG2E * 28 ** -0.5
EPS = 1e-6
ONE2 = 0x3F803F80
RING = 114688
L_KVD = RING
L_G   = RING + 16384 + 4096
L_KVF = RING + 16384 + 12288
L_CNT = RING + 16384 + 14336
L_QD  = RING + 32768
L_PQ  = RING + 32768 + 8192
STAMP = int(os.environ.get("STAMP", "0"))
X = set(os.environ.get("X", "").split(","))
MF = "v_mfma_f32_32x32x16_bf16"
SM = "v_smfmac_f32_32x32x32_bf16"
SX, SW, SWA, SWB, SWS, SD, SG = 36, 40, 44, 48, 52, 56, 60
WSR = f"s[{SWS}:{SWS+3}]"
SPIN = 200000
WFL = os.environ.get("WFL", "")
XFL = os.environ.get("XFL", "")

def srd(a, d, lo, size):
    a(f"s_mov_b32 s{d}, s{lo}")
    a(f"s_mov_b32 s{d+1}, s{lo+1}")
    a(f"s_mov_b32 s{d+2}, {size}")
    a(f"s_mov_b32 s{d+3}, 0x20000")
def R(d): return f"s[{d}:{d+3}]"

def stamp(a, i, mode=1):
    if not STAMP: return
    if mode is not None and mode != STAMP: return
    if i == 0: a("s_memrealtime s[96:97]")
    a("s_memrealtime s[94:95]" if os.environ.get("RT") else "s_memtime s[94:95]")
    a("s_waitcnt lgkmcnt(0)")
    a(f"s_mov_b32 s{70+i}, s94")
def stampc(a, i):
    if os.environ.get("DIAGP") == str(i):
        a("s_memrealtime s[100:101]")
        a("s_waitcnt lgkmcnt(0)")
    if STAMP == 5: return
    stamp(a, i, None)
def stamp_out(a, n):
    if not STAMP: return
    a("s_memrealtime s[98:99]")
    a("s_waitcnt lgkmcnt(0)")
    a("s_mov_b64 exec, 1")
    a("s_lshl_b32 s94, s2, 3")
    a("s_add_u32 s94, s94, s35")
    a("s_lshl_b32 s94, s94, 7")
    a(f"s_add_u32 s94, s94, {WS_ST}")
    a("v_mov_b32 v1, 0")
    for i in range(n if STAMP != 5 else 0):
        a(f"v_mov_b32 v2, s{70+i}")
        a(f"buffer_store_dword v2, v1, {WSR}, s94 offen offset:{4*i}")
    a("v_mov_b32 v2, s96")
    a(f"buffer_store_dword v2, v1, {WSR}, s94 offen offset:120")
    a("v_mov_b32 v2, s98")
    a(f"buffer_store_dword v2, v1, {WSR}, s94 offen offset:124")

def dma_lane_w(a, vdst, vt0, vt1, rowstride):
    a(f"v_lshrrev_b32 v{vt0}, 4, v0")
    a(f"v_bfe_u32 v{vt1}, v0, 2, 2")
    a(f"v_and_b32 v{vdst}, 1, v{vt0}")
    if "noswz" not in X: a(f"v_xor_b32 v{vt1}, v{vt1}, v{vdst}")
    a(f"v_lshrrev_b32 v{vdst}, 1, v{vt1}")
    a(f"v_lshl_add_u32 v{vt0}, v{vt0}, 1, v{vdst}")
    a(f"v_mul_u32_u24 v{vt0}, {rowstride}, v{vt0}")
    a(f"v_and_b32 v{vt1}, 1, v{vt1}")
    a(f"v_lshl_add_u32 v{vt0}, v{vt1}, 6, v{vt0}")
    a(f"v_and_b32 v{vt1}, 3, v0")
    a(f"v_lshl_add_u32 v{vdst}, v{vt1}, 4, v{vt0}")

def tr_lane_addr(a, vdst, vb, vt0, vt1, hlshift):
    a(f"v_bfe_u32 v{vt0}, v0, 4, 1")
    a(f"v_lshl_add_u32 v{vb}, v{vt0}, 5, v{vb}")
    a(f"v_and_b32 v{vt0}, 3, v0")
    a(f"v_lshl_add_u32 v{vb}, v{vt0}, 3, v{vb}")
    a(f"v_bfe_u32 v{vt0}, v0, 2, 1")
    a(f"v_lshrrev_b32 v{vt1}, 6, v{vb}")
    a(f"v_lshl_add_u32 v{vt0}, v{vt0}, 1, v{vt1}")
    a(f"v_bfe_u32 v{vt1}, v0, 3, 1")
    a(f"v_xor_b32 v{vt0}, v{vt0}, v{vt1}")
    a(f"v_and_b32 v{vb}, 63, v{vb}")
    a(f"v_lshl_add_u32 v{vb}, v{vt0}, 6, v{vb}")
    a(f"v_lshrrev_b32 v{vt0}, 5, v0")
    a(f"v_lshl_add_u32 v{vt0}, v{vt0}, {hlshift}, v{vt1}")
    a(f"v_lshl_add_u32 v{vdst}, v{vt0}, 8, v{vb}")

C_KV, C_A, C_OA, C_OB = WS_CNT, WS_CNT + 128*128, WS_CNT + 256*128, WS_CNT + 512*128
NFLAG = 768
def poll(a, tag, srdreg, soff, nl, vl, vt, sleep=0, first=True):
    a(f"s_mov_b64 exec, {(1 << nl) - 1}")
    a(f"s_mov_b32 s68, {SPIN}")
    if sleep and first: a(f"s_branch POLL_{tag}")
    a.label(f"POLLS_{tag}")
    if sleep: a(f"s_sleep {sleep}")
    a.label(f"POLL_{tag}")
    a(f"buffer_load_dword v{vt}, v{vl}, {srdreg}, {soff} offen sc1")
    a("s_sub_u32 s68, s68, 1")
    a(f"s_cbranch_scc1 POLLX_{tag}")
    a("s_waitcnt vmcnt(0)")
    a(f"v_cmp_eq_u32 vcc, 0, v{vt}")
    a(f"s_cbranch_vccnz POLLS_{tag}")
    a.label(f"POLLX_{tag}")
    a("s_mov_b64 exec, -1")

def lds_wait(a, tag, vaddr, off, target, vt, sleep=1):
    a("s_mov_b64 exec, 1")
    a(f"s_mov_b32 s68, {SPIN}")
    a.label(f"LW_{tag}")
    a(f"s_sleep {sleep}")
    a(f"ds_read_b32 v{vt}, v{vaddr} offset:{off}")
    a("s_waitcnt lgkmcnt(0)")
    a(f"v_readfirstlane_b32 s69, v{vt}")
    a("s_sub_u32 s68, s68, 1")
    a(f"s_cbranch_scc1 LWX_{tag}")
    a(f"s_cmp_ge_u32 s69, {target}")
    a(f"s_cbranch_scc0 LW_{tag}")
    a.label(f"LWX_{tag}")
    a("s_mov_b64 exec, -1")

def signal(a, soff, vz, vt):
    a("s_mov_b64 exec, 1")
    a(f"v_mov_b32 v{vt}, 1")
    a(f"buffer_store_dword v{vt}, v{vz}, {WSR}, {soff} offen sc1")
    a("s_mov_b64 exec, -1")

def cvt(a, dst, src, lo=0, hi=8):
    for i in range(lo, hi):
        a(f"v_cvt_pk_bf16_f32 v{dst+i}, v{src+2*i}, v{src+2*i+1}")

def vadd(a, dst, src, n):
    for i in range(n): a(f"v_add_f32 v{dst+i}, v{dst+i}, v{src+i}")
def vmul(a, dst, mul, n):
    for i in range(n): a(f"v_mul_f32 v{dst+i}, {mul}, v{dst+i}")

def phi_list(src, T, n=16, grp=8):
    o = []
    for g0 in range(0, n, grp):
        o += [f"v_fma_f32 v{T+i}, v{src+g0+i}, s64, -s64" for i in range(grp)]
        o += [f"v_exp_f32_e64 v{T+i}, v{T+i} clamp" for i in range(grp)]
        o += [f"v_max_f32 v{src+g0+i}, v{src+g0+i}, v{T+i}" for i in range(grp)]
        o += [f"v_add_f32 v{src+g0+i}, s66, v{src+g0+i}" for i in range(grp)]
    return o

def p3_addr(a, v0a, mat_off_sgpr, swap_sgpr, vt0, vt1):
    a(f"v_mov_b32 v{v0a+1}, 0")
    tr_lane_addr(a, v0a, v0a+1, vt0, vt1, 1)
    a(f"v_add_u32 v{v0a}, {mat_off_sgpr}, v{v0a}")
    a(f"v_xor_b32 v{v0a}, {swap_sgpr}, v{v0a}")
    a(f"v_xor_b32 v{v0a+1}, 64, v{v0a}")
    a(f"v_lshrrev_b32 v{vt0}, 5, v0")
    a(f"v_lshlrev_b32 v{vt0}, 9, v{vt0}")
    a(f"v_sub_u32 v{v0a+2}, v{v0a}, v{vt0}")
    a(f"v_sub_u32 v{v0a+3}, v{v0a+1}, v{vt0}")

def p3_oload(ks, vlane16, so):
    o = [f"buffer_load_dwordx4 {ar(4*ks,4)}, v{vlane16}, {WSR}, {so} offen offset:{1024*(ks&3)} sc1"]
    if ks & 3 == 3 and ks < 15: o.append(f"s_add_u32 {so}, {so}, 4096")
    return o

def p3_gemm(a, va, ACC, WF, first_zero, npre, vlane16, so):
    def reads(ks):
        f = WF[ks & 1]; hh, m = ks >> 1, ks & 1
        o = (14*hh + 8*m) * 256
        last = (ks == 15)
        return [f"ds_read_b64_tr_b16 {vr(f,2)}, v{va} offset:{o}",
                f"ds_read_b64_tr_b16 {vr(f+2,2)}, v{va+2 if last else va} offset:{o+1024}",
                f"ds_read_b64_tr_b16 {vr(f+4,2)}, v{va+1} offset:{o}",
                f"ds_read_b64_tr_b16 {vr(f+6,2)}, v{va+3 if last else va+1} offset:{o+1024}"]
    for x in reads(0): a(x)
    issued = npre
    for ks in range(16):
        f = WF[ks & 1]
        rd = reads(ks+1) if ks < 15 else []
        c0 = "0" if (first_zero and ks == 0) else vr(ACC[0], 16)
        c1 = "0" if (first_zero and ks == 0) else vr(ACC[1], 16)
        if issued < 16:
            for x in p3_oload(issued, vlane16, so): a(x)
            issued += 1
        a(f"s_waitcnt vmcnt({issued-1-ks}) lgkmcnt(2)")
        a(f"{MF} {vr(ACC[0],16)}, {vr(f,4)}, {ar(4*ks,4)}, {c0}")
        for x in rd[:2]: a(x)
        a(f"s_waitcnt lgkmcnt({2 if rd else 0})")
        a(f"{MF} {vr(ACC[1],16)}, {vr(f+4,4)}, {ar(4*ks,4)}, {c1}")
        for x in rd[2:]: a(x)

def p3_oloads(a, vlane16, so, n):
    for ks in range(n):
        for x in p3_oload(ks, vlane16, so): a(x)

E = lambda k, d: os.environ.get(k, d)
SIGK = int(E("SIGK", "6"))
def gen(a):
    kernel_head(a, KN)
    a("s_cmp_ge_u32 s2, 256")
    a("s_cbranch_scc1 L_END")
    a("s_load_dwordx16 s[4:19], s[0:1], 0")
    a("s_load_dwordx4 s[20:23], s[0:1], 64")
    if STAMP or E("DIAGT", ""):
        a("s_memrealtime s[96:97]")
        a("s_memtime s[70:71]")
    a("v_lshrrev_b32 v1, 6, v0")
    a("v_and_b32 v0, 63, v0")
    a("v_readfirstlane_b32 s27, v1")
    a("s_and_b32 s64, s2, 7")
    a("s_lshr_b32 s32, s2, 3")
    a("s_lshr_b32 s34, s64, 1")
    a("s_and_b32 s33, s64, 1")
    a("s_lshr_b32 s29, s32, 3")
    a("s_lshl_b32 s24, s34, 2")
    a("s_add_u32 s24, s24, s29")
    a("s_and_b32 s26, s32, 1")
    a("s_bfe_u32 s25, s32, 0x20001")
    a("s_lshl_b32 s65, s33, 2")
    a("s_add_u32 s25, s25, s65")
    a("s_lshl_b32 s28, s25, 1")
    a("s_cmp_eq_u32 s26, s33" if E("HS", "0") == "0" else "s_cmp_lg_u32 s26, s33")
    a("s_addc_u32 s28, s28, 0")
    a("s_mul_i32 s30, s32, 37")
    a("s_lshr_b32 s30, s30, 8")
    a("s_mul_i32 s31, s30, 7")
    a("s_sub_u32 s31, s32, s31")
    a("s_lshl_b32 s64, s64, 2")
    a("s_add_u32 s30, s30, s64")
    a("s_mov_b32 s35, s27")
    a("s_cmp_ge_u32 s27, 4")
    a("s_cbranch_scc0 L_COMPUTE")
    helper(a)
    compute(a)
    a.label("L_END")
    a("s_endpgm")
    a.label("L_CODE_END")

def helper(a):
    a("s_sub_u32 s27, s27, 4")
    a("v_lshrrev_b32 v1, 3, v0")
    a("s_lshl_b32 s64, s24, 7")
    a("s_lshl_b32 s65, s27, 5")
    a("s_add_u32 s64, s64, s65")
    a("v_add_u32 v1, s64, v1")
    a("v_mul_u32_u24 v1, 896, v1")
    a("v_lshrrev_b32 v2, 4, v0")
    a("v_and_b32 v3, 7, v0")
    a("v_xor_b32 v2, v2, v3")
    a("v_lshl_add_u32 v2, v2, 4, v1")
    a("v_xor_b32 v3, 64, v2")
    a("v_add_u32 v3, 7168, v3")
    a("v_add_u32 v4, 14336, v2")
    a("v_add_u32 v5, 14336, v3")
    dma_lane_w(a, 6, 10, 11, 2688)
    a("s_mul_i32 s64, s27, 43008")
    a("s_mul_i32 s65, s25, 112")
    a("s_add_u32 s64, s64, s65")
    a("s_add_u32 s64, s64, 896")
    a("v_add_u32 v6, s64, v6")
    a("v_add_u32 v7, 21504, v6")
    a("v_add_u32 v8, 896, v6")
    a("v_add_u32 v9, 896, v7")
    a("s_lshl_b32 s66, s27, 12")
    a("s_lshl_b32 s67, s27, 11")
    a(f"s_add_u32 s67, s67, {RING}")
    a(f"s_mov_b32 s{SX+2}, 1835008")
    a(f"s_mov_b32 s{SX+3}, 0x20000")
    a(f"s_mov_b32 s{SW+2}, 1204224")
    a(f"s_mov_b32 s{SW+3}, 0x20000")
    a("s_cmp_eq_u32 s26, 0")
    a("s_waitcnt lgkmcnt(0)")
    a(f"s_mov_b32 s{SX}, s4")
    a(f"s_mov_b32 s{SX+1}, s5")
    a(f"s_cselect_b32 s{SW}, s6, s12")
    a(f"s_cselect_b32 s{SW+1}, s7, s13")
    vm = []
    def xload(c):
        for q in range(4):
            a(f"s_add_u32 m0, s66, {c*16384 + q*1024}")
            a(f"s_mov_b32 s64, {c*128}" if q == 0 else "s_nop 0")
            a(f"buffer_load_dwordx4 v{2+q}, {R(SX)}, s64 offen lds"); vm.append(("x", c))
    def wload(c):
        for pt in range(2):
            for u in range(2):
                a(f"s_add_u32 m0, s67, {(c%3)*16384 + pt*8192 + u*1024}")
                a(f"s_mov_b32 s65, {c*172032}" if pt + u == 0 else "s_nop 0")
                a(f"buffer_load_dwordx4 v{6+2*pt+u}, {R(SW)}, s65 offen lds"); vm.append(("w", c))
    def qload(d):
        for mat in range(2):
            for u in range(2):
                a(f"s_add_u32 m0, s67, {((7+d)%3)*16384 + mat*8192 + u*1024}")
                a(f"s_mov_b32 s65, {d*344064}" if mat + u == 0 else "s_nop 0")
                a(f"buffer_load_dwordx4 v{10+u}, {R(SWA if mat == 0 else SWB)}, s65 offen lds"); vm.append(("q", d))
    def waitfor(*tags):
        last = max(i for i, tg in enumerate(vm) if tg in tags)
        a(f"s_waitcnt vmcnt({len(vm)-1-last})")
    def patch(d):
        a("s_mov_b32 exec_hi, 0")
        a(f"ds_write_b16 v16, v{12+d} offset:{((7+d)%3)*16384}")
        a("s_mov_b32 exec_hi, -1")
        a("s_waitcnt lgkmcnt(0)")
    def initcheck(tag):
        a("v_readfirstlane_b32 s69, v17")
        a("s_nop 0")
        a("s_cmp_lg_u32 s69, 0")
        a(f"s_cbranch_scc1 H_INIT_OK{tag}")
        poll(a, "INIT" + tag, R(SD), "0", 1, 18, 17)
        a.label(f"H_INIT_OK{tag}")
    stamp(a, 1, 2)
    xload(0); wload(0)
    srd(a, SWA, 6, 1204224); srd(a, SWB, 12, 1204224)
    srd(a, SWS, 22, WS_SIZE); srd(a, SD, 20, 256); srd(a, SG, 16, 896)
    a("v_lshrrev_b32 v10, 2, v0")
    a("s_lshl_b32 s64, s27, 5")
    a("v_add_u32 v10, s64, v10")
    a("v_mul_u32_u24 v10, 2688, v10")
    a("v_and_b32 v11, 3, v0")
    a("v_lshl_add_u32 v10, v11, 4, v10")
    a("s_mul_i32 s65, s28, 56")
    a("v_add_u32 v10, s65, v10")
    a("v_add_u32 v11, 43008, v10")
    a("v_add_u32 v17, s64, v0")
    a("v_lshlrev_b32 v16, 6, v17")
    a(f"v_add_u32 v16, {RING + 8192 + 56}, v16")
    a("v_lshlrev_b32 v17, 1, v17")
    a("s_and_b32 s64, s32, 0x1e")
    a("s_and_b32 s65, s27, 1")
    a("s_add_u32 s64, s64, s65")
    a("s_mul_i32 s64, s64, 14")
    a("v_lshrrev_b32 v20, 2, v0")
    a("v_add_u32 v20, s64, v20")
    a("v_mul_u32_u24 v20, 2688, v20")
    a("v_and_b32 v21, 3, v0")
    a("v_lshl_add_u32 v20, v21, 7, v20")
    a("s_mul_i32 s64, s33, 384")
    a("v_add_u32 v20, s64, v20")
    a("v_mov_b32 v18, 0")
    a("s_barrier")
    if E("AF", "1") == "1":
        a("s_cmp_eq_u32 s26, 0")
        a("s_cbranch_scc0 H_C1B")
        a("s_waitcnt vmcnt(0)")
        a("s_barrier")
        xload(1); wload(1)
        a("s_branch H_C1D")
        a.label("H_C1B")
        del vm[8:]
    xload(1); wload(1)
    stamp(a, 1); stamp(a, 2, 2)
    for c in range(5):
        waitfor(("x", c), ("w", c)); a("s_barrier"); stamp(a, 3+c, 2)
        if c == 0:
            stamp(a, 2)
            a.label("H_C1D")
        xload(c+2); wload(c+2)
        if c == 1:
            for d in range(4):
                a(f"buffer_load_ushort v{12+d}, v17, {R(SG)}, 0 offen offset:{256*d}"); vm.append(("g", d))
        if c == 3:
            a(f"buffer_load_dword v17, v18, {R(SD)}, 0 offen sc1"); vm.append(("d", 0))
    a("s_cmp_eq_u32 s26, 0")
    if E("PQ", "0") == "1":
        a("s_cbranch_scc0 H_NOPQ")
        a("s_cmp_ge_u32 s27, 2")
        a("s_cselect_b32 s88, s12, s6")
        a("s_cselect_b32 s89, s13, s7")
        a("s_mov_b32 s90, 1204224")
        a("s_mov_b32 s91, 0x20000")
        a("s_mov_b32 exec_hi, 0xffffff")
        a("buffer_load_dword a64, v20, s[88:91], 0 offen")
        a("s_mov_b64 exec, -1")
        a("s_waitcnt vmcnt(9)")
        a("s_branch H_PQD")
        a.label("H_NOPQ")
    waitfor(("x",5),("w",5))
    a.label("H_PQD")
    a("s_barrier"); stamp(a, 8, 2)
    qload(0)
    a("s_cmp_eq_u32 s26, 0")
    a("s_cbranch_scc0 H_B6B")
    if E("PQ", "0") == "1": a("s_waitcnt vmcnt(5)")
    else: a("s_waitcnt vmcnt(4)")
    a("s_barrier")
    qload(1)
    a("s_waitcnt vmcnt(4)"); patch(0); a("s_barrier")
    qload(2)
    a("s_waitcnt vmcnt(4)")
    patch(1)
    initcheck("A")
    a("s_barrier")
    a("s_branch H_B7D")
    a.label("H_B6B")
    a("s_waitcnt vmcnt(4)")
    a("s_barrier")
    a("s_waitcnt vmcnt(0)"); patch(0); a("s_barrier")
    qload(1)
    a("s_lshl_b32 s64, s25, 4")
    a("s_add_u32 s64, s64, s24")
    a("s_lshl_b32 s64, s64, 7")
    a(f"s_add_u32 s64, s64, {C_KV}")
    initcheck("B")
    a("s_cmp_eq_u32 s27, 3")
    a("s_barrier")
    a("s_cbranch_scc0 H_NOSIGKV")
    signal(a, "s64", 18, 19)
    qload(2)
    a("s_waitcnt vmcnt(5)")
    a("s_branch H_SIGD")
    a.label("H_NOSIGKV")
    qload(2)
    a("s_waitcnt vmcnt(4)")
    a.label("H_SIGD")
    patch(1)
    a.label("H_B7D")
    stamp(a, 10, 2)
    a("s_barrier")
    a("s_cmp_ge_u32 s27, 2")
    a("s_cbranch_scc1 H_NOQ3")
    qload(3)
    a("s_waitcnt vmcnt(4)"); patch(2)
    a("s_branch H_Q3")
    a.label("H_NOQ3")
    a("s_waitcnt vmcnt(0)"); patch(2)
    a.label("H_Q3")
    a("s_barrier")
    a("s_waitcnt vmcnt(0)")
    a("s_cmp_ge_u32 s27, 2")
    a("s_cbranch_scc1 H_NOP3")
    patch(3)
    a.label("H_NOP3")
    a("s_barrier")
    a(f"v_mov_b32 v1, {L_CNT}")
    for i in range(8, 12): a(f"v_mov_b32 v{i}, 0")
    a("ds_write_b128 v1, v[8:11]")
    a("ds_write_b128 v1, v[8:11] offset:16")
    a("v_lshlrev_b32 v2, 4, v0")
    dma_lane_w(a, 3, 4, 5, 896)
    a("s_mul_i32 s64, s27, 7168")
    a("s_lshl_b32 s65, s31, 7")
    a("s_add_u32 s64, s64, s65")
    a("v_add_u32 v3, s64, v3")
    a("s_lshr_b32 s65, s27, 1")
    a("s_mul_i32 s64, s65, 28672")
    a("s_lshl_b32 s65, s65, 6")
    p3_addr(a, 4, "s64", "s65", 8, 9)
    srd(a, SWA, 8, 401408); srd(a, SWB, 14, 401408)
    a("s_lshl_b32 s65, s25, 2")
    a("s_add_u32 s65, s65, s27")
    a("s_lshl_b32 s65, s65, 9")
    a(f"s_add_u32 s65, s65, {C_KV}")
    a("v_lshlrev_b32 v10, 7, v0")
    stamp(a, 3)
    poll(a, "KV", WSR, "s65", 4, 10, 11, int(E("KS", "1")))
    a("s_waitcnt lgkmcnt(0)")
    a("s_barrier")
    a("s_setprio 2")
    stamp(a, 4); stamp(a, 1, 3); stamp(a, 1, 7)
    PQ, G, KF, NUM, PA = 80, 88, 92, 100, 116
    def wo_dma(tag, srdreg, base, lo, hi, depth):
        if hi <= lo: return
        a("s_lshl_b32 s66, s27, 10")
        a(f"s_add_u32 s66, s66, {base + lo*4096}")
        a(f"s_mov_b32 s63, {lo*28672}")
        a.label(f"H_WO{tag}")
        a("s_mov_b32 m0, s66")
        a("s_add_u32 s66, s66, 4096")
        a(f"buffer_load_dwordx4 v3, {R(srdreg)}, s63 offen lds")
        a("s_add_u32 s63, s63, 28672")
        a(f"s_waitcnt vmcnt({depth})")
        a(f"s_cmp_lt_u32 s63, {hi*28672}")
        a(f"s_cbranch_scc1 H_WO{tag}")
    W1 = int(E("W1", "0"))
    a("s_cmp_ge_u32 s32, 28")
    a("s_cbranch_scc1 H_NOWO0")
    wo_dma("0", SWA, 0, 0, W1, int(E("WOD0", "2")))
    a.label("H_NOWO0")
    if "hskip" in X:
        a("s_branch H_SKIP")
    lds_wait(a, "C0", 1, 8, 4, 9)
    stamp(a, 2, 7)
    a("s_lshl_b32 s64, s27, 11")
    a(f"s_add_u32 s64, s64, {L_PQ}")
    a("v_add_u32 v8, s64, v2")
    a(f"ds_read_b128 {vr(PQ,4)}, v8")
    a(f"ds_read_b128 {vr(PQ+4,4)}, v8 offset:1024")
    a("s_lshl_b32 s64, s27, 8")
    a(f"s_add_u32 s64, s64, {L_G}")
    a("v_lshl_add_u32 v8, v0, 2, s64")
    a(f"ds_read_b32 v{G}, v8")
    a("s_cmp_ge_u32 s27, 2")
    a("s_cselect_b32 s64, s26, 1")
    a("s_cmp_eq_u32 s64, 0")
    a("s_cbranch_scc0 H_NOKVP")
    a("s_and_b32 s65, s27, 1")
    a("s_lshl_b32 s64, s65, 12")
    a(f"s_add_u32 s64, s64, {L_KVD}")
    a("v_add_u32 v8, s64, v2")
    for i in range(8):
        a(f"ds_read_b128 {vr(16+4*i,4)}, v8 offset:{1024*(i&3) + 8192*(i>>2)}")
    a("s_lshl_b32 s64, s25, 1")
    a("s_add_u32 s64, s64, s65")
    a(f"s_mul_i32 s64, s64, {PAD}")
    a("s_lshl_b32 s65, s24, 12")
    a("s_add_u32 s64, s64, s65")
    a(f"s_add_u32 s64, s64, {WS_KVP}")
    a("s_waitcnt lgkmcnt(0)")
    vadd(a, 16, 32, 16)
    for q in range(4):
        a(f"buffer_store_dwordx4 {vr(16+4*q,4)}, v2, {WSR}, s64 offen offset:{1024*q} sc1")
    a("s_lshl_b32 s64, s25, 4")
    a("s_add_u32 s64, s64, s24")
    a("s_lshl_b32 s64, s64, 7")
    a(f"s_add_u32 s64, s64, {C_A}")
    a("v_mov_b32 v11, 1")
    stamp(a, 3, 7)
    a("s_waitcnt vmcnt(0)")
    stamp(a, 4, 7)
    a("s_mov_b64 exec, 1")
    a("ds_add_rtn_u32 v9, v1, v11 offset:12")
    a("s_waitcnt lgkmcnt(0)")
    a("v_readfirstlane_b32 s69, v9")
    a("s_mov_b64 exec, -1")
    a("s_cmp_eq_u32 s69, 1")
    a("s_cbranch_scc0 H_NOKVP")
    signal(a, "s64", 10, 11)
    a.label("H_NOKVP")
    stamp(a, 5, 7)
    a("s_cmp_ge_u32 s32, 28")
    a("s_cbranch_scc1 H_NOWOA")
    wo_dma("A", SWA, 0, W1, 14, int(E("WOD", "5")))
    wo_dma("B", SWB, 57344, 0, 14, int(E("WOD", "5")))
    a.label("H_NOWOA")
    stamp(a, 2, 3); stamp(a, 6, 7)
    a("s_lshl_b32 s64, s25, 11")
    a(f"s_add_u32 s64, s64, {C_A}")
    if "nopolla" not in X:
        a("s_cmp_eq_u32 s27, 0")
        a("s_cbranch_scc0 H_AW")
        poll(a, "A", WSR, "s64", 16, 10, 11, int(E("AS", "16")))
        a("v_mov_b32 v11, 1")
        a("ds_write_b32 v1, v11 offset:16")
        a("s_branch H_AD")
        a.label("H_AW")
        lds_wait(a, "A", 1, 16, 1, 9, 4)
        a.label("H_AD")
    stamp(a, 3, 3); stamp(a, 7, 7)
    a(f"s_mul_i32 s64, s28, {PAD}")
    a("s_lshl_b32 s65, s27, 10")
    a("s_add_u32 s64, s64, s65")
    a(f"s_add_u32 s64, s64, {WS_KVP}")
    KD = int(E("KD", "2"))
    for i in range(16):
        if "nokvl" not in X: a(f"buffer_load_dwordx4 {vr(16+4*i,4)}, v2, {WSR}, s64 offen sc1")
        a("s_add_u32 s64, s64, 4096")
        if i > KD:
            a(f"s_waitcnt vmcnt({KD})")
            if "nokva" not in X: vadd(a, 16, 16+4*(i-KD), 4)
    stamp(a, 4, 3)
    for j in range(16-KD, 16):
        a(f"s_waitcnt vmcnt({15-j})")
        vadd(a, 16, 16+4*j, 4)
    stamp(a, 5, 3)
    a("v_cvt_pk_bf16_f32 v16, v16, v17")
    a("v_cvt_pk_bf16_f32 v17, v18, v19")
    a("s_lshr_b32 s64, s27, 1")
    a("s_lshl_b32 s64, s64, 10")
    a("s_and_b32 s65, s27, 1")
    a("s_lshl_b32 s65, s65, 3")
    a("s_add_u32 s64, s64, s65")
    a(f"s_add_u32 s64, s64, {L_KVF}")
    a("v_add_u32 v8, s64, v2")
    a("ds_write_b64 v8, v[16:17]")
    a("v_mov_b32 v11, 1")
    a("s_waitcnt lgkmcnt(0)")
    a("s_mov_b64 exec, 1")
    a("ds_add_u32 v1, v11")
    lds_wait(a, "C1", 1, 0, 4, 9)
    stamp(a, 6, 3)
    a(f"v_add_u32 v8, {L_KVF}, v2")
    a(f"ds_read_b128 {vr(KF,4)}, v8")
    a(f"ds_read_b128 {vr(KF+4,4)}, v8 offset:1024")
    a("s_waitcnt lgkmcnt(0)")
    a(f"{MF} {vr(NUM,16)}, {vr(KF,4)}, {vr(PQ,4)}, 0")
    a(f"{MF} {vr(NUM,16)}, {vr(KF+4,4)}, {vr(PQ+4,4)}, {vr(NUM,16)}")
    a("s_lshl_b32 s64, s24, 2")
    a("s_add_u32 s64, s64, s27")
    a(f"s_mul_i32 s64, s64, {PAD}")
    a("s_lshl_b32 s65, s28, 11")
    a("s_add_u32 s64, s64, s65")
    a(f"s_add_u32 s64, s64, {WS_OF}")
    a(f"v_mov_b32 v{PA+6}, 0")
    a(f"v_mov_b32 v{PA+7}, 0")
    a("s_nop 15")
    a(f"v_mov_b32 v8, v{NUM+12}")
    a(f"v_mov_b32 v9, v{NUM+12}")
    a("s_nop 1")
    a("v_permlane32_swap_b32 v8, v9")
    a(f"v_add_f32 v9, {f32(EPS)}, v9")
    a("v_rcp_f32 v9, v9")
    a("s_nop 0")
    a(f"v_mul_f32 v9, v9, v{G}")
    vmul(a, NUM, "v9", 16)
    cvt(a, PA, NUM, 0, 6)
    a("s_mov_b32 exec_hi, 0")
    cvt(a, PA, NUM, 6, 8)
    a("s_mov_b32 exec_hi, -1")
    a(f"buffer_store_dwordx4 {vr(PA,4)}, v2, {WSR}, s64 offen sc1")
    a(f"buffer_store_dwordx4 {vr(PA+4,4)}, v2, {WSR}, s64 offen offset:1024 sc1")
    stamp(a, 7, 3)
    a("s_waitcnt vmcnt(0)")
    stamp(a, 8, 3)
    a("s_mov_b64 exec, 1")
    a("ds_add_rtn_u32 v9, v1, v11 offset:4")
    a("s_waitcnt lgkmcnt(0)")
    a("v_readfirstlane_b32 s69, v9")
    a("s_mov_b64 exec, -1")
    a("s_cmp_eq_u32 s69, 3")
    a("s_cbranch_scc0 H_NOSIGOA")
    if "hskip" in X:
        a.label("H_SKIP")
        a("s_cmp_eq_u32 s27, 0")
        a("s_cbranch_scc0 H_NOSIGOA")
    a("s_lshl_b32 s64, s24, 4")
    a("s_add_u32 s64, s64, s28")
    a("s_lshl_b32 s64, s64, 7")
    a(f"s_add_u32 s64, s64, {C_OA}")
    signal(a, "s64", 10, 11)
    a.label("H_NOSIGOA")
    stamp(a, 5); stamp(a, 9, 3)
    a("s_setprio 0")
    a("s_barrier")
    a("s_cmp_ge_u32 s32, 28")
    a("s_cbranch_scc1 H_NOP3B")
    stamp(a, 6)
    a("s_and_b32 s64, s30, 0xfe")
    a("s_lshr_b32 s65, s27, 1")
    a("s_add_u32 s64, s64, s65")
    a("s_lshl_b32 s64, s64, 10")
    a(f"s_add_u32 s64, s64, {C_OA}")
    a("s_and_b32 s62, s27, 1")
    a("s_lshl_b32 s65, s30, 1")
    a("s_add_u32 s62, s62, s65")
    a(f"s_mul_i32 s62, s62, {PAD}")
    a("s_lshr_b32 s65, s27, 1")
    a("s_lshl_b32 s65, s65, 14")
    a("s_add_u32 s62, s62, s65")
    a(f"s_add_u32 s62, s62, {WS_OF}")
    NE = int(E("NE", "8"))
    a("s_mov_b64 exec, 0xff")
    a(f"buffer_load_dword v11, v10, {WSR}, s64 offen sc1")
    a("s_waitcnt vmcnt(0)")
    a("v_cmp_eq_u32 vcc, 0, v11")
    a("s_mov_b64 exec, -1")
    a("s_cbranch_vccnz H_OALATE")
    p3_oloads(a, 2, "s62", NE)
    a("s_barrier")
    a("s_barrier")
    a("s_branch H_OADONE")
    a.label("H_OALATE")
    a("s_barrier")
    a("s_barrier")
    poll(a, "OA", WSR, "s64", 8, 10, 11, 2)
    p3_oloads(a, 2, "s62", NE)
    a.label("H_OADONE")
    NPRE = 16
    for ks in range(NE, 16):
        for x in p3_oload(ks, 2, "s62"): a(x)
    stamp(a, 7); stamp(a, 10, 3)
    p3_gemm(a, 4, [16, 32], [48, 56], True, NPRE, 2, "s62")
    stamp(a, 8)
    a("s_lshl_b32 s64, s27, 13")
    a(f"s_add_u32 s64, s64, {RING}")
    a("v_add_u32 v8, s64, v2")
    a("s_nop 9")
    for i in range(8):
        a(f"ds_write_b128 v8, {vr(16+4*i,4)} offset:{1024*i}")
    a("s_waitcnt lgkmcnt(0)")
    stamp(a, 9)
    a("s_barrier")
    a("s_branch H_EXIT")
    a.label("H_NOP3B")
    a("s_barrier")
    a("s_barrier")
    a.label("H_EXIT")
    stamp(a, 10)
    stamp_out(a, 11)
    a("s_endpgm")

def compute(a):
    a.label("L_COMPUTE")
    XA, WA, WB, XQ, WQ = 2, 6, 7, 8, 12
    FR = 16; accK = [64, 80]; accV = [96, 112]; pK = [128, 136]; pV = [144, 152]
    QA, QB = 96, 112
    def touch(tag, c0, n, withq):
        a("s_lshr_b32 s60, s32, 1")
        a("s_cmp_eq_u32 s27, 3")
        if withq:
            a(f"s_cbranch_scc0 C_T0{tag}")
            srd(a, SWA, 6, 1204224); srd(a, SWB, 12, 1204224)
            a("s_mul_i32 s60, s60, 7")
            a("v_lshrrev_b32 v17, 2, v0")
            a("v_add_u32 v17, s60, v17")
            a("v_lshl_add_u32 v17, v17, 2, s34")
            a("v_mul_u32_u24 v17, 2688, v17")
            a("v_and_b32 v16, 3, v0")
            a("v_lshl_add_u32 v17, v16, 7, v17")
            a("s_mul_i32 s62, s33, 384")
            a("s_mov_b64 exec, 0x0fffffff")
            a(f"buffer_load_dword a88, v17, {R(SWA)}, s62 offen")
            a(f"buffer_load_dword a89, v17, {R(SWB)}, s62 offen")
            if E("TWO", "1") == "1":
                srd(a, SWA, 8, 401408); srd(a, SWB, 14, 401408)
                a("s_lshr_b32 s60, s32, 1")
                a("s_lshl_b32 s60, s60, 3")
                a("s_and_b32 s61, s2, 7")
                a("s_add_u32 s60, s60, s61")
                a("s_mul_i32 s60, s60, 25")
                a("v_add_u32 v17, s60, v0")
                a("v_lshlrev_b32 v17, 7, v17")
                a("s_mov_b64 exec, 0x1ffffff")
                a(f"buffer_load_dword a90, v17, {R(SWA)}, 0 offen")
                a(f"buffer_load_dword a91, v17, {R(SWB)}, 0 offen")
            a("s_mov_b64 exec, -1")
            a(f"s_branch C_TD{tag}")
            a.label(f"C_T0{tag}")
        else:
            a(f"s_cbranch_scc1 C_TD{tag}")
        a("s_cmp_eq_u32 s27, 0")
        a(f"s_cbranch_scc0 C_T1{tag}")
        srd(a, SW, 4, 1835008)
        a("s_lshl_b32 s61, s34, 9")
        a("s_lshl_b32 s60, s60, 5")
        a("s_add_u32 s60, s60, s61")
        a("v_and_b32 v17, 31, v0")
        a("v_add_u32 v17, s60, v17")
        a("v_mul_u32_u24 v17, 896, v17")
        a("v_lshrrev_b32 v16, 5, v0")
        a("v_lshl_add_u32 v17, v16, 7, v17")
        a(f"s_mov_b32 s62, {128*c0}")
        a("s_mov_b32 s63, 256")
        a(f"s_branch C_T2{tag}")
        a.label(f"C_T1{tag}")
        a("s_cmp_eq_u32 s27, 1")
        a(f"s_cselect_b32 s{SW}, s12, s6")
        a(f"s_cselect_b32 s{SW+1}, s13, s7")
        a(f"s_mov_b32 s{SW+2}, 1204224")
        a(f"s_mov_b32 s{SW+3}, 0x20000")
        a("v_lshrrev_b32 v17, 5, v0")
        a("v_lshlrev_b32 v17, 6, v17")
        a("v_bfe_u32 v16, v0, 3, 2")
        a("s_lshl_b32 s60, s60, 2")
        a("v_add3_u32 v17, v17, v16, s60")
        a("v_mul_u32_u24 v17, 2688, v17")
        a("v_bfe_u32 v16, v0, 2, 1")
        a("v_mul_u32_u24 v16, 896, v16")
        a("v_add_u32 v17, v17, v16")
        a("v_and_b32 v16, 3, v0")
        a("v_lshl_add_u32 v17, v16, 7, v17")
        a("s_mul_i32 s62, s33, 384")
        a(f"s_add_u32 s62, s62, {896 + 172032*c0}")
        a(f"s_mov_b32 s63, {2*172032}")
        a.label(f"C_T2{tag}")
        for i in range((n+1)//2):
            if 2*i+1 == n: a("s_mov_b32 exec_hi, 0")
            a(f"buffer_load_dword a{88+i}, v17, {R(SW)}, s62 offen")
            if 2*i+1 == n: a("s_mov_b32 exec_hi, -1")
            if 2*i+2 < n: a("s_add_u32 s62, s62, s63")
        a.label(f"C_TD{tag}")
    TB = [int(v) for v in E("TB", "1,3").split(",")]
    TA = [int(v) for v in E("TA", "4,3").split(",")]
    a("s_waitcnt lgkmcnt(0)")
    if TB[1]:
        a("s_cmp_eq_u32 s26, 0")
        a("s_cbranch_scc1 C_NTB")
        touch("B", TB[0], TB[1], E("TQ", "A") == "B")
        a.label("C_NTB")
    TAE = E("TAE", "0")
    if TA[1] and TAE == "1":
        a("s_cmp_eq_u32 s26, 0")
        a("s_cbranch_scc0 C_NTA")
        touch("A", TA[0], TA[1], E("TQ", "A") == "A")
        a.label("C_NTA")
    srd(a, SWS, 22, WS_SIZE)
    a("s_xor_b32 s64, s27, 3")
    a("s_xor_b32 s65, s2, 8")
    a("s_or_b32 s64, s65, s64")
    a("s_cmp_eq_u32 s64, 0")
    a("s_cbranch_scc0 C_NOINIT")
    srd(a, SD, 20, 256)
    a("v_lshlrev_b32 v17, 7, v0")
    a("v_mov_b32 v21, 0")
    a(f"s_mov_b32 s64, {WS_CNT}")
    for i in range(NFLAG // 64):
        a(f"buffer_store_dword v21, v17, {WSR}, s64 offen sc1")
        a("s_add_u32 s64, s64, 8192")
    a("v_mov_b32 v22, 1")
    a("s_waitcnt vmcnt(0)")
    a("s_mov_b64 exec, 1")
    a(f"buffer_store_dword v22, v21, {R(SD)}, 0 offen sc1")
    a("s_mov_b64 exec, -1")
    a.label("C_NOINIT")
    a("s_lshr_b32 s92, s27, 1")
    a("s_and_b32 s93, s27, 1")
    a("v_and_b32 v13, 31, v0")
    a("v_lshrrev_b32 v14, 5, v0")
    a("v_bfe_u32 v15, v0, 1, 3")
    a("v_xor_b32 v15, v15, v14")
    a("s_lshl_b32 s64, s92, 13")
    a("v_lshl_add_u32 v1, v13, 7, s64")
    a("s_lshl_b32 s65, s27, 12")
    a("s_sub_u32 s65, s65, s64")
    for ks in range(4):
        a(f"v_xor_b32 v{XA+ks}, {2*ks}, v15")
        a(f"v_lshl_add_u32 v{XA+ks}, v{XA+ks}, 4, v1")
        a(f"v_add_u32 v{XQ+ks}, s65, v{XA+ks}")
    a("s_mul_i32 s64, s93, 56")
    a(f"v_mov_b32 v{WA}, s64")
    tr_lane_addr(a, WB, WA, 1, 15, 2)
    a(f"v_add_u32 v{WB}, {RING}, v{WB}")
    a(f"v_mov_b32 v{WA}, v{WB}")
    a("v_bfe_u32 v1, v0, 2, 2")
    a("v_lshl_add_u32 v1, v14, 3, v1")
    a("v_lshlrev_b32 v1, 1, v1")
    a("v_bfe_u32 v15, v0, 4, 1")
    a("v_add_u32 v1, v1, v15")
    a("v_lshlrev_b32 v1, 2, v1")
    a("v_and_b32 v15, 3, v0")
    a("v_add_u32 v1, v1, v15")
    a("v_lshlrev_b32 v1, 3, v1")
    a(f"v_add_u32 v{WQ}, {RING}, v1")
    if TA[1] and TAE == "2":
        a("s_cmp_eq_u32 s26, 0")
        a("s_cbranch_scc0 C_NTA")
        touch("A", TA[0], TA[1], E("TQ", "A") == "A")
        a("s_barrier")
        a.label("C_NTA")
    a("v_cmp_eq_u32 vcc, 28, v13")
    a(f"v_mov_b32 v1, {ONE2}")
    a("s_nop 0")
    a("v_cndmask_b32 v15, 0, v1, vcc")
    for s in range(2):
        for i in range(8):
            a(f"v_mov_b32 v{pV[s]+i}, v15")
    a("s_mov_b32 s56, 0x0fffffff")
    a("s_mov_b32 s57, 0x0fffffff")
    a(f"s_mov_b32 s64, {f32(LOG2E)}")
    a(f"s_mov_b32 s65, {f32(QSCALE)}")
    a(f"s_mov_b32 s66, {f32(EPS)}")
    for i in range(32):
        a(f"v_mov_b32 v{accV[0]+i}, 0")
    a("v_lshlrev_b32 v13, 4, v0")
    a("s_cmp_eq_u32 s26, 0")
    a("s_cbranch_scc1 C_A")

    def scalars():
        for s in range(4):
            a(f"s_add_u32 s60, s27, {1+s}")
            a("s_and_b32 s60, s60, 3")
            a(f"s_lshl_b32 s{36+s}, s60, 11")
            a(f"s_add_u32 s{36+s}, s{36+s}, {L_QD}")
            a(f"s_mul_i32 s{40+s}, s60, 12288")
            a(f"s_add_u32 s{40+s}, s{40+s}, {RING + (4096*s if s < 3 else 0)}")
        a(f"s_mul_i32 s44, s28, {4*PAD}")
        a(f"s_mul_i32 s45, s27, {PAD}")
        a("s_add_u32 s45, s45, s44")
        a("s_lshl_b32 s46, s24, 2")
        a("s_add_u32 s46, s46, s27")
        a(f"s_mul_i32 s46, s46, {PAD}")
        a("s_lshl_b32 s60, s28, 11")
        a("s_add_u32 s46, s46, s60")
        a(f"s_add_u32 s46, s46, {WS_OF + 32768}")
        a("s_lshl_b32 s47, s27, 12")
        a(f"s_add_u32 s47, s47, {L_KVD}")
        a("s_lshl_b32 s48, s27, 8")
        a(f"s_add_u32 s48, s48, {L_G}")
    def reads(buf, ks):
        f = FR + 16*buf
        return [f"ds_read_b128 {vr(f,4)}, v{XA+ks}",
                f"ds_read_b64_tr_b16 {vr(f+8,2)}, v{WA} offset:{ks*2048}",
                f"ds_read_b64_tr_b16 {vr(f+10,2)}, v{WA} offset:{ks*2048+512}",
                f"ds_read_b128 {vr(f+4,4)}, v{XA+ks} offset:4096",
                f"ds_read_b64_tr_b16 {vr(f+12,2)}, v{WA} offset:{8192+ks*2048}",
                f"ds_read_b64_tr_b16 {vr(f+14,2)}, v{WA} offset:{8192+ks*2048+512}"]
    def mfmas(buf, kT):
        f = FR + 16*buf
        Xf = [vr(f, 4), vr(f+4, 4)]; Wk, Wv = vr(f+8, 4), vr(f+12, 4)
        m = []
        for s in range(2): m.append(f"{MF} {vr(accV[s],16)}, {Xf[s]}, {Wk}, {vr(accV[s],16)}")
        for s in range(2):
            if kT: m.append(f"{MF} {vr(accK[s],16)}, {Wv}, {Xf[s]}, {vr(accK[s],16)}")
            else:  m.append(f"{MF} {vr(accK[s],16)}, {Xf[s]}, {Wv}, {vr(accK[s],16)}")
        return m
    def mainloop(tag, kT):
        a("s_mov_b32 s60, 0")
        a("s_mov_b32 s61, 0")
        if STAMP != 4: stampc(a, 1)
        a("s_barrier")
        if STAMP != 4: stampc(a, 2)
        for r in reads(0, 0): a(r)
        a(".p2align 6")
        a.label(f"C_{tag}_LOOP")
        for ks in range(4):
            m = mfmas(ks & 1, kT); r = reads((ks+1) & 1, (ks+1) & 3)
            if ks < 3:
                a("s_waitcnt lgkmcnt(3)"); a(m[0]); a(r[0]); a(r[1]); a(r[2])
                a("s_waitcnt lgkmcnt(5)"); a(m[1]); a(r[3]); a(r[4]); a(r[5])
                a("s_waitcnt lgkmcnt(6)"); a(m[2])
                a(f"v_add_u32 v{XA+ks}, 16384, v{XA+ks}")
                if ks == 2:
                    a("s_add_u32 s60, s60, 1")
                    a("s_add_u32 s61, s61, 16384")
                    a("s_cmp_eq_u32 s61, 49152")
                    a("s_cselect_b32 s61, 0, s61")
                a(m[3])
            else:
                a(f"v_add_u32 v{WA}, s61, v{WB}")
                a("s_cmp_eq_u32 s60, 7")
                a("s_waitcnt lgkmcnt(0)")
                a(f"s_cbranch_scc1 C_{tag}_TAIL")
                a("s_barrier")
                a(m[0]); a(r[0]); a(r[1]); a(r[2])
                a(m[1]); a(r[3]); a(r[4]); a(r[5])
                a(m[2])
                a(f"v_add_u32 v{XA+3}, 16384, v{XA+3}")
                a(m[3])
                a(f"s_branch C_{tag}_LOOP")
                a.label(f"C_{tag}_TAIL")
                for x in m: a(x)
        stampc(a, 3)
    _reads = reads
    def reads(buf, ks):
        r = _reads(buf, ks)
        f = FR + 16*buf
        r[1] = f"ds_read_b64_tr_b16 {vr(f+8,2)}, v{WA} offset:{8192+ks*2048}"
        r[2] = f"ds_read_b64_tr_b16 {vr(f+10,2)}, v{WA} offset:{8192+ks*2048+512}"
        r[4] = f"ds_read_b64_tr_b16 {vr(f+12,2)}, v{WA} offset:{ks*2048}"
        r[5] = f"ds_read_b64_tr_b16 {vr(f+14,2)}, v{WA} offset:{ks*2048+512}"
        return r
    def cvt_v():
        a("s_nop 9")
        a("s_mov_b64 exec, s[56:57]")
        for s in range(2): cvt(a, pV[s], accV[s])
        a("s_mov_b64 exec, -1")
    def phase1b(fill):
        def qreads(k):
            f = FR + 12*(k % 3); d, kk = k >> 3, k & 7
            c = k >> 2
            o = ((7+d) % 3)*16384 + kk*1024
            return [f"ds_read_b128 {vr(f,4)}, v{XQ+(k&3)} offset:{(c&3)*16384}",
                    f"ds_read_b64_tr_b16 {vr(f+8,2)}, v{WQ} offset:{o+8192}",
                    f"ds_read_b64_tr_b16 {vr(f+10,2)}, v{WQ} offset:{o+8192+256}",
                    f"ds_read_b64_tr_b16 {vr(f+4,2)}, v{WQ} offset:{o}",
                    f"ds_read_b64_tr_b16 {vr(f+6,2)}, v{WQ} offset:{o+256}"]
        stampc(a, 4)
        a("s_barrier")
        if STAMP == 6: stampc(a, 15)
        for k in (0, 1):
            for r in qreads(k): a(r)
        for k in range(28):
            f = FR + 12*(k % 3)
            r = qreads(k+2) if k+2 < 28 else []
            nout = 5 if k+1 < 28 else 0
            bar = (k+2) < 28 and (k+2) % 8 == 0
            if k == SIGK:
                a("s_waitcnt vmcnt(0)")
                a("s_barrier")
            if bar:
                if STAMP == 6: stampc(a, 9 + 2*(k // 8))
                a("s_barrier")
                if STAMP == 6: stampc(a, 10 + 2*(k // 8))
            a(f"s_waitcnt lgkmcnt({nout+2})")
            a(f"{MF} {vr(QB,16)}, {vr(f+8,4)}, {vr(f,4)}, {'0' if k == 0 else vr(QB,16)}")
            for x in r[:3]: a(x)
            for x in fill(k, 0): a(x)
            a(f"s_waitcnt lgkmcnt({nout + len(r[:3])})")
            a(f"{MF} {vr(QA,16)}, {vr(f+4,4)}, {vr(f,4)}, {'1.0' if k == 0 else vr(QA,16)}")
            for x in r[3:]: a(x)
            for x in fill(k, 1): a(x)
            if 10 <= k <= 13:
                a(f"v_add_u32 v{XQ+((k+2)&3)}, 65536, v{XQ+((k+2)&3)}")
        stampc(a, 5)
        a("v_add_u32 v1, s39, v13")
        a("v_mov_b32 v22, 0")
        a("v_mov_b32 v23, 0")
        a("s_nop 7")
        a(f"v_mov_b32 v14, v{QB+12}")
        a(f"v_mov_b32 v15, v{QB+12}")
        vmul(a, QB, "s65", 8)
        a("v_permlane32_swap_b32 v15, v14")
        cvt(a, 16, QB, 0, 4)
        a("ds_write_b128 v1, v[16:19]")
        vmul(a, QB+8, "s65", 8)
        cvt(a, 16, QB, 4, 6)
        a("s_mov_b32 exec_hi, 0")
        cvt(a, 16, QB, 6, 8)
        a("s_mov_b32 exec_hi, -1")
        a("ds_write_b128 v1, v[20:23] offset:1024")
    def defer_q(a, mats):
        PP = QB + 8
        w = [f"v_mul_f32 v14, {f32(-LOG2E)}, v14", "v_exp_f32 v14, v14", f"v_mov_b32 v{PP+6}, 0", f"v_mov_b32 v{PP+7}, 0",
             "v_add_f32 v14, 1.0, v14", "v_rcp_f32 v14, v14"] + phi_list(QA, QB)
        for i, x in enumerate(w):
            if mats and i % 7 == 0: a(mats.pop(0))
            a(x)
        for x in mats: a(x)
        cvt(a, PP, QA, 0, 6)
        a("s_mov_b32 exec_hi, 0")
        cvt(a, PP, QA, 6, 8)
        a("s_mov_b32 exec_hi, -1")
        a(f"ds_write_b128 v1, {vr(PP,4)} offset:8192")
        a(f"ds_write_b128 v1, {vr(PP+4,4)} offset:9216")
        a("v_lshl_add_u32 v15, v0, 2, s48")
        a("ds_write_b32 v15, v14")
        a("v_sub_f32 v14, 1.0, v14")
    O = [16, 32, 48, 64]; S = [80, 96, 112, 128]; Q = [0, 8, 16, 24]; KV = [32, 48, 64, 80]
    RA = 144
    def ld(dst, off, v="v1", so="s58"):
        return f"buffer_load_dwordx4 {ar(dst,4)}, {v}, {WSR}, {so} offen" + (f" offset:{off}" if off else "") + " sc1"
    adv = ["s_add_u32 s58, s58, 4096"]
    ZR = ar(KV[3]+12, 4)
    zero = lambda d: f"{MF} {vr(d,16)}, {ZR}, {ZR}, 0"
    def pre(a):
        for i in range(4): a(f"v_accvgpr_write_b32 a{KV[3]+12+i}, 0")
        a("v_add_u32 v4, s44, v13")
        a(f"v_mov_b32 v5, {L_CNT}")
        a("v_mov_b32 v6, 1")
    def first_loads(work):
        stampc(a, 7)
        a("v_add_u32 v7, s45, v13")
        a("s_mov_b32 s58, 4096")
        a("s_mov_b32 s59, 8192")
        for f in range(4):
            a(ld(KV[0]+4*f, 1024*f, "v7", "0"))
            a(f"v_add_u32 v{8+f}, s{36+f}, v13")
            a(f"ds_read_b128 {ar(Q[f],4)}, v{8+f}")
            a(f"ds_read_b128 {ar(Q[f]+4,4)}, v{8+f} offset:1024")
        sub = Asm(); work(sub)
        lines = sub.lines
        rest = [ld(KV[n]+4*f, 1024*f, "v7", f"s{57+n}") for n in (1, 2) for f in range(4)]
        gap = int(E("LG", "8")); full = True
        for i, l in enumerate(lines):
            a.lines.append(l)
            if "exec" in l and l.strip().startswith("s_mov"): full = l.strip().endswith("-1")
            if rest and full and i % gap == gap - 1: a(rest.pop(0))
        for x in rest: a(x)
        a("s_mov_b32 s58, 12288")

    for i in range(32): a(f"v_mov_b32 v{accK[0]+i}, 0")
    for s in range(2):
        a(f"v_mov_b32 v{pK[s]+6}, v1"); a(f"v_mov_b32 v{pK[s]+7}, v1")
    a("v_and_b32 v15, 0x33, v0")
    a("v_bfe_u32 v1, v0, 2, 1")
    a("v_lshl_add_u32 v15, v1, 3, v15")
    a("v_bfe_u32 v1, v0, 3, 1")
    a("v_lshl_add_u32 v15, v1, 2, v15")
    a("v_lshlrev_b32 v15, 4, v15")
    a("s_lshl_b32 s58, s25, 1")
    a("s_add_u32 s58, s58, s93")
    a("s_lshl_b32 s58, s58, 2")
    a("s_add_u32 s58, s58, s34")
    a(f"s_mul_i32 s58, s58, {PAD}")
    a("s_lshl_b32 s59, s29, 1")
    a("s_add_u32 s59, s59, s92")
    a("s_lshl_b32 s59, s59, 13")
    a("s_add_u32 s58, s58, s59")
    a("s_add_u32 s59, s58, 4096")
    a("s_barrier")
    scalars()
    mainloop("B", True)
    cvt_v()
    st = []
    for s in range(2):
        st.append(f"buffer_store_dwordx4 {vr(pV[s],4)}, v13, {WSR}, s{58+s} offen offset:2048 sc1")
        st.append(f"buffer_store_dwordx4 {vr(pV[s]+4,4)}, v13, {WSR}, s{58+s} offen offset:3072 sc1")
    for s in range(2):
        st.append(f"buffer_store_dwordx4 {vr(pK[s],4)}, v15, {WSR}, s{58+s} offen sc1")
        st.append(f"buffer_store_dwordx4 {vr(pK[s]+4,4)}, v15, {WSR}, s{58+s} offen offset:1024 sc1")
    for x in st[:4]: a(x)
    for s in range(2):
        cvt(a, pK[s], accK[s], 0, 6)
        a("s_mov_b32 exec_hi, 0")
        cvt(a, pK[s], accK[s], 6, 8)
        a("s_mov_b32 exec_hi, -1")
        for x in st[4+2*s:6+2*s]: a(x)
    phase1b(lambda k, slot: [])
    a("s_waitcnt lgkmcnt(0)")
    stampc(a, 6)
    a("s_barrier")
    def workB(a):
        pre(a)
        defer_q(a, [zero(d) for d in O + [S[3]]])
    first_loads(workB)
    a("s_branch C_2")

    a.label("C_A")
    for i in range(32): a(f"v_mov_b32 v{accK[0]+i}, 1.0")
    for s in range(2):
        for i in range(8): a(f"v_mov_b32 v{pK[s]+i}, 0")
    if TA[1] and TAE == "0": touch("A", TA[0], TA[1], E("TQ", "A") == "A")
    if TAE != "2": a("s_barrier")
    scalars()
    mainloop("A", False)
    cvt_v()
    pend = phi_list(accK[0], 52) + phi_list(accK[1], 52)
    NF = int(E("NF", "1"))
    def fillA(k, slot):
        if k == 0: return []
        o = pend[:NF]; del pend[:NF]
        return o
    phase1b(fillA)
    a("s_waitcnt lgkmcnt(0)")
    stampc(a, 6)
    a("s_barrier")
    D = accK[1]
    def workA(a):
        pre(a)
        z = [zero(d) for d in O[:2]]
        for i, x in enumerate(pend):
            if z and i % 7 == 0: a(z.pop(0))
            a(x)
        a("s_mov_b64 exec, s[56:57]")
        for s in range(2): cvt(a, pK[s], accK[s])
        a("s_mov_b64 exec, -1")
        a("s_nop 1")
        defer_q(a, [f"{MF} {vr(D,16)}, {vr(pK[0],4)}, {vr(pV[0],4)}, 0",
                    f"{MF} {vr(D,16)}, {vr(pK[0]+4,4)}, {vr(pV[0]+4,4)}, {vr(D,16)}",
                    f"{MF} {vr(D,16)}, {vr(pK[1],4)}, {vr(pV[1],4)}, {vr(D,16)}",
                    f"{MF} {vr(D,16)}, {vr(pK[1]+4,4)}, {vr(pV[1]+4,4)}, {vr(D,16)}"] + z + [zero(O[2]), zero(O[3]), zero(S[3])])
        a("v_add_u32 v15, s47, v13")
        for q in range(4):
            a(f"ds_write_b128 v15, {vr(D+4*q,4)} offset:{1024*q}")
    first_loads(workA)

    a.label("C_2")
    a("v_mov_b32 v2, 0xdddd")
    a("v_mov_b32 v3, 0")
    a("v_mov_b32 v1, v7")
    a("s_mov_b32 s59, 3")
    for s in range(4): a(f"v_add_u32 v{RA+s}, s{40+s}, v13")
    a("s_waitcnt vmcnt(10) lgkmcnt(0)")
    stampc(a, 8)
    a("s_mov_b64 exec, 1")
    a("ds_add_u32 v5, v6 offset:8")
    a("s_mov_b64 exec, -1")
    a(f"{MF} {vr(S[0],16)}, {ar(KV[0],4)}, {ar(Q[0],4)}, 0")
    a(f"{MF} {vr(S[0],16)}, {ar(KV[0]+4,4)}, {ar(Q[0]+4,4)}, {vr(S[0],16)}")
    a("s_waitcnt vmcnt(8)")
    a("s_nop 9")
    def unit(pos, cur, nxt, prv, slot):
        sc = S[pos & 3]; sn = S[(pos+1) & 3]; sp = S[(pos-1) & 3]
        e = [f"v_exp_f32 v{sc+i}, v{sc+i}" for i in range(16)]
        if nxt: a(f"{MF} {vr(sn,16)}, {ar(KV[nxt[0]],4)}, {ar(Q[nxt[1]],4)}, 0")
        for x in slot[0]: a(x)
        for x in e[0:4]: a(x)
        a(f"{SM} {vr(O[prv[1]],16)}, {ar(KV[prv[0]]+12,4)}, {vr(sp+8,8)}, v2")
        for x in slot[1]: a(x)
        for x in e[4:8]: a(x)
        if nxt: a(f"{MF} {vr(sn,16)}, {ar(KV[nxt[0]]+4,4)}, {ar(Q[nxt[1]]+4,4)}, {vr(sn,16)}")
        for x in slot[2]: a(x)
        for x in e[8:12]: a(x)
        a(f"{SM} {vr(O[cur[1]],16)}, {ar(KV[cur[0]]+8,4)}, {vr(sc,8)}, v2")
        for x in slot[3]: a(x)
        if nxt:
            for _ in range(2 - min(2, len(slot[2]) + len(slot[3]))): a("s_nop 0")
        for x in e[12:16]: a(x)
    LP = int(E("LP", "2"))
    def plain(n, s):
        slot = [[], [], [], []]
        slot[LP].append(ld(KV[(n+3) & 3] + 4*s, 1024*s))
        if s == 3: slot[3] += adv
        if s == 2: slot[3].append("s_waitcnt vmcnt(7)")
        return slot
    a(".p2align 6")
    a.label("C_ATT")
    for n in range(4):
        for s in range(4):
            slot = plain(n, s)
            if n == 3 and s == 1: slot[3].append("s_sub_u32 s59, s59, 1")
            if n == 3 and s == 3: slot[3].append("s_cmp_lg_u32 s59, 0")
            unit(s, (n, s), ((n + (s == 3)) & 3, (s+1) & 3), ((n - (s == 0)) & 3, (s-1) & 3), slot)
    a("s_cbranch_scc1 C_ATT")
    seq = [(0, s) for s in range(4)] + [(1, s) for s in range(4)] + [(n, s) for s in range(4) for n in (2, 3)]
    for i, cur in enumerate(seq):
        nxt = seq[i+1] if i < 15 else None
        prv = seq[i-1] if i > 0 else (3, 3)
        slot = plain(*cur) if i < 4 else [[], [], [], []]
        if i == 6: slot[3].append("s_waitcnt vmcnt(0)")
        w = {11: 0, 13: 1, 15: 2}
        for first, s_ in ((11, 0), (13, 1)):
            if i in (first, first+1):
                for q in range(2):
                    qq = 2*(i - first) + q
                    slot[1 + 2*q].append(f"ds_write_b128 v{RA+s_}, {vr(O[s_]+4*qq,4)} offset:{1024*qq}")
        if i == 15:
            for q in range(4):
                slot[q].append(f"ds_write_b128 v{RA+2}, {vr(O[2]+4*q,4)} offset:{1024*q}")
        unit(i, cur, nxt, prv, slot)
        if i == int(E("XP", "10")):
            if STAMP == 4: stampc(a, 1)
            a("s_barrier")
            if STAMP == 4: stampc(a, 2)
    a("s_setprio 1")
    a("v_mov_b32 v22, 0")
    a(f"{SM} {vr(O[3],16)}, {ar(KV[3]+12,4)}, {vr(S[3]+8,8)}, v2")
    a("v_mov_b32 v23, 0")
    a(f"s_mov_b32 s62, {f32(2.0**-40)}")
    a(f"s_mov_b32 s63, {f32(2.0**40)}")
    a("s_waitcnt lgkmcnt(0)")
    a("s_barrier")
    if STAMP != 6: stampc(a, 9)
    for i in range(12):
        a(f"ds_read_b128 {vr(S[0]+4*i,4)}, v{RA+3} offset:{1024*((i % 3)*4 + i // 3)}")
    for q in range(4):
        a(f"s_waitcnt lgkmcnt({9-3*q})")
        b = S[0] + 12*q
        vadd(a, b, b+4, 4)
        vadd(a, O[3]+4*q, b+8, 4)
        vadd(a, O[3]+4*q, b, 4)
    a(f"v_mov_b32 v6, v{O[3]+12}")
    a(f"v_mov_b32 v7, v{O[3]+12}")
    a("s_nop 1")
    a("v_permlane32_swap_b32 v6, v7")
    a("v_cmp_nge_f32 vcc, v7, s62")
    a("v_cmp_nle_f32 s[64:65], v7, s63")
    a("v_rcp_f32 v7, v7")
    a("s_or_b64 vcc, vcc, s[64:65]")
    a("s_cbranch_scc1 C_FALLBACK")
    a.label("C_FIN")
    a(f"v_mov_b32 v5, {RING + 49152 - 16}")
    a("s_cmp_eq_u32 s27, 3")
    a("s_cbranch_scc0 C_NOCLR")
    a("ds_write_b32 v5, v3")
    a.label("C_NOCLR")
    a("v_mul_f32 v7, v7, v14")
    vmul(a, O[3], "v7", 8)
    cvt(a, 16, O[3], 0, 4)
    a(f"buffer_store_dwordx4 v[16:19], v13, {WSR}, s46 offen sc1")
    vmul(a, O[3]+8, "v7", 8)
    cvt(a, 16, O[3], 4, 6)
    a("s_mov_b32 exec_hi, 0")
    cvt(a, 16, O[3], 6, 8)
    a("s_mov_b32 exec_hi, -1")
    a(f"buffer_store_dwordx4 v[20:23], v13, {WSR}, s46 offen offset:1024 sc1")
    a("s_waitcnt lgkmcnt(0)")
    a("s_barrier")
    if STAMP != 6: stampc(a, 10)
    a("s_mul_i32 s60, s92, 28672")
    a("s_add_u32 s60, s60, 57344")
    a("s_lshl_b32 s61, s92, 6")
    a("v_mov_b32 v1, v5")
    p3_addr(a, 4, "s60", "s61", 8, 9)
    a("s_lshl_b32 s60, s27, 13")
    a(f"s_add_u32 s60, s60, {RING}")
    a("v_add_u32 v8, s60, v13")
    a("s_lshl_b32 s60, s27, 12")
    a(f"s_add_u32 s60, s60, {RING + 32768}")
    a("v_add_u32 v9, s60, v13")
    a("v_xor_b32 v10, 8192, v9")
    a("s_lshl_b32 s60, s30, 1")
    a("s_add_u32 s60, s60, s93")
    a("v_and_b32 v11, 31, v0")
    a("s_lshl_b32 s61, s60, 5")
    a("v_add_u32 v11, s61, v11")
    a("v_mul_u32_u24 v11, 896, v11")
    a("v_lshrrev_b32 v12, 5, v0")
    a("v_lshl_add_u32 v11, v12, 4, v11")
    a(f"s_mul_i32 s60, s60, {PAD}")
    a("s_lshl_b32 s61, s92, 14")
    a("s_add_u32 s60, s60, s61")
    a(f"s_add_u32 s60, s60, {WS_OF + 32768}")
    a("s_and_b32 s61, s30, 0xfe")
    a("s_lshl_b32 s61, s61, 10")
    a(f"s_add_u32 s61, s61, {C_OB}")
    a("s_lshl_b32 s62, s31, 7")
    a("s_lshl_b32 s63, s92, 6")
    a("s_add_u32 s62, s62, s63")
    srd(a, SX, 18, 1835008)
    a("s_lshl_b32 s64, s24, 4")
    a("s_add_u32 s64, s64, s28")
    a("s_lshl_b32 s64, s64, 7")
    a(f"s_add_u32 s64, s64, {C_OB}")
    a("v_mov_b32 v12, 1")
    a("s_mov_b64 exec, 1")
    a("s_waitcnt vmcnt(0)")
    a("ds_add_rtn_u32 v14, v1, v12")
    a("s_waitcnt lgkmcnt(0)")
    a("v_readfirstlane_b32 s69, v14")
    a("s_nop 0")
    a("s_cmp_eq_u32 s69, 3")
    a("s_cbranch_scc0 C_NOSIG")
    a(f"buffer_store_dword v12, v3, {WSR}, s64 offen sc1")
    a.label("C_NOSIG")
    a("s_mov_b64 exec, -1")
    if STAMP != 6: stampc(a, 11)
    a("s_cmp_ge_u32 s32, 28")
    a("s_cbranch_scc1 C_EXIT")
    a("s_cmp_eq_u32 s27, 0")
    a("s_cbranch_scc0 C_OBD")
    a("v_lshlrev_b32 v14, 7, v0")
    poll(a, "OB", WSR, "s61", 16, 14, 12, int(E("OBS", "2")), False)
    a.label("C_OBD")
    a("s_barrier")
    if STAMP != 6: stampc(a, 12)
    NPRE = int(E("NPRE", "10"))
    p3_oloads(a, 13, "s60", NPRE)
    for i in range(8):
        a(f"ds_read_b128 {vr(16+4*i,4)}, v8 offset:{1024*i}")
    p3_gemm(a, 4, [16, 32], [48, 56], False, NPRE, 13, "s60")
    if STAMP != 6: stampc(a, 13)
    a("s_nop 11")
    for i in range(4):
        a(f"ds_write_b128 v9, {vr(32+4*i,4)} offset:{1024*i}")
    a("s_waitcnt lgkmcnt(0)")
    a("s_barrier")
    for i in range(4):
        a(f"ds_read_b128 {vr(32+4*i,4)}, v10 offset:{1024*i}")
    OFL = E("OFL", "")
    for hf in range(2):
        for q in (2*hf, 2*hf+1):
            a(f"s_waitcnt lgkmcnt({3-q})")
            vadd(a, 16+4*q, 32+4*q, 4)
        cvt(a, 48, 16, 4*hf, 4*hf+4)
        a("s_nop 1")
        a(f"v_permlane32_swap_b32 v{48+4*hf}, v{50+4*hf}")
        a(f"v_permlane32_swap_b32 v{49+4*hf}, v{51+4*hf}")
        a(f"buffer_store_dwordx4 {vr(48+4*hf,4)}, v11, {R(SX)}, s62 offen offset:{32*hf} {OFL}")
    a.label("C_EXIT")
    if E("DIAGT", ""):
        a("s_xor_b32 s64, s2, %s" % E("DIAGW", "0"))
        a("s_or_b32 s64, s64, s27")
        a("s_cmp_eq_u32 s64, 0")
        a("s_cbranch_scc0 C_DX")
        if E("DIAGP", ""):
            a("s_sub_u32 s100, s100, s96")
            a("s_lshl_b32 s100, s100, 1")
            a("s_add_u32 s96, s96, s100")
        a.label("C_DL")
        a("s_memrealtime s[98:99]")
        a("s_waitcnt lgkmcnt(0)")
        a("s_sub_u32 s98, s98, s96")
        a("s_cmp_lt_i32 s98, %s" % E("DIAGT", ""))
        a("s_cbranch_scc1 C_DL")
        a.label("C_DX")
    if STAMP != 6: stampc(a, 14)
    if STAMP: a("s_waitcnt vmcnt(0)")
    if STAMP != 6: stampc(a, 15)
    stamp_out(a, 16)
    a("s_endpgm")
    a.label("C_FALLBACK")
    Qo = Q[3]; K0 = KV[0]; Sx = S[0]
    def fb_adv():
        a("s_add_u32 s58, s58, 4096")
        a("s_add_u32 s59, s59, 1")
        a("s_and_b32 s61, s59, 15")
        a(f"s_cselect_b32 s61, 0, {PAD-65536}")
        a("s_add_u32 s58, s58, s61")
        a("s_nop 15")
    a("s_mov_b32 s58, 0")
    a("s_mov_b32 s59, 0")
    a(f"v_mov_b32 v8, {f32(float('-inf'))}")
    a.label("C_FB1")
    a(ld(K0, 0, "v4")); a(ld(K0+4, 1024, "v4"))
    a("s_waitcnt vmcnt(0)")
    a(f"{MF} {vr(Sx,16)}, {ar(K0,4)}, {ar(Qo,4)}, 0")
    a(f"{MF} {vr(Sx,16)}, {ar(K0+4,4)}, {ar(Qo+4,4)}, {vr(Sx,16)}")
    fb_adv()
    a("s_nop 15")
    for i in range(8):
        a(f"v_max3_f32 v8, v8, v{Sx+2*i}, v{Sx+2*i+1}")
    a("s_cmp_lt_u32 s59, 64")
    a("s_cbranch_scc1 C_FB1")
    a("v_mov_b32 v9, v8")
    a("s_nop 1")
    a("v_permlane32_swap_b32 v8, v9")
    a("v_max_f32 v8, v8, v9")
    a("v_and_b32 v9, 0xffff0000, v8")
    a("v_sub_f32 v8, v8, v9")
    a("v_and_b32 v10, 0xffff0000, v8")
    a("v_sub_f32 v8, v8, v10")
    a("v_cvt_pk_bf16_f32 v9, -v9, -v10")
    a("v_cvt_pk_bf16_f32 v8, -v8, 0")
    a("s_mov_b32 exec_lo, 0")
    a(f"v_accvgpr_write_b32 a{Qo+6}, v9")
    a(f"v_accvgpr_write_b32 a{Qo+7}, v8")
    a("s_mov_b32 exec_lo, -1")
    for i in range(16): a(f"v_mov_b32 v{O[3]+i}, 0")
    a("s_mov_b32 s58, 0")
    a("s_mov_b32 s59, 0")
    a.label("C_FB2")
    for f in range(4): a(ld(K0+4*f, 1024*f, "v4"))
    a("s_waitcnt vmcnt(0)")
    a(f"{MF} {vr(Sx,16)}, {ar(K0,4)}, {ar(Qo,4)}, 0")
    a(f"{MF} {vr(Sx,16)}, {ar(K0+4,4)}, {ar(Qo+4,4)}, {vr(Sx,16)}")
    fb_adv()
    a("s_nop 15")
    for i in range(16): a(f"v_exp_f32 v{Sx+i}, v{Sx+i}")
    a("s_nop 1")
    a(f"{SM} {vr(O[3],16)}, {ar(K0+8,4)}, {vr(Sx,8)}, v2")
    a(f"{SM} {vr(O[3],16)}, {ar(K0+12,4)}, {vr(Sx+8,8)}, v2")
    a("s_cmp_lt_u32 s59, 64")
    a("s_cbranch_scc1 C_FB2")
    a("s_nop 15")
    a("s_nop 15")
    a(f"v_mov_b32 v6, v{O[3]+12}")
    a(f"v_mov_b32 v7, v{O[3]+12}")
    a("s_nop 1")
    a("v_permlane32_swap_b32 v6, v7")
    a("v_rcp_f32 v7, v7")
    a("s_nop 0")
    a("s_branch C_FIN")

def main():
    a = Asm()
    head = f"""; gated mix of a linear-attention block and a softmax-attention block (S=2048, D=448, H=16), one launch
; @launch grid=(256,1,1) block=(512,1,1) lds=163840
.amdgcn_target "amdgcn-amd-amdhsa--gfx950"
.text
"""
    gen(a)
    out = head + a.text() + '.section .rodata,"a"\n' + kernel_desc(KN, 256, 102, 160)
    path = sys.argv[1] if len(sys.argv) > 1 else f"cdna_kernels/{NAME}.s"
    open(path, "w").write(out)
main()
```

```python
import math, sys, os, struct
from asmlib import *

NAME = "gated_mix__linear_attn_block__mha_block__prompt"
KN = NAME + "_kernel"
WS_KV  = 0
WS_CNT = 5 << 20
WS_KVP = 6 << 20
WS_OF  = 8 << 20
PAD = int(os.environ.get("PAD", "69632"))
WS_ST  = 14 << 20
WS_SIZE = 16 << 20
LOG2E = 1.4426950408889634
QSCALE = LOG2E * 28 ** -0.5
EPS = 1e-6
ONE2 = 0x3F803F80
RING = 114688
L_KVD = RING
L_G   = RING + 16384 + 4096
L_KVF = RING + 16384 + 12288
L_CNT = RING + 16384 + 14336
L_QD  = RING + 32768
L_PQ  = RING + 32768 + 8192
STAMP = int(os.environ.get("STAMP", "0"))
X = set(os.environ.get("X", "").split(","))
MF = "v_mfma_f32_32x32x16_bf16"
SM = "v_smfmac_f32_32x32x32_bf16"
SX, SW, SWA, SWB, SWS, SD, SG = 36, 40, 44, 48, 52, 56, 60
WSR = f"s[{SWS}:{SWS+3}]"
SPIN = 200000
WFL = os.environ.get("WFL", "")
XFL = os.environ.get("XFL", "")

def srd(a, d, lo, size):
    a(f"s_mov_b32 s{d}, s{lo}")
    a(f"s_mov_b32 s{d+1}, s{lo+1}")
    a(f"s_mov_b32 s{d+2}, {size}")
    a(f"s_mov_b32 s{d+3}, 0x20000")
def R(d): return f"s[{d}:{d+3}]"

def stamp(a, i, mode=1):
    if not STAMP: return
    if mode is not None and mode != STAMP: return
    if i == 0: a("s_memrealtime s[96:97]")
    a("s_memrealtime s[94:95]" if os.environ.get("RT") else "s_memtime s[94:95]")
    a("s_waitcnt lgkmcnt(0)")
    a(f"s_mov_b32 s{70+i}, s94")
def stampc(a, i):
    if os.environ.get("DIAGP") == str(i):
        a("s_memrealtime s[100:101]")
        a("s_waitcnt lgkmcnt(0)")
    if STAMP == 5: return
    stamp(a, i, None)
def stamp_out(a, n):
    if not STAMP: return
    a("s_memrealtime s[98:99]")
    a("s_waitcnt lgkmcnt(0)")
    a("s_mov_b64 exec, 1")
    a("s_lshl_b32 s94, s2, 3")
    a("s_add_u32 s94, s94, s35")
    a("s_lshl_b32 s94, s94, 7")
    a(f"s_add_u32 s94, s94, {WS_ST}")
    a("v_mov_b32 v1, 0")
    for i in range(n if STAMP != 5 else 0):
        a(f"v_mov_b32 v2, s{70+i}")
        a(f"buffer_store_dword v2, v1, {WSR}, s94 offen offset:{4*i}")
    a("v_mov_b32 v2, s96")
    a(f"buffer_store_dword v2, v1, {WSR}, s94 offen offset:120")
    a("v_mov_b32 v2, s98")
    a(f"buffer_store_dword v2, v1, {WSR}, s94 offen offset:124")

def dma_lane_w(a, vdst, vt0, vt1, rowstride):
    a(f"v_lshrrev_b32 v{vt0}, 4, v0")
    a(f"v_bfe_u32 v{vt1}, v0, 2, 2")
    a(f"v_and_b32 v{vdst}, 1, v{vt0}")
    if "noswz" not in X: a(f"v_xor_b32 v{vt1}, v{vt1}, v{vdst}")
    a(f"v_lshrrev_b32 v{vdst}, 1, v{vt1}")
    a(f"v_lshl_add_u32 v{vt0}, v{vt0}, 1, v{vdst}")
    a(f"v_mul_u32_u24 v{vt0}, {rowstride}, v{vt0}")
    a(f"v_and_b32 v{vt1}, 1, v{vt1}")
    a(f"v_lshl_add_u32 v{vt0}, v{vt1}, 6, v{vt0}")
    a(f"v_and_b32 v{vt1}, 3, v0")
    a(f"v_lshl_add_u32 v{vdst}, v{vt1}, 4, v{vt0}")

def tr_lane_addr(a, vdst, vb, vt0, vt1, hlshift):
    a(f"v_bfe_u32 v{vt0}, v0, 4, 1")
    a(f"v_lshl_add_u32 v{vb}, v{vt0}, 5, v{vb}")
    a(f"v_and_b32 v{vt0}, 3, v0")
    a(f"v_lshl_add_u32 v{vb}, v{vt0}, 3, v{vb}")
    a(f"v_bfe_u32 v{vt0}, v0, 2, 1")
    a(f"v_lshrrev_b32 v{vt1}, 6, v{vb}")
    a(f"v_lshl_add_u32 v{vt0}, v{vt0}, 1, v{vt1}")
    a(f"v_bfe_u32 v{vt1}, v0, 3, 1")
    a(f"v_xor_b32 v{vt0}, v{vt0}, v{vt1}")
    a(f"v_and_b32 v{vb}, 63, v{vb}")
    a(f"v_lshl_add_u32 v{vb}, v{vt0}, 6, v{vb}")
    a(f"v_lshrrev_b32 v{vt0}, 5, v0")
    a(f"v_lshl_add_u32 v{vt0}, v{vt0}, {hlshift}, v{vt1}")
    a(f"v_lshl_add_u32 v{vdst}, v{vt0}, 8, v{vb}")

C_KV, C_A, C_OA, C_OB = WS_CNT, WS_CNT + 128*128, WS_CNT + 256*128, WS_CNT + 512*128
NFLAG = 768
def poll(a, tag, srdreg, soff, nl, vl, vt, sleep=0, first=True):
    a(f"s_mov_b64 exec, {(1 << nl) - 1}")
    a(f"s_mov_b32 s68, {SPIN}")
    if sleep and first: a(f"s_branch POLL_{tag}")
    a.label(f"POLLS_{tag}")
    if sleep: a(f"s_sleep {sleep}")
    a.label(f"POLL_{tag}")
    a(f"buffer_load_dword v{vt}, v{vl}, {srdreg}, {soff} offen sc1")
    a("s_sub_u32 s68, s68, 1")
    a(f"s_cbranch_scc1 POLLX_{tag}")
    a("s_waitcnt vmcnt(0)")
    a(f"v_cmp_eq_u32 vcc, 0, v{vt}" if tag.startswith("INIT") else f"v_cmp_ne_u32 vcc, s87, v{vt}")
    a(f"s_cbranch_vccnz POLLS_{tag}")
    a.label(f"POLLX_{tag}")
    a("s_mov_b64 exec, -1")

def lds_wait(a, tag, vaddr, off, target, vt, sleep=1):
    a("s_mov_b64 exec, 1")
    a(f"s_mov_b32 s68, {SPIN}")
    a.label(f"LW_{tag}")
    a(f"s_sleep {sleep}")
    a(f"ds_read_b32 v{vt}, v{vaddr} offset:{off}")
    a("s_waitcnt lgkmcnt(0)")
    a(f"v_readfirstlane_b32 s69, v{vt}")
    a("s_sub_u32 s68, s68, 1")
    a(f"s_cbranch_scc1 LWX_{tag}")
    a(f"s_cmp_ge_u32 s69, {target}")
    a(f"s_cbranch_scc0 LW_{tag}")
    a.label(f"LWX_{tag}")
    a("s_mov_b64 exec, -1")

def signal(a, soff, vz, vt):
    a("s_mov_b64 exec, 1")
    a(f"v_mov_b32 v{vt}, s87")
    a(f"buffer_store_dword v{vt}, v{vz}, {WSR}, {soff} offen sc1")
    a("s_mov_b64 exec, -1")

def cvt(a, dst, src, lo=0, hi=8):
    for i in range(lo, hi):
        a(f"v_cvt_pk_bf16_f32 v{dst+i}, v{src+2*i}, v{src+2*i+1}")

def vadd(a, dst, src, n):
    for i in range(n): a(f"v_add_f32 v{dst+i}, v{dst+i}, v{src+i}")
def vmul(a, dst, mul, n):
    for i in range(n): a(f"v_mul_f32 v{dst+i}, {mul}, v{dst+i}")

def phi_list(src, T, n=16, grp=8):
    o = []
    for g0 in range(0, n, grp):
        o += [f"v_fma_f32 v{T+i}, v{src+g0+i}, s64, -s64" for i in range(grp)]
        o += [f"v_exp_f32_e64 v{T+i}, v{T+i} clamp" for i in range(grp)]
        o += [f"v_max_f32 v{src+g0+i}, v{src+g0+i}, v{T+i}" for i in range(grp)]
        o += [f"v_add_f32 v{src+g0+i}, s66, v{src+g0+i}" for i in range(grp)]
    return o

def p3_addr(a, v0a, mat_off_sgpr, swap_sgpr, vt0, vt1):
    a(f"v_mov_b32 v{v0a+1}, 0")
    tr_lane_addr(a, v0a, v0a+1, vt0, vt1, 1)
    a(f"v_add_u32 v{v0a}, {mat_off_sgpr}, v{v0a}")
    a(f"v_xor_b32 v{v0a}, {swap_sgpr}, v{v0a}")
    a(f"v_xor_b32 v{v0a+1}, 64, v{v0a}")
    a(f"v_lshrrev_b32 v{vt0}, 5, v0")
    a(f"v_lshlrev_b32 v{vt0}, 9, v{vt0}")
    a(f"v_sub_u32 v{v0a+2}, v{v0a}, v{vt0}")
    a(f"v_sub_u32 v{v0a+3}, v{v0a+1}, v{vt0}")

def p3_oload(ks, vlane16, so):
    o = [f"buffer_load_dwordx4 {ar(4*ks,4)}, v{vlane16}, {WSR}, {so} offen offset:{1024*(ks&3)} sc1"]
    if ks & 3 == 3 and ks < 15: o.append(f"s_add_u32 {so}, {so}, 4096")
    return o

def p3_gemm(a, va, ACC, WF, first_zero, npre, vlane16, so):
    def reads(ks):
        f = WF[ks & 1]; hh, m = ks >> 1, ks & 1
        o = (14*hh + 8*m) * 256
        last = (ks == 15)
        return [f"ds_read_b64_tr_b16 {vr(f,2)}, v{va} offset:{o}",
                f"ds_read_b64_tr_b16 {vr(f+2,2)}, v{va+2 if last else va} offset:{o+1024}",
                f"ds_read_b64_tr_b16 {vr(f+4,2)}, v{va+1} offset:{o}",
                f"ds_read_b64_tr_b16 {vr(f+6,2)}, v{va+3 if last else va+1} offset:{o+1024}"]
    for x in reads(0): a(x)
    issued = npre
    for ks in range(16):
        f = WF[ks & 1]
        rd = reads(ks+1) if ks < 15 else []
        c0 = "0" if (first_zero and ks == 0) else vr(ACC[0], 16)
        c1 = "0" if (first_zero and ks == 0) else vr(ACC[1], 16)
        if issued < 16:
            for x in p3_oload(issued, vlane16, so): a(x)
            issued += 1
        a(f"s_waitcnt vmcnt({issued-1-ks}) lgkmcnt(2)")
        a(f"{MF} {vr(ACC[0],16)}, {vr(f,4)}, {ar(4*ks,4)}, {c0}")
        for x in rd[:2]: a(x)
        a(f"s_waitcnt lgkmcnt({2 if rd else 0})")
        a(f"{MF} {vr(ACC[1],16)}, {vr(f+4,4)}, {ar(4*ks,4)}, {c1}")
        for x in rd[2:]: a(x)

def p3_oloads(a, vlane16, so, n):
    for ks in range(n):
        for x in p3_oload(ks, vlane16, so): a(x)

E = lambda k, d: os.environ.get(k, d)
SIGK = int(E("SIGK", "6"))
def gen(a):
    kernel_head(a, KN)
    a("s_cmp_ge_u32 s2, 256")
    a("s_cbranch_scc1 L_END")
    a("s_load_dwordx16 s[4:19], s[0:1], 0")
    a("s_load_dwordx4 s[20:23], s[0:1], 64")
    if STAMP or E("DIAGT", ""):
        a("s_memrealtime s[96:97]")
        a("s_memtime s[70:71]")
    a("v_lshrrev_b32 v1, 6, v0")
    a("v_and_b32 v0, 63, v0")
    a("v_readfirstlane_b32 s27, v1")
    a("s_and_b32 s64, s2, 7")
    a("s_lshr_b32 s32, s2, 3")
    a("s_lshr_b32 s34, s64, 1")
    a("s_and_b32 s33, s64, 1")
    a("s_lshr_b32 s29, s32, 3")
    a("s_lshl_b32 s24, s34, 2")
    a("s_add_u32 s24, s24, s29")
    a("s_and_b32 s26, s32, 1")
    a("s_bfe_u32 s25, s32, 0x20001")
    a("s_lshl_b32 s65, s33, 2")
    a("s_add_u32 s25, s25, s65")
    a("s_lshl_b32 s28, s25, 1")
    a("s_cmp_eq_u32 s26, s33" if E("HS", "0") == "0" else "s_cmp_lg_u32 s26, s33")
    a("s_addc_u32 s28, s28, 0")
    a("s_mul_i32 s30, s32, 37")
    a("s_lshr_b32 s30, s30, 8")
    a("s_mul_i32 s31, s30, 7")
    a("s_sub_u32 s31, s32, s31")
    a("s_lshl_b32 s64, s64, 2")
    a("s_add_u32 s30, s30, s64")
    a("s_mov_b32 s35, s27")
    a("s_cmp_ge_u32 s27, 4")
    a("s_cbranch_scc0 L_COMPUTE")
    helper(a)
    compute(a)
    a.label("L_END")
    a("s_endpgm")
    a.label("L_CODE_END")

def helper(a):
    a("s_sub_u32 s27, s27, 4")
    a("v_lshrrev_b32 v1, 3, v0")
    a("s_lshl_b32 s64, s24, 7")
    a("s_lshl_b32 s65, s27, 5")
    a("s_add_u32 s64, s64, s65")
    a("v_add_u32 v1, s64, v1")
    a("v_mul_u32_u24 v1, 896, v1")
    a("v_lshrrev_b32 v2, 4, v0")
    a("v_and_b32 v3, 7, v0")
    a("v_xor_b32 v2, v2, v3")
    a("v_lshl_add_u32 v2, v2, 4, v1")
    a("v_xor_b32 v3, 64, v2")
    a("v_add_u32 v3, 7168, v3")
    a("v_add_u32 v4, 14336, v2")
    a("v_add_u32 v5, 14336, v3")
    dma_lane_w(a, 6, 10, 11, 2688)
    a("s_mul_i32 s64, s27, 43008")
    a("s_mul_i32 s65, s25, 112")
    a("s_add_u32 s64, s64, s65")
    a("s_add_u32 s64, s64, 896")
    a("v_add_u32 v6, s64, v6")
    a("v_add_u32 v7, 21504, v6")
    a("v_add_u32 v8, 896, v6")
    a("v_add_u32 v9, 896, v7")
    a("s_lshl_b32 s66, s27, 12")
    a("s_lshl_b32 s67, s27, 11")
    a(f"s_add_u32 s67, s67, {RING}")
    a(f"s_mov_b32 s{SX+2}, 1835008")
    a(f"s_mov_b32 s{SX+3}, 0x20000")
    a(f"s_mov_b32 s{SW+2}, 1204224")
    a(f"s_mov_b32 s{SW+3}, 0x20000")
    a("s_cmp_eq_u32 s26, 0")
    a("s_waitcnt lgkmcnt(0)")
    a(f"s_mov_b32 s{SX}, s4")
    a(f"s_mov_b32 s{SX+1}, s5")
    a(f"s_cselect_b32 s{SW}, s6, s12")
    a(f"s_cselect_b32 s{SW+1}, s7, s13")
    vm = []
    def xload(c):
        for q in range(4):
            a(f"s_add_u32 m0, s66, {c*16384 + q*1024}")
            a(f"s_mov_b32 s64, {c*128}" if q == 0 else "s_nop 0")
            a(f"buffer_load_dwordx4 v{2+q}, {R(SX)}, s64 offen lds"); vm.append(("x", c))
    def wload(c):
        for pt in range(2):
            for u in range(2):
                a(f"s_add_u32 m0, s67, {(c%3)*16384 + pt*8192 + u*1024}")
                a(f"s_mov_b32 s65, {c*172032}" if pt + u == 0 else "s_nop 0")
                a(f"buffer_load_dwordx4 v{6+2*pt+u}, {R(SW)}, s65 offen lds"); vm.append(("w", c))
    def qload(d):
        for mat in range(2):
            for u in range(2):
                a(f"s_add_u32 m0, s67, {((7+d)%3)*16384 + mat*8192 + u*1024}")
                a(f"s_mov_b32 s65, {d*344064}" if mat + u == 0 else "s_nop 0")
                a(f"buffer_load_dwordx4 v{10+u}, {R(SWA if mat == 0 else SWB)}, s65 offen lds"); vm.append(("q", d))
    def waitfor(*tags):
        last = max(i for i, tg in enumerate(vm) if tg in tags)
        a(f"s_waitcnt vmcnt({len(vm)-1-last})")
    def patch(d):
        a("s_mov_b32 exec_hi, 0")
        a(f"ds_write_b16 v16, v{12+d} offset:{((7+d)%3)*16384}")
        a("s_mov_b32 exec_hi, -1")
        a("s_waitcnt lgkmcnt(0)")
    def initcheck(tag):
        a("v_readfirstlane_b32 s87, v17")
        a("s_nop 0")
        a("s_cmp_lg_u32 s87, 0")
        a(f"s_cbranch_scc1 H_INIT_OK{tag}")
        poll(a, "INIT" + tag, R(SD), "0", 1, 18, 17)
        a("v_readfirstlane_b32 s87, v17")
        a.label(f"H_INIT_OK{tag}")
    stamp(a, 1, 2)
    xload(0); wload(0)
    srd(a, SWA, 6, 1204224); srd(a, SWB, 12, 1204224)
    srd(a, SWS, 22, WS_SIZE); srd(a, SD, 20, 256); srd(a, SG, 16, 896)
    a("v_lshrrev_b32 v10, 2, v0")
    a("s_lshl_b32 s64, s27, 5")
    a("v_add_u32 v10, s64, v10")
    a("v_mul_u32_u24 v10, 2688, v10")
    a("v_and_b32 v11, 3, v0")
    a("v_lshl_add_u32 v10, v11, 4, v10")
    a("s_mul_i32 s65, s28, 56")
    a("v_add_u32 v10, s65, v10")
    a("v_add_u32 v11, 43008, v10")
    a("v_add_u32 v17, s64, v0")
    a("v_lshlrev_b32 v16, 6, v17")
    a(f"v_add_u32 v16, {RING + 8192 + 56}, v16")
    a("v_lshlrev_b32 v17, 1, v17")
    a("s_and_b32 s64, s32, 0x1e")
    a("s_and_b32 s65, s27, 1")
    a("s_add_u32 s64, s64, s65")
    a("s_mul_i32 s64, s64, 14")
    a("v_lshrrev_b32 v20, 2, v0")
    a("v_add_u32 v20, s64, v20")
    a("v_mul_u32_u24 v20, 2688, v20")
    a("v_and_b32 v21, 3, v0")
    a("v_lshl_add_u32 v20, v21, 7, v20")
    a("s_mul_i32 s64, s33, 384")
    a("v_add_u32 v20, s64, v20")
    a("v_mov_b32 v18, 0")
    a("s_barrier")
    if E("AF", "1") == "1":
        a("s_cmp_eq_u32 s26, 0")
        a("s_cbranch_scc0 H_C1B")
        a("s_waitcnt vmcnt(0)")
        a("s_barrier")
        xload(1); wload(1)
        a("s_branch H_C1D")
        a.label("H_C1B")
        del vm[8:]
    xload(1); wload(1)
    stamp(a, 1); stamp(a, 2, 2)
    for c in range(5):
        waitfor(("x", c), ("w", c)); a("s_barrier"); stamp(a, 3+c, 2)
        if c == 0:
            stamp(a, 2)
            a.label("H_C1D")
        xload(c+2); wload(c+2)
        if c == 1:
            for d in range(4):
                a(f"buffer_load_ushort v{12+d}, v17, {R(SG)}, 0 offen offset:{256*d}"); vm.append(("g", d))
        if c == 3:
            a(f"buffer_load_dword v17, v18, {R(SD)}, 0 offen sc1"); vm.append(("d", 0))
    a("s_cmp_eq_u32 s26, 0")
    if E("PQ", "0") == "1":
        a("s_cbranch_scc0 H_NOPQ")
        a("s_cmp_ge_u32 s27, 2")
        a("s_cselect_b32 s88, s12, s6")
        a("s_cselect_b32 s89, s13, s7")
        a("s_mov_b32 s90, 1204224")
        a("s_mov_b32 s91, 0x20000")
        a("s_mov_b32 exec_hi, 0xffffff")
        a("buffer_load_dword a64, v20, s[88:91], 0 offen")
        a("s_mov_b64 exec, -1")
        a("s_waitcnt vmcnt(9)")
        a("s_branch H_PQD")
        a.label("H_NOPQ")
    waitfor(("x",5),("w",5))
    a.label("H_PQD")
    a("s_barrier"); stamp(a, 8, 2)
    qload(0)
    a("s_cmp_eq_u32 s26, 0")
    a("s_cbranch_scc0 H_B6B")
    if E("PQ", "0") == "1": a("s_waitcnt vmcnt(5)")
    else: a("s_waitcnt vmcnt(4)")
    a("s_barrier")
    qload(1)
    a("s_waitcnt vmcnt(4)"); patch(0); a("s_barrier")
    qload(2)
    a("s_waitcnt vmcnt(4)")
    patch(1)
    initcheck("A")
    a("s_barrier")
    a("s_branch H_B7D")
    a.label("H_B6B")
    a("s_waitcnt vmcnt(4)")
    a("s_barrier")
    a("s_waitcnt vmcnt(0)"); patch(0); a("s_barrier")
    qload(1)
    a("s_lshl_b32 s64, s25, 4")
    a("s_add_u32 s64, s64, s24")
    a("s_lshl_b32 s64, s64, 7")
    a(f"s_add_u32 s64, s64, {C_KV}")
    initcheck("B")
    a("s_cmp_eq_u32 s27, 3")
    a("s_barrier")
    a("s_cbranch_scc0 H_NOSIGKV")
    signal(a, "s64", 18, 19)
    qload(2)
    a("s_waitcnt vmcnt(5)")
    a("s_branch H_SIGD")
    a.label("H_NOSIGKV")
    qload(2)
    a("s_waitcnt vmcnt(4)")
    a.label("H_SIGD")
    patch(1)
    a.label("H_B7D")
    stamp(a, 10, 2)
    a("s_barrier")
    a("s_cmp_ge_u32 s27, 2")
    a("s_cbranch_scc1 H_NOQ3")
    qload(3)
    a("s_waitcnt vmcnt(4)"); patch(2)
    a("s_branch H_Q3")
    a.label("H_NOQ3")
    a("s_waitcnt vmcnt(0)"); patch(2)
    a.label("H_Q3")
    a("s_barrier")
    a("s_waitcnt vmcnt(0)")
    a("s_cmp_ge_u32 s27, 2")
    a("s_cbranch_scc1 H_NOP3")
    patch(3)
    a.label("H_NOP3")
    a("s_barrier")
    a(f"v_mov_b32 v1, {L_CNT}")
    for i in range(8, 12): a(f"v_mov_b32 v{i}, 0")
    a("ds_write_b128 v1, v[8:11]")
    a("s_nop 1")
    a("v_mov_b32 v9, s87")
    a("ds_write_b128 v1, v[8:11] offset:16")
    a("v_lshlrev_b32 v2, 4, v0")
    dma_lane_w(a, 3, 4, 5, 896)
    a("s_mul_i32 s64, s27, 7168")
    a("s_lshl_b32 s65, s31, 7")
    a("s_add_u32 s64, s64, s65")
    a("v_add_u32 v3, s64, v3")
    a("s_lshr_b32 s65, s27, 1")
    a("s_mul_i32 s64, s65, 28672")
    a("s_lshl_b32 s65, s65, 6")
    p3_addr(a, 4, "s64", "s65", 8, 9)
    srd(a, SWA, 8, 401408); srd(a, SWB, 14, 401408)
    a("s_lshl_b32 s65, s25, 2")
    a("s_add_u32 s65, s65, s27")
    a("s_lshl_b32 s65, s65, 9")
    a(f"s_add_u32 s65, s65, {C_KV}")
    a("v_lshlrev_b32 v10, 7, v0")
    stamp(a, 3)
    poll(a, "KV", WSR, "s65", 4, 10, 11, int(E("KS", "1")))
    a("s_waitcnt lgkmcnt(0)")
    a("s_barrier")
    a("s_setprio 2")
    stamp(a, 4); stamp(a, 1, 3); stamp(a, 1, 7)
    PQ, G, KF, NUM, PA = 80, 88, 92, 100, 116
    def wo_dma(tag, srdreg, base, lo, hi, depth):
        if hi <= lo: return
        a("s_lshl_b32 s66, s27, 10")
        a(f"s_add_u32 s66, s66, {base + lo*4096}")
        a(f"s_mov_b32 s63, {lo*28672}")
        a.label(f"H_WO{tag}")
        a("s_mov_b32 m0, s66")
        a("s_add_u32 s66, s66, 4096")
        a(f"buffer_load_dwordx4 v3, {R(srdreg)}, s63 offen lds")
        a("s_add_u32 s63, s63, 28672")
        a(f"s_waitcnt vmcnt({depth})")
        a(f"s_cmp_lt_u32 s63, {hi*28672}")
        a(f"s_cbranch_scc1 H_WO{tag}")
    W1 = int(E("W1", "0"))
    a("s_cmp_ge_u32 s32, 28")
    a("s_cbranch_scc1 H_NOWO0")
    wo_dma("0", SWA, 0, 0, W1, int(E("WOD0", "2")))
    a.label("H_NOWO0")
    if "hskip" in X:
        a("s_branch H_SKIP")
    lds_wait(a, "C0", 1, 8, 4, 9)
    stamp(a, 2, 7)
    a("s_lshl_b32 s64, s27, 11")
    a(f"s_add_u32 s64, s64, {L_PQ}")
    a("v_add_u32 v8, s64, v2")
    a(f"ds_read_b128 {vr(PQ,4)}, v8")
    a(f"ds_read_b128 {vr(PQ+4,4)}, v8 offset:1024")
    a("s_lshl_b32 s64, s27, 8")
    a(f"s_add_u32 s64, s64, {L_G}")
    a("v_lshl_add_u32 v8, v0, 2, s64")
    a(f"ds_read_b32 v{G}, v8")
    a("s_cmp_ge_u32 s27, 2")
    a("s_cselect_b32 s64, s26, 1")
    a("s_cmp_eq_u32 s64, 0")
    a("s_cbranch_scc0 H_NOKVP")
    a("s_and_b32 s65, s27, 1")
    a("s_lshl_b32 s64, s65, 12")
    a(f"s_add_u32 s64, s64, {L_KVD}")
    a("v_add_u32 v8, s64, v2")
    for i in range(8):
        a(f"ds_read_b128 {vr(16+4*i,4)}, v8 offset:{1024*(i&3) + 8192*(i>>2)}")
    a("s_lshl_b32 s64, s25, 1")
    a("s_add_u32 s64, s64, s65")
    a(f"s_mul_i32 s64, s64, {PAD}")
    a("s_lshl_b32 s65, s24, 12")
    a("s_add_u32 s64, s64, s65")
    a(f"s_add_u32 s64, s64, {WS_KVP}")
    a("s_waitcnt lgkmcnt(0)")
    vadd(a, 16, 32, 16)
    for q in range(4):
        a(f"buffer_store_dwordx4 {vr(16+4*q,4)}, v2, {WSR}, s64 offen offset:{1024*q} sc1")
    a("s_lshl_b32 s64, s25, 4")
    a("s_add_u32 s64, s64, s24")
    a("s_lshl_b32 s64, s64, 7")
    a(f"s_add_u32 s64, s64, {C_A}")
    a("v_mov_b32 v11, 1")
    stamp(a, 3, 7)
    a("s_waitcnt vmcnt(0)")
    stamp(a, 4, 7)
    a("s_mov_b64 exec, 1")
    a("ds_add_rtn_u32 v9, v1, v11 offset:12")
    a("s_waitcnt lgkmcnt(0)")
    a("v_readfirstlane_b32 s69, v9")
    a("s_mov_b64 exec, -1")
    a("s_cmp_eq_u32 s69, 1")
    a("s_cbranch_scc0 H_NOKVP")
    signal(a, "s64", 10, 11)
    a.label("H_NOKVP")
    stamp(a, 5, 7)
    a("s_cmp_ge_u32 s32, 28")
    a("s_cbranch_scc1 H_NOWOA")
    wo_dma("A", SWA, 0, W1, 14, int(E("WOD", "5")))
    wo_dma("B", SWB, 57344, 0, 14, int(E("WOD", "5")))
    a.label("H_NOWOA")
    stamp(a, 2, 3); stamp(a, 6, 7)
    a("s_lshl_b32 s64, s25, 11")
    a(f"s_add_u32 s64, s64, {C_A}")
    if "nopolla" not in X:
        a("s_cmp_eq_u32 s27, 0")
        a("s_cbranch_scc0 H_AW")
        poll(a, "A", WSR, "s64", 16, 10, 11, int(E("AS", "16")))
        a("v_mov_b32 v11, 1")
        a("ds_write_b32 v1, v11 offset:16")
        a("s_branch H_AD")
        a.label("H_AW")
        lds_wait(a, "A", 1, 16, 1, 9, 4)
        a.label("H_AD")
    stamp(a, 3, 3); stamp(a, 7, 7)
    a(f"s_mul_i32 s64, s28, {PAD}")
    a("s_lshl_b32 s65, s27, 10")
    a("s_add_u32 s64, s64, s65")
    a(f"s_add_u32 s64, s64, {WS_KVP}")
    KD = int(E("KD", "2"))
    for i in range(16):
        if "nokvl" not in X: a(f"buffer_load_dwordx4 {vr(16+4*i,4)}, v2, {WSR}, s64 offen sc1")
        a("s_add_u32 s64, s64, 4096")
        if i > KD:
            a(f"s_waitcnt vmcnt({KD})")
            if "nokva" not in X: vadd(a, 16, 16+4*(i-KD), 4)
    stamp(a, 4, 3)
    for j in range(16-KD, 16):
        a(f"s_waitcnt vmcnt({15-j})")
        vadd(a, 16, 16+4*j, 4)
    stamp(a, 5, 3)
    a("v_cvt_pk_bf16_f32 v16, v16, v17")
    a("v_cvt_pk_bf16_f32 v17, v18, v19")
    a("s_lshr_b32 s64, s27, 1")
    a("s_lshl_b32 s64, s64, 10")
    a("s_and_b32 s65, s27, 1")
    a("s_lshl_b32 s65, s65, 3")
    a("s_add_u32 s64, s64, s65")
    a(f"s_add_u32 s64, s64, {L_KVF}")
    a("v_add_u32 v8, s64, v2")
    a("ds_write_b64 v8, v[16:17]")
    a("v_mov_b32 v11, 1")
    a("s_waitcnt lgkmcnt(0)")
    a("s_mov_b64 exec, 1")
    a("ds_add_u32 v1, v11")
    lds_wait(a, "C1", 1, 0, 4, 9)
    stamp(a, 6, 3)
    a(f"v_add_u32 v8, {L_KVF}, v2")
    a(f"ds_read_b128 {vr(KF,4)}, v8")
    a(f"ds_read_b128 {vr(KF+4,4)}, v8 offset:1024")
    a("s_waitcnt lgkmcnt(0)")
    a(f"{MF} {vr(NUM,16)}, {vr(KF,4)}, {vr(PQ,4)}, 0")
    a(f"{MF} {vr(NUM,16)}, {vr(KF+4,4)}, {vr(PQ+4,4)}, {vr(NUM,16)}")
    a("s_lshl_b32 s64, s24, 2")
    a("s_add_u32 s64, s64, s27")
    a(f"s_mul_i32 s64, s64, {PAD}")
    a("s_lshl_b32 s65, s28, 11")
    a("s_add_u32 s64, s64, s65")
    a(f"s_add_u32 s64, s64, {WS_OF}")
    a(f"v_mov_b32 v{PA+6}, 0")
    a(f"v_mov_b32 v{PA+7}, 0")
    a("s_nop 15")
    a(f"v_mov_b32 v8, v{NUM+12}")
    a(f"v_mov_b32 v9, v{NUM+12}")
    a("s_nop 1")
    a("v_permlane32_swap_b32 v8, v9")
    a(f"v_add_f32 v9, {f32(EPS)}, v9")
    a("v_rcp_f32 v9, v9")
    a("s_nop 0")
    a(f"v_mul_f32 v9, v9, v{G}")
    vmul(a, NUM, "v9", 16)
    cvt(a, PA, NUM, 0, 6)
    a("s_mov_b32 exec_hi, 0")
    cvt(a, PA, NUM, 6, 8)
    a("s_mov_b32 exec_hi, -1")
    a(f"buffer_store_dwordx4 {vr(PA,4)}, v2, {WSR}, s64 offen sc1")
    a(f"buffer_store_dwordx4 {vr(PA+4,4)}, v2, {WSR}, s64 offen offset:1024 sc1")
    stamp(a, 7, 3)
    a("s_waitcnt vmcnt(0)")
    stamp(a, 8, 3)
    a("s_mov_b64 exec, 1")
    a("ds_add_rtn_u32 v9, v1, v11 offset:4")
    a("s_waitcnt lgkmcnt(0)")
    a("v_readfirstlane_b32 s69, v9")
    a("s_mov_b64 exec, -1")
    a("s_cmp_eq_u32 s69, 3")
    a("s_cbranch_scc0 H_NOSIGOA")
    if "hskip" in X:
        a.label("H_SKIP")
        a("s_cmp_eq_u32 s27, 0")
        a("s_cbranch_scc0 H_NOSIGOA")
    a("s_lshl_b32 s64, s24, 4")
    a("s_add_u32 s64, s64, s28")
    a("s_lshl_b32 s64, s64, 7")
    a(f"s_add_u32 s64, s64, {C_OA}")
    signal(a, "s64", 10, 11)
    a.label("H_NOSIGOA")
    stamp(a, 5); stamp(a, 9, 3)
    a("s_setprio 0")
    a("s_barrier")
    a("s_cmp_ge_u32 s32, 28")
    a("s_cbranch_scc1 H_NOP3B")
    stamp(a, 6)
    a("s_and_b32 s64, s30, 0xfe")
    a("s_lshr_b32 s65, s27, 1")
    a("s_add_u32 s64, s64, s65")
    a("s_lshl_b32 s64, s64, 10")
    a(f"s_add_u32 s64, s64, {C_OA}")
    a("s_and_b32 s62, s27, 1")
    a("s_lshl_b32 s65, s30, 1")
    a("s_add_u32 s62, s62, s65")
    a(f"s_mul_i32 s62, s62, {PAD}")
    a("s_lshr_b32 s65, s27, 1")
    a("s_lshl_b32 s65, s65, 14")
    a("s_add_u32 s62, s62, s65")
    a(f"s_add_u32 s62, s62, {WS_OF}")
    NE = int(E("NE", "8"))
    a("s_mov_b64 exec, 0xff")
    a(f"buffer_load_dword v11, v10, {WSR}, s64 offen sc1")
    a("s_waitcnt vmcnt(0)")
    a("v_cmp_ne_u32 vcc, s87, v11")
    a("s_mov_b64 exec, -1")
    a("s_cbranch_vccnz H_OALATE")
    p3_oloads(a, 2, "s62", NE)
    a("s_barrier")
    a("s_barrier")
    a("s_branch H_OADONE")
    a.label("H_OALATE")
    a("s_barrier")
    a("s_barrier")
    poll(a, "OA", WSR, "s64", 8, 10, 11, 2)
    p3_oloads(a, 2, "s62", NE)
    a.label("H_OADONE")
    NPRE = 16
    for ks in range(NE, 16):
        for x in p3_oload(ks, 2, "s62"): a(x)
    stamp(a, 7); stamp(a, 10, 3)
    p3_gemm(a, 4, [16, 32], [48, 56], True, NPRE, 2, "s62")
    stamp(a, 8)
    a("s_lshl_b32 s64, s27, 13")
    a(f"s_add_u32 s64, s64, {RING}")
    a("v_add_u32 v8, s64, v2")
    a("s_nop 9")
    for i in range(8):
        a(f"ds_write_b128 v8, {vr(16+4*i,4)} offset:{1024*i}")
    a("s_waitcnt lgkmcnt(0)")
    stamp(a, 9)
    a("s_barrier")
    a("s_branch H_EXIT")
    a.label("H_NOP3B")
    a("s_barrier")
    a("s_barrier")
    a.label("H_EXIT")
    stamp(a, 10)
    stamp_out(a, 11)
    a("s_endpgm")

def compute(a):
    a.label("L_COMPUTE")
    XA, WA, WB, XQ, WQ = 2, 6, 7, 8, 12
    FR = 16; accK = [64, 80]; accV = [96, 112]; pK = [128, 136]; pV = [144, 152]
    QA, QB = 96, 112
    def touch(tag, c0, n, withq):
        a("s_lshr_b32 s60, s32, 1")
        a("s_cmp_eq_u32 s27, 3")
        if withq:
            a(f"s_cbranch_scc0 C_T0{tag}")
            srd(a, SWA, 6, 1204224); srd(a, SWB, 12, 1204224)
            a("s_mul_i32 s60, s60, 7")
            a("v_lshrrev_b32 v17, 2, v0")
            a("v_add_u32 v17, s60, v17")
            a("v_lshl_add_u32 v17, v17, 2, s34")
            a("v_mul_u32_u24 v17, 2688, v17")
            a("v_and_b32 v16, 3, v0")
            a("v_lshl_add_u32 v17, v16, 7, v17")
            a("s_mul_i32 s62, s33, 384")
            a("s_mov_b64 exec, 0x0fffffff")
            a(f"buffer_load_dword a88, v17, {R(SWA)}, s62 offen")
            a(f"buffer_load_dword a89, v17, {R(SWB)}, s62 offen")
            if E("TWO", "1") == "1":
                srd(a, SWA, 8, 401408); srd(a, SWB, 14, 401408)
                a("s_lshr_b32 s60, s32, 1")
                a("s_lshl_b32 s60, s60, 3")
                a("s_and_b32 s61, s2, 7")
                a("s_add_u32 s60, s60, s61")
                a("s_mul_i32 s60, s60, 25")
                a("v_add_u32 v17, s60, v0")
                a("v_lshlrev_b32 v17, 7, v17")
                a("s_mov_b64 exec, 0x1ffffff")
                a(f"buffer_load_dword a90, v17, {R(SWA)}, 0 offen")
                a(f"buffer_load_dword a91, v17, {R(SWB)}, 0 offen")
            a("s_mov_b64 exec, -1")
            a(f"s_branch C_TD{tag}")
            a.label(f"C_T0{tag}")
        else:
            a(f"s_cbranch_scc1 C_TD{tag}")
        a("s_cmp_eq_u32 s27, 0")
        a(f"s_cbranch_scc0 C_T1{tag}")
        srd(a, SW, 4, 1835008)
        a("s_lshl_b32 s61, s34, 9")
        a("s_lshl_b32 s60, s60, 5")
        a("s_add_u32 s60, s60, s61")
        a("v_and_b32 v17, 31, v0")
        a("v_add_u32 v17, s60, v17")
        a("v_mul_u32_u24 v17, 896, v17")
        a("v_lshrrev_b32 v16, 5, v0")
        a("v_lshl_add_u32 v17, v16, 7, v17")
        a(f"s_mov_b32 s62, {128*c0}")
        a("s_mov_b32 s63, 256")
        a(f"s_branch C_T2{tag}")
        a.label(f"C_T1{tag}")
        a("s_cmp_eq_u32 s27, 1")
        a(f"s_cselect_b32 s{SW}, s12, s6")
        a(f"s_cselect_b32 s{SW+1}, s13, s7")
        a(f"s_mov_b32 s{SW+2}, 1204224")
        a(f"s_mov_b32 s{SW+3}, 0x20000")
        a("v_lshrrev_b32 v17, 5, v0")
        a("v_lshlrev_b32 v17, 6, v17")
        a("v_bfe_u32 v16, v0, 3, 2")
        a("s_lshl_b32 s60, s60, 2")
        a("v_add3_u32 v17, v17, v16, s60")
        a("v_mul_u32_u24 v17, 2688, v17")
        a("v_bfe_u32 v16, v0, 2, 1")
        a("v_mul_u32_u24 v16, 896, v16")
        a("v_add_u32 v17, v17, v16")
        a("v_and_b32 v16, 3, v0")
        a("v_lshl_add_u32 v17, v16, 7, v17")
        a("s_mul_i32 s62, s33, 384")
        a(f"s_add_u32 s62, s62, {896 + 172032*c0}")
        a(f"s_mov_b32 s63, {2*172032}")
        a.label(f"C_T2{tag}")
        for i in range((n+1)//2):
            if 2*i+1 == n: a("s_mov_b32 exec_hi, 0")
            a(f"buffer_load_dword a{88+i}, v17, {R(SW)}, s62 offen")
            if 2*i+1 == n: a("s_mov_b32 exec_hi, -1")
            if 2*i+2 < n: a("s_add_u32 s62, s62, s63")
        a.label(f"C_TD{tag}")
    TB = [int(v) for v in E("TB", "1,3").split(",")]
    TA = [int(v) for v in E("TA", "4,3").split(",")]
    a("s_waitcnt lgkmcnt(0)")
    if TB[1]:
        a("s_cmp_eq_u32 s26, 0")
        a("s_cbranch_scc1 C_NTB")
        touch("B", TB[0], TB[1], E("TQ", "A") == "B")
        a.label("C_NTB")
    TAE = E("TAE", "0")
    if TA[1] and TAE == "1":
        a("s_cmp_eq_u32 s26, 0")
        a("s_cbranch_scc0 C_NTA")
        touch("A", TA[0], TA[1], E("TQ", "A") == "A")
        a.label("C_NTA")
    srd(a, SWS, 22, WS_SIZE)
    a("s_xor_b32 s64, s27, 3")
    a("s_xor_b32 s65, s2, 8")
    a("s_or_b32 s64, s65, s64")
    a("s_cmp_eq_u32 s64, 0")
    a("s_cbranch_scc0 C_NOINIT")
    a("s_memrealtime s[64:65]")
    srd(a, SD, 20, 256)
    a("v_mov_b32 v21, 0")
    a("s_waitcnt lgkmcnt(0)")
    a("s_lshl_b32 s64, s64, 1")
    a("s_or_b32 s64, s64, 1")
    a("v_mov_b32 v22, s64")
    a("s_mov_b64 exec, 1")
    a(f"buffer_store_dword v22, v21, {R(SD)}, 0 offen sc1")
    a("s_mov_b64 exec, -1")
    a.label("C_NOINIT")
    a("s_lshr_b32 s92, s27, 1")
    a("s_and_b32 s93, s27, 1")
    a("v_and_b32 v13, 31, v0")
    a("v_lshrrev_b32 v14, 5, v0")
    a("v_bfe_u32 v15, v0, 1, 3")
    a("v_xor_b32 v15, v15, v14")
    a("s_lshl_b32 s64, s92, 13")
    a("v_lshl_add_u32 v1, v13, 7, s64")
    a("s_lshl_b32 s65, s27, 12")
    a("s_sub_u32 s65, s65, s64")
    for ks in range(4):
        a(f"v_xor_b32 v{XA+ks}, {2*ks}, v15")
        a(f"v_lshl_add_u32 v{XA+ks}, v{XA+ks}, 4, v1")
        a(f"v_add_u32 v{XQ+ks}, s65, v{XA+ks}")
    a("s_mul_i32 s64, s93, 56")
    a(f"v_mov_b32 v{WA}, s64")
    tr_lane_addr(a, WB, WA, 1, 15, 2)
    a(f"v_add_u32 v{WB}, {RING}, v{WB}")
    a(f"v_mov_b32 v{WA}, v{WB}")
    a("v_bfe_u32 v1, v0, 2, 2")
    a("v_lshl_add_u32 v1, v14, 3, v1")
    a("v_lshlrev_b32 v1, 1, v1")
    a("v_bfe_u32 v15, v0, 4, 1")
    a("v_add_u32 v1, v1, v15")
    a("v_lshlrev_b32 v1, 2, v1")
    a("v_and_b32 v15, 3, v0")
    a("v_add_u32 v1, v1, v15")
    a("v_lshlrev_b32 v1, 3, v1")
    a(f"v_add_u32 v{WQ}, {RING}, v1")
    if TA[1] and TAE == "2":
        a("s_cmp_eq_u32 s26, 0")
        a("s_cbranch_scc0 C_NTA")
        touch("A", TA[0], TA[1], E("TQ", "A") == "A")
        a("s_barrier")
        a.label("C_NTA")
    a("v_cmp_eq_u32 vcc, 28, v13")
    a(f"v_mov_b32 v1, {ONE2}")
    a("s_nop 0")
    a("v_cndmask_b32 v15, 0, v1, vcc")
    for s in range(2):
        for i in range(8):
            a(f"v_mov_b32 v{pV[s]+i}, v15")
    a("s_mov_b32 s56, 0x0fffffff")
    a("s_mov_b32 s57, 0x0fffffff")
    a(f"s_mov_b32 s64, {f32(LOG2E)}")
    a(f"s_mov_b32 s65, {f32(QSCALE)}")
    a(f"s_mov_b32 s66, {f32(EPS)}")
    for i in range(32):
        a(f"v_mov_b32 v{accV[0]+i}, 0")
    a("v_lshlrev_b32 v13, 4, v0")
    a("s_cmp_eq_u32 s26, 0")
    a("s_cbranch_scc1 C_A")

    def scalars():
        for s in range(4):
            a(f"s_add_u32 s60, s27, {1+s}")
            a("s_and_b32 s60, s60, 3")
            a(f"s_lshl_b32 s{36+s}, s60, 11")
            a(f"s_add_u32 s{36+s}, s{36+s}, {L_QD}")
            a(f"s_mul_i32 s{40+s}, s60, 12288")
            a(f"s_add_u32 s{40+s}, s{40+s}, {RING + (4096*s if s < 3 else 0)}")
        a(f"s_mul_i32 s44, s28, {4*PAD}")
        a(f"s_mul_i32 s45, s27, {PAD}")
        a("s_add_u32 s45, s45, s44")
        a("s_lshl_b32 s46, s24, 2")
        a("s_add_u32 s46, s46, s27")
        a(f"s_mul_i32 s46, s46, {PAD}")
        a("s_lshl_b32 s60, s28, 11")
        a("s_add_u32 s46, s46, s60")
        a(f"s_add_u32 s46, s46, {WS_OF + 32768}")
        a("s_lshl_b32 s47, s27, 12")
        a(f"s_add_u32 s47, s47, {L_KVD}")
        a("s_lshl_b32 s48, s27, 8")
        a(f"s_add_u32 s48, s48, {L_G}")
    def reads(buf, ks):
        f = FR + 16*buf
        return [f"ds_read_b128 {vr(f,4)}, v{XA+ks}",
                f"ds_read_b64_tr_b16 {vr(f+8,2)}, v{WA} offset:{ks*2048}",
                f"ds_read_b64_tr_b16 {vr(f+10,2)}, v{WA} offset:{ks*2048+512}",
                f"ds_read_b128 {vr(f+4,4)}, v{XA+ks} offset:4096",
                f"ds_read_b64_tr_b16 {vr(f+12,2)}, v{WA} offset:{8192+ks*2048}",
                f"ds_read_b64_tr_b16 {vr(f+14,2)}, v{WA} offset:{8192+ks*2048+512}"]
    def mfmas(buf, kT):
        f = FR + 16*buf
        Xf = [vr(f, 4), vr(f+4, 4)]; Wk, Wv = vr(f+8, 4), vr(f+12, 4)
        m = []
        for s in range(2): m.append(f"{MF} {vr(accV[s],16)}, {Xf[s]}, {Wk}, {vr(accV[s],16)}")
        for s in range(2):
            if kT: m.append(f"{MF} {vr(accK[s],16)}, {Wv}, {Xf[s]}, {vr(accK[s],16)}")
            else:  m.append(f"{MF} {vr(accK[s],16)}, {Xf[s]}, {Wv}, {vr(accK[s],16)}")
        return m
    def mainloop(tag, kT):
        a("s_mov_b32 s60, 0")
        a("s_mov_b32 s61, 0")
        if STAMP != 4: stampc(a, 1)
        a("s_barrier")
        if STAMP != 4: stampc(a, 2)
        for r in reads(0, 0): a(r)
        a(".p2align 6")
        a.label(f"C_{tag}_LOOP")
        for ks in range(4):
            m = mfmas(ks & 1, kT); r = reads((ks+1) & 1, (ks+1) & 3)
            if ks < 3:
                a("s_waitcnt lgkmcnt(3)"); a(m[0]); a(r[0]); a(r[1]); a(r[2])
                a("s_waitcnt lgkmcnt(5)"); a(m[1]); a(r[3]); a(r[4]); a(r[5])
                a("s_waitcnt lgkmcnt(6)"); a(m[2])
                a(f"v_add_u32 v{XA+ks}, 16384, v{XA+ks}")
                if ks == 2:
                    a("s_add_u32 s60, s60, 1")
                    a("s_add_u32 s61, s61, 16384")
                    a("s_cmp_eq_u32 s61, 49152")
                    a("s_cselect_b32 s61, 0, s61")
                a(m[3])
            else:
                a(f"v_add_u32 v{WA}, s61, v{WB}")
                a("s_cmp_eq_u32 s60, 7")
                a("s_waitcnt lgkmcnt(0)")
                a(f"s_cbranch_scc1 C_{tag}_TAIL")
                a("s_barrier")
                a(m[0]); a(r[0]); a(r[1]); a(r[2])
                a(m[1]); a(r[3]); a(r[4]); a(r[5])
                a(m[2])
                a(f"v_add_u32 v{XA+3}, 16384, v{XA+3}")
                a(m[3])
                a(f"s_branch C_{tag}_LOOP")
                a.label(f"C_{tag}_TAIL")
                for x in m: a(x)
        stampc(a, 3)
    _reads = reads
    def reads(buf, ks):
        r = _reads(buf, ks)
        f = FR + 16*buf
        r[1] = f"ds_read_b64_tr_b16 {vr(f+8,2)}, v{WA} offset:{8192+ks*2048}"
        r[2] = f"ds_read_b64_tr_b16 {vr(f+10,2)}, v{WA} offset:{8192+ks*2048+512}"
        r[4] = f"ds_read_b64_tr_b16 {vr(f+12,2)}, v{WA} offset:{ks*2048}"
        r[5] = f"ds_read_b64_tr_b16 {vr(f+14,2)}, v{WA} offset:{ks*2048+512}"
        return r
    def cvt_v():
        a("s_nop 9")
        a("s_mov_b64 exec, s[56:57]")
        for s in range(2): cvt(a, pV[s], accV[s])
        a("s_mov_b64 exec, -1")
    def phase1b(fill):
        def qreads(k):
            f = FR + 12*(k % 3); d, kk = k >> 3, k & 7
            c = k >> 2
            o = ((7+d) % 3)*16384 + kk*1024
            return [f"ds_read_b128 {vr(f,4)}, v{XQ+(k&3)} offset:{(c&3)*16384}",
                    f"ds_read_b64_tr_b16 {vr(f+8,2)}, v{WQ} offset:{o+8192}",
                    f"ds_read_b64_tr_b16 {vr(f+10,2)}, v{WQ} offset:{o+8192+256}",
                    f"ds_read_b64_tr_b16 {vr(f+4,2)}, v{WQ} offset:{o}",
                    f"ds_read_b64_tr_b16 {vr(f+6,2)}, v{WQ} offset:{o+256}"]
        stampc(a, 4)
        a("s_barrier")
        if STAMP == 6: stampc(a, 15)
        for k in (0, 1):
            for r in qreads(k): a(r)
        for k in range(28):
            f = FR + 12*(k % 3)
            r = qreads(k+2) if k+2 < 28 else []
            nout = 5 if k+1 < 28 else 0
            bar = (k+2) < 28 and (k+2) % 8 == 0
            if k == SIGK:
                a("s_waitcnt vmcnt(0)")
                a("s_barrier")
            if bar:
                if STAMP == 6: stampc(a, 9 + 2*(k // 8))
                a("s_barrier")
                if STAMP == 6: stampc(a, 10 + 2*(k // 8))
            a(f"s_waitcnt lgkmcnt({nout+2})")
            a(f"{MF} {vr(QB,16)}, {vr(f+8,4)}, {vr(f,4)}, {'0' if k == 0 else vr(QB,16)}")
            for x in r[:3]: a(x)
            for x in fill(k, 0): a(x)
            a(f"s_waitcnt lgkmcnt({nout + len(r[:3])})")
            a(f"{MF} {vr(QA,16)}, {vr(f+4,4)}, {vr(f,4)}, {'1.0' if k == 0 else vr(QA,16)}")
            for x in r[3:]: a(x)
            for x in fill(k, 1): a(x)
            if 10 <= k <= 13:
                a(f"v_add_u32 v{XQ+((k+2)&3)}, 65536, v{XQ+((k+2)&3)}")
        stampc(a, 5)
        a("v_add_u32 v1, s39, v13")
        a("v_mov_b32 v22, 0")
        a("v_mov_b32 v23, 0")
        a("s_nop 7")
        a(f"v_mov_b32 v14, v{QB+12}")
        a(f"v_mov_b32 v15, v{QB+12}")
        vmul(a, QB, "s65", 8)
        a("v_permlane32_swap_b32 v15, v14")
        cvt(a, 16, QB, 0, 4)
        a("ds_write_b128 v1, v[16:19]")
        vmul(a, QB+8, "s65", 8)
        cvt(a, 16, QB, 4, 6)
        a("s_mov_b32 exec_hi, 0")
        cvt(a, 16, QB, 6, 8)
        a("s_mov_b32 exec_hi, -1")
        a("ds_write_b128 v1, v[20:23] offset:1024")
    def defer_q(a, mats):
        PP = QB + 8
        w = [f"v_mul_f32 v14, {f32(-LOG2E)}, v14", "v_exp_f32 v14, v14", f"v_mov_b32 v{PP+6}, 0", f"v_mov_b32 v{PP+7}, 0",
             "v_add_f32 v14, 1.0, v14", "v_rcp_f32 v14, v14"] + phi_list(QA, QB)
        for i, x in enumerate(w):
            if mats and i % 7 == 0: a(mats.pop(0))
            a(x)
        for x in mats: a(x)
        cvt(a, PP, QA, 0, 6)
        a("s_mov_b32 exec_hi, 0")
        cvt(a, PP, QA, 6, 8)
        a("s_mov_b32 exec_hi, -1")
        a(f"ds_write_b128 v1, {vr(PP,4)} offset:8192")
        a(f"ds_write_b128 v1, {vr(PP+4,4)} offset:9216")
        a("v_lshl_add_u32 v15, v0, 2, s48")
        a("ds_write_b32 v15, v14")
        a("v_sub_f32 v14, 1.0, v14")
    O = [16, 32, 48, 64]; S = [80, 96, 112, 128]; Q = [0, 8, 16, 24]; KV = [32, 48, 64, 80]
    RA = 144
    def ld(dst, off, v="v1", so="s58"):
        return f"buffer_load_dwordx4 {ar(dst,4)}, {v}, {WSR}, {so} offen" + (f" offset:{off}" if off else "") + " sc1"
    adv = ["s_add_u32 s58, s58, 4096"]
    ZR = ar(KV[3]+12, 4)
    zero = lambda d: f"{MF} {vr(d,16)}, {ZR}, {ZR}, 0"
    def pre(a):
        for i in range(4): a(f"v_accvgpr_write_b32 a{KV[3]+12+i}, 0")
        a("v_add_u32 v4, s44, v13")
        a(f"v_mov_b32 v5, {L_CNT}")
        a("v_mov_b32 v6, 1")
    def first_loads(work):
        stampc(a, 7)
        a("v_add_u32 v7, s45, v13")
        a("s_mov_b32 s58, 4096")
        a("s_mov_b32 s59, 8192")
        for f in range(4):
            a(ld(KV[0]+4*f, 1024*f, "v7", "0"))
            a(f"v_add_u32 v{8+f}, s{36+f}, v13")
            a(f"ds_read_b128 {ar(Q[f],4)}, v{8+f}")
            a(f"ds_read_b128 {ar(Q[f]+4,4)}, v{8+f} offset:1024")
        sub = Asm(); work(sub)
        lines = sub.lines
        rest = [ld(KV[n]+4*f, 1024*f, "v7", f"s{57+n}") for n in (1, 2) for f in range(4)]
        gap = int(E("LG", "8")); full = True
        for i, l in enumerate(lines):
            a.lines.append(l)
            if "exec" in l and l.strip().startswith("s_mov"): full = l.strip().endswith("-1")
            if rest and full and i % gap == gap - 1: a(rest.pop(0))
        for x in rest: a(x)
        a("s_mov_b32 s58, 12288")

    for i in range(32): a(f"v_mov_b32 v{accK[0]+i}, 0")
    for s in range(2):
        a(f"v_mov_b32 v{pK[s]+6}, v1"); a(f"v_mov_b32 v{pK[s]+7}, v1")
    a("v_and_b32 v15, 0x33, v0")
    a("v_bfe_u32 v1, v0, 2, 1")
    a("v_lshl_add_u32 v15, v1, 3, v15")
    a("v_bfe_u32 v1, v0, 3, 1")
    a("v_lshl_add_u32 v15, v1, 2, v15")
    a("v_lshlrev_b32 v15, 4, v15")
    a("s_lshl_b32 s58, s25, 1")
    a("s_add_u32 s58, s58, s93")
    a("s_lshl_b32 s58, s58, 2")
    a("s_add_u32 s58, s58, s34")
    a(f"s_mul_i32 s58, s58, {PAD}")
    a("s_lshl_b32 s59, s29, 1")
    a("s_add_u32 s59, s59, s92")
    a("s_lshl_b32 s59, s59, 13")
    a("s_add_u32 s58, s58, s59")
    a("s_add_u32 s59, s58, 4096")
    a("s_barrier")
    scalars()
    mainloop("B", True)
    cvt_v()
    st = []
    for s in range(2):
        st.append(f"buffer_store_dwordx4 {vr(pV[s],4)}, v13, {WSR}, s{58+s} offen offset:2048 sc1")
        st.append(f"buffer_store_dwordx4 {vr(pV[s]+4,4)}, v13, {WSR}, s{58+s} offen offset:3072 sc1")
    for s in range(2):
        st.append(f"buffer_store_dwordx4 {vr(pK[s],4)}, v15, {WSR}, s{58+s} offen sc1")
        st.append(f"buffer_store_dwordx4 {vr(pK[s]+4,4)}, v15, {WSR}, s{58+s} offen offset:1024 sc1")
    for x in st[:4]: a(x)
    for s in range(2):
        cvt(a, pK[s], accK[s], 0, 6)
        a("s_mov_b32 exec_hi, 0")
        cvt(a, pK[s], accK[s], 6, 8)
        a("s_mov_b32 exec_hi, -1")
        for x in st[4+2*s:6+2*s]: a(x)
    phase1b(lambda k, slot: [])
    a("s_waitcnt lgkmcnt(0)")
    stampc(a, 6)
    a("s_barrier")
    def workB(a):
        pre(a)
        defer_q(a, [zero(d) for d in O + [S[3]]])
    first_loads(workB)
    a("s_branch C_2")

    a.label("C_A")
    for i in range(32): a(f"v_mov_b32 v{accK[0]+i}, 1.0")
    for s in range(2):
        for i in range(8): a(f"v_mov_b32 v{pK[s]+i}, 0")
    if TA[1] and TAE == "0": touch("A", TA[0], TA[1], E("TQ", "A") == "A")
    if TAE != "2": a("s_barrier")
    scalars()
    mainloop("A", False)
    cvt_v()
    pend = phi_list(accK[0], 52) + phi_list(accK[1], 52)
    NF = int(E("NF", "1"))
    def fillA(k, slot):
        if k == 0: return []
        o = pend[:NF]; del pend[:NF]
        return o
    phase1b(fillA)
    a("s_waitcnt lgkmcnt(0)")
    stampc(a, 6)
    a("s_barrier")
    D = accK[1]
    def workA(a):
        pre(a)
        z = [zero(d) for d in O[:2]]
        for i, x in enumerate(pend):
            if z and i % 7 == 0: a(z.pop(0))
            a(x)
        a("s_mov_b64 exec, s[56:57]")
        for s in range(2): cvt(a, pK[s], accK[s])
        a("s_mov_b64 exec, -1")
        a("s_nop 1")
        defer_q(a, [f"{MF} {vr(D,16)}, {vr(pK[0],4)}, {vr(pV[0],4)}, 0",
                    f"{MF} {vr(D,16)}, {vr(pK[0]+4,4)}, {vr(pV[0]+4,4)}, {vr(D,16)}",
                    f"{MF} {vr(D,16)}, {vr(pK[1],4)}, {vr(pV[1],4)}, {vr(D,16)}",
                    f"{MF} {vr(D,16)}, {vr(pK[1]+4,4)}, {vr(pV[1]+4,4)}, {vr(D,16)}"] + z + [zero(O[2]), zero(O[3]), zero(S[3])])
        a("v_add_u32 v15, s47, v13")
        for q in range(4):
            a(f"ds_write_b128 v15, {vr(D+4*q,4)} offset:{1024*q}")
    first_loads(workA)

    a.label("C_2")
    a("v_mov_b32 v2, 0xdddd")
    a("v_mov_b32 v3, 0")
    a("v_mov_b32 v1, v7")
    a("s_mov_b32 s59, 3")
    for s in range(4): a(f"v_add_u32 v{RA+s}, s{40+s}, v13")
    a("s_waitcnt vmcnt(10) lgkmcnt(0)")
    stampc(a, 8)
    a("s_mov_b64 exec, 1")
    a("ds_add_u32 v5, v6 offset:8")
    a("ds_read_b32 v6, v5 offset:20")
    a("s_mov_b64 exec, -1")
    a(f"{MF} {vr(S[0],16)}, {ar(KV[0],4)}, {ar(Q[0],4)}, 0")
    a(f"{MF} {vr(S[0],16)}, {ar(KV[0]+4,4)}, {ar(Q[0]+4,4)}, {vr(S[0],16)}")
    a("s_waitcnt vmcnt(8) lgkmcnt(0)")
    a("v_readfirstlane_b32 s87, v6")
    a("s_nop 8")
    def unit(pos, cur, nxt, prv, slot):
        sc = S[pos & 3]; sn = S[(pos+1) & 3]; sp = S[(pos-1) & 3]
        e = [f"v_exp_f32 v{sc+i}, v{sc+i}" for i in range(16)]
        if nxt: a(f"{MF} {vr(sn,16)}, {ar(KV[nxt[0]],4)}, {ar(Q[nxt[1]],4)}, 0")
        for x in slot[0]: a(x)
        for x in e[0:4]: a(x)
        a(f"{SM} {vr(O[prv[1]],16)}, {ar(KV[prv[0]]+12,4)}, {vr(sp+8,8)}, v2")
        for x in slot[1]: a(x)
        for x in e[4:8]: a(x)
        if nxt: a(f"{MF} {vr(sn,16)}, {ar(KV[nxt[0]]+4,4)}, {ar(Q[nxt[1]]+4,4)}, {vr(sn,16)}")
        for x in slot[2]: a(x)
        for x in e[8:12]: a(x)
        a(f"{SM} {vr(O[cur[1]],16)}, {ar(KV[cur[0]]+8,4)}, {vr(sc,8)}, v2")
        for x in slot[3]: a(x)
        if nxt:
            for _ in range(2 - min(2, len(slot[2]) + len(slot[3]))): a("s_nop 0")
        for x in e[12:16]: a(x)
    LP = int(E("LP", "2"))
    def plain(n, s):
        slot = [[], [], [], []]
        slot[LP].append(ld(KV[(n+3) & 3] + 4*s, 1024*s))
        if s == 3: slot[3] += adv
        if s == 2: slot[3].append("s_waitcnt vmcnt(7)")
        return slot
    a(".p2align 6")
    a.label("C_ATT")
    for n in range(4):
        for s in range(4):
            slot = plain(n, s)
            if n == 3 and s == 1: slot[3].append("s_sub_u32 s59, s59, 1")
            if n == 3 and s == 3: slot[3].append("s_cmp_lg_u32 s59, 0")
            unit(s, (n, s), ((n + (s == 3)) & 3, (s+1) & 3), ((n - (s == 0)) & 3, (s-1) & 3), slot)
    a("s_cbranch_scc1 C_ATT")
    seq = [(0, s) for s in range(4)] + [(1, s) for s in range(4)] + [(n, s) for s in range(4) for n in (2, 3)]
    for i, cur in enumerate(seq):
        nxt = seq[i+1] if i < 15 else None
        prv = seq[i-1] if i > 0 else (3, 3)
        slot = plain(*cur) if i < 4 else [[], [], [], []]
        if i == 6: slot[3].append("s_waitcnt vmcnt(0)")
        w = {11: 0, 13: 1, 15: 2}
        for first, s_ in ((11, 0), (13, 1)):
            if i in (first, first+1):
                for q in range(2):
                    qq = 2*(i - first) + q
                    slot[1 + 2*q].append(f"ds_write_b128 v{RA+s_}, {vr(O[s_]+4*qq,4)} offset:{1024*qq}")
        if i == 15:
            for q in range(4):
                slot[q].append(f"ds_write_b128 v{RA+2}, {vr(O[2]+4*q,4)} offset:{1024*q}")
        unit(i, cur, nxt, prv, slot)
        if i == int(E("XP", "10")):
            if STAMP == 4: stampc(a, 1)
            a("s_barrier")
            if STAMP == 4: stampc(a, 2)
    a("s_setprio 1")
    a("v_mov_b32 v22, 0")
    a(f"{SM} {vr(O[3],16)}, {ar(KV[3]+12,4)}, {vr(S[3]+8,8)}, v2")
    a("v_mov_b32 v23, 0")
    a(f"s_mov_b32 s62, {f32(2.0**-40)}")
    a(f"s_mov_b32 s63, {f32(2.0**40)}")
    a("s_waitcnt lgkmcnt(0)")
    a("s_barrier")
    if STAMP != 6: stampc(a, 9)
    for i in range(12):
        a(f"ds_read_b128 {vr(S[0]+4*i,4)}, v{RA+3} offset:{1024*((i % 3)*4 + i // 3)}")
    for q in range(4):
        a(f"s_waitcnt lgkmcnt({9-3*q})")
        b = S[0] + 12*q
        vadd(a, b, b+4, 4)
        vadd(a, O[3]+4*q, b+8, 4)
        vadd(a, O[3]+4*q, b, 4)
    a(f"v_mov_b32 v6, v{O[3]+12}")
    a(f"v_mov_b32 v7, v{O[3]+12}")
    a("s_nop 1")
    a("v_permlane32_swap_b32 v6, v7")
    a("v_cmp_nge_f32 vcc, v7, s62")
    a("v_cmp_nle_f32 s[64:65], v7, s63")
    a("v_rcp_f32 v7, v7")
    a("s_or_b64 vcc, vcc, s[64:65]")
    a("s_cbranch_scc1 C_FALLBACK")
    a.label("C_FIN")
    a(f"v_mov_b32 v5, {RING + 49152 - 16}")
    a("s_cmp_eq_u32 s27, 3")
    a("s_cbranch_scc0 C_NOCLR")
    a("ds_write_b32 v5, v3")
    a.label("C_NOCLR")
    a("v_mul_f32 v7, v7, v14")
    vmul(a, O[3], "v7", 8)
    cvt(a, 16, O[3], 0, 4)
    a(f"buffer_store_dwordx4 v[16:19], v13, {WSR}, s46 offen sc1")
    vmul(a, O[3]+8, "v7", 8)
    cvt(a, 16, O[3], 4, 6)
    a("s_mov_b32 exec_hi, 0")
    cvt(a, 16, O[3], 6, 8)
    a("s_mov_b32 exec_hi, -1")
    a(f"buffer_store_dwordx4 v[20:23], v13, {WSR}, s46 offen offset:1024 sc1")
    a("s_waitcnt lgkmcnt(0)")
    a("s_barrier")
    if STAMP != 6: stampc(a, 10)
    a("s_mul_i32 s60, s92, 28672")
    a("s_add_u32 s60, s60, 57344")
    a("s_lshl_b32 s61, s92, 6")
    a("v_mov_b32 v1, v5")
    p3_addr(a, 4, "s60", "s61", 8, 9)
    a("s_lshl_b32 s60, s27, 13")
    a(f"s_add_u32 s60, s60, {RING}")
    a("v_add_u32 v8, s60, v13")
    a("s_lshl_b32 s60, s27, 12")
    a(f"s_add_u32 s60, s60, {RING + 32768}")
    a("v_add_u32 v9, s60, v13")
    a("v_xor_b32 v10, 8192, v9")
    a("s_lshl_b32 s60, s30, 1")
    a("s_add_u32 s60, s60, s93")
    a("v_and_b32 v11, 31, v0")
    a("s_lshl_b32 s61, s60, 5")
    a("v_add_u32 v11, s61, v11")
    a("v_mul_u32_u24 v11, 896, v11")
    a("v_lshrrev_b32 v12, 5, v0")
    a("v_lshl_add_u32 v11, v12, 4, v11")
    a(f"s_mul_i32 s60, s60, {PAD}")
    a("s_lshl_b32 s61, s92, 14")
    a("s_add_u32 s60, s60, s61")
    a(f"s_add_u32 s60, s60, {WS_OF + 32768}")
    a("s_and_b32 s61, s30, 0xfe")
    a("s_lshl_b32 s61, s61, 10")
    a(f"s_add_u32 s61, s61, {C_OB}")
    a("s_lshl_b32 s62, s31, 7")
    a("s_lshl_b32 s63, s92, 6")
    a("s_add_u32 s62, s62, s63")
    srd(a, SX, 18, 1835008)
    a("s_lshl_b32 s64, s24, 4")
    a("s_add_u32 s64, s64, s28")
    a("s_lshl_b32 s64, s64, 7")
    a(f"s_add_u32 s64, s64, {C_OB}")
    a("v_mov_b32 v12, 1")
    a("s_mov_b64 exec, 1")
    a("s_waitcnt vmcnt(0)")
    a("ds_add_rtn_u32 v14, v1, v12")
    a("s_waitcnt lgkmcnt(0)")
    a("v_readfirstlane_b32 s69, v14")
    a("s_nop 0")
    a("s_cmp_eq_u32 s69, 3")
    a("s_cbranch_scc0 C_NOSIG")
    a("v_mov_b32 v12, s87")
    a(f"buffer_store_dword v12, v3, {WSR}, s64 offen sc1")
    a.label("C_NOSIG")
    a("s_mov_b64 exec, -1")
    if STAMP != 6: stampc(a, 11)
    a("s_cmp_ge_u32 s32, 28")
    a("s_cbranch_scc1 C_EXIT")
    a("s_cmp_eq_u32 s27, 0")
    a("s_cbranch_scc0 C_OBD")
    a("v_lshlrev_b32 v14, 7, v0")
    poll(a, "OB", WSR, "s61", 16, 14, 12, int(E("OBS", "2")), False)
    a.label("C_OBD")
    a("s_barrier")
    if STAMP != 6: stampc(a, 12)
    NPRE = int(E("NPRE", "10"))
    p3_oloads(a, 13, "s60", NPRE)
    for i in range(8):
        a(f"ds_read_b128 {vr(16+4*i,4)}, v8 offset:{1024*i}")
    p3_gemm(a, 4, [16, 32], [48, 56], False, NPRE, 13, "s60")
    if STAMP != 6: stampc(a, 13)
    a("s_nop 11")
    for i in range(4):
        a(f"ds_write_b128 v9, {vr(32+4*i,4)} offset:{1024*i}")
    a("s_waitcnt lgkmcnt(0)")
    a("s_barrier")
    for i in range(4):
        a(f"ds_read_b128 {vr(32+4*i,4)}, v10 offset:{1024*i}")
    OFL = E("OFL", "")
    for hf in range(2):
        for q in (2*hf, 2*hf+1):
            a(f"s_waitcnt lgkmcnt({3-q})")
            vadd(a, 16+4*q, 32+4*q, 4)
        cvt(a, 48, 16, 4*hf, 4*hf+4)
        a("s_nop 1")
        a(f"v_permlane32_swap_b32 v{48+4*hf}, v{50+4*hf}")
        a(f"v_permlane32_swap_b32 v{49+4*hf}, v{51+4*hf}")
        a(f"buffer_store_dwordx4 {vr(48+4*hf,4)}, v11, {R(SX)}, s62 offen offset:{32*hf} {OFL}")
    a.label("C_EXIT")
    if E("DIAGT", ""):
        a("s_xor_b32 s64, s2, %s" % E("DIAGW", "0"))
        a("s_or_b32 s64, s64, s27")
        a("s_cmp_eq_u32 s64, 0")
        a("s_cbranch_scc0 C_DX")
        if E("DIAGP", ""):
            a("s_sub_u32 s100, s100, s96")
            a("s_lshl_b32 s100, s100, 1")
            a("s_add_u32 s96, s96, s100")
        a.label("C_DL")
        a("s_memrealtime s[98:99]")
        a("s_waitcnt lgkmcnt(0)")
        a("s_sub_u32 s98, s98, s96")
        a("s_cmp_lt_i32 s98, %s" % E("DIAGT", ""))
        a("s_cbranch_scc1 C_DL")
        a.label("C_DX")
    if STAMP != 6: stampc(a, 14)
    if STAMP: a("s_waitcnt vmcnt(0)")
    if STAMP != 6: stampc(a, 15)
    stamp_out(a, 16)
    a("s_endpgm")
    a.label("C_FALLBACK")
    Qo = Q[3]; K0 = KV[0]; Sx = S[0]
    def fb_adv():
        a("s_add_u32 s58, s58, 4096")
        a("s_add_u32 s59, s59, 1")
        a("s_and_b32 s61, s59, 15")
        a(f"s_cselect_b32 s61, 0, {PAD-65536}")
        a("s_add_u32 s58, s58, s61")
        a("s_nop 15")
    a("s_mov_b32 s58, 0")
    a("s_mov_b32 s59, 0")
    a(f"v_mov_b32 v8, {f32(float('-inf'))}")
    a.label("C_FB1")
    a(ld(K0, 0, "v4")); a(ld(K0+4, 1024, "v4"))
    a("s_waitcnt vmcnt(0)")
    a(f"{MF} {vr(Sx,16)}, {ar(K0,4)}, {ar(Qo,4)}, 0")
    a(f"{MF} {vr(Sx,16)}, {ar(K0+4,4)}, {ar(Qo+4,4)}, {vr(Sx,16)}")
    fb_adv()
    a("s_nop 15")
    for i in range(8):
        a(f"v_max3_f32 v8, v8, v{Sx+2*i}, v{Sx+2*i+1}")
    a("s_cmp_lt_u32 s59, 64")
    a("s_cbranch_scc1 C_FB1")
    a("v_mov_b32 v9, v8")
    a("s_nop 1")
    a("v_permlane32_swap_b32 v8, v9")
    a("v_max_f32 v8, v8, v9")
    a("v_and_b32 v9, 0xffff0000, v8")
    a("v_sub_f32 v8, v8, v9")
    a("v_and_b32 v10, 0xffff0000, v8")
    a("v_sub_f32 v8, v8, v10")
    a("v_cvt_pk_bf16_f32 v9, -v9, -v10")
    a("v_cvt_pk_bf16_f32 v8, -v8, 0")
    a("s_mov_b32 exec_lo, 0")
    a(f"v_accvgpr_write_b32 a{Qo+6}, v9")
    a(f"v_accvgpr_write_b32 a{Qo+7}, v8")
    a("s_mov_b32 exec_lo, -1")
    for i in range(16): a(f"v_mov_b32 v{O[3]+i}, 0")
    a("s_mov_b32 s58, 0")
    a("s_mov_b32 s59, 0")
    a.label("C_FB2")
    for f in range(4): a(ld(K0+4*f, 1024*f, "v4"))
    a("s_waitcnt vmcnt(0)")
    a(f"{MF} {vr(Sx,16)}, {ar(K0,4)}, {ar(Qo,4)}, 0")
    a(f"{MF} {vr(Sx,16)}, {ar(K0+4,4)}, {ar(Qo+4,4)}, {vr(Sx,16)}")
    fb_adv()
    a("s_nop 15")
    for i in range(16): a(f"v_exp_f32 v{Sx+i}, v{Sx+i}")
    a("s_nop 1")
    a(f"{SM} {vr(O[3],16)}, {ar(K0+8,4)}, {vr(Sx,8)}, v2")
    a(f"{SM} {vr(O[3],16)}, {ar(K0+12,4)}, {vr(Sx+8,8)}, v2")
    a("s_cmp_lt_u32 s59, 64")
    a("s_cbranch_scc1 C_FB2")
    a("s_nop 15")
    a("s_nop 15")
    a(f"v_mov_b32 v6, v{O[3]+12}")
    a(f"v_mov_b32 v7, v{O[3]+12}")
    a("s_nop 1")
    a("v_permlane32_swap_b32 v6, v7")
    a("v_rcp_f32 v7, v7")
    a("s_nop 0")
    a("s_branch C_FIN")

def main():
    a = Asm()
    head = f"""; gated mix of a linear-attention block and a softmax-attention block (S=2048, D=448, H=16), one launch
; @launch grid=(256,1,1) block=(512,1,1) lds=163840
.amdgcn_target "amdgcn-amd-amdhsa--gfx950"
.text
"""
    gen(a)
    out = head + a.text() + '.section .rodata,"a"\n' + kernel_desc(KN, 256, 102, 160)
    path = sys.argv[1] if len(sys.argv) > 1 else f"cdna_kernels/{NAME}.s"
    open(path, "w").write(out)
main()
```

```python
import math, sys, os, struct
from asmlib import *

NAME = "gated_mix__linear_attn_block__mha_block__prompt"
KN = NAME + "_kernel"
WS_KV  = 0
WS_CNT = 5 << 20
WS_KVP = 6 << 20
WS_OF  = 8 << 20
PAD = int(os.environ.get("PAD", "69632"))
WS_ST  = 14 << 20
WS_SIZE = 16 << 20
LOG2E = 1.4426950408889634
QSCALE = LOG2E * 28 ** -0.5
EPS = 1e-6
ONE2 = 0x3F803F80
RING = 114688
L_KVD = RING
L_G   = RING + 16384 + 4096
L_KVF = RING + 16384 + 12288
L_CNT = RING + 16384 + 14336
L_QD  = RING + 32768
L_PQ  = RING + 32768 + 8192
STAMP = int(os.environ.get("STAMP", "0"))
X = set(os.environ.get("X", "").split(","))
MF = "v_mfma_f32_32x32x16_bf16"
SM = "v_smfmac_f32_32x32x32_bf16"
SX, SW, SWA, SWB, SWS, SD, SG = 36, 40, 44, 48, 52, 56, 60
WSR = f"s[{SWS}:{SWS+3}]"
SPIN = 200000
WFL = os.environ.get("WFL", "")
XFL = os.environ.get("XFL", "")

def srd(a, d, lo, size):
    a(f"s_mov_b32 s{d}, s{lo}")
    a(f"s_mov_b32 s{d+1}, s{lo+1}")
    a(f"s_mov_b32 s{d+2}, {size}")
    a(f"s_mov_b32 s{d+3}, 0x20000")
def R(d): return f"s[{d}:{d+3}]"

def stamp(a, i, mode=1):
    if not STAMP: return
    if mode is not None and mode != STAMP: return
    if i == 0: a("s_memrealtime s[96:97]")
    a("s_memrealtime s[94:95]" if os.environ.get("RT") else "s_memtime s[94:95]")
    a("s_waitcnt lgkmcnt(0)")
    a(f"s_mov_b32 s{70+i}, s94")
def stampc(a, i):
    if os.environ.get("DIAGP") == str(i):
        a("s_memrealtime s[100:101]")
        a("s_waitcnt lgkmcnt(0)")
    if STAMP == 5: return
    stamp(a, i, None)
def stamp_out(a, n):
    if not STAMP: return
    a("s_memrealtime s[98:99]")
    a("s_waitcnt lgkmcnt(0)")
    a("s_mov_b64 exec, 1")
    a("s_lshl_b32 s94, s2, 3")
    a("s_add_u32 s94, s94, s35")
    a("s_lshl_b32 s94, s94, 7")
    a(f"s_add_u32 s94, s94, {WS_ST}")
    a("v_mov_b32 v1, 0")
    for i in range(n if STAMP != 5 else 0):
        a(f"v_mov_b32 v2, s{70+i}")
        a(f"buffer_store_dword v2, v1, {WSR}, s94 offen offset:{4*i}")
    a("v_mov_b32 v2, s96")
    a(f"buffer_store_dword v2, v1, {WSR}, s94 offen offset:120")
    a("v_mov_b32 v2, s98")
    a(f"buffer_store_dword v2, v1, {WSR}, s94 offen offset:124")

def dma_lane_w(a, vdst, vt0, vt1, rowstride):
    a(f"v_lshrrev_b32 v{vt0}, 4, v0")
    a(f"v_bfe_u32 v{vt1}, v0, 2, 2")
    a(f"v_and_b32 v{vdst}, 1, v{vt0}")
    if "noswz" not in X: a(f"v_xor_b32 v{vt1}, v{vt1}, v{vdst}")
    a(f"v_lshrrev_b32 v{vdst}, 1, v{vt1}")
    a(f"v_lshl_add_u32 v{vt0}, v{vt0}, 1, v{vdst}")
    a(f"v_mul_u32_u24 v{vt0}, {rowstride}, v{vt0}")
    a(f"v_and_b32 v{vt1}, 1, v{vt1}")
    a(f"v_lshl_add_u32 v{vt0}, v{vt1}, 6, v{vt0}")
    a(f"v_and_b32 v{vt1}, 3, v0")
    a(f"v_lshl_add_u32 v{vdst}, v{vt1}, 4, v{vt0}")

def tr_lane_addr(a, vdst, vb, vt0, vt1, hlshift):
    a(f"v_bfe_u32 v{vt0}, v0, 4, 1")
    a(f"v_lshl_add_u32 v{vb}, v{vt0}, 5, v{vb}")
    a(f"v_and_b32 v{vt0}, 3, v0")
    a(f"v_lshl_add_u32 v{vb}, v{vt0}, 3, v{vb}")
    a(f"v_bfe_u32 v{vt0}, v0, 2, 1")
    a(f"v_lshrrev_b32 v{vt1}, 6, v{vb}")
    a(f"v_lshl_add_u32 v{vt0}, v{vt0}, 1, v{vt1}")
    a(f"v_bfe_u32 v{vt1}, v0, 3, 1")
    a(f"v_xor_b32 v{vt0}, v{vt0}, v{vt1}")
    a(f"v_and_b32 v{vb}, 63, v{vb}")
    a(f"v_lshl_add_u32 v{vb}, v{vt0}, 6, v{vb}")
    a(f"v_lshrrev_b32 v{vt0}, 5, v0")
    a(f"v_lshl_add_u32 v{vt0}, v{vt0}, {hlshift}, v{vt1}")
    a(f"v_lshl_add_u32 v{vdst}, v{vt0}, 8, v{vb}")

C_KV, C_A, C_OA, C_OB = WS_CNT, WS_CNT + 128*128, WS_CNT + 256*128, WS_CNT + 512*128
NFLAG = 768
def poll(a, tag, srdreg, soff, nl, vl, vt, sleep=0, first=True):
    a(f"s_mov_b64 exec, {(1 << nl) - 1}")
    a(f"s_mov_b32 s68, {SPIN}")
    if sleep and first: a(f"s_branch POLL_{tag}")
    a.label(f"POLLS_{tag}")
    if sleep: a(f"s_sleep {sleep}")
    a.label(f"POLL_{tag}")
    a(f"buffer_load_dword v{vt}, v{vl}, {srdreg}, {soff} offen sc1")
    a("s_sub_u32 s68, s68, 1")
    a(f"s_cbranch_scc1 POLLX_{tag}")
    a("s_waitcnt vmcnt(0)")
    a(f"v_cmp_eq_u32 vcc, 0, v{vt}" if tag.startswith("INIT") else f"v_cmp_ne_u32 vcc, s87, v{vt}")
    a(f"s_cbranch_vccnz POLLS_{tag}")
    a.label(f"POLLX_{tag}")
    a("s_mov_b64 exec, -1")

def lds_wait(a, tag, vaddr, off, target, vt, sleep=1):
    a("s_mov_b64 exec, 1")
    a(f"s_mov_b32 s68, {SPIN}")
    a.label(f"LW_{tag}")
    a(f"s_sleep {sleep}")
    a(f"ds_read_b32 v{vt}, v{vaddr} offset:{off}")
    a("s_waitcnt lgkmcnt(0)")
    a(f"v_readfirstlane_b32 s69, v{vt}")
    a("s_sub_u32 s68, s68, 1")
    a(f"s_cbranch_scc1 LWX_{tag}")
    a(f"s_cmp_ge_u32 s69, {target}")
    a(f"s_cbranch_scc0 LW_{tag}")
    a.label(f"LWX_{tag}")
    a("s_mov_b64 exec, -1")

def signal(a, soff, vz, vt):
    a("s_mov_b64 exec, 1")
    a(f"v_mov_b32 v{vt}, s87")
    a(f"buffer_store_dword v{vt}, v{vz}, {WSR}, {soff} offen sc1")
    a("s_mov_b64 exec, -1")

def cvt(a, dst, src, lo=0, hi=8):
    for i in range(lo, hi):
        a(f"v_cvt_pk_bf16_f32 v{dst+i}, v{src+2*i}, v{src+2*i+1}")

def vadd(a, dst, src, n):
    for i in range(n): a(f"v_add_f32 v{dst+i}, v{dst+i}, v{src+i}")
def vmul(a, dst, mul, n):
    for i in range(n): a(f"v_mul_f32 v{dst+i}, {mul}, v{dst+i}")

def phi_list(src, T, n=16, grp=8):
    o = []
    for g0 in range(0, n, grp):
        o += [f"v_fma_f32 v{T+i}, v{src+g0+i}, s64, -s64" for i in range(grp)]
        o += [f"v_exp_f32_e64 v{T+i}, v{T+i} clamp" for i in range(grp)]
        o += [f"v_max_f32 v{src+g0+i}, v{src+g0+i}, v{T+i}" for i in range(grp)]
        o += [f"v_add_f32 v{src+g0+i}, s66, v{src+g0+i}" for i in range(grp)]
    return o

def p3_addr(a, v0a, mat_off_sgpr, swap_sgpr, vt0, vt1):
    a(f"v_mov_b32 v{v0a+1}, 0")
    tr_lane_addr(a, v0a, v0a+1, vt0, vt1, 1)
    a(f"v_add_u32 v{v0a}, {mat_off_sgpr}, v{v0a}")
    a(f"v_xor_b32 v{v0a}, {swap_sgpr}, v{v0a}")
    a(f"v_xor_b32 v{v0a+1}, 64, v{v0a}")
    a(f"v_lshrrev_b32 v{vt0}, 5, v0")
    a(f"v_lshlrev_b32 v{vt0}, 9, v{vt0}")
    a(f"v_sub_u32 v{v0a+2}, v{v0a}, v{vt0}")
    a(f"v_sub_u32 v{v0a+3}, v{v0a+1}, v{vt0}")

def p3_oload(ks, vlane16, so):
    o = [f"buffer_load_dwordx4 {ar(4*ks,4)}, v{vlane16}, {WSR}, {so} offen offset:{1024*(ks&3)} sc1"]
    if ks & 3 == 3 and ks < 15: o.append(f"s_add_u32 {so}, {so}, 4096")
    return o

def p3_gemm(a, va, ACC, WF, first_zero, npre, vlane16, so):
    def reads(ks):
        f = WF[ks & 1]; hh, m = ks >> 1, ks & 1
        o = (14*hh + 8*m) * 256
        last = (ks == 15)
        return [f"ds_read_b64_tr_b16 {vr(f,2)}, v{va} offset:{o}",
                f"ds_read_b64_tr_b16 {vr(f+2,2)}, v{va+2 if last else va} offset:{o+1024}",
                f"ds_read_b64_tr_b16 {vr(f+4,2)}, v{va+1} offset:{o}",
                f"ds_read_b64_tr_b16 {vr(f+6,2)}, v{va+3 if last else va+1} offset:{o+1024}"]
    for x in reads(0): a(x)
    issued = npre
    for ks in range(16):
        f = WF[ks & 1]
        rd = reads(ks+1) if ks < 15 else []
        c0 = "0" if (first_zero and ks == 0) else vr(ACC[0], 16)
        c1 = "0" if (first_zero and ks == 0) else vr(ACC[1], 16)
        if issued < 16:
            for x in p3_oload(issued, vlane16, so): a(x)
            issued += 1
        a(f"s_waitcnt vmcnt({issued-1-ks}) lgkmcnt(2)")
        a(f"{MF} {vr(ACC[0],16)}, {vr(f,4)}, {ar(4*ks,4)}, {c0}")
        for x in rd[:2]: a(x)
        a(f"s_waitcnt lgkmcnt({2 if rd else 0})")
        a(f"{MF} {vr(ACC[1],16)}, {vr(f+4,4)}, {ar(4*ks,4)}, {c1}")
        for x in rd[2:]: a(x)

def p3_oloads(a, vlane16, so, n):
    for ks in range(n):
        for x in p3_oload(ks, vlane16, so): a(x)

E = lambda k, d: os.environ.get(k, d)
SIGK = int(E("SIGK", "6"))
def gen(a):
    kernel_head(a, KN)
    a("s_cmp_ge_u32 s2, 256")
    a("s_cbranch_scc1 L_END")
    a("s_load_dwordx16 s[4:19], s[0:1], 0")
    a("s_load_dwordx4 s[20:23], s[0:1], 64")
    if STAMP or E("DIAGT", ""):
        a("s_memrealtime s[96:97]")
        a("s_memtime s[70:71]")
    a("v_lshrrev_b32 v1, 6, v0")
    a("v_and_b32 v0, 63, v0")
    a("v_readfirstlane_b32 s27, v1")
    a("s_and_b32 s64, s2, 7")
    a("s_lshr_b32 s32, s2, 3")
    a("s_lshr_b32 s34, s64, 1")
    a("s_and_b32 s33, s64, 1")
    a("s_lshr_b32 s29, s32, 3")
    a("s_lshl_b32 s24, s34, 2")
    a("s_add_u32 s24, s24, s29")
    a("s_and_b32 s26, s32, 1")
    a("s_bfe_u32 s25, s32, 0x20001")
    a("s_lshl_b32 s65, s33, 2")
    a("s_add_u32 s25, s25, s65")
    a("s_lshl_b32 s28, s25, 1")
    a("s_cmp_eq_u32 s26, s33" if E("HS", "0") == "0" else "s_cmp_lg_u32 s26, s33")
    a("s_addc_u32 s28, s28, 0")
    a("s_mul_i32 s30, s32, 37")
    a("s_lshr_b32 s30, s30, 8")
    a("s_mul_i32 s31, s30, 7")
    a("s_sub_u32 s31, s32, s31")
    a("s_lshl_b32 s64, s64, 2")
    a("s_add_u32 s30, s30, s64")
    a("s_mov_b32 s35, s27")
    a("s_cmp_ge_u32 s27, 4")
    a("s_cbranch_scc0 L_COMPUTE")
    helper(a)
    compute(a)
    a.label("L_END")
    a("s_endpgm")
    a.label("L_CODE_END")

def helper(a):
    a("s_sub_u32 s27, s27, 4")
    a("v_lshrrev_b32 v1, 3, v0")
    a("s_lshl_b32 s64, s24, 7")
    a("s_lshl_b32 s65, s27, 5")
    a("s_add_u32 s64, s64, s65")
    a("v_add_u32 v1, s64, v1")
    a("v_mul_u32_u24 v1, 896, v1")
    a("v_lshrrev_b32 v2, 4, v0")
    a("v_and_b32 v3, 7, v0")
    a("v_xor_b32 v2, v2, v3")
    a("v_lshl_add_u32 v2, v2, 4, v1")
    a("v_xor_b32 v3, 64, v2")
    a("v_add_u32 v3, 7168, v3")
    a("v_add_u32 v4, 14336, v2")
    a("v_add_u32 v5, 14336, v3")
    dma_lane_w(a, 6, 10, 11, 2688)
    a("s_mul_i32 s64, s27, 43008")
    a("s_mul_i32 s65, s25, 112")
    a("s_add_u32 s64, s64, s65")
    a("s_add_u32 s64, s64, 896")
    a("v_add_u32 v6, s64, v6")
    a("v_add_u32 v7, 21504, v6")
    a("v_add_u32 v8, 896, v6")
    a("v_add_u32 v9, 896, v7")
    a("s_lshl_b32 s66, s27, 12")
    a("s_lshl_b32 s67, s27, 11")
    a(f"s_add_u32 s67, s67, {RING}")
    a(f"s_mov_b32 s{SX+2}, 1835008")
    a(f"s_mov_b32 s{SX+3}, 0x20000")
    a(f"s_mov_b32 s{SW+2}, 1204224")
    a(f"s_mov_b32 s{SW+3}, 0x20000")
    a("s_cmp_eq_u32 s26, 0")
    a("s_waitcnt lgkmcnt(0)")
    a(f"s_mov_b32 s{SX}, s4")
    a(f"s_mov_b32 s{SX+1}, s5")
    a(f"s_cselect_b32 s{SW}, s6, s12")
    a(f"s_cselect_b32 s{SW+1}, s7, s13")
    vm = []
    def xload(c):
        for q in range(4):
            a(f"s_add_u32 m0, s66, {c*16384 + q*1024}")
            a(f"s_mov_b32 s64, {c*128}" if q == 0 else "s_nop 0")
            a(f"buffer_load_dwordx4 v{2+q}, {R(SX)}, s64 offen lds"); vm.append(("x", c))
    def wload(c):
        for pt in range(2):
            for u in range(2):
                a(f"s_add_u32 m0, s67, {(c%3)*16384 + pt*8192 + u*1024}")
                a(f"s_mov_b32 s65, {c*172032}" if pt + u == 0 else "s_nop 0")
                a(f"buffer_load_dwordx4 v{6+2*pt+u}, {R(SW)}, s65 offen lds"); vm.append(("w", c))
    def qload(d):
        for mat in range(2):
            for u in range(2):
                a(f"s_add_u32 m0, s67, {((7+d)%3)*16384 + mat*8192 + u*1024}")
                a(f"s_mov_b32 s65, {d*344064}" if mat + u == 0 else "s_nop 0")
                a(f"buffer_load_dwordx4 v{10+u}, {R(SWA if mat == 0 else SWB)}, s65 offen lds"); vm.append(("q", d))
    def waitfor(*tags):
        last = max(i for i, tg in enumerate(vm) if tg in tags)
        a(f"s_waitcnt vmcnt({len(vm)-1-last})")
    def patch(d):
        a("s_mov_b32 exec_hi, 0")
        a(f"ds_write_b16 v16, v{12+d} offset:{((7+d)%3)*16384}")
        a("s_mov_b32 exec_hi, -1")
        a("s_waitcnt lgkmcnt(0)")
    def initcheck(tag):
        a("v_readfirstlane_b32 s87, v17")
        a("s_nop 0")
        a("s_cmp_lg_u32 s87, 0")
        a(f"s_cbranch_scc1 H_INIT_OK{tag}")
        poll(a, "INIT" + tag, R(SD), "0", 1, 18, 17)
        a("v_readfirstlane_b32 s87, v17")
        a.label(f"H_INIT_OK{tag}")
    stamp(a, 1, 2)
    xload(0); wload(0)
    srd(a, SWA, 6, 1204224); srd(a, SWB, 12, 1204224)
    srd(a, SWS, 22, WS_SIZE); srd(a, SD, 20, 256); srd(a, SG, 16, 896)
    a("v_lshrrev_b32 v10, 2, v0")
    a("s_lshl_b32 s64, s27, 5")
    a("v_add_u32 v10, s64, v10")
    a("v_mul_u32_u24 v10, 2688, v10")
    a("v_and_b32 v11, 3, v0")
    a("v_lshl_add_u32 v10, v11, 4, v10")
    a("s_mul_i32 s65, s28, 56")
    a("v_add_u32 v10, s65, v10")
    a("v_add_u32 v11, 43008, v10")
    a("v_add_u32 v17, s64, v0")
    a("v_lshlrev_b32 v16, 6, v17")
    a(f"v_add_u32 v16, {RING + 8192 + 56}, v16")
    a("v_lshlrev_b32 v17, 1, v17")
    a("s_and_b32 s64, s32, 0x1e")
    a("s_and_b32 s65, s27, 1")
    a("s_add_u32 s64, s64, s65")
    a("s_mul_i32 s64, s64, 14")
    a("v_lshrrev_b32 v20, 2, v0")
    a("v_add_u32 v20, s64, v20")
    a("v_mul_u32_u24 v20, 2688, v20")
    a("v_and_b32 v21, 3, v0")
    a("v_lshl_add_u32 v20, v21, 7, v20")
    a("s_mul_i32 s64, s33, 384")
    a("v_add_u32 v20, s64, v20")
    a("v_mov_b32 v18, 0")
    a("s_barrier")
    if E("AF", "1") == "1":
        a("s_cmp_eq_u32 s26, 0")
        a("s_cbranch_scc0 H_C1B")
        a("s_waitcnt vmcnt(0)")
        a("s_barrier")
        xload(1); wload(1)
        a("s_branch H_C1D")
        a.label("H_C1B")
        del vm[8:]
    xload(1); wload(1)
    stamp(a, 1); stamp(a, 2, 2)
    for c in range(5):
        waitfor(("x", c), ("w", c)); a("s_barrier"); stamp(a, 3+c, 2)
        if c == 0:
            stamp(a, 2)
            a.label("H_C1D")
        xload(c+2); wload(c+2)
        if c == 1:
            for d in range(4):
                a(f"buffer_load_ushort v{12+d}, v17, {R(SG)}, 0 offen offset:{256*d}"); vm.append(("g", d))
        if c == 3:
            a(f"buffer_load_dword v17, v18, {R(SD)}, 0 offen sc1"); vm.append(("d", 0))
    a("s_cmp_eq_u32 s26, 0")
    if E("PQ", "0") == "1":
        a("s_cbranch_scc0 H_NOPQ")
        a("s_cmp_ge_u32 s27, 2")
        a("s_cselect_b32 s88, s12, s6")
        a("s_cselect_b32 s89, s13, s7")
        a("s_mov_b32 s90, 1204224")
        a("s_mov_b32 s91, 0x20000")
        a("s_mov_b32 exec_hi, 0xffffff")
        a("buffer_load_dword a64, v20, s[88:91], 0 offen")
        a("s_mov_b64 exec, -1")
        a("s_waitcnt vmcnt(9)")
        a("s_branch H_PQD")
        a.label("H_NOPQ")
    waitfor(("x",5),("w",5))
    a.label("H_PQD")
    a("s_barrier"); stamp(a, 8, 2)
    qload(0)
    a("s_cmp_eq_u32 s26, 0")
    a("s_cbranch_scc0 H_B6B")
    if E("PQ", "0") == "1": a("s_waitcnt vmcnt(5)")
    else: a("s_waitcnt vmcnt(4)")
    a("s_barrier")
    qload(1)
    a("s_waitcnt vmcnt(4)"); patch(0); a("s_barrier")
    qload(2)
    a("s_waitcnt vmcnt(4)")
    patch(1)
    initcheck("A")
    a("s_barrier")
    a("s_branch H_B7D")
    a.label("H_B6B")
    a("s_waitcnt vmcnt(4)")
    a("s_barrier")
    a("s_waitcnt vmcnt(0)"); patch(0); a("s_barrier")
    qload(1)
    a("s_lshl_b32 s64, s25, 4")
    a("s_add_u32 s64, s64, s24")
    a("s_lshl_b32 s64, s64, 7")
    a(f"s_add_u32 s64, s64, {C_KV}")
    initcheck("B")
    a("s_cmp_eq_u32 s27, 3")
    a("s_barrier")
    a("s_cbranch_scc0 H_NOSIGKV")
    signal(a, "s64", 18, 19)
    qload(2)
    a("s_waitcnt vmcnt(5)")
    a("s_branch H_SIGD")
    a.label("H_NOSIGKV")
    qload(2)
    a("s_waitcnt vmcnt(4)")
    a.label("H_SIGD")
    patch(1)
    a.label("H_B7D")
    stamp(a, 10, 2)
    a("s_barrier")
    a("s_cmp_ge_u32 s27, 2")
    a("s_cbranch_scc1 H_NOQ3")
    qload(3)
    a("s_waitcnt vmcnt(4)"); patch(2)
    a("s_branch H_Q3")
    a.label("H_NOQ3")
    a("s_waitcnt vmcnt(0)"); patch(2)
    a.label("H_Q3")
    a("s_barrier")
    a("s_waitcnt vmcnt(0)")
    a("s_cmp_ge_u32 s27, 2")
    a("s_cbranch_scc1 H_NOP3")
    patch(3)
    a.label("H_NOP3")
    a("s_barrier")
    a(f"v_mov_b32 v1, {L_CNT}")
    for i in range(8, 12): a(f"v_mov_b32 v{i}, 0")
    a("ds_write_b128 v1, v[8:11]")
    a("s_nop 1")
    a("v_mov_b32 v9, s87")
    a("ds_write_b128 v1, v[8:11] offset:16")
    a("v_lshlrev_b32 v2, 4, v0")
    dma_lane_w(a, 3, 4, 5, 896)
    a("s_mul_i32 s64, s27, 7168")
    a("s_lshl_b32 s65, s31, 7")
    a("s_add_u32 s64, s64, s65")
    a("v_add_u32 v3, s64, v3")
    a("s_lshr_b32 s65, s27, 1")
    a("s_mul_i32 s64, s65, 28672")
    a("s_lshl_b32 s65, s65, 6")
    p3_addr(a, 4, "s64", "s65", 8, 9)
    srd(a, SWA, 8, 401408); srd(a, SWB, 14, 401408)
    a("s_lshl_b32 s65, s25, 2")
    a("s_add_u32 s65, s65, s27")
    a("s_lshl_b32 s65, s65, 9")
    a(f"s_add_u32 s65, s65, {C_KV}")
    a("v_lshlrev_b32 v10, 7, v0")
    stamp(a, 3)
    poll(a, "KV", WSR, "s65", 4, 10, 11, int(E("KS", "1")))
    a("s_waitcnt lgkmcnt(0)")
    a("s_barrier")
    a("s_setprio 2")
    stamp(a, 4); stamp(a, 1, 3); stamp(a, 1, 7)
    PQ, G, KF, NUM, PA = 80, 88, 92, 100, 116
    def wo_dma(tag, srdreg, base, lo, hi, depth):
        if hi <= lo: return
        a("s_lshl_b32 s66, s27, 10")
        a(f"s_add_u32 s66, s66, {base + lo*4096}")
        a(f"s_mov_b32 s63, {lo*28672}")
        a.label(f"H_WO{tag}")
        a("s_mov_b32 m0, s66")
        a("s_add_u32 s66, s66, 4096")
        a(f"buffer_load_dwordx4 v3, {R(srdreg)}, s63 offen lds")
        a("s_add_u32 s63, s63, 28672")
        a(f"s_waitcnt vmcnt({depth})")
        a(f"s_cmp_lt_u32 s63, {hi*28672}")
        a(f"s_cbranch_scc1 H_WO{tag}")
    W1 = int(E("W1", "0"))
    a("s_cmp_ge_u32 s32, 28")
    a("s_cbranch_scc1 H_NOWO0")
    wo_dma("0", SWA, 0, 0, W1, int(E("WOD0", "2")))
    a.label("H_NOWO0")
    if "hskip" in X:
        a("s_branch H_SKIP")
    lds_wait(a, "C0", 1, 8, 4, 9)
    stamp(a, 2, 7)
    a("s_lshl_b32 s64, s27, 11")
    a(f"s_add_u32 s64, s64, {L_PQ}")
    a("v_add_u32 v8, s64, v2")
    a(f"ds_read_b128 {vr(PQ,4)}, v8")
    a(f"ds_read_b128 {vr(PQ+4,4)}, v8 offset:1024")
    a("s_lshl_b32 s64, s27, 8")
    a(f"s_add_u32 s64, s64, {L_G}")
    a("v_lshl_add_u32 v8, v0, 2, s64")
    a(f"ds_read_b32 v{G}, v8")
    a("s_cmp_ge_u32 s27, 2")
    a("s_cselect_b32 s64, s26, 1")
    a("s_cmp_eq_u32 s64, 0")
    a("s_cbranch_scc0 H_NOKVP")
    a("s_and_b32 s65, s27, 1")
    a("s_lshl_b32 s64, s65, 12")
    a(f"s_add_u32 s64, s64, {L_KVD}")
    a("v_add_u32 v8, s64, v2")
    for i in range(8):
        a(f"ds_read_b128 {vr(16+4*i,4)}, v8 offset:{1024*(i&3) + 8192*(i>>2)}")
    a("s_lshl_b32 s64, s25, 1")
    a("s_add_u32 s64, s64, s65")
    a(f"s_mul_i32 s64, s64, {PAD}")
    a("s_lshl_b32 s65, s24, 12")
    a("s_add_u32 s64, s64, s65")
    a(f"s_add_u32 s64, s64, {WS_KVP}")
    a("s_waitcnt lgkmcnt(0)")
    vadd(a, 16, 32, 16)
    for q in range(4):
        a(f"buffer_store_dwordx4 {vr(16+4*q,4)}, v2, {WSR}, s64 offen offset:{1024*q} sc1")
    a("s_lshl_b32 s64, s25, 4")
    a("s_add_u32 s64, s64, s24")
    a("s_lshl_b32 s64, s64, 7")
    a(f"s_add_u32 s64, s64, {C_A}")
    a("v_mov_b32 v11, 1")
    stamp(a, 3, 7)
    a("s_waitcnt vmcnt(0)")
    stamp(a, 4, 7)
    a("s_mov_b64 exec, 1")
    a("ds_add_rtn_u32 v9, v1, v11 offset:12")
    a("s_waitcnt lgkmcnt(0)")
    a("v_readfirstlane_b32 s69, v9")
    a("s_mov_b64 exec, -1")
    a("s_cmp_eq_u32 s69, 1")
    a("s_cbranch_scc0 H_NOKVP")
    signal(a, "s64", 10, 11)
    a.label("H_NOKVP")
    stamp(a, 5, 7)
    a("s_cmp_ge_u32 s32, 28")
    a("s_cbranch_scc1 H_NOWOA")
    wo_dma("A", SWA, 0, W1, 14, int(E("WOD", "5")))
    wo_dma("B", SWB, 57344, 0, 14, int(E("WOD", "5")))
    a.label("H_NOWOA")
    stamp(a, 2, 3); stamp(a, 6, 7)
    a("s_lshl_b32 s64, s25, 11")
    a(f"s_add_u32 s64, s64, {C_A}")
    if "nopolla" not in X:
        a("s_cmp_eq_u32 s27, 0")
        a("s_cbranch_scc0 H_AW")
        poll(a, "A", WSR, "s64", 16, 10, 11, int(E("AS", "16")))
        a("v_mov_b32 v11, 1")
        a("ds_write_b32 v1, v11 offset:16")
        a("s_branch H_AD")
        a.label("H_AW")
        lds_wait(a, "A", 1, 16, 1, 9, 4)
        a.label("H_AD")
    stamp(a, 3, 3); stamp(a, 7, 7)
    a(f"s_mul_i32 s64, s28, {PAD}")
    a("s_lshl_b32 s65, s27, 10")
    a("s_add_u32 s64, s64, s65")
    a(f"s_add_u32 s64, s64, {WS_KVP}")
    KD = int(E("KD", "2"))
    for i in range(16):
        if "nokvl" not in X: a(f"buffer_load_dwordx4 {vr(16+4*i,4)}, v2, {WSR}, s64 offen sc1")
        a("s_add_u32 s64, s64, 4096")
        if i > KD:
            a(f"s_waitcnt vmcnt({KD})")
            if "nokva" not in X: vadd(a, 16, 16+4*(i-KD), 4)
    stamp(a, 4, 3)
    for j in range(16-KD, 16):
        a(f"s_waitcnt vmcnt({15-j})")
        vadd(a, 16, 16+4*j, 4)
    stamp(a, 5, 3)
    a("v_cvt_pk_bf16_f32 v16, v16, v17")
    a("v_cvt_pk_bf16_f32 v17, v18, v19")
    a("s_lshr_b32 s64, s27, 1")
    a("s_lshl_b32 s64, s64, 10")
    a("s_and_b32 s65, s27, 1")
    a("s_lshl_b32 s65, s65, 3")
    a("s_add_u32 s64, s64, s65")
    a(f"s_add_u32 s64, s64, {L_KVF}")
    a("v_add_u32 v8, s64, v2")
    a("ds_write_b64 v8, v[16:17]")
    a("v_mov_b32 v11, 1")
    a("s_waitcnt lgkmcnt(0)")
    a("s_mov_b64 exec, 1")
    a("ds_add_u32 v1, v11")
    lds_wait(a, "C1", 1, 0, 4, 9)
    stamp(a, 6, 3)
    a(f"v_add_u32 v8, {L_KVF}, v2")
    a(f"ds_read_b128 {vr(KF,4)}, v8")
    a(f"ds_read_b128 {vr(KF+4,4)}, v8 offset:1024")
    a("s_waitcnt lgkmcnt(0)")
    a(f"{MF} {vr(NUM,16)}, {vr(KF,4)}, {vr(PQ,4)}, 0")
    a(f"{MF} {vr(NUM,16)}, {vr(KF+4,4)}, {vr(PQ+4,4)}, {vr(NUM,16)}")
    a("s_lshl_b32 s64, s24, 2")
    a("s_add_u32 s64, s64, s27")
    a(f"s_mul_i32 s64, s64, {PAD}")
    a("s_lshl_b32 s65, s28, 11")
    a("s_add_u32 s64, s64, s65")
    a(f"s_add_u32 s64, s64, {WS_OF}")
    a(f"v_mov_b32 v{PA+6}, 0")
    a(f"v_mov_b32 v{PA+7}, 0")
    a("s_nop 15")
    a(f"v_mov_b32 v8, v{NUM+12}")
    a(f"v_mov_b32 v9, v{NUM+12}")
    a("s_nop 1")
    a("v_permlane32_swap_b32 v8, v9")
    a(f"v_add_f32 v9, {f32(EPS)}, v9")
    a("v_rcp_f32 v9, v9")
    a("s_nop 0")
    a(f"v_mul_f32 v9, v9, v{G}")
    vmul(a, NUM, "v9", 16)
    cvt(a, PA, NUM, 0, 6)
    a("s_mov_b32 exec_hi, 0")
    cvt(a, PA, NUM, 6, 8)
    a("s_mov_b32 exec_hi, -1")
    a(f"buffer_store_dwordx4 {vr(PA,4)}, v2, {WSR}, s64 offen sc1")
    a(f"buffer_store_dwordx4 {vr(PA+4,4)}, v2, {WSR}, s64 offen offset:1024 sc1")
    stamp(a, 7, 3)
    a("s_waitcnt vmcnt(0)")
    stamp(a, 8, 3)
    a("s_mov_b64 exec, 1")
    a("ds_add_rtn_u32 v9, v1, v11 offset:4")
    a("s_waitcnt lgkmcnt(0)")
    a("v_readfirstlane_b32 s69, v9")
    a("s_mov_b64 exec, -1")
    a("s_cmp_eq_u32 s69, 3")
    a("s_cbranch_scc0 H_NOSIGOA")
    if "hskip" in X:
        a.label("H_SKIP")
        a("s_cmp_eq_u32 s27, 0")
        a("s_cbranch_scc0 H_NOSIGOA")
    a("s_lshl_b32 s64, s24, 4")
    a("s_add_u32 s64, s64, s28")
    a("s_lshl_b32 s64, s64, 7")
    a(f"s_add_u32 s64, s64, {C_OA}")
    signal(a, "s64", 10, 11)
    a.label("H_NOSIGOA")
    stamp(a, 5); stamp(a, 9, 3)
    a("s_setprio 0")
    a("s_barrier")
    a("s_cmp_ge_u32 s32, 28")
    a("s_cbranch_scc1 H_NOP3B")
    stamp(a, 6)
    a("s_and_b32 s64, s30, 0xfe")
    a("s_lshr_b32 s65, s27, 1")
    a("s_add_u32 s64, s64, s65")
    a("s_lshl_b32 s64, s64, 10")
    a(f"s_add_u32 s64, s64, {C_OA}")
    a("s_and_b32 s62, s27, 1")
    a("s_lshl_b32 s65, s30, 1")
    a("s_add_u32 s62, s62, s65")
    a(f"s_mul_i32 s62, s62, {PAD}")
    a("s_lshr_b32 s65, s27, 1")
    a("s_lshl_b32 s65, s65, 14")
    a("s_add_u32 s62, s62, s65")
    a(f"s_add_u32 s62, s62, {WS_OF}")
    NE = int(E("NE", "8"))
    a("s_mov_b64 exec, 0xff")
    a(f"buffer_load_dword v11, v10, {WSR}, s64 offen sc1")
    a("s_waitcnt vmcnt(0)")
    a("v_cmp_ne_u32 vcc, s87, v11")
    a("s_mov_b64 exec, -1")
    a("s_cbranch_vccnz H_OALATE")
    p3_oloads(a, 2, "s62", NE)
    a("s_barrier")
    a("s_barrier")
    a("s_branch H_OADONE")
    a.label("H_OALATE")
    a("s_barrier")
    a("s_barrier")
    poll(a, "OA", WSR, "s64", 8, 10, 11, 2)
    p3_oloads(a, 2, "s62", NE)
    a.label("H_OADONE")
    NPRE = 16
    for ks in range(NE, 16):
        for x in p3_oload(ks, 2, "s62"): a(x)
    stamp(a, 7); stamp(a, 10, 3)
    p3_gemm(a, 4, [16, 32], [48, 56], True, NPRE, 2, "s62")
    stamp(a, 8)
    a("s_lshl_b32 s64, s27, 13")
    a(f"s_add_u32 s64, s64, {RING}")
    a("v_add_u32 v8, s64, v2")
    a("s_nop 9")
    for i in range(8):
        a(f"ds_write_b128 v8, {vr(16+4*i,4)} offset:{1024*i}")
    a("s_waitcnt lgkmcnt(0)")
    stamp(a, 9)
    a("s_barrier")
    a("s_branch H_EXIT")
    a.label("H_NOP3B")
    a("s_barrier")
    a("s_barrier")
    a.label("H_EXIT")
    stamp(a, 10)
    stamp_out(a, 11)
    a("s_endpgm")

def compute(a):
    a.label("L_COMPUTE")
    XA, WA, WB, XQ, WQ = 2, 6, 7, 8, 12
    FR = 16; accK = [64, 80]; accV = [96, 112]; pK = [128, 136]; pV = [144, 152]
    QA, QB = 96, 112
    def touch(tag, c0, n, withq):
        a("s_lshr_b32 s60, s32, 1")
        a("s_cmp_eq_u32 s27, 3")
        if withq:
            a(f"s_cbranch_scc0 C_T0{tag}")
            srd(a, SWA, 6, 1204224); srd(a, SWB, 12, 1204224)
            a("s_mul_i32 s60, s60, 7")
            a("v_lshrrev_b32 v17, 2, v0")
            a("v_add_u32 v17, s60, v17")
            a("v_lshl_add_u32 v17, v17, 2, s34")
            a("v_mul_u32_u24 v17, 2688, v17")
            a("v_and_b32 v16, 3, v0")
            a("v_lshl_add_u32 v17, v16, 7, v17")
            a("s_mul_i32 s62, s33, 384")
            a("s_mov_b64 exec, 0x0fffffff")
            a(f"buffer_load_dword a88, v17, {R(SWA)}, s62 offen")
            a(f"buffer_load_dword a89, v17, {R(SWB)}, s62 offen")
            if E("TWO", "1") == "1":
                srd(a, SWA, 8, 401408); srd(a, SWB, 14, 401408)
                a("s_lshr_b32 s60, s32, 1")
                a("s_lshl_b32 s60, s60, 3")
                a("s_and_b32 s61, s2, 7")
                a("s_add_u32 s60, s60, s61")
                a("s_mul_i32 s60, s60, 25")
                a("v_add_u32 v17, s60, v0")
                a("v_lshlrev_b32 v17, 7, v17")
                a("s_mov_b64 exec, 0x1ffffff")
                a(f"buffer_load_dword a90, v17, {R(SWA)}, 0 offen")
                a(f"buffer_load_dword a91, v17, {R(SWB)}, 0 offen")
            a("s_mov_b64 exec, -1")
            a(f"s_branch C_TD{tag}")
            a.label(f"C_T0{tag}")
        else:
            a(f"s_cbranch_scc1 C_TD{tag}")
        a("s_cmp_eq_u32 s27, 0")
        a(f"s_cbranch_scc0 C_T1{tag}")
        srd(a, SW, 4, 1835008)
        a("s_lshl_b32 s61, s34, 9")
        a("s_lshl_b32 s60, s60, 5")
        a("s_add_u32 s60, s60, s61")
        a("v_and_b32 v17, 31, v0")
        a("v_add_u32 v17, s60, v17")
        a("v_mul_u32_u24 v17, 896, v17")
        a("v_lshrrev_b32 v16, 5, v0")
        a("v_lshl_add_u32 v17, v16, 7, v17")
        a(f"s_mov_b32 s62, {128*c0}")
        a("s_mov_b32 s63, 256")
        a(f"s_branch C_T2{tag}")
        a.label(f"C_T1{tag}")
        a("s_cmp_eq_u32 s27, 1")
        a(f"s_cselect_b32 s{SW}, s12, s6")
        a(f"s_cselect_b32 s{SW+1}, s13, s7")
        a(f"s_mov_b32 s{SW+2}, 1204224")
        a(f"s_mov_b32 s{SW+3}, 0x20000")
        a("v_lshrrev_b32 v17, 5, v0")
        a("v_lshlrev_b32 v17, 6, v17")
        a("v_bfe_u32 v16, v0, 3, 2")
        a("s_lshl_b32 s60, s60, 2")
        a("v_add3_u32 v17, v17, v16, s60")
        a("v_mul_u32_u24 v17, 2688, v17")
        a("v_bfe_u32 v16, v0, 2, 1")
        a("v_mul_u32_u24 v16, 896, v16")
        a("v_add_u32 v17, v17, v16")
        a("v_and_b32 v16, 3, v0")
        a("v_lshl_add_u32 v17, v16, 7, v17")
        a("s_mul_i32 s62, s33, 384")
        a(f"s_add_u32 s62, s62, {896 + 172032*c0}")
        a(f"s_mov_b32 s63, {2*172032}")
        a.label(f"C_T2{tag}")
        for i in range((n+1)//2):
            if 2*i+1 == n: a("s_mov_b32 exec_hi, 0")
            a(f"buffer_load_dword a{88+i}, v17, {R(SW)}, s62 offen")
            if 2*i+1 == n: a("s_mov_b32 exec_hi, -1")
            if 2*i+2 < n: a("s_add_u32 s62, s62, s63")
        a.label(f"C_TD{tag}")
    TB = [int(v) for v in E("TB", "1,3").split(",")]
    TA = [int(v) for v in E("TA", "4,3").split(",")]
    a("s_waitcnt lgkmcnt(0)")
    if TB[1]:
        a("s_cmp_eq_u32 s26, 0")
        a("s_cbranch_scc1 C_NTB")
        touch("B", TB[0], TB[1], E("TQ", "A") == "B")
        a.label("C_NTB")
    TAE = E("TAE", "0")
    if TA[1] and TAE == "1":
        a("s_cmp_eq_u32 s26, 0")
        a("s_cbranch_scc0 C_NTA")
        touch("A", TA[0], TA[1], E("TQ", "A") == "A")
        a.label("C_NTA")
    srd(a, SWS, 22, WS_SIZE)
    a("s_xor_b32 s64, s27, 3")
    a("s_xor_b32 s65, s2, 8")
    a("s_or_b32 s64, s65, s64")
    a("s_cmp_eq_u32 s64, 0")
    a("s_cbranch_scc0 C_NOINIT")
    a("s_memrealtime s[64:65]")
    srd(a, SD, 20, 256)
    a("v_mov_b32 v21, 0")
    a("s_waitcnt lgkmcnt(0)")
    a("s_lshl_b32 s64, s64, 1")
    a("s_or_b32 s64, s64, 1")
    a("v_mov_b32 v22, s64")
    a("s_mov_b64 exec, 1")
    a(f"buffer_store_dword v22, v21, {R(SD)}, 0 offen sc1")
    a("s_mov_b64 exec, -1")
    a.label("C_NOINIT")
    a("s_lshr_b32 s92, s27, 1")
    a("s_and_b32 s93, s27, 1")
    a("v_and_b32 v13, 31, v0")
    a("v_lshrrev_b32 v14, 5, v0")
    a("v_bfe_u32 v15, v0, 1, 3")
    a("v_xor_b32 v15, v15, v14")
    a("s_lshl_b32 s64, s92, 13")
    a("v_lshl_add_u32 v1, v13, 7, s64")
    a("s_lshl_b32 s65, s27, 12")
    a("s_sub_u32 s65, s65, s64")
    for ks in range(4):
        a(f"v_xor_b32 v{XA+ks}, {2*ks}, v15")
        a(f"v_lshl_add_u32 v{XA+ks}, v{XA+ks}, 4, v1")
        a(f"v_add_u32 v{XQ+ks}, s65, v{XA+ks}")
    a("s_mul_i32 s64, s93, 56")
    a(f"v_mov_b32 v{WA}, s64")
    tr_lane_addr(a, WB, WA, 1, 15, 2)
    a(f"v_add_u32 v{WB}, {RING}, v{WB}")
    a(f"v_mov_b32 v{WA}, v{WB}")
    a("v_bfe_u32 v1, v0, 2, 2")
    a("v_lshl_add_u32 v1, v14, 3, v1")
    a("v_lshlrev_b32 v1, 1, v1")
    a("v_bfe_u32 v15, v0, 4, 1")
    a("v_add_u32 v1, v1, v15")
    a("v_lshlrev_b32 v1, 2, v1")
    a("v_and_b32 v15, 3, v0")
    a("v_add_u32 v1, v1, v15")
    a("v_lshlrev_b32 v1, 3, v1")
    a(f"v_add_u32 v{WQ}, {RING}, v1")
    if TA[1] and TAE == "2":
        a("s_cmp_eq_u32 s26, 0")
        a("s_cbranch_scc0 C_NTA")
        touch("A", TA[0], TA[1], E("TQ", "A") == "A")
        a("s_barrier")
        a.label("C_NTA")
    a("v_cmp_eq_u32 vcc, 28, v13")
    a(f"v_mov_b32 v1, {ONE2}")
    a("s_nop 0")
    a("v_cndmask_b32 v15, 0, v1, vcc")
    for s in range(2):
        for i in range(8):
            a(f"v_mov_b32 v{pV[s]+i}, v15")
    a("s_mov_b32 s56, 0x0fffffff")
    a("s_mov_b32 s57, 0x0fffffff")
    a(f"s_mov_b32 s64, {f32(LOG2E)}")
    a(f"s_mov_b32 s65, {f32(QSCALE)}")
    a(f"s_mov_b32 s66, {f32(EPS)}")
    for i in range(32):
        a(f"v_mov_b32 v{accV[0]+i}, 0")
    a("v_lshlrev_b32 v13, 4, v0")
    a("s_cmp_eq_u32 s26, 0")
    a("s_cbranch_scc1 C_A")

    def scalars():
        for s in range(4):
            a(f"s_add_u32 s60, s27, {1+s}")
            a("s_and_b32 s60, s60, 3")
            a(f"s_lshl_b32 s{36+s}, s60, 11")
            a(f"s_add_u32 s{36+s}, s{36+s}, {L_QD}")
            a(f"s_mul_i32 s{40+s}, s60, 12288")
            a(f"s_add_u32 s{40+s}, s{40+s}, {RING + (4096*s if s < 3 else 0)}")
        a(f"s_mul_i32 s44, s28, {4*PAD}")
        a(f"s_mul_i32 s45, s27, {PAD}")
        a("s_add_u32 s45, s45, s44")
        a("s_lshl_b32 s46, s24, 2")
        a("s_add_u32 s46, s46, s27")
        a(f"s_mul_i32 s46, s46, {PAD}")
        a("s_lshl_b32 s60, s28, 11")
        a("s_add_u32 s46, s46, s60")
        a(f"s_add_u32 s46, s46, {WS_OF + 32768}")
        a("s_lshl_b32 s47, s27, 12")
        a(f"s_add_u32 s47, s47, {L_KVD}")
        a("s_lshl_b32 s48, s27, 8")
        a(f"s_add_u32 s48, s48, {L_G}")
    def reads(buf, ks):
        f = FR + 16*buf
        return [f"ds_read_b128 {vr(f,4)}, v{XA+ks}",
                f"ds_read_b64_tr_b16 {vr(f+8,2)}, v{WA} offset:{ks*2048}",
                f"ds_read_b64_tr_b16 {vr(f+10,2)}, v{WA} offset:{ks*2048+512}",
                f"ds_read_b128 {vr(f+4,4)}, v{XA+ks} offset:4096",
                f"ds_read_b64_tr_b16 {vr(f+12,2)}, v{WA} offset:{8192+ks*2048}",
                f"ds_read_b64_tr_b16 {vr(f+14,2)}, v{WA} offset:{8192+ks*2048+512}"]
    def mfmas(buf, kT):
        f = FR + 16*buf
        Xf = [vr(f, 4), vr(f+4, 4)]; Wk, Wv = vr(f+8, 4), vr(f+12, 4)
        m = []
        for s in range(2): m.append(f"{MF} {vr(accV[s],16)}, {Xf[s]}, {Wk}, {vr(accV[s],16)}")
        for s in range(2):
            if kT: m.append(f"{MF} {vr(accK[s],16)}, {Wv}, {Xf[s]}, {vr(accK[s],16)}")
            else:  m.append(f"{MF} {vr(accK[s],16)}, {Xf[s]}, {Wv}, {vr(accK[s],16)}")
        return m
    def mainloop(tag, kT):
        a("s_mov_b32 s60, 0")
        a("s_mov_b32 s61, 0")
        if STAMP != 4: stampc(a, 1)
        a("s_barrier")
        if STAMP != 4: stampc(a, 2)
        for r in reads(0, 0): a(r)
        a(".p2align 6")
        a.label(f"C_{tag}_LOOP")
        for ks in range(4):
            m = mfmas(ks & 1, kT); r = reads((ks+1) & 1, (ks+1) & 3)
            if ks < 3:
                a("s_waitcnt lgkmcnt(3)"); a(m[0]); a(r[0]); a(r[1]); a(r[2])
                a("s_waitcnt lgkmcnt(5)"); a(m[1]); a(r[3]); a(r[4]); a(r[5])
                a("s_waitcnt lgkmcnt(6)"); a(m[2])
                a(f"v_add_u32 v{XA+ks}, 16384, v{XA+ks}")
                if ks == 2:
                    a("s_add_u32 s60, s60, 1")
                    a("s_add_u32 s61, s61, 16384")
                    a("s_cmp_eq_u32 s61, 49152")
                    a("s_cselect_b32 s61, 0, s61")
                a(m[3])
            else:
                a(f"v_add_u32 v{WA}, s61, v{WB}")
                a("s_cmp_eq_u32 s60, 7")
                a("s_waitcnt lgkmcnt(0)")
                a(f"s_cbranch_scc1 C_{tag}_TAIL")
                a("s_barrier")
                a(m[0]); a(r[0]); a(r[1]); a(r[2])
                a(m[1]); a(r[3]); a(r[4]); a(r[5])
                a(m[2])
                a(f"v_add_u32 v{XA+3}, 16384, v{XA+3}")
                a(m[3])
                a(f"s_branch C_{tag}_LOOP")
                a.label(f"C_{tag}_TAIL")
                for x in m: a(x)
        stampc(a, 3)
    _reads = reads
    def reads(buf, ks):
        r = _reads(buf, ks)
        f = FR + 16*buf
        r[1] = f"ds_read_b64_tr_b16 {vr(f+8,2)}, v{WA} offset:{8192+ks*2048}"
        r[2] = f"ds_read_b64_tr_b16 {vr(f+10,2)}, v{WA} offset:{8192+ks*2048+512}"
        r[4] = f"ds_read_b64_tr_b16 {vr(f+12,2)}, v{WA} offset:{ks*2048}"
        r[5] = f"ds_read_b64_tr_b16 {vr(f+14,2)}, v{WA} offset:{ks*2048+512}"
        return r
    def cvt_v():
        a("s_nop 9")
        a("s_mov_b64 exec, s[56:57]")
        for s in range(2): cvt(a, pV[s], accV[s])
        a("s_mov_b64 exec, -1")
    def phase1b(fill):
        def qreads(k):
            f = FR + 12*(k % 3); d, kk = k >> 3, k & 7
            c = k >> 2
            o = ((7+d) % 3)*16384 + kk*1024
            return [f"ds_read_b128 {vr(f,4)}, v{XQ+(k&3)} offset:{(c&3)*16384}",
                    f"ds_read_b64_tr_b16 {vr(f+8,2)}, v{WQ} offset:{o+8192}",
                    f"ds_read_b64_tr_b16 {vr(f+10,2)}, v{WQ} offset:{o+8192+256}",
                    f"ds_read_b64_tr_b16 {vr(f+4,2)}, v{WQ} offset:{o}",
                    f"ds_read_b64_tr_b16 {vr(f+6,2)}, v{WQ} offset:{o+256}"]
        stampc(a, 4)
        a("s_barrier")
        if STAMP == 6: stampc(a, 15)
        for k in (0, 1):
            for r in qreads(k): a(r)
        for k in range(28):
            f = FR + 12*(k % 3)
            r = qreads(k+2) if k+2 < 28 else []
            nout = 5 if k+1 < 28 else 0
            bar = (k+2) < 28 and (k+2) % 8 == 0
            if k == SIGK:
                a("s_waitcnt vmcnt(0)")
                a("s_barrier")
            if bar:
                if STAMP == 6: stampc(a, 9 + 2*(k // 8))
                a("s_barrier")
                if STAMP == 6: stampc(a, 10 + 2*(k // 8))
            a(f"s_waitcnt lgkmcnt({nout+2})")
            a(f"{MF} {vr(QB,16)}, {vr(f+8,4)}, {vr(f,4)}, {'0' if k == 0 else vr(QB,16)}")
            for x in r[:3]: a(x)
            for x in fill(k, 0): a(x)
            a(f"s_waitcnt lgkmcnt({nout + len(r[:3])})")
            a(f"{MF} {vr(QA,16)}, {vr(f+4,4)}, {vr(f,4)}, {'1.0' if k == 0 else vr(QA,16)}")
            for x in r[3:]: a(x)
            for x in fill(k, 1): a(x)
            if 10 <= k <= 13:
                a(f"v_add_u32 v{XQ+((k+2)&3)}, 65536, v{XQ+((k+2)&3)}")
        stampc(a, 5)
        a("v_add_u32 v1, s39, v13")
        a("v_mov_b32 v22, 0")
        a("v_mov_b32 v23, 0")
        a("s_nop 7")
        a(f"v_mov_b32 v14, v{QB+12}")
        a(f"v_mov_b32 v15, v{QB+12}")
        vmul(a, QB, "s65", 8)
        a("v_permlane32_swap_b32 v15, v14")
        cvt(a, 16, QB, 0, 4)
        a("ds_write_b128 v1, v[16:19]")
        vmul(a, QB+8, "s65", 8)
        cvt(a, 16, QB, 4, 6)
        a("s_mov_b32 exec_hi, 0")
        cvt(a, 16, QB, 6, 8)
        a("s_mov_b32 exec_hi, -1")
        a("ds_write_b128 v1, v[20:23] offset:1024")
    def defer_q(a, mats):
        PP = QB + 8
        w = [f"v_mul_f32 v14, {f32(-LOG2E)}, v14", "v_exp_f32 v14, v14", f"v_mov_b32 v{PP+6}, 0", f"v_mov_b32 v{PP+7}, 0",
             "v_add_f32 v14, 1.0, v14", "v_rcp_f32 v14, v14"] + phi_list(QA, QB)
        for i, x in enumerate(w):
            if mats and i % 7 == 0: a(mats.pop(0))
            a(x)
        for x in mats: a(x)
        cvt(a, PP, QA, 0, 6)
        a("s_mov_b32 exec_hi, 0")
        cvt(a, PP, QA, 6, 8)
        a("s_mov_b32 exec_hi, -1")
        a(f"ds_write_b128 v1, {vr(PP,4)} offset:8192")
        a(f"ds_write_b128 v1, {vr(PP+4,4)} offset:9216")
        a("v_lshl_add_u32 v15, v0, 2, s48")
        a("ds_write_b32 v15, v14")
        a("v_sub_f32 v14, 1.0, v14")
    O = [16, 32, 48, 64]; S = [80, 96, 112, 128]; Q = [0, 8, 16, 24]; KV = [32, 48, 64, 80]
    RA = 144
    def ld(dst, off, v="v1", so="s58"):
        return f"buffer_load_dwordx4 {ar(dst,4)}, {v}, {WSR}, {so} offen" + (f" offset:{off}" if off else "") + " sc1"
    adv = ["s_add_u32 s58, s58, 4096"]
    ZR = ar(KV[3]+12, 4)
    zero = lambda d: f"{MF} {vr(d,16)}, {ZR}, {ZR}, 0"
    def pre(a):
        for i in range(4): a(f"v_accvgpr_write_b32 a{KV[3]+12+i}, 0")
        a("v_add_u32 v4, s44, v13")
        a(f"v_mov_b32 v5, {L_CNT}")
        a("v_mov_b32 v6, 1")
    def first_loads(work):
        stampc(a, 7)
        a("v_add_u32 v7, s45, v13")
        a("s_mov_b32 s58, 4096")
        a("s_mov_b32 s59, 8192")
        for f in range(4):
            a(ld(KV[0]+4*f, 1024*f, "v7", "0"))
            a(f"v_add_u32 v{8+f}, s{36+f}, v13")
            a(f"ds_read_b128 {ar(Q[f],4)}, v{8+f}")
            a(f"ds_read_b128 {ar(Q[f]+4,4)}, v{8+f} offset:1024")
        sub = Asm(); work(sub)
        lines = sub.lines
        rest = [ld(KV[n]+4*f, 1024*f, "v7", f"s{57+n}") for n in (1, 2) for f in range(4)]
        gap = int(E("LG", "8")); full = True
        for i, l in enumerate(lines):
            a.lines.append(l)
            if "exec" in l and l.strip().startswith("s_mov"): full = l.strip().endswith("-1")
            if rest and full and i % gap == gap - 1: a(rest.pop(0))
        for x in rest: a(x)
        a("s_mov_b32 s58, 12288")

    for i in range(32): a(f"v_mov_b32 v{accK[0]+i}, 0")
    for s in range(2):
        a(f"v_mov_b32 v{pK[s]+6}, v1"); a(f"v_mov_b32 v{pK[s]+7}, v1")
    a("v_and_b32 v15, 0x33, v0")
    a("v_bfe_u32 v1, v0, 2, 1")
    a("v_lshl_add_u32 v15, v1, 3, v15")
    a("v_bfe_u32 v1, v0, 3, 1")
    a("v_lshl_add_u32 v15, v1, 2, v15")
    a("v_lshlrev_b32 v15, 4, v15")
    a("s_lshl_b32 s58, s25, 1")
    a("s_add_u32 s58, s58, s93")
    a("s_lshl_b32 s58, s58, 2")
    a("s_add_u32 s58, s58, s34")
    a(f"s_mul_i32 s58, s58, {PAD}")
    a("s_lshl_b32 s59, s29, 1")
    a("s_add_u32 s59, s59, s92")
    a("s_lshl_b32 s59, s59, 13")
    a("s_add_u32 s58, s58, s59")
    a("s_add_u32 s59, s58, 4096")
    a("s_barrier")
    scalars()
    mainloop("B", True)
    cvt_v()
    st = []
    for s in range(2):
        st.append(f"buffer_store_dwordx4 {vr(pV[s],4)}, v13, {WSR}, s{58+s} offen offset:2048 sc1")
        st.append(f"buffer_store_dwordx4 {vr(pV[s]+4,4)}, v13, {WSR}, s{58+s} offen offset:3072 sc1")
    for s in range(2):
        st.append(f"buffer_store_dwordx4 {vr(pK[s],4)}, v15, {WSR}, s{58+s} offen sc1")
        st.append(f"buffer_store_dwordx4 {vr(pK[s]+4,4)}, v15, {WSR}, s{58+s} offen offset:1024 sc1")
    for x in st[:4]: a(x)
    for s in range(2):
        cvt(a, pK[s], accK[s], 0, 6)
        a("s_mov_b32 exec_hi, 0")
        cvt(a, pK[s], accK[s], 6, 8)
        a("s_mov_b32 exec_hi, -1")
        for x in st[4+2*s:6+2*s]: a(x)
    phase1b(lambda k, slot: [])
    a("s_waitcnt lgkmcnt(0)")
    stampc(a, 6)
    a("s_barrier")
    def workB(a):
        pre(a)
        defer_q(a, [zero(d) for d in O + [S[3]]])
    first_loads(workB)
    a("s_branch C_2")

    a.label("C_A")
    for i in range(32): a(f"v_mov_b32 v{accK[0]+i}, 1.0")
    for s in range(2):
        for i in range(8): a(f"v_mov_b32 v{pK[s]+i}, 0")
    if TA[1] and TAE == "0": touch("A", TA[0], TA[1], E("TQ", "A") == "A")
    if TAE != "2": a("s_barrier")
    scalars()
    mainloop("A", False)
    cvt_v()
    pend = phi_list(accK[0], 52) + phi_list(accK[1], 52)
    NF = int(E("NF", "1"))
    def fillA(k, slot):
        if k == 0: return []
        o = pend[:NF]; del pend[:NF]
        return o
    phase1b(fillA)
    a("s_waitcnt lgkmcnt(0)")
    stampc(a, 6)
    a("s_barrier")
    D = accK[1]
    def workA(a):
        pre(a)
        z = [zero(d) for d in O[:2]]
        for i, x in enumerate(pend):
            if z and i % 7 == 0: a(z.pop(0))
            a(x)
        a("s_mov_b64 exec, s[56:57]")
        for s in range(2): cvt(a, pK[s], accK[s])
        a("s_mov_b64 exec, -1")
        a("s_nop 1")
        defer_q(a, [f"{MF} {vr(D,16)}, {vr(pK[0],4)}, {vr(pV[0],4)}, 0",
                    f"{MF} {vr(D,16)}, {vr(pK[0]+4,4)}, {vr(pV[0]+4,4)}, {vr(D,16)}",
                    f"{MF} {vr(D,16)}, {vr(pK[1],4)}, {vr(pV[1],4)}, {vr(D,16)}",
                    f"{MF} {vr(D,16)}, {vr(pK[1]+4,4)}, {vr(pV[1]+4,4)}, {vr(D,16)}"] + z + [zero(O[2]), zero(O[3]), zero(S[3])])
        a("v_add_u32 v15, s47, v13")
        for q in range(4):
            a(f"ds_write_b128 v15, {vr(D+4*q,4)} offset:{1024*q}")
    first_loads(workA)

    a.label("C_2")
    a("v_mov_b32 v2, 0xdddd")
    a("v_mov_b32 v3, 0")
    a("v_mov_b32 v1, v7")
    a("s_mov_b32 s59, 3")
    for s in range(4): a(f"v_add_u32 v{RA+s}, s{40+s}, v13")
    a("s_waitcnt vmcnt(10) lgkmcnt(0)")
    stampc(a, 8)
    a("s_mov_b64 exec, 1")
    a("ds_add_u32 v5, v6 offset:8")
    a("ds_read_b32 v6, v5 offset:20")
    a("s_mov_b64 exec, -1")
    a(f"{MF} {vr(S[0],16)}, {ar(KV[0],4)}, {ar(Q[0],4)}, 0")
    a(f"{MF} {vr(S[0],16)}, {ar(KV[0]+4,4)}, {ar(Q[0]+4,4)}, {vr(S[0],16)}")
    a("s_waitcnt vmcnt(8) lgkmcnt(0)")
    a("v_readfirstlane_b32 s87, v6")
    a("s_nop 8")
    def unit(pos, cur, nxt, prv, slot):
        sc = S[pos & 3]; sn = S[(pos+1) & 3]; sp = S[(pos-1) & 3]
        e = [f"v_exp_f32 v{sc+i}, v{sc+i}" for i in range(16)]
        if nxt: a(f"{MF} {vr(sn,16)}, {ar(KV[nxt[0]],4)}, {ar(Q[nxt[1]],4)}, 0")
        for x in slot[0]: a(x)
        for x in e[0:4]: a(x)
        a(f"{SM} {vr(O[prv[1]],16)}, {ar(KV[prv[0]]+12,4)}, {vr(sp+8,8)}, v2")
        for x in slot[1]: a(x)
        for x in e[4:8]: a(x)
        if nxt: a(f"{MF} {vr(sn,16)}, {ar(KV[nxt[0]]+4,4)}, {ar(Q[nxt[1]]+4,4)}, {vr(sn,16)}")
        for x in slot[2]: a(x)
        for x in e[8:12]: a(x)
        a(f"{SM} {vr(O[cur[1]],16)}, {ar(KV[cur[0]]+8,4)}, {vr(sc,8)}, v2")
        for x in slot[3]: a(x)
        if nxt:
            for _ in range(2 - min(2, len(slot[2]) + len(slot[3]))): a("s_nop 0")
        for x in e[12:16]: a(x)
    LP = int(E("LP", "2"))
    def plain(n, s):
        slot = [[], [], [], []]
        slot[LP].append(ld(KV[(n+3) & 3] + 4*s, 1024*s))
        if s == 3: slot[3] += adv
        if s == 2: slot[3].append("s_waitcnt vmcnt(7)")
        return slot
    a(".p2align 6")
    a.label("C_ATT")
    for n in range(4):
        for s in range(4):
            slot = plain(n, s)
            if n == 3 and s == 1: slot[3].append("s_sub_u32 s59, s59, 1")
            if n == 3 and s == 3: slot[3].append("s_cmp_lg_u32 s59, 0")
            unit(s, (n, s), ((n + (s == 3)) & 3, (s+1) & 3), ((n - (s == 0)) & 3, (s-1) & 3), slot)
    a("s_cbranch_scc1 C_ATT")
    seq = [(0, s) for s in range(4)] + [(1, s) for s in range(4)] + [(n, s) for s in range(4) for n in (2, 3)]
    for i, cur in enumerate(seq):
        nxt = seq[i+1] if i < 15 else None
        prv = seq[i-1] if i > 0 else (3, 3)
        slot = plain(*cur) if i < 4 else [[], [], [], []]
        if i == 6: slot[3].append("s_waitcnt vmcnt(0)")
        w = {11: 0, 13: 1, 15: 2}
        for first, s_ in ((11, 0), (13, 1)):
            if i in (first, first+1):
                for q in range(2):
                    qq = 2*(i - first) + q
                    slot[1 + 2*q].append(f"ds_write_b128 v{RA+s_}, {vr(O[s_]+4*qq,4)} offset:{1024*qq}")
        if i == 15:
            for q in range(4):
                slot[q].append(f"ds_write_b128 v{RA+2}, {vr(O[2]+4*q,4)} offset:{1024*q}")
        unit(i, cur, nxt, prv, slot)
        if i == int(E("XP", "10")):
            if STAMP == 4: stampc(a, 1)
            a("s_barrier")
            if STAMP == 4: stampc(a, 2)
    a("s_setprio 1")
    a("v_mov_b32 v22, 0")
    a(f"{SM} {vr(O[3],16)}, {ar(KV[3]+12,4)}, {vr(S[3]+8,8)}, v2")
    a("v_mov_b32 v23, 0")
    a(f"s_mov_b32 s62, {f32(2.0**-40)}")
    a(f"s_mov_b32 s63, {f32(2.0**40)}")
    a("s_waitcnt lgkmcnt(0)")
    a("s_barrier")
    if STAMP != 6: stampc(a, 9)
    for i in range(12):
        a(f"ds_read_b128 {vr(S[0]+4*i,4)}, v{RA+3} offset:{1024*((i % 3)*4 + i // 3)}")
    for q in range(4):
        a(f"s_waitcnt lgkmcnt({9-3*q})")
        b = S[0] + 12*q
        vadd(a, b, b+4, 4)
        vadd(a, O[3]+4*q, b+8, 4)
        vadd(a, O[3]+4*q, b, 4)
    a(f"v_mov_b32 v6, v{O[3]+12}")
    a(f"v_mov_b32 v7, v{O[3]+12}")
    a("s_nop 1")
    a("v_permlane32_swap_b32 v6, v7")
    a("v_cmp_nge_f32 vcc, v7, s62")
    a("v_cmp_nle_f32 s[64:65], v7, s63")
    a("v_rcp_f32 v7, v7")
    a("s_or_b64 vcc, vcc, s[64:65]")
    a("s_cbranch_scc1 C_FALLBACK")
    a.label("C_FIN")
    a(f"v_mov_b32 v5, {RING + 49152 - 16}")
    a("s_cmp_eq_u32 s27, 3")
    a("s_cbranch_scc0 C_NOCLR")
    a("ds_write_b32 v5, v3")
    a.label("C_NOCLR")
    a("v_mul_f32 v7, v7, v14")
    vmul(a, O[3], "v7", 8)
    cvt(a, 16, O[3], 0, 4)
    a(f"buffer_store_dwordx4 v[16:19], v13, {WSR}, s46 offen sc1")
    vmul(a, O[3]+8, "v7", 8)
    cvt(a, 16, O[3], 4, 6)
    a("s_mov_b32 exec_hi, 0")
    cvt(a, 16, O[3], 6, 8)
    a("s_mov_b32 exec_hi, -1")
    a(f"buffer_store_dwordx4 v[20:23], v13, {WSR}, s46 offen offset:1024 sc1")
    a("s_waitcnt lgkmcnt(0)")
    a("s_barrier")
    if STAMP != 6: stampc(a, 10)
    a("s_mul_i32 s60, s92, 28672")
    a("s_add_u32 s60, s60, 57344")
    a("s_lshl_b32 s61, s92, 6")
    a("v_mov_b32 v1, v5")
    p3_addr(a, 4, "s60", "s61", 8, 9)
    a("s_lshl_b32 s60, s27, 13")
    a(f"s_add_u32 s60, s60, {RING}")
    a("v_add_u32 v8, s60, v13")
    a("s_lshl_b32 s60, s27, 12")
    a(f"s_add_u32 s60, s60, {RING + 32768}")
    a("v_add_u32 v9, s60, v13")
    a("v_xor_b32 v10, 8192, v9")
    a("s_lshl_b32 s60, s30, 1")
    a("s_add_u32 s60, s60, s93")
    a("v_and_b32 v11, 31, v0")
    a("s_lshl_b32 s61, s60, 5")
    a("v_add_u32 v11, s61, v11")
    a("v_mul_u32_u24 v11, 896, v11")
    a("v_lshrrev_b32 v12, 5, v0")
    a("v_lshl_add_u32 v11, v12, 4, v11")
    a(f"s_mul_i32 s60, s60, {PAD}")
    a("s_lshl_b32 s61, s92, 14")
    a("s_add_u32 s60, s60, s61")
    a(f"s_add_u32 s60, s60, {WS_OF + 32768}")
    a("s_and_b32 s61, s30, 0xfe")
    a("s_lshl_b32 s61, s61, 10")
    a(f"s_add_u32 s61, s61, {C_OB}")
    a("s_lshl_b32 s62, s31, 7")
    a("s_lshl_b32 s63, s92, 6")
    a("s_add_u32 s62, s62, s63")
    srd(a, SX, 18, 1835008)
    a("s_lshl_b32 s64, s24, 4")
    a("s_add_u32 s64, s64, s28")
    a("s_lshl_b32 s64, s64, 7")
    a(f"s_add_u32 s64, s64, {C_OB}")
    a("v_mov_b32 v12, 1")
    a("s_mov_b64 exec, 1")
    a("s_waitcnt vmcnt(0)")
    a("ds_add_rtn_u32 v14, v1, v12")
    a("s_waitcnt lgkmcnt(0)")
    a("v_readfirstlane_b32 s69, v14")
    a("s_nop 0")
    a("s_cmp_eq_u32 s69, 3")
    a("s_cbranch_scc0 C_NOSIG")
    a("v_mov_b32 v12, s87")
    a(f"buffer_store_dword v12, v3, {WSR}, s64 offen sc1")
    a.label("C_NOSIG")
    a("s_mov_b64 exec, -1")
    if STAMP != 6: stampc(a, 11)
    a("s_cmp_ge_u32 s32, 28")
    a("s_cbranch_scc1 C_EXIT")
    a("s_cmp_eq_u32 s27, 0")
    a("s_cbranch_scc0 C_OBD")
    a("v_lshlrev_b32 v14, 7, v0")
    poll(a, "OB", WSR, "s61", 16, 14, 12, int(E("OBS", "2")), False)
    a.label("C_OBD")
    a("s_barrier")
    if STAMP != 6: stampc(a, 12)
    NPRE = int(E("NPRE", "10"))
    p3_oloads(a, 13, "s60", NPRE)
    for i in range(8):
        a(f"ds_read_b128 {vr(16+4*i,4)}, v8 offset:{1024*i}")
    p3_gemm(a, 4, [16, 32], [48, 56], False, NPRE, 13, "s60")
    if STAMP != 6: stampc(a, 13)
    a("s_nop 11")
    for i in range(4):
        a(f"ds_write_b128 v9, {vr(32+4*i,4)} offset:{1024*i}")
    a("s_waitcnt lgkmcnt(0)")
    a("s_barrier")
    for i in range(4):
        a(f"ds_read_b128 {vr(32+4*i,4)}, v10 offset:{1024*i}")
    OFL = E("OFL", "")
    for hf in range(2):
        for q in (2*hf, 2*hf+1):
            a(f"s_waitcnt lgkmcnt({3-q})")
            vadd(a, 16+4*q, 32+4*q, 4)
        cvt(a, 48, 16, 4*hf, 4*hf+4)
        a("s_nop 1")
        a(f"v_permlane32_swap_b32 v{48+4*hf}, v{50+4*hf}")
        a(f"v_permlane32_swap_b32 v{49+4*hf}, v{51+4*hf}")
        a(f"buffer_store_dwordx4 {vr(48+4*hf,4)}, v11, {R(SX)}, s62 offen offset:{32*hf} {OFL}")
    a.label("C_EXIT")
    if E("DIAGP", "") == "99":
        a("s_waitcnt vmcnt(0)")
        a("s_memrealtime s[100:101]")
        a("s_waitcnt lgkmcnt(0)")
    if E("DIAGT", ""):
        a("s_xor_b32 s64, s2, %s" % E("DIAGW", "0"))
        a("s_or_b32 s64, s64, s27")
        a("s_cmp_eq_u32 s64, 0")
        a("s_cbranch_scc0 C_DX")
        if E("DIAGP", ""):
            a("s_sub_u32 s100, s100, s96")
            a("s_lshl_b32 s100, s100, 1")
            a("s_add_u32 s96, s96, s100")
        a.label("C_DL")
        a("s_memrealtime s[98:99]")
        a("s_waitcnt lgkmcnt(0)")
        a("s_sub_u32 s98, s98, s96")
        a("s_cmp_lt_i32 s98, %s" % E("DIAGT", ""))
        a("s_cbranch_scc1 C_DL")
        a.label("C_DX")
    if STAMP != 6: stampc(a, 14)
    if STAMP: a("s_waitcnt vmcnt(0)")
    if STAMP != 6: stampc(a, 15)
    stamp_out(a, 16)
    a("s_endpgm")
    a.label("C_FALLBACK")
    Qo = Q[3]; K0 = KV[0]; Sx = S[0]
    def fb_adv():
        a("s_add_u32 s58, s58, 4096")
        a("s_add_u32 s59, s59, 1")
        a("s_and_b32 s61, s59, 15")
        a(f"s_cselect_b32 s61, 0, {PAD-65536}")
        a("s_add_u32 s58, s58, s61")
        a("s_nop 15")
    a("s_mov_b32 s58, 0")
    a("s_mov_b32 s59, 0")
    a(f"v_mov_b32 v8, {f32(float('-inf'))}")
    a.label("C_FB1")
    a(ld(K0, 0, "v4")); a(ld(K0+4, 1024, "v4"))
    a("s_waitcnt vmcnt(0)")
    a(f"{MF} {vr(Sx,16)}, {ar(K0,4)}, {ar(Qo,4)}, 0")
    a(f"{MF} {vr(Sx,16)}, {ar(K0+4,4)}, {ar(Qo+4,4)}, {vr(Sx,16)}")
    fb_adv()
    a("s_nop 15")
    for i in range(8):
        a(f"v_max3_f32 v8, v8, v{Sx+2*i}, v{Sx+2*i+1}")
    a("s_cmp_lt_u32 s59, 64")
    a("s_cbranch_scc1 C_FB1")
    a("v_mov_b32 v9, v8")
    a("s_nop 1")
    a("v_permlane32_swap_b32 v8, v9")
    a("v_max_f32 v8, v8, v9")
    a("v_and_b32 v9, 0xffff0000, v8")
    a("v_sub_f32 v8, v8, v9")
    a("v_and_b32 v10, 0xffff0000, v8")
    a("v_sub_f32 v8, v8, v10")
    a("v_cvt_pk_bf16_f32 v9, -v9, -v10")
    a("v_cvt_pk_bf16_f32 v8, -v8, 0")
    a("s_mov_b32 exec_lo, 0")
    a(f"v_accvgpr_write_b32 a{Qo+6}, v9")
    a(f"v_accvgpr_write_b32 a{Qo+7}, v8")
    a("s_mov_b32 exec_lo, -1")
    for i in range(16): a(f"v_mov_b32 v{O[3]+i}, 0")
    a("s_mov_b32 s58, 0")
    a("s_mov_b32 s59, 0")
    a.label("C_FB2")
    for f in range(4): a(ld(K0+4*f, 1024*f, "v4"))
    a("s_waitcnt vmcnt(0)")
    a(f"{MF} {vr(Sx,16)}, {ar(K0,4)}, {ar(Qo,4)}, 0")
    a(f"{MF} {vr(Sx,16)}, {ar(K0+4,4)}, {ar(Qo+4,4)}, {vr(Sx,16)}")
    fb_adv()
    a("s_nop 15")
    for i in range(16): a(f"v_exp_f32 v{Sx+i}, v{Sx+i}")
    a("s_nop 1")
    a(f"{SM} {vr(O[3],16)}, {ar(K0+8,4)}, {vr(Sx,8)}, v2")
    a(f"{SM} {vr(O[3],16)}, {ar(K0+12,4)}, {vr(Sx+8,8)}, v2")
    a("s_cmp_lt_u32 s59, 64")
    a("s_cbranch_scc1 C_FB2")
    a("s_nop 15")
    a("s_nop 15")
    a(f"v_mov_b32 v6, v{O[3]+12}")
    a(f"v_mov_b32 v7, v{O[3]+12}")
    a("s_nop 1")
    a("v_permlane32_swap_b32 v6, v7")
    a("v_rcp_f32 v7, v7")
    a("s_nop 0")
    a("s_branch C_FIN")

def main():
    a = Asm()
    head = f"""; gated mix of a linear-attention block and a softmax-attention block (S=2048, D=448, H=16), one launch
; @launch grid=(256,1,1) block=(512,1,1) lds=163840
.amdgcn_target "amdgcn-amd-amdhsa--gfx950"
.text
"""
    gen(a)
    out = head + a.text() + '.section .rodata,"a"\n' + kernel_desc(KN, 256, 102, 160)
    path = sys.argv[1] if len(sys.argv) > 1 else f"cdna_kernels/{NAME}.s"
    open(path, "w").write(out)
main()
```

```python
import math, sys, os, struct
from asmlib import *

NAME = "gated_mix__linear_attn_block__mha_block__prompt"
KN = NAME + "_kernel"
WS_KV  = 0
WS_CNT = 5 << 20
WS_KVP = 6 << 20
WS_OF  = 8 << 20
PAD = int(os.environ.get("PAD", "69632"))
WS_ST  = 14 << 20
WS_SIZE = 16 << 20
LOG2E = 1.4426950408889634
QSCALE = LOG2E * 28 ** -0.5
EPS = 1e-6
ONE2 = 0x3F803F80
RING = 114688
L_KVD = RING
L_G   = RING + 16384 + 4096
L_KVF = RING + 16384 + 12288
L_CNT = RING + 16384 + 14336
L_QD  = RING + 32768
L_PQ  = RING + 32768 + 8192
STAMP = int(os.environ.get("STAMP", "0"))
X = set(os.environ.get("X", "").split(","))
MF = "v_mfma_f32_32x32x16_bf16"
SM = "v_smfmac_f32_32x32x32_bf16"
SX, SW, SWA, SWB, SWS, SD, SG = 36, 40, 44, 48, 52, 56, 60
WSR = f"s[{SWS}:{SWS+3}]"
SPIN = 200000
WFL = os.environ.get("WFL", "")
XFL = os.environ.get("XFL", "")

def srd(a, d, lo, size):
    a(f"s_mov_b32 s{d}, s{lo}")
    a(f"s_mov_b32 s{d+1}, s{lo+1}")
    a(f"s_mov_b32 s{d+2}, {size}")
    a(f"s_mov_b32 s{d+3}, 0x20000")
def R(d): return f"s[{d}:{d+3}]"

def stamp(a, i, mode=1):
    if not STAMP: return
    if mode is not None and mode != STAMP: return
    if i == 0: a("s_memrealtime s[96:97]")
    a("s_memrealtime s[94:95]" if os.environ.get("RT") else "s_memtime s[94:95]")
    a("s_waitcnt lgkmcnt(0)")
    a(f"s_mov_b32 s{70+i}, s94")
def stampc(a, i):
    if os.environ.get("DIAGP") == str(i):
        a("s_memrealtime s[100:101]")
        a("s_waitcnt lgkmcnt(0)")
    if STAMP == 5: return
    stamp(a, i, None)
def stamp_out(a, n):
    if not STAMP: return
    a("s_memrealtime s[98:99]")
    a("s_waitcnt lgkmcnt(0)")
    a("s_mov_b64 exec, 1")
    a("s_lshl_b32 s94, s2, 3")
    a("s_add_u32 s94, s94, s35")
    a("s_lshl_b32 s94, s94, 7")
    a(f"s_add_u32 s94, s94, {WS_ST}")
    a("v_mov_b32 v1, 0")
    for i in range(n if STAMP != 5 else 0):
        a(f"v_mov_b32 v2, s{70+i}")
        a(f"buffer_store_dword v2, v1, {WSR}, s94 offen offset:{4*i}")
    a("v_mov_b32 v2, s96")
    a(f"buffer_store_dword v2, v1, {WSR}, s94 offen offset:120")
    a("v_mov_b32 v2, s98")
    a(f"buffer_store_dword v2, v1, {WSR}, s94 offen offset:124")

def dma_lane_w(a, vdst, vt0, vt1, rowstride):
    a(f"v_lshrrev_b32 v{vt0}, 4, v0")
    a(f"v_bfe_u32 v{vt1}, v0, 2, 2")
    a(f"v_and_b32 v{vdst}, 1, v{vt0}")
    if "noswz" not in X: a(f"v_xor_b32 v{vt1}, v{vt1}, v{vdst}")
    a(f"v_lshrrev_b32 v{vdst}, 1, v{vt1}")
    a(f"v_lshl_add_u32 v{vt0}, v{vt0}, 1, v{vdst}")
    a(f"v_mul_u32_u24 v{vt0}, {rowstride}, v{vt0}")
    a(f"v_and_b32 v{vt1}, 1, v{vt1}")
    a(f"v_lshl_add_u32 v{vt0}, v{vt1}, 6, v{vt0}")
    a(f"v_and_b32 v{vt1}, 3, v0")
    a(f"v_lshl_add_u32 v{vdst}, v{vt1}, 4, v{vt0}")

def tr_lane_addr(a, vdst, vb, vt0, vt1, hlshift):
    a(f"v_bfe_u32 v{vt0}, v0, 4, 1")
    a(f"v_lshl_add_u32 v{vb}, v{vt0}, 5, v{vb}")
    a(f"v_and_b32 v{vt0}, 3, v0")
    a(f"v_lshl_add_u32 v{vb}, v{vt0}, 3, v{vb}")
    a(f"v_bfe_u32 v{vt0}, v0, 2, 1")
    a(f"v_lshrrev_b32 v{vt1}, 6, v{vb}")
    a(f"v_lshl_add_u32 v{vt0}, v{vt0}, 1, v{vt1}")
    a(f"v_bfe_u32 v{vt1}, v0, 3, 1")
    a(f"v_xor_b32 v{vt0}, v{vt0}, v{vt1}")
    a(f"v_and_b32 v{vb}, 63, v{vb}")
    a(f"v_lshl_add_u32 v{vb}, v{vt0}, 6, v{vb}")
    a(f"v_lshrrev_b32 v{vt0}, 5, v0")
    a(f"v_lshl_add_u32 v{vt0}, v{vt0}, {hlshift}, v{vt1}")
    a(f"v_lshl_add_u32 v{vdst}, v{vt0}, 8, v{vb}")

C_KV, C_A, C_OA, C_OB = WS_CNT, WS_CNT + 128*128, WS_CNT + 256*128, WS_CNT + 512*128
NFLAG = 768
def poll(a, tag, srdreg, soff, nl, vl, vt, sleep=0, first=True):
    a(f"s_mov_b64 exec, {(1 << nl) - 1}")
    a(f"s_mov_b32 s68, {SPIN}")
    if sleep and first: a(f"s_branch POLL_{tag}")
    a.label(f"POLLS_{tag}")
    if sleep: a(f"s_sleep {sleep}")
    a.label(f"POLL_{tag}")
    a(f"buffer_load_dword v{vt}, v{vl}, {srdreg}, {soff} offen sc1")
    a("s_sub_u32 s68, s68, 1")
    a(f"s_cbranch_scc1 POLLX_{tag}")
    a("s_waitcnt vmcnt(0)")
    a(f"v_cmp_eq_u32 vcc, 0, v{vt}" if tag.startswith("INIT") else f"v_cmp_ne_u32 vcc, s87, v{vt}")
    a(f"s_cbranch_vccnz POLLS_{tag}")
    a.label(f"POLLX_{tag}")
    a("s_mov_b64 exec, -1")

def lds_wait(a, tag, vaddr, off, target, vt, sleep=1):
    a("s_mov_b64 exec, 1")
    a(f"s_mov_b32 s68, {SPIN}")
    a.label(f"LW_{tag}")
    a(f"s_sleep {sleep}")
    a(f"ds_read_b32 v{vt}, v{vaddr} offset:{off}")
    a("s_waitcnt lgkmcnt(0)")
    a(f"v_readfirstlane_b32 s69, v{vt}")
    a("s_sub_u32 s68, s68, 1")
    a(f"s_cbranch_scc1 LWX_{tag}")
    a(f"s_cmp_ge_u32 s69, {target}")
    a(f"s_cbranch_scc0 LW_{tag}")
    a.label(f"LWX_{tag}")
    a("s_mov_b64 exec, -1")

def signal(a, soff, vz, vt):
    a("s_mov_b64 exec, 1")
    a(f"v_mov_b32 v{vt}, s87")
    a(f"buffer_store_dword v{vt}, v{vz}, {WSR}, {soff} offen sc1")
    a("s_mov_b64 exec, -1")

def cvt(a, dst, src, lo=0, hi=8):
    for i in range(lo, hi):
        a(f"v_cvt_pk_bf16_f32 v{dst+i}, v{src+2*i}, v{src+2*i+1}")

def vadd(a, dst, src, n):
    for i in range(n): a(f"v_add_f32 v{dst+i}, v{dst+i}, v{src+i}")
def vmul(a, dst, mul, n):
    for i in range(n): a(f"v_mul_f32 v{dst+i}, {mul}, v{dst+i}")

def phi_list(src, T, n=16, grp=8):
    o = []
    for g0 in range(0, n, grp):
        o += [f"v_fma_f32 v{T+i}, v{src+g0+i}, s64, -s64" for i in range(grp)]
        o += [f"v_exp_f32_e64 v{T+i}, v{T+i} clamp" for i in range(grp)]
        o += [f"v_max_f32 v{src+g0+i}, v{src+g0+i}, v{T+i}" for i in range(grp)]
        o += [f"v_add_f32 v{src+g0+i}, s66, v{src+g0+i}" for i in range(grp)]
    return o

def p3_addr(a, v0a, mat_off_sgpr, swap_sgpr, vt0, vt1):
    a(f"v_mov_b32 v{v0a+1}, 0")
    tr_lane_addr(a, v0a, v0a+1, vt0, vt1, 1)
    a(f"v_add_u32 v{v0a}, {mat_off_sgpr}, v{v0a}")
    a(f"v_xor_b32 v{v0a}, {swap_sgpr}, v{v0a}")
    a(f"v_xor_b32 v{v0a+1}, 64, v{v0a}")
    a(f"v_lshrrev_b32 v{vt0}, 5, v0")
    a(f"v_lshlrev_b32 v{vt0}, 9, v{vt0}")
    a(f"v_sub_u32 v{v0a+2}, v{v0a}, v{vt0}")
    a(f"v_sub_u32 v{v0a+3}, v{v0a+1}, v{vt0}")

def p3_oload(ks, vlane16, so):
    o = [f"buffer_load_dwordx4 {ar(4*ks,4)}, v{vlane16}, {WSR}, {so} offen offset:{1024*(ks&3)} sc1"]
    if ks & 3 == 3 and ks < 15: o.append(f"s_add_u32 {so}, {so}, 4096")
    return o

def p3_gemm(a, va, ACC, WF, first_zero, npre, vlane16, so):
    def reads(ks):
        f = WF[ks & 1]; hh, m = ks >> 1, ks & 1
        o = (14*hh + 8*m) * 256
        last = (ks == 15)
        return [f"ds_read_b64_tr_b16 {vr(f,2)}, v{va} offset:{o}",
                f"ds_read_b64_tr_b16 {vr(f+2,2)}, v{va+2 if last else va} offset:{o+1024}",
                f"ds_read_b64_tr_b16 {vr(f+4,2)}, v{va+1} offset:{o}",
                f"ds_read_b64_tr_b16 {vr(f+6,2)}, v{va+3 if last else va+1} offset:{o+1024}"]
    for x in reads(0): a(x)
    issued = npre
    for ks in range(16):
        f = WF[ks & 1]
        rd = reads(ks+1) if ks < 15 else []
        c0 = "0" if (first_zero and ks == 0) else vr(ACC[0], 16)
        c1 = "0" if (first_zero and ks == 0) else vr(ACC[1], 16)
        if issued < 16:
            for x in p3_oload(issued, vlane16, so): a(x)
            issued += 1
        a(f"s_waitcnt vmcnt({issued-1-ks}) lgkmcnt(2)")
        a(f"{MF} {vr(ACC[0],16)}, {vr(f,4)}, {ar(4*ks,4)}, {c0}")
        for x in rd[:2]: a(x)
        a(f"s_waitcnt lgkmcnt({2 if rd else 0})")
        a(f"{MF} {vr(ACC[1],16)}, {vr(f+4,4)}, {ar(4*ks,4)}, {c1}")
        for x in rd[2:]: a(x)

def p3_oloads(a, vlane16, so, n):
    for ks in range(n):
        for x in p3_oload(ks, vlane16, so): a(x)

E = lambda k, d: os.environ.get(k, d)
SIGK = int(E("SIGK", "6"))
ROT = int(E("ROT", "0"))
TOUCH = E("TB", "1,0") != "1,0" or E("TA", "1,0") != "1,0"
PQC = int(E("PQC", "-1"))
BQE = E("BQE", "0") == "1"
def gen(a):
    kernel_head(a, KN)
    a("s_cmp_ge_u32 s2, 256")
    a("s_cbranch_scc1 L_END")
    a("s_load_dwordx16 s[4:19], s[0:1], 0")
    a("s_load_dwordx4 s[20:23], s[0:1], 64")
    if STAMP or E("DIAGT", ""):
        a("s_memrealtime s[96:97]")
        a("s_memtime s[70:71]")
    a("v_lshrrev_b32 v1, 6, v0")
    a("v_and_b32 v0, 63, v0")
    a("v_readfirstlane_b32 s27, v1")
    a("s_and_b32 s64, s2, 7")
    a("s_lshr_b32 s32, s2, 3")
    a("s_lshr_b32 s34, s64, 1")
    a("s_and_b32 s33, s64, 1")
    a("s_lshr_b32 s29, s32, 3")
    a("s_lshl_b32 s24, s34, 2")
    a("s_add_u32 s24, s24, s29")
    a("s_and_b32 s26, s32, 1")
    a("s_bfe_u32 s25, s32, 0x20001")
    a("s_lshl_b32 s65, s33, 2")
    a("s_add_u32 s25, s25, s65")
    a("s_lshl_b32 s28, s25, 1")
    a("s_cmp_eq_u32 s26, s33" if E("HS", "0") == "0" else "s_cmp_lg_u32 s26, s33")
    a("s_addc_u32 s28, s28, 0")
    a("s_mul_i32 s30, s32, 37")
    a("s_lshr_b32 s30, s30, 8")
    a("s_mul_i32 s31, s30, 7")
    a("s_sub_u32 s31, s32, s31")
    a("s_lshl_b32 s64, s64, 2")
    a("s_add_u32 s30, s30, s64")
    a("s_mov_b32 s35, s27")
    a("s_cmp_ge_u32 s27, 4")
    a("s_cbranch_scc0 L_COMPUTE")
    helper(a)
    compute(a)
    a.label("L_END")
    a("s_endpgm")
    a.label("L_CODE_END")

def helper(a):
    a("s_sub_u32 s27, s27, 4")
    if ROT:
        a("s_and_b32 s64, s32, 7")
        a("s_lshr_b32 s64, s64, %s" % E("ROTS", "0"))
        a("s_add_u32 s64, s64, s29")
        if ROT == 2:
            a("s_and_b32 s64, s64, 1")
            a("s_mul_i32 s80, s64, %s" % E("ROTO", "3"))
        elif ROT == 3:
            a("s_mul_i32 s65, s64, 86")
            a("s_lshr_b32 s65, s65, 8")
            a("s_mul_i32 s65, s65, 3")
            a("s_sub_u32 s64, s64, s65")
            a("s_mul_i32 s80, s64, 5")
            a("s_lshr_b32 s80, s80, 1")
        elif ROT == 4:
            a("s_and_b32 s64, s64, 3")
            a("s_lshl_b32 s80, s64, 1")
        for i in range(1, 7):
            a(f"s_add_u32 s{80+i}, s{79+i}, 1")
            a(f"s_cmp_eq_u32 s{80+i}, 7")
            a(f"s_cselect_b32 s{80+i}, 0, s{80+i}")
    a("v_lshrrev_b32 v1, 3, v0")
    a("s_lshl_b32 s64, s24, 7")
    a("s_lshl_b32 s65, s27, 5")
    a("s_add_u32 s64, s64, s65")
    a("v_add_u32 v1, s64, v1")
    a("v_mul_u32_u24 v1, 896, v1")
    a("v_lshrrev_b32 v2, 4, v0")
    a("v_and_b32 v3, 7, v0")
    a("v_xor_b32 v2, v2, v3")
    a("v_lshl_add_u32 v2, v2, 4, v1")
    a("v_xor_b32 v3, 64, v2")
    a("v_add_u32 v3, 7168, v3")
    a("v_add_u32 v4, 14336, v2")
    a("v_add_u32 v5, 14336, v3")
    dma_lane_w(a, 6, 10, 11, 2688)
    a("s_mul_i32 s64, s27, 43008")
    a("s_mul_i32 s65, s25, 112")
    a("s_add_u32 s64, s64, s65")
    a("s_add_u32 s64, s64, 896")
    a("v_add_u32 v6, s64, v6")
    a("v_add_u32 v7, 21504, v6")
    a("v_add_u32 v8, 896, v6")
    a("v_add_u32 v9, 896, v7")
    a("s_lshl_b32 s66, s27, 12")
    a("s_lshl_b32 s67, s27, 11")
    a(f"s_add_u32 s67, s67, {RING}")
    a(f"s_mov_b32 s{SX+2}, 1835008")
    a(f"s_mov_b32 s{SX+3}, 0x20000")
    a(f"s_mov_b32 s{SW+2}, 1204224")
    a(f"s_mov_b32 s{SW+3}, 0x20000")
    a("s_cmp_eq_u32 s26, 0")
    a("s_waitcnt lgkmcnt(0)")
    a(f"s_mov_b32 s{SX}, s4")
    a(f"s_mov_b32 s{SX+1}, s5")
    a(f"s_cselect_b32 s{SW}, s6, s12")
    a(f"s_cselect_b32 s{SW+1}, s7, s13")
    vm = []
    def xload(c):
        for q in range(4):
            a(f"s_add_u32 m0, s66, {c*16384 + q*1024}")
            a((f"s_lshl_b32 s64, s{80+c}, 7" if ROT else f"s_mov_b32 s64, {c*128}") if q == 0 else "s_nop 0")
            a(f"buffer_load_dwordx4 v{2+q}, {R(SX)}, s64 offen lds"); vm.append(("x", c))
    def wload(c):
        for pt in range(2):
            for u in range(2):
                a(f"s_add_u32 m0, s67, {(c%3)*16384 + pt*8192 + u*1024}")
                a((f"s_mul_i32 s65, s{80+c}, 172032" if ROT else f"s_mov_b32 s65, {c*172032}") if pt + u == 0 else "s_nop 0")
                a(f"buffer_load_dwordx4 v{6+2*pt+u}, {R(SW)}, s65 offen lds"); vm.append(("w", c))
    def qload(d):
        if ROT:
            a("s_cmp_ge_u32 s27, 2")
            a(f"s_cselect_b32 s65, s{80+min(2*d+1,6)}, s{80+2*d}")
        for mat in range(2):
            for u in range(2):
                a(f"s_add_u32 m0, s67, {((7+d)%3)*16384 + mat*8192 + u*1024}")
                a(("s_mul_i32 s65, s65, 172032" if ROT else f"s_mov_b32 s65, {d*344064}") if mat + u == 0 else "s_nop 0")
                a(f"buffer_load_dwordx4 v{10+u}, {R(SWA if mat == 0 else SWB)}, s65 offen lds"); vm.append(("q", d))
    def waitfor(*tags):
        last = max(i for i, tg in enumerate(vm) if tg in tags)
        a(f"s_waitcnt vmcnt({len(vm)-1-last})")
    def patch(d):
        a("s_mov_b32 exec_hi, 0")
        a(f"ds_write_b16 v16, v{12+d} offset:{((7+d)%3)*16384}")
        a("s_mov_b32 exec_hi, -1")
        a("s_waitcnt lgkmcnt(0)")
    def initcheck(tag):
        a("v_readfirstlane_b32 s87, v17")
        a("s_nop 0")
        a("s_cmp_lg_u32 s87, 0")
        a(f"s_cbranch_scc1 H_INIT_OK{tag}")
        poll(a, "INIT" + tag, R(SD), "0", 1, 18, 17)
        a("v_readfirstlane_b32 s87, v17")
        a.label(f"H_INIT_OK{tag}")
    stamp(a, 1, 2)
    xload(0); wload(0)
    srd(a, SWA, 6, 1204224); srd(a, SWB, 12, 1204224)
    srd(a, SWS, 22, WS_SIZE); srd(a, SD, 20, 256); srd(a, SG, 16, 896)
    a("v_lshrrev_b32 v10, 2, v0")
    a("s_lshl_b32 s64, s27, 5")
    if ROT: a("s_and_b32 s64, s64, 32")
    a("v_add_u32 v10, s64, v10")
    a("v_mul_u32_u24 v10, 2688, v10")
    a("v_and_b32 v11, 3, v0")
    a("v_lshl_add_u32 v10, v11, 4, v10")
    a("s_mul_i32 s65, s28, 56")
    a("v_add_u32 v10, s65, v10")
    a("v_add_u32 v11, 43008, v10")
    a("v_add_u32 v17, s64, v0")
    a("s_lshl_b32 s64, s27, 11")
    a(f"s_add_u32 s64, s64, {RING + 8192 + 56}")
    a("v_lshl_add_u32 v16, v0, 6, s64")
    a("v_lshlrev_b32 v17, 1, v17")
    a("s_and_b32 s64, s32, 0x1e")
    a("s_and_b32 s65, s27, 1")
    a("s_add_u32 s64, s64, s65")
    a("s_mul_i32 s64, s64, 14")
    a("v_lshrrev_b32 v20, 2, v0")
    a("v_add_u32 v20, s64, v20")
    a("v_mul_u32_u24 v20, 2688, v20")
    a("v_and_b32 v21, 3, v0")
    a("v_lshl_add_u32 v20, v21, 7, v20")
    a("s_mul_i32 s64, s33, 384")
    a("v_add_u32 v20, s64, v20")
    a("v_mov_b32 v18, 0")
    if TOUCH: a("s_barrier")
    if E("AF", "0") == "1":
        a("s_cmp_eq_u32 s26, 0")
        a("s_cbranch_scc0 H_C1B")
        a("s_waitcnt vmcnt(0)")
        a("s_barrier")
        xload(1); wload(1)
        a("s_branch H_C1D")
        a.label("H_C1B")
        del vm[8:]
    xload(1); wload(1)
    stamp(a, 1); stamp(a, 2, 2)
    for c in range(5):
        waitfor(("x", c), ("w", c)); a("s_barrier"); stamp(a, 3+c, 2)
        if c == 0:
            stamp(a, 2)
            a.label("H_C1D")
        xload(c+2); wload(c+2)
        if c == 1:
            for d in range(4):
                if ROT:
                    a("s_cmp_ge_u32 s27, 2")
                    a(f"s_cselect_b32 s65, s{80+min(2*d+1,6)}, s{80+2*d}")
                    a("s_lshl_b32 s65, s65, 7")
                    a(f"buffer_load_ushort v{12+d}, v17, {R(SG)}, s65 offen"); vm.append(("g", d))
                else:
                    a(f"buffer_load_ushort v{12+d}, v17, {R(SG)}, 0 offen offset:{256*d}"); vm.append(("g", d))
        if c == 3:
            a(f"buffer_load_dword v17, v18, {R(SD)}, 0 offen sc1"); vm.append(("d", 0))
        if c == PQC:
            a("s_cmp_eq_u32 s26, 0")
            a("s_cbranch_scc0 H_NOPQ2")
            a("s_cmp_ge_u32 s27, 2")
            a("s_cselect_b32 s88, s12, s6")
            a("s_cselect_b32 s89, s13, s7")
            a("s_mov_b32 s90, 1204224")
            a("s_mov_b32 s91, 0x20000")
            a("s_mov_b32 exec_hi, 0xffffff")
            a("buffer_load_dword a64, v20, s[88:91], 0 offen")
            a("s_mov_b64 exec, -1")
            a.label("H_NOPQ2")
    a("s_cmp_eq_u32 s26, 0")
    if E("PQ", "0") == "1":
        a("s_cbranch_scc0 H_NOPQ")
        a("s_cmp_ge_u32 s27, 2")
        a("s_cselect_b32 s88, s12, s6")
        a("s_cselect_b32 s89, s13, s7")
        a("s_mov_b32 s90, 1204224")
        a("s_mov_b32 s91, 0x20000")
        a("s_mov_b32 exec_hi, 0xffffff")
        a("buffer_load_dword a64, v20, s[88:91], 0 offen")
        a("s_mov_b64 exec, -1")
        a("s_waitcnt vmcnt(9)")
        a("s_branch H_PQD")
        a.label("H_NOPQ")
    waitfor(("x",5),("w",5))
    a.label("H_PQD")
    a("s_barrier"); stamp(a, 8, 2)
    qload(0)
    a("s_cmp_eq_u32 s26, 0")
    a("s_cbranch_scc0 H_B6B")
    if E("PQ", "0") == "1": a("s_waitcnt vmcnt(5)")
    else: a("s_waitcnt vmcnt(4)")
    a("s_barrier")
    qload(1)
    a("s_waitcnt vmcnt(4)"); patch(0); a("s_barrier")
    qload(2)
    a("s_waitcnt vmcnt(4)")
    patch(1)
    initcheck("A")
    if SIGK == 6: a("s_barrier")
    a("s_branch H_B7D")
    a.label("H_B6B")
    a("s_waitcnt vmcnt(4)")
    a("s_barrier")
    if BQE:
        qload(1)
        a("s_waitcnt vmcnt(4)"); patch(0); a("s_barrier")
        qload(2)
        a("s_waitcnt vmcnt(4)"); patch(1)
    else:
        a("s_waitcnt vmcnt(0)"); patch(0); a("s_barrier")
        qload(1)
    a("s_lshl_b32 s64, s25, 4")
    a("s_add_u32 s64, s64, s24")
    a("s_lshl_b32 s64, s64, 7")
    a(f"s_add_u32 s64, s64, {C_KV}")
    initcheck("B")
    if SIGK == 6:
        a("s_cmp_eq_u32 s27, 3")
        a("s_barrier")
        a("s_cbranch_scc0 H_NOSIGKV")
        signal(a, "s64", 18, 19)
    if BQE:
        a.label("H_NOSIGKV")
    else:
        qload(2)
        a("s_waitcnt vmcnt(5)")
        a("s_branch H_SIGD")
        a.label("H_NOSIGKV")
        qload(2)
        a("s_waitcnt vmcnt(4)")
        a.label("H_SIGD")
        patch(1)
    a.label("H_B7D")
    stamp(a, 10, 2)
    a("s_barrier")
    a("s_cmp_ge_u32 s27, 2")
    a("s_cbranch_scc1 H_NOQ3")
    qload(3)
    if SIGK == 14: a("s_barrier")
    a("s_waitcnt vmcnt(4)"); patch(2)
    a("s_branch H_Q3")
    a.label("H_NOQ3")
    if SIGK == 14:
        a("s_xor_b32 s65, s27, 3")
        a("s_xor_b32 s66, s26, 1")
        a("s_or_b32 s65, s65, s66")
        a("s_barrier")
        a("s_cbranch_scc1 H_NOSIG2")
        signal(a, "s64", 18, 19)
        a("s_waitcnt vmcnt(1)")
        a("s_branch H_P2")
        a.label("H_NOSIG2")
    a("s_waitcnt vmcnt(0)")
    a.label("H_P2")
    patch(2)
    a.label("H_Q3")
    a("s_barrier")
    a("s_waitcnt vmcnt(0)")
    a("s_cmp_ge_u32 s27, 2")
    a("s_cbranch_scc1 H_NOP3")
    patch(3)
    a.label("H_NOP3")
    a("s_barrier")
    a(f"v_mov_b32 v1, {L_CNT}")
    for i in range(8, 12): a(f"v_mov_b32 v{i}, 0")
    a("ds_write_b128 v1, v[8:11]")
    a("s_nop 1")
    a("v_mov_b32 v9, s87")
    a("ds_write_b128 v1, v[8:11] offset:16")
    a("v_lshlrev_b32 v2, 4, v0")
    dma_lane_w(a, 3, 4, 5, 896)
    a("s_mul_i32 s64, s27, 7168")
    a("s_lshl_b32 s65, s31, 7")
    a("s_add_u32 s64, s64, s65")
    a("v_add_u32 v3, s64, v3")
    a("s_lshr_b32 s65, s27, 1")
    a("s_mul_i32 s64, s65, 28672")
    a("s_lshl_b32 s65, s65, 6")
    p3_addr(a, 4, "s64", "s65", 8, 9)
    srd(a, SWA, 8, 401408); srd(a, SWB, 14, 401408)
    a("s_lshl_b32 s65, s25, 2")
    a("s_add_u32 s65, s65, s27")
    a("s_lshl_b32 s65, s65, 9")
    a(f"s_add_u32 s65, s65, {C_KV}")
    a("v_lshlrev_b32 v10, 7, v0")
    stamp(a, 3)
    poll(a, "KV", WSR, "s65", 4, 10, 11, int(E("KS", "1")))
    a("s_waitcnt lgkmcnt(0)")
    a("s_barrier")
    a("s_setprio 2")
    stamp(a, 4); stamp(a, 1, 3); stamp(a, 1, 7)
    PQ, G, KF, NUM, PA = 80, 88, 92, 100, 116
    def wo_dma(tag, srdreg, base, lo, hi, depth):
        if hi <= lo: return
        a("s_lshl_b32 s66, s27, 10")
        a(f"s_add_u32 s66, s66, {base + lo*4096}")
        a(f"s_mov_b32 s63, {lo*28672}")
        a.label(f"H_WO{tag}")
        a("s_mov_b32 m0, s66")
        a("s_add_u32 s66, s66, 4096")
        a(f"buffer_load_dwordx4 v3, {R(srdreg)}, s63 offen lds")
        a("s_add_u32 s63, s63, 28672")
        a(f"s_waitcnt vmcnt({depth})")
        a(f"s_cmp_lt_u32 s63, {hi*28672}")
        a(f"s_cbranch_scc1 H_WO{tag}")
    W1 = int(E("W1", "0"))
    a("s_cmp_ge_u32 s32, 28")
    a("s_cbranch_scc1 H_NOWO0")
    wo_dma("0", SWA, 0, 0, W1, int(E("WOD0", "2")))
    a.label("H_NOWO0")
    if "hskip" in X:
        a("s_branch H_SKIP")
    lds_wait(a, "C0", 1, 8, 4, 9)
    stamp(a, 2, 7)
    a("s_lshl_b32 s64, s27, 11")
    a(f"s_add_u32 s64, s64, {L_PQ}")
    a("v_add_u32 v8, s64, v2")
    a(f"ds_read_b128 {vr(PQ,4)}, v8")
    a(f"ds_read_b128 {vr(PQ+4,4)}, v8 offset:1024")
    a("s_lshl_b32 s64, s27, 8")
    a(f"s_add_u32 s64, s64, {L_G}")
    a("v_lshl_add_u32 v8, v0, 2, s64")
    a(f"ds_read_b32 v{G}, v8")
    a("s_cmp_ge_u32 s27, 2")
    a("s_cselect_b32 s64, s26, 1")
    a("s_cmp_eq_u32 s64, 0")
    a("s_cbranch_scc0 H_NOKVP")
    a("s_and_b32 s65, s27, 1")
    a("s_lshl_b32 s64, s65, 12")
    a(f"s_add_u32 s64, s64, {L_KVD}")
    a("v_add_u32 v8, s64, v2")
    for i in range(8):
        a(f"ds_read_b128 {vr(16+4*i,4)}, v8 offset:{1024*(i&3) + 8192*(i>>2)}")
    a("s_lshl_b32 s64, s25, 1")
    a("s_add_u32 s64, s64, s65")
    a(f"s_mul_i32 s64, s64, {PAD}")
    a("s_lshl_b32 s65, s24, 12")
    a("s_add_u32 s64, s64, s65")
    a(f"s_add_u32 s64, s64, {WS_KVP}")
    a("s_waitcnt lgkmcnt(0)")
    vadd(a, 16, 32, 16)
    for q in range(4):
        a(f"buffer_store_dwordx4 {vr(16+4*q,4)}, v2, {WSR}, s64 offen offset:{1024*q} sc1")
    a("s_lshl_b32 s64, s25, 4")
    a("s_add_u32 s64, s64, s24")
    a("s_lshl_b32 s64, s64, 7")
    a(f"s_add_u32 s64, s64, {C_A}")
    a("v_mov_b32 v11, 1")
    stamp(a, 3, 7)
    a("s_waitcnt vmcnt(0)")
    stamp(a, 4, 7)
    a("s_mov_b64 exec, 1")
    a("ds_add_rtn_u32 v9, v1, v11 offset:12")
    a("s_waitcnt lgkmcnt(0)")
    a("v_readfirstlane_b32 s69, v9")
    a("s_mov_b64 exec, -1")
    a("s_cmp_eq_u32 s69, 1")
    a("s_cbranch_scc0 H_NOKVP")
    signal(a, "s64", 10, 11)
    a.label("H_NOKVP")
    stamp(a, 5, 7)
    a("s_cmp_ge_u32 s32, 28")
    a("s_cbranch_scc1 H_NOWOA")
    wo_dma("A", SWA, 0, W1, 14, int(E("WOD", "5")))
    wo_dma("B", SWB, 57344, 0, 14, int(E("WOD", "5")))
    a.label("H_NOWOA")
    stamp(a, 2, 3); stamp(a, 6, 7)
    a("s_lshl_b32 s64, s25, 11")
    a(f"s_add_u32 s64, s64, {C_A}")
    if "nopolla" not in X:
        a("s_cmp_eq_u32 s27, 0")
        a("s_cbranch_scc0 H_AW")
        poll(a, "A", WSR, "s64", 16, 10, 11, int(E("AS", "16")))
        a("v_mov_b32 v11, 1")
        a("ds_write_b32 v1, v11 offset:16")
        a("s_branch H_AD")
        a.label("H_AW")
        lds_wait(a, "A", 1, 16, 1, 9, 4)
        a.label("H_AD")
    stamp(a, 3, 3); stamp(a, 7, 7)
    a(f"s_mul_i32 s64, s28, {PAD}")
    a("s_lshl_b32 s65, s27, 10")
    a("s_add_u32 s64, s64, s65")
    a(f"s_add_u32 s64, s64, {WS_KVP}")
    KD = int(E("KD", "2"))
    for i in range(16):
        if "nokvl" not in X: a(f"buffer_load_dwordx4 {vr(16+4*i,4)}, v2, {WSR}, s64 offen sc1")
        a("s_add_u32 s64, s64, 4096")
        if i > KD:
            a(f"s_waitcnt vmcnt({KD})")
            if "nokva" not in X: vadd(a, 16, 16+4*(i-KD), 4)
    stamp(a, 4, 3)
    for j in range(16-KD, 16):
        a(f"s_waitcnt vmcnt({15-j})")
        vadd(a, 16, 16+4*j, 4)
    stamp(a, 5, 3)
    a("v_cvt_pk_bf16_f32 v16, v16, v17")
    a("v_cvt_pk_bf16_f32 v17, v18, v19")
    a("s_lshr_b32 s64, s27, 1")
    a("s_lshl_b32 s64, s64, 10")
    a("s_and_b32 s65, s27, 1")
    a("s_lshl_b32 s65, s65, 3")
    a("s_add_u32 s64, s64, s65")
    a(f"s_add_u32 s64, s64, {L_KVF}")
    a("v_add_u32 v8, s64, v2")
    a("ds_write_b64 v8, v[16:17]")
    a("v_mov_b32 v11, 1")
    a("s_waitcnt lgkmcnt(0)")
    a("s_mov_b64 exec, 1")
    a("ds_add_u32 v1, v11")
    lds_wait(a, "C1", 1, 0, 4, 9)
    stamp(a, 6, 3)
    a(f"v_add_u32 v8, {L_KVF}, v2")
    a(f"ds_read_b128 {vr(KF,4)}, v8")
    a(f"ds_read_b128 {vr(KF+4,4)}, v8 offset:1024")
    a("s_waitcnt lgkmcnt(0)")
    a(f"{MF} {vr(NUM,16)}, {vr(KF,4)}, {vr(PQ,4)}, 0")
    a(f"{MF} {vr(NUM,16)}, {vr(KF+4,4)}, {vr(PQ+4,4)}, {vr(NUM,16)}")
    a("s_lshl_b32 s64, s24, 2")
    a("s_add_u32 s64, s64, s27")
    a(f"s_mul_i32 s64, s64, {PAD}")
    a("s_lshl_b32 s65, s28, 11")
    a("s_add_u32 s64, s64, s65")
    a(f"s_add_u32 s64, s64, {WS_OF}")
    a(f"v_mov_b32 v{PA+6}, 0")
    a(f"v_mov_b32 v{PA+7}, 0")
    a("s_nop 15")
    a(f"v_mov_b32 v8, v{NUM+12}")
    a(f"v_mov_b32 v9, v{NUM+12}")
    a("s_nop 1")
    a("v_permlane32_swap_b32 v8, v9")
    a(f"v_add_f32 v9, {f32(EPS)}, v9")
    a("v_rcp_f32 v9, v9")
    a("s_nop 0")
    a(f"v_mul_f32 v9, v9, v{G}")
    vmul(a, NUM, "v9", 16)
    cvt(a, PA, NUM, 0, 6)
    a("s_mov_b32 exec_hi, 0")
    cvt(a, PA, NUM, 6, 8)
    a("s_mov_b32 exec_hi, -1")
    a(f"buffer_store_dwordx4 {vr(PA,4)}, v2, {WSR}, s64 offen sc1")
    a(f"buffer_store_dwordx4 {vr(PA+4,4)}, v2, {WSR}, s64 offen offset:1024 sc1")
    stamp(a, 7, 3)
    a("s_waitcnt vmcnt(0)")
    stamp(a, 8, 3)
    a("s_mov_b64 exec, 1")
    a("ds_add_rtn_u32 v9, v1, v11 offset:4")
    a("s_waitcnt lgkmcnt(0)")
    a("v_readfirstlane_b32 s69, v9")
    a("s_mov_b64 exec, -1")
    a("s_cmp_eq_u32 s69, 3")
    a("s_cbranch_scc0 H_NOSIGOA")
    if "hskip" in X:
        a.label("H_SKIP")
        a("s_cmp_eq_u32 s27, 0")
        a("s_cbranch_scc0 H_NOSIGOA")
    a("s_lshl_b32 s64, s24, 4")
    a("s_add_u32 s64, s64, s28")
    a("s_lshl_b32 s64, s64, 7")
    a(f"s_add_u32 s64, s64, {C_OA}")
    signal(a, "s64", 10, 11)
    a.label("H_NOSIGOA")
    stamp(a, 5); stamp(a, 9, 3)
    a("s_setprio 0")
    a("s_barrier")
    a("s_cmp_ge_u32 s32, 28")
    a("s_cbranch_scc1 H_NOP3B")
    stamp(a, 6)
    a("s_and_b32 s64, s30, 0xfe")
    a("s_lshr_b32 s65, s27, 1")
    a("s_add_u32 s64, s64, s65")
    a("s_lshl_b32 s64, s64, 10")
    a(f"s_add_u32 s64, s64, {C_OA}")
    a("s_and_b32 s62, s27, 1")
    a("s_lshl_b32 s65, s30, 1")
    a("s_add_u32 s62, s62, s65")
    a(f"s_mul_i32 s62, s62, {PAD}")
    a("s_lshr_b32 s65, s27, 1")
    a("s_lshl_b32 s65, s65, 14")
    a("s_add_u32 s62, s62, s65")
    a(f"s_add_u32 s62, s62, {WS_OF}")
    NE = int(E("NE", "8"))
    a("s_mov_b64 exec, 0xff")
    a(f"buffer_load_dword v11, v10, {WSR}, s64 offen sc1")
    a("s_waitcnt vmcnt(0)")
    a("v_cmp_ne_u32 vcc, s87, v11")
    a("s_mov_b64 exec, -1")
    a("s_cbranch_vccnz H_OALATE")
    p3_oloads(a, 2, "s62", NE)
    a("s_barrier")
    a("s_barrier")
    a("s_branch H_OADONE")
    a.label("H_OALATE")
    a("s_barrier")
    a("s_barrier")
    poll(a, "OA", WSR, "s64", 8, 10, 11, 2)
    p3_oloads(a, 2, "s62", NE)
    a.label("H_OADONE")
    NPRE = 16
    for ks in range(NE, 16):
        for x in p3_oload(ks, 2, "s62"): a(x)
    stamp(a, 7); stamp(a, 10, 3)
    p3_gemm(a, 4, [16, 32], [48, 56], True, NPRE, 2, "s62")
    stamp(a, 8)
    a("s_lshl_b32 s64, s27, 13")
    a(f"s_add_u32 s64, s64, {RING}")
    a("v_add_u32 v8, s64, v2")
    a("s_nop 9")
    for i in range(8):
        a(f"ds_write_b128 v8, {vr(16+4*i,4)} offset:{1024*i}")
    a("s_waitcnt lgkmcnt(0)")
    stamp(a, 9)
    a("s_barrier")
    a("s_branch H_EXIT")
    a.label("H_NOP3B")
    a("s_barrier")
    a("s_barrier")
    a.label("H_EXIT")
    stamp(a, 10)
    stamp_out(a, 11)
    a("s_endpgm")

def compute(a):
    a.label("L_COMPUTE")
    XA, WA, WB, XQ, WQ = 2, 6, 7, 8, 12
    FR = 16; accK = [64, 80]; accV = [96, 112]; pK = [128, 136]; pV = [144, 152]
    QA, QB = 96, 112
    def touch(tag, c0, n, withq):
        a("s_lshr_b32 s60, s32, 1")
        a("s_cmp_eq_u32 s27, 3")
        if withq:
            a(f"s_cbranch_scc0 C_T0{tag}")
            srd(a, SWA, 6, 1204224); srd(a, SWB, 12, 1204224)
            a("s_mul_i32 s60, s60, 7")
            a("v_lshrrev_b32 v17, 2, v0")
            a("v_add_u32 v17, s60, v17")
            a("v_lshl_add_u32 v17, v17, 2, s34")
            a("v_mul_u32_u24 v17, 2688, v17")
            a("v_and_b32 v16, 3, v0")
            a("v_lshl_add_u32 v17, v16, 7, v17")
            a("s_mul_i32 s62, s33, 384")
            a("s_mov_b64 exec, 0x0fffffff")
            a(f"buffer_load_dword a88, v17, {R(SWA)}, s62 offen")
            a(f"buffer_load_dword a89, v17, {R(SWB)}, s62 offen")
            if E("TWO", "1") == "1":
                srd(a, SWA, 8, 401408); srd(a, SWB, 14, 401408)
                a("s_lshr_b32 s60, s32, 1")
                a("s_lshl_b32 s60, s60, 3")
                a("s_and_b32 s61, s2, 7")
                a("s_add_u32 s60, s60, s61")
                a("s_mul_i32 s60, s60, 25")
                a("v_add_u32 v17, s60, v0")
                a("v_lshlrev_b32 v17, 7, v17")
                a("s_mov_b64 exec, 0x1ffffff")
                a(f"buffer_load_dword a90, v17, {R(SWA)}, 0 offen")
                a(f"buffer_load_dword a91, v17, {R(SWB)}, 0 offen")
            a("s_mov_b64 exec, -1")
            a(f"s_branch C_TD{tag}")
            a.label(f"C_T0{tag}")
        else:
            a(f"s_cbranch_scc1 C_TD{tag}")
        a("s_cmp_eq_u32 s27, 0")
        a(f"s_cbranch_scc0 C_T1{tag}")
        srd(a, SW, 4, 1835008)
        a("s_lshl_b32 s61, s34, 9")
        a("s_lshl_b32 s60, s60, 5")
        a("s_add_u32 s60, s60, s61")
        a("v_and_b32 v17, 31, v0")
        a("v_add_u32 v17, s60, v17")
        a("v_mul_u32_u24 v17, 896, v17")
        a("v_lshrrev_b32 v16, 5, v0")
        a("v_lshl_add_u32 v17, v16, 7, v17")
        a(f"s_mov_b32 s62, {128*c0}")
        a("s_mov_b32 s63, 256")
        a(f"s_branch C_T2{tag}")
        a.label(f"C_T1{tag}")
        a("s_cmp_eq_u32 s27, 1")
        a(f"s_cselect_b32 s{SW}, s12, s6")
        a(f"s_cselect_b32 s{SW+1}, s13, s7")
        a(f"s_mov_b32 s{SW+2}, 1204224")
        a(f"s_mov_b32 s{SW+3}, 0x20000")
        a("v_lshrrev_b32 v17, 5, v0")
        a("v_lshlrev_b32 v17, 6, v17")
        a("v_bfe_u32 v16, v0, 3, 2")
        a("s_lshl_b32 s60, s60, 2")
        a("v_add3_u32 v17, v17, v16, s60")
        a("v_mul_u32_u24 v17, 2688, v17")
        a("v_bfe_u32 v16, v0, 2, 1")
        a("v_mul_u32_u24 v16, 896, v16")
        a("v_add_u32 v17, v17, v16")
        a("v_and_b32 v16, 3, v0")
        a("v_lshl_add_u32 v17, v16, 7, v17")
        a("s_mul_i32 s62, s33, 384")
        a(f"s_add_u32 s62, s62, {896 + 172032*c0}")
        a(f"s_mov_b32 s63, {2*172032}")
        a.label(f"C_T2{tag}")
        for i in range((n+1)//2):
            if 2*i+1 == n: a("s_mov_b32 exec_hi, 0")
            a(f"buffer_load_dword a{88+i}, v17, {R(SW)}, s62 offen")
            if 2*i+1 == n: a("s_mov_b32 exec_hi, -1")
            if 2*i+2 < n: a("s_add_u32 s62, s62, s63")
        a.label(f"C_TD{tag}")
    TB = [int(v) for v in E("TB", "1,0").split(",")]
    TA = [int(v) for v in E("TA", "1,0").split(",")]
    a("s_waitcnt lgkmcnt(0)")
    if TB[1]:
        a("s_cmp_eq_u32 s26, 0")
        a("s_cbranch_scc1 C_NTB")
        touch("B", TB[0], TB[1], E("TQ", "A") == "B")
        a.label("C_NTB")
    TAE = E("TAE", "0")
    if TA[1] and TAE == "1":
        a("s_cmp_eq_u32 s26, 0")
        a("s_cbranch_scc0 C_NTA")
        touch("A", TA[0], TA[1], E("TQ", "A") == "A")
        a.label("C_NTA")
    srd(a, SWS, 22, WS_SIZE)
    a("s_xor_b32 s64, s27, 3")
    a("s_xor_b32 s65, s2, 8")
    a("s_or_b32 s64, s65, s64")
    a("s_cmp_eq_u32 s64, 0")
    a("s_cbranch_scc0 C_NOINIT")
    a("s_memrealtime s[64:65]")
    srd(a, SD, 20, 256)
    a("v_mov_b32 v21, 0")
    a("s_waitcnt lgkmcnt(0)")
    a("s_lshl_b32 s64, s64, 1")
    a("s_or_b32 s64, s64, 1")
    a("v_mov_b32 v22, s64")
    a("s_mov_b64 exec, 1")
    a(f"buffer_store_dword v22, v21, {R(SD)}, 0 offen sc1")
    a("s_mov_b64 exec, -1")
    a.label("C_NOINIT")
    a("s_lshr_b32 s92, s27, 1")
    a("s_and_b32 s93, s27, 1")
    a("v_and_b32 v13, 31, v0")
    a("v_lshrrev_b32 v14, 5, v0")
    a("v_bfe_u32 v15, v0, 1, 3")
    a("v_xor_b32 v15, v15, v14")
    a("s_lshl_b32 s64, s92, 13")
    a("v_lshl_add_u32 v1, v13, 7, s64")
    a("s_lshl_b32 s65, s27, 12")
    a("s_sub_u32 s65, s65, s64")
    for ks in range(4):
        a(f"v_xor_b32 v{XA+ks}, {2*ks}, v15")
        a(f"v_lshl_add_u32 v{XA+ks}, v{XA+ks}, 4, v1")
        a(f"v_add_u32 v{XQ+ks}, s65, v{XA+ks}")
    a("s_mul_i32 s64, s93, 56")
    a(f"v_mov_b32 v{WA}, s64")
    tr_lane_addr(a, WB, WA, 1, 15, 2)
    a(f"v_add_u32 v{WB}, {RING}, v{WB}")
    a(f"v_mov_b32 v{WA}, v{WB}")
    a("v_bfe_u32 v1, v0, 2, 2")
    a("v_lshl_add_u32 v1, v14, 3, v1")
    a("v_lshlrev_b32 v1, 1, v1")
    a("v_bfe_u32 v15, v0, 4, 1")
    a("v_add_u32 v1, v1, v15")
    a("v_lshlrev_b32 v1, 2, v1")
    a("v_and_b32 v15, 3, v0")
    a("v_add_u32 v1, v1, v15")
    a("v_lshlrev_b32 v1, 3, v1")
    a(f"v_add_u32 v{WQ}, {RING}, v1")
    if TA[1] and TAE == "2":
        a("s_cmp_eq_u32 s26, 0")
        a("s_cbranch_scc0 C_NTA")
        touch("A", TA[0], TA[1], E("TQ", "A") == "A")
        a("s_barrier")
        a.label("C_NTA")
    a("v_cmp_eq_u32 vcc, 28, v13")
    a(f"v_mov_b32 v1, {ONE2}")
    a("s_nop 0")
    a("v_cndmask_b32 v15, 0, v1, vcc")
    for s in range(2):
        for i in range(8):
            a(f"v_mov_b32 v{pV[s]+i}, v15")
    a("s_mov_b32 s56, 0x0fffffff")
    a("s_mov_b32 s57, 0x0fffffff")
    a(f"s_mov_b32 s64, {f32(LOG2E)}")
    a(f"s_mov_b32 s65, {f32(QSCALE)}")
    a(f"s_mov_b32 s66, {f32(EPS)}")
    for i in range(32):
        a(f"v_mov_b32 v{accV[0]+i}, 0")
    a("v_lshlrev_b32 v13, 4, v0")
    a("s_cmp_eq_u32 s26, 0")
    a("s_cbranch_scc1 C_A")

    def scalars():
        for s in range(4):
            a(f"s_add_u32 s60, s27, {1+s}")
            a("s_and_b32 s60, s60, 3")
            a(f"s_lshl_b32 s{36+s}, s60, 11")
            a(f"s_add_u32 s{36+s}, s{36+s}, {L_QD}")
            a(f"s_mul_i32 s{40+s}, s60, 12288")
            a(f"s_add_u32 s{40+s}, s{40+s}, {RING + (4096*s if s < 3 else 0)}")
        a(f"s_mul_i32 s44, s28, {4*PAD}")
        a(f"s_mul_i32 s45, s27, {PAD}")
        a("s_add_u32 s45, s45, s44")
        a("s_lshl_b32 s46, s24, 2")
        a("s_add_u32 s46, s46, s27")
        a(f"s_mul_i32 s46, s46, {PAD}")
        a("s_lshl_b32 s60, s28, 11")
        a("s_add_u32 s46, s46, s60")
        a(f"s_add_u32 s46, s46, {WS_OF + 32768}")
        a("s_lshl_b32 s47, s27, 12")
        a(f"s_add_u32 s47, s47, {L_KVD}")
        a("s_lshl_b32 s48, s27, 8")
        a(f"s_add_u32 s48, s48, {L_G}")
    def reads(buf, ks):
        f = FR + 16*buf
        return [f"ds_read_b128 {vr(f,4)}, v{XA+ks}",
                f"ds_read_b64_tr_b16 {vr(f+8,2)}, v{WA} offset:{ks*2048}",
                f"ds_read_b64_tr_b16 {vr(f+10,2)}, v{WA} offset:{ks*2048+512}",
                f"ds_read_b128 {vr(f+4,4)}, v{XA+ks} offset:4096",
                f"ds_read_b64_tr_b16 {vr(f+12,2)}, v{WA} offset:{8192+ks*2048}",
                f"ds_read_b64_tr_b16 {vr(f+14,2)}, v{WA} offset:{8192+ks*2048+512}"]
    def mfmas(buf, kT):
        f = FR + 16*buf
        Xf = [vr(f, 4), vr(f+4, 4)]; Wk, Wv = vr(f+8, 4), vr(f+12, 4)
        m = []
        for s in range(2): m.append(f"{MF} {vr(accV[s],16)}, {Xf[s]}, {Wk}, {vr(accV[s],16)}")
        for s in range(2):
            if kT: m.append(f"{MF} {vr(accK[s],16)}, {Wv}, {Xf[s]}, {vr(accK[s],16)}")
            else:  m.append(f"{MF} {vr(accK[s],16)}, {Xf[s]}, {Wv}, {vr(accK[s],16)}")
        return m
    def mainloop(tag, kT):
        a("s_mov_b32 s60, 0")
        a("s_mov_b32 s61, 0")
        if STAMP != 4: stampc(a, 1)
        a("s_barrier")
        if STAMP != 4: stampc(a, 2)
        for r in reads(0, 0): a(r)
        a(".p2align 6")
        a.label(f"C_{tag}_LOOP")
        for ks in range(4):
            m = mfmas(ks & 1, kT); r = reads((ks+1) & 1, (ks+1) & 3)
            if ks < 3:
                a("s_waitcnt lgkmcnt(3)"); a(m[0]); a(r[0]); a(r[1]); a(r[2])
                a("s_waitcnt lgkmcnt(5)"); a(m[1]); a(r[3]); a(r[4]); a(r[5])
                a("s_waitcnt lgkmcnt(6)"); a(m[2])
                a(f"v_add_u32 v{XA+ks}, 16384, v{XA+ks}")
                if ks == 2:
                    a("s_add_u32 s60, s60, 1")
                    a("s_add_u32 s61, s61, 16384")
                    a("s_cmp_eq_u32 s61, 49152")
                    a("s_cselect_b32 s61, 0, s61")
                a(m[3])
            else:
                a(f"v_add_u32 v{WA}, s61, v{WB}")
                a("s_cmp_eq_u32 s60, 7")
                a("s_waitcnt lgkmcnt(0)")
                a(f"s_cbranch_scc1 C_{tag}_TAIL")
                a("s_barrier")
                a(m[0]); a(r[0]); a(r[1]); a(r[2])
                a(m[1]); a(r[3]); a(r[4]); a(r[5])
                a(m[2])
                a(f"v_add_u32 v{XA+3}, 16384, v{XA+3}")
                a(m[3])
                a(f"s_branch C_{tag}_LOOP")
                a.label(f"C_{tag}_TAIL")
                for x in m: a(x)
        stampc(a, 3)
    _reads = reads
    def reads(buf, ks):
        r = _reads(buf, ks)
        f = FR + 16*buf
        r[1] = f"ds_read_b64_tr_b16 {vr(f+8,2)}, v{WA} offset:{8192+ks*2048}"
        r[2] = f"ds_read_b64_tr_b16 {vr(f+10,2)}, v{WA} offset:{8192+ks*2048+512}"
        r[4] = f"ds_read_b64_tr_b16 {vr(f+12,2)}, v{WA} offset:{ks*2048}"
        r[5] = f"ds_read_b64_tr_b16 {vr(f+14,2)}, v{WA} offset:{ks*2048+512}"
        return r
    def cvt_v():
        a("s_nop 9")
        a("s_mov_b64 exec, s[56:57]")
        for s in range(2): cvt(a, pV[s], accV[s])
        a("s_mov_b64 exec, -1")
    def phase1b(fill):
        def qreads(k):
            f = FR + 12*(k % 3); d, kk = k >> 3, k & 7
            c = k >> 2
            o = ((7+d) % 3)*16384 + kk*1024
            return [f"ds_read_b128 {vr(f,4)}, v{XQ+(k&3)} offset:{(c&3)*16384}",
                    f"ds_read_b64_tr_b16 {vr(f+8,2)}, v{WQ} offset:{o+8192}",
                    f"ds_read_b64_tr_b16 {vr(f+10,2)}, v{WQ} offset:{o+8192+256}",
                    f"ds_read_b64_tr_b16 {vr(f+4,2)}, v{WQ} offset:{o}",
                    f"ds_read_b64_tr_b16 {vr(f+6,2)}, v{WQ} offset:{o+256}"]
        stampc(a, 4)
        a("s_barrier")
        if STAMP == 6: stampc(a, 15)
        for k in (0, 1):
            for r in qreads(k): a(r)
        for k in range(28):
            f = FR + 12*(k % 3)
            r = qreads(k+2) if k+2 < 28 else []
            nout = 5 if k+1 < 28 else 0
            bar = (k+2) < 28 and (k+2) % 8 == 0
            if k == SIGK:
                a("s_waitcnt vmcnt(0)")
                a("s_barrier")
            if bar:
                if STAMP == 6: stampc(a, 9 + 2*(k // 8))
                a("s_barrier")
                if STAMP == 6: stampc(a, 10 + 2*(k // 8))
            a(f"s_waitcnt lgkmcnt({nout+2})")
            a(f"{MF} {vr(QB,16)}, {vr(f+8,4)}, {vr(f,4)}, {'0' if k == 0 else vr(QB,16)}")
            for x in r[:3]: a(x)
            for x in fill(k, 0): a(x)
            a(f"s_waitcnt lgkmcnt({nout + len(r[:3])})")
            a(f"{MF} {vr(QA,16)}, {vr(f+4,4)}, {vr(f,4)}, {'1.0' if k == 0 else vr(QA,16)}")
            for x in r[3:]: a(x)
            for x in fill(k, 1): a(x)
            if 10 <= k <= 13:
                a(f"v_add_u32 v{XQ+((k+2)&3)}, 65536, v{XQ+((k+2)&3)}")
        stampc(a, 5)
        a("v_add_u32 v1, s39, v13")
        a("v_mov_b32 v22, 0")
        a("v_mov_b32 v23, 0")
        a("s_nop 7")
        a(f"v_mov_b32 v14, v{QB+12}")
        a(f"v_mov_b32 v15, v{QB+12}")
        vmul(a, QB, "s65", 8)
        a("v_permlane32_swap_b32 v15, v14")
        cvt(a, 16, QB, 0, 4)
        a("ds_write_b128 v1, v[16:19]")
        vmul(a, QB+8, "s65", 8)
        cvt(a, 16, QB, 4, 6)
        a("s_mov_b32 exec_hi, 0")
        cvt(a, 16, QB, 6, 8)
        a("s_mov_b32 exec_hi, -1")
        a("ds_write_b128 v1, v[20:23] offset:1024")
    def defer_q(a, mats):
        PP = QB + 8
        w = [f"v_mul_f32 v14, {f32(-LOG2E)}, v14", "v_exp_f32 v14, v14", f"v_mov_b32 v{PP+6}, 0", f"v_mov_b32 v{PP+7}, 0",
             "v_add_f32 v14, 1.0, v14", "v_rcp_f32 v14, v14"] + phi_list(QA, QB)
        for i, x in enumerate(w):
            if mats and i % 7 == 0: a(mats.pop(0))
            a(x)
        for x in mats: a(x)
        cvt(a, PP, QA, 0, 6)
        a("s_mov_b32 exec_hi, 0")
        cvt(a, PP, QA, 6, 8)
        a("s_mov_b32 exec_hi, -1")
        a(f"ds_write_b128 v1, {vr(PP,4)} offset:8192")
        a(f"ds_write_b128 v1, {vr(PP+4,4)} offset:9216")
        a("v_lshl_add_u32 v15, v0, 2, s48")
        a("ds_write_b32 v15, v14")
        a("v_sub_f32 v14, 1.0, v14")
    O = [16, 32, 48, 64]; S = [80, 96, 112, 128]; Q = [0, 8, 16, 24]; KV = [32, 48, 64, 80]
    RA = 144
    def ld(dst, off, v="v1", so="s58"):
        return f"buffer_load_dwordx4 {ar(dst,4)}, {v}, {WSR}, {so} offen" + (f" offset:{off}" if off else "") + " sc1"
    adv = ["s_add_u32 s58, s58, 4096"]
    ZR = ar(KV[3]+12, 4)
    zero = lambda d: f"{MF} {vr(d,16)}, {ZR}, {ZR}, 0"
    def pre(a):
        for i in range(4): a(f"v_accvgpr_write_b32 a{KV[3]+12+i}, 0")
        a("v_add_u32 v4, s44, v13")
        a(f"v_mov_b32 v5, {L_CNT}")
        a("v_mov_b32 v6, 1")
    def first_loads(work):
        stampc(a, 7)
        a("v_add_u32 v7, s45, v13")
        a("s_mov_b32 s58, 4096")
        a("s_mov_b32 s59, 8192")
        for f in range(4):
            a(ld(KV[0]+4*f, 1024*f, "v7", "0"))
            a(f"v_add_u32 v{8+f}, s{36+f}, v13")
            a(f"ds_read_b128 {ar(Q[f],4)}, v{8+f}")
            a(f"ds_read_b128 {ar(Q[f]+4,4)}, v{8+f} offset:1024")
        sub = Asm(); work(sub)
        lines = sub.lines
        rest = [ld(KV[n]+4*f, 1024*f, "v7", f"s{57+n}") for n in (1, 2) for f in range(4)]
        gap = int(E("LG", "8")); full = True
        for i, l in enumerate(lines):
            a.lines.append(l)
            if "exec" in l and l.strip().startswith("s_mov"): full = l.strip().endswith("-1")
            if rest and full and i % gap == gap - 1: a(rest.pop(0))
        for x in rest: a(x)
        a("s_mov_b32 s58, 12288")

    for i in range(32): a(f"v_mov_b32 v{accK[0]+i}, 0")
    for s in range(2):
        a(f"v_mov_b32 v{pK[s]+6}, v1"); a(f"v_mov_b32 v{pK[s]+7}, v1")
    a("v_and_b32 v15, 0x33, v0")
    a("v_bfe_u32 v1, v0, 2, 1")
    a("v_lshl_add_u32 v15, v1, 3, v15")
    a("v_bfe_u32 v1, v0, 3, 1")
    a("v_lshl_add_u32 v15, v1, 2, v15")
    a("v_lshlrev_b32 v15, 4, v15")
    a("s_lshl_b32 s58, s25, 1")
    a("s_add_u32 s58, s58, s93")
    a("s_lshl_b32 s58, s58, 2")
    a("s_add_u32 s58, s58, s34")
    a(f"s_mul_i32 s58, s58, {PAD}")
    a("s_lshl_b32 s59, s29, 1")
    a("s_add_u32 s59, s59, s92")
    a("s_lshl_b32 s59, s59, 13")
    a("s_add_u32 s58, s58, s59")
    a("s_add_u32 s59, s58, 4096")
    if TOUCH: a("s_barrier")
    scalars()
    mainloop("B", True)
    cvt_v()
    st = []
    for s in range(2):
        st.append(f"buffer_store_dwordx4 {vr(pV[s],4)}, v13, {WSR}, s{58+s} offen offset:2048 sc1")
        st.append(f"buffer_store_dwordx4 {vr(pV[s]+4,4)}, v13, {WSR}, s{58+s} offen offset:3072 sc1")
    for s in range(2):
        st.append(f"buffer_store_dwordx4 {vr(pK[s],4)}, v15, {WSR}, s{58+s} offen sc1")
        st.append(f"buffer_store_dwordx4 {vr(pK[s]+4,4)}, v15, {WSR}, s{58+s} offen offset:1024 sc1")
    for x in st[:4]: a(x)
    for s in range(2):
        cvt(a, pK[s], accK[s], 0, 6)
        a("s_mov_b32 exec_hi, 0")
        cvt(a, pK[s], accK[s], 6, 8)
        a("s_mov_b32 exec_hi, -1")
        for x in st[4+2*s:6+2*s]: a(x)
    phase1b(lambda k, slot: [])
    a("s_waitcnt lgkmcnt(0)")
    stampc(a, 6)
    a("s_barrier")
    def workB(a):
        pre(a)
        defer_q(a, [zero(d) for d in O + [S[3]]])
    first_loads(workB)
    a("s_branch C_2")

    a.label("C_A")
    for i in range(32): a(f"v_mov_b32 v{accK[0]+i}, 1.0")
    for s in range(2):
        for i in range(8): a(f"v_mov_b32 v{pK[s]+i}, 0")
    if TA[1] and TAE == "0": touch("A", TA[0], TA[1], E("TQ", "A") == "A")
    if TOUCH and TAE != "2": a("s_barrier")
    scalars()
    mainloop("A", False)
    cvt_v()
    pend = phi_list(accK[0], 52) + phi_list(accK[1], 52)
    NF = int(E("NF", "1"))
    def fillA(k, slot):
        if k == 0: return []
        o = pend[:NF]; del pend[:NF]
        return o
    phase1b(fillA)
    D = accK[1]
    APRE = int(E("APRE", "1"))
    kvm = [f"{MF} {vr(D,16)}, {vr(pK[0],4)}, {vr(pV[0],4)}, 0",
           f"{MF} {vr(D,16)}, {vr(pK[0]+4,4)}, {vr(pV[0]+4,4)}, {vr(D,16)}",
           f"{MF} {vr(D,16)}, {vr(pK[1],4)}, {vr(pV[1],4)}, {vr(D,16)}",
           f"{MF} {vr(D,16)}, {vr(pK[1]+4,4)}, {vr(pV[1]+4,4)}, {vr(D,16)}"]
    def part1(a):
        for x in pend: a(x)
        a("s_mov_b64 exec, s[56:57]")
        for s in range(2): cvt(a, pK[s], accK[s])
        a("s_mov_b64 exec, -1")
        a("s_nop 1")
    def part2(a):
        pre(a)
        defer_q(a, kvm + [zero(d) for d in O + [S[3]]])
        a("v_add_u32 v15, s47, v13")
        for q in range(4):
            a(f"ds_write_b128 v15, {vr(D+4*q,4)} offset:{1024*q}")
    if APRE >= 1: part1(a)
    a("s_waitcnt lgkmcnt(0)")
    stampc(a, 6)
    a("s_barrier")
    def workA(a):
        if APRE < 1: part1(a)
        part2(a)
    first_loads(workA)

    a.label("C_2")
    a("v_mov_b32 v2, 0xdddd")
    a("v_mov_b32 v3, 0")
    a("v_mov_b32 v1, v7")
    a("s_mov_b32 s59, 3")
    for s in range(4): a(f"v_add_u32 v{RA+s}, s{40+s}, v13")
    a("s_waitcnt vmcnt(10) lgkmcnt(0)")
    stampc(a, 8)
    a("s_mov_b64 exec, 1")
    a("ds_add_u32 v5, v6 offset:8")
    a("ds_read_b32 v6, v5 offset:20")
    a("s_mov_b64 exec, -1")
    a(f"{MF} {vr(S[0],16)}, {ar(KV[0],4)}, {ar(Q[0],4)}, 0")
    a(f"{MF} {vr(S[0],16)}, {ar(KV[0]+4,4)}, {ar(Q[0]+4,4)}, {vr(S[0],16)}")
    a("s_waitcnt vmcnt(8) lgkmcnt(0)")
    a("v_readfirstlane_b32 s87, v6")
    a("s_nop 8")
    def unit(pos, cur, nxt, prv, slot):
        sc = S[pos & 3]; sn = S[(pos+1) & 3]; sp = S[(pos-1) & 3]
        e = [f"v_exp_f32 v{sc+i}, v{sc+i}" for i in range(16)]
        if nxt: a(f"{MF} {vr(sn,16)}, {ar(KV[nxt[0]],4)}, {ar(Q[nxt[1]],4)}, 0")
        for x in slot[0]: a(x)
        for x in e[0:4]: a(x)
        a(f"{SM} {vr(O[prv[1]],16)}, {ar(KV[prv[0]]+12,4)}, {vr(sp+8,8)}, v2")
        for x in slot[1]: a(x)
        for x in e[4:8]: a(x)
        if nxt: a(f"{MF} {vr(sn,16)}, {ar(KV[nxt[0]]+4,4)}, {ar(Q[nxt[1]]+4,4)}, {vr(sn,16)}")
        for x in slot[2]: a(x)
        for x in e[8:12]: a(x)
        a(f"{SM} {vr(O[cur[1]],16)}, {ar(KV[cur[0]]+8,4)}, {vr(sc,8)}, v2")
        for x in slot[3]: a(x)
        if nxt:
            for _ in range(2 - min(2, len(slot[2]) + len(slot[3]))): a("s_nop 0")
        for x in e[12:16]: a(x)
    LP = int(E("LP", "2"))
    def plain(n, s):
        slot = [[], [], [], []]
        slot[LP].append(ld(KV[(n+3) & 3] + 4*s, 1024*s))
        if s == 3: slot[3] += adv
        if s == 2: slot[3].append("s_waitcnt vmcnt(7)")
        return slot
    a(".p2align 6")
    a.label("C_ATT")
    for n in range(4):
        for s in range(4):
            slot = plain(n, s)
            if n == 3 and s == 1: slot[3].append("s_sub_u32 s59, s59, 1")
            if n == 3 and s == 3: slot[3].append("s_cmp_lg_u32 s59, 0")
            unit(s, (n, s), ((n + (s == 3)) & 3, (s+1) & 3), ((n - (s == 0)) & 3, (s-1) & 3), slot)
    a("s_cbranch_scc1 C_ATT")
    seq = [(0, s) for s in range(4)] + [(1, s) for s in range(4)] + [(n, s) for s in range(4) for n in (2, 3)]
    for i, cur in enumerate(seq):
        nxt = seq[i+1] if i < 15 else None
        prv = seq[i-1] if i > 0 else (3, 3)
        slot = plain(*cur) if i < 4 else [[], [], [], []]
        if i == 6: slot[3].append("s_waitcnt vmcnt(0)")
        w = {11: 0, 13: 1, 15: 2}
        for first, s_ in ((11, 0), (13, 1)):
            if i in (first, first+1):
                for q in range(2):
                    qq = 2*(i - first) + q
                    slot[1 + 2*q].append(f"ds_write_b128 v{RA+s_}, {vr(O[s_]+4*qq,4)} offset:{1024*qq}")
        if i == 15:
            for q in range(4):
                slot[q].append(f"ds_write_b128 v{RA+2}, {vr(O[2]+4*q,4)} offset:{1024*q}")
        unit(i, cur, nxt, prv, slot)
        if i == int(E("XP", "10")):
            if STAMP == 4: stampc(a, 1)
            a("s_barrier")
            if STAMP == 4: stampc(a, 2)
    a("s_setprio 1")
    a("v_mov_b32 v22, 0")
    a(f"{SM} {vr(O[3],16)}, {ar(KV[3]+12,4)}, {vr(S[3]+8,8)}, v2")
    a("v_mov_b32 v23, 0")
    a(f"s_mov_b32 s62, {f32(2.0**-40)}")
    a(f"s_mov_b32 s63, {f32(2.0**40)}")
    a("s_waitcnt lgkmcnt(0)")
    a("s_barrier")
    if STAMP != 6: stampc(a, 9)
    for i in range(12):
        a(f"ds_read_b128 {vr(S[0]+4*i,4)}, v{RA+3} offset:{1024*((i % 3)*4 + i // 3)}")
    for q in range(4):
        a(f"s_waitcnt lgkmcnt({9-3*q})")
        b = S[0] + 12*q
        vadd(a, b, b+4, 4)
        vadd(a, O[3]+4*q, b+8, 4)
        vadd(a, O[3]+4*q, b, 4)
    a(f"v_mov_b32 v6, v{O[3]+12}")
    a(f"v_mov_b32 v7, v{O[3]+12}")
    a("s_nop 1")
    a("v_permlane32_swap_b32 v6, v7")
    a("v_cmp_nge_f32 vcc, v7, s62")
    a("v_cmp_nle_f32 s[64:65], v7, s63")
    a("v_rcp_f32 v7, v7")
    a("s_or_b64 vcc, vcc, s[64:65]")
    a("s_cbranch_scc1 C_FALLBACK")
    a.label("C_FIN")
    a(f"v_mov_b32 v5, {RING + 49152 - 16}")
    a("s_cmp_eq_u32 s27, 3")
    a("s_cbranch_scc0 C_NOCLR")
    a("ds_write_b32 v5, v3")
    a.label("C_NOCLR")
    a("v_mul_f32 v7, v7, v14")
    vmul(a, O[3], "v7", 8)
    cvt(a, 16, O[3], 0, 4)
    a(f"buffer_store_dwordx4 v[16:19], v13, {WSR}, s46 offen sc1")
    vmul(a, O[3]+8, "v7", 8)
    cvt(a, 16, O[3], 4, 6)
    a("s_mov_b32 exec_hi, 0")
    cvt(a, 16, O[3], 6, 8)
    a("s_mov_b32 exec_hi, -1")
    a(f"buffer_store_dwordx4 v[20:23], v13, {WSR}, s46 offen offset:1024 sc1")
    a("s_waitcnt lgkmcnt(0)")
    a("s_barrier")
    if STAMP != 6: stampc(a, 10)
    a("s_mul_i32 s60, s92, 28672")
    a("s_add_u32 s60, s60, 57344")
    a("s_lshl_b32 s61, s92, 6")
    a("v_mov_b32 v1, v5")
    p3_addr(a, 4, "s60", "s61", 8, 9)
    a("s_lshl_b32 s60, s27, 13")
    a(f"s_add_u32 s60, s60, {RING}")
    a("v_add_u32 v8, s60, v13")
    a("s_lshl_b32 s60, s27, 12")
    a(f"s_add_u32 s60, s60, {RING + 32768}")
    a("v_add_u32 v9, s60, v13")
    a("v_xor_b32 v10, 8192, v9")
    a("s_lshl_b32 s60, s30, 1")
    a("s_add_u32 s60, s60, s93")
    a("v_and_b32 v11, 31, v0")
    a("s_lshl_b32 s61, s60, 5")
    a("v_add_u32 v11, s61, v11")
    a("v_mul_u32_u24 v11, 896, v11")
    a("v_lshrrev_b32 v12, 5, v0")
    a("v_lshl_add_u32 v11, v12, 4, v11")
    a(f"s_mul_i32 s60, s60, {PAD}")
    a("s_lshl_b32 s61, s92, 14")
    a("s_add_u32 s60, s60, s61")
    a(f"s_add_u32 s60, s60, {WS_OF + 32768}")
    a("s_and_b32 s61, s30, 0xfe")
    a("s_lshl_b32 s61, s61, 10")
    a(f"s_add_u32 s61, s61, {C_OB}")
    a("s_lshl_b32 s62, s31, 7")
    a("s_lshl_b32 s63, s92, 6")
    a("s_add_u32 s62, s62, s63")
    srd(a, SX, 18, 1835008)
    a("s_lshl_b32 s64, s24, 4")
    a("s_add_u32 s64, s64, s28")
    a("s_lshl_b32 s64, s64, 7")
    a(f"s_add_u32 s64, s64, {C_OB}")
    a("v_mov_b32 v12, 1")
    a("s_mov_b64 exec, 1")
    a("s_waitcnt vmcnt(0)")
    a("ds_add_rtn_u32 v14, v1, v12")
    a("s_waitcnt lgkmcnt(0)")
    a("v_readfirstlane_b32 s69, v14")
    a("s_nop 0")
    a("s_cmp_eq_u32 s69, 3")
    a("s_cbranch_scc0 C_NOSIG")
    a("v_mov_b32 v12, s87")
    a(f"buffer_store_dword v12, v3, {WSR}, s64 offen sc1")
    a.label("C_NOSIG")
    a("s_mov_b64 exec, -1")
    if STAMP != 6: stampc(a, 11)
    a("s_cmp_ge_u32 s32, 28")
    a("s_cbranch_scc1 C_EXIT")
    a("s_cmp_eq_u32 s27, 0")
    a("s_cbranch_scc0 C_OBD")
    a("v_lshlrev_b32 v14, 7, v0")
    poll(a, "OB", WSR, "s61", 16, 14, 12, int(E("OBS", "2")), False)
    a.label("C_OBD")
    a("s_barrier")
    if STAMP != 6: stampc(a, 12)
    NPRE = int(E("NPRE", "10"))
    p3_oloads(a, 13, "s60", NPRE)
    for i in range(8):
        a(f"ds_read_b128 {vr(16+4*i,4)}, v8 offset:{1024*i}")
    p3_gemm(a, 4, [16, 32], [48, 56], False, NPRE, 13, "s60")
    if STAMP != 6: stampc(a, 13)
    a("s_nop 11")
    for i in range(4):
        a(f"ds_write_b128 v9, {vr(32+4*i,4)} offset:{1024*i}")
    a("s_waitcnt lgkmcnt(0)")
    a("s_barrier")
    for i in range(4):
        a(f"ds_read_b128 {vr(32+4*i,4)}, v10 offset:{1024*i}")
    OFL = E("OFL", "")
    for hf in range(2):
        for q in (2*hf, 2*hf+1):
            a(f"s_waitcnt lgkmcnt({3-q})")
            vadd(a, 16+4*q, 32+4*q, 4)
        cvt(a, 48, 16, 4*hf, 4*hf+4)
        a("s_nop 1")
        a(f"v_permlane32_swap_b32 v{48+4*hf}, v{50+4*hf}")
        a(f"v_permlane32_swap_b32 v{49+4*hf}, v{51+4*hf}")
        a(f"buffer_store_dwordx4 {vr(48+4*hf,4)}, v11, {R(SX)}, s62 offen offset:{32*hf} {OFL}")
    a.label("C_EXIT")
    if E("DIAGP", "") == "99":
        a("s_waitcnt vmcnt(0)")
        a("s_memrealtime s[100:101]")
        a("s_waitcnt lgkmcnt(0)")
    if E("DIAGT", ""):
        a("s_xor_b32 s64, s2, %s" % E("DIAGW", "0"))
        a("s_or_b32 s64, s64, s27")
        a("s_cmp_eq_u32 s64, 0")
        a("s_cbranch_scc0 C_DX")
        if E("DIAGP", ""):
            a("s_sub_u32 s100, s100, s96")
            a("s_lshl_b32 s100, s100, 1")
            a("s_add_u32 s96, s96, s100")
        a.label("C_DL")
        a("s_memrealtime s[98:99]")
        a("s_waitcnt lgkmcnt(0)")
        a("s_sub_u32 s98, s98, s96")
        a("s_cmp_lt_i32 s98, %s" % E("DIAGT", ""))
        a("s_cbranch_scc1 C_DL")
        a.label("C_DX")
    if STAMP != 6: stampc(a, 14)
    if STAMP: a("s_waitcnt vmcnt(0)")
    if STAMP != 6: stampc(a, 15)
    stamp_out(a, 16)
    a("s_endpgm")
    a.label("C_FALLBACK")
    Qo = Q[3]; K0 = KV[0]; Sx = S[0]
    def fb_adv():
        a("s_add_u32 s58, s58, 4096")
        a("s_add_u32 s59, s59, 1")
        a("s_and_b32 s61, s59, 15")
        a(f"s_cselect_b32 s61, 0, {PAD-65536}")
        a("s_add_u32 s58, s58, s61")
        a("s_nop 15")
    a("s_mov_b32 s58, 0")
    a("s_mov_b32 s59, 0")
    a(f"v_mov_b32 v8, {f32(float('-inf'))}")
    a.label("C_FB1")
    a(ld(K0, 0, "v4")); a(ld(K0+4, 1024, "v4"))
    a("s_waitcnt vmcnt(0)")
    a(f"{MF} {vr(Sx,16)}, {ar(K0,4)}, {ar(Qo,4)}, 0")
    a(f"{MF} {vr(Sx,16)}, {ar(K0+4,4)}, {ar(Qo+4,4)}, {vr(Sx,16)}")
    fb_adv()
    a("s_nop 15")
    for i in range(8):
        a(f"v_max3_f32 v8, v8, v{Sx+2*i}, v{Sx+2*i+1}")
    a("s_cmp_lt_u32 s59, 64")
    a("s_cbranch_scc1 C_FB1")
    a("v_mov_b32 v9, v8")
    a("s_nop 1")
    a("v_permlane32_swap_b32 v8, v9")
    a("v_max_f32 v8, v8, v9")
    a("v_and_b32 v9, 0xffff0000, v8")
    a("v_sub_f32 v8, v8, v9")
    a("v_and_b32 v10, 0xffff0000, v8")
    a("v_sub_f32 v8, v8, v10")
    a("v_cvt_pk_bf16_f32 v9, -v9, -v10")
    a("v_cvt_pk_bf16_f32 v8, -v8, 0")
    a("s_mov_b32 exec_lo, 0")
    a(f"v_accvgpr_write_b32 a{Qo+6}, v9")
    a(f"v_accvgpr_write_b32 a{Qo+7}, v8")
    a("s_mov_b32 exec_lo, -1")
    for i in range(16): a(f"v_mov_b32 v{O[3]+i}, 0")
    a("s_mov_b32 s58, 0")
    a("s_mov_b32 s59, 0")
    a.label("C_FB2")
    for f in range(4): a(ld(K0+4*f, 1024*f, "v4"))
    a("s_waitcnt vmcnt(0)")
    a(f"{MF} {vr(Sx,16)}, {ar(K0,4)}, {ar(Qo,4)}, 0")
    a(f"{MF} {vr(Sx,16)}, {ar(K0+4,4)}, {ar(Qo+4,4)}, {vr(Sx,16)}")
    fb_adv()
    a("s_nop 15")
    for i in range(16): a(f"v_exp_f32 v{Sx+i}, v{Sx+i}")
    a("s_nop 1")
    a(f"{SM} {vr(O[3],16)}, {ar(K0+8,4)}, {vr(Sx,8)}, v2")
    a(f"{SM} {vr(O[3],16)}, {ar(K0+12,4)}, {vr(Sx+8,8)}, v2")
    a("s_cmp_lt_u32 s59, 64")
    a("s_cbranch_scc1 C_FB2")
    a("s_nop 15")
    a("s_nop 15")
    a(f"v_mov_b32 v6, v{O[3]+12}")
    a(f"v_mov_b32 v7, v{O[3]+12}")
    a("s_nop 1")
    a("v_permlane32_swap_b32 v6, v7")
    a("v_rcp_f32 v7, v7")
    a("s_nop 0")
    a("s_branch C_FIN")

def main():
    a = Asm()
    head = f"""; gated mix of a linear-attention block and a softmax-attention block (S=2048, D=448, H=16), one launch
; @launch grid=(256,1,1) block=(512,1,1) lds=163840
.amdgcn_target "amdgcn-amd-amdhsa--gfx950"
.text
"""
    gen(a)
    out = head + a.text() + '.section .rodata,"a"\n' + kernel_desc(KN, 256, 102, 160)
    path = sys.argv[1] if len(sys.argv) > 1 else f"cdna_kernels/{NAME}.s"
    open(path, "w").write(out)
main()
```

```python
import math, sys, os, struct
from asmlib import *

NAME = "gated_mix__linear_attn_block__mha_block__prompt"
KN = NAME + "_kernel"
WS_KV  = 0
WS_CNT = 5 << 20
WS_KVP = 6 << 20
WS_OF  = 8 << 20
PAD = int(os.environ.get("PAD", "69632"))
WS_ST  = 14 << 20
WS_SIZE = 16 << 20
LOG2E = 1.4426950408889634
QSCALE = LOG2E * 28 ** -0.5
EPS = 1e-6
ONE2 = 0x3F803F80
RING = 114688
L_KVD = RING
L_G   = RING + 16384 + 15360
L_KVF = RING + 16384 + 12288
L_CNT = RING + 16384 + 14336
L_QD  = RING + 32768
L_PQ  = RING + 32768 + 8192
STAMP = int(os.environ.get("STAMP", "0"))
X = set(os.environ.get("X", "").split(","))
MF = "v_mfma_f32_32x32x16_bf16"
SM = "v_smfmac_f32_32x32x32_bf16"
SX, SW, SWA, SWB, SWS, SD, SG = 36, 40, 44, 48, 52, 56, 60
WSR = f"s[{SWS}:{SWS+3}]"
SPIN = 200000
WFL = os.environ.get("WFL", "")
XFL = os.environ.get("XFL", "")

def srd(a, d, lo, size):
    a(f"s_mov_b32 s{d}, s{lo}")
    a(f"s_mov_b32 s{d+1}, s{lo+1}")
    a(f"s_mov_b32 s{d+2}, {size}")
    a(f"s_mov_b32 s{d+3}, 0x20000")
def R(d): return f"s[{d}:{d+3}]"

def stamp(a, i, mode=1):
    if not STAMP: return
    if mode is not None and mode != STAMP: return
    if i == 0: a("s_memrealtime s[96:97]")
    a("s_memrealtime s[94:95]" if os.environ.get("RT") else "s_memtime s[94:95]")
    a("s_waitcnt lgkmcnt(0)")
    a(f"s_mov_b32 s{70+i}, s94")
def stampc(a, i):
    if os.environ.get("DIAGP") == str(i):
        a("s_memrealtime s[100:101]")
        a("s_waitcnt lgkmcnt(0)")
    if STAMP == 5: return
    stamp(a, i, None)
def stamp_out(a, n):
    if not STAMP: return
    a("s_memrealtime s[98:99]")
    a("s_waitcnt lgkmcnt(0)")
    a("s_mov_b64 exec, 1")
    a("s_lshl_b32 s94, s2, 3")
    a("s_add_u32 s94, s94, s35")
    a("s_lshl_b32 s94, s94, 7")
    a(f"s_add_u32 s94, s94, {WS_ST}")
    a("v_mov_b32 v1, 0")
    for i in range(n if STAMP != 5 else 0):
        a(f"v_mov_b32 v2, s{70+i}")
        a(f"buffer_store_dword v2, v1, {WSR}, s94 offen offset:{4*i}")
    a("v_mov_b32 v2, s96")
    a(f"buffer_store_dword v2, v1, {WSR}, s94 offen offset:120")
    a("v_mov_b32 v2, s98")
    a(f"buffer_store_dword v2, v1, {WSR}, s94 offen offset:124")

def dma_lane_w(a, vdst, vt0, vt1, rowstride):
    a(f"v_lshrrev_b32 v{vt0}, 4, v0")
    a(f"v_bfe_u32 v{vt1}, v0, 2, 2")
    a(f"v_and_b32 v{vdst}, 1, v{vt0}")
    if "noswz" not in X: a(f"v_xor_b32 v{vt1}, v{vt1}, v{vdst}")
    a(f"v_lshrrev_b32 v{vdst}, 1, v{vt1}")
    a(f"v_lshl_add_u32 v{vt0}, v{vt0}, 1, v{vdst}")
    a(f"v_mul_u32_u24 v{vt0}, {rowstride}, v{vt0}")
    a(f"v_and_b32 v{vt1}, 1, v{vt1}")
    a(f"v_lshl_add_u32 v{vt0}, v{vt1}, 6, v{vt0}")
    a(f"v_and_b32 v{vt1}, 3, v0")
    a(f"v_lshl_add_u32 v{vdst}, v{vt1}, 4, v{vt0}")

def tr_lane_addr(a, vdst, vb, vt0, vt1, hlshift):
    a(f"v_bfe_u32 v{vt0}, v0, 4, 1")
    a(f"v_lshl_add_u32 v{vb}, v{vt0}, 5, v{vb}")
    a(f"v_and_b32 v{vt0}, 3, v0")
    a(f"v_lshl_add_u32 v{vb}, v{vt0}, 3, v{vb}")
    a(f"v_bfe_u32 v{vt0}, v0, 2, 1")
    a(f"v_lshrrev_b32 v{vt1}, 6, v{vb}")
    a(f"v_lshl_add_u32 v{vt0}, v{vt0}, 1, v{vt1}")
    a(f"v_bfe_u32 v{vt1}, v0, 3, 1")
    a(f"v_xor_b32 v{vt0}, v{vt0}, v{vt1}")
    a(f"v_and_b32 v{vb}, 63, v{vb}")
    a(f"v_lshl_add_u32 v{vb}, v{vt0}, 6, v{vb}")
    a(f"v_lshrrev_b32 v{vt0}, 5, v0")
    a(f"v_lshl_add_u32 v{vt0}, v{vt0}, {hlshift}, v{vt1}")
    a(f"v_lshl_add_u32 v{vdst}, v{vt0}, 8, v{vb}")

C_KV, C_A, C_OA, C_OB = WS_CNT, WS_CNT + 128*128, WS_CNT + 256*128, WS_CNT + 512*128
NFLAG = 768
def poll(a, tag, srdreg, soff, nl, vl, vt, sleep=0, first=True):
    a(f"s_mov_b64 exec, {(1 << nl) - 1}")
    a(f"s_mov_b32 s68, {SPIN}")
    if sleep and first: a(f"s_branch POLL_{tag}")
    a.label(f"POLLS_{tag}")
    if sleep: a(f"s_sleep {sleep}")
    a.label(f"POLL_{tag}")
    a(f"buffer_load_dword v{vt}, v{vl}, {srdreg}, {soff} offen sc1")
    a("s_sub_u32 s68, s68, 1")
    a(f"s_cbranch_scc1 POLLX_{tag}")
    a("s_waitcnt vmcnt(0)")
    a(f"v_cmp_eq_u32 vcc, 0, v{vt}" if tag.startswith("INIT") else f"v_cmp_ne_u32 vcc, s87, v{vt}")
    a(f"s_cbranch_vccnz POLLS_{tag}")
    a.label(f"POLLX_{tag}")
    a("s_mov_b64 exec, -1")

def lds_wait(a, tag, vaddr, off, target, vt, sleep=1):
    a("s_mov_b64 exec, 1")
    a(f"s_mov_b32 s68, {SPIN}")
    a.label(f"LW_{tag}")
    a(f"s_sleep {sleep}")
    a(f"ds_read_b32 v{vt}, v{vaddr} offset:{off}")
    a("s_waitcnt lgkmcnt(0)")
    a(f"v_readfirstlane_b32 s69, v{vt}")
    a("s_sub_u32 s68, s68, 1")
    a(f"s_cbranch_scc1 LWX_{tag}")
    a(f"s_cmp_ge_u32 s69, {target}")
    a(f"s_cbranch_scc0 LW_{tag}")
    a.label(f"LWX_{tag}")
    a("s_mov_b64 exec, -1")

def signal(a, soff, vz, vt):
    a("s_mov_b64 exec, 1")
    a(f"v_mov_b32 v{vt}, s87")
    a(f"buffer_store_dword v{vt}, v{vz}, {WSR}, {soff} offen sc1")
    a("s_mov_b64 exec, -1")

def cvt(a, dst, src, lo=0, hi=8):
    for i in range(lo, hi):
        a(f"v_cvt_pk_bf16_f32 v{dst+i}, v{src+2*i}, v{src+2*i+1}")

def vadd(a, dst, src, n):
    for i in range(n): a(f"v_add_f32 v{dst+i}, v{dst+i}, v{src+i}")
def vmul(a, dst, mul, n):
    for i in range(n): a(f"v_mul_f32 v{dst+i}, {mul}, v{dst+i}")

def phi_list(src, T, n=16, grp=8):
    o = []
    for g0 in range(0, n, grp):
        o += [f"v_fma_f32 v{T+i}, v{src+g0+i}, s64, -s64" for i in range(grp)]
        o += [f"v_exp_f32_e64 v{T+i}, v{T+i} clamp" for i in range(grp)]
        o += [f"v_max_f32 v{src+g0+i}, v{src+g0+i}, v{T+i}" for i in range(grp)]
        o += [f"v_add_f32 v{src+g0+i}, s66, v{src+g0+i}" for i in range(grp)]
    return o

def p3_addr(a, v0a, mat_off_sgpr, swap_sgpr, vt0, vt1):
    a(f"v_mov_b32 v{v0a+1}, 0")
    tr_lane_addr(a, v0a, v0a+1, vt0, vt1, 1)
    a(f"v_add_u32 v{v0a}, {mat_off_sgpr}, v{v0a}")
    a(f"v_xor_b32 v{v0a}, {swap_sgpr}, v{v0a}")
    a(f"v_xor_b32 v{v0a+1}, 64, v{v0a}")
    a(f"v_lshrrev_b32 v{vt0}, 5, v0")
    a(f"v_lshlrev_b32 v{vt0}, 9, v{vt0}")
    a(f"v_sub_u32 v{v0a+2}, v{v0a}, v{vt0}")
    a(f"v_sub_u32 v{v0a+3}, v{v0a+1}, v{vt0}")

def p3_oload(ks, vlane16, so):
    o = [f"buffer_load_dwordx4 {ar(4*ks,4)}, v{vlane16}, {WSR}, {so} offen offset:{1024*(ks&3)} sc1"]
    if ks & 3 == 3 and ks < 15: o.append(f"s_add_u32 {so}, {so}, 4096")
    return o

def p3_gemm(a, va, ACC, WF, first_zero, npre, vlane16, so):
    def reads(ks):
        f = WF[ks & 1]; hh, m = ks >> 1, ks & 1
        o = (14*hh + 8*m) * 256
        last = (ks == 15)
        return [f"ds_read_b64_tr_b16 {vr(f,2)}, v{va} offset:{o}",
                f"ds_read_b64_tr_b16 {vr(f+2,2)}, v{va+2 if last else va} offset:{o+1024}",
                f"ds_read_b64_tr_b16 {vr(f+4,2)}, v{va+1} offset:{o}",
                f"ds_read_b64_tr_b16 {vr(f+6,2)}, v{va+3 if last else va+1} offset:{o+1024}"]
    for x in reads(0): a(x)
    issued = npre
    for ks in range(16):
        f = WF[ks & 1]
        rd = reads(ks+1) if ks < 15 else []
        c0 = "0" if (first_zero and ks == 0) else vr(ACC[0], 16)
        c1 = "0" if (first_zero and ks == 0) else vr(ACC[1], 16)
        if issued < 16:
            for x in p3_oload(issued, vlane16, so): a(x)
            issued += 1
        a(f"s_waitcnt vmcnt({issued-1-ks}) lgkmcnt(2)")
        a(f"{MF} {vr(ACC[0],16)}, {vr(f,4)}, {ar(4*ks,4)}, {c0}")
        for x in rd[:2]: a(x)
        a(f"s_waitcnt lgkmcnt({2 if rd else 0})")
        a(f"{MF} {vr(ACC[1],16)}, {vr(f+4,4)}, {ar(4*ks,4)}, {c1}")
        for x in rd[2:]: a(x)

def p3_oloads(a, vlane16, so, n):
    for ks in range(n):
        for x in p3_oload(ks, vlane16, so): a(x)

E = lambda k, d: os.environ.get(k, d)
SIGK = int(E("SIGK", "6"))
ROT = int(E("ROT", "0"))
TOUCH = E("TB", "1,0") != "1,0" or E("TA", "1,0") != "1,0"
PQC = int(E("PQC", "-1"))
BQE = E("BQE", "0") == "1"
def gen(a):
    kernel_head(a, KN)
    a("s_cmp_ge_u32 s2, 256")
    a("s_cbranch_scc1 L_END")
    a("s_load_dwordx16 s[4:19], s[0:1], 0")
    a("s_load_dwordx4 s[20:23], s[0:1], 64")
    if STAMP or E("DIAGT", ""):
        a("s_memrealtime s[96:97]")
        a("s_memtime s[70:71]")
    a("v_lshrrev_b32 v1, 6, v0")
    a("v_and_b32 v0, 63, v0")
    a("v_readfirstlane_b32 s27, v1")
    a("s_and_b32 s64, s2, 7")
    a("s_lshr_b32 s32, s2, 3")
    a("s_lshr_b32 s34, s64, 1")
    a("s_and_b32 s33, s64, 1")
    a("s_lshr_b32 s29, s32, 3")
    a("s_lshl_b32 s24, s34, 2")
    a("s_add_u32 s24, s24, s29")
    a("s_and_b32 s26, s32, 1")
    a("s_bfe_u32 s25, s32, 0x20001")
    a("s_lshl_b32 s65, s33, 2")
    a("s_add_u32 s25, s25, s65")
    a("s_lshl_b32 s28, s25, 1")
    a("s_cmp_eq_u32 s26, s33" if E("HS", "0") == "0" else "s_cmp_lg_u32 s26, s33")
    a("s_addc_u32 s28, s28, 0")
    a("s_mul_i32 s30, s32, 37")
    a("s_lshr_b32 s30, s30, 8")
    a("s_mul_i32 s31, s30, 7")
    a("s_sub_u32 s31, s32, s31")
    a("s_lshl_b32 s64, s64, 2")
    a("s_add_u32 s30, s30, s64")
    a("s_mov_b32 s35, s27")
    a("s_cmp_ge_u32 s27, 4")
    a("s_cbranch_scc0 L_COMPUTE")
    helper(a)
    compute(a)
    a.label("L_END")
    a("s_endpgm")
    a.label("L_CODE_END")

def helper(a):
    a("s_sub_u32 s27, s27, 4")
    if ROT:
        a("s_and_b32 s64, s32, 7")
        a("s_lshr_b32 s64, s64, %s" % E("ROTS", "0"))
        a("s_add_u32 s64, s64, s29")
        if ROT == 2:
            a("s_and_b32 s64, s64, 1")
            a("s_mul_i32 s80, s64, %s" % E("ROTO", "3"))
        elif ROT == 3:
            a("s_mul_i32 s65, s64, 86")
            a("s_lshr_b32 s65, s65, 8")
            a("s_mul_i32 s65, s65, 3")
            a("s_sub_u32 s64, s64, s65")
            a("s_mul_i32 s80, s64, 5")
            a("s_lshr_b32 s80, s80, 1")
        elif ROT == 4:
            a("s_and_b32 s64, s64, 3")
            a("s_lshl_b32 s80, s64, 1")
        for i in range(1, 7):
            a(f"s_add_u32 s{80+i}, s{79+i}, 1")
            a(f"s_cmp_eq_u32 s{80+i}, 7")
            a(f"s_cselect_b32 s{80+i}, 0, s{80+i}")
    a("v_lshrrev_b32 v1, 3, v0")
    a("s_lshl_b32 s64, s24, 7")
    a("s_lshl_b32 s65, s27, 5")
    a("s_add_u32 s64, s64, s65")
    a("v_add_u32 v1, s64, v1")
    a("v_mul_u32_u24 v1, 896, v1")
    a("v_lshrrev_b32 v2, 4, v0")
    a("v_and_b32 v3, 7, v0")
    a("v_xor_b32 v2, v2, v3")
    a("v_lshl_add_u32 v2, v2, 4, v1")
    a("v_xor_b32 v3, 64, v2")
    a("v_add_u32 v3, 7168, v3")
    a("v_add_u32 v4, 14336, v2")
    a("v_add_u32 v5, 14336, v3")
    dma_lane_w(a, 6, 10, 11, 2688)
    a("s_mul_i32 s64, s27, 43008")
    a("s_mul_i32 s65, s25, 112")
    a("s_add_u32 s64, s64, s65")
    a("s_add_u32 s64, s64, 896")
    a("v_add_u32 v6, s64, v6")
    a("v_add_u32 v7, 21504, v6")
    a("v_add_u32 v8, 896, v6")
    a("v_add_u32 v9, 896, v7")
    a("s_lshl_b32 s66, s27, 12")
    a("s_lshl_b32 s67, s27, 11")
    a(f"s_add_u32 s67, s67, {RING}")
    a(f"s_mov_b32 s{SX+2}, 1835008")
    a(f"s_mov_b32 s{SX+3}, 0x20000")
    a(f"s_mov_b32 s{SW+2}, 1204224")
    a(f"s_mov_b32 s{SW+3}, 0x20000")
    a("s_cmp_eq_u32 s26, 0")
    a("s_waitcnt lgkmcnt(0)")
    a(f"s_mov_b32 s{SX}, s4")
    a(f"s_mov_b32 s{SX+1}, s5")
    a(f"s_cselect_b32 s{SW}, s6, s12")
    a(f"s_cselect_b32 s{SW+1}, s7, s13")
    vm = []
    def xload(c):
        for q in range(4):
            a(f"s_add_u32 m0, s66, {c*16384 + q*1024}")
            a((f"s_lshl_b32 s64, s{80+c}, 7" if ROT else f"s_mov_b32 s64, {c*128}") if q == 0 else "s_nop 0")
            a(f"buffer_load_dwordx4 v{2+q}, {R(SX)}, s64 offen lds"); vm.append(("x", c))
    def wload(c):
        for pt in range(2):
            for u in range(2):
                a(f"s_add_u32 m0, s67, {(c%3)*16384 + pt*8192 + u*1024}")
                a((f"s_mul_i32 s65, s{80+c}, 172032" if ROT else f"s_mov_b32 s65, {c*172032}") if pt + u == 0 else "s_nop 0")
                a(f"buffer_load_dwordx4 v{6+2*pt+u}, {R(SW)}, s65 offen lds"); vm.append(("w", c))
    def qload(mat, part):
        slot = {(1, 0): 1, (1, 1): 2, (0, 0): 0, (0, 1): 1}[(mat, part)]
        for u in range(3 if part else 4):
            a(f"s_add_u32 m0, s{89 if part else 88}, {slot*16384 + u*1024}")
            a(f"s_mov_b32 s65, {u*43008}")
            a(f"buffer_load_dwordx4 v{10+part}, {R(SWA if mat == 0 else SWB)}, s65 offen lds"); vm.append(("q", mat, part))
    def waitfor(*tags):
        last = max(i for i, tg in enumerate(vm) if tg in tags)
        a(f"s_waitcnt vmcnt({len(vm)-1-last})")
    def patch(part):
        if part: a("s_mov_b32 exec_hi, 0xffff")
        a(f"ds_write_b16 v{15+part}, v{12+part}")
        if part: a("s_mov_b32 exec_hi, -1")
    def initcheck(tag):
        a("v_readfirstlane_b32 s87, v17")
        a("s_nop 0")
        a("s_cmp_lg_u32 s87, 0")
        a(f"s_cbranch_scc1 H_INIT_OK{tag}")
        poll(a, "INIT" + tag, R(SD), "0", 1, 18, 17)
        a("v_readfirstlane_b32 s87, v17")
        a.label(f"H_INIT_OK{tag}")
    stamp(a, 1, 2)
    xload(0); wload(0)
    srd(a, SWA, 6, 1204224); srd(a, SWB, 12, 1204224)
    srd(a, SWS, 22, WS_SIZE); srd(a, SD, 20, 256); srd(a, SG, 16, 896)
    a("v_lshrrev_b32 v10, 2, v0")
    a("v_mul_u32_u24 v10, 2688, v10")
    a("v_and_b32 v11, 3, v0")
    a("v_lshl_add_u32 v10, v11, 4, v10")
    a("s_mul_i32 s65, s28, 56")
    a("s_mul_i32 s64, s27, 129024")
    a("s_add_u32 s64, s64, s65")
    a(f"s_add_u32 s64, s64, {256*2688}")
    a("v_add_u32 v11, s64, v10")
    a("s_mul_i32 s64, s27, 172032")
    a("s_add_u32 s64, s64, s65")
    a("v_add_u32 v10, s64, v10")
    a("s_lshl_b32 s88, s27, 12")
    a(f"s_add_u32 s88, s88, {RING}")
    a("s_mul_i32 s89, s27, 3072")
    a(f"s_add_u32 s89, s89, {RING}")
    a(f"s_add_u32 s64, s88, {16384 + 56}")
    a("v_lshl_add_u32 v15, v0, 6, s64")
    a(f"s_add_u32 s64, s89, {32768 + 56}")
    a("v_lshl_add_u32 v16, v0, 6, s64")
    a("s_lshl_b32 s64, s27, 7")
    a("v_lshl_add_u32 v14, v0, 1, s64")
    a("s_mul_i32 s64, s27, 96")
    a("s_add_u32 s64, s64, 512")
    a("v_lshl_add_u32 v17, v0, 1, s64")
    a("v_mov_b32 v18, 0")
    if TOUCH: a("s_barrier")
    XE = int(E("XE", "0"))
    xload(1); wload(1)
    if XE: xload(2)
    stamp(a, 1); stamp(a, 2, 2)
    for c in range(5):
        waitfor(("x", c), ("w", c)); a("s_barrier"); stamp(a, 3+c, 2)
        if c == 0: stamp(a, 2)
        if not XE: xload(c+2)
        wload(c+2)
        if XE and c < 4: xload(c+3)
        if c == 1:
            a(f"buffer_load_ushort v12, v14, {R(SG)}, 0 offen"); vm.append(("g", 0))
            a(f"buffer_load_ushort v13, v17, {R(SG)}, 0 offen"); vm.append(("g", 1))
        if c == 3:
            a(f"buffer_load_dword v17, v18, {R(SD)}, 0 offen sc1"); vm.append(("d", 0))
    waitfor(("x",5),("w",5)); a("s_barrier"); stamp(a, 8, 2)
    qload(1, 0)
    waitfor(("x",6),("w",6)); a("s_barrier"); stamp(a, 9, 2)
    qload(1, 1)
    a("s_lshl_b32 s64, s25, 4")
    a("s_add_u32 s64, s64, s24")
    a("s_lshl_b32 s64, s64, 7")
    a(f"s_add_u32 s66, s64, {C_KV}")
    initcheck("A")
    a("s_waitcnt vmcnt(3)"); patch(0)
    a("s_waitcnt vmcnt(0)"); patch(1)
    a("s_waitcnt lgkmcnt(0)")
    a("s_barrier"); stamp(a, 10, 2)
    qload(0, 0)
    a("s_barrier")
    qload(0, 1)
    a("s_xor_b32 s64, s27, 3")
    a("s_xor_b32 s65, s26, 1")
    a("s_or_b32 s64, s64, s65")
    a("s_barrier")
    a("s_cbranch_scc1 H_NOSIGKV")
    signal(a, "s66", 18, 19)
    a("s_waitcnt vmcnt(4)")
    a("s_barrier")
    a("s_waitcnt vmcnt(1)")
    a("s_branch H_SIGD")
    a.label("H_NOSIGKV")
    a("s_waitcnt vmcnt(3)")
    a("s_barrier")
    a("s_waitcnt vmcnt(0)")
    a.label("H_SIGD")
    a("s_barrier")
    a(f"v_mov_b32 v1, {L_CNT}")
    for i in range(8, 12): a(f"v_mov_b32 v{i}, 0")
    a("ds_write_b128 v1, v[8:11]")
    a("s_nop 1")
    a("v_mov_b32 v9, s87")
    a("ds_write_b128 v1, v[8:11] offset:16")
    a("v_lshlrev_b32 v2, 4, v0")
    dma_lane_w(a, 3, 4, 5, 896)
    a("s_mul_i32 s64, s27, 7168")
    a("s_lshl_b32 s65, s31, 7")
    a("s_add_u32 s64, s64, s65")
    a("v_add_u32 v3, s64, v3")
    a("s_lshr_b32 s65, s27, 1")
    a("s_mul_i32 s64, s65, 28672")
    a("s_lshl_b32 s65, s65, 6")
    p3_addr(a, 4, "s64", "s65", 8, 9)
    srd(a, SWA, 8, 401408); srd(a, SWB, 14, 401408)
    a("s_lshl_b32 s65, s25, 2")
    a("s_add_u32 s65, s65, s27")
    a("s_lshl_b32 s65, s65, 9")
    a(f"s_add_u32 s65, s65, {C_KV}")
    a("v_lshlrev_b32 v10, 7, v0")
    stamp(a, 3)
    poll(a, "KV", WSR, "s65", 4, 10, 11, int(E("KS", "1")))
    a("s_waitcnt lgkmcnt(0)")
    a("s_barrier")
    a("s_setprio 2")
    stamp(a, 4); stamp(a, 1, 3); stamp(a, 1, 7)
    PQ, G, KF, NUM, PA = 80, 88, 92, 100, 116
    def wo_dma(tag, srdreg, base, lo, hi, depth):
        if hi <= lo: return
        a("s_lshl_b32 s66, s27, 10")
        a(f"s_add_u32 s66, s66, {base + lo*4096}")
        a(f"s_mov_b32 s63, {lo*28672}")
        a.label(f"H_WO{tag}")
        a("s_mov_b32 m0, s66")
        a("s_add_u32 s66, s66, 4096")
        a(f"buffer_load_dwordx4 v3, {R(srdreg)}, s63 offen lds")
        a("s_add_u32 s63, s63, 28672")
        a(f"s_waitcnt vmcnt({depth})")
        a(f"s_cmp_lt_u32 s63, {hi*28672}")
        a(f"s_cbranch_scc1 H_WO{tag}")
    W1 = int(E("W1", "0"))
    a("s_cmp_ge_u32 s32, 28")
    a("s_cbranch_scc1 H_NOWO0")
    wo_dma("0", SWA, 0, 0, W1, int(E("WOD0", "2")))
    a.label("H_NOWO0")
    if "hskip" in X:
        a("s_branch H_SKIP")
    lds_wait(a, "C0", 1, 8, 4, 9)
    stamp(a, 2, 7)
    a("s_lshl_b32 s64, s27, 11")
    a(f"s_add_u32 s64, s64, {L_PQ}")
    a("v_add_u32 v8, s64, v2")
    a(f"ds_read_b128 {vr(PQ,4)}, v8")
    a(f"ds_read_b128 {vr(PQ+4,4)}, v8 offset:1024")
    a("s_lshl_b32 s64, s27, 8")
    a(f"s_add_u32 s64, s64, {L_G}")
    a("v_lshl_add_u32 v8, v0, 2, s64")
    a(f"ds_read_b32 v{G}, v8")
    a("s_cmp_ge_u32 s27, 2")
    a("s_cselect_b32 s64, s26, 1")
    a("s_cmp_eq_u32 s64, 0")
    a("s_cbranch_scc0 H_NOKVP")
    a("s_and_b32 s65, s27, 1")
    a("s_lshl_b32 s64, s65, 12")
    a(f"s_add_u32 s64, s64, {L_KVD}")
    a("v_add_u32 v8, s64, v2")
    for i in range(8):
        a(f"ds_read_b128 {vr(16+4*i,4)}, v8 offset:{1024*(i&3) + 8192*(i>>2)}")
    a("s_lshl_b32 s64, s25, 1")
    a("s_add_u32 s64, s64, s65")
    a(f"s_mul_i32 s64, s64, {PAD}")
    a("s_lshl_b32 s65, s24, 12")
    a("s_add_u32 s64, s64, s65")
    a(f"s_add_u32 s64, s64, {WS_KVP}")
    a("s_waitcnt lgkmcnt(0)")
    vadd(a, 16, 32, 16)
    for q in range(4):
        a(f"buffer_store_dwordx4 {vr(16+4*q,4)}, v2, {WSR}, s64 offen offset:{1024*q} sc1")
    a("s_lshl_b32 s64, s25, 4")
    a("s_add_u32 s64, s64, s24")
    a("s_lshl_b32 s64, s64, 7")
    a(f"s_add_u32 s64, s64, {C_A}")
    a("v_mov_b32 v11, 1")
    stamp(a, 3, 7)
    a("s_waitcnt vmcnt(0)")
    stamp(a, 4, 7)
    a("s_mov_b64 exec, 1")
    a("ds_add_rtn_u32 v9, v1, v11 offset:12")
    a("s_waitcnt lgkmcnt(0)")
    a("v_readfirstlane_b32 s69, v9")
    a("s_mov_b64 exec, -1")
    a("s_cmp_eq_u32 s69, 1")
    a("s_cbranch_scc0 H_NOKVP")
    signal(a, "s64", 10, 11)
    a.label("H_NOKVP")
    stamp(a, 5, 7)
    a("s_cmp_ge_u32 s32, 28")
    a("s_cbranch_scc1 H_NOWOA")
    wo_dma("A", SWA, 0, W1, 14, int(E("WOD", "5")))
    wo_dma("B", SWB, 57344, 0, 14, int(E("WOD", "5")))
    a.label("H_NOWOA")
    stamp(a, 2, 3); stamp(a, 6, 7)
    a("s_lshl_b32 s64, s25, 11")
    a(f"s_add_u32 s64, s64, {C_A}")
    if "nopolla" not in X:
        a("s_cmp_eq_u32 s27, 0")
        a("s_cbranch_scc0 H_AW")
        poll(a, "A", WSR, "s64", 16, 10, 11, int(E("AS", "16")))
        a("v_mov_b32 v11, 1")
        a("ds_write_b32 v1, v11 offset:16")
        a("s_branch H_AD")
        a.label("H_AW")
        lds_wait(a, "A", 1, 16, 1, 9, 4)
        a.label("H_AD")
    stamp(a, 3, 3); stamp(a, 7, 7)
    a(f"s_mul_i32 s64, s28, {PAD}")
    a("s_lshl_b32 s65, s27, 10")
    a("s_add_u32 s64, s64, s65")
    a(f"s_add_u32 s64, s64, {WS_KVP}")
    KD = int(E("KD", "2"))
    for i in range(16):
        if "nokvl" not in X: a(f"buffer_load_dwordx4 {vr(16+4*i,4)}, v2, {WSR}, s64 offen sc1")
        a("s_add_u32 s64, s64, 4096")
        if i > KD:
            a(f"s_waitcnt vmcnt({KD})")
            if "nokva" not in X: vadd(a, 16, 16+4*(i-KD), 4)
    stamp(a, 4, 3)
    for j in range(16-KD, 16):
        a(f"s_waitcnt vmcnt({15-j})")
        vadd(a, 16, 16+4*j, 4)
    stamp(a, 5, 3)
    a("v_cvt_pk_bf16_f32 v16, v16, v17")
    a("v_cvt_pk_bf16_f32 v17, v18, v19")
    a("s_lshr_b32 s64, s27, 1")
    a("s_lshl_b32 s64, s64, 10")
    a("s_and_b32 s65, s27, 1")
    a("s_lshl_b32 s65, s65, 3")
    a("s_add_u32 s64, s64, s65")
    a(f"s_add_u32 s64, s64, {L_KVF}")
    a("v_add_u32 v8, s64, v2")
    a("ds_write_b64 v8, v[16:17]")
    a("v_mov_b32 v11, 1")
    a("s_waitcnt lgkmcnt(0)")
    a("s_mov_b64 exec, 1")
    a("ds_add_u32 v1, v11")
    lds_wait(a, "C1", 1, 0, 4, 9)
    stamp(a, 6, 3)
    a(f"v_add_u32 v8, {L_KVF}, v2")
    a(f"ds_read_b128 {vr(KF,4)}, v8")
    a(f"ds_read_b128 {vr(KF+4,4)}, v8 offset:1024")
    a("s_waitcnt lgkmcnt(0)")
    a(f"{MF} {vr(NUM,16)}, {vr(KF,4)}, {vr(PQ,4)}, 0")
    a(f"{MF} {vr(NUM,16)}, {vr(KF+4,4)}, {vr(PQ+4,4)}, {vr(NUM,16)}")
    a("s_lshl_b32 s64, s24, 2")
    a("s_add_u32 s64, s64, s27")
    a(f"s_mul_i32 s64, s64, {PAD}")
    a("s_lshl_b32 s65, s28, 11")
    a("s_add_u32 s64, s64, s65")
    a(f"s_add_u32 s64, s64, {WS_OF}")
    a(f"v_mov_b32 v{PA+6}, 0")
    a(f"v_mov_b32 v{PA+7}, 0")
    a("s_nop 15")
    a(f"v_mov_b32 v8, v{NUM+12}")
    a(f"v_mov_b32 v9, v{NUM+12}")
    a("s_nop 1")
    a("v_permlane32_swap_b32 v8, v9")
    a(f"v_add_f32 v9, {f32(EPS)}, v9")
    a("v_rcp_f32 v9, v9")
    a("s_nop 0")
    a(f"v_mul_f32 v9, v9, v{G}")
    vmul(a, NUM, "v9", 16)
    cvt(a, PA, NUM, 0, 6)
    a("s_mov_b32 exec_hi, 0")
    cvt(a, PA, NUM, 6, 8)
    a("s_mov_b32 exec_hi, -1")
    a(f"buffer_store_dwordx4 {vr(PA,4)}, v2, {WSR}, s64 offen sc1")
    a(f"buffer_store_dwordx4 {vr(PA+4,4)}, v2, {WSR}, s64 offen offset:1024 sc1")
    stamp(a, 7, 3)
    a("s_waitcnt vmcnt(0)")
    stamp(a, 8, 3)
    a("s_mov_b64 exec, 1")
    a("ds_add_rtn_u32 v9, v1, v11 offset:4")
    a("s_waitcnt lgkmcnt(0)")
    a("v_readfirstlane_b32 s69, v9")
    a("s_mov_b64 exec, -1")
    a("s_cmp_eq_u32 s69, 3")
    a("s_cbranch_scc0 H_NOSIGOA")
    if "hskip" in X:
        a.label("H_SKIP")
        a("s_cmp_eq_u32 s27, 0")
        a("s_cbranch_scc0 H_NOSIGOA")
    a("s_lshl_b32 s64, s24, 4")
    a("s_add_u32 s64, s64, s28")
    a("s_lshl_b32 s64, s64, 7")
    a(f"s_add_u32 s64, s64, {C_OA}")
    signal(a, "s64", 10, 11)
    a.label("H_NOSIGOA")
    stamp(a, 5); stamp(a, 9, 3)
    a("s_setprio 0")
    a("s_barrier")
    a("s_cmp_ge_u32 s32, 28")
    a("s_cbranch_scc1 H_NOP3B")
    stamp(a, 6)
    a("s_and_b32 s64, s30, 0xfe")
    a("s_lshr_b32 s65, s27, 1")
    a("s_add_u32 s64, s64, s65")
    a("s_lshl_b32 s64, s64, 10")
    a(f"s_add_u32 s64, s64, {C_OA}")
    a("s_and_b32 s62, s27, 1")
    a("s_lshl_b32 s65, s30, 1")
    a("s_add_u32 s62, s62, s65")
    a(f"s_mul_i32 s62, s62, {PAD}")
    a("s_lshr_b32 s65, s27, 1")
    a("s_lshl_b32 s65, s65, 14")
    a("s_add_u32 s62, s62, s65")
    a(f"s_add_u32 s62, s62, {WS_OF}")
    NE = int(E("NE", "8"))
    a("s_mov_b64 exec, 0xff")
    a(f"buffer_load_dword v11, v10, {WSR}, s64 offen sc1")
    a("s_waitcnt vmcnt(0)")
    a("v_cmp_ne_u32 vcc, s87, v11")
    a("s_mov_b64 exec, -1")
    a("s_cbranch_vccnz H_OALATE")
    p3_oloads(a, 2, "s62", NE)
    a("s_barrier")
    a("s_barrier")
    a("s_branch H_OADONE")
    a.label("H_OALATE")
    a("s_barrier")
    a("s_barrier")
    poll(a, "OA", WSR, "s64", 8, 10, 11, 2)
    p3_oloads(a, 2, "s62", NE)
    a.label("H_OADONE")
    NPRE = 16
    for ks in range(NE, 16):
        for x in p3_oload(ks, 2, "s62"): a(x)
    stamp(a, 7); stamp(a, 10, 3)
    p3_gemm(a, 4, [16, 32], [48, 56], True, NPRE, 2, "s62")
    stamp(a, 8)
    a("s_lshl_b32 s64, s27, 13")
    a(f"s_add_u32 s64, s64, {RING}")
    a("v_add_u32 v8, s64, v2")
    a("s_nop 9")
    for i in range(8):
        a(f"ds_write_b128 v8, {vr(16+4*i,4)} offset:{1024*i}")
    a("s_waitcnt lgkmcnt(0)")
    stamp(a, 9)
    a("s_barrier")
    a("s_branch H_EXIT")
    a.label("H_NOP3B")
    a("s_barrier")
    a("s_barrier")
    a.label("H_EXIT")
    stamp(a, 10)
    stamp_out(a, 11)
    a("s_endpgm")

def compute(a):
    a.label("L_COMPUTE")
    XA, WA, WB, XQ, WQ = 2, 6, 7, 8, 12
    FR = 16; accK = [64, 80]; accV = [96, 112]; pK = [128, 136]; pV = [144, 152]
    QA, QB = 96, 112
    def touch(tag, c0, n, withq):
        a("s_lshr_b32 s60, s32, 1")
        a("s_cmp_eq_u32 s27, 3")
        if withq:
            a(f"s_cbranch_scc0 C_T0{tag}")
            srd(a, SWA, 6, 1204224); srd(a, SWB, 12, 1204224)
            a("s_mul_i32 s60, s60, 7")
            a("v_lshrrev_b32 v17, 2, v0")
            a("v_add_u32 v17, s60, v17")
            a("v_lshl_add_u32 v17, v17, 2, s34")
            a("v_mul_u32_u24 v17, 2688, v17")
            a("v_and_b32 v16, 3, v0")
            a("v_lshl_add_u32 v17, v16, 7, v17")
            a("s_mul_i32 s62, s33, 384")
            a("s_mov_b64 exec, 0x0fffffff")
            a(f"buffer_load_dword a88, v17, {R(SWA)}, s62 offen")
            a(f"buffer_load_dword a89, v17, {R(SWB)}, s62 offen")
            if E("TWO", "1") == "1":
                srd(a, SWA, 8, 401408); srd(a, SWB, 14, 401408)
                a("s_lshr_b32 s60, s32, 1")
                a("s_lshl_b32 s60, s60, 3")
                a("s_and_b32 s61, s2, 7")
                a("s_add_u32 s60, s60, s61")
                a("s_mul_i32 s60, s60, 25")
                a("v_add_u32 v17, s60, v0")
                a("v_lshlrev_b32 v17, 7, v17")
                a("s_mov_b64 exec, 0x1ffffff")
                a(f"buffer_load_dword a90, v17, {R(SWA)}, 0 offen")
                a(f"buffer_load_dword a91, v17, {R(SWB)}, 0 offen")
            a("s_mov_b64 exec, -1")
            a(f"s_branch C_TD{tag}")
            a.label(f"C_T0{tag}")
        else:
            a(f"s_cbranch_scc1 C_TD{tag}")
        a("s_cmp_eq_u32 s27, 0")
        a(f"s_cbranch_scc0 C_T1{tag}")
        srd(a, SW, 4, 1835008)
        a("s_lshl_b32 s61, s34, 9")
        a("s_lshl_b32 s60, s60, 5")
        a("s_add_u32 s60, s60, s61")
        a("v_and_b32 v17, 31, v0")
        a("v_add_u32 v17, s60, v17")
        a("v_mul_u32_u24 v17, 896, v17")
        a("v_lshrrev_b32 v16, 5, v0")
        a("v_lshl_add_u32 v17, v16, 7, v17")
        a(f"s_mov_b32 s62, {128*c0}")
        a("s_mov_b32 s63, 256")
        a(f"s_branch C_T2{tag}")
        a.label(f"C_T1{tag}")
        a("s_cmp_eq_u32 s27, 1")
        a(f"s_cselect_b32 s{SW}, s12, s6")
        a(f"s_cselect_b32 s{SW+1}, s13, s7")
        a(f"s_mov_b32 s{SW+2}, 1204224")
        a(f"s_mov_b32 s{SW+3}, 0x20000")
        a("v_lshrrev_b32 v17, 5, v0")
        a("v_lshlrev_b32 v17, 6, v17")
        a("v_bfe_u32 v16, v0, 3, 2")
        a("s_lshl_b32 s60, s60, 2")
        a("v_add3_u32 v17, v17, v16, s60")
        a("v_mul_u32_u24 v17, 2688, v17")
        a("v_bfe_u32 v16, v0, 2, 1")
        a("v_mul_u32_u24 v16, 896, v16")
        a("v_add_u32 v17, v17, v16")
        a("v_and_b32 v16, 3, v0")
        a("v_lshl_add_u32 v17, v16, 7, v17")
        a("s_mul_i32 s62, s33, 384")
        a(f"s_add_u32 s62, s62, {896 + 172032*c0}")
        a(f"s_mov_b32 s63, {2*172032}")
        a.label(f"C_T2{tag}")
        for i in range((n+1)//2):
            if 2*i+1 == n: a("s_mov_b32 exec_hi, 0")
            a(f"buffer_load_dword a{88+i}, v17, {R(SW)}, s62 offen")
            if 2*i+1 == n: a("s_mov_b32 exec_hi, -1")
            if 2*i+2 < n: a("s_add_u32 s62, s62, s63")
        a.label(f"C_TD{tag}")
    TB = [int(v) for v in E("TB", "1,0").split(",")]
    TA = [int(v) for v in E("TA", "1,0").split(",")]
    a("s_waitcnt lgkmcnt(0)")
    if TB[1]:
        a("s_cmp_eq_u32 s26, 0")
        a("s_cbranch_scc1 C_NTB")
        touch("B", TB[0], TB[1], E("TQ", "A") == "B")
        a.label("C_NTB")
    TAE = E("TAE", "0")
    if TA[1] and TAE == "1":
        a("s_cmp_eq_u32 s26, 0")
        a("s_cbranch_scc0 C_NTA")
        touch("A", TA[0], TA[1], E("TQ", "A") == "A")
        a.label("C_NTA")
    srd(a, SWS, 22, WS_SIZE)
    a("s_xor_b32 s64, s27, 3")
    a("s_xor_b32 s65, s2, 8")
    a("s_or_b32 s64, s65, s64")
    a("s_cmp_eq_u32 s64, 0")
    a("s_cbranch_scc0 C_NOINIT")
    a("s_memrealtime s[64:65]")
    srd(a, SD, 20, 256)
    a("v_mov_b32 v21, 0")
    a("s_waitcnt lgkmcnt(0)")
    a("s_lshl_b32 s64, s64, 1")
    a("s_or_b32 s64, s64, 1")
    a("v_mov_b32 v22, s64")
    a("s_mov_b64 exec, 1")
    a(f"buffer_store_dword v22, v21, {R(SD)}, 0 offen sc1")
    a("s_mov_b64 exec, -1")
    a.label("C_NOINIT")
    a("s_lshr_b32 s92, s27, 1")
    a("s_and_b32 s93, s27, 1")
    a("v_and_b32 v13, 31, v0")
    a("v_lshrrev_b32 v14, 5, v0")
    a("v_bfe_u32 v15, v0, 1, 3")
    a("v_xor_b32 v15, v15, v14")
    a("s_lshl_b32 s64, s92, 13")
    a("v_lshl_add_u32 v1, v13, 7, s64")
    a("s_lshl_b32 s65, s27, 12")
    a("s_sub_u32 s65, s65, s64")
    for ks in range(4):
        a(f"v_xor_b32 v{XA+ks}, {2*ks}, v15")
        a(f"v_lshl_add_u32 v{XA+ks}, v{XA+ks}, 4, v1")
        a(f"v_add_u32 v{XQ+ks}, s65, v{XA+ks}")
    a("s_mul_i32 s64, s93, 56")
    a(f"v_mov_b32 v{WA}, s64")
    tr_lane_addr(a, WB, WA, 1, 15, 2)
    a(f"v_add_u32 v{WB}, {RING}, v{WB}")
    a(f"v_mov_b32 v{WA}, v{WB}")
    a("v_bfe_u32 v1, v0, 2, 2")
    a("v_lshl_add_u32 v1, v14, 3, v1")
    a("v_lshlrev_b32 v1, 1, v1")
    a("v_bfe_u32 v15, v0, 4, 1")
    a("v_add_u32 v1, v1, v15")
    a("v_lshlrev_b32 v1, 2, v1")
    a("v_and_b32 v15, 3, v0")
    a("v_add_u32 v1, v1, v15")
    a("v_lshlrev_b32 v1, 3, v1")
    a(f"v_add_u32 v{WQ}, {RING}, v1")
    if TA[1] and TAE == "2":
        a("s_cmp_eq_u32 s26, 0")
        a("s_cbranch_scc0 C_NTA")
        touch("A", TA[0], TA[1], E("TQ", "A") == "A")
        a("s_barrier")
        a.label("C_NTA")
    a("v_cmp_eq_u32 vcc, 28, v13")
    a(f"v_mov_b32 v1, {ONE2}")
    a("s_nop 0")
    a("v_cndmask_b32 v15, 0, v1, vcc")
    for s in range(2):
        for i in range(8):
            a(f"v_mov_b32 v{pV[s]+i}, v15")
    a("s_mov_b32 s56, 0x0fffffff")
    a("s_mov_b32 s57, 0x0fffffff")
    a(f"s_mov_b32 s64, {f32(LOG2E)}")
    a(f"s_mov_b32 s65, {f32(QSCALE)}")
    a(f"s_mov_b32 s66, {f32(EPS)}")
    for i in range(32):
        a(f"v_mov_b32 v{accV[0]+i}, 0")
    a("v_lshlrev_b32 v13, 4, v0")
    a("s_cmp_eq_u32 s26, 0")
    a("s_cbranch_scc1 C_A")

    def scalars():
        for s in range(4):
            a(f"s_add_u32 s60, s27, {1+s}")
            a("s_and_b32 s60, s60, 3")
            a(f"s_lshl_b32 s{36+s}, s60, 11")
            a(f"s_add_u32 s{36+s}, s{36+s}, {L_QD}")
            a(f"s_mul_i32 s{40+s}, s60, 12288")
            a(f"s_add_u32 s{40+s}, s{40+s}, {RING + (4096*s if s < 3 else 0)}")
        a(f"s_mul_i32 s44, s28, {4*PAD}")
        a(f"s_mul_i32 s45, s27, {PAD}")
        a("s_add_u32 s45, s45, s44")
        a("s_lshl_b32 s46, s24, 2")
        a("s_add_u32 s46, s46, s27")
        a(f"s_mul_i32 s46, s46, {PAD}")
        a("s_lshl_b32 s60, s28, 11")
        a("s_add_u32 s46, s46, s60")
        a(f"s_add_u32 s46, s46, {WS_OF + 32768}")
        a("s_lshl_b32 s47, s27, 12")
        a(f"s_add_u32 s47, s47, {L_KVD}")
        a("s_lshl_b32 s48, s27, 8")
        a(f"s_add_u32 s48, s48, {L_G}")
    def reads(buf, ks):
        f = FR + 16*buf
        return [f"ds_read_b128 {vr(f,4)}, v{XA+ks}",
                f"ds_read_b64_tr_b16 {vr(f+8,2)}, v{WA} offset:{ks*2048}",
                f"ds_read_b64_tr_b16 {vr(f+10,2)}, v{WA} offset:{ks*2048+512}",
                f"ds_read_b128 {vr(f+4,4)}, v{XA+ks} offset:4096",
                f"ds_read_b64_tr_b16 {vr(f+12,2)}, v{WA} offset:{8192+ks*2048}",
                f"ds_read_b64_tr_b16 {vr(f+14,2)}, v{WA} offset:{8192+ks*2048+512}"]
    def mfmas(buf, kT):
        f = FR + 16*buf
        Xf = [vr(f, 4), vr(f+4, 4)]; Wk, Wv = vr(f+8, 4), vr(f+12, 4)
        m = []
        for s in range(2): m.append(f"{MF} {vr(accV[s],16)}, {Xf[s]}, {Wk}, {vr(accV[s],16)}")
        for s in range(2):
            if kT: m.append(f"{MF} {vr(accK[s],16)}, {Wv}, {Xf[s]}, {vr(accK[s],16)}")
            else:  m.append(f"{MF} {vr(accK[s],16)}, {Xf[s]}, {Wv}, {vr(accK[s],16)}")
        return m
    def mainloop(tag, kT):
        a("s_mov_b32 s60, 0")
        a("s_mov_b32 s61, 0")
        if STAMP != 4: stampc(a, 1)
        a("s_barrier")
        if STAMP != 4: stampc(a, 2)
        for r in reads(0, 0): a(r)
        a(".p2align 6")
        a.label(f"C_{tag}_LOOP")
        for ks in range(4):
            m = mfmas(ks & 1, kT); r = reads((ks+1) & 1, (ks+1) & 3)
            if ks < 3:
                a("s_waitcnt lgkmcnt(3)"); a(m[0]); a(r[0]); a(r[1]); a(r[2])
                a("s_waitcnt lgkmcnt(5)"); a(m[1]); a(r[3]); a(r[4]); a(r[5])
                a("s_waitcnt lgkmcnt(6)"); a(m[2])
                a(f"v_add_u32 v{XA+ks}, 16384, v{XA+ks}")
                if ks == 2:
                    a("s_add_u32 s60, s60, 1")
                    a("s_add_u32 s61, s61, 16384")
                    a("s_cmp_eq_u32 s61, 49152")
                    a("s_cselect_b32 s61, 0, s61")
                a(m[3])
            else:
                a(f"v_add_u32 v{WA}, s61, v{WB}")
                a("s_cmp_eq_u32 s60, 7")
                a("s_waitcnt lgkmcnt(0)")
                a(f"s_cbranch_scc1 C_{tag}_TAIL")
                a("s_barrier")
                a(m[0]); a(r[0]); a(r[1]); a(r[2])
                a(m[1]); a(r[3]); a(r[4]); a(r[5])
                a(m[2])
                a(f"v_add_u32 v{XA+3}, 16384, v{XA+3}")
                a(m[3])
                a(f"s_branch C_{tag}_LOOP")
                a.label(f"C_{tag}_TAIL")
                for x in m: a(x)
        stampc(a, 3)
        if "nords" in X or "nomf" in X:
            i0 = max(i for i, l in enumerate(a.lines) if l.startswith(f"C_{tag}_LOOP"))
            for i in range(i0, len(a.lines)):
                l = a.lines[i].strip()
                if "nords" in X and l.startswith("ds_read"): a.lines[i] = "    s_nop 0"
                if "nomf" in X and l.startswith("v_mfma"): a.lines[i] = "    s_nop 7"
    _reads = reads
    def reads(buf, ks):
        r = _reads(buf, ks)
        f = FR + 16*buf
        r[1] = f"ds_read_b64_tr_b16 {vr(f+8,2)}, v{WA} offset:{8192+ks*2048}"
        r[2] = f"ds_read_b64_tr_b16 {vr(f+10,2)}, v{WA} offset:{8192+ks*2048+512}"
        r[4] = f"ds_read_b64_tr_b16 {vr(f+12,2)}, v{WA} offset:{ks*2048}"
        r[5] = f"ds_read_b64_tr_b16 {vr(f+14,2)}, v{WA} offset:{ks*2048+512}"
        return r
    def cvt_v():
        a("s_nop 9")
        a("s_mov_b64 exec, s[56:57]")
        for s in range(2): cvt(a, pV[s], accV[s])
        a("s_mov_b64 exec, -1")
    def qpass(mat, acc, c0, bars):
        def qreads(k):
            f = FR + 8*(k % 4)
            slot = {(1, 0): 1, (1, 1): 2, (0, 0): 0, (0, 1): 1}[(mat, k >> 4)]
            o = slot*16384 + (k & 15)*1024
            xr = (XQ if k < 16 else XA) + (k & 3)
            return [f"ds_read_b128 {vr(f,4)}, v{xr} offset:{((k >> 2) & 3)*16384}",
                    f"ds_read_b64_tr_b16 {vr(f+4,2)}, v{WQ} offset:{o}",
                    f"ds_read_b64_tr_b16 {vr(f+6,2)}, v{WQ} offset:{o+256}"]
        for k in range(3):
            for r in qreads(k): a(r)
        for k in range(28):
            f = FR + 8*(k % 4)
            if k+3 in bars: a("s_barrier")
            a(f"s_waitcnt lgkmcnt({3*min(2, 27-k)})")
            a(f"{MF} {vr(acc,16)}, {vr(f+4,4)}, {vr(f,4)}, {c0 if k == 0 else vr(acc,16)}")
            if k+3 < 28:
                for x in qreads(k+3): a(x)
    def phase1b():
        for i in range(4): a(f"v_add_u32 v{XA+i}, 65536, v{XQ+i}")
        stampc(a, 4)
        a("s_barrier")
        if STAMP == 6: stampc(a, 15)
        qpass(1, QB, "0", {20})
        if STAMP == 6: stampc(a, 9)
        a("v_add_u32 v1, s39, v13")
        a("s_waitcnt vmcnt(0)")
        a("s_barrier")
        if STAMP == 6: stampc(a, 10)
        a("v_mov_b32 v54, 0")
        a("v_mov_b32 v55, 0")
        a("s_nop 7")
        a(f"v_mov_b32 v14, v{QB+12}")
        a(f"v_mov_b32 v15, v{QB+12}")
        vmul(a, QB, "s65", 8)
        a("v_permlane32_swap_b32 v15, v14")
        cvt(a, 48, QB, 0, 4)
        a("ds_write_b128 v1, v[48:51]")
        vmul(a, QB+8, "s65", 8)
        cvt(a, 48, QB, 4, 6)
        a("s_mov_b32 exec_hi, 0")
        cvt(a, 48, QB, 6, 8)
        a("s_mov_b32 exec_hi, -1")
        a("ds_write_b128 v1, v[52:55] offset:1024")
        if STAMP == 6: stampc(a, 11)
        a("s_waitcnt lgkmcnt(0)")
        a("s_barrier")
        if STAMP == 6: stampc(a, 12)
        qpass(0, QA, "1.0", {16})
        stampc(a, 5)
    def defer_q(a, mats):
        PP = QB + 8
        w = [f"v_mul_f32 v14, {f32(-LOG2E)}, v14", "v_exp_f32 v14, v14", f"v_mov_b32 v{PP+6}, 0", f"v_mov_b32 v{PP+7}, 0",
             "v_add_f32 v14, 1.0, v14", "v_rcp_f32 v14, v14"] + phi_list(QA, QB)
        for i, x in enumerate(w):
            if mats and i % 7 == 0: a(mats.pop(0))
            a(x)
        for x in mats: a(x)
        cvt(a, PP, QA, 0, 6)
        a("s_mov_b32 exec_hi, 0")
        cvt(a, PP, QA, 6, 8)
        a("s_mov_b32 exec_hi, -1")
        a(f"ds_write_b128 v1, {vr(PP,4)} offset:8192")
        a(f"ds_write_b128 v1, {vr(PP+4,4)} offset:9216")
        a("v_lshl_add_u32 v15, v0, 2, s48")
        a("ds_write_b32 v15, v14")
        a("v_sub_f32 v14, 1.0, v14")
    O = [16, 32, 48, 64]; S = [80, 96, 112, 128]; Q = [0, 8, 16, 24]; KV = [32, 48, 64, 80]
    RA = 144
    def ld(dst, off, v="v1", so="s58"):
        return f"buffer_load_dwordx4 {ar(dst,4)}, {v}, {WSR}, {so} offen" + (f" offset:{off}" if off else "") + " sc1"
    adv = ["s_add_u32 s58, s58, 4096"]
    ZR = ar(KV[3]+12, 4)
    zero = lambda d: f"{MF} {vr(d,16)}, {ZR}, {ZR}, 0"
    def pre(a):
        for i in range(4): a(f"v_accvgpr_write_b32 a{KV[3]+12+i}, 0")
        a("v_add_u32 v4, s44, v13")
        a(f"v_mov_b32 v5, {L_CNT}")
        a("v_mov_b32 v6, 1")
    def first_loads(work):
        stampc(a, 7)
        a("v_add_u32 v7, s45, v13")
        a("s_mov_b32 s58, 4096")
        a("s_mov_b32 s59, 8192")
        for f in range(4):
            a(ld(KV[0]+4*f, 1024*f, "v7", "0"))
            a(f"v_add_u32 v{8+f}, s{36+f}, v13")
            a(f"ds_read_b128 {ar(Q[f],4)}, v{8+f}")
            a(f"ds_read_b128 {ar(Q[f]+4,4)}, v{8+f} offset:1024")
        sub = Asm(); work(sub)
        lines = sub.lines
        rest = [ld(KV[n]+4*f, 1024*f, "v7", f"s{57+n}") for n in (1, 2) for f in range(4)]
        gap = int(E("LG", "8")); full = True
        for i, l in enumerate(lines):
            a.lines.append(l)
            if "exec" in l and l.strip().startswith("s_mov"): full = l.strip().endswith("-1")
            if rest and full and i % gap == gap - 1: a(rest.pop(0))
        for x in rest: a(x)
        a("s_mov_b32 s58, 12288")

    for i in range(32): a(f"v_mov_b32 v{accK[0]+i}, 0")
    for s in range(2):
        a(f"v_mov_b32 v{pK[s]+6}, v1"); a(f"v_mov_b32 v{pK[s]+7}, v1")
    a("v_and_b32 v15, 0x33, v0")
    a("v_bfe_u32 v1, v0, 2, 1")
    a("v_lshl_add_u32 v15, v1, 3, v15")
    a("v_bfe_u32 v1, v0, 3, 1")
    a("v_lshl_add_u32 v15, v1, 2, v15")
    a("v_lshlrev_b32 v15, 4, v15")
    a("s_lshl_b32 s58, s25, 1")
    a("s_add_u32 s58, s58, s93")
    a("s_lshl_b32 s58, s58, 2")
    a("s_add_u32 s58, s58, s34")
    a(f"s_mul_i32 s58, s58, {PAD}")
    a("s_lshl_b32 s59, s29, 1")
    a("s_add_u32 s59, s59, s92")
    a("s_lshl_b32 s59, s59, 13")
    a("s_add_u32 s58, s58, s59")
    a("s_add_u32 s59, s58, 4096")
    if TOUCH: a("s_barrier")
    scalars()
    mainloop("B", True)
    cvt_v()
    st = []
    for s in range(2):
        st.append(f"buffer_store_dwordx4 {vr(pV[s],4)}, v13, {WSR}, s{58+s} offen offset:2048 sc1")
        st.append(f"buffer_store_dwordx4 {vr(pV[s]+4,4)}, v13, {WSR}, s{58+s} offen offset:3072 sc1")
    for s in range(2):
        st.append(f"buffer_store_dwordx4 {vr(pK[s],4)}, v15, {WSR}, s{58+s} offen sc1")
        st.append(f"buffer_store_dwordx4 {vr(pK[s]+4,4)}, v15, {WSR}, s{58+s} offen offset:1024 sc1")
    for x in st[:4]: a(x)
    for s in range(2):
        cvt(a, pK[s], accK[s], 0, 6)
        a("s_mov_b32 exec_hi, 0")
        cvt(a, pK[s], accK[s], 6, 8)
        a("s_mov_b32 exec_hi, -1")
        for x in st[4+2*s:6+2*s]: a(x)
    phase1b()
    a("s_waitcnt lgkmcnt(0)")
    stampc(a, 6)
    a("s_barrier")
    def workB(a):
        pre(a)
        defer_q(a, [zero(d) for d in O + [S[3]]])
    first_loads(workB)
    a("s_branch C_2")

    a.label("C_A")
    for i in range(32): a(f"v_mov_b32 v{accK[0]+i}, 1.0")
    for s in range(2):
        for i in range(8): a(f"v_mov_b32 v{pK[s]+i}, 0")
    if TA[1] and TAE == "0": touch("A", TA[0], TA[1], E("TQ", "A") == "A")
    if TOUCH and TAE != "2": a("s_barrier")
    scalars()
    mainloop("A", False)
    cvt_v()
    pend = phi_list(accK[0], 52) + phi_list(accK[1], 52)
    phase1b()
    D = accK[1]
    APRE = int(E("APRE", "1"))
    kvm = [f"{MF} {vr(D,16)}, {vr(pK[0],4)}, {vr(pV[0],4)}, 0",
           f"{MF} {vr(D,16)}, {vr(pK[0]+4,4)}, {vr(pV[0]+4,4)}, {vr(D,16)}",
           f"{MF} {vr(D,16)}, {vr(pK[1],4)}, {vr(pV[1],4)}, {vr(D,16)}",
           f"{MF} {vr(D,16)}, {vr(pK[1]+4,4)}, {vr(pV[1]+4,4)}, {vr(D,16)}"]
    def part1(a):
        for x in pend: a(x)
        a("s_mov_b64 exec, s[56:57]")
        for s in range(2): cvt(a, pK[s], accK[s])
        a("s_mov_b64 exec, -1")
        a("s_nop 1")
    def part2(a):
        pre(a)
        defer_q(a, kvm + [zero(d) for d in O + [S[3]]])
        a("v_add_u32 v15, s47, v13")
        for q in range(4):
            a(f"ds_write_b128 v15, {vr(D+4*q,4)} offset:{1024*q}")
    if APRE >= 1: part1(a)
    a("s_waitcnt lgkmcnt(0)")
    stampc(a, 6)
    a("s_barrier")
    def workA(a):
        if APRE < 1: part1(a)
        part2(a)
    first_loads(workA)

    a.label("C_2")
    a("v_mov_b32 v2, 0xdddd")
    a("v_mov_b32 v3, 0")
    a("v_mov_b32 v1, v7")
    a("s_mov_b32 s59, 3")
    for s in range(4): a(f"v_add_u32 v{RA+s}, s{40+s}, v13")
    a("s_waitcnt vmcnt(10) lgkmcnt(0)")
    stampc(a, 8)
    a("s_mov_b64 exec, 1")
    a("ds_add_u32 v5, v6 offset:8")
    a("ds_read_b32 v6, v5 offset:20")
    a("s_mov_b64 exec, -1")
    a(f"{MF} {vr(S[0],16)}, {ar(KV[0],4)}, {ar(Q[0],4)}, 0")
    a(f"{MF} {vr(S[0],16)}, {ar(KV[0]+4,4)}, {ar(Q[0]+4,4)}, {vr(S[0],16)}")
    a("s_waitcnt vmcnt(8) lgkmcnt(0)")
    a("v_readfirstlane_b32 s87, v6")
    a("s_nop 8")
    def unit(pos, cur, nxt, prv, slot):
        sc = S[pos & 3]; sn = S[(pos+1) & 3]; sp = S[(pos-1) & 3]
        e = [f"v_exp_f32 v{sc+i}, v{sc+i}" for i in range(16)]
        if nxt: a(f"{MF} {vr(sn,16)}, {ar(KV[nxt[0]],4)}, {ar(Q[nxt[1]],4)}, 0")
        for x in slot[0]: a(x)
        for x in e[0:4]: a(x)
        a(f"{SM} {vr(O[prv[1]],16)}, {ar(KV[prv[0]]+12,4)}, {vr(sp+8,8)}, v2")
        for x in slot[1]: a(x)
        for x in e[4:8]: a(x)
        if nxt: a(f"{MF} {vr(sn,16)}, {ar(KV[nxt[0]]+4,4)}, {ar(Q[nxt[1]]+4,4)}, {vr(sn,16)}")
        for x in slot[2]: a(x)
        for x in e[8:12]: a(x)
        a(f"{SM} {vr(O[cur[1]],16)}, {ar(KV[cur[0]]+8,4)}, {vr(sc,8)}, v2")
        for x in slot[3]: a(x)
        if nxt:
            for _ in range(2 - min(2, len(slot[2]) + len(slot[3]))): a("s_nop 0")
        for x in e[12:16]: a(x)
    LP = int(E("LP", "2"))
    def plain(n, s):
        slot = [[], [], [], []]
        slot[LP].append(ld(KV[(n+3) & 3] + 4*s, 1024*s))
        if s == 3: slot[3] += adv
        if s == 2: slot[3].append("s_waitcnt vmcnt(7)")
        return slot
    a(".p2align 6")
    a.label("C_ATT")
    for n in range(4):
        for s in range(4):
            slot = plain(n, s)
            if n == 3 and s == 1: slot[3].append("s_sub_u32 s59, s59, 1")
            if n == 3 and s == 3: slot[3].append("s_cmp_lg_u32 s59, 0")
            unit(s, (n, s), ((n + (s == 3)) & 3, (s+1) & 3), ((n - (s == 0)) & 3, (s-1) & 3), slot)
    a("s_cbranch_scc1 C_ATT")
    seq = [(0, s) for s in range(4)] + [(1, s) for s in range(4)] + [(n, s) for s in range(4) for n in (2, 3)]
    for i, cur in enumerate(seq):
        nxt = seq[i+1] if i < 15 else None
        prv = seq[i-1] if i > 0 else (3, 3)
        slot = plain(*cur) if i < 4 else [[], [], [], []]
        if i == 6: slot[3].append("s_waitcnt vmcnt(0)")
        w = {11: 0, 13: 1, 15: 2}
        for first, s_ in ((11, 0), (13, 1)):
            if i in (first, first+1):
                for q in range(2):
                    qq = 2*(i - first) + q
                    slot[1 + 2*q].append(f"ds_write_b128 v{RA+s_}, {vr(O[s_]+4*qq,4)} offset:{1024*qq}")
        if i == 15:
            for q in range(4):
                slot[q].append(f"ds_write_b128 v{RA+2}, {vr(O[2]+4*q,4)} offset:{1024*q}")
        unit(i, cur, nxt, prv, slot)
        if i == int(E("XP", "10")):
            if STAMP == 4: stampc(a, 1)
            a("s_barrier")
            if STAMP == 4: stampc(a, 2)
    a("s_setprio 1")
    a("v_mov_b32 v22, 0")
    a(f"{SM} {vr(O[3],16)}, {ar(KV[3]+12,4)}, {vr(S[3]+8,8)}, v2")
    a("v_mov_b32 v23, 0")
    a(f"s_mov_b32 s62, {f32(2.0**-40)}")
    a(f"s_mov_b32 s63, {f32(2.0**40)}")
    a("s_waitcnt lgkmcnt(0)")
    a("s_barrier")
    if STAMP != 6: stampc(a, 9)
    for i in range(12):
        a(f"ds_read_b128 {vr(S[0]+4*i,4)}, v{RA+3} offset:{1024*((i % 3)*4 + i // 3)}")
    for q in range(4):
        a(f"s_waitcnt lgkmcnt({9-3*q})")
        b = S[0] + 12*q
        vadd(a, b, b+4, 4)
        vadd(a, O[3]+4*q, b+8, 4)
        vadd(a, O[3]+4*q, b, 4)
    a(f"v_mov_b32 v6, v{O[3]+12}")
    a(f"v_mov_b32 v7, v{O[3]+12}")
    a("s_nop 1")
    a("v_permlane32_swap_b32 v6, v7")
    a("v_cmp_nge_f32 vcc, v7, s62")
    a("v_cmp_nle_f32 s[64:65], v7, s63")
    a("v_rcp_f32 v7, v7")
    a("s_or_b64 vcc, vcc, s[64:65]")
    a("s_cbranch_scc1 C_FALLBACK")
    a.label("C_FIN")
    a(f"v_mov_b32 v5, {RING + 49152 - 16}")
    a("s_cmp_eq_u32 s27, 3")
    a("s_cbranch_scc0 C_NOCLR")
    a("ds_write_b32 v5, v3")
    a.label("C_NOCLR")
    a("v_mul_f32 v7, v7, v14")
    vmul(a, O[3], "v7", 8)
    cvt(a, 16, O[3], 0, 4)
    a(f"buffer_store_dwordx4 v[16:19], v13, {WSR}, s46 offen sc1")
    vmul(a, O[3]+8, "v7", 8)
    cvt(a, 16, O[3], 4, 6)
    a("s_mov_b32 exec_hi, 0")
    cvt(a, 16, O[3], 6, 8)
    a("s_mov_b32 exec_hi, -1")
    a(f"buffer_store_dwordx4 v[20:23], v13, {WSR}, s46 offen offset:1024 sc1")
    a("s_waitcnt lgkmcnt(0)")
    a("s_barrier")
    if STAMP != 6: stampc(a, 10)
    a("s_mul_i32 s60, s92, 28672")
    a("s_add_u32 s60, s60, 57344")
    a("s_lshl_b32 s61, s92, 6")
    a("v_mov_b32 v1, v5")
    p3_addr(a, 4, "s60", "s61", 8, 9)
    a("s_lshl_b32 s60, s27, 13")
    a(f"s_add_u32 s60, s60, {RING}")
    a("v_add_u32 v8, s60, v13")
    a("s_lshl_b32 s60, s27, 12")
    a(f"s_add_u32 s60, s60, {RING + 32768}")
    a("v_add_u32 v9, s60, v13")
    a("v_xor_b32 v10, 8192, v9")
    a("s_lshl_b32 s60, s30, 1")
    a("s_add_u32 s60, s60, s93")
    a("v_and_b32 v11, 31, v0")
    a("s_lshl_b32 s61, s60, 5")
    a("v_add_u32 v11, s61, v11")
    a("v_mul_u32_u24 v11, 896, v11")
    a("v_lshrrev_b32 v12, 5, v0")
    a("v_lshl_add_u32 v11, v12, 4, v11")
    a(f"s_mul_i32 s60, s60, {PAD}")
    a("s_lshl_b32 s61, s92, 14")
    a("s_add_u32 s60, s60, s61")
    a(f"s_add_u32 s60, s60, {WS_OF + 32768}")
    a("s_and_b32 s61, s30, 0xfe")
    a("s_lshl_b32 s61, s61, 10")
    a(f"s_add_u32 s61, s61, {C_OB}")
    a("s_lshl_b32 s62, s31, 7")
    a("s_lshl_b32 s63, s92, 6")
    a("s_add_u32 s62, s62, s63")
    srd(a, SX, 18, 1835008)
    a("s_lshl_b32 s64, s24, 4")
    a("s_add_u32 s64, s64, s28")
    a("s_lshl_b32 s64, s64, 7")
    a(f"s_add_u32 s64, s64, {C_OB}")
    a("v_mov_b32 v12, 1")
    a("s_mov_b64 exec, 1")
    a("s_waitcnt vmcnt(0)")
    a("ds_add_rtn_u32 v14, v1, v12")
    a("s_waitcnt lgkmcnt(0)")
    a("v_readfirstlane_b32 s69, v14")
    a("s_nop 0")
    a("s_cmp_eq_u32 s69, 3")
    a("s_cbranch_scc0 C_NOSIG")
    a("v_mov_b32 v12, s87")
    a(f"buffer_store_dword v12, v3, {WSR}, s64 offen sc1")
    a.label("C_NOSIG")
    a("s_mov_b64 exec, -1")
    if STAMP != 6: stampc(a, 11)
    a("s_cmp_ge_u32 s32, 28")
    a("s_cbranch_scc1 C_EXIT")
    a("s_cmp_eq_u32 s27, 0")
    a("s_cbranch_scc0 C_OBD")
    a("v_lshlrev_b32 v14, 7, v0")
    poll(a, "OB", WSR, "s61", 16, 14, 12, int(E("OBS", "2")), False)
    a.label("C_OBD")
    a("s_barrier")
    if STAMP != 6: stampc(a, 12)
    NPRE = int(E("NPRE", "10"))
    p3_oloads(a, 13, "s60", NPRE)
    for i in range(8):
        a(f"ds_read_b128 {vr(16+4*i,4)}, v8 offset:{1024*i}")
    p3_gemm(a, 4, [16, 32], [48, 56], False, NPRE, 13, "s60")
    if STAMP != 6: stampc(a, 13)
    a("s_nop 11")
    for i in range(4):
        a(f"ds_write_b128 v9, {vr(32+4*i,4)} offset:{1024*i}")
    a("s_waitcnt lgkmcnt(0)")
    a("s_barrier")
    for i in range(4):
        a(f"ds_read_b128 {vr(32+4*i,4)}, v10 offset:{1024*i}")
    OFL = E("OFL", "")
    for hf in range(2):
        for q in (2*hf, 2*hf+1):
            a(f"s_waitcnt lgkmcnt({3-q})")
            vadd(a, 16+4*q, 32+4*q, 4)
        cvt(a, 48, 16, 4*hf, 4*hf+4)
        a("s_nop 1")
        a(f"v_permlane32_swap_b32 v{48+4*hf}, v{50+4*hf}")
        a(f"v_permlane32_swap_b32 v{49+4*hf}, v{51+4*hf}")
        a(f"buffer_store_dwordx4 {vr(48+4*hf,4)}, v11, {R(SX)}, s62 offen offset:{32*hf} {OFL}")
    a.label("C_EXIT")
    if E("DIAGP", "") == "99":
        a("s_waitcnt vmcnt(0)")
        a("s_memrealtime s[100:101]")
        a("s_waitcnt lgkmcnt(0)")
    if E("DIAGT", ""):
        a("s_xor_b32 s64, s2, %s" % E("DIAGW", "0"))
        a("s_or_b32 s64, s64, s27")
        a("s_cmp_eq_u32 s64, 0")
        a("s_cbranch_scc0 C_DX")
        if E("DIAGP", ""):
            a("s_sub_u32 s100, s100, s96")
            a("s_lshl_b32 s100, s100, 1")
            a("s_add_u32 s96, s96, s100")
        a.label("C_DL")
        a("s_memrealtime s[98:99]")
        a("s_waitcnt lgkmcnt(0)")
        a("s_sub_u32 s98, s98, s96")
        a("s_cmp_lt_i32 s98, %s" % E("DIAGT", ""))
        a("s_cbranch_scc1 C_DL")
        a.label("C_DX")
    if STAMP != 6: stampc(a, 14)
    if STAMP: a("s_waitcnt vmcnt(0)")
    if STAMP != 6: stampc(a, 15)
    stamp_out(a, 16)
    a("s_endpgm")
    a.label("C_FALLBACK")
    Qo = Q[3]; K0 = KV[0]; Sx = S[0]
    def fb_adv():
        a("s_add_u32 s58, s58, 4096")
        a("s_add_u32 s59, s59, 1")
        a("s_and_b32 s61, s59, 15")
        a(f"s_cselect_b32 s61, 0, {PAD-65536}")
        a("s_add_u32 s58, s58, s61")
        a("s_nop 15")
    a("s_mov_b32 s58, 0")
    a("s_mov_b32 s59, 0")
    a(f"v_mov_b32 v8, {f32(float('-inf'))}")
    a.label("C_FB1")
    a(ld(K0, 0, "v4")); a(ld(K0+4, 1024, "v4"))
    a("s_waitcnt vmcnt(0)")
    a(f"{MF} {vr(Sx,16)}, {ar(K0,4)}, {ar(Qo,4)}, 0")
    a(f"{MF} {vr(Sx,16)}, {ar(K0+4,4)}, {ar(Qo+4,4)}, {vr(Sx,16)}")
    fb_adv()
    a("s_nop 15")
    for i in range(8):
        a(f"v_max3_f32 v8, v8, v{Sx+2*i}, v{Sx+2*i+1}")
    a("s_cmp_lt_u32 s59, 64")
    a("s_cbranch_scc1 C_FB1")
    a("v_mov_b32 v9, v8")
    a("s_nop 1")
    a("v_permlane32_swap_b32 v8, v9")
    a("v_max_f32 v8, v8, v9")
    a("v_and_b32 v9, 0xffff0000, v8")
    a("v_sub_f32 v8, v8, v9")
    a("v_and_b32 v10, 0xffff0000, v8")
    a("v_sub_f32 v8, v8, v10")
    a("v_cvt_pk_bf16_f32 v9, -v9, -v10")
    a("v_cvt_pk_bf16_f32 v8, -v8, 0")
    a("s_mov_b32 exec_lo, 0")
    a(f"v_accvgpr_write_b32 a{Qo+6}, v9")
    a(f"v_accvgpr_write_b32 a{Qo+7}, v8")
    a("s_mov_b32 exec_lo, -1")
    for i in range(16): a(f"v_mov_b32 v{O[3]+i}, 0")
    a("s_mov_b32 s58, 0")
    a("s_mov_b32 s59, 0")
    a.label("C_FB2")
    for f in range(4): a(ld(K0+4*f, 1024*f, "v4"))
    a("s_waitcnt vmcnt(0)")
    a(f"{MF} {vr(Sx,16)}, {ar(K0,4)}, {ar(Qo,4)}, 0")
    a(f"{MF} {vr(Sx,16)}, {ar(K0+4,4)}, {ar(Qo+4,4)}, {vr(Sx,16)}")
    fb_adv()
    a("s_nop 15")
    for i in range(16): a(f"v_exp_f32 v{Sx+i}, v{Sx+i}")
    a("s_nop 1")
    a(f"{SM} {vr(O[3],16)}, {ar(K0+8,4)}, {vr(Sx,8)}, v2")
    a(f"{SM} {vr(O[3],16)}, {ar(K0+12,4)}, {vr(Sx+8,8)}, v2")
    a("s_cmp_lt_u32 s59, 64")
    a("s_cbranch_scc1 C_FB2")
    a("s_nop 15")
    a("s_nop 15")
    a(f"v_mov_b32 v6, v{O[3]+12}")
    a(f"v_mov_b32 v7, v{O[3]+12}")
    a("s_nop 1")
    a("v_permlane32_swap_b32 v6, v7")
    a("v_rcp_f32 v7, v7")
    a("s_nop 0")
    a("s_branch C_FIN")

def main():
    a = Asm()
    head = f"""; gated mix of a linear-attention block and a softmax-attention block (S=2048, D=448, H=16), one launch
; @launch grid=(256,1,1) block=(512,1,1) lds=163840
.amdgcn_target "amdgcn-amd-amdhsa--gfx950"
.text
"""
    gen(a)
    out = head + a.text() + '.section .rodata,"a"\n' + kernel_desc(KN, 256, 102, 160)
    path = sys.argv[1] if len(sys.argv) > 1 else f"cdna_kernels/{NAME}.s"
    open(path, "w").write(out)
main()
```

```python
import math, sys, os, struct
from asmlib import *

NAME = "gated_mix__linear_attn_block__mha_block__prompt"
KN = NAME + "_kernel"
WS_KV  = 0
WS_CNT = 5 << 20
WS_KVP = 6 << 20
WS_OF  = 8 << 20
PAD = int(os.environ.get("PAD", "69632"))
WS_ST  = 14 << 20
WS_SIZE = 16 << 20
LOG2E = 1.4426950408889634
QSCALE = LOG2E * 28 ** -0.5
EPS = 1e-6
ONE2 = 0x3F803F80
RING = 114688
L_KVD = RING
L_G   = RING + 16384 + 15360
L_KVF = RING + 16384 + 12288
L_CNT = RING + 16384 + 14336
L_QD  = RING + 32768
L_PQ  = RING + 32768 + 8192
STAMP = int(os.environ.get("STAMP", "0"))
X = set(os.environ.get("X", "").split(","))
MF = "v_mfma_f32_32x32x16_bf16"
SM = "v_smfmac_f32_32x32x32_bf16"
SX, SW, SWA, SWB, SWS, SD, SG = 36, 40, 44, 48, 52, 56, 60
WSR = f"s[{SWS}:{SWS+3}]"
SPIN = 200000
WFL = os.environ.get("WFL", "")
XFL = os.environ.get("XFL", "")

def srd(a, d, lo, size):
    a(f"s_mov_b32 s{d}, s{lo}")
    a(f"s_mov_b32 s{d+1}, s{lo+1}")
    a(f"s_mov_b32 s{d+2}, {size}")
    a(f"s_mov_b32 s{d+3}, 0x20000")
def R(d): return f"s[{d}:{d+3}]"

def stamp(a, i, mode=1):
    if not STAMP: return
    if mode is not None and mode != STAMP: return
    if i == 0: a("s_memrealtime s[96:97]")
    a("s_memrealtime s[94:95]" if os.environ.get("RT") else "s_memtime s[94:95]")
    a("s_waitcnt lgkmcnt(0)")
    a(f"s_mov_b32 s{70+i}, s94")
def stampc(a, i):
    if os.environ.get("DIAGP") == str(i):
        a("s_memrealtime s[100:101]")
        a("s_waitcnt lgkmcnt(0)")
    if STAMP == 5: return
    stamp(a, i, None)
def stamp_out(a, n):
    if not STAMP: return
    a("s_memrealtime s[98:99]")
    a("s_waitcnt lgkmcnt(0)")
    a("s_mov_b64 exec, 1")
    a("s_lshl_b32 s94, s2, 3")
    a("s_add_u32 s94, s94, s35")
    a("s_lshl_b32 s94, s94, 7")
    a(f"s_add_u32 s94, s94, {WS_ST}")
    a("v_mov_b32 v1, 0")
    for i in range(n if STAMP != 5 else 0):
        a(f"v_mov_b32 v2, s{70+i}")
        a(f"buffer_store_dword v2, v1, {WSR}, s94 offen offset:{4*i}")
    a("v_mov_b32 v2, s96")
    a(f"buffer_store_dword v2, v1, {WSR}, s94 offen offset:120")
    a("v_mov_b32 v2, s98")
    a(f"buffer_store_dword v2, v1, {WSR}, s94 offen offset:124")

def dma_lane_w(a, vdst, vt0, vt1, rowstride):
    a(f"v_lshrrev_b32 v{vt0}, 4, v0")
    a(f"v_bfe_u32 v{vt1}, v0, 2, 2")
    a(f"v_and_b32 v{vdst}, 1, v{vt0}")
    if "noswz" not in X: a(f"v_xor_b32 v{vt1}, v{vt1}, v{vdst}")
    a(f"v_lshrrev_b32 v{vdst}, 1, v{vt1}")
    a(f"v_lshl_add_u32 v{vt0}, v{vt0}, 1, v{vdst}")
    a(f"v_mul_u32_u24 v{vt0}, {rowstride}, v{vt0}")
    a(f"v_and_b32 v{vt1}, 1, v{vt1}")
    a(f"v_lshl_add_u32 v{vt0}, v{vt1}, 6, v{vt0}")
    a(f"v_and_b32 v{vt1}, 3, v0")
    a(f"v_lshl_add_u32 v{vdst}, v{vt1}, 4, v{vt0}")

def tr_lane_addr(a, vdst, vb, vt0, vt1, hlshift):
    a(f"v_bfe_u32 v{vt0}, v0, 4, 1")
    a(f"v_lshl_add_u32 v{vb}, v{vt0}, 5, v{vb}")
    a(f"v_and_b32 v{vt0}, 3, v0")
    a(f"v_lshl_add_u32 v{vb}, v{vt0}, 3, v{vb}")
    a(f"v_bfe_u32 v{vt0}, v0, 2, 1")
    a(f"v_lshrrev_b32 v{vt1}, 6, v{vb}")
    a(f"v_lshl_add_u32 v{vt0}, v{vt0}, 1, v{vt1}")
    a(f"v_bfe_u32 v{vt1}, v0, 3, 1")
    a(f"v_xor_b32 v{vt0}, v{vt0}, v{vt1}")
    a(f"v_and_b32 v{vb}, 63, v{vb}")
    a(f"v_lshl_add_u32 v{vb}, v{vt0}, 6, v{vb}")
    a(f"v_lshrrev_b32 v{vt0}, 5, v0")
    a(f"v_lshl_add_u32 v{vt0}, v{vt0}, {hlshift}, v{vt1}")
    a(f"v_lshl_add_u32 v{vdst}, v{vt0}, 8, v{vb}")

C_KV, C_A, C_OA, C_OB = WS_CNT, WS_CNT + 128*128, WS_CNT + 256*128, WS_CNT + 512*128
NFLAG = 768
def poll(a, tag, srdreg, soff, nl, vl, vt, sleep=0, first=True):
    a(f"s_mov_b64 exec, {(1 << nl) - 1}")
    a(f"s_mov_b32 s68, {SPIN}")
    if sleep and first: a(f"s_branch POLL_{tag}")
    a.label(f"POLLS_{tag}")
    if sleep: a(f"s_sleep {sleep}")
    a.label(f"POLL_{tag}")
    a(f"buffer_load_dword v{vt}, v{vl}, {srdreg}, {soff} offen sc1")
    a("s_sub_u32 s68, s68, 1")
    a(f"s_cbranch_scc1 POLLX_{tag}")
    a("s_waitcnt vmcnt(0)")
    a(f"v_cmp_eq_u32 vcc, 0, v{vt}" if tag.startswith("INIT") else f"v_cmp_ne_u32 vcc, s87, v{vt}")
    a(f"s_cbranch_vccnz POLLS_{tag}")
    a.label(f"POLLX_{tag}")
    a("s_mov_b64 exec, -1")

def poll2(a, tag, soff, nl, vl, vt, gap):
    a(f"s_mov_b64 exec, {(1 << nl) - 1}")
    a(f"s_mov_b32 s68, {SPIN}")
    a(f"buffer_load_dword v{vt}, v{vl}, {WSR}, {soff} offen sc1")
    a.label(f"POLL_{tag}")
    for i in range(2):
        if gap: a(f"s_sleep {gap}")
        a(f"buffer_load_dword v{vt+1-i}, v{vl}, {WSR}, {soff} offen sc1")
        a("s_waitcnt vmcnt(1)")
        a(f"v_cmp_ne_u32 vcc, s87, v{vt+i}")
        a(f"s_cbranch_vccz POLLX_{tag}")
    a("s_sub_u32 s68, s68, 1")
    a(f"s_cbranch_scc0 POLL_{tag}")
    a.label(f"POLLX_{tag}")
    a("s_mov_b64 exec, -1")

def lds_wait(a, tag, vaddr, off, target, vt, sleep=1):
    a("s_mov_b64 exec, 1")
    a(f"s_mov_b32 s68, {SPIN}")
    a.label(f"LW_{tag}")
    a(f"s_sleep {sleep}")
    a(f"ds_read_b32 v{vt}, v{vaddr} offset:{off}")
    a("s_waitcnt lgkmcnt(0)")
    a(f"v_readfirstlane_b32 s69, v{vt}")
    a("s_sub_u32 s68, s68, 1")
    a(f"s_cbranch_scc1 LWX_{tag}")
    a(f"s_cmp_ge_u32 s69, {target}")
    a(f"s_cbranch_scc0 LW_{tag}")
    a.label(f"LWX_{tag}")
    a("s_mov_b64 exec, -1")

def signal(a, soff, vz, vt):
    a("s_mov_b64 exec, 1")
    a(f"v_mov_b32 v{vt}, s87")
    a(f"buffer_store_dword v{vt}, v{vz}, {WSR}, {soff} offen sc1")
    a("s_mov_b64 exec, -1")

def cvt(a, dst, src, lo=0, hi=8):
    for i in range(lo, hi):
        a(f"v_cvt_pk_bf16_f32 v{dst+i}, v{src+2*i}, v{src+2*i+1}")

def vadd(a, dst, src, n):
    for i in range(n): a(f"v_add_f32 v{dst+i}, v{dst+i}, v{src+i}")
def vmul(a, dst, mul, n):
    for i in range(n): a(f"v_mul_f32 v{dst+i}, {mul}, v{dst+i}")

def phi_list(src, T, n=16, grp=8):
    o = []
    for g0 in range(0, n, grp):
        o += [f"v_fma_f32 v{T+i}, v{src+g0+i}, s64, -s64" for i in range(grp)]
        o += [f"v_exp_f32_e64 v{T+i}, v{T+i} clamp" for i in range(grp)]
        o += [f"v_max_f32 v{src+g0+i}, v{src+g0+i}, v{T+i}" for i in range(grp)]
        o += [f"v_add_f32 v{src+g0+i}, s66, v{src+g0+i}" for i in range(grp)]
    return o

def p3_addr(a, v0a, mat_off_sgpr, swap_sgpr, vt0, vt1):
    a(f"v_mov_b32 v{v0a+1}, 0")
    tr_lane_addr(a, v0a, v0a+1, vt0, vt1, 1)
    a(f"v_add_u32 v{v0a}, {mat_off_sgpr}, v{v0a}")
    a(f"v_xor_b32 v{v0a}, {swap_sgpr}, v{v0a}")
    a(f"v_xor_b32 v{v0a+1}, 64, v{v0a}")
    a(f"v_lshrrev_b32 v{vt0}, 5, v0")
    a(f"v_lshlrev_b32 v{vt0}, 9, v{vt0}")
    a(f"v_sub_u32 v{v0a+2}, v{v0a}, v{vt0}")
    a(f"v_sub_u32 v{v0a+3}, v{v0a+1}, v{vt0}")

def p3_oload(ks, vlane16, so):
    o = [f"buffer_load_dwordx4 {ar(4*ks,4)}, v{vlane16}, {WSR}, {so} offen offset:{1024*(ks&3)} sc1"]
    if ks & 3 == 3 and ks < 15: o.append(f"s_add_u32 {so}, {so}, 4096")
    return o

def p3_gemm(a, va, ACC, WF, first_zero, npre, vlane16, so):
    def reads(ks):
        f = WF[ks & 1]; hh, m = ks >> 1, ks & 1
        o = (14*hh + 8*m) * 256
        last = (ks == 15)
        return [f"ds_read_b64_tr_b16 {vr(f,2)}, v{va} offset:{o}",
                f"ds_read_b64_tr_b16 {vr(f+2,2)}, v{va+2 if last else va} offset:{o+1024}",
                f"ds_read_b64_tr_b16 {vr(f+4,2)}, v{va+1} offset:{o}",
                f"ds_read_b64_tr_b16 {vr(f+6,2)}, v{va+3 if last else va+1} offset:{o+1024}"]
    for x in reads(0): a(x)
    issued = npre
    for ks in range(16):
        f = WF[ks & 1]
        rd = reads(ks+1) if ks < 15 else []
        c0 = "0" if (first_zero and ks == 0) else vr(ACC[0], 16)
        c1 = "0" if (first_zero and ks == 0) else vr(ACC[1], 16)
        if issued < 16:
            for x in p3_oload(issued, vlane16, so): a(x)
            issued += 1
        a(f"s_waitcnt vmcnt({issued-1-ks}) lgkmcnt(2)")
        a(f"{MF} {vr(ACC[0],16)}, {vr(f,4)}, {ar(4*ks,4)}, {c0}")
        for x in rd[:2]: a(x)
        a(f"s_waitcnt lgkmcnt({2 if rd else 0})")
        a(f"{MF} {vr(ACC[1],16)}, {vr(f+4,4)}, {ar(4*ks,4)}, {c1}")
        for x in rd[2:]: a(x)

def p3_oloads(a, vlane16, so, n):
    for ks in range(n):
        for x in p3_oload(ks, vlane16, so): a(x)

E = lambda k, d: os.environ.get(k, d)
SIGK = int(E("SIGK", "6"))
ROT = int(E("ROT", "0"))
PT = E("PT", "0") == "1"
BL = E("BL", "0") == "1"
TOUCH = E("TB", "1,0") != "1,0" or E("TA", "1,0") != "1,0"
PQC = int(E("PQC", "-1"))
BQE = E("BQE", "0") == "1"
def gen(a):
    kernel_head(a, KN)
    a("s_cmp_ge_u32 s2, 256")
    a("s_cbranch_scc1 L_END")
    a("s_load_dwordx16 s[4:19], s[0:1], 0")
    a("s_load_dwordx4 s[20:23], s[0:1], 64")
    if STAMP or E("DIAGT", ""):
        a("s_memrealtime s[96:97]")
        a("s_memtime s[70:71]")
    a("v_lshrrev_b32 v1, 6, v0")
    a("v_and_b32 v0, 63, v0")
    a("v_readfirstlane_b32 s27, v1")
    a("s_and_b32 s64, s2, 7")
    a("s_lshr_b32 s32, s2, 3")
    a("s_lshr_b32 s34, s64, 1")
    a("s_and_b32 s33, s64, 1")
    a("s_lshr_b32 s29, s32, 3")
    a("s_lshl_b32 s24, s34, 2")
    a("s_add_u32 s24, s24, s29")
    a("s_and_b32 s26, s32, 1")
    a("s_bfe_u32 s25, s32, 0x20001")
    a("s_lshl_b32 s65, s33, 2")
    a("s_add_u32 s25, s25, s65")
    a("s_lshl_b32 s28, s25, 1")
    a("s_cmp_eq_u32 s26, s33" if E("HS", "0") == "0" else "s_cmp_lg_u32 s26, s33")
    a("s_addc_u32 s28, s28, 0")
    a("s_mul_i32 s30, s32, 37")
    a("s_lshr_b32 s30, s30, 8")
    a("s_mul_i32 s31, s30, 7")
    a("s_sub_u32 s31, s32, s31")
    a("s_lshl_b32 s64, s64, 2")
    a("s_add_u32 s30, s30, s64")
    a("s_mov_b32 s35, s27")
    a("s_cmp_ge_u32 s27, 4")
    a("s_cbranch_scc0 L_COMPUTE")
    helper(a)
    compute(a)
    a.label("L_END")
    a("s_endpgm")
    a.label("L_CODE_END")

def helper(a):
    a("s_sub_u32 s27, s27, 4")
    if ROT:
        a("s_and_b32 s64, s32, 7")
        a("s_lshr_b32 s64, s64, %s" % E("ROTS", "0"))
        a("s_add_u32 s64, s64, s29")
        if ROT == 2:
            a("s_and_b32 s64, s64, 1")
            a("s_mul_i32 s80, s64, %s" % E("ROTO", "3"))
        elif ROT == 3:
            a("s_mul_i32 s65, s64, 86")
            a("s_lshr_b32 s65, s65, 8")
            a("s_mul_i32 s65, s65, 3")
            a("s_sub_u32 s64, s64, s65")
            a("s_mul_i32 s80, s64, 5")
            a("s_lshr_b32 s80, s80, 1")
        elif ROT == 4:
            a("s_and_b32 s64, s64, 3")
            a("s_lshl_b32 s80, s64, 1")
        for i in range(1, 7):
            a(f"s_add_u32 s{80+i}, s{79+i}, 1")
            a(f"s_cmp_eq_u32 s{80+i}, 7")
            a(f"s_cselect_b32 s{80+i}, 0, s{80+i}")
    a("v_lshrrev_b32 v1, 3, v0")
    a("s_lshl_b32 s64, s24, 7")
    a("s_lshl_b32 s65, s27, 5")
    a("s_add_u32 s64, s64, s65")
    a("v_add_u32 v1, s64, v1")
    a("v_mul_u32_u24 v1, 896, v1")
    a("v_lshrrev_b32 v2, 4, v0")
    a("v_and_b32 v3, 7, v0")
    a("v_xor_b32 v2, v2, v3")
    a("v_lshl_add_u32 v2, v2, 4, v1")
    a("v_xor_b32 v3, 64, v2")
    a("v_add_u32 v3, 7168, v3")
    a("v_add_u32 v4, 14336, v2")
    a("v_add_u32 v5, 14336, v3")
    dma_lane_w(a, 6, 10, 11, 2688)
    a("s_mul_i32 s64, s27, 43008")
    a("s_mul_i32 s65, s25, 112")
    a("s_add_u32 s64, s64, s65")
    a("s_add_u32 s64, s64, 896")
    a("v_add_u32 v6, s64, v6")
    a("v_add_u32 v7, 21504, v6")
    a("v_add_u32 v8, 896, v6")
    a("v_add_u32 v9, 896, v7")
    a("s_lshl_b32 s66, s27, 12")
    a("s_lshl_b32 s67, s27, 11")
    a(f"s_add_u32 s67, s67, {RING}")
    a(f"s_mov_b32 s{SX+2}, 1835008")
    a(f"s_mov_b32 s{SX+3}, 0x20000")
    a(f"s_mov_b32 s{SW+2}, 1204224")
    a(f"s_mov_b32 s{SW+3}, 0x20000")
    a("s_cmp_eq_u32 s26, 0")
    a("s_waitcnt lgkmcnt(0)")
    a(f"s_mov_b32 s{SX}, s4")
    a(f"s_mov_b32 s{SX+1}, s5")
    a(f"s_cselect_b32 s{SW}, s6, s12")
    a(f"s_cselect_b32 s{SW+1}, s7, s13")
    vm = []
    def xload(c):
        for q in range(4):
            a(f"s_add_u32 m0, s66, {c*16384 + q*1024}")
            a((f"s_lshl_b32 s64, s{80+c}, 7" if ROT else f"s_mov_b32 s64, {c*128}") if q == 0 else "s_nop 0")
            a(f"buffer_load_dwordx4 v{2+q}, {R(SX)}, s64 offen lds"); vm.append(("x", c))
    def wload(c):
        for pt in range(2):
            for u in range(2):
                a(f"s_add_u32 m0, s67, {(c%3)*16384 + pt*8192 + u*1024}")
                a((f"s_mul_i32 s65, s{80+c}, 172032" if ROT else f"s_mov_b32 s65, {c*172032}") if pt + u == 0 else "s_nop 0")
                a(f"buffer_load_dwordx4 v{6+2*pt+u}, {R(SW)}, s65 offen lds"); vm.append(("w", c))
    def qload(mat, part):
        slot = {(1, 0): 1, (1, 1): 2, (0, 0): 0, (0, 1): 1}[(mat, part)]
        for u in range(3 if part else 4):
            a(f"s_add_u32 m0, s{89 if part else 88}, {slot*16384 + u*1024}")
            a(f"s_mov_b32 s65, {u*43008}")
            a(f"buffer_load_dwordx4 v{10+part}, {R(SWA if mat == 0 else SWB)}, s65 offen lds"); vm.append(("q", mat, part))
    def waitfor(*tags):
        last = max(i for i, tg in enumerate(vm) if tg in tags)
        a(f"s_waitcnt vmcnt({len(vm)-1-last})")
    def patch(part):
        if part: a("s_mov_b32 exec_hi, 0xffff")
        a(f"ds_write_b16 v{15+part}, v{12+part}")
        if part: a("s_mov_b32 exec_hi, -1")
    def initcheck(tag):
        a("v_readfirstlane_b32 s87, v17")
        a("s_nop 0")
        a("s_cmp_lg_u32 s87, 0")
        a(f"s_cbranch_scc1 H_INIT_OK{tag}")
        poll(a, "INIT" + tag, R(SD), "0", 1, 18, 17)
        a("v_readfirstlane_b32 s87, v17")
        a.label(f"H_INIT_OK{tag}")
    stamp(a, 1, 2)
    xload(0); wload(0)
    srd(a, SWA, 6, 1204224); srd(a, SWB, 12, 1204224)
    srd(a, SWS, 22, WS_SIZE); srd(a, SD, 20, 256); srd(a, SG, 16, 896)
    a("v_lshrrev_b32 v10, 2, v0")
    a("v_mul_u32_u24 v10, 2688, v10")
    a("v_and_b32 v11, 3, v0")
    a("v_lshl_add_u32 v10, v11, 4, v10")
    a("s_mul_i32 s65, s28, 56")
    a("s_mul_i32 s64, s27, 129024")
    a("s_add_u32 s64, s64, s65")
    a(f"s_add_u32 s64, s64, {256*2688}")
    a("v_add_u32 v11, s64, v10")
    a("s_mul_i32 s64, s27, 172032")
    a("s_add_u32 s64, s64, s65")
    a("v_add_u32 v10, s64, v10")
    a("s_lshl_b32 s88, s27, 12")
    a(f"s_add_u32 s88, s88, {RING}")
    a("s_mul_i32 s89, s27, 3072")
    a(f"s_add_u32 s89, s89, {RING}")
    a(f"s_add_u32 s64, s88, {16384 + 56}")
    a("v_lshl_add_u32 v15, v0, 6, s64")
    a(f"s_add_u32 s64, s89, {32768 + 56}")
    a("v_lshl_add_u32 v16, v0, 6, s64")
    a("s_lshl_b32 s64, s27, 7")
    a("v_lshl_add_u32 v14, v0, 1, s64")
    a("s_mul_i32 s64, s27, 96")
    a("s_add_u32 s64, s64, 512")
    a("v_lshl_add_u32 v17, v0, 1, s64")
    a("v_mov_b32 v18, 0")
    if TOUCH: a("s_barrier")
    XE = int(E("XE", "0"))
    xload(1); wload(1)
    if XE: xload(2)
    stamp(a, 1); stamp(a, 2, 2)
    for c in range(5):
        waitfor(("x", c), ("w", c)); a("s_barrier"); stamp(a, 3+c, 2)
        if c == 0: stamp(a, 2)
        if not XE: xload(c+2)
        wload(c+2)
        if XE and c < 4: xload(c+3)
        if c == 1:
            a(f"buffer_load_ushort v12, v14, {R(SG)}, 0 offen"); vm.append(("g", 0))
            a(f"buffer_load_ushort v13, v17, {R(SG)}, 0 offen"); vm.append(("g", 1))
        if c == 3:
            a(f"buffer_load_dword v17, v18, {R(SD)}, 0 offen sc1"); vm.append(("d", 0))
    waitfor(("x",5),("w",5)); a("s_barrier"); stamp(a, 8, 2)
    qload(1, 0)
    waitfor(("x",6),("w",6)); a("s_barrier"); stamp(a, 9, 2)
    a("s_lshl_b32 s64, s25, 4")
    a("s_add_u32 s64, s64, s24")
    a("s_lshl_b32 s64, s64, 7")
    a(f"s_add_u32 s66, s64, {C_KV}")
    initcheck("A")
    if BL:
        a("s_cmp_eq_u32 s26, 0")
        a("s_cbranch_scc1 H_QA")
        a("s_waitcnt vmcnt(0)"); patch(0)
        a("s_waitcnt lgkmcnt(0)")
        a("s_barrier")
        qload(1, 1)
        a("s_cmp_eq_u32 s27, 3")
        a("s_barrier")
        a("s_cbranch_scc0 H_NOSIGB")
        signal(a, "s66", 18, 19)
        a.label("H_NOSIGB")
        qload(0, 0)
        a("s_waitcnt vmcnt(5)")
        a("s_cmp_eq_u32 s27, 3")
        a("s_cbranch_scc1 H_W5")
        a("s_waitcnt vmcnt(4)")
        a.label("H_W5")
        patch(1)
        a("s_waitcnt lgkmcnt(0)")
        a("s_barrier")
        a("s_barrier")
        qload(0, 1)
        a("s_barrier")
        a("s_waitcnt vmcnt(3)")
        a("s_barrier")
        a("s_waitcnt vmcnt(0)")
        a("s_branch H_SIGD")
        a.label("H_QA")
    qload(1, 1)
    a("s_waitcnt vmcnt(3)"); patch(0)
    a("s_waitcnt vmcnt(0)"); patch(1)
    a("s_waitcnt lgkmcnt(0)")
    a("s_barrier"); stamp(a, 10, 2)
    qload(0, 0)
    a("s_barrier")
    qload(0, 1)
    a("s_xor_b32 s64, s27, 3")
    a("s_xor_b32 s65, s26, 1")
    a("s_or_b32 s64, s64, s65")
    a("s_barrier")
    a("s_cbranch_scc1 H_NOSIGKV")
    signal(a, "s66", 18, 19)
    a("s_waitcnt vmcnt(4)")
    a("s_barrier")
    a("s_waitcnt vmcnt(1)")
    a("s_branch H_SIGD")
    a.label("H_NOSIGKV")
    a("s_waitcnt vmcnt(3)")
    a("s_barrier")
    a("s_waitcnt vmcnt(0)")
    a.label("H_SIGD")
    a("s_barrier")
    a(f"v_mov_b32 v1, {L_CNT}")
    for i in range(8, 12): a(f"v_mov_b32 v{i}, 0")
    a("ds_write_b128 v1, v[8:11]")
    a("s_nop 1")
    a("v_mov_b32 v9, s87")
    a("ds_write_b128 v1, v[8:11] offset:16")
    a("v_lshlrev_b32 v2, 4, v0")
    dma_lane_w(a, 3, 4, 5, 896)
    a("s_mul_i32 s64, s27, 7168")
    a("s_lshl_b32 s65, s31, 7")
    a("s_add_u32 s64, s64, s65")
    a("v_add_u32 v3, s64, v3")
    a("s_lshr_b32 s65, s27, 1")
    a("s_mul_i32 s64, s65, 28672")
    a("s_lshl_b32 s65, s65, 6")
    p3_addr(a, 4, "s64", "s65", 8, 9)
    srd(a, SWA, 8, 401408); srd(a, SWB, 14, 401408)
    a("s_lshl_b32 s65, s25, 2")
    a("s_add_u32 s65, s65, s27")
    a("s_lshl_b32 s65, s65, 9")
    a(f"s_add_u32 s65, s65, {C_KV}")
    a("v_lshlrev_b32 v10, 7, v0")
    stamp(a, 3)
    if E("P2", "0") == "1": poll2(a, "KV", "s65", 4, 10, 12, int(E("KS", "2")))
    else: poll(a, "KV", WSR, "s65", 4, 10, 11, int(E("KS", "0")))
    a("s_waitcnt lgkmcnt(0)")
    a("s_barrier")
    a("s_setprio %s" % E("HP", "2"))
    stamp(a, 4); stamp(a, 1, 3); stamp(a, 1, 7)
    PQ, G, KF, NUM, PA = 80, 88, 92, 100, 116
    def wo_dma(tag, srdreg, base, lo, hi, depth):
        if hi <= lo: return
        a("s_lshl_b32 s66, s27, 10")
        a(f"s_add_u32 s66, s66, {base + lo*4096}")
        a(f"s_mov_b32 s63, {lo*28672}")
        a.label(f"H_WO{tag}")
        a("s_mov_b32 m0, s66")
        a("s_add_u32 s66, s66, 4096")
        a(f"buffer_load_dwordx4 v3, {R(srdreg)}, s63 offen lds")
        a("s_add_u32 s63, s63, 28672")
        a(f"s_waitcnt vmcnt({depth})")
        a(f"s_cmp_lt_u32 s63, {hi*28672}")
        a(f"s_cbranch_scc1 H_WO{tag}")
    W1 = int(E("W1", "0"))
    a("s_cmp_ge_u32 s32, 28")
    a("s_cbranch_scc1 H_NOWO0")
    wo_dma("0", SWA, 0, 0, W1, int(E("WOD0", "2")))
    a.label("H_NOWO0")
    if "hskip" in X:
        a("s_branch H_SKIP")
    lds_wait(a, "C0", 1, 8, 4, 9)
    stamp(a, 2, 7)
    a("s_lshl_b32 s64, s27, 11")
    a(f"s_add_u32 s64, s64, {L_PQ}")
    a("v_add_u32 v8, s64, v2")
    a(f"ds_read_b128 {vr(PQ,4)}, v8")
    a(f"ds_read_b128 {vr(PQ+4,4)}, v8 offset:1024")
    a("s_lshl_b32 s64, s27, 8")
    a(f"s_add_u32 s64, s64, {L_G}")
    a("v_lshl_add_u32 v8, v0, 2, s64")
    a(f"ds_read_b32 v{G}, v8")
    a("s_cmp_ge_u32 s27, 2")
    a("s_cselect_b32 s64, s26, 1")
    a("s_cmp_eq_u32 s64, 0")
    a("s_cbranch_scc0 H_NOKVP")
    a("s_and_b32 s65, s27, 1")
    a("s_lshl_b32 s64, s65, 12")
    a(f"s_add_u32 s64, s64, {L_KVD}")
    a("v_add_u32 v8, s64, v2")
    for i in range(8):
        a(f"ds_read_b128 {vr(16+4*i,4)}, v8 offset:{1024*(i&3) + 8192*(i>>2)}")
    a("s_lshl_b32 s64, s25, 1")
    a("s_add_u32 s64, s64, s65")
    a(f"s_mul_i32 s64, s64, {PAD}")
    a("s_lshl_b32 s65, s24, 12")
    a("s_add_u32 s64, s64, s65")
    a(f"s_add_u32 s64, s64, {WS_KVP}")
    a("s_waitcnt lgkmcnt(0)")
    vadd(a, 16, 32, 16)
    for q in range(4):
        a(f"buffer_store_dwordx4 {vr(16+4*q,4)}, v2, {WSR}, s64 offen offset:{1024*q} sc1")
    a("s_lshl_b32 s64, s25, 4")
    a("s_add_u32 s64, s64, s24")
    a("s_lshl_b32 s64, s64, 7")
    a(f"s_add_u32 s64, s64, {C_A}")
    a("v_mov_b32 v11, 1")
    stamp(a, 3, 7)
    a("s_waitcnt vmcnt(0)")
    stamp(a, 4, 7)
    a("s_mov_b64 exec, 1")
    a("ds_add_rtn_u32 v9, v1, v11 offset:12")
    a("s_waitcnt lgkmcnt(0)")
    a("v_readfirstlane_b32 s69, v9")
    a("s_mov_b64 exec, -1")
    a("s_cmp_eq_u32 s69, 1")
    a("s_cbranch_scc0 H_NOKVP")
    signal(a, "s64", 10, 11)
    a.label("H_NOKVP")
    stamp(a, 5, 7)
    lo = lambda: a("s_setprio 0") if PT else None
    hi = lambda: a("s_setprio 2") if PT else None
    lo()
    a("s_cmp_ge_u32 s32, 28")
    a("s_cbranch_scc1 H_NOWOA")
    if "nowo" not in X:
        wo_dma("A", SWA, 0, W1, 14, int(E("WOD", "5")))
        wo_dma("B", SWB, 57344, 0, 14, int(E("WOD", "5")))
    a.label("H_NOWOA")
    stamp(a, 2, 3); stamp(a, 6, 7)
    hi()
    a("s_lshl_b32 s64, s25, 11")
    a(f"s_add_u32 s64, s64, {C_A}")
    if "nopolla" not in X:
        a("s_cmp_eq_u32 s27, 0")
        a("s_cbranch_scc0 H_AW")
        poll(a, "A", WSR, "s64", 16, 10, 11, int(E("AS", "16")))
        a("v_mov_b32 v11, 1")
        a("ds_write_b32 v1, v11 offset:16")
        a("s_branch H_AD")
        a.label("H_AW")
        lds_wait(a, "A", 1, 16, 1, 9, 4)
        a.label("H_AD")
    stamp(a, 3, 3); stamp(a, 7, 7)
    a(f"s_mul_i32 s64, s28, {PAD}")
    a("s_lshl_b32 s65, s27, 10")
    a("s_add_u32 s64, s64, s65")
    a(f"s_add_u32 s64, s64, {WS_KVP}")
    KD = int(E("KD", "2"))
    lo()
    for i in range(16):
        if "nokvl" not in X: a(f"buffer_load_dwordx4 {vr(16+4*i,4)}, v2, {WSR}, s64 offen sc1")
        a("s_add_u32 s64, s64, 4096")
        if i > KD:
            a(f"s_waitcnt vmcnt({KD})")
            hi()
            if "nokva" not in X: vadd(a, 16, 16+4*(i-KD), 4)
            lo()
    stamp(a, 4, 3)
    hi()
    for j in range(16-KD, 16):
        a(f"s_waitcnt vmcnt({15-j})")
        vadd(a, 16, 16+4*j, 4)
    stamp(a, 5, 3)
    if "nofin" in X:
        a("s_branch H_SKIP")
    a("v_cvt_pk_bf16_f32 v16, v16, v17")
    a("v_cvt_pk_bf16_f32 v17, v18, v19")
    a("s_lshr_b32 s64, s27, 1")
    a("s_lshl_b32 s64, s64, 10")
    a("s_and_b32 s65, s27, 1")
    a("s_lshl_b32 s65, s65, 3")
    a("s_add_u32 s64, s64, s65")
    a(f"s_add_u32 s64, s64, {L_KVF}")
    a("v_add_u32 v8, s64, v2")
    a("ds_write_b64 v8, v[16:17]")
    a("v_mov_b32 v11, 1")
    a("s_waitcnt lgkmcnt(0)")
    a("s_mov_b64 exec, 1")
    a("ds_add_u32 v1, v11")
    lds_wait(a, "C1", 1, 0, 4, 9)
    stamp(a, 6, 3)
    a(f"v_add_u32 v8, {L_KVF}, v2")
    a(f"ds_read_b128 {vr(KF,4)}, v8")
    a(f"ds_read_b128 {vr(KF+4,4)}, v8 offset:1024")
    a("s_waitcnt lgkmcnt(0)")
    a(f"{MF} {vr(NUM,16)}, {vr(KF,4)}, {vr(PQ,4)}, 0")
    a(f"{MF} {vr(NUM,16)}, {vr(KF+4,4)}, {vr(PQ+4,4)}, {vr(NUM,16)}")
    a("s_lshl_b32 s64, s24, 2")
    a("s_add_u32 s64, s64, s27")
    a(f"s_mul_i32 s64, s64, {PAD}")
    a("s_lshl_b32 s65, s28, 11")
    a("s_add_u32 s64, s64, s65")
    a(f"s_add_u32 s64, s64, {WS_OF}")
    a(f"v_mov_b32 v{PA+6}, 0")
    a(f"v_mov_b32 v{PA+7}, 0")
    a("s_nop 15")
    a(f"v_mov_b32 v8, v{NUM+12}")
    a(f"v_mov_b32 v9, v{NUM+12}")
    a("s_nop 1")
    a("v_permlane32_swap_b32 v8, v9")
    a(f"v_add_f32 v9, {f32(EPS)}, v9")
    a("v_rcp_f32 v9, v9")
    a("s_nop 0")
    a(f"v_mul_f32 v9, v9, v{G}")
    vmul(a, NUM, "v9", 16)
    cvt(a, PA, NUM, 0, 6)
    a("s_mov_b32 exec_hi, 0")
    cvt(a, PA, NUM, 6, 8)
    a("s_mov_b32 exec_hi, -1")
    a(f"buffer_store_dwordx4 {vr(PA,4)}, v2, {WSR}, s64 offen sc1")
    a(f"buffer_store_dwordx4 {vr(PA+4,4)}, v2, {WSR}, s64 offen offset:1024 sc1")
    stamp(a, 7, 3)
    a("s_waitcnt vmcnt(0)")
    stamp(a, 8, 3)
    a("s_mov_b64 exec, 1")
    a("ds_add_rtn_u32 v9, v1, v11 offset:4")
    a("s_waitcnt lgkmcnt(0)")
    a("v_readfirstlane_b32 s69, v9")
    a("s_mov_b64 exec, -1")
    a("s_cmp_eq_u32 s69, 3")
    a("s_cbranch_scc0 H_NOSIGOA")
    if "hskip" in X or "nofin" in X:
        a.label("H_SKIP")
        a("s_cmp_eq_u32 s27, 0")
        a("s_cbranch_scc0 H_NOSIGOA")
    a("s_lshl_b32 s64, s24, 4")
    a("s_add_u32 s64, s64, s28")
    a("s_lshl_b32 s64, s64, 7")
    a(f"s_add_u32 s64, s64, {C_OA}")
    signal(a, "s64", 10, 11)
    a.label("H_NOSIGOA")
    stamp(a, 5); stamp(a, 9, 3)
    a("s_setprio 0")
    a("s_barrier")
    a("s_cmp_ge_u32 s32, 28")
    a("s_cbranch_scc1 H_NOP3B")
    stamp(a, 6)
    a("s_and_b32 s64, s30, 0xfe")
    a("s_lshr_b32 s65, s27, 1")
    a("s_add_u32 s64, s64, s65")
    a("s_lshl_b32 s64, s64, 10")
    a(f"s_add_u32 s64, s64, {C_OA}")
    a("s_and_b32 s62, s27, 1")
    a("s_lshl_b32 s65, s30, 1")
    a("s_add_u32 s62, s62, s65")
    a(f"s_mul_i32 s62, s62, {PAD}")
    a("s_lshr_b32 s65, s27, 1")
    a("s_lshl_b32 s65, s65, 14")
    a("s_add_u32 s62, s62, s65")
    a(f"s_add_u32 s62, s62, {WS_OF}")
    NE = int(E("NE", "8"))
    a("s_mov_b64 exec, 0xff")
    a(f"buffer_load_dword v11, v10, {WSR}, s64 offen sc1")
    a("s_waitcnt vmcnt(0)")
    a("v_cmp_ne_u32 vcc, s87, v11")
    a("s_mov_b64 exec, -1")
    a("s_cbranch_vccnz H_OALATE")
    p3_oloads(a, 2, "s62", NE)
    a("s_barrier")
    a("s_barrier")
    a("s_branch H_OADONE")
    a.label("H_OALATE")
    a("s_barrier")
    a("s_barrier")
    poll(a, "OA", WSR, "s64", 8, 10, 11, 2)
    p3_oloads(a, 2, "s62", NE)
    a.label("H_OADONE")
    NPRE = 16
    for ks in range(NE, 16):
        for x in p3_oload(ks, 2, "s62"): a(x)
    stamp(a, 7); stamp(a, 10, 3)
    p3_gemm(a, 4, [16, 32], [48, 56], True, NPRE, 2, "s62")
    stamp(a, 8)
    a("s_lshl_b32 s64, s27, 13")
    a(f"s_add_u32 s64, s64, {RING}")
    a("v_add_u32 v8, s64, v2")
    a("s_nop 9")
    for i in range(8):
        a(f"ds_write_b128 v8, {vr(16+4*i,4)} offset:{1024*i}")
    a("s_waitcnt lgkmcnt(0)")
    stamp(a, 9)
    a("s_barrier")
    a("s_branch H_EXIT")
    a.label("H_NOP3B")
    a("s_barrier")
    a("s_barrier")
    a.label("H_EXIT")
    stamp(a, 10)
    stamp_out(a, 11)
    a("s_endpgm")

def compute(a):
    a.label("L_COMPUTE")
    XA, WA, WB, XQ, WQ = 2, 6, 7, 8, 12
    FR = 16; accK = [64, 80]; accV = [96, 112]; pK = [128, 136]; pV = [144, 152]
    QA, QB = 96, 112
    def touch(tag, c0, n, withq):
        a("s_lshr_b32 s60, s32, 1")
        a("s_cmp_eq_u32 s27, 3")
        if withq:
            a(f"s_cbranch_scc0 C_T0{tag}")
            srd(a, SWA, 6, 1204224); srd(a, SWB, 12, 1204224)
            a("s_mul_i32 s60, s60, 7")
            a("v_lshrrev_b32 v17, 2, v0")
            a("v_add_u32 v17, s60, v17")
            a("v_lshl_add_u32 v17, v17, 2, s34")
            a("v_mul_u32_u24 v17, 2688, v17")
            a("v_and_b32 v16, 3, v0")
            a("v_lshl_add_u32 v17, v16, 7, v17")
            a("s_mul_i32 s62, s33, 384")
            a("s_mov_b64 exec, 0x0fffffff")
            a(f"buffer_load_dword a88, v17, {R(SWA)}, s62 offen")
            a(f"buffer_load_dword a89, v17, {R(SWB)}, s62 offen")
            if E("TWO", "1") == "1":
                srd(a, SWA, 8, 401408); srd(a, SWB, 14, 401408)
                a("s_lshr_b32 s60, s32, 1")
                a("s_lshl_b32 s60, s60, 3")
                a("s_and_b32 s61, s2, 7")
                a("s_add_u32 s60, s60, s61")
                a("s_mul_i32 s60, s60, 25")
                a("v_add_u32 v17, s60, v0")
                a("v_lshlrev_b32 v17, 7, v17")
                a("s_mov_b64 exec, 0x1ffffff")
                a(f"buffer_load_dword a90, v17, {R(SWA)}, 0 offen")
                a(f"buffer_load_dword a91, v17, {R(SWB)}, 0 offen")
            a("s_mov_b64 exec, -1")
            a(f"s_branch C_TD{tag}")
            a.label(f"C_T0{tag}")
        else:
            a(f"s_cbranch_scc1 C_TD{tag}")
        a("s_cmp_eq_u32 s27, 0")
        a(f"s_cbranch_scc0 C_T1{tag}")
        srd(a, SW, 4, 1835008)
        a("s_lshl_b32 s61, s34, 9")
        a("s_lshl_b32 s60, s60, 5")
        a("s_add_u32 s60, s60, s61")
        a("v_and_b32 v17, 31, v0")
        a("v_add_u32 v17, s60, v17")
        a("v_mul_u32_u24 v17, 896, v17")
        a("v_lshrrev_b32 v16, 5, v0")
        a("v_lshl_add_u32 v17, v16, 7, v17")
        a(f"s_mov_b32 s62, {128*c0}")
        a("s_mov_b32 s63, 256")
        a(f"s_branch C_T2{tag}")
        a.label(f"C_T1{tag}")
        a("s_cmp_eq_u32 s27, 1")
        a(f"s_cselect_b32 s{SW}, s12, s6")
        a(f"s_cselect_b32 s{SW+1}, s13, s7")
        a(f"s_mov_b32 s{SW+2}, 1204224")
        a(f"s_mov_b32 s{SW+3}, 0x20000")
        a("v_lshrrev_b32 v17, 5, v0")
        a("v_lshlrev_b32 v17, 6, v17")
        a("v_bfe_u32 v16, v0, 3, 2")
        a("s_lshl_b32 s60, s60, 2")
        a("v_add3_u32 v17, v17, v16, s60")
        a("v_mul_u32_u24 v17, 2688, v17")
        a("v_bfe_u32 v16, v0, 2, 1")
        a("v_mul_u32_u24 v16, 896, v16")
        a("v_add_u32 v17, v17, v16")
        a("v_and_b32 v16, 3, v0")
        a("v_lshl_add_u32 v17, v16, 7, v17")
        a("s_mul_i32 s62, s33, 384")
        a(f"s_add_u32 s62, s62, {896 + 172032*c0}")
        a(f"s_mov_b32 s63, {2*172032}")
        a.label(f"C_T2{tag}")
        for i in range((n+1)//2):
            if 2*i+1 == n: a("s_mov_b32 exec_hi, 0")
            a(f"buffer_load_dword a{88+i}, v17, {R(SW)}, s62 offen")
            if 2*i+1 == n: a("s_mov_b32 exec_hi, -1")
            if 2*i+2 < n: a("s_add_u32 s62, s62, s63")
        a.label(f"C_TD{tag}")
    TB = [int(v) for v in E("TB", "1,0").split(",")]
    TA = [int(v) for v in E("TA", "1,0").split(",")]
    a("s_waitcnt lgkmcnt(0)")
    if TB[1]:
        a("s_cmp_eq_u32 s26, 0")
        a("s_cbranch_scc1 C_NTB")
        touch("B", TB[0], TB[1], E("TQ", "A") == "B")
        a.label("C_NTB")
    TAE = E("TAE", "0")
    if TA[1] and TAE == "1":
        a("s_cmp_eq_u32 s26, 0")
        a("s_cbranch_scc0 C_NTA")
        touch("A", TA[0], TA[1], E("TQ", "A") == "A")
        a.label("C_NTA")
    srd(a, SWS, 22, WS_SIZE)
    a("s_xor_b32 s64, s27, 3")
    a("s_xor_b32 s65, s2, 8")
    a("s_or_b32 s64, s65, s64")
    a("s_cmp_eq_u32 s64, 0")
    a("s_cbranch_scc0 C_NOINIT")
    a("s_memrealtime s[64:65]")
    srd(a, SD, 20, 256)
    a("v_mov_b32 v21, 0")
    a("s_waitcnt lgkmcnt(0)")
    a("s_lshl_b32 s64, s64, 1")
    a("s_or_b32 s64, s64, 1")
    a("v_mov_b32 v22, s64")
    a("s_mov_b64 exec, 1")
    a(f"buffer_store_dword v22, v21, {R(SD)}, 0 offen sc1")
    a("s_mov_b64 exec, -1")
    a.label("C_NOINIT")
    a("s_lshr_b32 s92, s27, 1")
    a("s_and_b32 s93, s27, 1")
    a("v_and_b32 v13, 31, v0")
    a("v_lshrrev_b32 v14, 5, v0")
    a("v_bfe_u32 v15, v0, 1, 3")
    a("v_xor_b32 v15, v15, v14")
    a("s_lshl_b32 s64, s92, 13")
    a("v_lshl_add_u32 v1, v13, 7, s64")
    a("s_lshl_b32 s65, s27, 12")
    a("s_sub_u32 s65, s65, s64")
    for ks in range(4):
        a(f"v_xor_b32 v{XA+ks}, {2*ks}, v15")
        a(f"v_lshl_add_u32 v{XA+ks}, v{XA+ks}, 4, v1")
        a(f"v_add_u32 v{XQ+ks}, s65, v{XA+ks}")
    a("s_mul_i32 s64, s93, 56")
    a(f"v_mov_b32 v{WA}, s64")
    tr_lane_addr(a, WB, WA, 1, 15, 2)
    a(f"v_add_u32 v{WB}, {RING}, v{WB}")
    a(f"v_mov_b32 v{WA}, v{WB}")
    a("v_bfe_u32 v1, v0, 2, 2")
    a("v_lshl_add_u32 v1, v14, 3, v1")
    a("v_lshlrev_b32 v1, 1, v1")
    a("v_bfe_u32 v15, v0, 4, 1")
    a("v_add_u32 v1, v1, v15")
    a("v_lshlrev_b32 v1, 2, v1")
    a("v_and_b32 v15, 3, v0")
    a("v_add_u32 v1, v1, v15")
    a("v_lshlrev_b32 v1, 3, v1")
    a(f"v_add_u32 v{WQ}, {RING}, v1")
    if TA[1] and TAE == "2":
        a("s_cmp_eq_u32 s26, 0")
        a("s_cbranch_scc0 C_NTA")
        touch("A", TA[0], TA[1], E("TQ", "A") == "A")
        a("s_barrier")
        a.label("C_NTA")
    a("v_cmp_eq_u32 vcc, 28, v13")
    a(f"v_mov_b32 v1, {ONE2}")
    a("s_nop 0")
    a("v_cndmask_b32 v15, 0, v1, vcc")
    for s in range(2):
        for i in range(8):
            a(f"v_mov_b32 v{pV[s]+i}, v15")
    a("s_mov_b32 s56, 0x0fffffff")
    a("s_mov_b32 s57, 0x0fffffff")
    a(f"s_mov_b32 s64, {f32(LOG2E)}")
    a(f"s_mov_b32 s65, {f32(QSCALE)}")
    a(f"s_mov_b32 s66, {f32(EPS)}")
    for i in range(32):
        a(f"v_mov_b32 v{accV[0]+i}, 0")
    a("v_lshlrev_b32 v13, 4, v0")
    a("s_cmp_eq_u32 s26, 0")
    a("s_cbranch_scc1 C_A")

    def scalars():
        for s in range(4):
            a(f"s_add_u32 s60, s27, {1+s}")
            a("s_and_b32 s60, s60, 3")
            a(f"s_lshl_b32 s{36+s}, s60, 11")
            a(f"s_add_u32 s{36+s}, s{36+s}, {L_QD}")
            a(f"s_mul_i32 s{40+s}, s60, 12288")
            a(f"s_add_u32 s{40+s}, s{40+s}, {RING + (4096*s if s < 3 else 0)}")
        a(f"s_mul_i32 s44, s28, {4*PAD}")
        a(f"s_mul_i32 s45, s27, {PAD}")
        a("s_add_u32 s45, s45, s44")
        a("s_lshl_b32 s46, s24, 2")
        a("s_add_u32 s46, s46, s27")
        a(f"s_mul_i32 s46, s46, {PAD}")
        a("s_lshl_b32 s60, s28, 11")
        a("s_add_u32 s46, s46, s60")
        a(f"s_add_u32 s46, s46, {WS_OF + 32768}")
        a("s_lshl_b32 s47, s27, 12")
        a(f"s_add_u32 s47, s47, {L_KVD}")
        a("s_lshl_b32 s48, s27, 8")
        a(f"s_add_u32 s48, s48, {L_G}")
    def reads(buf, ks):
        f = FR + 16*buf
        return [f"ds_read_b128 {vr(f,4)}, v{XA+ks}",
                f"ds_read_b64_tr_b16 {vr(f+8,2)}, v{WA} offset:{ks*2048}",
                f"ds_read_b64_tr_b16 {vr(f+10,2)}, v{WA} offset:{ks*2048+512}",
                f"ds_read_b128 {vr(f+4,4)}, v{XA+ks} offset:4096",
                f"ds_read_b64_tr_b16 {vr(f+12,2)}, v{WA} offset:{8192+ks*2048}",
                f"ds_read_b64_tr_b16 {vr(f+14,2)}, v{WA} offset:{8192+ks*2048+512}"]
    def mfmas(buf, kT):
        f = FR + 16*buf
        Xf = [vr(f, 4), vr(f+4, 4)]; Wk, Wv = vr(f+8, 4), vr(f+12, 4)
        m = []
        for s in range(2): m.append(f"{MF} {vr(accV[s],16)}, {Xf[s]}, {Wk}, {vr(accV[s],16)}")
        for s in range(2):
            if kT: m.append(f"{MF} {vr(accK[s],16)}, {Wv}, {Xf[s]}, {vr(accK[s],16)}")
            else:  m.append(f"{MF} {vr(accK[s],16)}, {Xf[s]}, {Wv}, {vr(accK[s],16)}")
        return m
    def mainloop(tag, kT):
        a("s_mov_b32 s60, 0")
        a("s_mov_b32 s61, 0")
        if STAMP != 4: stampc(a, 1)
        a("s_barrier")
        if STAMP != 4: stampc(a, 2)
        for r in reads(0, 0): a(r)
        a(".p2align 6")
        a.label(f"C_{tag}_LOOP")
        for ks in range(4):
            m = mfmas(ks & 1, kT); r = reads((ks+1) & 1, (ks+1) & 3)
            if ks < 3:
                a("s_waitcnt lgkmcnt(3)"); a(m[0]); a(r[0]); a(r[1]); a(r[2])
                a("s_waitcnt lgkmcnt(5)"); a(m[1]); a(r[3]); a(r[4]); a(r[5])
                a("s_waitcnt lgkmcnt(6)"); a(m[2])
                a(f"v_add_u32 v{XA+ks}, 16384, v{XA+ks}")
                if ks == 2:
                    a("s_add_u32 s60, s60, 1")
                    a("s_add_u32 s61, s61, 16384")
                    a("s_cmp_eq_u32 s61, 49152")
                    a("s_cselect_b32 s61, 0, s61")
                a(m[3])
            else:
                a(f"v_add_u32 v{WA}, s61, v{WB}")
                a("s_cmp_eq_u32 s60, 7")
                a("s_waitcnt lgkmcnt(0)")
                a(f"s_cbranch_scc1 C_{tag}_TAIL")
                a("s_barrier")
                a(m[0]); a(r[0]); a(r[1]); a(r[2])
                a(m[1]); a(r[3]); a(r[4]); a(r[5])
                a(m[2])
                a(f"v_add_u32 v{XA+3}, 16384, v{XA+3}")
                a(m[3])
                a(f"s_branch C_{tag}_LOOP")
                a.label(f"C_{tag}_TAIL")
                for x in m: a(x)
        stampc(a, 3)
        if "nords" in X or "nomf" in X:
            i0 = max(i for i, l in enumerate(a.lines) if l.startswith(f"C_{tag}_LOOP"))
            for i in range(i0, len(a.lines)):
                l = a.lines[i].strip()
                if "nords" in X and l.startswith("ds_read"): a.lines[i] = "    s_nop 0"
                if "nomf" in X and l.startswith("v_mfma"): a.lines[i] = "    s_nop 7"
    _reads = reads
    def reads(buf, ks):
        r = _reads(buf, ks)
        f = FR + 16*buf
        r[1] = f"ds_read_b64_tr_b16 {vr(f+8,2)}, v{WA} offset:{8192+ks*2048}"
        r[2] = f"ds_read_b64_tr_b16 {vr(f+10,2)}, v{WA} offset:{8192+ks*2048+512}"
        r[4] = f"ds_read_b64_tr_b16 {vr(f+12,2)}, v{WA} offset:{ks*2048}"
        r[5] = f"ds_read_b64_tr_b16 {vr(f+14,2)}, v{WA} offset:{ks*2048+512}"
        return r
    def cvt_v():
        a("s_nop 9")
        a("s_mov_b64 exec, s[56:57]")
        for s in range(2): cvt(a, pV[s], accV[s])
        a("s_mov_b64 exec, -1")
    def qpass(mat, acc, c0, bars):
        def qreads(k):
            f = FR + 8*(k % 4)
            slot = {(1, 0): 1, (1, 1): 2, (0, 0): 0, (0, 1): 1}[(mat, k >> 4)]
            o = slot*16384 + (k & 15)*1024
            xr = (XQ if k < 16 else XA) + (k & 3)
            return [f"ds_read_b128 {vr(f,4)}, v{xr} offset:{((k >> 2) & 3)*16384}",
                    f"ds_read_b64_tr_b16 {vr(f+4,2)}, v{WQ} offset:{o}",
                    f"ds_read_b64_tr_b16 {vr(f+6,2)}, v{WQ} offset:{o+256}"]
        for k in range(3):
            for r in qreads(k): a(r)
        for k in range(28):
            f = FR + 8*(k % 4)
            for x in bars.get(k+3, []): a(x)
            a(f"s_waitcnt lgkmcnt({3*min(2, 27-k)})")
            a(f"{MF} {vr(acc,16)}, {vr(f+4,4)}, {vr(f,4)}, {c0 if k == 0 else vr(acc,16)}")
            if k+3 < 28:
                for x in qreads(k+3): a(x)
    def phase1b(late):
        for i in range(4): a(f"v_add_u32 v{XA+i}, 65536, v{XQ+i}")
        stampc(a, 4)
        a("s_barrier")
        if STAMP == 6: stampc(a, 15)
        bars = {20: ["s_barrier"]}
        if late: bars[16] = ["s_waitcnt vmcnt(0)", "s_barrier", "s_barrier"]
        qpass(1, QB, "0", bars)
        if STAMP == 6: stampc(a, 9)
        a("v_add_u32 v1, s39, v13")
        a("s_waitcnt vmcnt(0)")
        a("s_barrier")
        if STAMP == 6: stampc(a, 10)
        a("v_mov_b32 v54, 0")
        a("v_mov_b32 v55, 0")
        a("s_nop 7")
        a(f"v_mov_b32 v14, v{QB+12}")
        a(f"v_mov_b32 v15, v{QB+12}")
        vmul(a, QB, "s65", 8)
        a("v_permlane32_swap_b32 v15, v14")
        cvt(a, 48, QB, 0, 4)
        a("ds_write_b128 v1, v[48:51]")
        vmul(a, QB+8, "s65", 8)
        cvt(a, 48, QB, 4, 6)
        a("s_mov_b32 exec_hi, 0")
        cvt(a, 48, QB, 6, 8)
        a("s_mov_b32 exec_hi, -1")
        a("ds_write_b128 v1, v[52:55] offset:1024")
        if STAMP == 6: stampc(a, 11)
        a("s_waitcnt lgkmcnt(0)")
        a("s_barrier")
        if STAMP == 6: stampc(a, 12)
        qpass(0, QA, "1.0", {16: ["s_barrier"]})
        stampc(a, 5)
    def defer_q(a, mats):
        PP = QB + 8
        w = [f"v_mul_f32 v14, {f32(-LOG2E)}, v14", "v_exp_f32 v14, v14", f"v_mov_b32 v{PP+6}, 0", f"v_mov_b32 v{PP+7}, 0",
             "v_add_f32 v14, 1.0, v14", "v_rcp_f32 v14, v14"] + phi_list(QA, QB)
        for i, x in enumerate(w):
            if mats and i % 7 == 0: a(mats.pop(0))
            a(x)
        for x in mats: a(x)
        cvt(a, PP, QA, 0, 6)
        a("s_mov_b32 exec_hi, 0")
        cvt(a, PP, QA, 6, 8)
        a("s_mov_b32 exec_hi, -1")
        a(f"ds_write_b128 v1, {vr(PP,4)} offset:8192")
        a(f"ds_write_b128 v1, {vr(PP+4,4)} offset:9216")
        a("v_lshl_add_u32 v15, v0, 2, s48")
        a("ds_write_b32 v15, v14")
        a("v_sub_f32 v14, 1.0, v14")
    O = [16, 32, 48, 64]; S = [80, 96, 112, 128]; Q = [0, 8, 16, 24]; KV = [32, 48, 64, 80]
    RA = 144
    def ld(dst, off, v="v1", so="s58"):
        return f"buffer_load_dwordx4 {ar(dst,4)}, {v}, {WSR}, {so} offen" + (f" offset:{off}" if off else "") + " sc1"
    adv = ["s_add_u32 s58, s58, 4096"]
    ZR = ar(KV[3]+12, 4)
    zero = lambda d: f"{MF} {vr(d,16)}, {ZR}, {ZR}, 0"
    def pre(a):
        for i in range(4): a(f"v_accvgpr_write_b32 a{KV[3]+12+i}, 0")
        a("v_add_u32 v4, s44, v13")
        a(f"v_mov_b32 v5, {L_CNT}")
        a("v_mov_b32 v6, 1")
    def first_loads(work):
        stampc(a, 7)
        a("v_add_u32 v7, s45, v13")
        a("s_mov_b32 s58, 4096")
        a("s_mov_b32 s59, 8192")
        for f in range(4):
            a(ld(KV[0]+4*f, 1024*f, "v7", "0"))
            a(f"v_add_u32 v{8+f}, s{36+f}, v13")
            a(f"ds_read_b128 {ar(Q[f],4)}, v{8+f}")
            a(f"ds_read_b128 {ar(Q[f]+4,4)}, v{8+f} offset:1024")
        sub = Asm(); work(sub)
        lines = sub.lines
        rest = [ld(KV[n]+4*f, 1024*f, "v7", f"s{57+n}") for n in (1, 2) for f in range(4)]
        gap = int(E("LG", "8")); full = True
        for i, l in enumerate(lines):
            a.lines.append(l)
            if "exec" in l and l.strip().startswith("s_mov"): full = l.strip().endswith("-1")
            if rest and full and i % gap == gap - 1: a(rest.pop(0))
        for x in rest: a(x)
        a("s_mov_b32 s58, 12288")

    for i in range(32): a(f"v_mov_b32 v{accK[0]+i}, 0")
    for s in range(2):
        a(f"v_mov_b32 v{pK[s]+6}, v1"); a(f"v_mov_b32 v{pK[s]+7}, v1")
    a("v_and_b32 v15, 0x33, v0")
    a("v_bfe_u32 v1, v0, 2, 1")
    a("v_lshl_add_u32 v15, v1, 3, v15")
    a("v_bfe_u32 v1, v0, 3, 1")
    a("v_lshl_add_u32 v15, v1, 2, v15")
    a("v_lshlrev_b32 v15, 4, v15")
    a("s_lshl_b32 s58, s25, 1")
    a("s_add_u32 s58, s58, s93")
    a("s_lshl_b32 s58, s58, 2")
    a("s_add_u32 s58, s58, s34")
    a(f"s_mul_i32 s58, s58, {PAD}")
    a("s_lshl_b32 s59, s29, 1")
    a("s_add_u32 s59, s59, s92")
    a("s_lshl_b32 s59, s59, 13")
    a("s_add_u32 s58, s58, s59")
    a("s_add_u32 s59, s58, 4096")
    if TOUCH: a("s_barrier")
    scalars()
    mainloop("B", True)
    cvt_v()
    st = []
    for s in range(2):
        st.append(f"buffer_store_dwordx4 {vr(pV[s],4)}, v13, {WSR}, s{58+s} offen offset:2048 sc1")
        st.append(f"buffer_store_dwordx4 {vr(pV[s]+4,4)}, v13, {WSR}, s{58+s} offen offset:3072 sc1")
    for s in range(2):
        st.append(f"buffer_store_dwordx4 {vr(pK[s],4)}, v15, {WSR}, s{58+s} offen sc1")
        st.append(f"buffer_store_dwordx4 {vr(pK[s]+4,4)}, v15, {WSR}, s{58+s} offen offset:1024 sc1")
    for x in st[:4]: a(x)
    for s in range(2):
        cvt(a, pK[s], accK[s], 0, 6)
        a("s_mov_b32 exec_hi, 0")
        cvt(a, pK[s], accK[s], 6, 8)
        a("s_mov_b32 exec_hi, -1")
        for x in st[4+2*s:6+2*s]: a(x)
    phase1b(BL)
    a("s_waitcnt lgkmcnt(0)")
    stampc(a, 6)
    a("s_barrier")
    def workB(a):
        pre(a)
        defer_q(a, [zero(d) for d in O + [S[3]]])
    first_loads(workB)
    a("s_branch C_2")

    a.label("C_A")
    for i in range(32): a(f"v_mov_b32 v{accK[0]+i}, 1.0")
    for s in range(2):
        for i in range(8): a(f"v_mov_b32 v{pK[s]+i}, 0")
    if TA[1] and TAE == "0": touch("A", TA[0], TA[1], E("TQ", "A") == "A")
    if TOUCH and TAE != "2": a("s_barrier")
    scalars()
    mainloop("A", False)
    cvt_v()
    pend = phi_list(accK[0], 52) + phi_list(accK[1], 52)
    phase1b(False)
    D = accK[1]
    APRE = int(E("APRE", "1"))
    kvm = [f"{MF} {vr(D,16)}, {vr(pK[0],4)}, {vr(pV[0],4)}, 0",
           f"{MF} {vr(D,16)}, {vr(pK[0]+4,4)}, {vr(pV[0]+4,4)}, {vr(D,16)}",
           f"{MF} {vr(D,16)}, {vr(pK[1],4)}, {vr(pV[1],4)}, {vr(D,16)}",
           f"{MF} {vr(D,16)}, {vr(pK[1]+4,4)}, {vr(pV[1]+4,4)}, {vr(D,16)}"]
    def part1(a):
        for x in pend: a(x)
        a("s_mov_b64 exec, s[56:57]")
        for s in range(2): cvt(a, pK[s], accK[s])
        a("s_mov_b64 exec, -1")
        a("s_nop 1")
    def part2(a):
        pre(a)
        defer_q(a, kvm + [zero(d) for d in O + [S[3]]])
        a("v_add_u32 v15, s47, v13")
        for q in range(4):
            a(f"ds_write_b128 v15, {vr(D+4*q,4)} offset:{1024*q}")
    if APRE >= 1: part1(a)
    a("s_waitcnt lgkmcnt(0)")
    stampc(a, 6)
    a("s_barrier")
    def workA(a):
        if APRE < 1: part1(a)
        part2(a)
    first_loads(workA)

    a.label("C_2")
    if PT: a("s_setprio 1")
    a("v_mov_b32 v2, 0xdddd")
    a("v_mov_b32 v3, 0")
    a("v_mov_b32 v1, v7")
    a("s_mov_b32 s59, 3")
    for s in range(4): a(f"v_add_u32 v{RA+s}, s{40+s}, v13")
    a("s_waitcnt vmcnt(10) lgkmcnt(0)")
    stampc(a, 8)
    a("s_mov_b64 exec, 1")
    a("ds_add_u32 v5, v6 offset:8")
    a("ds_read_b32 v6, v5 offset:20")
    a("s_mov_b64 exec, -1")
    a(f"{MF} {vr(S[0],16)}, {ar(KV[0],4)}, {ar(Q[0],4)}, 0")
    a(f"{MF} {vr(S[0],16)}, {ar(KV[0]+4,4)}, {ar(Q[0]+4,4)}, {vr(S[0],16)}")
    a("s_waitcnt vmcnt(8) lgkmcnt(0)")
    a("v_readfirstlane_b32 s87, v6")
    a("s_nop 8")
    if E("STG", ""):
        for i in range(1, 4):
            a(f"s_cmp_ge_u32 s27, {i}")
            a("s_cbranch_scc0 C_STG")
            a("s_nop %s" % E("STG", ""))
        a.label("C_STG")
    def unit(pos, cur, nxt, prv, slot):
        sc = S[pos & 3]; sn = S[(pos+1) & 3]; sp = S[(pos-1) & 3]
        e = [f"v_exp_f32 v{sc+i}, v{sc+i}" for i in range(16)]
        if nxt: a(f"{MF} {vr(sn,16)}, {ar(KV[nxt[0]],4)}, {ar(Q[nxt[1]],4)}, 0")
        for x in slot[0]: a(x)
        for x in e[0:4]: a(x)
        a(f"{SM} {vr(O[prv[1]],16)}, {ar(KV[prv[0]]+12,4)}, {vr(sp+8,8)}, v2")
        for x in slot[1]: a(x)
        for x in e[4:8]: a(x)
        if nxt: a(f"{MF} {vr(sn,16)}, {ar(KV[nxt[0]]+4,4)}, {ar(Q[nxt[1]]+4,4)}, {vr(sn,16)}")
        for x in slot[2]: a(x)
        for x in e[8:12]: a(x)
        a(f"{SM} {vr(O[cur[1]],16)}, {ar(KV[cur[0]]+8,4)}, {vr(sc,8)}, v2")
        for x in slot[3]: a(x)
        if nxt:
            for _ in range(2 - min(2, len(slot[2]) + len(slot[3]))): a("s_nop 0")
        for x in e[12:16]: a(x)
    LP = int(E("LP", "2"))
    ER = E("ER", "0") == "1"
    PB = S[1] if ER else 16
    FW = int(E("FW", "2"))
    def plain(n, s):
        slot = [[], [], [], []]
        slot[2].append("s_nop 0" if "nold" in X else ld(KV[(n+3) & 3] + 4*s, 1024*s).replace(" sc1", "" if "plain" in X else " sc1"))
        if s == 3: slot[3] += adv
        if not FW:
            if s == 2: slot[3].append("s_waitcnt vmcnt(7)")
        elif FW == 2:
            if s == 2: slot[3].append("s_waitcnt vmcnt(9)")
            if s == 0: slot[1].append("s_waitcnt vmcnt(8)")
        else:
            if s == 2: slot[3].append("s_waitcnt vmcnt(10)")
            if s == 3: slot[1].append("s_waitcnt vmcnt(9)")
            if s == 0: slot[1].append("s_waitcnt vmcnt(9)")
            if s == 1: slot[0].append("s_waitcnt vmcnt(9)")
        return slot
    a(".p2align 6")
    a.label("C_ATT")
    for n in range(4):
        for s in range(4):
            slot = plain(n, s)
            if n == 3 and s == 1: slot[3].append("s_sub_u32 s59, s59, 1")
            if n == 3 and s == 3: slot[3].append("s_cmp_lg_u32 s59, 0")
            unit(s, (n, s), ((n + (s == 3)) & 3, (s+1) & 3), ((n - (s == 0)) & 3, (s-1) & 3), slot)
    a("s_cbranch_scc1 C_ATT")
    seq = [(0, s) for s in range(4)] + [(1, s) for s in range(4)] + [(n, s) for s in range(4) for n in (2, 3)]
    for i, cur in enumerate(seq):
        nxt = seq[i+1] if i < 15 else None
        prv = seq[i-1] if i > 0 else (3, 3)
        slot = plain(*cur) if i < 4 else [[], [], [], []]
        if not FW:
            if i == 6: slot[3].append("s_waitcnt vmcnt(0)")
        else:
            w = {4: (1, 8), 6: (3, 6), 7: (3, 2), 9: (1, 0)}.get(i) if FW == 2 else {4: (1, 9), 5: (0, 8), 6: (3, 6), 7: (3, 2), 9: (1, 1), 10: (0, 0)}.get(i)
            if w: slot[w[0]].append(f"s_waitcnt vmcnt({w[1]})")
        wr = lambda s_, q: f"ds_write_b128 v{RA+s_}, {vr(O[s_]+4*q,4)} offset:{1024*q}"
        if ER:
            plan = {11: {0: (0, 0), 2: (0, 1)}, 12: {0: (0, 2), 2: (0, 3)}, 13: {0: (1, 0), 1: (1, 1), 2: (1, 2), 3: (1, 3)},
                    15: {0: (2, 0)}}
            for sl, (s_, q) in plan.get(i, {}).items(): slot[sl].append(wr(s_, q))
            if i == 14: tail4 = [wr(2, 0), wr(2, 1)]
            if i == 15:
                slot[0] = [wr(2, 2), wr(2, 3)]
                slot[2] = ["s_waitcnt lgkmcnt(0)", "s_barrier"] + \
                          [f"ds_read_b128 {vr(O[0]+4*k,4)}, v{RA+3} offset:{1024*((k % 3)*4 + k // 3)}" for k in range(6)]
                slot[3] = [f"ds_read_b128 {vr(O[0]+4*k,4)}, v{RA+3} offset:{1024*((k % 3)*4 + k // 3)}" for k in range(6, 12)]
        else:
            for first, s_ in ((11, 0), (13, 1)):
                if i in (first, first+1):
                    for q in range(2):
                        slot[1 + 2*q].append(wr(s_, 2*(i - first) + q))
            if i == 15:
                for q in range(4): slot[q].append(wr(2, q))
        unit(i, cur, nxt, prv, slot)
        if ER and i == 14:
            for x in tail4: a(x)
        if i == int(E("XP", "10")):
            if STAMP == 4: stampc(a, 1)
            a("s_barrier")
            if STAMP == 4: stampc(a, 2)
    a("s_setprio 1")
    a(f"v_mov_b32 v{PB+6}, 0")
    a(f"{SM} {vr(O[3],16)}, {ar(KV[3]+12,4)}, {vr(S[3]+8,8)}, v2")
    a(f"v_mov_b32 v{PB+7}, 0")
    a(f"s_mov_b32 s62, {f32(2.0**-60)}")
    a(f"s_mov_b32 s63, {f32(2.0**120)}")
    RB = O[0] if ER else S[0]
    if not ER:
        a("s_waitcnt lgkmcnt(0)")
        a("s_barrier")
    if STAMP != 6: stampc(a, 9)
    if not ER:
        for i in range(12):
            a(f"ds_read_b128 {vr(RB+4*i,4)}, v{RA+3} offset:{1024*((i % 3)*4 + i // 3)}")
    for q in range(4):
        a(f"s_waitcnt lgkmcnt({9-3*q})")
        b = RB + 12*q
        vadd(a, b, b+4, 4)
        vadd(a, b, b+8, 4)
    for q in range(4):
        vadd(a, O[3]+4*(3-q), RB+12*(3-q), 4)
    a(f"v_mov_b32 v6, v{O[3]+12}")
    a(f"v_mov_b32 v7, v{O[3]+12}")
    a(f"v_maximum3_f32 v8, abs(v{O[3]+12}), abs(v{O[3]+13}), abs(v{O[3]+14})")
    a(f"v_maximum3_f32 v9, abs(v{O[3]+15}), abs(v{O[3]+8}), abs(v{O[3]+9})")
    a("v_permlane32_swap_b32 v6, v7")
    for i, (x, y) in enumerate(((10, 11), (4, 5), (6, 7), (0, 1), (2, 3))):
        a(f"v_maximum3_f32 v{8+(i&1)}, v{8+(i&1)}, abs(v{O[3]+x}), abs(v{O[3]+y})")
    a("v_cmp_nge_f32 vcc, v7, s62")
    a("v_maximum3_f32 v8, v8, v9, v9")
    a("v_rcp_f32 v7, v7")
    a("v_cmp_nlt_f32 s[64:65], v8, s63")
    a("s_or_b64 vcc, vcc, s[64:65]")
    a("s_cbranch_scc1 C_FALLBACK")
    a.label("C_FIN")
    a(f"v_mov_b32 v5, {RING + 49152 - 16}")
    a("s_cmp_eq_u32 s27, 3")
    a("s_cbranch_scc0 C_NOCLR")
    a("ds_write_b32 v5, v3")
    a.label("C_NOCLR")
    a("v_mul_f32 v7, v7, v14")
    vmul(a, O[3], "v7", 8)
    cvt(a, PB, O[3], 0, 4)
    a(f"buffer_store_dwordx4 {vr(PB,4)}, v13, {WSR}, s46 offen sc1")
    vmul(a, O[3]+8, "v7", 8)
    cvt(a, PB, O[3], 4, 6)
    a("s_mov_b32 exec_hi, 0")
    cvt(a, PB, O[3], 6, 8)
    a("s_mov_b32 exec_hi, -1")
    a(f"buffer_store_dwordx4 {vr(PB+4,4)}, v13, {WSR}, s46 offen offset:1024 sc1")
    a("s_waitcnt lgkmcnt(0)")
    a("s_barrier")
    if STAMP != 6: stampc(a, 10)
    a("s_mul_i32 s60, s92, 28672")
    a("s_add_u32 s60, s60, 57344")
    a("s_lshl_b32 s61, s92, 6")
    a("v_mov_b32 v1, v5")
    p3_addr(a, 4, "s60", "s61", 8, 9)
    a("s_lshl_b32 s60, s27, 13")
    a(f"s_add_u32 s60, s60, {RING}")
    a("v_add_u32 v8, s60, v13")
    a("s_lshl_b32 s60, s27, 12")
    a(f"s_add_u32 s60, s60, {RING + 32768}")
    a("v_add_u32 v9, s60, v13")
    a("v_xor_b32 v10, 8192, v9")
    a("s_lshl_b32 s60, s30, 1")
    a("s_add_u32 s60, s60, s93")
    if E("TS", "1") == "1":
        a("v_and_b32 v11, 31, v0")
        a("v_lshrrev_b32 v12, 5, v0")
        a("s_lshl_b32 s61, s92, 2")
        a("v_add_u32 v12, s61, v12")
        a("v_and_b32 v15, 7, v0")
        a("v_xor_b32 v12, v12, v15")
        a("s_lshl_b32 s61, s93, 12")
        a(f"s_add_u32 s61, s61, {RING}")
        a("v_lshl_add_u32 v11, v11, 7, s61")
        a("v_lshl_add_u32 v11, v12, 4, v11")
        a("v_xor_b32 v2, 32, v11")
        a("v_lshrrev_b32 v12, 3, v0")
        a("v_xor_b32 v15, v15, v12")
        a("s_lshl_b32 s61, s30, 6")
        a("s_lshl_b32 s63, s27, 4")
        a("s_add_u32 s61, s61, s63")
        a("v_add_u32 v12, s61, v12")
        a("v_mul_u32_u24 v12, 896, v12")
        a("v_lshl_add_u32 v15, v15, 4, v12")
    else:
        a("v_and_b32 v11, 31, v0")
        a("s_lshl_b32 s61, s60, 5")
        a("v_add_u32 v11, s61, v11")
        a("v_mul_u32_u24 v11, 896, v11")
        a("v_lshrrev_b32 v12, 5, v0")
        a("v_lshl_add_u32 v11, v12, 4, v11")
    a(f"s_mul_i32 s60, s60, {PAD}")
    a("s_lshl_b32 s61, s92, 14")
    a("s_add_u32 s60, s60, s61")
    a(f"s_add_u32 s60, s60, {WS_OF + 32768}")
    a("s_and_b32 s61, s30, 0xfe")
    a("s_lshl_b32 s61, s61, 10")
    a(f"s_add_u32 s61, s61, {C_OB}")
    a("s_lshl_b32 s62, s31, 7")
    if E("TS", "1") == "1":
        a("s_add_u32 s63, s62, 7168")
    else:
        a("s_lshl_b32 s63, s92, 6")
        a("s_add_u32 s62, s62, s63")
    srd(a, SX, 18, 1835008)
    a("s_lshl_b32 s64, s24, 4")
    a("s_add_u32 s64, s64, s28")
    a("s_lshl_b32 s64, s64, 7")
    a(f"s_add_u32 s64, s64, {C_OB}")
    a("v_mov_b32 v12, 1")
    a("s_mov_b64 exec, 1")
    a("s_waitcnt vmcnt(0)")
    a("ds_add_rtn_u32 v14, v1, v12")
    a("s_waitcnt lgkmcnt(0)")
    a("v_readfirstlane_b32 s69, v14")
    a("s_nop 0")
    a("s_cmp_eq_u32 s69, 3")
    a("s_cbranch_scc0 C_NOSIG")
    a("v_mov_b32 v12, s87")
    a(f"buffer_store_dword v12, v3, {WSR}, s64 offen sc1")
    a.label("C_NOSIG")
    a("s_mov_b64 exec, -1")
    if STAMP != 6: stampc(a, 11)
    a("s_cmp_ge_u32 s32, 28")
    a("s_cbranch_scc1 C_EXIT")
    NPRE = int(E("NPRE", "10"))
    a("v_lshlrev_b32 v14, 7, v0")
    if E("OW", "0") == "1":
        a("s_lshl_b32 s64, s92, 10")
        a("s_add_u32 s61, s61, s64")
        poll(a, "OB", WSR, "s61", 8, 14, 12, int(E("OBS", "1")), False)
        if STAMP != 6: stampc(a, 12)
        p3_oloads(a, 13, "s60", NPRE)
        a("s_barrier")
    else:
        a("s_cmp_eq_u32 s27, 0")
        a("s_cbranch_scc0 C_OBD")
        poll(a, "OB", WSR, "s61", 16, 14, 12, int(E("OBS", "1")), False)
        a.label("C_OBD")
        a("s_barrier")
        if STAMP != 6: stampc(a, 12)
        p3_oloads(a, 13, "s60", NPRE)
    for i in range(8):
        a(f"ds_read_b128 {vr(16+4*i,4)}, v8 offset:{1024*i}")
    p3_gemm(a, 4, [16, 32], [48, 56], False, NPRE, 13, "s60")
    if STAMP != 6: stampc(a, 13)
    a("v_mov_b32 v12, v2")
    a("s_lshl_b32 s64, s27, 11")
    a(f"s_add_u32 s64, s64, {RING}")
    a("v_add_u32 v14, s64, v13")
    a("s_nop 7")
    for i in range(4):
        a(f"ds_write_b128 v9, {vr(32+4*i,4)} offset:{1024*i}")
    a("s_waitcnt lgkmcnt(0)")
    a("s_barrier")
    for i in range(4):
        a(f"ds_read_b128 {vr(32+4*i,4)}, v10 offset:{1024*i}")
    OFL = E("OFL", "")
    TS = E("TS", "1") == "1"
    for hf in range(2):
        for q in (2*hf, 2*hf+1):
            a(f"s_waitcnt lgkmcnt({3-q + (1 if TS and hf else 0)})")
            vadd(a, 16+4*q, 32+4*q, 4)
        cvt(a, 48, 16, 4*hf, 4*hf+4)
        a("s_nop 1")
        a(f"v_permlane32_swap_b32 v{48+4*hf}, v{50+4*hf}")
        a(f"v_permlane32_swap_b32 v{49+4*hf}, v{51+4*hf}")
        if TS: a(f"ds_write_b128 v{11+hf}, {vr(48+4*hf,4)}")
        else: a(f"buffer_store_dwordx4 {vr(48+4*hf,4)}, v11, {R(SX)}, s62 offen offset:{32*hf} {OFL}")
    if TS:
        a("s_waitcnt lgkmcnt(0)")
        a("s_barrier")
        a("ds_read_b128 v[16:19], v14")
        a("ds_read_b128 v[20:23], v14 offset:1024")
        a("s_waitcnt lgkmcnt(1)")
        a(f"buffer_store_dwordx4 v[16:19], v15, {R(SX)}, s62 offen {OFL}")
        a("s_waitcnt lgkmcnt(0)")
        a(f"buffer_store_dwordx4 v[20:23], v15, {R(SX)}, s63 offen {OFL}")
    a.label("C_EXIT")
    if E("DIAGP", "") == "99":
        a("s_waitcnt vmcnt(0)")
        a("s_memrealtime s[100:101]")
        a("s_waitcnt lgkmcnt(0)")
    if E("DIAGT", ""):
        a("s_xor_b32 s64, s2, %s" % E("DIAGW", "0"))
        a("s_or_b32 s64, s64, s27")
        a("s_cmp_eq_u32 s64, 0")
        a("s_cbranch_scc0 C_DX")
        if E("DIAGP", ""):
            a("s_sub_u32 s100, s100, s96")
            a("s_lshl_b32 s100, s100, 1")
            a("s_add_u32 s96, s96, s100")
        a.label("C_DL")
        a("s_memrealtime s[98:99]")
        a("s_waitcnt lgkmcnt(0)")
        a("s_sub_u32 s98, s98, s96")
        a("s_cmp_lt_i32 s98, %s" % E("DIAGT", ""))
        a("s_cbranch_scc1 C_DL")
        a.label("C_DX")
    if STAMP != 6: stampc(a, 14)
    if STAMP: a("s_waitcnt vmcnt(0)")
    if STAMP != 6: stampc(a, 15)
    stamp_out(a, 16)
    a("s_endpgm")
    a.label("C_FALLBACK")
    Qo = Q[3]; K0 = KV[0]; Sx = S[0]
    def fb_adv():
        a("s_add_u32 s58, s58, 4096")
        a("s_add_u32 s59, s59, 1")
        a("s_and_b32 s61, s59, 15")
        a(f"s_cselect_b32 s61, 0, {PAD-65536}")
        a("s_add_u32 s58, s58, s61")
        a("s_nop 15")
    a("s_mov_b32 s58, 0")
    a("s_mov_b32 s59, 0")
    a(f"v_mov_b32 v8, {f32(float('-inf'))}")
    a.label("C_FB1")
    a(ld(K0, 0, "v4")); a(ld(K0+4, 1024, "v4"))
    a("s_waitcnt vmcnt(0)")
    a(f"{MF} {vr(Sx,16)}, {ar(K0,4)}, {ar(Qo,4)}, 0")
    a(f"{MF} {vr(Sx,16)}, {ar(K0+4,4)}, {ar(Qo+4,4)}, {vr(Sx,16)}")
    fb_adv()
    a("s_nop 15")
    for i in range(8):
        a(f"v_max3_f32 v8, v8, v{Sx+2*i}, v{Sx+2*i+1}")
    a("s_cmp_lt_u32 s59, 64")
    a("s_cbranch_scc1 C_FB1")
    a("v_mov_b32 v9, v8")
    a("s_nop 1")
    a("v_permlane32_swap_b32 v8, v9")
    a("v_max_f32 v8, v8, v9")
    a("v_and_b32 v9, 0xffff0000, v8")
    a("v_sub_f32 v8, v8, v9")
    a("v_and_b32 v10, 0xffff0000, v8")
    a("v_sub_f32 v8, v8, v10")
    a("v_cvt_pk_bf16_f32 v9, -v9, -v10")
    a("v_cvt_pk_bf16_f32 v8, -v8, 0")
    a("s_mov_b32 exec_lo, 0")
    a(f"v_accvgpr_write_b32 a{Qo+6}, v9")
    a(f"v_accvgpr_write_b32 a{Qo+7}, v8")
    a("s_mov_b32 exec_lo, -1")
    for i in range(16): a(f"v_mov_b32 v{O[3]+i}, 0")
    a("s_mov_b32 s58, 0")
    a("s_mov_b32 s59, 0")
    a.label("C_FB2")
    for f in range(4): a(ld(K0+4*f, 1024*f, "v4"))
    a("s_waitcnt vmcnt(0)")
    a(f"{MF} {vr(Sx,16)}, {ar(K0,4)}, {ar(Qo,4)}, 0")
    a(f"{MF} {vr(Sx,16)}, {ar(K0+4,4)}, {ar(Qo+4,4)}, {vr(Sx,16)}")
    fb_adv()
    a("s_nop 15")
    for i in range(16): a(f"v_exp_f32 v{Sx+i}, v{Sx+i}")
    a("s_nop 1")
    a(f"{SM} {vr(O[3],16)}, {ar(K0+8,4)}, {vr(Sx,8)}, v2")
    a(f"{SM} {vr(O[3],16)}, {ar(K0+12,4)}, {vr(Sx+8,8)}, v2")
    a("s_cmp_lt_u32 s59, 64")
    a("s_cbranch_scc1 C_FB2")
    a("s_nop 15")
    a("s_nop 15")
    a(f"v_mov_b32 v6, v{O[3]+12}")
    a(f"v_mov_b32 v7, v{O[3]+12}")
    a("s_nop 1")
    a("v_permlane32_swap_b32 v6, v7")
    a("v_rcp_f32 v7, v7")
    a("s_nop 0")
    a("s_branch C_FIN")

def main():
    a = Asm()
    head = f"""; gated mix of a linear-attention block and a softmax-attention block (S=2048, D=448, H=16), one launch
; @launch grid=(256,1,1) block=(512,1,1) lds=163840
.amdgcn_target "amdgcn-amd-amdhsa--gfx950"
.text
"""
    gen(a)
    out = head + a.text() + '.section .rodata,"a"\n' + kernel_desc(KN, 256, 102, 160)
    path = sys.argv[1] if len(sys.argv) > 1 else f"cdna_kernels/{NAME}.s"
    open(path, "w").write(out)
main()
```

```python
import math, sys, os, struct
from asmlib import *

NAME = "gated_mix__linear_attn_block__mha_block__prompt"
KN = NAME + "_kernel"
WS_KV  = 0
WS_CNT = 5 << 20
WS_KVP = 6 << 20
WS_OF  = 8 << 20
PAD = int(os.environ.get("PAD", "69632"))
WS_ST  = 14 << 20
WS_SIZE = 16 << 20
LOG2E = 1.4426950408889634
QSCALE = LOG2E * 28 ** -0.5
EPS = 1e-6
ONE2 = 0x3F803F80
RING = 114688
L_KVD = RING
L_G   = RING + 16384 + 15360
L_KVF = RING + 16384 + 12288
L_CNT = RING + 16384 + 14336
L_QD  = RING + 32768
L_PQ  = RING + 32768 + 8192
STAMP = int(os.environ.get("STAMP", "0"))
X = set(os.environ.get("X", "").split(","))
MF = "v_mfma_f32_32x32x16_bf16"
SM = "v_smfmac_f32_32x32x32_bf16"
SX, SW, SWA, SWB, SWS, SD, SG = 36, 40, 44, 48, 52, 56, 60
WSR = f"s[{SWS}:{SWS+3}]"
SPIN = 200000
WFL = os.environ.get("WFL", "")
XFL = os.environ.get("XFL", "")

def srd(a, d, lo, size):
    a(f"s_mov_b32 s{d}, s{lo}")
    a(f"s_mov_b32 s{d+1}, s{lo+1}")
    a(f"s_mov_b32 s{d+2}, {size}")
    a(f"s_mov_b32 s{d+3}, 0x20000")
def R(d): return f"s[{d}:{d+3}]"

def stamp(a, i, mode=1):
    if not STAMP: return
    if mode is not None and mode != STAMP: return
    if i == 0: a("s_memrealtime s[96:97]")
    a("s_memrealtime s[94:95]" if os.environ.get("RT") else "s_memtime s[94:95]")
    a("s_waitcnt lgkmcnt(0)")
    a(f"s_mov_b32 s{70+i}, s94")
def stampc(a, i):
    if os.environ.get("DIAGP") == str(i):
        a("s_memrealtime s[100:101]")
        a("s_waitcnt lgkmcnt(0)")
    if STAMP == 5: return
    stamp(a, i, None)
def stamp_out(a, n):
    if not STAMP: return
    a("s_memrealtime s[98:99]")
    a("s_waitcnt lgkmcnt(0)")
    a("s_mov_b64 exec, 1")
    a("s_lshl_b32 s94, s2, 3")
    a("s_add_u32 s94, s94, s35")
    a("s_lshl_b32 s94, s94, 7")
    a(f"s_add_u32 s94, s94, {WS_ST}")
    a("v_mov_b32 v1, 0")
    for i in range(n if STAMP != 5 else 0):
        a(f"v_mov_b32 v2, s{70+i}")
        a(f"buffer_store_dword v2, v1, {WSR}, s94 offen offset:{4*i}")
    a("v_mov_b32 v2, s96")
    a(f"buffer_store_dword v2, v1, {WSR}, s94 offen offset:120")
    a("v_mov_b32 v2, s98")
    a(f"buffer_store_dword v2, v1, {WSR}, s94 offen offset:124")

def dma_lane_w(a, vdst, vt0, vt1, rowstride):
    a(f"v_lshrrev_b32 v{vt0}, 4, v0")
    a(f"v_bfe_u32 v{vt1}, v0, 2, 2")
    a(f"v_and_b32 v{vdst}, 1, v{vt0}")
    if "noswz" not in X: a(f"v_xor_b32 v{vt1}, v{vt1}, v{vdst}")
    a(f"v_lshrrev_b32 v{vdst}, 1, v{vt1}")
    a(f"v_lshl_add_u32 v{vt0}, v{vt0}, 1, v{vdst}")
    a(f"v_mul_u32_u24 v{vt0}, {rowstride}, v{vt0}")
    a(f"v_and_b32 v{vt1}, 1, v{vt1}")
    a(f"v_lshl_add_u32 v{vt0}, v{vt1}, 6, v{vt0}")
    a(f"v_and_b32 v{vt1}, 3, v0")
    a(f"v_lshl_add_u32 v{vdst}, v{vt1}, 4, v{vt0}")

def tr_lane_addr(a, vdst, vb, vt0, vt1, hlshift):
    a(f"v_bfe_u32 v{vt0}, v0, 4, 1")
    a(f"v_lshl_add_u32 v{vb}, v{vt0}, 5, v{vb}")
    a(f"v_and_b32 v{vt0}, 3, v0")
    a(f"v_lshl_add_u32 v{vb}, v{vt0}, 3, v{vb}")
    a(f"v_bfe_u32 v{vt0}, v0, 2, 1")
    a(f"v_lshrrev_b32 v{vt1}, 6, v{vb}")
    a(f"v_lshl_add_u32 v{vt0}, v{vt0}, 1, v{vt1}")
    a(f"v_bfe_u32 v{vt1}, v0, 3, 1")
    a(f"v_xor_b32 v{vt0}, v{vt0}, v{vt1}")
    a(f"v_and_b32 v{vb}, 63, v{vb}")
    a(f"v_lshl_add_u32 v{vb}, v{vt0}, 6, v{vb}")
    a(f"v_lshrrev_b32 v{vt0}, 5, v0")
    a(f"v_lshl_add_u32 v{vt0}, v{vt0}, {hlshift}, v{vt1}")
    a(f"v_lshl_add_u32 v{vdst}, v{vt0}, 8, v{vb}")

C_KV, C_A, C_OA, C_OB = WS_CNT, WS_CNT + 128*128, WS_CNT + 256*128, WS_CNT + 512*128
NFLAG = 768
def poll(a, tag, srdreg, soff, nl, vl, vt, sleep=0, first=True):
    a(f"s_mov_b64 exec, {(1 << nl) - 1}")
    a(f"s_mov_b32 s68, {SPIN}")
    if sleep and first: a(f"s_branch POLL_{tag}")
    a.label(f"POLLS_{tag}")
    if sleep: a(f"s_sleep {sleep}")
    a.label(f"POLL_{tag}")
    if tag in os.environ.get("PAT", "").split(","):
        a(f"v_mov_b32 v{vt}, 0")
        a(f"buffer_atomic_or v{vt}, v{vl}, {srdreg}, {soff} offen sc0 sc1")
    else:
        a(f"buffer_load_dword v{vt}, v{vl}, {srdreg}, {soff} offen sc1")
    a("s_sub_u32 s68, s68, 1")
    a(f"s_cbranch_scc1 POLLX_{tag}")
    a("s_waitcnt vmcnt(0)")
    a(f"v_cmp_eq_u32 vcc, 0, v{vt}" if tag.startswith("INIT") else f"v_cmp_ne_u32 vcc, s87, v{vt}")
    a(f"s_cbranch_vccnz POLLS_{tag}")
    a.label(f"POLLX_{tag}")
    a("s_mov_b64 exec, -1")

def poll2(a, tag, soff, nl, vl, vt, gap):
    a(f"s_mov_b64 exec, {(1 << nl) - 1}")
    a(f"s_mov_b32 s68, {SPIN}")
    a(f"buffer_load_dword v{vt}, v{vl}, {WSR}, {soff} offen sc1")
    a.label(f"POLL_{tag}")
    for i in range(2):
        if gap: a(f"s_sleep {gap}")
        a(f"buffer_load_dword v{vt+1-i}, v{vl}, {WSR}, {soff} offen sc1")
        a("s_waitcnt vmcnt(1)")
        a(f"v_cmp_ne_u32 vcc, s87, v{vt+i}")
        a(f"s_cbranch_vccz POLLX_{tag}")
    a("s_sub_u32 s68, s68, 1")
    a(f"s_cbranch_scc0 POLL_{tag}")
    a.label(f"POLLX_{tag}")
    a("s_mov_b64 exec, -1")

def lds_wait(a, tag, vaddr, off, target, vt, sleep=1):
    a("s_mov_b64 exec, 1")
    a(f"s_mov_b32 s68, {SPIN}")
    a.label(f"LW_{tag}")
    a(f"s_sleep {sleep}")
    a(f"ds_read_b32 v{vt}, v{vaddr} offset:{off}")
    a("s_waitcnt lgkmcnt(0)")
    a(f"v_readfirstlane_b32 s69, v{vt}")
    a("s_sub_u32 s68, s68, 1")
    a(f"s_cbranch_scc1 LWX_{tag}")
    a(f"s_cmp_ge_u32 s69, {target}")
    a(f"s_cbranch_scc0 LW_{tag}")
    a.label(f"LWX_{tag}")
    a("s_mov_b64 exec, -1")

def signal(a, soff, vz, vt, full=None):
    if full and os.environ.get("FL", "1") == "1":
        a("s_mov_b32 exec_hi, 0")
        a(f"v_lshlrev_b32 v{full}, 2, v0")
        a(f"v_mov_b32 v{vt}, s87")
        a(f"buffer_store_dword v{vt}, v{full}, {WSR}, {soff} offen {os.environ.get('SFL', 'sc1')}")
        a("s_mov_b32 exec_hi, -1")
        return
    a("s_mov_b64 exec, 1")
    a(f"v_mov_b32 v{vt}, s87")
    a(f"buffer_store_dword v{vt}, v{vz}, {WSR}, {soff} offen sc1")
    a("s_mov_b64 exec, -1")

def cvt(a, dst, src, lo=0, hi=8):
    for i in range(lo, hi):
        a(f"v_cvt_pk_bf16_f32 v{dst+i}, v{src+2*i}, v{src+2*i+1}")

def vadd(a, dst, src, n):
    for i in range(n): a(f"v_add_f32 v{dst+i}, v{dst+i}, v{src+i}")
def vmul(a, dst, mul, n):
    for i in range(n): a(f"v_mul_f32 v{dst+i}, {mul}, v{dst+i}")

def phi_list(src, T, n=16, grp=8):
    o = []
    for g0 in range(0, n, grp):
        o += [f"v_fma_f32 v{T+i}, v{src+g0+i}, s64, -s64" for i in range(grp)]
        o += [f"v_exp_f32_e64 v{T+i}, v{T+i} clamp" for i in range(grp)]
        o += [f"v_max_f32 v{src+g0+i}, v{src+g0+i}, v{T+i}" for i in range(grp)]
        o += [f"v_add_f32 v{src+g0+i}, s66, v{src+g0+i}" for i in range(grp)]
    return o

def p3_addr(a, v0a, mat_off_sgpr, swap_sgpr, vt0, vt1):
    a(f"v_mov_b32 v{v0a+1}, 0")
    tr_lane_addr(a, v0a, v0a+1, vt0, vt1, 1)
    a(f"v_add_u32 v{v0a}, {mat_off_sgpr}, v{v0a}")
    a(f"v_xor_b32 v{v0a}, {swap_sgpr}, v{v0a}")
    a(f"v_xor_b32 v{v0a+1}, 64, v{v0a}")
    a(f"v_lshrrev_b32 v{vt0}, 5, v0")
    a(f"v_lshlrev_b32 v{vt0}, 9, v{vt0}")
    a(f"v_sub_u32 v{v0a+2}, v{v0a}, v{vt0}")
    a(f"v_sub_u32 v{v0a+3}, v{v0a+1}, v{vt0}")

def p3_oload(ks, vlane16, so):
    o = [f"buffer_load_dwordx4 {ar(4*ks,4)}, v{vlane16}, {WSR}, {so} offen offset:{1024*(ks&3)} sc1"]
    if ks & 3 == 3 and ks < 15: o.append(f"s_add_u32 {so}, {so}, 4096")
    return o

def p3_gemm(a, va, ACC, WF, first_zero, npre, vlane16, so):
    def reads(ks):
        f = WF[ks & 1]; hh, m = ks >> 1, ks & 1
        o = (14*hh + 8*m) * 256
        last = (ks == 15)
        return [f"ds_read_b64_tr_b16 {vr(f,2)}, v{va} offset:{o}",
                f"ds_read_b64_tr_b16 {vr(f+2,2)}, v{va+2 if last else va} offset:{o+1024}",
                f"ds_read_b64_tr_b16 {vr(f+4,2)}, v{va+1} offset:{o}",
                f"ds_read_b64_tr_b16 {vr(f+6,2)}, v{va+3 if last else va+1} offset:{o+1024}"]
    for x in reads(0): a(x)
    issued = npre
    for ks in range(16):
        f = WF[ks & 1]
        rd = reads(ks+1) if ks < 15 else []
        c0 = "0" if (first_zero and ks == 0) else vr(ACC[0], 16)
        c1 = "0" if (first_zero and ks == 0) else vr(ACC[1], 16)
        if issued < 16:
            for x in p3_oload(issued, vlane16, so): a(x)
            issued += 1
        a(f"s_waitcnt vmcnt({issued-1-ks}) lgkmcnt(2)")
        a(f"{MF} {vr(ACC[0],16)}, {vr(f,4)}, {ar(4*ks,4)}, {c0}")
        for x in rd[:2]: a(x)
        a(f"s_waitcnt lgkmcnt({2 if rd else 0})")
        a(f"{MF} {vr(ACC[1],16)}, {vr(f+4,4)}, {ar(4*ks,4)}, {c1}")
        for x in rd[2:]: a(x)

def p3_oloads(a, vlane16, so, n):
    for ks in range(n):
        for x in p3_oload(ks, vlane16, so): a(x)

E = lambda k, d: os.environ.get(k, d)
SIGK = int(E("SIGK", "6"))
ROT = int(E("ROT", "0"))
PT = E("PT", "0") == "1"
BL = E("BL", "0") == "1"
TOUCH = E("TB", "1,0") != "1,0" or E("TA", "1,0") != "1,0"
PQC = int(E("PQC", "-1"))
BQE = E("BQE", "0") == "1"
def gen(a):
    kernel_head(a, KN)
    a("s_cmp_ge_u32 s2, 256")
    a("s_cbranch_scc1 L_END")
    a("s_load_dwordx16 s[4:19], s[0:1], 0")
    a("s_load_dwordx4 s[20:23], s[0:1], 64")
    if STAMP or E("DIAGT", ""):
        a("s_memrealtime s[96:97]")
        a("s_memtime s[70:71]")
    a("v_lshrrev_b32 v1, 6, v0")
    a("v_and_b32 v0, 63, v0")
    a("v_readfirstlane_b32 s27, v1")
    a("s_and_b32 s64, s2, 7")
    a("s_lshr_b32 s32, s2, 3")
    a("s_and_b32 s26, s32, 1")
    MAP = E("MAP", "1")
    if MAP == "0":
        a("s_lshr_b32 s34, s64, 1")
        a("s_and_b32 s33, s64, 1")
        a("s_lshr_b32 s29, s32, 3")
        a("s_lshl_b32 s24, s34, 2")
        a("s_add_u32 s24, s24, s29")
        a("s_bfe_u32 s25, s32, 0x20001")
        a("s_lshl_b32 s65, s33, 2")
        a("s_add_u32 s25, s25, s65")
    elif MAP == "1":
        a("s_mov_b32 s25, s64")
        a("s_lshr_b32 s24, s32, 1")
        a("s_lshr_b32 s33, s25, 2")
        a("s_lshr_b32 s34, s24, 2")
        a("s_and_b32 s29, s24, 3")
    else:
        a("s_and_b32 s25, s64, 3")
        a("s_lshl_b32 s25, s25, 1")
        a("s_bfe_u32 s65, s32, 0x10001")
        a("s_add_u32 s25, s25, s65")
        a("s_lshr_b32 s24, s64, 2")
        a("s_lshl_b32 s24, s24, 3")
        a("s_lshr_b32 s65, s32, 2")
        a("s_add_u32 s24, s24, s65")
        a("s_lshr_b32 s33, s25, 2")
        a("s_lshr_b32 s34, s24, 2")
        a("s_and_b32 s29, s24, 3")
    a("s_lshl_b32 s28, s25, 1")
    a("s_cmp_eq_u32 s26, s33" if E("HS", "0") == "0" else "s_cmp_lg_u32 s26, s33")
    a("s_addc_u32 s28, s28, 0")
    a("s_mul_i32 s30, s32, 37")
    a("s_lshr_b32 s30, s30, 8")
    a("s_mul_i32 s31, s30, 7")
    a("s_sub_u32 s31, s32, s31")
    a("s_lshl_b32 s64, s64, 2")
    a("s_add_u32 s30, s30, s64")
    a("s_mov_b32 s35, s27")
    a("s_cmp_ge_u32 s27, 4")
    a("s_cbranch_scc0 L_COMPUTE")
    helper(a)
    compute(a)
    a.label("L_END")
    a("s_endpgm")
    a.label("L_CODE_END")

def helper(a):
    a("s_sub_u32 s27, s27, 4")
    if ROT:
        a("s_and_b32 s64, s32, 7")
        a("s_lshr_b32 s64, s64, %s" % E("ROTS", "0"))
        a("s_add_u32 s64, s64, s29")
        if ROT == 1:
            a("s_mul_i32 s80, s26, %s" % E("ROTO", "3"))
        elif ROT == 2:
            a("s_and_b32 s64, s64, 1")
            a("s_mul_i32 s80, s64, %s" % E("ROTO", "3"))
        elif ROT == 3:
            a("s_mul_i32 s65, s64, 86")
            a("s_lshr_b32 s65, s65, 8")
            a("s_mul_i32 s65, s65, 3")
            a("s_sub_u32 s64, s64, s65")
            a("s_mul_i32 s80, s64, 5")
            a("s_lshr_b32 s80, s80, 1")
        elif ROT == 4:
            a("s_and_b32 s64, s64, 3")
            a("s_lshl_b32 s80, s64, 1")
        for i in range(1, 7):
            a(f"s_add_u32 s{80+i}, s{79+i}, 1")
            a(f"s_cmp_eq_u32 s{80+i}, 7")
            a(f"s_cselect_b32 s{80+i}, 0, s{80+i}")
    a("v_lshrrev_b32 v1, 3, v0")
    a("s_lshl_b32 s64, s24, 7")
    a("s_lshl_b32 s65, s27, 5")
    a("s_add_u32 s64, s64, s65")
    a("v_add_u32 v1, s64, v1")
    a("v_mul_u32_u24 v1, 896, v1")
    a("v_lshrrev_b32 v2, 4, v0")
    a("v_and_b32 v3, 7, v0")
    a("v_xor_b32 v2, v2, v3")
    a("v_lshl_add_u32 v2, v2, 4, v1")
    a("v_xor_b32 v3, 64, v2")
    a("v_add_u32 v3, 7168, v3")
    a("v_add_u32 v4, 14336, v2")
    a("v_add_u32 v5, 14336, v3")
    dma_lane_w(a, 6, 10, 11, 2688)
    a("s_mul_i32 s64, s27, 43008")
    a("s_mul_i32 s65, s25, 112")
    a("s_add_u32 s64, s64, s65")
    a("s_add_u32 s64, s64, 896")
    a("v_add_u32 v6, s64, v6")
    a("v_add_u32 v7, 21504, v6")
    a("v_add_u32 v8, 896, v6")
    a("v_add_u32 v9, 896, v7")
    a("s_lshl_b32 s66, s27, 12")
    a("s_lshl_b32 s67, s27, 11")
    a(f"s_add_u32 s67, s67, {RING}")
    a(f"s_mov_b32 s{SX+2}, 1835008")
    a(f"s_mov_b32 s{SX+3}, 0x20000")
    a(f"s_mov_b32 s{SW+2}, 1204224")
    a(f"s_mov_b32 s{SW+3}, 0x20000")
    a("s_cmp_eq_u32 s26, 0")
    a("s_waitcnt lgkmcnt(0)")
    a(f"s_mov_b32 s{SX}, s4")
    a(f"s_mov_b32 s{SX+1}, s5")
    a(f"s_cselect_b32 s{SW}, s6, s12")
    a(f"s_cselect_b32 s{SW+1}, s7, s13")
    vm = []
    def xload(c):
        for q in range(4):
            a(f"s_add_u32 m0, s66, {c*16384 + q*1024}")
            a((f"s_lshl_b32 s64, s{80+c}, 7" if ROT else f"s_mov_b32 s64, {c*128}") if q == 0 else "s_nop 0")
            a(f"buffer_load_dwordx4 v{2+q}, {R(SX)}, s64 offen lds"); vm.append(("x", c))
    def wload(c):
        for pt in range(2):
            for u in range(2):
                a(f"s_add_u32 m0, s67, {(c%3)*16384 + pt*8192 + u*1024}")
                a((f"s_mul_i32 s65, s{80+c}, 172032" if ROT else f"s_mov_b32 s65, {c*172032}") if pt + u == 0 else "s_nop 0")
                a(f"buffer_load_dwordx4 v{6+2*pt+u}, {R(SW)}, s65 offen lds"); vm.append(("w", c))
    def qload(mat, part):
        slot = {(1, 0): 1, (1, 1): 2, (0, 0): 0, (0, 1): 1}[(mat, part)]
        for u in range(3 if part else 4):
            a(f"s_add_u32 m0, s{89 if part else 88}, {slot*16384 + u*1024}")
            a(f"s_mov_b32 s65, {u*43008}")
            a(f"buffer_load_dwordx4 v{10+part}, {R(SWA if mat == 0 else SWB)}, s65 offen lds"); vm.append(("q", mat, part))
    def waitfor(*tags):
        last = max(i for i, tg in enumerate(vm) if tg in tags)
        a(f"s_waitcnt vmcnt({len(vm)-1-last})")
    def patch(part):
        if part: a("s_mov_b32 exec_hi, 0xffff")
        a(f"ds_write_b16 v{15+part}, v{12+part}")
        if part: a("s_mov_b32 exec_hi, -1")
    def initcheck(tag):
        a("v_readfirstlane_b32 s87, v17")
        a("s_nop 0")
        a("s_cmp_lg_u32 s87, 0")
        a(f"s_cbranch_scc1 H_INIT_OK{tag}")
        poll(a, "INIT" + tag, R(SD), "0", 1, 18, 17)
        a("v_readfirstlane_b32 s87, v17")
        a.label(f"H_INIT_OK{tag}")
    stamp(a, 1, 2)
    xload(0); wload(0)
    srd(a, SWA, 6, 1204224); srd(a, SWB, 12, 1204224)
    srd(a, SWS, 22, WS_SIZE); srd(a, SD, 20, 256); srd(a, SG, 16, 896)
    a("v_lshrrev_b32 v10, 2, v0")
    a("v_mul_u32_u24 v10, 2688, v10")
    a("v_and_b32 v11, 3, v0")
    a("v_lshl_add_u32 v10, v11, 4, v10")
    a("s_mul_i32 s65, s28, 56")
    a("s_mul_i32 s64, s27, 129024")
    a("s_add_u32 s64, s64, s65")
    a(f"s_add_u32 s64, s64, {256*2688}")
    a("v_add_u32 v11, s64, v10")
    a("s_mul_i32 s64, s27, 172032")
    a("s_add_u32 s64, s64, s65")
    a("v_add_u32 v10, s64, v10")
    a("s_lshl_b32 s88, s27, 12")
    a(f"s_add_u32 s88, s88, {RING}")
    a("s_mul_i32 s89, s27, 3072")
    a(f"s_add_u32 s89, s89, {RING}")
    a(f"s_add_u32 s64, s88, {16384 + 56}")
    a("v_lshl_add_u32 v15, v0, 6, s64")
    a(f"s_add_u32 s64, s89, {32768 + 56}")
    a("v_lshl_add_u32 v16, v0, 6, s64")
    a("s_lshl_b32 s64, s27, 7")
    a("v_lshl_add_u32 v14, v0, 1, s64")
    a("s_mul_i32 s64, s27, 96")
    a("s_add_u32 s64, s64, 512")
    a("v_lshl_add_u32 v17, v0, 1, s64")
    a("v_mov_b32 v18, 0")
    if TOUCH: a("s_barrier")
    XE = int(E("XE", "1"))
    xload(1); wload(1)
    for i in range(XE): xload(2+i)
    stamp(a, 1); stamp(a, 2, 2)
    for c in range(5):
        waitfor(("x", c), ("w", c)); a("s_barrier"); stamp(a, 3+c, 2)
        if c == 0: stamp(a, 2)
        if not XE: xload(c+2)
        wload(c+2)
        if XE and c+2+XE < 7: xload(c+2+XE)
        if c == 1:
            a(f"buffer_load_ushort v12, v14, {R(SG)}, 0 offen"); vm.append(("g", 0))
            a(f"buffer_load_ushort v13, v17, {R(SG)}, 0 offen"); vm.append(("g", 1))
        if c == 3:
            a(f"buffer_load_dword v17, v18, {R(SD)}, 0 offen sc1"); vm.append(("d", 0))
    waitfor(("x",5),("w",5)); a("s_barrier"); stamp(a, 8, 2)
    qload(1, 0)
    def setup2():
        a(f"v_mov_b32 v1, {L_CNT}")
        for i in range(8, 12): a(f"v_mov_b32 v{i}, 0")
        a("ds_write_b128 v1, v[8:11]")
        a("s_nop 1")
        a("v_mov_b32 v9, s87")
        a("ds_write_b128 v1, v[8:11] offset:16")
        a("v_lshlrev_b32 v2, 4, v0")
        dma_lane_w(a, 3, 4, 5, 896)
        a("s_mul_i32 s64, s27, 7168")
        a("s_lshl_b32 s65, s31, 7")
        a("s_add_u32 s64, s64, s65")
        a("v_add_u32 v3, s64, v3")
        a("s_lshr_b32 s65, s27, 1")
        a("s_mul_i32 s64, s65, 28672")
        a("s_lshl_b32 s65, s65, 6")
        p3_addr(a, 4, "s64", "s65", 8, 9)
        srd(a, SWA, 8, 401408); srd(a, SWB, 14, 401408)
        a("s_lshl_b32 s65, s25, 2")
        a("s_add_u32 s65, s65, s27")
        a("s_lshl_b32 s65, s65, 9")
        a(f"s_add_u32 s65, s65, {C_KV}")
        a("v_lshlrev_b32 v10, 7, v0")
        stamp(a, 3)
    waitfor(("x",6),("w",6)); a("s_barrier"); stamp(a, 9, 2)
    a("s_lshl_b32 s64, s25, 4")
    a("s_add_u32 s64, s64, s24")
    a("s_lshl_b32 s64, s64, 7")
    a(f"s_add_u32 s66, s64, {C_KV}")
    initcheck("A")
    qload(1, 1)
    a("s_waitcnt vmcnt(3)"); patch(0)
    a("s_waitcnt vmcnt(0)"); patch(1)
    a("s_waitcnt lgkmcnt(0)")
    a("s_barrier"); stamp(a, 10, 2)
    qload(0, 0)
    a("s_barrier")
    qload(0, 1)
    a("s_xor_b32 s64, s27, 3")
    a("s_xor_b32 s65, s26, 1")
    a("s_or_b32 s90, s64, s65")
    a("s_barrier")
    a("s_cbranch_scc1 H_NOSIGKV")
    signal(a, "s66", 18, 19, 20)
    a.label("H_NOSIGKV")
    if E("ES", "0") == "1": setup2()
    a("s_waitcnt vmcnt(4)")
    a("s_cmp_eq_u32 s90, 0")
    a("s_cbranch_scc1 H_W4")
    a("s_waitcnt vmcnt(3)")
    a.label("H_W4")
    a("s_barrier")
    a("s_waitcnt vmcnt(1)")
    a("s_cbranch_scc1 H_SIGD")
    a("s_waitcnt vmcnt(0)")
    a.label("H_SIGD")
    a("s_barrier")
    if E("ES", "0") == "0": setup2()
    if E("K1", "1") == "1":
        a("s_cmp_eq_u32 s27, 0")
        a("s_cbranch_scc0 H_KVD")
        poll(a, "KV", WSR, "s65", 16, 10, 11, int(E("KS", "2")))
        a.label("H_KVD")
    else: poll(a, "KV", WSR, "s65", 4, 10, 11, int(E("KS", "0")))
    a("s_waitcnt lgkmcnt(0)")
    a("s_barrier")
    a("s_setprio %s" % E("HP", "2"))
    stamp(a, 4); stamp(a, 1, 3); stamp(a, 1, 7)
    PQ, G, KF, NUM, PA = 80, 88, 92, 100, 116
    def wo_dma(tag, srdreg, base, lo, hi, depth):
        if hi <= lo: return
        a("s_lshl_b32 s66, s27, 10")
        a(f"s_add_u32 s66, s66, {base + lo*4096}")
        a(f"s_mov_b32 s63, {lo*28672}")
        a.label(f"H_WO{tag}")
        a("s_mov_b32 m0, s66")
        a("s_add_u32 s66, s66, 4096")
        a(f"buffer_load_dwordx4 v3, {R(srdreg)}, s63 offen lds")
        a("s_add_u32 s63, s63, 28672")
        a(f"s_waitcnt vmcnt({depth})")
        a(f"s_cmp_lt_u32 s63, {hi*28672}")
        a(f"s_cbranch_scc1 H_WO{tag}")
    W1 = int(E("W1", "0"))
    a("s_cmp_ge_u32 s32, 28")
    a("s_cbranch_scc1 H_NOWO0")
    wo_dma("0", SWA, 0, 0, W1, int(E("WOD0", "2")))
    a.label("H_NOWO0")
    if "hskip" in X:
        a("s_branch H_SKIP")
    lds_wait(a, "C0", 1, 8, 4, 9)
    stamp(a, 2, 7)
    a("s_lshl_b32 s64, s27, 11")
    a(f"s_add_u32 s64, s64, {L_PQ}")
    a("v_add_u32 v8, s64, v2")
    a(f"ds_read_b128 {vr(PQ,4)}, v8")
    a(f"ds_read_b128 {vr(PQ+4,4)}, v8 offset:1024")
    a("s_lshl_b32 s64, s27, 8")
    a(f"s_add_u32 s64, s64, {L_G}")
    a("v_lshl_add_u32 v8, v0, 2, s64")
    a(f"ds_read_b32 v{G}, v8")
    a("s_cmp_ge_u32 s27, 2")
    a("s_cselect_b32 s64, s26, 1")
    a("s_cmp_eq_u32 s64, 0")
    a("s_cbranch_scc0 H_NOKVP")
    a("s_and_b32 s65, s27, 1")
    a("s_lshl_b32 s64, s65, 12")
    a(f"s_add_u32 s64, s64, {L_KVD}")
    a("v_add_u32 v8, s64, v2")
    for i in range(8):
        a(f"ds_read_b128 {vr(16+4*i,4)}, v8 offset:{1024*(i&3) + 8192*(i>>2)}")
    a("s_lshl_b32 s64, s25, 1")
    a("s_add_u32 s64, s64, s65")
    a(f"s_mul_i32 s64, s64, {PAD}")
    a("s_lshl_b32 s65, s24, 12")
    a("s_add_u32 s64, s64, s65")
    a(f"s_add_u32 s64, s64, {WS_KVP}")
    a("s_waitcnt lgkmcnt(0)")
    vadd(a, 16, 32, 16)
    for q in range(4):
        a(f"buffer_store_dwordx4 {vr(16+4*q,4)}, v2, {WSR}, s64 offen offset:{1024*q} sc1")
    a("s_lshl_b32 s64, s25, 4")
    a("s_add_u32 s64, s64, s24")
    a("s_lshl_b32 s64, s64, 7")
    a(f"s_add_u32 s64, s64, {C_A}")
    a("v_mov_b32 v11, 1")
    stamp(a, 3, 7)
    a("s_waitcnt vmcnt(0)")
    stamp(a, 4, 7)
    a("s_mov_b64 exec, 1")
    a("ds_add_rtn_u32 v9, v1, v11 offset:12")
    a("s_waitcnt lgkmcnt(0)")
    a("v_readfirstlane_b32 s69, v9")
    a("s_mov_b64 exec, -1")
    a("s_cmp_eq_u32 s69, 1")
    a("s_cbranch_scc0 H_NOKVP")
    signal(a, "s64", 10, 11, 9)
    a.label("H_NOKVP")
    stamp(a, 5, 7)
    lo = lambda: a("s_setprio 0") if PT else None
    hi = lambda: a("s_setprio 2") if PT else None
    lo()
    a("s_cmp_ge_u32 s32, 28")
    a("s_cbranch_scc1 H_NOWOA")
    if "nowo" not in X:
        wo_dma("A", SWA, 0, W1, 14, int(E("WOD", "5")))
        wo_dma("B", SWB, 57344, 0, 14, int(E("WOD", "5")))
    a.label("H_NOWOA")
    stamp(a, 2, 3); stamp(a, 6, 7)
    hi()
    a("s_lshl_b32 s64, s25, 11")
    a(f"s_add_u32 s64, s64, {C_A}")
    if "nopolla" not in X:
        a("s_cmp_eq_u32 s27, 0")
        a("s_cbranch_scc0 H_AW")
        poll(a, "A", WSR, "s64", 16, 10, 11, int(E("AS", "16")))
        a("v_mov_b32 v11, 1")
        a("ds_write_b32 v1, v11 offset:16")
        a("s_branch H_AD")
        a.label("H_AW")
        lds_wait(a, "A", 1, 16, 1, 9, 4)
        a.label("H_AD")
    stamp(a, 3, 3); stamp(a, 7, 7)
    a(f"s_mul_i32 s64, s28, {PAD}")
    a("s_lshl_b32 s65, s27, 10")
    a("s_add_u32 s64, s64, s65")
    a(f"s_add_u32 s64, s64, {WS_KVP}")
    KD = int(E("KD", "2"))
    lo()
    for i in range(16):
        if "nokvl" not in X: a(f"buffer_load_dwordx4 {vr(16+4*i,4)}, v2, {WSR}, s64 offen sc1")
        a("s_add_u32 s64, s64, 4096")
        if i > KD:
            a(f"s_waitcnt vmcnt({KD})")
            hi()
            if "nokva" not in X: vadd(a, 16, 16+4*(i-KD), 4)
            lo()
    stamp(a, 4, 3)
    hi()
    for j in range(16-KD, 16):
        a(f"s_waitcnt vmcnt({15-j})")
        vadd(a, 16, 16+4*j, 4)
    stamp(a, 5, 3)
    if "nofin" in X:
        a("s_branch H_SKIP")
    a("v_cvt_pk_bf16_f32 v16, v16, v17")
    a("v_cvt_pk_bf16_f32 v17, v18, v19")
    a("s_lshr_b32 s64, s27, 1")
    a("s_lshl_b32 s64, s64, 10")
    a("s_and_b32 s65, s27, 1")
    a("s_lshl_b32 s65, s65, 3")
    a("s_add_u32 s64, s64, s65")
    a(f"s_add_u32 s64, s64, {L_KVF}")
    a("v_add_u32 v8, s64, v2")
    a("ds_write_b64 v8, v[16:17]")
    a("v_mov_b32 v11, 1")
    a("s_waitcnt lgkmcnt(0)")
    a("s_mov_b64 exec, 1")
    a("ds_add_u32 v1, v11")
    lds_wait(a, "C1", 1, 0, 4, 9)
    stamp(a, 6, 3)
    a(f"v_add_u32 v8, {L_KVF}, v2")
    a(f"ds_read_b128 {vr(KF,4)}, v8")
    a(f"ds_read_b128 {vr(KF+4,4)}, v8 offset:1024")
    a("s_waitcnt lgkmcnt(0)")
    a(f"{MF} {vr(NUM,16)}, {vr(KF,4)}, {vr(PQ,4)}, 0")
    a(f"{MF} {vr(NUM,16)}, {vr(KF+4,4)}, {vr(PQ+4,4)}, {vr(NUM,16)}")
    a("s_lshl_b32 s64, s24, 2")
    a("s_add_u32 s64, s64, s27")
    a(f"s_mul_i32 s64, s64, {PAD}")
    a("s_lshl_b32 s65, s28, 11")
    a("s_add_u32 s64, s64, s65")
    a(f"s_add_u32 s64, s64, {WS_OF}")
    a(f"v_mov_b32 v{PA+6}, 0")
    a(f"v_mov_b32 v{PA+7}, 0")
    a("s_nop 15")
    a(f"v_mov_b32 v8, v{NUM+12}")
    a(f"v_mov_b32 v9, v{NUM+12}")
    a("s_nop 1")
    a("v_permlane32_swap_b32 v8, v9")
    a(f"v_add_f32 v9, {f32(EPS)}, v9")
    a("v_rcp_f32 v9, v9")
    a("s_nop 0")
    a(f"v_mul_f32 v9, v9, v{G}")
    vmul(a, NUM, "v9", 16)
    cvt(a, PA, NUM, 0, 6)
    a("s_mov_b32 exec_hi, 0")
    cvt(a, PA, NUM, 6, 8)
    a("s_mov_b32 exec_hi, -1")
    a(f"buffer_store_dwordx4 {vr(PA,4)}, v2, {WSR}, s64 offen sc1")
    a(f"buffer_store_dwordx4 {vr(PA+4,4)}, v2, {WSR}, s64 offen offset:1024 sc1")
    stamp(a, 7, 3)
    a("s_waitcnt vmcnt(0)")
    stamp(a, 8, 3)
    a("s_mov_b64 exec, 1")
    a("ds_add_rtn_u32 v9, v1, v11 offset:4")
    a("s_waitcnt lgkmcnt(0)")
    a("v_readfirstlane_b32 s69, v9")
    a("s_mov_b64 exec, -1")
    a("s_cmp_eq_u32 s69, 3")
    a("s_cbranch_scc0 H_NOSIGOA")
    if "hskip" in X or "nofin" in X:
        a.label("H_SKIP")
        a("s_cmp_eq_u32 s27, 0")
        a("s_cbranch_scc0 H_NOSIGOA")
    a("s_lshl_b32 s64, s24, 4")
    a("s_add_u32 s64, s64, s28")
    a("s_lshl_b32 s64, s64, 7")
    a(f"s_add_u32 s64, s64, {C_OA}")
    signal(a, "s64", 10, 11, 9)
    a.label("H_NOSIGOA")
    stamp(a, 5); stamp(a, 9, 3)
    a("s_setprio 0")
    a("s_barrier")
    a("s_cmp_ge_u32 s32, 28")
    a("s_cbranch_scc1 H_NOP3B")
    stamp(a, 6)
    a("s_and_b32 s64, s30, 0xfe")
    a("s_lshr_b32 s65, s27, 1")
    a("s_add_u32 s64, s64, s65")
    a("s_lshl_b32 s64, s64, 10")
    a(f"s_add_u32 s64, s64, {C_OA}")
    a("s_and_b32 s62, s27, 1")
    a("s_lshl_b32 s65, s30, 1")
    a("s_add_u32 s62, s62, s65")
    a(f"s_mul_i32 s62, s62, {PAD}")
    a("s_lshr_b32 s65, s27, 1")
    a("s_lshl_b32 s65, s65, 14")
    a("s_add_u32 s62, s62, s65")
    a(f"s_add_u32 s62, s62, {WS_OF}")
    NE = int(E("NE", "8"))
    a("s_mov_b64 exec, 0xff")
    a(f"buffer_load_dword v11, v10, {WSR}, s64 offen sc1")
    a("s_waitcnt vmcnt(0)")
    a("v_cmp_ne_u32 vcc, s87, v11")
    a("s_mov_b64 exec, -1")
    a("s_cbranch_vccnz H_OALATE")
    p3_oloads(a, 2, "s62", NE)
    a("s_barrier")
    a("s_barrier")
    a("s_branch H_OADONE")
    a.label("H_OALATE")
    a("s_barrier")
    a("s_barrier")
    poll(a, "OA", WSR, "s64", 8, 10, 11, 2)
    p3_oloads(a, 2, "s62", NE)
    a.label("H_OADONE")
    NPRE = 16
    for ks in range(NE, 16):
        for x in p3_oload(ks, 2, "s62"): a(x)
    stamp(a, 7); stamp(a, 10, 3)
    p3_gemm(a, 4, [16, 32], [48, 56], True, NPRE, 2, "s62")
    stamp(a, 8)
    a("s_lshl_b32 s64, s27, 13")
    a(f"s_add_u32 s64, s64, {RING}")
    a("v_add_u32 v8, s64, v2")
    a("s_nop 9")
    for i in range(8):
        a(f"ds_write_b128 v8, {vr(16+4*i,4)} offset:{1024*i}")
    a("s_waitcnt lgkmcnt(0)")
    stamp(a, 9)
    a("s_barrier")
    a("s_branch H_EXIT")
    a.label("H_NOP3B")
    a("s_barrier")
    a("s_barrier")
    a.label("H_EXIT")
    stamp(a, 10)
    stamp_out(a, 11)
    a("s_endpgm")

def compute(a):
    a.label("L_COMPUTE")
    XA, WA, WB, XQ, WQ = 2, 6, 7, 8, 12
    FR = 16; accK = [64, 80]; accV = [96, 112]; pK = [128, 136]; pV = [144, 152]
    QA, QB = 96, 112
    def touch(tag, c0, n, withq):
        a("s_lshr_b32 s60, s32, 1")
        a("s_cmp_eq_u32 s27, 3")
        if withq:
            a(f"s_cbranch_scc0 C_T0{tag}")
            srd(a, SWA, 6, 1204224); srd(a, SWB, 12, 1204224)
            a("s_mul_i32 s60, s60, 7")
            a("v_lshrrev_b32 v17, 2, v0")
            a("v_add_u32 v17, s60, v17")
            a("v_lshl_add_u32 v17, v17, 2, s34")
            a("v_mul_u32_u24 v17, 2688, v17")
            a("v_and_b32 v16, 3, v0")
            a("v_lshl_add_u32 v17, v16, 7, v17")
            a("s_mul_i32 s62, s33, 384")
            a("s_mov_b64 exec, 0x0fffffff")
            a(f"buffer_load_dword a88, v17, {R(SWA)}, s62 offen")
            a(f"buffer_load_dword a89, v17, {R(SWB)}, s62 offen")
            if E("TWO", "1") == "1":
                srd(a, SWA, 8, 401408); srd(a, SWB, 14, 401408)
                a("s_lshr_b32 s60, s32, 1")
                a("s_lshl_b32 s60, s60, 3")
                a("s_and_b32 s61, s2, 7")
                a("s_add_u32 s60, s60, s61")
                a("s_mul_i32 s60, s60, 25")
                a("v_add_u32 v17, s60, v0")
                a("v_lshlrev_b32 v17, 7, v17")
                a("s_mov_b64 exec, 0x1ffffff")
                a(f"buffer_load_dword a90, v17, {R(SWA)}, 0 offen")
                a(f"buffer_load_dword a91, v17, {R(SWB)}, 0 offen")
            a("s_mov_b64 exec, -1")
            a(f"s_branch C_TD{tag}")
            a.label(f"C_T0{tag}")
        else:
            a(f"s_cbranch_scc1 C_TD{tag}")
        a("s_cmp_eq_u32 s27, 0")
        a(f"s_cbranch_scc0 C_T1{tag}")
        srd(a, SW, 4, 1835008)
        a("s_lshl_b32 s61, s34, 9")
        a("s_lshl_b32 s60, s60, 5")
        a("s_add_u32 s60, s60, s61")
        a("v_and_b32 v17, 31, v0")
        a("v_add_u32 v17, s60, v17")
        a("v_mul_u32_u24 v17, 896, v17")
        a("v_lshrrev_b32 v16, 5, v0")
        a("v_lshl_add_u32 v17, v16, 7, v17")
        a(f"s_mov_b32 s62, {128*c0}")
        a("s_mov_b32 s63, 256")
        a(f"s_branch C_T2{tag}")
        a.label(f"C_T1{tag}")
        a("s_cmp_eq_u32 s27, 1")
        a(f"s_cselect_b32 s{SW}, s12, s6")
        a(f"s_cselect_b32 s{SW+1}, s13, s7")
        a(f"s_mov_b32 s{SW+2}, 1204224")
        a(f"s_mov_b32 s{SW+3}, 0x20000")
        a("v_lshrrev_b32 v17, 5, v0")
        a("v_lshlrev_b32 v17, 6, v17")
        a("v_bfe_u32 v16, v0, 3, 2")
        a("s_lshl_b32 s60, s60, 2")
        a("v_add3_u32 v17, v17, v16, s60")
        a("v_mul_u32_u24 v17, 2688, v17")
        a("v_bfe_u32 v16, v0, 2, 1")
        a("v_mul_u32_u24 v16, 896, v16")
        a("v_add_u32 v17, v17, v16")
        a("v_and_b32 v16, 3, v0")
        a("v_lshl_add_u32 v17, v16, 7, v17")
        a("s_mul_i32 s62, s33, 384")
        a(f"s_add_u32 s62, s62, {896 + 172032*c0}")
        a(f"s_mov_b32 s63, {2*172032}")
        a.label(f"C_T2{tag}")
        for i in range((n+1)//2):
            if 2*i+1 == n: a("s_mov_b32 exec_hi, 0")
            a(f"buffer_load_dword a{88+i}, v17, {R(SW)}, s62 offen")
            if 2*i+1 == n: a("s_mov_b32 exec_hi, -1")
            if 2*i+2 < n: a("s_add_u32 s62, s62, s63")
        a.label(f"C_TD{tag}")
    TB = [int(v) for v in E("TB", "1,0").split(",")]
    TA = [int(v) for v in E("TA", "1,0").split(",")]
    a("s_waitcnt lgkmcnt(0)")
    if TB[1]:
        a("s_cmp_eq_u32 s26, 0")
        a("s_cbranch_scc1 C_NTB")
        touch("B", TB[0], TB[1], E("TQ", "A") == "B")
        a.label("C_NTB")
    TAE = E("TAE", "0")
    if TA[1] and TAE == "1":
        a("s_cmp_eq_u32 s26, 0")
        a("s_cbranch_scc0 C_NTA")
        touch("A", TA[0], TA[1], E("TQ", "A") == "A")
        a.label("C_NTA")
    TW = int(E("TW", "1"))
    if TW:
        a(f"s_cmp_ge_u32 s27, {TW}")
        a("s_cbranch_scc1 C_NTW")
        a("s_cmp_ge_u32 s32, 16")
        a(f"s_cselect_b32 s{SW}, s12, s6")
        a(f"s_cselect_b32 s{SW+1}, s13, s7")
        a(f"s_mov_b32 s{SW+2}, 1204224")
        a(f"s_mov_b32 s{SW+3}, 0x20000")
        a("s_and_b32 s60, s32, 15")
        a("s_mul_i32 s60, s60, 28")
        a("v_lshrrev_b32 v17, 1, v0")
        a("v_add_u32 v17, s60, v17")
        a("v_mul_u32_u24 v17, 2688, v17")
        a("v_and_b32 v16, 1, v0")
        a("v_lshl_add_u32 v17, v16, 7, v17")
        a("s_mul_i32 s60, s25, 112")
        a("s_and_b32 s60, s60, 0xff80")
        a("s_mul_i32 s61, s27, 896")
        a("s_add_u32 s60, s60, s61")
        a("s_mov_b32 exec_hi, 0xffffff")
        a(f"buffer_load_dword a88, v17, {R(SW)}, s60 offen")
        a("s_mov_b64 exec, -1")
        a.label("C_NTW")
    srd(a, SWS, 22, WS_SIZE)
    a("s_xor_b32 s64, s27, 3")
    a("s_xor_b32 s65, s2, 8")
    a("s_or_b32 s64, s65, s64")
    a("s_cmp_eq_u32 s64, 0")
    a("s_cbranch_scc0 C_NOINIT")
    a("s_memrealtime s[64:65]")
    srd(a, SD, 20, 256)
    a("v_mov_b32 v21, 0")
    a("s_waitcnt lgkmcnt(0)")
    a("s_lshl_b32 s64, s64, 1")
    a("s_or_b32 s64, s64, 1")
    a("v_mov_b32 v22, s64")
    a("s_mov_b64 exec, 1")
    a(f"buffer_store_dword v22, v21, {R(SD)}, 0 offen sc1")
    a("s_mov_b64 exec, -1")
    a.label("C_NOINIT")
    a("s_lshr_b32 s92, s27, 1")
    a("s_and_b32 s93, s27, 1")
    a("v_and_b32 v13, 31, v0")
    a("v_lshrrev_b32 v14, 5, v0")
    a("v_bfe_u32 v15, v0, 1, 3")
    a("v_xor_b32 v15, v15, v14")
    a("s_lshl_b32 s64, s92, 13")
    a("v_lshl_add_u32 v1, v13, 7, s64")
    a("s_lshl_b32 s65, s27, 12")
    a("s_sub_u32 s65, s65, s64")
    for ks in range(4):
        a(f"v_xor_b32 v{XA+ks}, {2*ks}, v15")
        a(f"v_lshl_add_u32 v{XA+ks}, v{XA+ks}, 4, v1")
        a(f"v_add_u32 v{XQ+ks}, s65, v{XA+ks}")
    a("s_mul_i32 s64, s93, 56")
    a(f"v_mov_b32 v{WA}, s64")
    tr_lane_addr(a, WB, WA, 1, 15, 2)
    a(f"v_add_u32 v{WB}, {RING}, v{WB}")
    a(f"v_mov_b32 v{WA}, v{WB}")
    a("v_bfe_u32 v1, v0, 2, 2")
    a("v_lshl_add_u32 v1, v14, 3, v1")
    a("v_lshlrev_b32 v1, 1, v1")
    a("v_bfe_u32 v15, v0, 4, 1")
    a("v_add_u32 v1, v1, v15")
    a("v_lshlrev_b32 v1, 2, v1")
    a("v_and_b32 v15, 3, v0")
    a("v_add_u32 v1, v1, v15")
    a("v_lshlrev_b32 v1, 3, v1")
    a(f"v_add_u32 v{WQ}, {RING}, v1")
    if TA[1] and TAE == "2":
        a("s_cmp_eq_u32 s26, 0")
        a("s_cbranch_scc0 C_NTA")
        touch("A", TA[0], TA[1], E("TQ", "A") == "A")
        a("s_barrier")
        a.label("C_NTA")
    a("v_cmp_eq_u32 vcc, 28, v13")
    a(f"v_mov_b32 v1, {ONE2}")
    a("s_nop 0")
    a("v_cndmask_b32 v15, 0, v1, vcc")
    for s in range(2):
        for i in range(8):
            a(f"v_mov_b32 v{pV[s]+i}, v15")
    a("s_mov_b32 s56, 0x0fffffff")
    a("s_mov_b32 s57, 0x0fffffff")
    a(f"s_mov_b32 s64, {f32(LOG2E)}")
    a(f"s_mov_b32 s65, {f32(QSCALE)}")
    a(f"s_mov_b32 s66, {f32(EPS)}")
    for i in range(32):
        a(f"v_mov_b32 v{accV[0]+i}, 0")
    a("v_lshlrev_b32 v13, 4, v0")
    a("s_cmp_eq_u32 s26, 0")
    a("s_cbranch_scc1 C_A")

    def scalars():
        for s in range(4):
            a(f"s_add_u32 s60, s27, {1+s}")
            a("s_and_b32 s60, s60, 3")
            a(f"s_lshl_b32 s{36+s}, s60, 11")
            a(f"s_add_u32 s{36+s}, s{36+s}, {L_QD}")
            a(f"s_mul_i32 s{40+s}, s60, 12288")
            a(f"s_add_u32 s{40+s}, s{40+s}, {RING + (4096*s if s < 3 else 0)}")
        a(f"s_mul_i32 s44, s28, {4*PAD}")
        a(f"s_mul_i32 s45, s27, {PAD}")
        a("s_add_u32 s45, s45, s44")
        a("s_lshl_b32 s46, s24, 2")
        a("s_add_u32 s46, s46, s27")
        a(f"s_mul_i32 s46, s46, {PAD}")
        a("s_lshl_b32 s60, s28, 11")
        a("s_add_u32 s46, s46, s60")
        a(f"s_add_u32 s46, s46, {WS_OF + 32768}")
        a("s_lshl_b32 s47, s27, 12")
        a(f"s_add_u32 s47, s47, {L_KVD}")
        a("s_lshl_b32 s48, s27, 8")
        a(f"s_add_u32 s48, s48, {L_G}")
    def reads(buf, ks):
        f = FR + 16*buf
        return [f"ds_read_b128 {vr(f,4)}, v{XA+ks}",
                f"ds_read_b64_tr_b16 {vr(f+8,2)}, v{WA} offset:{ks*2048}",
                f"ds_read_b64_tr_b16 {vr(f+10,2)}, v{WA} offset:{ks*2048+512}",
                f"ds_read_b128 {vr(f+4,4)}, v{XA+ks} offset:4096",
                f"ds_read_b64_tr_b16 {vr(f+12,2)}, v{WA} offset:{8192+ks*2048}",
                f"ds_read_b64_tr_b16 {vr(f+14,2)}, v{WA} offset:{8192+ks*2048+512}"]
    def mfmas(buf, kT):
        f = FR + 16*buf
        Xf = [vr(f, 4), vr(f+4, 4)]; Wk, Wv = vr(f+8, 4), vr(f+12, 4)
        m = []
        for s in range(2): m.append(f"{MF} {vr(accV[s],16)}, {Xf[s]}, {Wk}, {vr(accV[s],16)}")
        for s in range(2):
            if kT: m.append(f"{MF} {vr(accK[s],16)}, {Wv}, {Xf[s]}, {vr(accK[s],16)}")
            else:  m.append(f"{MF} {vr(accK[s],16)}, {Xf[s]}, {Wv}, {vr(accK[s],16)}")
        return m
    def mainloop(tag, kT):
        a("s_mov_b32 s60, 0")
        a("s_mov_b32 s61, 0")
        if STAMP != 4: stampc(a, 1)
        a("s_barrier")
        if STAMP != 4: stampc(a, 2)
        for r in reads(0, 0): a(r)
        a(".p2align 6")
        a.label(f"C_{tag}_LOOP")
        for ks in range(4):
            m = mfmas(ks & 1, kT); r = reads((ks+1) & 1, (ks+1) & 3)
            if ks < 3:
                a("s_waitcnt lgkmcnt(3)"); a(m[0]); a(r[0]); a(r[1]); a(r[2])
                a("s_waitcnt lgkmcnt(5)"); a(m[1]); a(r[3]); a(r[4]); a(r[5])
                a("s_waitcnt lgkmcnt(6)"); a(m[2])
                a(f"v_add_u32 v{XA+ks}, 16384, v{XA+ks}")
                if ks == 2:
                    a("s_add_u32 s60, s60, 1")
                    a("s_add_u32 s61, s61, 16384")
                    a("s_cmp_eq_u32 s61, 49152")
                    a("s_cselect_b32 s61, 0, s61")
                a(m[3])
            else:
                a(f"v_add_u32 v{WA}, s61, v{WB}")
                a("s_cmp_eq_u32 s60, 7")
                a("s_waitcnt lgkmcnt(0)")
                a(f"s_cbranch_scc1 C_{tag}_TAIL")
                a("s_barrier")
                a(m[0]); a(r[0]); a(r[1]); a(r[2])
                a(m[1]); a(r[3]); a(r[4]); a(r[5])
                a(m[2])
                a(f"v_add_u32 v{XA+3}, 16384, v{XA+3}")
                a(m[3])
                a(f"s_branch C_{tag}_LOOP")
                a.label(f"C_{tag}_TAIL")
                for x in m: a(x)
        stampc(a, 3)
        if "nords" in X or "nomf" in X:
            i0 = max(i for i, l in enumerate(a.lines) if l.startswith(f"C_{tag}_LOOP"))
            for i in range(i0, len(a.lines)):
                l = a.lines[i].strip()
                if "nords" in X and l.startswith("ds_read"): a.lines[i] = "    s_nop 0"
                if "nomf" in X and l.startswith("v_mfma"): a.lines[i] = "    s_nop 7"
    _reads = reads
    def reads(buf, ks):
        r = _reads(buf, ks)
        f = FR + 16*buf
        r[1] = f"ds_read_b64_tr_b16 {vr(f+8,2)}, v{WA} offset:{8192+ks*2048}"
        r[2] = f"ds_read_b64_tr_b16 {vr(f+10,2)}, v{WA} offset:{8192+ks*2048+512}"
        r[4] = f"ds_read_b64_tr_b16 {vr(f+12,2)}, v{WA} offset:{ks*2048}"
        r[5] = f"ds_read_b64_tr_b16 {vr(f+14,2)}, v{WA} offset:{ks*2048+512}"
        return r
    def cvt_v():
        a("s_nop 9")
        a("s_mov_b64 exec, s[56:57]")
        for s in range(2): cvt(a, pV[s], accV[s])
        a("s_mov_b64 exec, -1")
    def qpass(mat, acc, c0, bars):
        def qreads(k):
            f = FR + 8*(k % 4)
            slot = {(1, 0): 1, (1, 1): 2, (0, 0): 0, (0, 1): 1}[(mat, k >> 4)]
            o = slot*16384 + (k & 15)*1024
            xr = (XQ if k < 16 else XA) + (k & 3)
            return [f"ds_read_b128 {vr(f,4)}, v{xr} offset:{((k >> 2) & 3)*16384}",
                    f"ds_read_b64_tr_b16 {vr(f+4,2)}, v{WQ} offset:{o}",
                    f"ds_read_b64_tr_b16 {vr(f+6,2)}, v{WQ} offset:{o+256}"]
        for k in range(3):
            for r in qreads(k): a(r)
        for k in range(28):
            f = FR + 8*(k % 4)
            for x in bars.get(k+3, []): a(x)
            a(f"s_waitcnt lgkmcnt({3*min(2, 27-k)})")
            a(f"{MF} {vr(acc,16)}, {vr(f+4,4)}, {vr(f,4)}, {c0 if k == 0 else vr(acc,16)}")
            if k+3 < 28:
                for x in qreads(k+3): a(x)
    def phase1b(late):
        for i in range(4): a(f"v_add_u32 v{XA+i}, 65536, v{XQ+i}")
        stampc(a, 4)
        a("s_barrier")
        if STAMP == 6: stampc(a, 15)
        bars = {20: ["s_barrier"]}
        if late: bars[16] = ["s_waitcnt vmcnt(0)", "s_barrier", "s_barrier"]
        qpass(1, QB, "0", bars)
        if STAMP == 6: stampc(a, 9)
        a("v_add_u32 v1, s39, v13")
        a("s_waitcnt vmcnt(0)")
        a("s_barrier")
        if STAMP == 6: stampc(a, 10)
        a("v_mov_b32 v54, 0")
        a("v_mov_b32 v55, 0")
        a("s_nop 7")
        a(f"v_mov_b32 v14, v{QB+12}")
        a(f"v_mov_b32 v15, v{QB+12}")
        vmul(a, QB, "s65", 8)
        a("v_permlane32_swap_b32 v15, v14")
        cvt(a, 48, QB, 0, 4)
        a("ds_write_b128 v1, v[48:51]")
        vmul(a, QB+8, "s65", 8)
        cvt(a, 48, QB, 4, 6)
        a("s_mov_b32 exec_hi, 0")
        cvt(a, 48, QB, 6, 8)
        a("s_mov_b32 exec_hi, -1")
        a("ds_write_b128 v1, v[52:55] offset:1024")
        if STAMP == 6: stampc(a, 11)
        a("s_waitcnt lgkmcnt(0)")
        a("s_barrier")
        if STAMP == 6: stampc(a, 12)
        qpass(0, QA, "1.0", {16: ["s_barrier"]})
        stampc(a, 5)
    def defer_q(a, mats):
        PP = QB + 8
        w = [f"v_mul_f32 v14, {f32(-LOG2E)}, v14", "v_exp_f32 v14, v14", f"v_mov_b32 v{PP+6}, 0", f"v_mov_b32 v{PP+7}, 0",
             "v_add_f32 v14, 1.0, v14", "v_rcp_f32 v14, v14"] + phi_list(QA, QB)
        for i, x in enumerate(w):
            if mats and i % 7 == 0: a(mats.pop(0))
            a(x)
        for x in mats: a(x)
        cvt(a, PP, QA, 0, 6)
        a("s_mov_b32 exec_hi, 0")
        cvt(a, PP, QA, 6, 8)
        a("s_mov_b32 exec_hi, -1")
        a(f"ds_write_b128 v1, {vr(PP,4)} offset:8192")
        a(f"ds_write_b128 v1, {vr(PP+4,4)} offset:9216")
        a("v_lshl_add_u32 v15, v0, 2, s48")
        a("ds_write_b32 v15, v14")
        a("v_sub_f32 v14, 1.0, v14")
    O = [16, 32, 48, 64]; S = [80, 96, 112, 128]; Q = [0, 8, 16, 24]; KV = [32, 48, 64, 80]
    RA = 144
    def ld(dst, off, v="v1", so="s58"):
        return f"buffer_load_dwordx4 {ar(dst,4)}, {v}, {WSR}, {so} offen" + (f" offset:{off}" if off else "") + " sc1"
    adv = ["s_add_u32 s58, s58, 4096"]
    ZR = ar(KV[3]+12, 4)
    zero = lambda d: f"{MF} {vr(d,16)}, {ZR}, {ZR}, 0"
    def pre(a):
        for i in range(4): a(f"v_accvgpr_write_b32 a{KV[3]+12+i}, 0")
        a("v_add_u32 v4, s44, v13")
        a(f"v_mov_b32 v5, {L_CNT}")
        a("v_mov_b32 v6, 1")
    def first_loads(work):
        stampc(a, 7)
        a("v_add_u32 v7, s45, v13")
        a("s_mov_b32 s58, 4096")
        a("s_mov_b32 s59, 8192")
        for f in range(4):
            a(ld(KV[0]+4*f, 1024*f, "v7", "0"))
            a(f"v_add_u32 v{8+f}, s{36+f}, v13")
            a(f"ds_read_b128 {ar(Q[f],4)}, v{8+f}")
            a(f"ds_read_b128 {ar(Q[f]+4,4)}, v{8+f} offset:1024")
        sub = Asm(); work(sub)
        lines = sub.lines
        rest = [ld(KV[n]+4*f, 1024*f, "v7", f"s{57+n}") for n in (1, 2) for f in range(4)]
        gap = int(E("LG", "8")); full = True
        for i, l in enumerate(lines):
            a.lines.append(l)
            if "exec" in l and l.strip().startswith("s_mov"): full = l.strip().endswith("-1")
            if rest and full and i % gap == gap - 1: a(rest.pop(0))
        for x in rest: a(x)
        a("s_mov_b32 s58, 12288")

    for i in range(32): a(f"v_mov_b32 v{accK[0]+i}, 0")
    for s in range(2):
        a(f"v_mov_b32 v{pK[s]+6}, v1"); a(f"v_mov_b32 v{pK[s]+7}, v1")
    a("v_and_b32 v15, 0x33, v0")
    a("v_bfe_u32 v1, v0, 2, 1")
    a("v_lshl_add_u32 v15, v1, 3, v15")
    a("v_bfe_u32 v1, v0, 3, 1")
    a("v_lshl_add_u32 v15, v1, 2, v15")
    a("v_lshlrev_b32 v15, 4, v15")
    a("s_lshl_b32 s58, s25, 1")
    a("s_add_u32 s58, s58, s93")
    a("s_lshl_b32 s58, s58, 2")
    a("s_add_u32 s58, s58, s34")
    a(f"s_mul_i32 s58, s58, {PAD}")
    a("s_lshl_b32 s59, s29, 1")
    a("s_add_u32 s59, s59, s92")
    a("s_lshl_b32 s59, s59, 13")
    a("s_add_u32 s58, s58, s59")
    a("s_add_u32 s59, s58, 4096")
    if TOUCH: a("s_barrier")
    scalars()
    mainloop("B", True)
    cvt_v()
    st = []
    for s in range(2):
        st.append(f"buffer_store_dwordx4 {vr(pV[s],4)}, v13, {WSR}, s{58+s} offen offset:2048 sc1")
        st.append(f"buffer_store_dwordx4 {vr(pV[s]+4,4)}, v13, {WSR}, s{58+s} offen offset:3072 sc1")
    for s in range(2):
        st.append(f"buffer_store_dwordx4 {vr(pK[s],4)}, v15, {WSR}, s{58+s} offen sc1")
        st.append(f"buffer_store_dwordx4 {vr(pK[s]+4,4)}, v15, {WSR}, s{58+s} offen offset:1024 sc1")
    if "plainkv" in X: st = [x.replace(" sc1", "") for x in st]
    for x in st[:4]: a(x)
    for s in range(2):
        cvt(a, pK[s], accK[s], 0, 6)
        a("s_mov_b32 exec_hi, 0")
        cvt(a, pK[s], accK[s], 6, 8)
        a("s_mov_b32 exec_hi, -1")
        for x in st[4+2*s:6+2*s]: a(x)
    phase1b(False)
    DPRE = E("DPRE", "0") == "1"
    def workB(a):
        a("s_nop 7")
        pre(a)
        defer_q(a, [zero(d) for d in O + [S[3]]])
    if DPRE: workB(a)
    a("s_waitcnt lgkmcnt(0)")
    stampc(a, 6)
    a("s_barrier")
    first_loads((lambda a: None) if DPRE else workB)
    a("s_branch C_2")

    a.label("C_A")
    for i in range(32): a(f"v_mov_b32 v{accK[0]+i}, 1.0")
    for s in range(2):
        for i in range(8): a(f"v_mov_b32 v{pK[s]+i}, 0")
    if TA[1] and TAE == "0": touch("A", TA[0], TA[1], E("TQ", "A") == "A")
    if TOUCH and TAE != "2": a("s_barrier")
    scalars()
    mainloop("A", False)
    cvt_v()
    pend = phi_list(accK[0], 52) + phi_list(accK[1], 52)
    phase1b(False)
    D = accK[1]
    APRE = int(E("APRE", "1"))
    kvm = [f"{MF} {vr(D,16)}, {vr(pK[0],4)}, {vr(pV[0],4)}, 0",
           f"{MF} {vr(D,16)}, {vr(pK[0]+4,4)}, {vr(pV[0]+4,4)}, {vr(D,16)}",
           f"{MF} {vr(D,16)}, {vr(pK[1],4)}, {vr(pV[1],4)}, {vr(D,16)}",
           f"{MF} {vr(D,16)}, {vr(pK[1]+4,4)}, {vr(pV[1]+4,4)}, {vr(D,16)}"]
    def part1(a):
        for x in pend: a(x)
        a("s_mov_b64 exec, s[56:57]")
        for s in range(2): cvt(a, pK[s], accK[s])
        a("s_mov_b64 exec, -1")
        a("s_nop 1")
    def part2(a):
        pre(a)
        defer_q(a, kvm + [zero(d) for d in O + [S[3]]])
        a("v_add_u32 v15, s47, v13")
        for q in range(4):
            a(f"ds_write_b128 v15, {vr(D+4*q,4)} offset:{1024*q}")
    if APRE >= 1: part1(a)
    if DPRE: part2(a)
    a("s_waitcnt lgkmcnt(0)")
    stampc(a, 6)
    a("s_barrier")
    def workA(a):
        if APRE < 1: part1(a)
        if not DPRE: part2(a)
    first_loads(workA)

    a.label("C_2")
    if PT: a("s_setprio 1")
    a("v_mov_b32 v2, 0xdddd")
    a("v_mov_b32 v3, 0")
    a("v_mov_b32 v1, v7")
    a("s_mov_b32 s59, 3")
    for s in range(4): a(f"v_add_u32 v{RA+s}, s{40+s}, v13")
    a("s_waitcnt vmcnt(10) lgkmcnt(0)")
    stampc(a, 8)
    a("s_mov_b64 exec, 1")
    a("ds_add_u32 v5, v6 offset:8")
    a("ds_read_b32 v6, v5 offset:20")
    a("s_mov_b64 exec, -1")
    a(f"{MF} {vr(S[0],16)}, {ar(KV[0],4)}, {ar(Q[0],4)}, 0")
    a(f"{MF} {vr(S[0],16)}, {ar(KV[0]+4,4)}, {ar(Q[0]+4,4)}, {vr(S[0],16)}")
    a("s_waitcnt vmcnt(8) lgkmcnt(0)")
    a("v_readfirstlane_b32 s87, v6")
    a("s_nop 8")
    if E("STG", ""):
        for i in range(1, 4):
            a(f"s_cmp_ge_u32 s27, {i}")
            a("s_cbranch_scc0 C_STG")
            a("s_nop %s" % E("STG", ""))
        a.label("C_STG")
    def unit(pos, cur, nxt, prv, slot):
        sc = S[pos & 3]; sn = S[(pos+1) & 3]; sp = S[(pos-1) & 3]
        e = [f"v_exp_f32 v{sc+i}, v{sc+i}" for i in range(16)]
        if nxt: a(f"{MF} {vr(sn,16)}, {ar(KV[nxt[0]],4)}, {ar(Q[nxt[1]],4)}, 0")
        for x in slot[0]: a(x)
        for x in e[0:4]: a(x)
        a(f"{SM} {vr(O[prv[1]],16)}, {ar(KV[prv[0]]+12,4)}, {vr(sp+8,8)}, v2")
        for x in slot[1]: a(x)
        for x in e[4:8]: a(x)
        if nxt: a(f"{MF} {vr(sn,16)}, {ar(KV[nxt[0]]+4,4)}, {ar(Q[nxt[1]]+4,4)}, {vr(sn,16)}")
        for x in slot[2]: a(x)
        for x in e[8:12]: a(x)
        a(f"{SM} {vr(O[cur[1]],16)}, {ar(KV[cur[0]]+8,4)}, {vr(sc,8)}, v2")
        for x in slot[3]: a(x)
        if nxt:
            for _ in range(2 - min(2, len(slot[2]) + len(slot[3]))): a("s_nop 0")
        for x in e[12:16]: a(x)
    LP = int(E("LP", "2"))
    ER = E("ER", "0") == "1"
    PB = S[1] if ER else 16
    FW = int(E("FW", "2"))
    def plain(n, s):
        slot = [[], [], [], []]
        slot[2].append("s_nop 0" if "nold" in X else ld(KV[(n+3) & 3] + 4*s, 1024*s).replace(" sc1", "" if "plain" in X else " sc1"))
        if s == 3: slot[3] += adv
        if not FW:
            if s == 2: slot[3].append("s_waitcnt vmcnt(7)")
        elif FW == 2:
            if s == 2: slot[3].append("s_waitcnt vmcnt(9)")
            if s == 0: slot[1].append("s_waitcnt vmcnt(8)")
        else:
            if s == 2: slot[3].append("s_waitcnt vmcnt(10)")
            if s == 3: slot[1].append("s_waitcnt vmcnt(9)")
            if s == 0: slot[1].append("s_waitcnt vmcnt(9)")
            if s == 1: slot[0].append("s_waitcnt vmcnt(9)")
        return slot
    a(".p2align 6")
    a.label("C_ATT")
    for n in range(4):
        for s in range(4):
            slot = plain(n, s)
            if n == 3 and s == 1: slot[3].append("s_sub_u32 s59, s59, 1")
            if n == 3 and s == 3: slot[3].append("s_cmp_lg_u32 s59, 0")
            unit(s, (n, s), ((n + (s == 3)) & 3, (s+1) & 3), ((n - (s == 0)) & 3, (s-1) & 3), slot)
    a("s_cbranch_scc1 C_ATT")
    seq = [(0, s) for s in range(4)] + [(1, s) for s in range(4)] + [(n, s) for s in range(4) for n in (2, 3)]
    for i, cur in enumerate(seq):
        nxt = seq[i+1] if i < 15 else None
        prv = seq[i-1] if i > 0 else (3, 3)
        slot = plain(*cur) if i < 4 else [[], [], [], []]
        if not FW:
            if i == 6: slot[3].append("s_waitcnt vmcnt(0)")
        else:
            w = {4: (1, 8), 6: (3, 6), 7: (3, 2), 9: (1, 0)}.get(i) if FW == 2 else {4: (1, 9), 5: (0, 8), 6: (3, 6), 7: (3, 2), 9: (1, 1), 10: (0, 0)}.get(i)
            if w: slot[w[0]].append(f"s_waitcnt vmcnt({w[1]})")
        wr = lambda s_, q: f"ds_write_b128 v{RA+s_}, {vr(O[s_]+4*q,4)} offset:{1024*q}"
        if ER:
            plan = {11: {0: (0, 0), 2: (0, 1)}, 12: {0: (0, 2), 2: (0, 3)}, 13: {0: (1, 0), 1: (1, 1), 2: (1, 2), 3: (1, 3)},
                    15: {0: (2, 0)}}
            for sl, (s_, q) in plan.get(i, {}).items(): slot[sl].append(wr(s_, q))
            if i == 14: tail4 = [wr(2, 0), wr(2, 1)]
            if i == 15:
                slot[0] = [wr(2, 2), wr(2, 3)]
                slot[2] = ["s_waitcnt lgkmcnt(0)", "s_barrier"] + \
                          [f"ds_read_b128 {vr(O[0]+4*k,4)}, v{RA+3} offset:{1024*((k % 3)*4 + k // 3)}" for k in range(6)]
                slot[3] = [f"ds_read_b128 {vr(O[0]+4*k,4)}, v{RA+3} offset:{1024*((k % 3)*4 + k // 3)}" for k in range(6, 12)]
        else:
            for first, s_ in ((11, 0), (13, 1)):
                if i in (first, first+1):
                    for q in range(2):
                        slot[1 + 2*q].append(wr(s_, 2*(i - first) + q))
            if i == 15:
                for q in range(4): slot[q].append(wr(2, q))
        unit(i, cur, nxt, prv, slot)
        if ER and i == 14:
            for x in tail4: a(x)
        if i == int(E("XP", "10")):
            if STAMP == 4: stampc(a, 1)
            a("s_barrier")
            if STAMP == 4: stampc(a, 2)
    a("s_setprio 1")
    a(f"v_mov_b32 v{PB+6}, 0")
    a(f"{SM} {vr(O[3],16)}, {ar(KV[3]+12,4)}, {vr(S[3]+8,8)}, v2")
    a(f"v_mov_b32 v{PB+7}, 0")
    a(f"s_mov_b32 s62, {f32(2.0**-60)}")
    a(f"s_mov_b32 s63, {f32(2.0**120)}")
    RB = O[0] if ER else S[0]
    if not ER:
        a("s_waitcnt lgkmcnt(0)")
        a("s_barrier")
    if STAMP != 6: stampc(a, 9)
    if not ER:
        for i in range(12):
            a(f"ds_read_b128 {vr(RB+4*i,4)}, v{RA+3} offset:{1024*((i % 3)*4 + i // 3)}")
    for q in range(4):
        a(f"s_waitcnt lgkmcnt({9-3*q})")
        b = RB + 12*q
        vadd(a, b, b+4, 4)
        vadd(a, b, b+8, 4)
    for q in range(4):
        vadd(a, O[3]+4*(3-q), RB+12*(3-q), 4)
    a(f"v_mov_b32 v6, v{O[3]+12}")
    a(f"v_mov_b32 v7, v{O[3]+12}")
    a(f"v_maximum3_f32 v8, abs(v{O[3]+12}), abs(v{O[3]+13}), abs(v{O[3]+14})")
    a(f"v_maximum3_f32 v9, abs(v{O[3]+15}), abs(v{O[3]+8}), abs(v{O[3]+9})")
    a("v_permlane32_swap_b32 v6, v7")
    for i, (x, y) in enumerate(((10, 11), (4, 5), (6, 7), (0, 1), (2, 3))):
        a(f"v_maximum3_f32 v{8+(i&1)}, v{8+(i&1)}, abs(v{O[3]+x}), abs(v{O[3]+y})")
    a("v_cmp_nge_f32 vcc, v7, s62")
    a("v_maximum3_f32 v8, v8, v9, v9")
    a("v_rcp_f32 v7, v7")
    a("v_cmp_nlt_f32 s[64:65], v8, s63")
    a("s_or_b64 vcc, vcc, s[64:65]")
    a("s_cbranch_scc1 C_FALLBACK")
    a.label("C_FIN")
    a(f"v_mov_b32 v5, {RING + 49152 - 16}")
    a("s_cmp_eq_u32 s27, 3")
    a("s_cbranch_scc0 C_NOCLR")
    a("ds_write_b32 v5, v3")
    a.label("C_NOCLR")
    a("v_mul_f32 v7, v7, v14")
    vmul(a, O[3], "v7", 8)
    cvt(a, PB, O[3], 0, 4)
    a(f"buffer_store_dwordx4 {vr(PB,4)}, v13, {WSR}, s46 offen sc1")
    vmul(a, O[3]+8, "v7", 8)
    cvt(a, PB, O[3], 4, 6)
    a("s_mov_b32 exec_hi, 0")
    cvt(a, PB, O[3], 6, 8)
    a("s_mov_b32 exec_hi, -1")
    a(f"buffer_store_dwordx4 {vr(PB+4,4)}, v13, {WSR}, s46 offen offset:1024 sc1")
    a("s_waitcnt lgkmcnt(0)")
    a("s_barrier")
    if STAMP != 6: stampc(a, 10)
    a("s_mul_i32 s60, s92, 28672")
    a("s_add_u32 s60, s60, 57344")
    a("s_lshl_b32 s61, s92, 6")
    a("v_mov_b32 v1, v5")
    p3_addr(a, 4, "s60", "s61", 8, 9)
    a("s_lshl_b32 s60, s27, 13")
    a(f"s_add_u32 s60, s60, {RING}")
    a("v_add_u32 v8, s60, v13")
    a("s_lshl_b32 s60, s27, 12")
    a(f"s_add_u32 s60, s60, {RING + 32768}")
    a("v_add_u32 v9, s60, v13")
    a("v_xor_b32 v10, 8192, v9")
    a("s_lshl_b32 s60, s30, 1")
    a("s_add_u32 s60, s60, s93")
    if E("TS", "1") == "1":
        a("v_and_b32 v11, 31, v0")
        a("v_lshrrev_b32 v12, 5, v0")
        a("s_lshl_b32 s61, s92, 2")
        a("v_add_u32 v12, s61, v12")
        a("v_and_b32 v15, 7, v0")
        a("v_xor_b32 v12, v12, v15")
        a("s_lshl_b32 s61, s93, 12")
        a(f"s_add_u32 s61, s61, {RING}")
        a("v_lshl_add_u32 v11, v11, 7, s61")
        a("v_lshl_add_u32 v11, v12, 4, v11")
        a("v_xor_b32 v2, 32, v11")
        a("v_lshrrev_b32 v12, 3, v0")
        a("v_xor_b32 v15, v15, v12")
        a("s_lshl_b32 s61, s30, 6")
        a("s_lshl_b32 s63, s27, 4")
        a("s_add_u32 s61, s61, s63")
        a("v_add_u32 v12, s61, v12")
        a("v_mul_u32_u24 v12, 896, v12")
        a("v_lshl_add_u32 v15, v15, 4, v12")
    else:
        a("v_and_b32 v11, 31, v0")
        a("s_lshl_b32 s61, s60, 5")
        a("v_add_u32 v11, s61, v11")
        a("v_mul_u32_u24 v11, 896, v11")
        a("v_lshrrev_b32 v12, 5, v0")
        a("v_lshl_add_u32 v11, v12, 4, v11")
    a(f"s_mul_i32 s60, s60, {PAD}")
    a("s_lshl_b32 s61, s92, 14")
    a("s_add_u32 s60, s60, s61")
    a(f"s_add_u32 s60, s60, {WS_OF + 32768}")
    a("s_and_b32 s61, s30, 0xfe")
    a("s_lshl_b32 s61, s61, 10")
    a(f"s_add_u32 s61, s61, {C_OB}")
    a("s_lshl_b32 s62, s31, 7")
    if E("TS", "1") == "1":
        a("s_add_u32 s63, s62, 7168")
    else:
        a("s_lshl_b32 s63, s92, 6")
        a("s_add_u32 s62, s62, s63")
    srd(a, SX, 18, 1835008)
    a("s_lshl_b32 s64, s24, 4")
    a("s_add_u32 s64, s64, s28")
    a("s_lshl_b32 s64, s64, 7")
    a(f"s_add_u32 s64, s64, {C_OB}")
    a("v_mov_b32 v12, 1")
    a("s_mov_b64 exec, 1")
    a("s_waitcnt vmcnt(0)")
    a("ds_add_rtn_u32 v14, v1, v12")
    a("s_waitcnt lgkmcnt(0)")
    a("v_readfirstlane_b32 s69, v14")
    a("s_nop 0")
    a("s_cmp_eq_u32 s69, 3")
    a("s_mov_b64 exec, -1")
    a("s_cbranch_scc0 C_NOSIG")
    signal(a, "s64", 3, 12, 14)
    a.label("C_NOSIG")
    a("s_mov_b64 exec, -1")
    if STAMP != 6: stampc(a, 11)
    a("s_cmp_ge_u32 s32, 28")
    a("s_cbranch_scc1 C_EXIT")
    NPRE = int(E("NPRE", "10"))
    a("v_lshlrev_b32 v14, 7, v0")
    if E("OW", "0") == "1":
        a("s_lshl_b32 s64, s92, 10")
        a("s_add_u32 s61, s61, s64")
        poll(a, "OB", WSR, "s61", 8, 14, 12, int(E("OBS", "1")), False)
        if STAMP != 6: stampc(a, 12)
        p3_oloads(a, 13, "s60", NPRE)
        a("s_barrier")
    else:
        a("s_cmp_eq_u32 s27, 0")
        a("s_cbranch_scc0 C_OBD")
        poll(a, "OB", WSR, "s61", 16, 14, 12, int(E("OBS", "1")), False)
        a.label("C_OBD")
        a("s_barrier")
        if STAMP != 6: stampc(a, 12)
        p3_oloads(a, 13, "s60", NPRE)
    for i in range(8):
        a(f"ds_read_b128 {vr(16+4*i,4)}, v8 offset:{1024*i}")
    p3_gemm(a, 4, [16, 32], [48, 56], False, NPRE, 13, "s60")
    if STAMP != 6: stampc(a, 13)
    a("v_mov_b32 v12, v2")
    a("s_lshl_b32 s64, s27, 11")
    a(f"s_add_u32 s64, s64, {RING}")
    a("v_add_u32 v14, s64, v13")
    a("s_nop 7")
    for i in range(4):
        a(f"ds_write_b128 v9, {vr(32+4*i,4)} offset:{1024*i}")
    a("s_waitcnt lgkmcnt(0)")
    a("s_barrier")
    for i in range(4):
        a(f"ds_read_b128 {vr(32+4*i,4)}, v10 offset:{1024*i}")
    OFL = E("OFL", "sc1")
    TS = E("TS", "1") == "1"
    for hf in range(2):
        for q in (2*hf, 2*hf+1):
            a(f"s_waitcnt lgkmcnt({3-q + (1 if TS and hf else 0)})")
            vadd(a, 16+4*q, 32+4*q, 4)
        cvt(a, 48, 16, 4*hf, 4*hf+4)
        a("s_nop 1")
        a(f"v_permlane32_swap_b32 v{48+4*hf}, v{50+4*hf}")
        a(f"v_permlane32_swap_b32 v{49+4*hf}, v{51+4*hf}")
        if TS: a(f"ds_write_b128 v{11+hf}, {vr(48+4*hf,4)}")
        else: a(f"buffer_store_dwordx4 {vr(48+4*hf,4)}, v11, {R(SX)}, s62 offen offset:{32*hf} {OFL}")
    if TS:
        a("s_waitcnt lgkmcnt(0)")
        a("s_barrier")
        a("ds_read_b128 v[16:19], v14")
        a("ds_read_b128 v[20:23], v14 offset:1024")
        a("s_waitcnt lgkmcnt(1)")
        a(f"buffer_store_dwordx4 v[16:19], v15, {R(SX)}, s62 offen {OFL}")
        a("s_waitcnt lgkmcnt(0)")
        a(f"buffer_store_dwordx4 v[20:23], v15, {R(SX)}, s63 offen {OFL}")
    a.label("C_EXIT")
    if E("DIAGP", "") == "99":
        a("s_waitcnt vmcnt(0)")
        a("s_memrealtime s[100:101]")
        a("s_waitcnt lgkmcnt(0)")
    if E("DIAGT", ""):
        a("s_xor_b32 s64, s2, %s" % E("DIAGW", "0"))
        a("s_or_b32 s64, s64, s27")
        a("s_cmp_eq_u32 s64, 0")
        a("s_cbranch_scc0 C_DX")
        if E("DIAGP", ""):
            a("s_sub_u32 s100, s100, s96")
            a("s_lshl_b32 s100, s100, 1")
            a("s_add_u32 s96, s96, s100")
        a.label("C_DL")
        a("s_memrealtime s[98:99]")
        a("s_waitcnt lgkmcnt(0)")
        a("s_sub_u32 s98, s98, s96")
        a("s_cmp_lt_i32 s98, %s" % E("DIAGT", ""))
        a("s_cbranch_scc1 C_DL")
        a.label("C_DX")
    if STAMP != 6: stampc(a, 14)
    if STAMP: a("s_waitcnt vmcnt(0)")
    if STAMP != 6: stampc(a, 15)
    stamp_out(a, 16)
    a("s_endpgm")
    a.label("C_FALLBACK")
    Qo = Q[3]; K0 = KV[0]; Sx = S[0]
    def fb_adv():
        a("s_add_u32 s58, s58, 4096")
        a("s_add_u32 s59, s59, 1")
        a("s_and_b32 s61, s59, 15")
        a(f"s_cselect_b32 s61, 0, {PAD-65536}")
        a("s_add_u32 s58, s58, s61")
        a("s_nop 15")
    a("s_mov_b32 s58, 0")
    a("s_mov_b32 s59, 0")
    a(f"v_mov_b32 v8, {f32(float('-inf'))}")
    a.label("C_FB1")
    a(ld(K0, 0, "v4")); a(ld(K0+4, 1024, "v4"))
    a("s_waitcnt vmcnt(0)")
    a(f"{MF} {vr(Sx,16)}, {ar(K0,4)}, {ar(Qo,4)}, 0")
    a(f"{MF} {vr(Sx,16)}, {ar(K0+4,4)}, {ar(Qo+4,4)}, {vr(Sx,16)}")
    fb_adv()
    a("s_nop 15")
    for i in range(8):
        a(f"v_max3_f32 v8, v8, v{Sx+2*i}, v{Sx+2*i+1}")
    a("s_cmp_lt_u32 s59, 64")
    a("s_cbranch_scc1 C_FB1")
    a("v_mov_b32 v9, v8")
    a("s_nop 1")
    a("v_permlane32_swap_b32 v8, v9")
    a("v_max_f32 v8, v8, v9")
    a("v_and_b32 v9, 0xffff0000, v8")
    a("v_sub_f32 v8, v8, v9")
    a("v_and_b32 v10, 0xffff0000, v8")
    a("v_sub_f32 v8, v8, v10")
    a("v_cvt_pk_bf16_f32 v9, -v9, -v10")
    a("v_cvt_pk_bf16_f32 v8, -v8, 0")
    a("s_mov_b32 exec_lo, 0")
    a(f"v_accvgpr_write_b32 a{Qo+6}, v9")
    a(f"v_accvgpr_write_b32 a{Qo+7}, v8")
    a("s_mov_b32 exec_lo, -1")
    for i in range(16): a(f"v_mov_b32 v{O[3]+i}, 0")
    a("s_mov_b32 s58, 0")
    a("s_mov_b32 s59, 0")
    a.label("C_FB2")
    for f in range(4): a(ld(K0+4*f, 1024*f, "v4"))
    a("s_waitcnt vmcnt(0)")
    a(f"{MF} {vr(Sx,16)}, {ar(K0,4)}, {ar(Qo,4)}, 0")
    a(f"{MF} {vr(Sx,16)}, {ar(K0+4,4)}, {ar(Qo+4,4)}, {vr(Sx,16)}")
    fb_adv()
    a("s_nop 15")
    for i in range(16): a(f"v_exp_f32 v{Sx+i}, v{Sx+i}")
    a("s_nop 1")
    a(f"{SM} {vr(O[3],16)}, {ar(K0+8,4)}, {vr(Sx,8)}, v2")
    a(f"{SM} {vr(O[3],16)}, {ar(K0+12,4)}, {vr(Sx+8,8)}, v2")
    a("s_cmp_lt_u32 s59, 64")
    a("s_cbranch_scc1 C_FB2")
    a("s_nop 15")
    a("s_nop 15")
    a(f"v_mov_b32 v6, v{O[3]+12}")
    a(f"v_mov_b32 v7, v{O[3]+12}")
    a("s_nop 1")
    a("v_permlane32_swap_b32 v6, v7")
    a("v_rcp_f32 v7, v7")
    a("s_nop 0")
    a("s_branch C_FIN")

def main():
    a = Asm()
    head = f"""; gated mix of a linear-attention block and a softmax-attention block (S=2048, D=448, H=16), one launch
; @launch grid=(256,1,1) block=(512,1,1) lds=163840
.amdgcn_target "amdgcn-amd-amdhsa--gfx950"
.text
"""
    gen(a)
    out = head + a.text() + '.section .rodata,"a"\n' + kernel_desc(KN, 256, 102, 160)
    path = sys.argv[1] if len(sys.argv) > 1 else f"cdna_kernels/{NAME}.s"
    open(path, "w").write(out)
main()
```

```python
import math, sys, os, struct
from asmlib import *

NAME = "gated_mix__linear_attn_block__mha_block__prompt"
KN = NAME + "_kernel"
WS_KV  = 0
WS_CNT = 5 << 20
WS_KVP = 6 << 20
WS_OF  = 8 << 20
PAD = int(os.environ.get("PAD", "69632"))
WS_ST  = 14 << 20
WS_SIZE = 16 << 20
LOG2E = 1.4426950408889634
QSCALE = LOG2E * 28 ** -0.5
EPS = 1e-6
ONE2 = 0x3F803F80
RING = 114688
L_KVD = RING
L_G   = RING + 16384 + 15360
L_KVF = RING + 16384 + 12288
L_CNT = RING + 16384 + 14336
L_QD  = RING + 32768
L_PQ  = RING + 32768 + 8192
STAMP = int(os.environ.get("STAMP", "0"))
X = set(os.environ.get("X", "").split(","))
MF = "v_mfma_f32_32x32x16_bf16"
SM = "v_smfmac_f32_32x32x32_bf16"
SX, SW, SWA, SWB, SWS, SD, SG = 36, 40, 44, 48, 52, 56, 60
WSR = f"s[{SWS}:{SWS+3}]"
SPIN = 200000
WFL = os.environ.get("WFL", "")
XFL = os.environ.get("XFL", "")

def srd(a, d, lo, size):
    a(f"s_mov_b32 s{d}, s{lo}")
    a(f"s_mov_b32 s{d+1}, s{lo+1}")
    a(f"s_mov_b32 s{d+2}, {size}")
    a(f"s_mov_b32 s{d+3}, 0x20000")
def R(d): return f"s[{d}:{d+3}]"

def stamp(a, i, mode=1):
    if not STAMP: return
    if mode is not None and mode != STAMP: return
    if i == 0: a("s_memrealtime s[96:97]")
    a("s_memrealtime s[94:95]" if os.environ.get("RT") else "s_memtime s[94:95]")
    a("s_waitcnt lgkmcnt(0)")
    a(f"s_mov_b32 s{70+i}, s94")
def stampc(a, i):
    if os.environ.get("DIAGP") == str(i):
        a("s_memrealtime s[100:101]")
        a("s_waitcnt lgkmcnt(0)")
    if STAMP == 5: return
    stamp(a, i, None)
def stamp_out(a, n):
    if not STAMP: return
    a("s_memrealtime s[98:99]")
    a("s_waitcnt lgkmcnt(0)")
    a("s_mov_b64 exec, 1")
    a("s_lshl_b32 s94, s2, 3")
    a("s_add_u32 s94, s94, s35")
    a("s_lshl_b32 s94, s94, 7")
    a(f"s_add_u32 s94, s94, {WS_ST}")
    a("v_mov_b32 v1, 0")
    for i in range(n if STAMP != 5 else 0):
        a(f"v_mov_b32 v2, s{70+i}")
        a(f"buffer_store_dword v2, v1, {WSR}, s94 offen offset:{4*i}")
    a("v_mov_b32 v2, s96")
    a(f"buffer_store_dword v2, v1, {WSR}, s94 offen offset:120")
    a("v_mov_b32 v2, s98")
    a(f"buffer_store_dword v2, v1, {WSR}, s94 offen offset:124")

def dma_lane_w(a, vdst, vt0, vt1, rowstride):
    a(f"v_lshrrev_b32 v{vt0}, 4, v0")
    a(f"v_bfe_u32 v{vt1}, v0, 2, 2")
    a(f"v_and_b32 v{vdst}, 1, v{vt0}")
    if "noswz" not in X: a(f"v_xor_b32 v{vt1}, v{vt1}, v{vdst}")
    a(f"v_lshrrev_b32 v{vdst}, 1, v{vt1}")
    a(f"v_lshl_add_u32 v{vt0}, v{vt0}, 1, v{vdst}")
    a(f"v_mul_u32_u24 v{vt0}, {rowstride}, v{vt0}")
    a(f"v_and_b32 v{vt1}, 1, v{vt1}")
    a(f"v_lshl_add_u32 v{vt0}, v{vt1}, 6, v{vt0}")
    a(f"v_and_b32 v{vt1}, 3, v0")
    a(f"v_lshl_add_u32 v{vdst}, v{vt1}, 4, v{vt0}")

def tr_lane_addr(a, vdst, vb, vt0, vt1, hlshift):
    a(f"v_bfe_u32 v{vt0}, v0, 4, 1")
    a(f"v_lshl_add_u32 v{vb}, v{vt0}, 5, v{vb}")
    a(f"v_and_b32 v{vt0}, 3, v0")
    a(f"v_lshl_add_u32 v{vb}, v{vt0}, 3, v{vb}")
    a(f"v_bfe_u32 v{vt0}, v0, 2, 1")
    a(f"v_lshrrev_b32 v{vt1}, 6, v{vb}")
    a(f"v_lshl_add_u32 v{vt0}, v{vt0}, 1, v{vt1}")
    a(f"v_bfe_u32 v{vt1}, v0, 3, 1")
    a(f"v_xor_b32 v{vt0}, v{vt0}, v{vt1}")
    a(f"v_and_b32 v{vb}, 63, v{vb}")
    a(f"v_lshl_add_u32 v{vb}, v{vt0}, 6, v{vb}")
    a(f"v_lshrrev_b32 v{vt0}, 5, v0")
    a(f"v_lshl_add_u32 v{vt0}, v{vt0}, {hlshift}, v{vt1}")
    a(f"v_lshl_add_u32 v{vdst}, v{vt0}, 8, v{vb}")

C_KV, C_A, C_OA, C_OB = WS_CNT, WS_CNT + 128*128, WS_CNT + 256*128, WS_CNT + 512*128
NFLAG = 768
def poll(a, tag, srdreg, soff, nl, vl, vt, sleep=0, first=True):
    a(f"s_mov_b64 exec, {(1 << nl) - 1}")
    a(f"s_mov_b32 s68, {SPIN}")
    if sleep and first: a(f"s_branch POLL_{tag}")
    a.label(f"POLLS_{tag}")
    if sleep: a(f"s_sleep {sleep}")
    a.label(f"POLL_{tag}")
    if tag in os.environ.get("PAT", "").split(","):
        a(f"v_mov_b32 v{vt}, 0")
        a(f"buffer_atomic_or v{vt}, v{vl}, {srdreg}, {soff} offen sc0 sc1")
    else:
        a(f"buffer_load_dword v{vt}, v{vl}, {srdreg}, {soff} offen sc1")
    a("s_sub_u32 s68, s68, 1")
    a(f"s_cbranch_scc1 POLLX_{tag}")
    a("s_waitcnt vmcnt(0)")
    a(f"v_cmp_eq_u32 vcc, 0, v{vt}" if tag.startswith("INIT") else f"v_cmp_ne_u32 vcc, s87, v{vt}")
    a(f"s_cbranch_vccnz POLLS_{tag}")
    a.label(f"POLLX_{tag}")
    a("s_mov_b64 exec, -1")

def poll2(a, tag, soff, nl, vl, vt, gap):
    a(f"s_mov_b64 exec, {(1 << nl) - 1}")
    a(f"s_mov_b32 s68, {SPIN}")
    a(f"buffer_load_dword v{vt}, v{vl}, {WSR}, {soff} offen sc1")
    a.label(f"POLL_{tag}")
    for i in range(2):
        if gap: a(f"s_sleep {gap}")
        a(f"buffer_load_dword v{vt+1-i}, v{vl}, {WSR}, {soff} offen sc1")
        a("s_waitcnt vmcnt(1)")
        a(f"v_cmp_ne_u32 vcc, s87, v{vt+i}")
        a(f"s_cbranch_vccz POLLX_{tag}")
    a("s_sub_u32 s68, s68, 1")
    a(f"s_cbranch_scc0 POLL_{tag}")
    a.label(f"POLLX_{tag}")
    a("s_mov_b64 exec, -1")

def lds_wait(a, tag, vaddr, off, target, vt, sleep=1):
    a("s_mov_b64 exec, 1")
    a(f"s_mov_b32 s68, {SPIN}")
    a.label(f"LW_{tag}")
    a(f"s_sleep {sleep}")
    a(f"ds_read_b32 v{vt}, v{vaddr} offset:{off}")
    a("s_waitcnt lgkmcnt(0)")
    a(f"v_readfirstlane_b32 s69, v{vt}")
    a("s_sub_u32 s68, s68, 1")
    a(f"s_cbranch_scc1 LWX_{tag}")
    a(f"s_cmp_ge_u32 s69, {target}")
    a(f"s_cbranch_scc0 LW_{tag}")
    a.label(f"LWX_{tag}")
    a("s_mov_b64 exec, -1")

def signal(a, soff, vz, vt, full=None):
    if full and os.environ.get("FL", "1") == "1":
        a("s_mov_b32 exec_hi, 0")
        a(f"v_lshlrev_b32 v{full}, 2, v0")
        a(f"v_mov_b32 v{vt}, s87")
        a(f"buffer_store_dword v{vt}, v{full}, {WSR}, {soff} offen {os.environ.get('SFL', 'sc1')}")
        a("s_mov_b32 exec_hi, -1")
        return
    a("s_mov_b64 exec, 1")
    a(f"v_mov_b32 v{vt}, s87")
    a(f"buffer_store_dword v{vt}, v{vz}, {WSR}, {soff} offen sc1")
    a("s_mov_b64 exec, -1")

def cvt(a, dst, src, lo=0, hi=8):
    for i in range(lo, hi):
        a(f"v_cvt_pk_bf16_f32 v{dst+i}, v{src+2*i}, v{src+2*i+1}")

def vadd(a, dst, src, n):
    for i in range(n): a(f"v_add_f32 v{dst+i}, v{dst+i}, v{src+i}")
def vmul(a, dst, mul, n):
    for i in range(n): a(f"v_mul_f32 v{dst+i}, {mul}, v{dst+i}")

def phi_list(src, T, n=16, grp=8):
    o = []
    for g0 in range(0, n, grp):
        o += [f"v_fma_f32 v{T+i}, v{src+g0+i}, s64, -s64" for i in range(grp)]
        o += [f"v_exp_f32_e64 v{T+i}, v{T+i} clamp" for i in range(grp)]
        o += [f"v_max_f32 v{src+g0+i}, v{src+g0+i}, v{T+i}" for i in range(grp)]
        o += [f"v_add_f32 v{src+g0+i}, s66, v{src+g0+i}" for i in range(grp)]
    return o

def p3_addr(a, v0a, mat_off_sgpr, swap_sgpr, vt0, vt1):
    a(f"v_mov_b32 v{v0a+1}, 0")
    tr_lane_addr(a, v0a, v0a+1, vt0, vt1, 1)
    a(f"v_add_u32 v{v0a}, {mat_off_sgpr}, v{v0a}")
    a(f"v_xor_b32 v{v0a}, {swap_sgpr}, v{v0a}")
    a(f"v_xor_b32 v{v0a+1}, 64, v{v0a}")
    a(f"v_lshrrev_b32 v{vt0}, 5, v0")
    a(f"v_lshlrev_b32 v{vt0}, 9, v{vt0}")
    a(f"v_sub_u32 v{v0a+2}, v{v0a}, v{vt0}")
    a(f"v_sub_u32 v{v0a+3}, v{v0a+1}, v{vt0}")

def p3_oload(ks, vlane16, so):
    o = [f"buffer_load_dwordx4 {ar(4*ks,4)}, v{vlane16}, {WSR}, {so} offen offset:{1024*(ks&3)} sc1"]
    if ks & 3 == 3 and ks < 15: o.append(f"s_add_u32 {so}, {so}, 4096")
    return o

def p3_gemm(a, va, ACC, WF, first_zero, npre, vlane16, so):
    def reads(ks):
        f = WF[ks & 1]; hh, m = ks >> 1, ks & 1
        o = (14*hh + 8*m) * 256
        last = (ks == 15)
        return [f"ds_read_b64_tr_b16 {vr(f,2)}, v{va} offset:{o}",
                f"ds_read_b64_tr_b16 {vr(f+2,2)}, v{va+2 if last else va} offset:{o+1024}",
                f"ds_read_b64_tr_b16 {vr(f+4,2)}, v{va+1} offset:{o}",
                f"ds_read_b64_tr_b16 {vr(f+6,2)}, v{va+3 if last else va+1} offset:{o+1024}"]
    for x in reads(0): a(x)
    issued = npre
    for ks in range(16):
        f = WF[ks & 1]
        rd = reads(ks+1) if ks < 15 else []
        c0 = "0" if (first_zero and ks == 0) else vr(ACC[0], 16)
        c1 = "0" if (first_zero and ks == 0) else vr(ACC[1], 16)
        if issued < 16:
            for x in p3_oload(issued, vlane16, so): a(x)
            issued += 1
        a(f"s_waitcnt vmcnt({issued-1-ks}) lgkmcnt(2)")
        a(f"{MF} {vr(ACC[0],16)}, {vr(f,4)}, {ar(4*ks,4)}, {c0}")
        for x in rd[:2]: a(x)
        a(f"s_waitcnt lgkmcnt({2 if rd else 0})")
        a(f"{MF} {vr(ACC[1],16)}, {vr(f+4,4)}, {ar(4*ks,4)}, {c1}")
        for x in rd[2:]: a(x)

def p3_oloads(a, vlane16, so, n):
    for ks in range(n):
        for x in p3_oload(ks, vlane16, so): a(x)

E = lambda k, d: os.environ.get(k, d)
SIGK = int(E("SIGK", "6"))
ROT = int(E("ROT", "0"))
PT = E("PT", "0") == "1"
BL = E("BL", "0") == "1"
TOUCH = E("TB", "1,0") != "1,0" or E("TA", "1,0") != "1,0"
PQC = int(E("PQC", "-1"))
BQE = E("BQE", "0") == "1"
def gen(a):
    kernel_head(a, KN)
    a("s_cmp_ge_u32 s2, 256")
    a("s_cbranch_scc1 L_END")
    a("s_load_dwordx16 s[4:19], s[0:1], 0")
    a("s_load_dwordx4 s[20:23], s[0:1], 64")
    if STAMP or E("DIAGT", ""):
        a("s_memrealtime s[96:97]")
        a("s_memtime s[70:71]")
    a("v_lshrrev_b32 v1, 6, v0")
    a("v_and_b32 v0, 63, v0")
    a("v_readfirstlane_b32 s27, v1")
    a("s_and_b32 s64, s2, 7")
    a("s_lshr_b32 s32, s2, 3")
    a("s_and_b32 s26, s32, 1")
    MAP = E("MAP", "1")
    if MAP == "0":
        a("s_lshr_b32 s34, s64, 1")
        a("s_and_b32 s33, s64, 1")
        a("s_lshr_b32 s29, s32, 3")
        a("s_lshl_b32 s24, s34, 2")
        a("s_add_u32 s24, s24, s29")
        a("s_bfe_u32 s25, s32, 0x20001")
        a("s_lshl_b32 s65, s33, 2")
        a("s_add_u32 s25, s25, s65")
    elif MAP == "1":
        a("s_mov_b32 s25, s64")
        a("s_lshr_b32 s24, s32, 1")
        a("s_lshr_b32 s33, s25, 2")
        a("s_lshr_b32 s34, s24, 2")
        a("s_and_b32 s29, s24, 3")
    else:
        a("s_and_b32 s25, s64, 3")
        a("s_lshl_b32 s25, s25, 1")
        a("s_bfe_u32 s65, s32, 0x10001")
        a("s_add_u32 s25, s25, s65")
        a("s_lshr_b32 s24, s64, 2")
        a("s_lshl_b32 s24, s24, 3")
        a("s_lshr_b32 s65, s32, 2")
        a("s_add_u32 s24, s24, s65")
        a("s_lshr_b32 s33, s25, 2")
        a("s_lshr_b32 s34, s24, 2")
        a("s_and_b32 s29, s24, 3")
    a("s_lshl_b32 s28, s25, 1")
    a("s_cmp_eq_u32 s26, s33" if E("HS", "0") == "0" else "s_cmp_lg_u32 s26, s33")
    a("s_addc_u32 s28, s28, 0")
    a("s_mul_i32 s30, s32, 37")
    a("s_lshr_b32 s30, s30, 8")
    a("s_mul_i32 s31, s30, 7")
    a("s_sub_u32 s31, s32, s31")
    a("s_lshl_b32 s64, s64, 2")
    a("s_add_u32 s30, s30, s64")
    a("s_mov_b32 s35, s27")
    a("s_cmp_ge_u32 s27, 4")
    a("s_cbranch_scc0 L_COMPUTE")
    helper(a)
    compute(a)
    a.label("L_END")
    a("s_endpgm")
    a.label("L_CODE_END")

def helper(a):
    a("s_sub_u32 s27, s27, 4")
    if ROT:
        a("s_and_b32 s64, s32, 7")
        a("s_lshr_b32 s64, s64, %s" % E("ROTS", "0"))
        a("s_add_u32 s64, s64, s29")
        if ROT == 1:
            a("s_mul_i32 s80, s26, %s" % E("ROTO", "3"))
        elif ROT == 2:
            a("s_and_b32 s64, s64, 1")
            a("s_mul_i32 s80, s64, %s" % E("ROTO", "3"))
        elif ROT == 3:
            a("s_mul_i32 s65, s64, 86")
            a("s_lshr_b32 s65, s65, 8")
            a("s_mul_i32 s65, s65, 3")
            a("s_sub_u32 s64, s64, s65")
            a("s_mul_i32 s80, s64, 5")
            a("s_lshr_b32 s80, s80, 1")
        elif ROT == 4:
            a("s_and_b32 s64, s64, 3")
            a("s_lshl_b32 s80, s64, 1")
        for i in range(1, 7):
            a(f"s_add_u32 s{80+i}, s{79+i}, 1")
            a(f"s_cmp_eq_u32 s{80+i}, 7")
            a(f"s_cselect_b32 s{80+i}, 0, s{80+i}")
    a("v_lshrrev_b32 v1, 3, v0")
    a("s_lshl_b32 s64, s24, 7")
    a("s_lshl_b32 s65, s27, 5")
    a("s_add_u32 s64, s64, s65")
    a("v_add_u32 v1, s64, v1")
    a("v_mul_u32_u24 v1, 896, v1")
    a("v_lshrrev_b32 v2, 4, v0")
    a("v_and_b32 v3, 7, v0")
    a("v_xor_b32 v2, v2, v3")
    a("v_lshl_add_u32 v2, v2, 4, v1")
    a("v_xor_b32 v3, 64, v2")
    a("v_add_u32 v3, 7168, v3")
    a("v_add_u32 v4, 14336, v2")
    a("v_add_u32 v5, 14336, v3")
    dma_lane_w(a, 6, 10, 11, 2688)
    a("s_mul_i32 s64, s27, 43008")
    a("s_mul_i32 s65, s25, 112")
    a("s_add_u32 s64, s64, s65")
    a("s_add_u32 s64, s64, 896")
    a("v_add_u32 v6, s64, v6")
    a("v_add_u32 v7, 21504, v6")
    a("v_add_u32 v8, 896, v6")
    a("v_add_u32 v9, 896, v7")
    a("s_lshl_b32 s66, s27, 12")
    a("s_lshl_b32 s67, s27, 11")
    a(f"s_add_u32 s67, s67, {RING}")
    a(f"s_mov_b32 s{SX+2}, 1835008")
    a(f"s_mov_b32 s{SX+3}, 0x20000")
    a(f"s_mov_b32 s{SW+2}, 1204224")
    a(f"s_mov_b32 s{SW+3}, 0x20000")
    a("s_cmp_eq_u32 s26, 0")
    a("s_waitcnt lgkmcnt(0)")
    a(f"s_mov_b32 s{SX}, s4")
    a(f"s_mov_b32 s{SX+1}, s5")
    a(f"s_cselect_b32 s{SW}, s6, s12")
    a(f"s_cselect_b32 s{SW+1}, s7, s13")
    vm = []
    def xload(c):
        for q in range(4):
            a(f"s_add_u32 m0, s66, {c*16384 + q*1024}")
            a((f"s_lshl_b32 s64, s{80+c}, 7" if ROT else f"s_mov_b32 s64, {c*128}") if q == 0 else "s_nop 0")
            a(f"buffer_load_dwordx4 v{2+q}, {R(SX)}, s64 offen lds"); vm.append(("x", c))
    def wload(c):
        for pt in range(2):
            for u in range(2):
                a(f"s_add_u32 m0, s67, {(c%3)*16384 + pt*8192 + u*1024}")
                a((f"s_mul_i32 s65, s{80+c}, 172032" if ROT else f"s_mov_b32 s65, {c*172032}") if pt + u == 0 else "s_nop 0")
                a(f"buffer_load_dwordx4 v{6+2*pt+u}, {R(SW)}, s65 offen lds"); vm.append(("w", c))
    def qload(mat, part):
        slot = {(1, 0): 1, (1, 1): 2, (0, 0): 0, (0, 1): 1}[(mat, part)]
        for u in range(3 if part else 4):
            a(f"s_add_u32 m0, s{89 if part else 88}, {slot*16384 + u*1024}")
            a(f"s_mov_b32 s65, {u*43008}")
            a(f"buffer_load_dwordx4 v{10+part}, {R(SWA if mat == 0 else SWB)}, s65 offen lds"); vm.append(("q", mat, part))
    def waitfor(*tags):
        last = max(i for i, tg in enumerate(vm) if tg in tags)
        a(f"s_waitcnt vmcnt({len(vm)-1-last})")
    def patch(part):
        if part: a("s_mov_b32 exec_hi, 0xffff")
        a(f"ds_write_b16 v{15+part}, v{12+part}")
        if part: a("s_mov_b32 exec_hi, -1")
    def initcheck(tag):
        a("v_readfirstlane_b32 s87, v17")
        a("s_nop 0")
        a("s_cmp_lg_u32 s87, 0")
        a(f"s_cbranch_scc1 H_INIT_OK{tag}")
        poll(a, "INIT" + tag, R(SD), "0", 1, 18, 17)
        a("v_readfirstlane_b32 s87, v17")
        a.label(f"H_INIT_OK{tag}")
    stamp(a, 1, 2)
    xload(0); wload(0)
    srd(a, SWA, 6, 1204224); srd(a, SWB, 12, 1204224)
    srd(a, SWS, 22, WS_SIZE); srd(a, SD, 20, 256); srd(a, SG, 16, 896)
    a("v_lshrrev_b32 v10, 2, v0")
    a("v_mul_u32_u24 v10, 2688, v10")
    a("v_and_b32 v11, 3, v0")
    a("v_lshl_add_u32 v10, v11, 4, v10")
    a("s_mul_i32 s65, s28, 56")
    a("s_mul_i32 s64, s27, 129024")
    a("s_add_u32 s64, s64, s65")
    a(f"s_add_u32 s64, s64, {256*2688}")
    a("v_add_u32 v11, s64, v10")
    a("s_mul_i32 s64, s27, 172032")
    a("s_add_u32 s64, s64, s65")
    a("v_add_u32 v10, s64, v10")
    a("s_lshl_b32 s88, s27, 12")
    a(f"s_add_u32 s88, s88, {RING}")
    a("s_mul_i32 s89, s27, 3072")
    a(f"s_add_u32 s89, s89, {RING}")
    a(f"s_add_u32 s64, s88, {16384 + 56}")
    a("v_lshl_add_u32 v15, v0, 6, s64")
    a(f"s_add_u32 s64, s89, {32768 + 56}")
    a("v_lshl_add_u32 v16, v0, 6, s64")
    a("s_lshl_b32 s64, s27, 7")
    a("v_lshl_add_u32 v14, v0, 1, s64")
    a("s_mul_i32 s64, s27, 96")
    a("s_add_u32 s64, s64, 512")
    a("v_lshl_add_u32 v17, v0, 1, s64")
    a("v_mov_b32 v18, 0")
    if TOUCH: a("s_barrier")
    XE = int(E("XE", "1"))
    xload(1); wload(1)
    for i in range(XE): xload(2+i)
    stamp(a, 1); stamp(a, 2, 2)
    for c in range(5):
        waitfor(("x", c), ("w", c)); a("s_barrier"); stamp(a, 3+c, 2)
        if c == 0: stamp(a, 2)
        if not XE: xload(c+2)
        wload(c+2)
        if XE and c+2+XE < 7: xload(c+2+XE)
        if c == 1:
            a(f"buffer_load_ushort v12, v14, {R(SG)}, 0 offen"); vm.append(("g", 0))
            a(f"buffer_load_ushort v13, v17, {R(SG)}, 0 offen"); vm.append(("g", 1))
        if c == 3:
            a(f"buffer_load_dword v17, v18, {R(SD)}, 0 offen sc1"); vm.append(("d", 0))
    waitfor(("x",5),("w",5)); a("s_barrier"); stamp(a, 8, 2)
    qload(1, 0)
    def setup2():
        a(f"v_mov_b32 v1, {L_CNT}")
        for i in range(8, 12): a(f"v_mov_b32 v{i}, 0")
        a("ds_write_b128 v1, v[8:11]")
        a("s_nop 1")
        a("v_mov_b32 v9, s87")
        a("ds_write_b128 v1, v[8:11] offset:16")
        a("v_lshlrev_b32 v2, 4, v0")
        dma_lane_w(a, 3, 4, 5, 896)
        a("s_mul_i32 s64, s27, 7168")
        a("s_lshl_b32 s65, s31, 7")
        a("s_add_u32 s64, s64, s65")
        a("v_add_u32 v3, s64, v3")
        a("s_lshr_b32 s65, s27, 1")
        a("s_mul_i32 s64, s65, 28672")
        a("s_lshl_b32 s65, s65, 6")
        p3_addr(a, 4, "s64", "s65", 8, 9)
        srd(a, SWA, 8, 401408); srd(a, SWB, 14, 401408)
        a("s_lshl_b32 s65, s25, 2")
        a("s_add_u32 s65, s65, s27")
        a("s_lshl_b32 s65, s65, 9")
        a(f"s_add_u32 s65, s65, {C_KV}")
        a("v_lshlrev_b32 v10, 7, v0")
        stamp(a, 3)
    waitfor(("x",6),("w",6)); a("s_barrier"); stamp(a, 9, 2)
    a("s_lshl_b32 s64, s25, 4")
    a("s_add_u32 s64, s64, s24")
    a("s_lshl_b32 s64, s64, 7")
    a(f"s_add_u32 s66, s64, {C_KV}")
    initcheck("A")
    qload(1, 1)
    a("s_waitcnt vmcnt(3)"); patch(0)
    a("s_waitcnt vmcnt(0)"); patch(1)
    a("s_waitcnt lgkmcnt(0)")
    a("s_barrier"); stamp(a, 10, 2)
    qload(0, 0)
    a("s_barrier")
    qload(0, 1)
    a("s_xor_b32 s64, s27, 3")
    a("s_xor_b32 s65, s26, 1")
    a("s_or_b32 s90, s64, s65")
    a("s_barrier")
    a("s_cbranch_scc1 H_NOSIGKV")
    signal(a, "s66", 18, 19, 20)
    a.label("H_NOSIGKV")
    if E("ES", "0") == "1": setup2()
    a("s_waitcnt vmcnt(4)")
    a("s_cmp_eq_u32 s90, 0")
    a("s_cbranch_scc1 H_W4")
    a("s_waitcnt vmcnt(3)")
    a.label("H_W4")
    a("s_barrier")
    a("s_waitcnt vmcnt(1)")
    a("s_cbranch_scc1 H_SIGD")
    a("s_waitcnt vmcnt(0)")
    a.label("H_SIGD")
    a("s_barrier")
    if E("ES", "0") == "0": setup2()
    if E("K1", "1") == "1":
        a("s_cmp_eq_u32 s27, 0")
        a("s_cbranch_scc0 H_KVD")
        poll(a, "KV", WSR, "s65", 16, 10, 11, int(E("KS", "2")))
        a.label("H_KVD")
    else: poll(a, "KV", WSR, "s65", 4, 10, 11, int(E("KS", "0")))
    a("s_waitcnt lgkmcnt(0)")
    a("s_barrier")
    a("s_setprio %s" % E("HP", "2"))
    stamp(a, 4); stamp(a, 1, 3); stamp(a, 1, 7)
    PQ, G, KF, NUM, PA = 80, 88, 92, 100, 116
    def wo_dma(tag, srdreg, base, lo, hi, depth):
        if hi <= lo: return
        a("s_lshl_b32 s66, s27, 10")
        a(f"s_add_u32 s66, s66, {base + lo*4096}")
        a(f"s_mov_b32 s63, {lo*28672}")
        a.label(f"H_WO{tag}")
        a("s_mov_b32 m0, s66")
        a("s_add_u32 s66, s66, 4096")
        a(f"buffer_load_dwordx4 v3, {R(srdreg)}, s63 offen lds")
        a("s_add_u32 s63, s63, 28672")
        a(f"s_waitcnt vmcnt({depth})")
        a(f"s_cmp_lt_u32 s63, {hi*28672}")
        a(f"s_cbranch_scc1 H_WO{tag}")
    W1 = int(E("W1", "0"))
    a("s_cmp_ge_u32 s32, 28")
    a("s_cbranch_scc1 H_NOWO0")
    wo_dma("0", SWA, 0, 0, W1, int(E("WOD0", "2")))
    a.label("H_NOWO0")
    if "hskip" in X:
        a("s_branch H_SKIP")
    lds_wait(a, "C0", 1, 8, 4, 9)
    stamp(a, 2, 7)
    a("s_lshl_b32 s64, s27, 11")
    a(f"s_add_u32 s64, s64, {L_PQ}")
    a("v_add_u32 v8, s64, v2")
    a(f"ds_read_b128 {vr(PQ,4)}, v8")
    a(f"ds_read_b128 {vr(PQ+4,4)}, v8 offset:1024")
    a("s_lshl_b32 s64, s27, 8")
    a(f"s_add_u32 s64, s64, {L_G}")
    a("v_lshl_add_u32 v8, v0, 2, s64")
    a(f"ds_read_b32 v{G}, v8")
    a("s_cmp_ge_u32 s27, 2")
    a("s_cselect_b32 s64, s26, 1")
    a("s_cmp_eq_u32 s64, 0")
    a("s_cbranch_scc0 H_NOKVP")
    a("s_and_b32 s65, s27, 1")
    a("s_lshl_b32 s64, s65, 12")
    a(f"s_add_u32 s64, s64, {L_KVD}")
    a("v_add_u32 v8, s64, v2")
    for i in range(8):
        a(f"ds_read_b128 {vr(16+4*i,4)}, v8 offset:{1024*(i&3) + 8192*(i>>2)}")
    a("s_lshl_b32 s64, s25, 1")
    a("s_add_u32 s64, s64, s65")
    a(f"s_mul_i32 s64, s64, {PAD}")
    a("s_lshl_b32 s65, s24, 12")
    a("s_add_u32 s64, s64, s65")
    a(f"s_add_u32 s64, s64, {WS_KVP}")
    a("s_waitcnt lgkmcnt(0)")
    vadd(a, 16, 32, 16)
    for q in range(4):
        a(f"buffer_store_dwordx4 {vr(16+4*q,4)}, v2, {WSR}, s64 offen offset:{1024*q} sc1")
    a("s_lshl_b32 s64, s25, 4")
    a("s_add_u32 s64, s64, s24")
    a("s_lshl_b32 s64, s64, 7")
    a(f"s_add_u32 s64, s64, {C_A}")
    a("v_mov_b32 v11, 1")
    stamp(a, 3, 7)
    a("s_waitcnt vmcnt(0)")
    stamp(a, 4, 7)
    a("s_mov_b64 exec, 1")
    a("ds_add_rtn_u32 v9, v1, v11 offset:12")
    a("s_waitcnt lgkmcnt(0)")
    a("v_readfirstlane_b32 s69, v9")
    a("s_mov_b64 exec, -1")
    a("s_cmp_eq_u32 s69, 1")
    a("s_cbranch_scc0 H_NOKVP")
    signal(a, "s64", 10, 11, 9)
    a.label("H_NOKVP")
    stamp(a, 5, 7)
    lo = lambda: a("s_setprio 0") if PT else None
    hi = lambda: a("s_setprio 2") if PT else None
    lo()
    a("s_cmp_ge_u32 s32, 28")
    a("s_cbranch_scc1 H_NOWOA")
    if "nowo" not in X:
        wo_dma("A", SWA, 0, W1, 14, int(E("WOD", "5")))
        wo_dma("B", SWB, 57344, 0, 14, int(E("WOD", "5")))
    a.label("H_NOWOA")
    stamp(a, 2, 3); stamp(a, 6, 7)
    hi()
    a("s_lshl_b32 s64, s25, 11")
    a(f"s_add_u32 s64, s64, {C_A}")
    if "nopolla" not in X:
        a("s_cmp_eq_u32 s27, 0")
        a("s_cbranch_scc0 H_AW")
        poll(a, "A", WSR, "s64", 16, 10, 11, int(E("AS", "16")))
        a("v_mov_b32 v11, 1")
        a("ds_write_b32 v1, v11 offset:16")
        a("s_branch H_AD")
        a.label("H_AW")
        lds_wait(a, "A", 1, 16, 1, 9, 4)
        a.label("H_AD")
    stamp(a, 3, 3); stamp(a, 7, 7)
    a(f"s_mul_i32 s64, s28, {PAD}")
    a("s_lshl_b32 s65, s27, 10")
    a("s_add_u32 s64, s64, s65")
    a(f"s_add_u32 s64, s64, {WS_KVP}")
    KD = int(E("KD", "2"))
    lo()
    for i in range(16):
        if "nokvl" not in X: a(f"buffer_load_dwordx4 {vr(16+4*i,4)}, v2, {WSR}, s64 offen sc1")
        a("s_add_u32 s64, s64, 4096")
        if i > KD:
            a(f"s_waitcnt vmcnt({KD})")
            hi()
            if "nokva" not in X: vadd(a, 16, 16+4*(i-KD), 4)
            lo()
    stamp(a, 4, 3)
    hi()
    for j in range(16-KD, 16):
        a(f"s_waitcnt vmcnt({15-j})")
        vadd(a, 16, 16+4*j, 4)
    stamp(a, 5, 3)
    if "nofin" in X:
        a("s_branch H_SKIP")
    a("v_cvt_pk_bf16_f32 v16, v16, v17")
    a("v_cvt_pk_bf16_f32 v17, v18, v19")
    a("s_lshr_b32 s64, s27, 1")
    a("s_lshl_b32 s64, s64, 10")
    a("s_and_b32 s65, s27, 1")
    a("s_lshl_b32 s65, s65, 3")
    a("s_add_u32 s64, s64, s65")
    a(f"s_add_u32 s64, s64, {L_KVF}")
    a("v_add_u32 v8, s64, v2")
    a("ds_write_b64 v8, v[16:17]")
    a("v_mov_b32 v11, 1")
    a("s_waitcnt lgkmcnt(0)")
    a("s_mov_b64 exec, 1")
    a("ds_add_u32 v1, v11")
    lds_wait(a, "C1", 1, 0, 4, 9)
    stamp(a, 6, 3)
    a(f"v_add_u32 v8, {L_KVF}, v2")
    a(f"ds_read_b128 {vr(KF,4)}, v8")
    a(f"ds_read_b128 {vr(KF+4,4)}, v8 offset:1024")
    a("s_waitcnt lgkmcnt(0)")
    a(f"{MF} {vr(NUM,16)}, {vr(KF,4)}, {vr(PQ,4)}, 0")
    a(f"{MF} {vr(NUM,16)}, {vr(KF+4,4)}, {vr(PQ+4,4)}, {vr(NUM,16)}")
    a("s_lshl_b32 s64, s24, 2")
    a("s_add_u32 s64, s64, s27")
    a(f"s_mul_i32 s64, s64, {PAD}")
    a("s_lshl_b32 s65, s28, 11")
    a("s_add_u32 s64, s64, s65")
    a(f"s_add_u32 s64, s64, {WS_OF}")
    a(f"v_mov_b32 v{PA+6}, 0")
    a(f"v_mov_b32 v{PA+7}, 0")
    a("s_nop 15")
    a(f"v_mov_b32 v8, v{NUM+12}")
    a(f"v_mov_b32 v9, v{NUM+12}")
    a("s_nop 1")
    a("v_permlane32_swap_b32 v8, v9")
    a(f"v_add_f32 v9, {f32(EPS)}, v9")
    a("v_rcp_f32 v9, v9")
    a("s_nop 0")
    a(f"v_mul_f32 v9, v9, v{G}")
    vmul(a, NUM, "v9", 16)
    cvt(a, PA, NUM, 0, 6)
    a("s_mov_b32 exec_hi, 0")
    cvt(a, PA, NUM, 6, 8)
    a("s_mov_b32 exec_hi, -1")
    a(f"buffer_store_dwordx4 {vr(PA,4)}, v2, {WSR}, s64 offen sc1")
    a(f"buffer_store_dwordx4 {vr(PA+4,4)}, v2, {WSR}, s64 offen offset:1024 sc1")
    stamp(a, 7, 3)
    a("s_waitcnt vmcnt(0)")
    stamp(a, 8, 3)
    a("s_mov_b64 exec, 1")
    a("ds_add_rtn_u32 v9, v1, v11 offset:4")
    a("s_waitcnt lgkmcnt(0)")
    a("v_readfirstlane_b32 s69, v9")
    a("s_mov_b64 exec, -1")
    a("s_cmp_eq_u32 s69, 3")
    a("s_cbranch_scc0 H_NOSIGOA")
    if "hskip" in X or "nofin" in X:
        a.label("H_SKIP")
        a("s_cmp_eq_u32 s27, 0")
        a("s_cbranch_scc0 H_NOSIGOA")
    a("s_lshl_b32 s64, s24, 4")
    a("s_add_u32 s64, s64, s28")
    a("s_lshl_b32 s64, s64, 7")
    a(f"s_add_u32 s64, s64, {C_OA}")
    signal(a, "s64", 10, 11, 9)
    a.label("H_NOSIGOA")
    stamp(a, 5); stamp(a, 9, 3)
    a("s_setprio 0")
    a("s_barrier")
    a("s_cmp_ge_u32 s32, 28")
    a("s_cbranch_scc1 H_NOP3B")
    stamp(a, 6)
    a("s_and_b32 s64, s30, 0xfe")
    a("s_lshr_b32 s65, s27, 1")
    a("s_add_u32 s64, s64, s65")
    a("s_lshl_b32 s64, s64, 10")
    a(f"s_add_u32 s64, s64, {C_OA}")
    a("s_and_b32 s62, s27, 1")
    a("s_lshl_b32 s65, s30, 1")
    a("s_add_u32 s62, s62, s65")
    a(f"s_mul_i32 s62, s62, {PAD}")
    a("s_lshr_b32 s65, s27, 1")
    a("s_lshl_b32 s65, s65, 14")
    a("s_add_u32 s62, s62, s65")
    a(f"s_add_u32 s62, s62, {WS_OF}")
    NE = int(E("NE", "8"))
    a("s_mov_b64 exec, 0xff")
    a(f"buffer_load_dword v11, v10, {WSR}, s64 offen sc1")
    a("s_waitcnt vmcnt(0)")
    a("v_cmp_ne_u32 vcc, s87, v11")
    a("s_mov_b64 exec, -1")
    a("s_cbranch_vccnz H_OALATE")
    p3_oloads(a, 2, "s62", NE)
    a("s_barrier")
    a("s_barrier")
    a("s_branch H_OADONE")
    a.label("H_OALATE")
    a("s_barrier")
    a("s_barrier")
    poll(a, "OA", WSR, "s64", 8, 10, 11, 2)
    p3_oloads(a, 2, "s62", NE)
    a.label("H_OADONE")
    NPRE = 16
    for ks in range(NE, 16):
        for x in p3_oload(ks, 2, "s62"): a(x)
    stamp(a, 7); stamp(a, 10, 3)
    p3_gemm(a, 4, [16, 32], [48, 56], True, NPRE, 2, "s62")
    stamp(a, 8)
    a("s_lshl_b32 s64, s27, 13")
    a(f"s_add_u32 s64, s64, {RING}")
    a("v_add_u32 v8, s64, v2")
    a("s_nop 9")
    for i in range(8):
        a(f"ds_write_b128 v8, {vr(16+4*i,4)} offset:{1024*i}")
    a("s_waitcnt lgkmcnt(0)")
    stamp(a, 9)
    a("s_barrier")
    a("s_branch H_EXIT")
    a.label("H_NOP3B")
    a("s_barrier")
    a("s_barrier")
    a.label("H_EXIT")
    stamp(a, 10)
    stamp_out(a, 11)
    a("s_endpgm")

def compute(a):
    a.label("L_COMPUTE")
    XA, WA, WB, XQ, WQ = 2, 6, 7, 8, 12
    FR = 16; accK = [64, 80]; accV = [96, 112]; pK = [128, 136]; pV = [144, 152]
    QA, QB = 96, 112
    def touch(tag, c0, n, withq):
        a("s_lshr_b32 s60, s32, 1")
        a("s_cmp_eq_u32 s27, 3")
        if withq:
            a(f"s_cbranch_scc0 C_T0{tag}")
            srd(a, SWA, 6, 1204224); srd(a, SWB, 12, 1204224)
            a("s_mul_i32 s60, s60, 7")
            a("v_lshrrev_b32 v17, 2, v0")
            a("v_add_u32 v17, s60, v17")
            a("v_lshl_add_u32 v17, v17, 2, s34")
            a("v_mul_u32_u24 v17, 2688, v17")
            a("v_and_b32 v16, 3, v0")
            a("v_lshl_add_u32 v17, v16, 7, v17")
            a("s_mul_i32 s62, s33, 384")
            a("s_mov_b64 exec, 0x0fffffff")
            a(f"buffer_load_dword a88, v17, {R(SWA)}, s62 offen")
            a(f"buffer_load_dword a89, v17, {R(SWB)}, s62 offen")
            if E("TWO", "1") == "1":
                srd(a, SWA, 8, 401408); srd(a, SWB, 14, 401408)
                a("s_lshr_b32 s60, s32, 1")
                a("s_lshl_b32 s60, s60, 3")
                a("s_and_b32 s61, s2, 7")
                a("s_add_u32 s60, s60, s61")
                a("s_mul_i32 s60, s60, 25")
                a("v_add_u32 v17, s60, v0")
                a("v_lshlrev_b32 v17, 7, v17")
                a("s_mov_b64 exec, 0x1ffffff")
                a(f"buffer_load_dword a90, v17, {R(SWA)}, 0 offen")
                a(f"buffer_load_dword a91, v17, {R(SWB)}, 0 offen")
            a("s_mov_b64 exec, -1")
            a(f"s_branch C_TD{tag}")
            a.label(f"C_T0{tag}")
        else:
            a(f"s_cbranch_scc1 C_TD{tag}")
        a("s_cmp_eq_u32 s27, 0")
        a(f"s_cbranch_scc0 C_T1{tag}")
        srd(a, SW, 4, 1835008)
        a("s_lshl_b32 s61, s34, 9")
        a("s_lshl_b32 s60, s60, 5")
        a("s_add_u32 s60, s60, s61")
        a("v_and_b32 v17, 31, v0")
        a("v_add_u32 v17, s60, v17")
        a("v_mul_u32_u24 v17, 896, v17")
        a("v_lshrrev_b32 v16, 5, v0")
        a("v_lshl_add_u32 v17, v16, 7, v17")
        a(f"s_mov_b32 s62, {128*c0}")
        a("s_mov_b32 s63, 256")
        a(f"s_branch C_T2{tag}")
        a.label(f"C_T1{tag}")
        a("s_cmp_eq_u32 s27, 1")
        a(f"s_cselect_b32 s{SW}, s12, s6")
        a(f"s_cselect_b32 s{SW+1}, s13, s7")
        a(f"s_mov_b32 s{SW+2}, 1204224")
        a(f"s_mov_b32 s{SW+3}, 0x20000")
        a("v_lshrrev_b32 v17, 5, v0")
        a("v_lshlrev_b32 v17, 6, v17")
        a("v_bfe_u32 v16, v0, 3, 2")
        a("s_lshl_b32 s60, s60, 2")
        a("v_add3_u32 v17, v17, v16, s60")
        a("v_mul_u32_u24 v17, 2688, v17")
        a("v_bfe_u32 v16, v0, 2, 1")
        a("v_mul_u32_u24 v16, 896, v16")
        a("v_add_u32 v17, v17, v16")
        a("v_and_b32 v16, 3, v0")
        a("v_lshl_add_u32 v17, v16, 7, v17")
        a("s_mul_i32 s62, s33, 384")
        a(f"s_add_u32 s62, s62, {896 + 172032*c0}")
        a(f"s_mov_b32 s63, {2*172032}")
        a.label(f"C_T2{tag}")
        for i in range((n+1)//2):
            if 2*i+1 == n: a("s_mov_b32 exec_hi, 0")
            a(f"buffer_load_dword a{88+i}, v17, {R(SW)}, s62 offen")
            if 2*i+1 == n: a("s_mov_b32 exec_hi, -1")
            if 2*i+2 < n: a("s_add_u32 s62, s62, s63")
        a.label(f"C_TD{tag}")
    TB = [int(v) for v in E("TB", "1,0").split(",")]
    TA = [int(v) for v in E("TA", "1,0").split(",")]
    a("s_waitcnt lgkmcnt(0)")
    if E("DIAGP", "") == "20": stampc(a, 20)
    if E("DIAGP", "") == "21":
        srd(a, SW, 4, 1835008)
        a("s_mul_i32 s60, s24, 114688")
        a("v_lshlrev_b32 v17, 4, v0")
        a(f"buffer_load_dwordx4 v[20:23], v17, {R(SW)}, s60 offen")
        a("s_waitcnt vmcnt(0)")
        stampc(a, 21)
    if TB[1]:
        a("s_cmp_eq_u32 s26, 0")
        a("s_cbranch_scc1 C_NTB")
        touch("B", TB[0], TB[1], E("TQ", "A") == "B")
        a.label("C_NTB")
    TAE = E("TAE", "0")
    if TA[1] and TAE == "1":
        a("s_cmp_eq_u32 s26, 0")
        a("s_cbranch_scc0 C_NTA")
        touch("A", TA[0], TA[1], E("TQ", "A") == "A")
        a.label("C_NTA")
    TW = int(E("TW", "1"))
    if TW:
        a(f"s_cmp_ge_u32 s27, {TW}")
        a("s_cbranch_scc1 C_NTW")
        a("s_cmp_ge_u32 s32, 16")
        a(f"s_cselect_b32 s{SW}, s12, s6")
        a(f"s_cselect_b32 s{SW+1}, s13, s7")
        a(f"s_mov_b32 s{SW+2}, 1204224")
        a(f"s_mov_b32 s{SW+3}, 0x20000")
        a("s_and_b32 s60, s32, 15")
        a("s_mul_i32 s60, s60, 28")
        a("v_lshrrev_b32 v17, 1, v0")
        a("v_add_u32 v17, s60, v17")
        a("v_mul_u32_u24 v17, 2688, v17")
        a("v_and_b32 v16, 1, v0")
        a("v_lshl_add_u32 v17, v16, 7, v17")
        a("s_mul_i32 s60, s25, 112")
        a("s_and_b32 s60, s60, 0xff80")
        a("s_mul_i32 s61, s27, 896")
        a("s_add_u32 s60, s60, s61")
        a("s_mov_b32 exec_hi, 0xffffff")
        a(f"buffer_load_dword a88, v17, {R(SW)}, s60 offen")
        a("s_mov_b64 exec, -1")
        a.label("C_NTW")
    srd(a, SWS, 22, WS_SIZE)
    a("s_xor_b32 s64, s27, 3")
    a("s_xor_b32 s65, s2, 8")
    a("s_or_b32 s64, s65, s64")
    a("s_cmp_eq_u32 s64, 0")
    a("s_cbranch_scc0 C_NOINIT")
    a("s_memrealtime s[64:65]")
    srd(a, SD, 20, 256)
    a("v_mov_b32 v21, 0")
    a("s_waitcnt lgkmcnt(0)")
    a("s_lshl_b32 s64, s64, 1")
    a("s_or_b32 s64, s64, 1")
    a("v_mov_b32 v22, s64")
    a("s_mov_b64 exec, 1")
    a(f"buffer_store_dword v22, v21, {R(SD)}, 0 offen sc1")
    a("s_mov_b64 exec, -1")
    a.label("C_NOINIT")
    a("s_lshr_b32 s92, s27, 1")
    a("s_and_b32 s93, s27, 1")
    a("v_and_b32 v13, 31, v0")
    a("v_lshrrev_b32 v14, 5, v0")
    a("v_bfe_u32 v15, v0, 1, 3")
    a("v_xor_b32 v15, v15, v14")
    a("s_lshl_b32 s64, s92, 13")
    a("v_lshl_add_u32 v1, v13, 7, s64")
    a("s_lshl_b32 s65, s27, 12")
    a("s_sub_u32 s65, s65, s64")
    for ks in range(4):
        a(f"v_xor_b32 v{XA+ks}, {2*ks}, v15")
        a(f"v_lshl_add_u32 v{XA+ks}, v{XA+ks}, 4, v1")
        a(f"v_add_u32 v{XQ+ks}, s65, v{XA+ks}")
    a("s_mul_i32 s64, s93, 56")
    a(f"v_mov_b32 v{WA}, s64")
    tr_lane_addr(a, WB, WA, 1, 15, 2)
    a(f"v_add_u32 v{WB}, {RING}, v{WB}")
    a(f"v_mov_b32 v{WA}, v{WB}")
    a("v_bfe_u32 v1, v0, 2, 2")
    a("v_lshl_add_u32 v1, v14, 3, v1")
    a("v_lshlrev_b32 v1, 1, v1")
    a("v_bfe_u32 v15, v0, 4, 1")
    a("v_add_u32 v1, v1, v15")
    a("v_lshlrev_b32 v1, 2, v1")
    a("v_and_b32 v15, 3, v0")
    a("v_add_u32 v1, v1, v15")
    a("v_lshlrev_b32 v1, 3, v1")
    a(f"v_add_u32 v{WQ}, {RING}, v1")
    if TA[1] and TAE == "2":
        a("s_cmp_eq_u32 s26, 0")
        a("s_cbranch_scc0 C_NTA")
        touch("A", TA[0], TA[1], E("TQ", "A") == "A")
        a("s_barrier")
        a.label("C_NTA")
    a("v_cmp_eq_u32 vcc, 28, v13")
    a(f"v_mov_b32 v1, {ONE2}")
    a("s_nop 0")
    a("v_cndmask_b32 v15, 0, v1, vcc")
    for s in range(2):
        for i in range(8):
            a(f"v_mov_b32 v{pV[s]+i}, v15")
    a("s_mov_b32 s56, 0x0fffffff")
    a("s_mov_b32 s57, 0x0fffffff")
    a(f"s_mov_b32 s64, {f32(LOG2E)}")
    a(f"s_mov_b32 s65, {f32(QSCALE)}")
    a(f"s_mov_b32 s66, {f32(EPS)}")
    for i in range(32):
        a(f"v_mov_b32 v{accV[0]+i}, 0")
    a("v_lshlrev_b32 v13, 4, v0")
    a("s_cmp_eq_u32 s26, 0")
    a("s_cbranch_scc1 C_A")

    def scalars():
        for s in range(4):
            a(f"s_add_u32 s60, s27, {1+s}")
            a("s_and_b32 s60, s60, 3")
            a(f"s_lshl_b32 s{36+s}, s60, 11")
            a(f"s_add_u32 s{36+s}, s{36+s}, {L_QD}")
            a(f"s_mul_i32 s{40+s}, s60, 12288")
            a(f"s_add_u32 s{40+s}, s{40+s}, {RING + (4096*s if s < 3 else 0)}")
        a(f"s_mul_i32 s44, s28, {4*PAD}")
        a(f"s_mul_i32 s45, s27, {PAD}")
        a("s_add_u32 s45, s45, s44")
        a("s_lshl_b32 s46, s24, 2")
        a("s_add_u32 s46, s46, s27")
        a(f"s_mul_i32 s46, s46, {PAD}")
        a("s_lshl_b32 s60, s28, 11")
        a("s_add_u32 s46, s46, s60")
        a(f"s_add_u32 s46, s46, {WS_OF + 32768}")
        a("s_lshl_b32 s47, s27, 12")
        a(f"s_add_u32 s47, s47, {L_KVD}")
        a("s_lshl_b32 s48, s27, 8")
        a(f"s_add_u32 s48, s48, {L_G}")
    def reads(buf, ks):
        f = FR + 16*buf
        return [f"ds_read_b128 {vr(f,4)}, v{XA+ks}",
                f"ds_read_b64_tr_b16 {vr(f+8,2)}, v{WA} offset:{ks*2048}",
                f"ds_read_b64_tr_b16 {vr(f+10,2)}, v{WA} offset:{ks*2048+512}",
                f"ds_read_b128 {vr(f+4,4)}, v{XA+ks} offset:4096",
                f"ds_read_b64_tr_b16 {vr(f+12,2)}, v{WA} offset:{8192+ks*2048}",
                f"ds_read_b64_tr_b16 {vr(f+14,2)}, v{WA} offset:{8192+ks*2048+512}"]
    def mfmas(buf, kT):
        f = FR + 16*buf
        Xf = [vr(f, 4), vr(f+4, 4)]; Wk, Wv = vr(f+8, 4), vr(f+12, 4)
        m = []
        for s in range(2): m.append(f"{MF} {vr(accV[s],16)}, {Xf[s]}, {Wk}, {vr(accV[s],16)}")
        for s in range(2):
            if kT: m.append(f"{MF} {vr(accK[s],16)}, {Wv}, {Xf[s]}, {vr(accK[s],16)}")
            else:  m.append(f"{MF} {vr(accK[s],16)}, {Xf[s]}, {Wv}, {vr(accK[s],16)}")
        return m
    def mainloop(tag, kT):
        a("s_mov_b32 s60, 0")
        a("s_mov_b32 s61, 0")
        if STAMP != 4: stampc(a, 1)
        a("s_barrier")
        if STAMP != 4: stampc(a, 2)
        for r in reads(0, 0): a(r)
        a(".p2align 6")
        a.label(f"C_{tag}_LOOP")
        for ks in range(4):
            m = mfmas(ks & 1, kT); r = reads((ks+1) & 1, (ks+1) & 3)
            if ks < 3:
                a("s_waitcnt lgkmcnt(3)"); a(m[0]); a(r[0]); a(r[1]); a(r[2])
                a("s_waitcnt lgkmcnt(5)"); a(m[1]); a(r[3]); a(r[4]); a(r[5])
                a("s_waitcnt lgkmcnt(6)"); a(m[2])
                a(f"v_add_u32 v{XA+ks}, 16384, v{XA+ks}")
                if ks == 2:
                    a("s_add_u32 s60, s60, 1")
                    a("s_add_u32 s61, s61, 16384")
                    a("s_cmp_eq_u32 s61, 49152")
                    a("s_cselect_b32 s61, 0, s61")
                a(m[3])
            else:
                a(f"v_add_u32 v{WA}, s61, v{WB}")
                a("s_cmp_eq_u32 s60, 7")
                a("s_waitcnt lgkmcnt(0)")
                a(f"s_cbranch_scc1 C_{tag}_TAIL")
                a("s_barrier")
                a(m[0]); a(r[0]); a(r[1]); a(r[2])
                a(m[1]); a(r[3]); a(r[4]); a(r[5])
                a(m[2])
                a(f"v_add_u32 v{XA+3}, 16384, v{XA+3}")
                a(m[3])
                a(f"s_branch C_{tag}_LOOP")
                a.label(f"C_{tag}_TAIL")
                for x in m: a(x)
        stampc(a, 3)
        if "nords" in X or "nomf" in X:
            i0 = max(i for i, l in enumerate(a.lines) if l.startswith(f"C_{tag}_LOOP"))
            for i in range(i0, len(a.lines)):
                l = a.lines[i].strip()
                if "nords" in X and l.startswith("ds_read"): a.lines[i] = "    s_nop 0"
                if "nomf" in X and l.startswith("v_mfma"): a.lines[i] = "    s_nop 7"
    _reads = reads
    def reads(buf, ks):
        r = _reads(buf, ks)
        f = FR + 16*buf
        r[1] = f"ds_read_b64_tr_b16 {vr(f+8,2)}, v{WA} offset:{8192+ks*2048}"
        r[2] = f"ds_read_b64_tr_b16 {vr(f+10,2)}, v{WA} offset:{8192+ks*2048+512}"
        r[4] = f"ds_read_b64_tr_b16 {vr(f+12,2)}, v{WA} offset:{ks*2048}"
        r[5] = f"ds_read_b64_tr_b16 {vr(f+14,2)}, v{WA} offset:{ks*2048+512}"
        return r
    def cvt_v():
        a("s_nop 9")
        a("s_mov_b64 exec, s[56:57]")
        for s in range(2): cvt(a, pV[s], accV[s])
        a("s_mov_b64 exec, -1")
    def qpass(mat, acc, c0, bars):
        def qreads(k):
            f = FR + 8*(k % 4)
            slot = {(1, 0): 1, (1, 1): 2, (0, 0): 0, (0, 1): 1}[(mat, k >> 4)]
            o = slot*16384 + (k & 15)*1024
            xr = (XQ if k < 16 else XA) + (k & 3)
            return [f"ds_read_b128 {vr(f,4)}, v{xr} offset:{((k >> 2) & 3)*16384}",
                    f"ds_read_b64_tr_b16 {vr(f+4,2)}, v{WQ} offset:{o}",
                    f"ds_read_b64_tr_b16 {vr(f+6,2)}, v{WQ} offset:{o+256}"]
        for k in range(3):
            for r in qreads(k): a(r)
        for k in range(28):
            f = FR + 8*(k % 4)
            for x in bars.get(k+3, []): a(x)
            a(f"s_waitcnt lgkmcnt({3*min(2, 27-k)})")
            a(f"{MF} {vr(acc,16)}, {vr(f+4,4)}, {vr(f,4)}, {c0 if k == 0 else vr(acc,16)}")
            if k+3 < 28:
                for x in qreads(k+3): a(x)
    def phase1b(late):
        for i in range(4): a(f"v_add_u32 v{XA+i}, 65536, v{XQ+i}")
        stampc(a, 4)
        a("s_barrier")
        if STAMP == 6: stampc(a, 15)
        bars = {20: ["s_barrier"]}
        if late: bars[16] = ["s_waitcnt vmcnt(0)", "s_barrier", "s_barrier"]
        qpass(1, QB, "0", bars)
        if STAMP == 6: stampc(a, 9)
        a("v_add_u32 v1, s39, v13")
        a("s_waitcnt vmcnt(0)")
        a("s_barrier")
        if STAMP == 6: stampc(a, 10)
        a("v_mov_b32 v54, 0")
        a("v_mov_b32 v55, 0")
        a("s_nop 7")
        a(f"v_mov_b32 v14, v{QB+12}")
        a(f"v_mov_b32 v15, v{QB+12}")
        vmul(a, QB, "s65", 8)
        a("v_permlane32_swap_b32 v15, v14")
        cvt(a, 48, QB, 0, 4)
        a("ds_write_b128 v1, v[48:51]")
        vmul(a, QB+8, "s65", 8)
        cvt(a, 48, QB, 4, 6)
        a("s_mov_b32 exec_hi, 0")
        cvt(a, 48, QB, 6, 8)
        a("s_mov_b32 exec_hi, -1")
        a("ds_write_b128 v1, v[52:55] offset:1024")
        if STAMP == 6: stampc(a, 11)
        a("s_waitcnt lgkmcnt(0)")
        a("s_barrier")
        if STAMP == 6: stampc(a, 12)
        qpass(0, QA, "1.0", {16: ["s_barrier"]})
        stampc(a, 5)
    def defer_q(a, mats):
        PP = QB + 8
        w = [f"v_mul_f32 v14, {f32(-LOG2E)}, v14", "v_exp_f32 v14, v14", f"v_mov_b32 v{PP+6}, 0", f"v_mov_b32 v{PP+7}, 0",
             "v_add_f32 v14, 1.0, v14", "v_rcp_f32 v14, v14"] + phi_list(QA, QB)
        for i, x in enumerate(w):
            if mats and i % 7 == 0: a(mats.pop(0))
            a(x)
        for x in mats: a(x)
        cvt(a, PP, QA, 0, 6)
        a("s_mov_b32 exec_hi, 0")
        cvt(a, PP, QA, 6, 8)
        a("s_mov_b32 exec_hi, -1")
        a(f"ds_write_b128 v1, {vr(PP,4)} offset:8192")
        a(f"ds_write_b128 v1, {vr(PP+4,4)} offset:9216")
        a("v_lshl_add_u32 v15, v0, 2, s48")
        a("ds_write_b32 v15, v14")
        a("v_sub_f32 v14, 1.0, v14")
    O = [16, 32, 48, 64]; S = [80, 96, 112, 128]; Q = [0, 8, 16, 24]; KV = [32, 48, 64, 80]
    RA = 144
    def ld(dst, off, v="v1", so="s58"):
        return f"buffer_load_dwordx4 {ar(dst,4)}, {v}, {WSR}, {so} offen" + (f" offset:{off}" if off else "") + " sc1"
    adv = ["s_add_u32 s58, s58, 4096"]
    ZR = ar(KV[3]+12, 4)
    zero = lambda d: f"{MF} {vr(d,16)}, {ZR}, {ZR}, 0"
    def pre(a):
        for i in range(4): a(f"v_accvgpr_write_b32 a{KV[3]+12+i}, 0")
        a("v_add_u32 v4, s44, v13")
        a(f"v_mov_b32 v5, {L_CNT}")
        a("v_mov_b32 v6, 1")
    def first_loads(work):
        stampc(a, 7)
        a("v_add_u32 v7, s45, v13")
        a("s_mov_b32 s58, 4096")
        a("s_mov_b32 s59, 8192")
        for f in range(4):
            a(ld(KV[0]+4*f, 1024*f, "v7", "0"))
            a(f"v_add_u32 v{8+f}, s{36+f}, v13")
            a(f"ds_read_b128 {ar(Q[f],4)}, v{8+f}")
            a(f"ds_read_b128 {ar(Q[f]+4,4)}, v{8+f} offset:1024")
        sub = Asm(); work(sub)
        lines = sub.lines
        rest = [ld(KV[n]+4*f, 1024*f, "v7", f"s{57+n}") for n in (1, 2) for f in range(4)]
        gap = int(E("LG", "8")); full = True
        for i, l in enumerate(lines):
            a.lines.append(l)
            if "exec" in l and l.strip().startswith("s_mov"): full = l.strip().endswith("-1")
            if rest and full and i % gap == gap - 1: a(rest.pop(0))
        for x in rest: a(x)
        a("s_mov_b32 s58, 12288")

    for i in range(32): a(f"v_mov_b32 v{accK[0]+i}, 0")
    for s in range(2):
        a(f"v_mov_b32 v{pK[s]+6}, v1"); a(f"v_mov_b32 v{pK[s]+7}, v1")
    a("v_and_b32 v15, 0x33, v0")
    a("v_bfe_u32 v1, v0, 2, 1")
    a("v_lshl_add_u32 v15, v1, 3, v15")
    a("v_bfe_u32 v1, v0, 3, 1")
    a("v_lshl_add_u32 v15, v1, 2, v15")
    a("v_lshlrev_b32 v15, 4, v15")
    a("s_lshl_b32 s58, s25, 1")
    a("s_add_u32 s58, s58, s93")
    a("s_lshl_b32 s58, s58, 2")
    a("s_add_u32 s58, s58, s34")
    a(f"s_mul_i32 s58, s58, {PAD}")
    a("s_lshl_b32 s59, s29, 1")
    a("s_add_u32 s59, s59, s92")
    a("s_lshl_b32 s59, s59, 13")
    a("s_add_u32 s58, s58, s59")
    a("s_add_u32 s59, s58, 4096")
    if TOUCH: a("s_barrier")
    scalars()
    mainloop("B", True)
    cvt_v()
    st = []
    for s in range(2):
        st.append(f"buffer_store_dwordx4 {vr(pV[s],4)}, v13, {WSR}, s{58+s} offen offset:2048 sc1")
        st.append(f"buffer_store_dwordx4 {vr(pV[s]+4,4)}, v13, {WSR}, s{58+s} offen offset:3072 sc1")
    for s in range(2):
        st.append(f"buffer_store_dwordx4 {vr(pK[s],4)}, v15, {WSR}, s{58+s} offen sc1")
        st.append(f"buffer_store_dwordx4 {vr(pK[s]+4,4)}, v15, {WSR}, s{58+s} offen offset:1024 sc1")
    if "plainkv" in X: st = [x.replace(" sc1", "") for x in st]
    for x in st[:4]: a(x)
    for s in range(2):
        cvt(a, pK[s], accK[s], 0, 6)
        a("s_mov_b32 exec_hi, 0")
        cvt(a, pK[s], accK[s], 6, 8)
        a("s_mov_b32 exec_hi, -1")
        for x in st[4+2*s:6+2*s]: a(x)
    phase1b(False)
    DPRE = E("DPRE", "0") == "1"
    def workB(a):
        a("s_nop 7")
        pre(a)
        defer_q(a, [zero(d) for d in O + [S[3]]])
    if DPRE: workB(a)
    a("s_waitcnt lgkmcnt(0)")
    stampc(a, 6)
    a("s_barrier")
    first_loads((lambda a: None) if DPRE else workB)
    a("s_branch C_2")

    a.label("C_A")
    for i in range(32): a(f"v_mov_b32 v{accK[0]+i}, 1.0")
    for s in range(2):
        for i in range(8): a(f"v_mov_b32 v{pK[s]+i}, 0")
    if TA[1] and TAE == "0": touch("A", TA[0], TA[1], E("TQ", "A") == "A")
    if TOUCH and TAE != "2": a("s_barrier")
    scalars()
    mainloop("A", False)
    cvt_v()
    pend = phi_list(accK[0], 52) + phi_list(accK[1], 52)
    phase1b(False)
    D = accK[1]
    APRE = int(E("APRE", "1"))
    kvm = [f"{MF} {vr(D,16)}, {vr(pK[0],4)}, {vr(pV[0],4)}, 0",
           f"{MF} {vr(D,16)}, {vr(pK[0]+4,4)}, {vr(pV[0]+4,4)}, {vr(D,16)}",
           f"{MF} {vr(D,16)}, {vr(pK[1],4)}, {vr(pV[1],4)}, {vr(D,16)}",
           f"{MF} {vr(D,16)}, {vr(pK[1]+4,4)}, {vr(pV[1]+4,4)}, {vr(D,16)}"]
    def part1(a):
        for x in pend: a(x)
        a("s_mov_b64 exec, s[56:57]")
        for s in range(2): cvt(a, pK[s], accK[s])
        a("s_mov_b64 exec, -1")
        a("s_nop 1")
    def part2(a):
        pre(a)
        defer_q(a, kvm + [zero(d) for d in O + [S[3]]])
        a("v_add_u32 v15, s47, v13")
        for q in range(4):
            a(f"ds_write_b128 v15, {vr(D+4*q,4)} offset:{1024*q}")
    if APRE >= 1: part1(a)
    if DPRE: part2(a)
    a("s_waitcnt lgkmcnt(0)")
    stampc(a, 6)
    a("s_barrier")
    def workA(a):
        if APRE < 1: part1(a)
        if not DPRE: part2(a)
    first_loads(workA)

    a.label("C_2")
    if PT: a("s_setprio 1")
    a("v_mov_b32 v2, 0xdddd")
    a("v_mov_b32 v3, 0")
    a("v_mov_b32 v1, v7")
    a("s_mov_b32 s59, 3")
    for s in range(4): a(f"v_add_u32 v{RA+s}, s{40+s}, v13")
    a("s_waitcnt vmcnt(10) lgkmcnt(0)")
    stampc(a, 8)
    a("s_mov_b64 exec, 1")
    a("ds_add_u32 v5, v6 offset:8")
    a("ds_read_b32 v6, v5 offset:20")
    a("s_mov_b64 exec, -1")
    a(f"{MF} {vr(S[0],16)}, {ar(KV[0],4)}, {ar(Q[0],4)}, 0")
    a(f"{MF} {vr(S[0],16)}, {ar(KV[0]+4,4)}, {ar(Q[0]+4,4)}, {vr(S[0],16)}")
    a("s_waitcnt vmcnt(8) lgkmcnt(0)")
    a("v_readfirstlane_b32 s87, v6")
    a("s_nop 8")
    if E("STG", ""):
        for i in range(1, 4):
            a(f"s_cmp_ge_u32 s27, {i}")
            a("s_cbranch_scc0 C_STG")
            a("s_nop %s" % E("STG", ""))
        a.label("C_STG")
    def unit(pos, cur, nxt, prv, slot):
        sc = S[pos & 3]; sn = S[(pos+1) & 3]; sp = S[(pos-1) & 3]
        e = [f"v_exp_f32 v{sc+i}, v{sc+i}" for i in range(16)]
        if nxt: a(f"{MF} {vr(sn,16)}, {ar(KV[nxt[0]],4)}, {ar(Q[nxt[1]],4)}, 0")
        for x in slot[0]: a(x)
        for x in e[0:4]: a(x)
        a(f"{SM} {vr(O[prv[1]],16)}, {ar(KV[prv[0]]+12,4)}, {vr(sp+8,8)}, v2")
        for x in slot[1]: a(x)
        for x in e[4:8]: a(x)
        if nxt: a(f"{MF} {vr(sn,16)}, {ar(KV[nxt[0]]+4,4)}, {ar(Q[nxt[1]]+4,4)}, {vr(sn,16)}")
        for x in slot[2]: a(x)
        for x in e[8:12]: a(x)
        a(f"{SM} {vr(O[cur[1]],16)}, {ar(KV[cur[0]]+8,4)}, {vr(sc,8)}, v2")
        for x in slot[3]: a(x)
        if nxt:
            for _ in range(2 - min(2, len(slot[2]) + len(slot[3]))): a("s_nop 0")
        for x in e[12:16]: a(x)
    LP = int(E("LP", "2"))
    ER = E("ER", "0") == "1"
    PB = S[1] if ER else 16
    FW = int(E("FW", "2"))
    def plain(n, s):
        slot = [[], [], [], []]
        slot[2].append("s_nop 0" if "nold" in X else ld(KV[(n+3) & 3] + 4*s, 1024*s).replace(" sc1", "" if "plain" in X else " sc1"))
        if s == 3: slot[3] += adv
        if not FW:
            if s == 2: slot[3].append("s_waitcnt vmcnt(7)")
        elif FW == 2:
            if s == 2: slot[3].append("s_waitcnt vmcnt(9)")
            if s == 0: slot[1].append("s_waitcnt vmcnt(8)")
        else:
            if s == 2: slot[3].append("s_waitcnt vmcnt(10)")
            if s == 3: slot[1].append("s_waitcnt vmcnt(9)")
            if s == 0: slot[1].append("s_waitcnt vmcnt(9)")
            if s == 1: slot[0].append("s_waitcnt vmcnt(9)")
        return slot
    a(".p2align 6")
    a.label("C_ATT")
    for n in range(4):
        for s in range(4):
            slot = plain(n, s)
            if n == 3 and s == 1: slot[3].append("s_sub_u32 s59, s59, 1")
            if n == 3 and s == 3: slot[3].append("s_cmp_lg_u32 s59, 0")
            unit(s, (n, s), ((n + (s == 3)) & 3, (s+1) & 3), ((n - (s == 0)) & 3, (s-1) & 3), slot)
    a("s_cbranch_scc1 C_ATT")
    seq = [(0, s) for s in range(4)] + [(1, s) for s in range(4)] + [(n, s) for s in range(4) for n in (2, 3)]
    for i, cur in enumerate(seq):
        nxt = seq[i+1] if i < 15 else None
        prv = seq[i-1] if i > 0 else (3, 3)
        slot = plain(*cur) if i < 4 else [[], [], [], []]
        if not FW:
            if i == 6: slot[3].append("s_waitcnt vmcnt(0)")
        else:
            w = {4: (1, 8), 6: (3, 6), 7: (3, 2), 9: (1, 0)}.get(i) if FW == 2 else {4: (1, 9), 5: (0, 8), 6: (3, 6), 7: (3, 2), 9: (1, 1), 10: (0, 0)}.get(i)
            if w: slot[w[0]].append(f"s_waitcnt vmcnt({w[1]})")
        wr = lambda s_, q: f"ds_write_b128 v{RA+s_}, {vr(O[s_]+4*q,4)} offset:{1024*q}"
        if ER:
            plan = {11: {0: (0, 0), 2: (0, 1)}, 12: {0: (0, 2), 2: (0, 3)}, 13: {0: (1, 0), 1: (1, 1), 2: (1, 2), 3: (1, 3)},
                    15: {0: (2, 0)}}
            for sl, (s_, q) in plan.get(i, {}).items(): slot[sl].append(wr(s_, q))
            if i == 14: tail4 = [wr(2, 0), wr(2, 1)]
            if i == 15:
                slot[0] = [wr(2, 2), wr(2, 3)]
                slot[2] = ["s_waitcnt lgkmcnt(0)", "s_barrier"] + \
                          [f"ds_read_b128 {vr(O[0]+4*k,4)}, v{RA+3} offset:{1024*((k % 3)*4 + k // 3)}" for k in range(6)]
                slot[3] = [f"ds_read_b128 {vr(O[0]+4*k,4)}, v{RA+3} offset:{1024*((k % 3)*4 + k // 3)}" for k in range(6, 12)]
        else:
            for first, s_ in ((11, 0), (13, 1)):
                if i in (first, first+1):
                    for q in range(2):
                        slot[1 + 2*q].append(wr(s_, 2*(i - first) + q))
            if i == 15:
                for q in range(4): slot[q].append(wr(2, q))
        unit(i, cur, nxt, prv, slot)
        if ER and i == 14:
            for x in tail4: a(x)
        if i == int(E("XP", "10")):
            if STAMP == 4: stampc(a, 1)
            a("s_barrier")
            if STAMP == 4: stampc(a, 2)
    a("s_setprio 1")
    a(f"v_mov_b32 v{PB+6}, 0")
    a(f"{SM} {vr(O[3],16)}, {ar(KV[3]+12,4)}, {vr(S[3]+8,8)}, v2")
    a(f"v_mov_b32 v{PB+7}, 0")
    a(f"s_mov_b32 s62, {f32(2.0**-60)}")
    a(f"s_mov_b32 s63, {f32(2.0**120)}")
    RB = O[0] if ER else S[0]
    if not ER:
        a("s_waitcnt lgkmcnt(0)")
        a("s_barrier")
    if STAMP != 6: stampc(a, 9)
    if not ER:
        for i in range(12):
            a(f"ds_read_b128 {vr(RB+4*i,4)}, v{RA+3} offset:{1024*((i % 3)*4 + i // 3)}")
    for q in range(4):
        a(f"s_waitcnt lgkmcnt({9-3*q})")
        b = RB + 12*q
        vadd(a, b, b+4, 4)
        vadd(a, b, b+8, 4)
    for q in range(4):
        vadd(a, O[3]+4*(3-q), RB+12*(3-q), 4)
    a(f"v_mov_b32 v6, v{O[3]+12}")
    a(f"v_mov_b32 v7, v{O[3]+12}")
    a(f"v_maximum3_f32 v8, abs(v{O[3]+12}), abs(v{O[3]+13}), abs(v{O[3]+14})")
    a(f"v_maximum3_f32 v9, abs(v{O[3]+15}), abs(v{O[3]+8}), abs(v{O[3]+9})")
    a("v_permlane32_swap_b32 v6, v7")
    for i, (x, y) in enumerate(((10, 11), (4, 5), (6, 7), (0, 1), (2, 3))):
        a(f"v_maximum3_f32 v{8+(i&1)}, v{8+(i&1)}, abs(v{O[3]+x}), abs(v{O[3]+y})")
    a("v_cmp_nge_f32 vcc, v7, s62")
    a("v_maximum3_f32 v8, v8, v9, v9")
    a("v_rcp_f32 v7, v7")
    a("v_cmp_nlt_f32 s[64:65], v8, s63")
    a("s_or_b64 vcc, vcc, s[64:65]")
    a("s_cbranch_scc1 C_FALLBACK")
    a.label("C_FIN")
    a(f"v_mov_b32 v5, {RING + 49152 - 16}")
    a("s_cmp_eq_u32 s27, 3")
    a("s_cbranch_scc0 C_NOCLR")
    a("ds_write_b32 v5, v3")
    a.label("C_NOCLR")
    a("v_mul_f32 v7, v7, v14")
    vmul(a, O[3], "v7", 8)
    cvt(a, PB, O[3], 0, 4)
    a(f"buffer_store_dwordx4 {vr(PB,4)}, v13, {WSR}, s46 offen sc1")
    vmul(a, O[3]+8, "v7", 8)
    cvt(a, PB, O[3], 4, 6)
    a("s_mov_b32 exec_hi, 0")
    cvt(a, PB, O[3], 6, 8)
    a("s_mov_b32 exec_hi, -1")
    a(f"buffer_store_dwordx4 {vr(PB+4,4)}, v13, {WSR}, s46 offen offset:1024 sc1")
    a("s_waitcnt lgkmcnt(0)")
    a("s_barrier")
    if STAMP != 6: stampc(a, 10)
    a("s_mul_i32 s60, s92, 28672")
    a("s_add_u32 s60, s60, 57344")
    a("s_lshl_b32 s61, s92, 6")
    a("v_mov_b32 v1, v5")
    p3_addr(a, 4, "s60", "s61", 8, 9)
    a("s_lshl_b32 s60, s27, 13")
    a(f"s_add_u32 s60, s60, {RING}")
    a("v_add_u32 v8, s60, v13")
    a("s_lshl_b32 s60, s27, 12")
    a(f"s_add_u32 s60, s60, {RING + 32768}")
    a("v_add_u32 v9, s60, v13")
    a("v_xor_b32 v10, 8192, v9")
    a("s_lshl_b32 s60, s30, 1")
    a("s_add_u32 s60, s60, s93")
    if E("TS", "1") == "1":
        a("v_and_b32 v11, 31, v0")
        a("v_lshrrev_b32 v12, 5, v0")
        a("s_lshl_b32 s61, s92, 2")
        a("v_add_u32 v12, s61, v12")
        a("v_and_b32 v15, 7, v0")
        a("v_xor_b32 v12, v12, v15")
        a("s_lshl_b32 s61, s93, 12")
        a(f"s_add_u32 s61, s61, {RING}")
        a("v_lshl_add_u32 v11, v11, 7, s61")
        a("v_lshl_add_u32 v11, v12, 4, v11")
        a("v_xor_b32 v2, 32, v11")
        a("v_lshrrev_b32 v12, 3, v0")
        a("v_xor_b32 v15, v15, v12")
        a("s_lshl_b32 s61, s30, 6")
        a("s_lshl_b32 s63, s27, 4")
        a("s_add_u32 s61, s61, s63")
        a("v_add_u32 v12, s61, v12")
        a("v_mul_u32_u24 v12, 896, v12")
        a("v_lshl_add_u32 v15, v15, 4, v12")
    else:
        a("v_and_b32 v11, 31, v0")
        a("s_lshl_b32 s61, s60, 5")
        a("v_add_u32 v11, s61, v11")
        a("v_mul_u32_u24 v11, 896, v11")
        a("v_lshrrev_b32 v12, 5, v0")
        a("v_lshl_add_u32 v11, v12, 4, v11")
    a(f"s_mul_i32 s60, s60, {PAD}")
    a("s_lshl_b32 s61, s92, 14")
    a("s_add_u32 s60, s60, s61")
    a(f"s_add_u32 s60, s60, {WS_OF + 32768}")
    a("s_and_b32 s61, s30, 0xfe")
    a("s_lshl_b32 s61, s61, 10")
    a(f"s_add_u32 s61, s61, {C_OB}")
    a("s_lshl_b32 s62, s31, 7")
    if E("TS", "1") == "1":
        a("s_add_u32 s63, s62, 7168")
    else:
        a("s_lshl_b32 s63, s92, 6")
        a("s_add_u32 s62, s62, s63")
    srd(a, SX, 18, 1835008)
    a("s_lshl_b32 s64, s24, 4")
    a("s_add_u32 s64, s64, s28")
    a("s_lshl_b32 s64, s64, 7")
    a(f"s_add_u32 s64, s64, {C_OB}")
    a("v_mov_b32 v12, 1")
    a("s_mov_b64 exec, 1")
    a("s_waitcnt vmcnt(0)")
    a("ds_add_rtn_u32 v14, v1, v12")
    a("s_waitcnt lgkmcnt(0)")
    a("v_readfirstlane_b32 s69, v14")
    a("s_nop 0")
    a("s_cmp_eq_u32 s69, 3")
    a("s_mov_b64 exec, -1")
    a("s_cbranch_scc0 C_NOSIG")
    signal(a, "s64", 3, 12, 14)
    a.label("C_NOSIG")
    a("s_mov_b64 exec, -1")
    if STAMP != 6: stampc(a, 11)
    a("s_cmp_ge_u32 s32, 28")
    a("s_cbranch_scc1 C_EXIT")
    NPRE = int(E("NPRE", "10"))
    a("v_lshlrev_b32 v14, 7, v0")
    if E("OW", "0") == "1":
        a("s_lshl_b32 s64, s92, 10")
        a("s_add_u32 s61, s61, s64")
        poll(a, "OB", WSR, "s61", 8, 14, 12, int(E("OBS", "1")), False)
        if STAMP != 6: stampc(a, 12)
        p3_oloads(a, 13, "s60", NPRE)
        a("s_barrier")
    else:
        a("s_cmp_eq_u32 s27, 0")
        a("s_cbranch_scc0 C_OBD")
        poll(a, "OB", WSR, "s61", 16, 14, 12, int(E("OBS", "1")), False)
        a.label("C_OBD")
        a("s_barrier")
        if STAMP != 6: stampc(a, 12)
        p3_oloads(a, 13, "s60", NPRE)
    for i in range(8):
        a(f"ds_read_b128 {vr(16+4*i,4)}, v8 offset:{1024*i}")
    p3_gemm(a, 4, [16, 32], [48, 56], False, NPRE, 13, "s60")
    if STAMP != 6: stampc(a, 13)
    a("v_mov_b32 v12, v2")
    a("s_lshl_b32 s64, s27, 11")
    a(f"s_add_u32 s64, s64, {RING}")
    a("v_add_u32 v14, s64, v13")
    a("s_nop 7")
    for i in range(4):
        a(f"ds_write_b128 v9, {vr(32+4*i,4)} offset:{1024*i}")
    a("s_waitcnt lgkmcnt(0)")
    a("s_barrier")
    for i in range(4):
        a(f"ds_read_b128 {vr(32+4*i,4)}, v10 offset:{1024*i}")
    OFL = E("OFL", "sc1")
    TS = E("TS", "1") == "1"
    for hf in range(2):
        for q in (2*hf, 2*hf+1):
            a(f"s_waitcnt lgkmcnt({3-q + (1 if TS and hf else 0)})")
            vadd(a, 16+4*q, 32+4*q, 4)
        cvt(a, 48, 16, 4*hf, 4*hf+4)
        a("s_nop 1")
        a(f"v_permlane32_swap_b32 v{48+4*hf}, v{50+4*hf}")
        a(f"v_permlane32_swap_b32 v{49+4*hf}, v{51+4*hf}")
        if TS: a(f"ds_write_b128 v{11+hf}, {vr(48+4*hf,4)}")
        else: a(f"buffer_store_dwordx4 {vr(48+4*hf,4)}, v11, {R(SX)}, s62 offen offset:{32*hf} {OFL}")
    if TS:
        a("s_waitcnt lgkmcnt(0)")
        a("s_barrier")
        a("ds_read_b128 v[16:19], v14")
        a("ds_read_b128 v[20:23], v14 offset:1024")
        a("s_waitcnt lgkmcnt(1)")
        a(f"buffer_store_dwordx4 v[16:19], v15, {R(SX)}, s62 offen {OFL}")
        a("s_waitcnt lgkmcnt(0)")
        a(f"buffer_store_dwordx4 v[20:23], v15, {R(SX)}, s63 offen {OFL}")
    a.label("C_EXIT")
    if E("DIAGP", "") == "99":
        a("s_waitcnt vmcnt(0)")
        a("s_memrealtime s[100:101]")
        a("s_waitcnt lgkmcnt(0)")
    if E("DIAGT", ""):
        a("s_xor_b32 s64, s2, %s" % E("DIAGW", "0"))
        a("s_or_b32 s64, s64, s27")
        a("s_cmp_eq_u32 s64, 0")
        a("s_cbranch_scc0 C_DX")
        if E("DIAGP", ""):
            a("s_sub_u32 s100, s100, s96")
            a("s_lshl_b32 s100, s100, 1")
            a("s_add_u32 s96, s96, s100")
        a.label("C_DL")
        a("s_memrealtime s[98:99]")
        a("s_waitcnt lgkmcnt(0)")
        a("s_sub_u32 s98, s98, s96")
        a("s_cmp_lt_i32 s98, %s" % E("DIAGT", ""))
        a("s_cbranch_scc1 C_DL")
        a.label("C_DX")
    if STAMP != 6: stampc(a, 14)
    if STAMP: a("s_waitcnt vmcnt(0)")
    if STAMP != 6: stampc(a, 15)
    stamp_out(a, 16)
    a("s_endpgm")
    a.label("C_FALLBACK")
    Qo = Q[3]; K0 = KV[0]; Sx = S[0]
    def fb_adv():
        a("s_add_u32 s58, s58, 4096")
        a("s_add_u32 s59, s59, 1")
        a("s_and_b32 s61, s59, 15")
        a(f"s_cselect_b32 s61, 0, {PAD-65536}")
        a("s_add_u32 s58, s58, s61")
        a("s_nop 15")
    a("s_mov_b32 s58, 0")
    a("s_mov_b32 s59, 0")
    a(f"v_mov_b32 v8, {f32(float('-inf'))}")
    a.label("C_FB1")
    a(ld(K0, 0, "v4")); a(ld(K0+4, 1024, "v4"))
    a("s_waitcnt vmcnt(0)")
    a(f"{MF} {vr(Sx,16)}, {ar(K0,4)}, {ar(Qo,4)}, 0")
    a(f"{MF} {vr(Sx,16)}, {ar(K0+4,4)}, {ar(Qo+4,4)}, {vr(Sx,16)}")
    fb_adv()
    a("s_nop 15")
    for i in range(8):
        a(f"v_max3_f32 v8, v8, v{Sx+2*i}, v{Sx+2*i+1}")
    a("s_cmp_lt_u32 s59, 64")
    a("s_cbranch_scc1 C_FB1")
    a("v_mov_b32 v9, v8")
    a("s_nop 1")
    a("v_permlane32_swap_b32 v8, v9")
    a("v_max_f32 v8, v8, v9")
    a("v_and_b32 v9, 0xffff0000, v8")
    a("v_sub_f32 v8, v8, v9")
    a("v_and_b32 v10, 0xffff0000, v8")
    a("v_sub_f32 v8, v8, v10")
    a("v_cvt_pk_bf16_f32 v9, -v9, -v10")
    a("v_cvt_pk_bf16_f32 v8, -v8, 0")
    a("s_mov_b32 exec_lo, 0")
    a(f"v_accvgpr_write_b32 a{Qo+6}, v9")
    a(f"v_accvgpr_write_b32 a{Qo+7}, v8")
    a("s_mov_b32 exec_lo, -1")
    for i in range(16): a(f"v_mov_b32 v{O[3]+i}, 0")
    a("s_mov_b32 s58, 0")
    a("s_mov_b32 s59, 0")
    a.label("C_FB2")
    for f in range(4): a(ld(K0+4*f, 1024*f, "v4"))
    a("s_waitcnt vmcnt(0)")
    a(f"{MF} {vr(Sx,16)}, {ar(K0,4)}, {ar(Qo,4)}, 0")
    a(f"{MF} {vr(Sx,16)}, {ar(K0+4,4)}, {ar(Qo+4,4)}, {vr(Sx,16)}")
    fb_adv()
    a("s_nop 15")
    for i in range(16): a(f"v_exp_f32 v{Sx+i}, v{Sx+i}")
    a("s_nop 1")
    a(f"{SM} {vr(O[3],16)}, {ar(K0+8,4)}, {vr(Sx,8)}, v2")
    a(f"{SM} {vr(O[3],16)}, {ar(K0+12,4)}, {vr(Sx+8,8)}, v2")
    a("s_cmp_lt_u32 s59, 64")
    a("s_cbranch_scc1 C_FB2")
    a("s_nop 15")
    a("s_nop 15")
    a(f"v_mov_b32 v6, v{O[3]+12}")
    a(f"v_mov_b32 v7, v{O[3]+12}")
    a("s_nop 1")
    a("v_permlane32_swap_b32 v6, v7")
    a("v_rcp_f32 v7, v7")
    a("s_nop 0")
    a("s_branch C_FIN")

def main():
    a = Asm()
    head = f"""; gated mix of a linear-attention block and a softmax-attention block (S=2048, D=448, H=16), one launch
; @launch grid=(256,1,1) block=(512,1,1) lds=163840
.amdgcn_target "amdgcn-amd-amdhsa--gfx950"
.text
"""
    gen(a)
    out = head + a.text() + '.section .rodata,"a"\n' + kernel_desc(KN, 256, 102, 160)
    path = sys.argv[1] if len(sys.argv) > 1 else f"cdna_kernels/{NAME}.s"
    open(path, "w").write(out)
main()
```

```python
import math, sys, os, struct
from asmlib import *

NAME = "gated_mix__linear_attn_block__mha_block__prompt"
KN = NAME + "_kernel"
WS_KV  = 0
WS_CNT = 5 << 20
WS_KVP = 6 << 20
WS_OF  = 8 << 20
PAD = int(os.environ.get("PAD", "69632"))
WS_ST  = 14 << 20
WS_SIZE = 16 << 20
LOG2E = 1.4426950408889634
QSCALE = LOG2E * 28 ** -0.5
EPS = 1e-6
ONE2 = 0x3F803F80
RING = 114688
L_KVD = RING
L_G   = RING + 16384 + 15360
L_KVF = RING + 16384 + 12288
L_CNT = RING + 16384 + 14336
L_QD  = RING + 32768
L_PQ  = RING + 32768 + 8192
STAMP = int(os.environ.get("STAMP", "0"))
X = set(os.environ.get("X", "").split(","))
MF = "v_mfma_f32_32x32x16_bf16"
SM = "v_smfmac_f32_32x32x32_bf16"
SX, SW, SWA, SWB, SWS, SD, SG = 36, 40, 44, 48, 52, 56, 60
WSR = f"s[{SWS}:{SWS+3}]"
SPIN = 200000
WFL = os.environ.get("WFL", "")
XFL = os.environ.get("XFL", "")

def srd(a, d, lo, size):
    a(f"s_mov_b32 s{d}, s{lo}")
    a(f"s_mov_b32 s{d+1}, s{lo+1}")
    a(f"s_mov_b32 s{d+2}, {size}")
    a(f"s_mov_b32 s{d+3}, 0x20000")
def R(d): return f"s[{d}:{d+3}]"

def stamp(a, i, mode=1):
    if not STAMP: return
    if mode is not None and mode != STAMP: return
    if i == 0: a("s_memrealtime s[96:97]")
    a("s_memrealtime s[94:95]" if os.environ.get("RT") else "s_memtime s[94:95]")
    a("s_waitcnt lgkmcnt(0)")
    a(f"s_mov_b32 s{70+i}, s94")
def stampc(a, i):
    if os.environ.get("DIAGP") == str(i):
        a("s_memrealtime s[100:101]")
        a("s_waitcnt lgkmcnt(0)")
    if STAMP == 5: return
    stamp(a, i, None)
def stamp_out(a, n):
    if not STAMP: return
    a("s_memrealtime s[98:99]")
    a("s_waitcnt lgkmcnt(0)")
    a("s_mov_b64 exec, 1")
    a("s_lshl_b32 s94, s2, 3")
    a("s_add_u32 s94, s94, s35")
    a("s_lshl_b32 s94, s94, 7")
    a(f"s_add_u32 s94, s94, {WS_ST}")
    a("v_mov_b32 v1, 0")
    for i in range(n if STAMP != 5 else 0):
        a(f"v_mov_b32 v2, s{70+i}")
        a(f"buffer_store_dword v2, v1, {WSR}, s94 offen offset:{4*i}")
    a("v_mov_b32 v2, s96")
    a(f"buffer_store_dword v2, v1, {WSR}, s94 offen offset:120")
    a("v_mov_b32 v2, s98")
    a(f"buffer_store_dword v2, v1, {WSR}, s94 offen offset:124")

def dma_lane_w(a, vdst, vt0, vt1, rowstride):
    a(f"v_lshrrev_b32 v{vt0}, 4, v0")
    a(f"v_bfe_u32 v{vt1}, v0, 2, 2")
    a(f"v_and_b32 v{vdst}, 1, v{vt0}")
    if "noswz" not in X: a(f"v_xor_b32 v{vt1}, v{vt1}, v{vdst}")
    a(f"v_lshrrev_b32 v{vdst}, 1, v{vt1}")
    a(f"v_lshl_add_u32 v{vt0}, v{vt0}, 1, v{vdst}")
    a(f"v_mul_u32_u24 v{vt0}, {rowstride}, v{vt0}")
    a(f"v_and_b32 v{vt1}, 1, v{vt1}")
    a(f"v_lshl_add_u32 v{vt0}, v{vt1}, 6, v{vt0}")
    a(f"v_and_b32 v{vt1}, 3, v0")
    a(f"v_lshl_add_u32 v{vdst}, v{vt1}, 4, v{vt0}")

def tr_lane_addr(a, vdst, vb, vt0, vt1, hlshift):
    a(f"v_bfe_u32 v{vt0}, v0, 4, 1")
    a(f"v_lshl_add_u32 v{vb}, v{vt0}, 5, v{vb}")
    a(f"v_and_b32 v{vt0}, 3, v0")
    a(f"v_lshl_add_u32 v{vb}, v{vt0}, 3, v{vb}")
    a(f"v_bfe_u32 v{vt0}, v0, 2, 1")
    a(f"v_lshrrev_b32 v{vt1}, 6, v{vb}")
    a(f"v_lshl_add_u32 v{vt0}, v{vt0}, 1, v{vt1}")
    a(f"v_bfe_u32 v{vt1}, v0, 3, 1")
    a(f"v_xor_b32 v{vt0}, v{vt0}, v{vt1}")
    a(f"v_and_b32 v{vb}, 63, v{vb}")
    a(f"v_lshl_add_u32 v{vb}, v{vt0}, 6, v{vb}")
    a(f"v_lshrrev_b32 v{vt0}, 5, v0")
    a(f"v_lshl_add_u32 v{vt0}, v{vt0}, {hlshift}, v{vt1}")
    a(f"v_lshl_add_u32 v{vdst}, v{vt0}, 8, v{vb}")

C_KV, C_A, C_OA, C_OB = WS_CNT, WS_CNT + 128*128, WS_CNT + 256*128, WS_CNT + 512*128
NFLAG = 768
def poll(a, tag, srdreg, soff, nl, vl, vt, sleep=0, first=True):
    a(f"s_mov_b64 exec, {(1 << nl) - 1}")
    a(f"s_mov_b32 s68, {SPIN}")
    if sleep and first: a(f"s_branch POLL_{tag}")
    a.label(f"POLLS_{tag}")
    if sleep: a(f"s_sleep {sleep}")
    a.label(f"POLL_{tag}")
    if tag in os.environ.get("PAT", "").split(","):
        a(f"v_mov_b32 v{vt}, 0")
        a(f"buffer_atomic_or v{vt}, v{vl}, {srdreg}, {soff} offen sc0 sc1")
    else:
        a(f"buffer_load_dword v{vt}, v{vl}, {srdreg}, {soff} offen sc1")
    a("s_sub_u32 s68, s68, 1")
    a(f"s_cbranch_scc1 POLLX_{tag}")
    a("s_waitcnt vmcnt(0)")
    a(f"v_cmp_eq_u32 vcc, 0, v{vt}" if tag.startswith("INIT") else f"v_cmp_ne_u32 vcc, s87, v{vt}")
    a(f"s_cbranch_vccnz POLLS_{tag}")
    a.label(f"POLLX_{tag}")
    a("s_mov_b64 exec, -1")

def poll2(a, tag, soff, nl, vl, vt, gap):
    a(f"s_mov_b64 exec, {(1 << nl) - 1}")
    a(f"s_mov_b32 s68, {SPIN}")
    a(f"buffer_load_dword v{vt}, v{vl}, {WSR}, {soff} offen sc1")
    a.label(f"POLL_{tag}")
    for i in range(2):
        if gap: a(f"s_sleep {gap}")
        a(f"buffer_load_dword v{vt+1-i}, v{vl}, {WSR}, {soff} offen sc1")
        a("s_waitcnt vmcnt(1)")
        a(f"v_cmp_ne_u32 vcc, s87, v{vt+i}")
        a(f"s_cbranch_vccz POLLX_{tag}")
    a("s_sub_u32 s68, s68, 1")
    a(f"s_cbranch_scc0 POLL_{tag}")
    a.label(f"POLLX_{tag}")
    a("s_mov_b64 exec, -1")

def lds_wait(a, tag, vaddr, off, target, vt, sleep=1):
    a("s_mov_b64 exec, 1")
    a(f"s_mov_b32 s68, {SPIN}")
    a.label(f"LW_{tag}")
    a(f"s_sleep {sleep}")
    a(f"ds_read_b32 v{vt}, v{vaddr} offset:{off}")
    a("s_waitcnt lgkmcnt(0)")
    a(f"v_readfirstlane_b32 s69, v{vt}")
    a("s_sub_u32 s68, s68, 1")
    a(f"s_cbranch_scc1 LWX_{tag}")
    a(f"s_cmp_ge_u32 s69, {target}")
    a(f"s_cbranch_scc0 LW_{tag}")
    a.label(f"LWX_{tag}")
    a("s_mov_b64 exec, -1")

def signal(a, soff, vz, vt, full=None):
    if full and os.environ.get("FL", "1") == "1":
        a("s_mov_b32 exec_hi, 0")
        a(f"v_lshlrev_b32 v{full}, 2, v0")
        a(f"v_mov_b32 v{vt}, s87")
        a(f"buffer_store_dword v{vt}, v{full}, {WSR}, {soff} offen {os.environ.get('SFL', 'sc1')}")
        a("s_mov_b32 exec_hi, -1")
        return
    a("s_mov_b64 exec, 1")
    a(f"v_mov_b32 v{vt}, s87")
    a(f"buffer_store_dword v{vt}, v{vz}, {WSR}, {soff} offen sc1")
    a("s_mov_b64 exec, -1")

def cvt(a, dst, src, lo=0, hi=8):
    for i in range(lo, hi):
        a(f"v_cvt_pk_bf16_f32 v{dst+i}, v{src+2*i}, v{src+2*i+1}")

def vadd(a, dst, src, n):
    for i in range(n): a(f"v_add_f32 v{dst+i}, v{dst+i}, v{src+i}")
def vmul(a, dst, mul, n):
    for i in range(n): a(f"v_mul_f32 v{dst+i}, {mul}, v{dst+i}")

def phi_list(src, T, n=16, grp=8):
    o = []
    for g0 in range(0, n, grp):
        o += [f"v_fma_f32 v{T+i}, v{src+g0+i}, s64, -s64" for i in range(grp)]
        o += [f"v_exp_f32_e64 v{T+i}, v{T+i} clamp" for i in range(grp)]
        o += [f"v_max_f32 v{src+g0+i}, v{src+g0+i}, v{T+i}" for i in range(grp)]
        o += [f"v_add_f32 v{src+g0+i}, s66, v{src+g0+i}" for i in range(grp)]
    return o

def p3_addr(a, v0a, mat_off_sgpr, swap_sgpr, vt0, vt1):
    a(f"v_mov_b32 v{v0a+1}, 0")
    tr_lane_addr(a, v0a, v0a+1, vt0, vt1, 1)
    a(f"v_add_u32 v{v0a}, {mat_off_sgpr}, v{v0a}")
    a(f"v_xor_b32 v{v0a}, {swap_sgpr}, v{v0a}")
    a(f"v_xor_b32 v{v0a+1}, 64, v{v0a}")
    a(f"v_lshrrev_b32 v{vt0}, 5, v0")
    a(f"v_lshlrev_b32 v{vt0}, 9, v{vt0}")
    a(f"v_sub_u32 v{v0a+2}, v{v0a}, v{vt0}")
    a(f"v_sub_u32 v{v0a+3}, v{v0a+1}, v{vt0}")

def p3_oload(ks, vlane16, so):
    o = [f"buffer_load_dwordx4 {ar(4*ks,4)}, v{vlane16}, {WSR}, {so} offen offset:{1024*(ks&3)} sc1"]
    if ks & 3 == 3 and ks < 15: o.append(f"s_add_u32 {so}, {so}, 4096")
    return o

def p3_gemm(a, va, ACC, WF, first_zero, npre, vlane16, so):
    def reads(ks):
        f = WF[ks & 1]; hh, m = ks >> 1, ks & 1
        o = (14*hh + 8*m) * 256
        last = (ks == 15)
        return [f"ds_read_b64_tr_b16 {vr(f,2)}, v{va} offset:{o}",
                f"ds_read_b64_tr_b16 {vr(f+2,2)}, v{va+2 if last else va} offset:{o+1024}",
                f"ds_read_b64_tr_b16 {vr(f+4,2)}, v{va+1} offset:{o}",
                f"ds_read_b64_tr_b16 {vr(f+6,2)}, v{va+3 if last else va+1} offset:{o+1024}"]
    for x in reads(0): a(x)
    issued = npre
    for ks in range(16):
        f = WF[ks & 1]
        rd = reads(ks+1) if ks < 15 else []
        c0 = "0" if (first_zero and ks == 0) else vr(ACC[0], 16)
        c1 = "0" if (first_zero and ks == 0) else vr(ACC[1], 16)
        if issued < 16:
            for x in p3_oload(issued, vlane16, so): a(x)
            issued += 1
        a(f"s_waitcnt vmcnt({issued-1-ks}) lgkmcnt(2)")
        a(f"{MF} {vr(ACC[0],16)}, {vr(f,4)}, {ar(4*ks,4)}, {c0}")
        for x in rd[:2]: a(x)
        a(f"s_waitcnt lgkmcnt({2 if rd else 0})")
        a(f"{MF} {vr(ACC[1],16)}, {vr(f+4,4)}, {ar(4*ks,4)}, {c1}")
        for x in rd[2:]: a(x)

def p3_oloads(a, vlane16, so, n):
    for ks in range(n):
        for x in p3_oload(ks, vlane16, so): a(x)

E = lambda k, d: os.environ.get(k, d)
ROT = 1
XE = int(E("XE", "1"))
PT = E("PT", "0") == "1"
def gen(a):
    kernel_head(a, KN)
    a("s_cmp_ge_u32 s2, 256")
    a("s_cbranch_scc1 L_END")
    a("s_load_dwordx16 s[4:19], s[0:1], 0")
    a("s_load_dwordx4 s[20:23], s[0:1], 64")
    if STAMP or E("DIAGT", ""):
        a("s_memrealtime s[96:97]")
        a("s_memtime s[70:71]")
    if E("PC", "1") == "1":
        a("s_getpc_b64 s[40:41]")
        a.label("L_PC")
        a("s_mov_b32 s42, L_CODE_END-L_PC")
        a("s_mov_b32 s43, 0x20000")
        a("v_lshlrev_b32 v1, 7, v0")
        a("buffer_load_dword a89, v1, s[40:43], 0 offen")
    a("v_lshrrev_b32 v1, 6, v0")
    a("v_and_b32 v0, 63, v0")
    a("v_readfirstlane_b32 s27, v1")
    perm = [int(c) for c in E("PERM", "51274063")]
    a("s_and_b32 s25, s2, 7")
    if perm != list(range(8)):
        a("s_lshl_b32 s64, s25, 2")
        a("s_lshr_b32 s25, 0x%08x, s64" % sum(v << (4*i) for i, v in enumerate(perm)))
        a("s_and_b32 s25, s25, 7")
    a("s_lshr_b32 s24, s2, 4")
    a("s_bfe_u32 s26, s2, 0x10003")
    a("s_lshl_b32 s64, s25, 2")
    a("s_lshr_b32 s91, 0x04152630, s64")
    a("s_and_b32 s91, s91, 7")
    a("s_cmp_ge_u32 s27, 4")
    a("s_cbranch_scc0 L_COMPUTE")
    helper(a)
    compute(a)
    a.label("L_END")
    a("s_endpgm")
    a.label("L_CODE_END")

def decode(a):
    a("s_lshr_b32 s32, s2, 3")
    a("s_lshr_b32 s33, s25, 2")
    a("s_lshr_b32 s34, s24, 2")
    a("s_and_b32 s29, s24, 3")
    a("s_lshl_b32 s28, s25, 1")
    a("s_cmp_eq_u32 s26, s33")
    a("s_addc_u32 s28, s28, 0")
    a("s_mul_i32 s30, s32, 37")
    a("s_lshr_b32 s30, s30, 8")
    a("s_mul_i32 s31, s30, 7")
    a("s_sub_u32 s31, s32, s31")
    a("s_and_b32 s64, s2, 7")
    a("s_lshl_b32 s64, s64, 2")
    a("s_add_u32 s30, s30, s64")

def helper(a):
    if STAMP: a("s_mov_b32 s35, s27")
    a("s_sub_u32 s27, s27, 4")
    a("v_lshrrev_b32 v1, 3, v0")
    a("s_lshl_b32 s64, s24, 2")
    a("s_add_u32 s64, s64, s27")
    a("s_mul_i32 s64, s64, 28672")
    a("v_mul_u32_u24 v1, 896, v1")
    a("v_lshrrev_b32 v2, 4, v0")
    a("v_and_b32 v3, 7, v0")
    a("v_xor_b32 v2, v2, v3")
    a("v_lshlrev_b32 v2, 4, v2")
    a("v_add3_u32 v2, v2, v1, s64")
    a("v_xor_b32 v3, 64, v2")
    a("v_add_u32 v3, 7168, v3")
    a("v_add_u32 v4, 14336, v2")
    a("v_add_u32 v5, 14336, v3")
    a("s_lshl_b32 s66, s27, 12")
    a(f"s_mov_b32 s{SX+2}, 1835008")
    a(f"s_mov_b32 s{SX+3}, 0x20000")
    a("s_mov_b32 s80, s91")
    vm = []
    def xload(c):
        if ROT:
            a(f"s_lshl_b32 s64, s{80+c}, 14")
            a("s_add_u32 s69, s64, s66")
        for q in range(4):
            a(f"s_add_u32 m0, s69, {q*1024}" if ROT else f"s_add_u32 m0, s66, {c*16384 + q*1024}")
            a((f"s_lshl_b32 s64, s{80+c}, 7" if ROT else f"s_mov_b32 s64, {c*128}") if q == 0 else "s_nop 0")
            a(f"buffer_load_dwordx4 v{2+q}, {R(SX)}, s64 offen lds"); vm.append(("x", c))
    def wload(c):
        for pt in range(2):
            for u in range(2):
                a(f"s_add_u32 m0, s67, {(c%3)*16384 + pt*8192 + u*1024}")
                a((f"s_mul_i32 s65, s{80+c}, 172032" if ROT else f"s_mov_b32 s65, {c*172032}") if pt + u == 0 else "s_nop 0")
                a(f"buffer_load_dwordx4 v{6+2*pt+u}, {R(SW)}, s65 offen lds"); vm.append(("w", c))
    def qload(mat, part):
        slot = {(1, 0): 1, (1, 1): 2, (0, 0): 0, (0, 1): 1}[(mat, part)]
        for u in range(3 if part else 4):
            a(f"s_add_u32 m0, s{89 if part else 88}, {slot*16384 + u*1024}")
            a(f"s_mov_b32 s65, {u*43008}")
            a(f"buffer_load_dwordx4 v{10+part}, {R(SWA if mat == 0 else SWB)}, s65 offen lds"); vm.append(("q", mat, part))
    def waitfor(*tags):
        last = max(i for i, tg in enumerate(vm) if tg in tags)
        a(f"s_waitcnt vmcnt({len(vm)-1-last})")
    def patch(part):
        if part: a("s_mov_b32 exec_hi, 0xffff")
        a(f"ds_write_b16 v{15+part}, v{12+part}")
        if part: a("s_mov_b32 exec_hi, -1")
    def initcheck(tag):
        a("v_readfirstlane_b32 s87, v17")
        a("s_nop 0")
        a("s_cmp_lg_u32 s87, 0")
        a(f"s_cbranch_scc1 H_INIT_OK{tag}")
        poll(a, "INIT" + tag, R(SD), "0", 1, 18, 17)
        a("v_readfirstlane_b32 s87, v17")
        a.label(f"H_INIT_OK{tag}")
    a("s_waitcnt lgkmcnt(0)")
    a(f"s_mov_b32 s{SX}, s4")
    a(f"s_mov_b32 s{SX+1}, s5")
    stamp(a, 1, 2); stamp(a, 1, 9)
    xload(0)
    stamp(a, 2, 9)
    dma_lane_w(a, 6, 10, 11, 2688)
    if E("P7", "1") == "1":
        a("v_and_b32 v10, 112, v6")
        a("v_cmp_eq_u32 vcc, 112, v10")
        a("v_subrev_u32 v10, 16, v6")
        a("s_nop 0")
        a("v_cndmask_b32 v6, v6, v10, vcc")
    a("s_mul_i32 s64, s27, 43008")
    a("s_mul_i32 s65, s25, 112")
    a("s_add_u32 s64, s64, s65")
    a("s_add_u32 s64, s64, 896")
    a("v_add_u32 v6, s64, v6")
    a("v_add_u32 v7, 21504, v6")
    a("v_add_u32 v8, 896, v6")
    a("v_add_u32 v9, 896, v7")
    a("s_lshl_b32 s67, s27, 11")
    a(f"s_add_u32 s67, s67, {RING}")
    a(f"s_mov_b32 s{SW+2}, 1204224")
    a(f"s_mov_b32 s{SW+3}, 0x20000")
    a("s_cmp_eq_u32 s26, 0")
    a(f"s_cselect_b32 s{SW}, s6, s12")
    a(f"s_cselect_b32 s{SW+1}, s7, s13")
    wload(0)
    stamp(a, 10, 9)
    for i in range(1, 7):
        a(f"s_add_u32 s{80+i}, s{79+i}, 1")
        a(f"s_cmp_eq_u32 s{80+i}, 7")
        a(f"s_cselect_b32 s{80+i}, 0, s{80+i}")
    xload(1); wload(1)
    for i in range(XE): xload(2+i)
    decode(a)
    srd(a, SWA, 6, 1204224); srd(a, SWB, 12, 1204224)
    srd(a, SWS, 22, WS_SIZE); srd(a, SD, 20, 256); srd(a, SG, 16, 896)
    a("v_lshrrev_b32 v10, 2, v0")
    a("v_mul_u32_u24 v10, 2688, v10")
    a("v_and_b32 v11, 3, v0")
    a("v_lshl_add_u32 v10, v11, 4, v10")
    a("s_mul_i32 s65, s28, 56")
    a("s_mul_i32 s64, s27, 129024")
    a("s_add_u32 s64, s64, s65")
    a(f"s_add_u32 s64, s64, {256*2688}")
    a("v_add_u32 v11, s64, v10")
    a("s_mul_i32 s64, s27, 172032")
    a("s_add_u32 s64, s64, s65")
    a("v_add_u32 v10, s64, v10")
    a("s_lshl_b32 s88, s27, 12")
    a(f"s_add_u32 s88, s88, {RING}")
    a("s_mul_i32 s89, s27, 3072")
    a(f"s_add_u32 s89, s89, {RING}")
    a(f"s_add_u32 s64, s88, {16384 + 56}")
    a("v_lshl_add_u32 v15, v0, 6, s64")
    a(f"s_add_u32 s64, s89, {32768 + 56}")
    a("v_lshl_add_u32 v16, v0, 6, s64")
    a("s_lshl_b32 s64, s27, 7")
    a("v_lshl_add_u32 v14, v0, 1, s64")
    a("s_mul_i32 s64, s27, 96")
    a("s_add_u32 s64, s64, 512")
    a("v_lshl_add_u32 v17, v0, 1, s64")
    a("v_mov_b32 v18, 0")
    stamp(a, 1); stamp(a, 2, 2)
    for c in range(5):
        waitfor(("x", c), ("w", c)); a("s_barrier"); stamp(a, 3+c, 2)
        if c == 0: stamp(a, 2)
        if not XE: xload(c+2)
        wload(c+2)
        if XE and c+2+XE < 7: xload(c+2+XE)
        if c == 1:
            a(f"buffer_load_ushort v12, v14, {R(SG)}, 0 offen"); vm.append(("g", 0))
            a(f"buffer_load_ushort v13, v17, {R(SG)}, 0 offen"); vm.append(("g", 1))
        if c == 3:
            a(f"buffer_load_dword v17, v18, {R(SD)}, 0 offen sc1"); vm.append(("d", 0))
    waitfor(("x",5),("w",5)); a("s_barrier"); stamp(a, 8, 2)
    qload(1, 0)
    def setup2():
        a(f"v_mov_b32 v1, {L_CNT}")
        for i in range(8, 12): a(f"v_mov_b32 v{i}, 0")
        a("ds_write_b128 v1, v[8:11]")
        a("s_nop 1")
        a("v_mov_b32 v9, s87")
        a("ds_write_b128 v1, v[8:11] offset:16")
        a("v_lshlrev_b32 v2, 4, v0")
        dma_lane_w(a, 3, 4, 5, 896)
        a("s_mul_i32 s64, s27, 7168")
        a("s_lshl_b32 s65, s31, 7")
        a("s_add_u32 s64, s64, s65")
        a("v_add_u32 v3, s64, v3")
        a("s_lshr_b32 s65, s27, 1")
        a("s_mul_i32 s64, s65, 28672")
        a("s_lshl_b32 s65, s65, 6")
        p3_addr(a, 4, "s64", "s65", 8, 9)
        srd(a, SWA, 8, 401408); srd(a, SWB, 14, 401408)
        a("s_lshl_b32 s65, s25, 2")
        a("s_add_u32 s65, s65, s27")
        a("s_lshl_b32 s65, s65, 9")
        a(f"s_add_u32 s65, s65, {C_KV}")
        a("v_lshlrev_b32 v10, 7, v0")
        stamp(a, 3)
    waitfor(("x",6),("w",6)); a("s_barrier"); stamp(a, 9, 2)
    a("s_lshl_b32 s64, s25, 4")
    a("s_add_u32 s64, s64, s24")
    a("s_lshl_b32 s64, s64, 7")
    a(f"s_add_u32 s66, s64, {C_KV}")
    initcheck("A")
    qload(1, 1)
    a("s_waitcnt vmcnt(3)"); patch(0)
    a("s_waitcnt vmcnt(0)"); patch(1)
    a("s_waitcnt lgkmcnt(0)")
    a("s_barrier"); stamp(a, 10, 2)
    qload(0, 0)
    a("s_barrier")
    qload(0, 1)
    a("s_xor_b32 s64, s27, 3")
    a("s_xor_b32 s65, s26, 1")
    a("s_or_b32 s90, s64, s65")
    a("s_barrier")
    a("s_cbranch_scc1 H_NOSIGKV")
    signal(a, "s66", 18, 19, 20)
    a.label("H_NOSIGKV")
    if E("ES", "0") == "1": setup2()
    a("s_waitcnt vmcnt(4)")
    a("s_cmp_eq_u32 s90, 0")
    a("s_cbranch_scc1 H_W4")
    a("s_waitcnt vmcnt(3)")
    a.label("H_W4")
    a("s_barrier")
    a("s_waitcnt vmcnt(1)")
    a("s_cbranch_scc1 H_SIGD")
    a("s_waitcnt vmcnt(0)")
    a.label("H_SIGD")
    a("s_barrier")
    if E("ES", "0") == "0": setup2()
    if E("K1", "1") == "1":
        a("s_cmp_eq_u32 s27, 0")
        a("s_cbranch_scc0 H_KVD")
        poll(a, "KV", WSR, "s65", 16, 10, 11, int(E("KS", "2")))
        a.label("H_KVD")
    else: poll(a, "KV", WSR, "s65", 4, 10, 11, int(E("KS", "0")))
    a("s_waitcnt lgkmcnt(0)")
    a("s_barrier")
    a("s_setprio %s" % E("HP", "2"))
    stamp(a, 4); stamp(a, 1, 3); stamp(a, 1, 7)
    PQ, G, KF, NUM, PA = 80, 88, 92, 100, 116
    def wo_dma(tag, srdreg, base, lo, hi, depth):
        if hi <= lo: return
        a("s_lshl_b32 s66, s27, 10")
        a(f"s_add_u32 s66, s66, {base + lo*4096}")
        a(f"s_mov_b32 s63, {lo*28672}")
        a.label(f"H_WO{tag}")
        a("s_mov_b32 m0, s66")
        a("s_add_u32 s66, s66, 4096")
        a(f"buffer_load_dwordx4 v3, {R(srdreg)}, s63 offen lds")
        a("s_add_u32 s63, s63, 28672")
        a(f"s_waitcnt vmcnt({depth})")
        a(f"s_cmp_lt_u32 s63, {hi*28672}")
        a(f"s_cbranch_scc1 H_WO{tag}")
    W1 = int(E("W1", "0"))
    a("s_cmp_ge_u32 s32, 28")
    a("s_cbranch_scc1 H_NOWO0")
    wo_dma("0", SWA, 0, 0, W1, int(E("WOD0", "2")))
    a.label("H_NOWO0")
    if "hskip" in X:
        a("s_branch H_SKIP")
    lds_wait(a, "C0", 1, 8, 4, 9)
    stamp(a, 2, 7)
    a("s_lshl_b32 s64, s27, 11")
    a(f"s_add_u32 s64, s64, {L_PQ}")
    a("v_add_u32 v8, s64, v2")
    a(f"ds_read_b128 {vr(PQ,4)}, v8")
    a(f"ds_read_b128 {vr(PQ+4,4)}, v8 offset:1024")
    a("s_lshl_b32 s64, s27, 8")
    a(f"s_add_u32 s64, s64, {L_G}")
    a("v_lshl_add_u32 v8, v0, 2, s64")
    a(f"ds_read_b32 v{G}, v8")
    a("s_cmp_ge_u32 s27, 2")
    a("s_cselect_b32 s64, s26, 1")
    a("s_cmp_eq_u32 s64, 0")
    a("s_cbranch_scc0 H_NOKVP")
    a("s_and_b32 s65, s27, 1")
    a("s_lshl_b32 s64, s65, 12")
    a(f"s_add_u32 s64, s64, {L_KVD}")
    a("v_add_u32 v8, s64, v2")
    for i in range(8):
        a(f"ds_read_b128 {vr(16+4*i,4)}, v8 offset:{1024*(i&3) + 8192*(i>>2)}")
    a("s_lshl_b32 s64, s25, 1")
    a("s_add_u32 s64, s64, s65")
    a(f"s_mul_i32 s64, s64, {PAD}")
    a("s_lshl_b32 s65, s24, 12")
    a("s_add_u32 s64, s64, s65")
    a(f"s_add_u32 s64, s64, {WS_KVP}")
    a("s_waitcnt lgkmcnt(0)")
    vadd(a, 16, 32, 16)
    for q in range(4):
        a(f"buffer_store_dwordx4 {vr(16+4*q,4)}, v2, {WSR}, s64 offen offset:{1024*q} sc1")
    a("s_lshl_b32 s64, s25, 4")
    a("s_add_u32 s64, s64, s24")
    a("s_lshl_b32 s64, s64, 7")
    a(f"s_add_u32 s64, s64, {C_A}")
    a("v_mov_b32 v11, 1")
    stamp(a, 3, 7)
    a("s_waitcnt vmcnt(0)")
    stamp(a, 4, 7)
    a("s_mov_b64 exec, 1")
    a("ds_add_rtn_u32 v9, v1, v11 offset:12")
    a("s_waitcnt lgkmcnt(0)")
    a("v_readfirstlane_b32 s69, v9")
    a("s_mov_b64 exec, -1")
    a("s_cmp_eq_u32 s69, 1")
    a("s_cbranch_scc0 H_NOKVP")
    signal(a, "s64", 10, 11, 9)
    a.label("H_NOKVP")
    stamp(a, 5, 7)
    lo = lambda: a("s_setprio 0") if PT else None
    hi = lambda: a("s_setprio 2") if PT else None
    lo()
    a("s_cmp_ge_u32 s32, 28")
    a("s_cbranch_scc1 H_NOWOA")
    if "nowo" not in X:
        wo_dma("A", SWA, 0, W1, 14, int(E("WOD", "5")))
        wo_dma("B", SWB, 57344, 0, 14, int(E("WOD", "5")))
    a.label("H_NOWOA")
    stamp(a, 2, 3); stamp(a, 6, 7)
    hi()
    a("s_lshl_b32 s64, s25, 11")
    a(f"s_add_u32 s64, s64, {C_A}")
    if "nopolla" not in X:
        a("s_cmp_eq_u32 s27, 0")
        a("s_cbranch_scc0 H_AW")
        poll(a, "A", WSR, "s64", 16, 10, 11, int(E("AS", "16")))
        a("v_mov_b32 v11, 1")
        a("ds_write_b32 v1, v11 offset:16")
        a("s_branch H_AD")
        a.label("H_AW")
        lds_wait(a, "A", 1, 16, 1, 9, 4)
        a.label("H_AD")
    stamp(a, 3, 3); stamp(a, 7, 7)
    a(f"s_mul_i32 s64, s28, {PAD}")
    a("s_lshl_b32 s65, s27, 10")
    a("s_add_u32 s64, s64, s65")
    a(f"s_add_u32 s64, s64, {WS_KVP}")
    KD = int(E("KD", "2"))
    lo()
    for i in range(16):
        if "nokvl" not in X: a(f"buffer_load_dwordx4 {vr(16+4*i,4)}, v2, {WSR}, s64 offen sc1")
        a("s_add_u32 s64, s64, 4096")
        if i > KD:
            a(f"s_waitcnt vmcnt({KD})")
            hi()
            if "nokva" not in X: vadd(a, 16, 16+4*(i-KD), 4)
            lo()
    stamp(a, 4, 3)
    hi()
    for j in range(16-KD, 16):
        a(f"s_waitcnt vmcnt({15-j})")
        vadd(a, 16, 16+4*j, 4)
    stamp(a, 5, 3)
    if "nofin" in X:
        a("s_branch H_SKIP")
    a("v_cvt_pk_bf16_f32 v16, v16, v17")
    a("v_cvt_pk_bf16_f32 v17, v18, v19")
    a("s_lshr_b32 s64, s27, 1")
    a("s_lshl_b32 s64, s64, 10")
    a("s_and_b32 s65, s27, 1")
    a("s_lshl_b32 s65, s65, 3")
    a("s_add_u32 s64, s64, s65")
    a(f"s_add_u32 s64, s64, {L_KVF}")
    a("v_add_u32 v8, s64, v2")
    a("ds_write_b64 v8, v[16:17]")
    a("v_mov_b32 v11, 1")
    a("s_waitcnt lgkmcnt(0)")
    a("s_mov_b64 exec, 1")
    a("ds_add_u32 v1, v11")
    lds_wait(a, "C1", 1, 0, 4, 9)
    stamp(a, 6, 3)
    a(f"v_add_u32 v8, {L_KVF}, v2")
    a(f"ds_read_b128 {vr(KF,4)}, v8")
    a(f"ds_read_b128 {vr(KF+4,4)}, v8 offset:1024")
    a("s_waitcnt lgkmcnt(0)")
    a(f"{MF} {vr(NUM,16)}, {vr(KF,4)}, {vr(PQ,4)}, 0")
    a(f"{MF} {vr(NUM,16)}, {vr(KF+4,4)}, {vr(PQ+4,4)}, {vr(NUM,16)}")
    a("s_lshl_b32 s64, s24, 2")
    a("s_add_u32 s64, s64, s27")
    a(f"s_mul_i32 s64, s64, {PAD}")
    a("s_lshl_b32 s65, s28, 11")
    a("s_add_u32 s64, s64, s65")
    a(f"s_add_u32 s64, s64, {WS_OF}")
    a(f"v_mov_b32 v{PA+6}, 0")
    a(f"v_mov_b32 v{PA+7}, 0")
    a("s_nop 15")
    a(f"v_mov_b32 v8, v{NUM+12}")
    a(f"v_mov_b32 v9, v{NUM+12}")
    a("s_nop 1")
    a("v_permlane32_swap_b32 v8, v9")
    a(f"v_add_f32 v9, {f32(EPS)}, v9")
    a("v_rcp_f32 v9, v9")
    a("s_nop 0")
    a(f"v_mul_f32 v9, v9, v{G}")
    vmul(a, NUM, "v9", 16)
    cvt(a, PA, NUM, 0, 6)
    a("s_mov_b32 exec_hi, 0")
    cvt(a, PA, NUM, 6, 8)
    a("s_mov_b32 exec_hi, -1")
    a(f"buffer_store_dwordx4 {vr(PA,4)}, v2, {WSR}, s64 offen sc1")
    a(f"buffer_store_dwordx4 {vr(PA+4,4)}, v2, {WSR}, s64 offen offset:1024 sc1")
    stamp(a, 7, 3)
    a("s_waitcnt vmcnt(0)")
    stamp(a, 8, 3)
    a("s_mov_b64 exec, 1")
    a("ds_add_rtn_u32 v9, v1, v11 offset:4")
    a("s_waitcnt lgkmcnt(0)")
    a("v_readfirstlane_b32 s69, v9")
    a("s_mov_b64 exec, -1")
    a("s_cmp_eq_u32 s69, 3")
    a("s_cbranch_scc0 H_NOSIGOA")
    if "hskip" in X or "nofin" in X:
        a.label("H_SKIP")
        a("s_cmp_eq_u32 s27, 0")
        a("s_cbranch_scc0 H_NOSIGOA")
    a("s_lshl_b32 s64, s24, 4")
    a("s_add_u32 s64, s64, s28")
    a("s_lshl_b32 s64, s64, 7")
    a(f"s_add_u32 s64, s64, {C_OA}")
    signal(a, "s64", 10, 11, 9)
    a.label("H_NOSIGOA")
    stamp(a, 5); stamp(a, 9, 3)
    a("s_setprio 0")
    a("s_barrier")
    a("s_cmp_ge_u32 s32, 28")
    a("s_cbranch_scc1 H_NOP3B")
    stamp(a, 6)
    a("s_and_b32 s64, s30, 0xfe")
    a("s_lshr_b32 s65, s27, 1")
    a("s_add_u32 s64, s64, s65")
    a("s_lshl_b32 s64, s64, 10")
    a(f"s_add_u32 s64, s64, {C_OA}")
    a("s_and_b32 s62, s27, 1")
    a("s_lshl_b32 s65, s30, 1")
    a("s_add_u32 s62, s62, s65")
    a(f"s_mul_i32 s62, s62, {PAD}")
    a("s_lshr_b32 s65, s27, 1")
    a("s_lshl_b32 s65, s65, 14")
    a("s_add_u32 s62, s62, s65")
    a(f"s_add_u32 s62, s62, {WS_OF}")
    NE = int(E("NE", "8"))
    a("s_mov_b64 exec, 0xff")
    a(f"buffer_load_dword v11, v10, {WSR}, s64 offen sc1")
    a("s_waitcnt vmcnt(0)")
    a("v_cmp_ne_u32 vcc, s87, v11")
    a("s_mov_b64 exec, -1")
    a("s_cbranch_vccnz H_OALATE")
    p3_oloads(a, 2, "s62", NE)
    a("s_barrier")
    a("s_barrier")
    a("s_branch H_OADONE")
    a.label("H_OALATE")
    a("s_barrier")
    a("s_barrier")
    poll(a, "OA", WSR, "s64", 8, 10, 11, 2)
    p3_oloads(a, 2, "s62", NE)
    a.label("H_OADONE")
    NPRE = 16
    for ks in range(NE, 16):
        for x in p3_oload(ks, 2, "s62"): a(x)
    stamp(a, 7); stamp(a, 10, 3)
    p3_gemm(a, 4, [16, 32], [48, 56], True, NPRE, 2, "s62")
    stamp(a, 8)
    a("s_lshl_b32 s64, s27, 13")
    a(f"s_add_u32 s64, s64, {RING}")
    a("v_add_u32 v8, s64, v2")
    a("s_nop 9")
    for i in range(8):
        a(f"ds_write_b128 v8, {vr(16+4*i,4)} offset:{1024*i}")
    a("s_waitcnt lgkmcnt(0)")
    stamp(a, 9)
    a("s_barrier")
    a("s_branch H_EXIT")
    a.label("H_NOP3B")
    a("s_barrier")
    a("s_barrier")
    a.label("H_EXIT")
    stamp(a, 10)
    stamp_out(a, 11)
    a("s_endpgm")

def compute(a):
    a.label("L_COMPUTE")
    if STAMP: a("s_mov_b32 s35, s27")
    decode(a)
    XA, WA, WB, XQ, WQ = 2, 6, 7, 8, 12
    FR = 16; accK = [64, 80]; accV = [96, 112]; pK = [128, 136]; pV = [144, 152]
    QA, QB = 96, 112
    a("s_waitcnt lgkmcnt(0)")
    if E("DIAGP", "") == "20": stampc(a, 20)
    if E("DIAGP", "") == "21":
        srd(a, SW, 4, 1835008)
        a("s_mul_i32 s60, s24, 114688")
        a("v_lshlrev_b32 v17, 4, v0")
        a(f"buffer_load_dwordx4 v[20:23], v17, {R(SW)}, s60 offen")
        a("s_waitcnt vmcnt(0)")
        stampc(a, 21)
    TW = int(E("TW", "1"))
    if TW:
        a(f"s_cmp_ge_u32 s27, {TW}")
        a("s_cbranch_scc1 C_NTW")
        a("s_cmp_ge_u32 s32, 16")
        a(f"s_cselect_b32 s{SW}, s12, s6")
        a(f"s_cselect_b32 s{SW+1}, s13, s7")
        a(f"s_mov_b32 s{SW+2}, 1204224")
        a(f"s_mov_b32 s{SW+3}, 0x20000")
        a("s_and_b32 s60, s32, 15")
        a("s_mul_i32 s60, s60, 28")
        a("v_lshrrev_b32 v17, 1, v0")
        a("v_add_u32 v17, s60, v17")
        a("v_mul_u32_u24 v17, 2688, v17")
        a("v_and_b32 v16, 1, v0")
        a("v_lshl_add_u32 v17, v16, 7, v17")
        a("s_mul_i32 s60, s25, 112")
        a("s_and_b32 s60, s60, 0xff80")
        a("s_mul_i32 s61, s27, 896")
        a("s_add_u32 s60, s60, s61")
        a("s_mov_b32 exec_hi, 0xffffff")
        a(f"buffer_load_dword a88, v17, {R(SW)}, s60 offen")
        a("s_mov_b64 exec, -1")
        a.label("C_NTW")
    srd(a, SWS, 22, WS_SIZE)
    a("s_xor_b32 s64, s27, 3")
    a("s_xor_b32 s65, s2, 8")
    a("s_or_b32 s64, s65, s64")
    a("s_cmp_eq_u32 s64, 0")
    a("s_cbranch_scc0 C_NOINIT")
    a("s_memrealtime s[64:65]")
    srd(a, SD, 20, 256)
    a("v_mov_b32 v21, 0")
    a("s_waitcnt lgkmcnt(0)")
    a("s_lshl_b32 s64, s64, 1")
    a("s_or_b32 s64, s64, 1")
    a("v_mov_b32 v22, s64")
    a("s_mov_b64 exec, 1")
    a(f"buffer_store_dword v22, v21, {R(SD)}, 0 offen sc1")
    a("s_mov_b64 exec, -1")
    a.label("C_NOINIT")
    a("s_lshr_b32 s92, s27, 1")
    a("s_and_b32 s93, s27, 1")
    a("v_and_b32 v13, 31, v0")
    a("v_lshrrev_b32 v14, 5, v0")
    a("v_bfe_u32 v15, v0, 1, 3")
    a("v_xor_b32 v15, v15, v14")
    a("s_lshl_b32 s64, s92, 13")
    a("v_lshl_add_u32 v1, v13, 7, s64")
    a("s_lshl_b32 s65, s27, 12")
    a("s_sub_u32 s65, s65, s64")
    for ks in range(4):
        a(f"v_xor_b32 v{XA+ks}, {2*ks}, v15")
        a(f"v_lshl_add_u32 v{XA+ks}, v{XA+ks}, 4, v1")
        a(f"v_add_u32 v{XQ+ks}, s65, v{XA+ks}")
    a("s_mul_i32 s64, s93, 56")
    a(f"v_mov_b32 v{WA}, s64")
    tr_lane_addr(a, WB, WA, 1, 15, 2)
    a(f"v_add_u32 v{WB}, {RING}, v{WB}")
    a(f"v_mov_b32 v{WA}, v{WB}")
    a("v_bfe_u32 v1, v0, 2, 2")
    a("v_lshl_add_u32 v1, v14, 3, v1")
    a("v_lshlrev_b32 v1, 1, v1")
    a("v_bfe_u32 v15, v0, 4, 1")
    a("v_add_u32 v1, v1, v15")
    a("v_lshlrev_b32 v1, 2, v1")
    a("v_and_b32 v15, 3, v0")
    a("v_add_u32 v1, v1, v15")
    a("v_lshlrev_b32 v1, 3, v1")
    a(f"v_add_u32 v{WQ}, {RING}, v1")
    a("v_cmp_eq_u32 vcc, 28, v13")
    a(f"v_mov_b32 v1, {ONE2}")
    a("s_nop 0")
    a("v_cndmask_b32 v15, 0, v1, vcc")
    for s in range(2):
        for i in range(8):
            a(f"v_mov_b32 v{pV[s]+i}, v15")
    a("s_mov_b32 s56, 0x0fffffff")
    a("s_mov_b32 s57, 0x0fffffff")
    a(f"s_mov_b32 s64, {f32(LOG2E)}")
    a(f"s_mov_b32 s65, {f32(QSCALE)}")
    a(f"s_mov_b32 s66, {f32(EPS)}")
    for i in range(32):
        a(f"v_mov_b32 v{accV[0]+i}, 0")
    a("v_lshlrev_b32 v13, 4, v0")
    a("s_cmp_eq_u32 s26, 0")
    a("s_cbranch_scc1 C_A")

    def scalars():
        for s in range(4):
            a(f"s_add_u32 s60, s27, {1+s}")
            a("s_and_b32 s60, s60, 3")
            a(f"s_lshl_b32 s{36+s}, s60, 11")
            a(f"s_add_u32 s{36+s}, s{36+s}, {L_QD}")
            a(f"s_mul_i32 s{40+s}, s60, 12288")
            a(f"s_add_u32 s{40+s}, s{40+s}, {RING + (4096*s if s < 3 else 0)}")
        a(f"s_mul_i32 s44, s28, {4*PAD}")
        a(f"s_mul_i32 s45, s27, {PAD}")
        a("s_add_u32 s45, s45, s44")
        a("s_lshl_b32 s46, s24, 2")
        a("s_add_u32 s46, s46, s27")
        a(f"s_mul_i32 s46, s46, {PAD}")
        a("s_lshl_b32 s60, s28, 11")
        a("s_add_u32 s46, s46, s60")
        a(f"s_add_u32 s46, s46, {WS_OF + 32768}")
        a("s_lshl_b32 s47, s27, 12")
        a(f"s_add_u32 s47, s47, {L_KVD}")
        a("s_lshl_b32 s48, s27, 8")
        a(f"s_add_u32 s48, s48, {L_G}")
    def reads(buf, ks):
        f = FR + 16*buf
        return [f"ds_read_b128 {vr(f,4)}, v{XA+ks}",
                f"ds_read_b64_tr_b16 {vr(f+8,2)}, v{WA} offset:{ks*2048}",
                f"ds_read_b64_tr_b16 {vr(f+10,2)}, v{WA} offset:{ks*2048+512}",
                f"ds_read_b128 {vr(f+4,4)}, v{XA+ks} offset:4096",
                f"ds_read_b64_tr_b16 {vr(f+12,2)}, v{WA} offset:{8192+ks*2048}",
                f"ds_read_b64_tr_b16 {vr(f+14,2)}, v{WA} offset:{8192+ks*2048+512}"]
    def mfmas(buf, kT):
        f = FR + 16*buf
        Xf = [vr(f, 4), vr(f+4, 4)]; Wk, Wv = vr(f+8, 4), vr(f+12, 4)
        m = []
        for s in range(2): m.append(f"{MF} {vr(accV[s],16)}, {Xf[s]}, {Wk}, {vr(accV[s],16)}")
        for s in range(2):
            if kT: m.append(f"{MF} {vr(accK[s],16)}, {Wv}, {Xf[s]}, {vr(accK[s],16)}")
            else:  m.append(f"{MF} {vr(accK[s],16)}, {Xf[s]}, {Wv}, {vr(accK[s],16)}")
        return m
    def mainloop(tag, kT):
        a("s_mov_b32 s60, 0")
        a("s_mov_b32 s61, 0")
        if ROT:
            a("s_mov_b32 s49, 16384")
            a("s_lshl_b32 s62, s91, 14")
            for ks in range(4): a(f"v_add_u32 v{XA+ks}, s62, v{XA+ks}")
            a("s_cmp_eq_u32 s91, 6")
            a("s_cselect_b32 s62, 0xfffe8000, s49")
        if STAMP not in (4, 8): stampc(a, 1)
        a("s_barrier")
        if STAMP not in (4, 8): stampc(a, 2)
        for r in reads(0, 0): a(r)
        a(".p2align 6")
        a.label(f"C_{tag}_LOOP")
        for ks in range(4):
            m = mfmas(ks & 1, kT); r = reads((ks+1) & 1, (ks+1) & 3)
            if ks < 3:
                a("s_waitcnt lgkmcnt(3)"); a(m[0]); a(r[0]); a(r[1]); a(r[2])
                a("s_waitcnt lgkmcnt(5)"); a(m[1]); a(r[3]); a(r[4]); a(r[5])
                a("s_waitcnt lgkmcnt(6)"); a(m[2])
                a(f"v_add_u32 v{XA+ks}, {'s62' if ROT else 16384}, v{XA+ks}")
                if ks == 2:
                    a("s_add_u32 s60, s60, 1")
                    a("s_add_u32 s61, s61, 16384")
                    a("s_cmp_eq_u32 s61, 49152")
                    a("s_cselect_b32 s61, 0, s61")
                a(m[3])
            else:
                a(f"v_add_u32 v{WA}, s61, v{WB}")
                a("s_cmp_eq_u32 s60, 7")
                a("s_waitcnt lgkmcnt(0)")
                a(f"s_cbranch_scc1 C_{tag}_TAIL")
                a("s_barrier")
                a(m[0]); a(r[0]); a(r[1]); a(r[2])
                a(m[1]); a(r[3]); a(r[4]); a(r[5])
                a(m[2])
                a(f"v_add_u32 v{XA+3}, {'s62' if ROT else 16384}, v{XA+3}")
                if ROT:
                    a("s_add_u32 s63, s60, s91")
                    a("s_cmp_eq_u32 s63, 6")
                    a("s_cselect_b32 s62, 0xfffe8000, s49")
                a(m[3])
                a(f"s_branch C_{tag}_LOOP")
                a.label(f"C_{tag}_TAIL")
                for x in m: a(x)
        if STAMP != 8: stampc(a, 3)
        if "nords" in X or "nomf" in X:
            i0 = max(i for i, l in enumerate(a.lines) if l.startswith(f"C_{tag}_LOOP"))
            for i in range(i0, len(a.lines)):
                l = a.lines[i].strip()
                if "nords" in X and l.startswith("ds_read"): a.lines[i] = "    s_nop 0"
                if "nomf" in X and l.startswith("v_mfma"): a.lines[i] = "    s_nop 7"
    _reads = reads
    def reads(buf, ks):
        r = _reads(buf, ks)
        f = FR + 16*buf
        r[1] = f"ds_read_b64_tr_b16 {vr(f+8,2)}, v{WA} offset:{8192+ks*2048}"
        r[2] = f"ds_read_b64_tr_b16 {vr(f+10,2)}, v{WA} offset:{8192+ks*2048+512}"
        r[4] = f"ds_read_b64_tr_b16 {vr(f+12,2)}, v{WA} offset:{ks*2048}"
        r[5] = f"ds_read_b64_tr_b16 {vr(f+14,2)}, v{WA} offset:{ks*2048+512}"
        return r
    def cvt_v():
        a("s_nop 9")
        a("s_mov_b64 exec, s[56:57]")
        for s in range(2): cvt(a, pV[s], accV[s])
        a("s_mov_b64 exec, -1")
    def qpass(mat, acc, c0, bars):
        def qreads(k):
            f = FR + 8*(k % 4)
            slot = {(1, 0): 1, (1, 1): 2, (0, 0): 0, (0, 1): 1}[(mat, k >> 4)]
            o = slot*16384 + (k & 15)*1024
            xr = (XQ if k < 16 else XA) + (k & 3)
            return [f"ds_read_b128 {vr(f,4)}, v{xr} offset:{((k >> 2) & 3)*16384}",
                    f"ds_read_b64_tr_b16 {vr(f+4,2)}, v{WQ} offset:{o}",
                    f"ds_read_b64_tr_b16 {vr(f+6,2)}, v{WQ} offset:{o+256}"]
        for k in range(3):
            for r in qreads(k): a(r)
        for k in range(28):
            f = FR + 8*(k % 4)
            for x in bars.get(k+3, []): a(x)
            a(f"s_waitcnt lgkmcnt({3*min(2, 27-k)})")
            a(f"{MF} {vr(acc,16)}, {vr(f+4,4)}, {vr(f,4)}, {c0 if k == 0 else vr(acc,16)}")
            if k+3 < 28:
                for x in qreads(k+3): a(x)
    def phase1b(late):
        for i in range(4): a(f"v_add_u32 v{XA+i}, 65536, v{XQ+i}")
        if STAMP != 8: stampc(a, 4)
        a("s_barrier")
        if STAMP == 6: stampc(a, 15)
        bars = {20: ["s_barrier"]}
        if late: bars[16] = ["s_waitcnt vmcnt(0)", "s_barrier", "s_barrier"]
        qpass(1, QB, "0", bars)
        if STAMP == 6: stampc(a, 9)
        a("v_add_u32 v1, s39, v13")
        a("s_waitcnt vmcnt(0)")
        a("s_barrier")
        if STAMP == 6: stampc(a, 10)
        a("v_mov_b32 v54, 0")
        a("v_mov_b32 v55, 0")
        a("s_nop 7")
        a(f"v_mov_b32 v14, v{QB+12}")
        a(f"v_mov_b32 v15, v{QB+12}")
        vmul(a, QB, "s65", 8)
        a("v_permlane32_swap_b32 v15, v14")
        cvt(a, 48, QB, 0, 4)
        a("ds_write_b128 v1, v[48:51]")
        vmul(a, QB+8, "s65", 8)
        cvt(a, 48, QB, 4, 6)
        a("s_mov_b32 exec_hi, 0")
        cvt(a, 48, QB, 6, 8)
        a("s_mov_b32 exec_hi, -1")
        a("ds_write_b128 v1, v[52:55] offset:1024")
        if STAMP == 6: stampc(a, 11)
        a("s_waitcnt lgkmcnt(0)")
        a("s_barrier")
        if STAMP == 6: stampc(a, 12)
        qpass(0, QA, "1.0", {16: ["s_barrier"]})
        if STAMP != 8: stampc(a, 5)
    def defer_q(a, mats):
        PP = QB + 8
        w = [f"v_mul_f32 v14, {f32(-LOG2E)}, v14", "v_exp_f32 v14, v14", f"v_mov_b32 v{PP+6}, 0", f"v_mov_b32 v{PP+7}, 0",
             "v_add_f32 v14, 1.0, v14", "v_rcp_f32 v14, v14"] + phi_list(QA, QB)
        for i, x in enumerate(w):
            if mats and i % 7 == 0: a(mats.pop(0))
            a(x)
        for x in mats: a(x)
        cvt(a, PP, QA, 0, 6)
        a("s_mov_b32 exec_hi, 0")
        cvt(a, PP, QA, 6, 8)
        a("s_mov_b32 exec_hi, -1")
        a(f"ds_write_b128 v1, {vr(PP,4)} offset:8192")
        a(f"ds_write_b128 v1, {vr(PP+4,4)} offset:9216")
        a("v_lshl_add_u32 v15, v0, 2, s48")
        a("ds_write_b32 v15, v14")
        a("v_sub_f32 v14, 1.0, v14")
    O = [16, 32, 48, 64]; S = [80, 96, 112, 128]; Q = [0, 8, 16, 24]; KV = [32, 48, 64, 80]
    RA = 144
    def ld(dst, off, v="v1", so="s58"):
        return f"buffer_load_dwordx4 {ar(dst,4)}, {v}, {WSR}, {so} offen" + (f" offset:{off}" if off else "") + " sc1"
    adv = ["s_add_u32 s58, s58, 4096"]
    ZR = ar(KV[3]+12, 4)
    zero = lambda d: f"{MF} {vr(d,16)}, {ZR}, {ZR}, 0"
    def pre(a):
        for i in range(4): a(f"v_accvgpr_write_b32 a{KV[3]+12+i}, 0")
        a("v_add_u32 v4, s44, v13")
        a(f"v_mov_b32 v5, {L_CNT}")
        a("v_mov_b32 v6, 1")
    def first_loads(work):
        if STAMP != 8: stampc(a, 7)
        a("v_add_u32 v7, s45, v13")
        a("s_mov_b32 s58, 4096")
        a("s_mov_b32 s59, 8192")
        for f in range(4):
            a(ld(KV[0]+4*f, 1024*f, "v7", "0"))
            a(f"v_add_u32 v{8+f}, s{36+f}, v13")
            a(f"ds_read_b128 {ar(Q[f],4)}, v{8+f}")
            a(f"ds_read_b128 {ar(Q[f]+4,4)}, v{8+f} offset:1024")
        sub = Asm(); work(sub)
        lines = sub.lines
        rest = [ld(KV[n]+4*f, 1024*f, "v7", f"s{57+n}") for n in (1, 2) for f in range(4)]
        gap = int(E("LG", "8")); full = True
        for i, l in enumerate(lines):
            a.lines.append(l)
            if "exec" in l and l.strip().startswith("s_mov"): full = l.strip().endswith("-1")
            if rest and full and i % gap == gap - 1: a(rest.pop(0))
        for x in rest: a(x)
        a("s_mov_b32 s58, 12288")

    for i in range(32): a(f"v_mov_b32 v{accK[0]+i}, 0")
    for s in range(2):
        a(f"v_mov_b32 v{pK[s]+6}, v1"); a(f"v_mov_b32 v{pK[s]+7}, v1")
    a("v_and_b32 v15, 0x33, v0")
    a("v_bfe_u32 v1, v0, 2, 1")
    a("v_lshl_add_u32 v15, v1, 3, v15")
    a("v_bfe_u32 v1, v0, 3, 1")
    a("v_lshl_add_u32 v15, v1, 2, v15")
    a("v_lshlrev_b32 v15, 4, v15")
    a("s_lshl_b32 s58, s25, 1")
    a("s_add_u32 s58, s58, s93")
    a("s_lshl_b32 s58, s58, 2")
    a("s_add_u32 s58, s58, s34")
    a(f"s_mul_i32 s58, s58, {PAD}")
    a("s_lshl_b32 s59, s29, 1")
    a("s_add_u32 s59, s59, s92")
    a("s_lshl_b32 s59, s59, 13")
    a("s_add_u32 s58, s58, s59")
    a("s_add_u32 s59, s58, 4096")
    scalars()
    mainloop("B", True)
    cvt_v()
    st = []
    for s in range(2):
        st.append(f"buffer_store_dwordx4 {vr(pV[s],4)}, v13, {WSR}, s{58+s} offen offset:2048 sc1")
        st.append(f"buffer_store_dwordx4 {vr(pV[s]+4,4)}, v13, {WSR}, s{58+s} offen offset:3072 sc1")
    for s in range(2):
        st.append(f"buffer_store_dwordx4 {vr(pK[s],4)}, v15, {WSR}, s{58+s} offen sc1")
        st.append(f"buffer_store_dwordx4 {vr(pK[s]+4,4)}, v15, {WSR}, s{58+s} offen offset:1024 sc1")
    if "plainkv" in X: st = [x.replace(" sc1", "") for x in st]
    for x in st[:4]: a(x)
    for s in range(2):
        cvt(a, pK[s], accK[s], 0, 6)
        a("s_mov_b32 exec_hi, 0")
        cvt(a, pK[s], accK[s], 6, 8)
        a("s_mov_b32 exec_hi, -1")
        for x in st[4+2*s:6+2*s]: a(x)
    phase1b(False)
    DPRE = E("DPRE", "0") == "1"
    def workB(a):
        a("s_nop 7")
        pre(a)
        defer_q(a, [zero(d) for d in O + [S[3]]])
    if DPRE: workB(a)
    a("s_waitcnt lgkmcnt(0)")
    if STAMP != 8: stampc(a, 6)
    a("s_barrier")
    first_loads((lambda a: None) if DPRE else workB)
    a("s_branch C_2")

    a.label("C_A")
    for i in range(32): a(f"v_mov_b32 v{accK[0]+i}, 1.0")
    for s in range(2):
        for i in range(8): a(f"v_mov_b32 v{pK[s]+i}, 0")
    scalars()
    mainloop("A", False)
    cvt_v()
    pend = phi_list(accK[0], 52) + phi_list(accK[1], 52)
    phase1b(False)
    D = accK[1]
    APRE = int(E("APRE", "1"))
    kvm = [f"{MF} {vr(D,16)}, {vr(pK[0],4)}, {vr(pV[0],4)}, 0",
           f"{MF} {vr(D,16)}, {vr(pK[0]+4,4)}, {vr(pV[0]+4,4)}, {vr(D,16)}",
           f"{MF} {vr(D,16)}, {vr(pK[1],4)}, {vr(pV[1],4)}, {vr(D,16)}",
           f"{MF} {vr(D,16)}, {vr(pK[1]+4,4)}, {vr(pV[1]+4,4)}, {vr(D,16)}"]
    def part1(a):
        for x in pend: a(x)
        a("s_mov_b64 exec, s[56:57]")
        for s in range(2): cvt(a, pK[s], accK[s])
        a("s_mov_b64 exec, -1")
        a("s_nop 1")
    def part2(a):
        pre(a)
        defer_q(a, kvm + [zero(d) for d in O + [S[3]]])
        a("v_add_u32 v15, s47, v13")
        for q in range(4):
            a(f"ds_write_b128 v15, {vr(D+4*q,4)} offset:{1024*q}")
    if APRE >= 1: part1(a)
    if DPRE: part2(a)
    a("s_waitcnt lgkmcnt(0)")
    if STAMP != 8: stampc(a, 6)
    a("s_barrier")
    def workA(a):
        if APRE < 1: part1(a)
        if not DPRE: part2(a)
    first_loads(workA)

    a.label("C_2")
    if PT: a("s_setprio 1")
    a("v_mov_b32 v2, 0xdddd")
    a("v_mov_b32 v3, 0")
    a("v_mov_b32 v1, v7")
    a("s_mov_b32 s59, 3")
    for s in range(4): a(f"v_add_u32 v{RA+s}, s{40+s}, v13")
    a("s_waitcnt vmcnt(10) lgkmcnt(0)")
    stampc(a, 8)
    a("s_mov_b64 exec, 1")
    a("ds_add_u32 v5, v6 offset:8")
    a("ds_read_b32 v6, v5 offset:20")
    a("s_mov_b64 exec, -1")
    a(f"{MF} {vr(S[0],16)}, {ar(KV[0],4)}, {ar(Q[0],4)}, 0")
    a(f"{MF} {vr(S[0],16)}, {ar(KV[0]+4,4)}, {ar(Q[0]+4,4)}, {vr(S[0],16)}")
    a("s_waitcnt vmcnt(8) lgkmcnt(0)")
    a("v_readfirstlane_b32 s87, v6")
    a("s_nop 8")
    if E("STG", ""):
        for i in range(1, 4):
            a(f"s_cmp_ge_u32 s27, {i}")
            a("s_cbranch_scc0 C_STG")
            a("s_nop %s" % E("STG", ""))
        a.label("C_STG")
    def unit(pos, cur, nxt, prv, slot):
        sc = S[pos & 3]; sn = S[(pos+1) & 3]; sp = S[(pos-1) & 3]
        e = [f"v_exp_f32 v{sc+i}, v{sc+i}" for i in range(16)]
        if nxt: a(f"{MF} {vr(sn,16)}, {ar(KV[nxt[0]],4)}, {ar(Q[nxt[1]],4)}, 0")
        for x in slot[0]: a(x)
        for x in e[0:4]: a(x)
        a(f"{SM} {vr(O[prv[1]],16)}, {ar(KV[prv[0]]+12,4)}, {vr(sp+8,8)}, v2")
        for x in slot[1]: a(x)
        for x in e[4:8]: a(x)
        if nxt: a(f"{MF} {vr(sn,16)}, {ar(KV[nxt[0]]+4,4)}, {ar(Q[nxt[1]]+4,4)}, {vr(sn,16)}")
        for x in slot[2]: a(x)
        for x in e[8:12]: a(x)
        a(f"{SM} {vr(O[cur[1]],16)}, {ar(KV[cur[0]]+8,4)}, {vr(sc,8)}, v2")
        for x in slot[3]: a(x)
        if nxt:
            for _ in range(2 - min(2, len(slot[2]) + len(slot[3]))): a("s_nop 0")
        for x in e[12:16]: a(x)
    LP = int(E("LP", "2"))
    ER = E("ER", "0") == "1"
    PB = S[1] if ER else 16
    FW = int(E("FW", "2"))
    def plain(n, s):
        slot = [[], [], [], []]
        slot[2].append("s_nop 0" if "nold" in X else ld(KV[(n+3) & 3] + 4*s, 1024*s).replace(" sc1", "" if "plain" in X else " sc1"))
        if s == 3: slot[3] += adv
        if not FW:
            if s == 2: slot[3].append("s_waitcnt vmcnt(7)")
        elif FW == 2:
            if s == 2: slot[3].append("s_waitcnt vmcnt(9)")
            if s == 0: slot[1].append("s_waitcnt vmcnt(8)")
        else:
            if s == 2: slot[3].append("s_waitcnt vmcnt(10)")
            if s == 3: slot[1].append("s_waitcnt vmcnt(9)")
            if s == 0: slot[1].append("s_waitcnt vmcnt(9)")
            if s == 1: slot[0].append("s_waitcnt vmcnt(9)")
        return slot
    a(".p2align 6")
    a.label("C_ATT")
    for n in range(4):
        for s in range(4):
            slot = plain(n, s)
            if n == 3 and s == 1: slot[3].append("s_sub_u32 s59, s59, 1")
            if n == 3 and s == 3: slot[3].append("s_cmp_lg_u32 s59, 0")
            unit(s, (n, s), ((n + (s == 3)) & 3, (s+1) & 3), ((n - (s == 0)) & 3, (s-1) & 3), slot)
    a("s_cbranch_scc1 C_ATT")
    seq = [(0, s) for s in range(4)] + [(1, s) for s in range(4)] + [(n, s) for s in range(4) for n in (2, 3)]
    for i, cur in enumerate(seq):
        nxt = seq[i+1] if i < 15 else None
        prv = seq[i-1] if i > 0 else (3, 3)
        slot = plain(*cur) if i < 4 else [[], [], [], []]
        if not FW:
            if i == 6: slot[3].append("s_waitcnt vmcnt(0)")
        else:
            w = {4: (1, 8), 6: (3, 6), 7: (3, 2), 9: (1, 0)}.get(i) if FW == 2 else {4: (1, 9), 5: (0, 8), 6: (3, 6), 7: (3, 2), 9: (1, 1), 10: (0, 0)}.get(i)
            if w: slot[w[0]].append(f"s_waitcnt vmcnt({w[1]})")
        wr = lambda s_, q: f"ds_write_b128 v{RA+s_}, {vr(O[s_]+4*q,4)} offset:{1024*q}"
        if ER:
            plan = {11: {0: (0, 0), 2: (0, 1)}, 12: {0: (0, 2), 2: (0, 3)}, 13: {0: (1, 0), 1: (1, 1), 2: (1, 2), 3: (1, 3)},
                    15: {0: (2, 0)}}
            for sl, (s_, q) in plan.get(i, {}).items(): slot[sl].append(wr(s_, q))
            if i == 14: tail4 = [wr(2, 0), wr(2, 1)]
            if i == 15:
                slot[0] = [wr(2, 2), wr(2, 3)]
                slot[2] = ["s_waitcnt lgkmcnt(0)", "s_barrier"] + \
                          [f"ds_read_b128 {vr(O[0]+4*k,4)}, v{RA+3} offset:{1024*((k % 3)*4 + k // 3)}" for k in range(6)]
                slot[3] = [f"ds_read_b128 {vr(O[0]+4*k,4)}, v{RA+3} offset:{1024*((k % 3)*4 + k // 3)}" for k in range(6, 12)]
        else:
            for first, s_ in ((11, 0), (13, 1)):
                if i in (first, first+1):
                    for q in range(2):
                        slot[1 + 2*q].append(wr(s_, 2*(i - first) + q))
            if i == 15:
                for q in range(4): slot[q].append(wr(2, q))
        unit(i, cur, nxt, prv, slot)
        if ER and i == 14:
            for x in tail4: a(x)
        if i == int(E("XP", "10")):
            if STAMP == 4: stampc(a, 1)
            a("s_barrier")
            if STAMP == 4: stampc(a, 2)
    a("s_setprio 1")
    a(f"v_mov_b32 v{PB+6}, 0")
    a(f"{SM} {vr(O[3],16)}, {ar(KV[3]+12,4)}, {vr(S[3]+8,8)}, v2")
    a(f"v_mov_b32 v{PB+7}, 0")
    a(f"s_mov_b32 s62, {f32(2.0**-60)}")
    a(f"s_mov_b32 s63, {f32(2.0**120)}")
    RB = O[0] if ER else S[0]
    if not ER:
        a("s_waitcnt lgkmcnt(0)")
        a("s_barrier")
    if STAMP != 6: stampc(a, 9)
    if not ER:
        for i in range(12):
            a(f"ds_read_b128 {vr(RB+4*i,4)}, v{RA+3} offset:{1024*((i % 3)*4 + i // 3)}")
    for q in range(4):
        a(f"s_waitcnt lgkmcnt({9-3*q})")
        b = RB + 12*q
        vadd(a, b, b+4, 4)
        vadd(a, b, b+8, 4)
    for q in range(4):
        vadd(a, O[3]+4*(3-q), RB+12*(3-q), 4)
    if STAMP == 8: stampc(a, 1)
    a(f"v_mov_b32 v6, v{O[3]+12}")
    a(f"v_mov_b32 v7, v{O[3]+12}")
    a(f"v_maximum3_f32 v8, abs(v{O[3]+12}), abs(v{O[3]+13}), abs(v{O[3]+14})")
    a(f"v_maximum3_f32 v9, abs(v{O[3]+15}), abs(v{O[3]+8}), abs(v{O[3]+9})")
    a("v_permlane32_swap_b32 v6, v7")
    for i, (x, y) in enumerate(((10, 11), (4, 5), (6, 7), (0, 1), (2, 3))):
        a(f"v_maximum3_f32 v{8+(i&1)}, v{8+(i&1)}, abs(v{O[3]+x}), abs(v{O[3]+y})")
    a("v_cmp_nge_f32 vcc, v7, s62")
    a("v_maximum3_f32 v8, v8, v9, v9")
    a("v_rcp_f32 v7, v7")
    a("v_cmp_nlt_f32 s[64:65], v8, s63")
    a("s_or_b64 vcc, vcc, s[64:65]")
    a("s_cbranch_scc1 C_FALLBACK")
    a.label("C_FIN")
    if STAMP == 8: stampc(a, 2)
    a(f"v_mov_b32 v5, {RING + 49152 - 16}")
    a("s_cmp_eq_u32 s27, 3")
    a("s_cbranch_scc0 C_NOCLR")
    a("ds_write_b32 v5, v3")
    a.label("C_NOCLR")
    a("v_mul_f32 v7, v7, v14")
    vmul(a, O[3], "v7", 8)
    cvt(a, PB, O[3], 0, 4)
    a(f"buffer_store_dwordx4 {vr(PB,4)}, v13, {WSR}, s46 offen sc1")
    vmul(a, O[3]+8, "v7", 8)
    cvt(a, PB, O[3], 4, 6)
    a("s_mov_b32 exec_hi, 0")
    cvt(a, PB, O[3], 6, 8)
    a("s_mov_b32 exec_hi, -1")
    a(f"buffer_store_dwordx4 {vr(PB+4,4)}, v13, {WSR}, s46 offen offset:1024 sc1")
    if STAMP == 8: stampc(a, 3)
    a("s_waitcnt lgkmcnt(0)")
    a("s_barrier")
    if STAMP != 6: stampc(a, 10)
    a("s_mul_i32 s60, s92, 28672")
    a("s_add_u32 s60, s60, 57344")
    a("s_lshl_b32 s61, s92, 6")
    a("v_mov_b32 v1, v5")
    p3_addr(a, 4, "s60", "s61", 8, 9)
    a("s_lshl_b32 s60, s27, 13")
    a(f"s_add_u32 s60, s60, {RING}")
    a("v_add_u32 v8, s60, v13")
    a("s_lshl_b32 s60, s27, 12")
    a(f"s_add_u32 s60, s60, {RING + 32768}")
    a("v_add_u32 v9, s60, v13")
    a("v_xor_b32 v10, 8192, v9")
    a("s_lshl_b32 s60, s30, 1")
    a("s_add_u32 s60, s60, s93")
    if E("TS", "1") == "1":
        a("v_and_b32 v11, 31, v0")
        a("v_lshrrev_b32 v12, 5, v0")
        a("s_lshl_b32 s61, s92, 2")
        a("v_add_u32 v12, s61, v12")
        a("v_and_b32 v15, 7, v0")
        a("v_xor_b32 v12, v12, v15")
        a("s_lshl_b32 s61, s93, 12")
        a(f"s_add_u32 s61, s61, {RING}")
        a("v_lshl_add_u32 v11, v11, 7, s61")
        a("v_lshl_add_u32 v11, v12, 4, v11")
        a("v_xor_b32 v2, 32, v11")
        a("v_lshrrev_b32 v12, 3, v0")
        a("v_xor_b32 v15, v15, v12")
        a("s_lshl_b32 s61, s30, 6")
        a("s_lshl_b32 s63, s27, 4")
        a("s_add_u32 s61, s61, s63")
        a("v_add_u32 v12, s61, v12")
        a("v_mul_u32_u24 v12, 896, v12")
        a("v_lshl_add_u32 v15, v15, 4, v12")
    else:
        a("v_and_b32 v11, 31, v0")
        a("s_lshl_b32 s61, s60, 5")
        a("v_add_u32 v11, s61, v11")
        a("v_mul_u32_u24 v11, 896, v11")
        a("v_lshrrev_b32 v12, 5, v0")
        a("v_lshl_add_u32 v11, v12, 4, v11")
    a(f"s_mul_i32 s60, s60, {PAD}")
    a("s_lshl_b32 s61, s92, 14")
    a("s_add_u32 s60, s60, s61")
    a(f"s_add_u32 s60, s60, {WS_OF + 32768}")
    a("s_and_b32 s61, s30, 0xfe")
    a("s_lshl_b32 s61, s61, 10")
    a(f"s_add_u32 s61, s61, {C_OB}")
    a("s_lshl_b32 s62, s31, 7")
    if E("TS", "1") == "1":
        a("s_add_u32 s63, s62, 7168")
    else:
        a("s_lshl_b32 s63, s92, 6")
        a("s_add_u32 s62, s62, s63")
    srd(a, SX, 18, 1835008)
    a("s_lshl_b32 s64, s24, 4")
    a("s_add_u32 s64, s64, s28")
    a("s_lshl_b32 s64, s64, 7")
    a(f"s_add_u32 s64, s64, {C_OB}")
    a("v_mov_b32 v12, 1")
    a("s_mov_b64 exec, 1")
    a("s_waitcnt vmcnt(0)")
    a("ds_add_rtn_u32 v14, v1, v12")
    a("s_waitcnt lgkmcnt(0)")
    a("v_readfirstlane_b32 s69, v14")
    a("s_nop 0")
    a("s_cmp_eq_u32 s69, 3")
    a("s_mov_b64 exec, -1")
    a("s_cbranch_scc0 C_NOSIG")
    signal(a, "s64", 3, 12, 14)
    a.label("C_NOSIG")
    a("s_mov_b64 exec, -1")
    if STAMP != 6: stampc(a, 11)
    a("s_cmp_ge_u32 s32, 28")
    a("s_cbranch_scc1 C_EXIT")
    NPRE = int(E("NPRE", "10"))
    a("v_lshlrev_b32 v14, 7, v0")
    if E("OW", "0") == "1":
        a("s_lshl_b32 s64, s92, 10")
        a("s_add_u32 s61, s61, s64")
        poll(a, "OB", WSR, "s61", 8, 14, 12, int(E("OBS", "1")), False)
        if STAMP != 6: stampc(a, 12)
        p3_oloads(a, 13, "s60", NPRE)
        a("s_barrier")
    else:
        a("s_cmp_eq_u32 s27, 0")
        a("s_cbranch_scc0 C_OBD")
        poll(a, "OB", WSR, "s61", 16, 14, 12, int(E("OBS", "1")), False)
        a.label("C_OBD")
        a("s_barrier")
        if STAMP != 6: stampc(a, 12)
        p3_oloads(a, 13, "s60", NPRE)
    for i in range(8):
        a(f"ds_read_b128 {vr(16+4*i,4)}, v8 offset:{1024*i}")
    p3_gemm(a, 4, [16, 32], [48, 56], False, NPRE, 13, "s60")
    if STAMP != 6: stampc(a, 13)
    a("v_mov_b32 v12, v2")
    a("s_lshl_b32 s64, s27, 11")
    a(f"s_add_u32 s64, s64, {RING}")
    a("v_add_u32 v14, s64, v13")
    a("s_nop 7")
    for i in range(4):
        a(f"ds_write_b128 v9, {vr(32+4*i,4)} offset:{1024*i}")
    a("s_waitcnt lgkmcnt(0)")
    if STAMP == 8: stampc(a, 4)
    a("s_barrier")
    if STAMP == 8: stampc(a, 5)
    for i in range(4):
        a(f"ds_read_b128 {vr(32+4*i,4)}, v10 offset:{1024*i}")
    OFL = E("OFL", "sc1")
    TS = E("TS", "1") == "1"
    for hf in range(2):
        for q in (2*hf, 2*hf+1):
            a(f"s_waitcnt lgkmcnt({3-q + (1 if TS and hf else 0)})")
            vadd(a, 16+4*q, 32+4*q, 4)
        cvt(a, 48, 16, 4*hf, 4*hf+4)
        a("s_nop 1")
        a(f"v_permlane32_swap_b32 v{48+4*hf}, v{50+4*hf}")
        a(f"v_permlane32_swap_b32 v{49+4*hf}, v{51+4*hf}")
        if TS: a(f"ds_write_b128 v{11+hf}, {vr(48+4*hf,4)}")
        else: a(f"buffer_store_dwordx4 {vr(48+4*hf,4)}, v11, {R(SX)}, s62 offen offset:{32*hf} {OFL}")
    if TS:
        a("s_waitcnt lgkmcnt(0)")
        if STAMP == 8: stampc(a, 6)
        a("s_barrier")
        if STAMP == 8: stampc(a, 7)
        a("ds_read_b128 v[16:19], v14")
        a("ds_read_b128 v[20:23], v14 offset:1024")
        a("s_waitcnt lgkmcnt(1)")
        a(f"buffer_store_dwordx4 v[16:19], v15, {R(SX)}, s62 offen {OFL}")
        a("s_waitcnt lgkmcnt(0)")
        a(f"buffer_store_dwordx4 v[20:23], v15, {R(SX)}, s63 offen {OFL}")
    a.label("C_EXIT")
    if E("DIAGP", "") == "99":
        a("s_waitcnt vmcnt(0)")
        a("s_memrealtime s[100:101]")
        a("s_waitcnt lgkmcnt(0)")
    if E("DIAGT", ""):
        a("s_xor_b32 s64, s2, %s" % E("DIAGW", "0"))
        a("s_or_b32 s64, s64, s27")
        a("s_cmp_eq_u32 s64, 0")
        a("s_cbranch_scc0 C_DX")
        if E("DIAGP", ""):
            a("s_sub_u32 s100, s100, s96")
            a("s_lshl_b32 s100, s100, 1")
            a("s_add_u32 s96, s96, s100")
        a.label("C_DL")
        a("s_memrealtime s[98:99]")
        a("s_waitcnt lgkmcnt(0)")
        a("s_sub_u32 s98, s98, s96")
        a("s_cmp_lt_i32 s98, %s" % E("DIAGT", ""))
        a("s_cbranch_scc1 C_DL")
        a.label("C_DX")
    if STAMP != 6: stampc(a, 14)
    if STAMP: a("s_waitcnt vmcnt(0)")
    if STAMP != 6: stampc(a, 15)
    stamp_out(a, 16)
    a("s_endpgm")
    a.label("C_FALLBACK")
    Qo = Q[3]; K0 = KV[0]; Sx = S[0]
    def fb_adv():
        a("s_add_u32 s58, s58, 4096")
        a("s_add_u32 s59, s59, 1")
        a("s_and_b32 s61, s59, 15")
        a(f"s_cselect_b32 s61, 0, {PAD-65536}")
        a("s_add_u32 s58, s58, s61")
        a("s_nop 15")
    a("s_mov_b32 s58, 0")
    a("s_mov_b32 s59, 0")
    a(f"v_mov_b32 v8, {f32(float('-inf'))}")
    a.label("C_FB1")
    a(ld(K0, 0, "v4")); a(ld(K0+4, 1024, "v4"))
    a("s_waitcnt vmcnt(0)")
    a(f"{MF} {vr(Sx,16)}, {ar(K0,4)}, {ar(Qo,4)}, 0")
    a(f"{MF} {vr(Sx,16)}, {ar(K0+4,4)}, {ar(Qo+4,4)}, {vr(Sx,16)}")
    fb_adv()
    a("s_nop 15")
    for i in range(8):
        a(f"v_max3_f32 v8, v8, v{Sx+2*i}, v{Sx+2*i+1}")
    a("s_cmp_lt_u32 s59, 64")
    a("s_cbranch_scc1 C_FB1")
    a("v_mov_b32 v9, v8")
    a("s_nop 1")
    a("v_permlane32_swap_b32 v8, v9")
    a("v_max_f32 v8, v8, v9")
    a("v_and_b32 v9, 0xffff0000, v8")
    a("v_sub_f32 v8, v8, v9")
    a("v_and_b32 v10, 0xffff0000, v8")
    a("v_sub_f32 v8, v8, v10")
    a("v_cvt_pk_bf16_f32 v9, -v9, -v10")
    a("v_cvt_pk_bf16_f32 v8, -v8, 0")
    a("s_mov_b32 exec_lo, 0")
    a(f"v_accvgpr_write_b32 a{Qo+6}, v9")
    a(f"v_accvgpr_write_b32 a{Qo+7}, v8")
    a("s_mov_b32 exec_lo, -1")
    for i in range(16): a(f"v_mov_b32 v{O[3]+i}, 0")
    a("s_mov_b32 s58, 0")
    a("s_mov_b32 s59, 0")
    a.label("C_FB2")
    for f in range(4): a(ld(K0+4*f, 1024*f, "v4"))
    a("s_waitcnt vmcnt(0)")
    a(f"{MF} {vr(Sx,16)}, {ar(K0,4)}, {ar(Qo,4)}, 0")
    a(f"{MF} {vr(Sx,16)}, {ar(K0+4,4)}, {ar(Qo+4,4)}, {vr(Sx,16)}")
    fb_adv()
    a("s_nop 15")
    for i in range(16): a(f"v_exp_f32 v{Sx+i}, v{Sx+i}")
    a("s_nop 1")
    a(f"{SM} {vr(O[3],16)}, {ar(K0+8,4)}, {vr(Sx,8)}, v2")
    a(f"{SM} {vr(O[3],16)}, {ar(K0+12,4)}, {vr(Sx+8,8)}, v2")
    a("s_cmp_lt_u32 s59, 64")
    a("s_cbranch_scc1 C_FB2")
    a("s_nop 15")
    a("s_nop 15")
    a(f"v_mov_b32 v6, v{O[3]+12}")
    a(f"v_mov_b32 v7, v{O[3]+12}")
    a("s_nop 1")
    a("v_permlane32_swap_b32 v6, v7")
    a("v_rcp_f32 v7, v7")
    a("s_nop 0")
    a("s_branch C_FIN")

def main():
    a = Asm()
    head = f"""; gated mix of a linear-attention block and a softmax-attention block (S=2048, D=448, H=16), one launch
; @launch grid=(256,1,1) block=(512,1,1) lds=163840
.amdgcn_target "amdgcn-amd-amdhsa--gfx950"
.text
"""
    gen(a)
    out = head + a.text() + '.section .rodata,"a"\n' + kernel_desc(KN, 256, 102, 160)
    path = sys.argv[1] if len(sys.argv) > 1 else f"cdna_kernels/{NAME}.s"
    open(path, "w").write(out)
main()
```

```python
import math, sys, os, struct
from asmlib import *

NAME = "gated_mix__linear_attn_block__mha_block__prompt"
KN = NAME + "_kernel"
WS_KV  = 0
WS_CNT = 5 << 20
WS_KVP = 6 << 20
WS_OF  = 8 << 20
PAD = int(os.environ.get("PAD", "69632"))
WS_ST  = 14 << 20
WS_SIZE = 16 << 20
LOG2E = 1.4426950408889634
QSCALE = LOG2E * 28 ** -0.5
EPS = 1e-6
ONE2 = 0x3F803F80
RING = 114688
L_KVD = RING
L_G   = RING + 16384 + 15360
L_KVF = RING + 16384 + 12288
L_CNT = RING + 16384 + 14336
L_QD  = RING + 32768
L_PQ  = RING + 32768 + 8192
STAMP = int(os.environ.get("STAMP", "0"))
X = set(os.environ.get("X", "").split(","))
MF = "v_mfma_f32_32x32x16_bf16"
SM = "v_smfmac_f32_32x32x32_bf16"
SX, SW, SWA, SWB, SWS, SD, SG = 36, 40, 44, 48, 52, 56, 60
WSR = f"s[{SWS}:{SWS+3}]"
SPIN = 200000
WFL = os.environ.get("WFL", "")
XFL = os.environ.get("XFL", "")

def srd(a, d, lo, size):
    a(f"s_mov_b32 s{d}, s{lo}")
    a(f"s_mov_b32 s{d+1}, s{lo+1}")
    a(f"s_mov_b32 s{d+2}, {size}")
    a(f"s_mov_b32 s{d+3}, 0x20000")
def R(d): return f"s[{d}:{d+3}]"

def stamp(a, i, mode=1):
    if not STAMP: return
    if mode is not None and mode != STAMP: return
    if i == 0: a("s_memrealtime s[96:97]")
    a("s_memrealtime s[94:95]" if os.environ.get("RT") else "s_memtime s[94:95]")
    a("s_waitcnt lgkmcnt(0)")
    a(f"s_mov_b32 s{70+i}, s94")
def stampc(a, i):
    if os.environ.get("DIAGP") == str(i):
        a("s_memrealtime s[100:101]")
        a("s_waitcnt lgkmcnt(0)")
    if STAMP == 5: return
    stamp(a, i, None)
def stamp_out(a, n):
    if not STAMP: return
    a("s_memrealtime s[98:99]")
    a("s_waitcnt lgkmcnt(0)")
    a("s_mov_b64 exec, 1")
    a("s_lshl_b32 s94, s2, 3")
    a("s_add_u32 s94, s94, s35")
    a("s_lshl_b32 s94, s94, 7")
    a(f"s_add_u32 s94, s94, {WS_ST}")
    a("v_mov_b32 v1, 0")
    for i in range(n if STAMP != 5 else 0):
        a(f"v_mov_b32 v2, s{70+i}")
        a(f"buffer_store_dword v2, v1, {WSR}, s94 offen offset:{4*i}")
    a("v_mov_b32 v2, s96")
    a(f"buffer_store_dword v2, v1, {WSR}, s94 offen offset:120")
    a("v_mov_b32 v2, s98")
    a(f"buffer_store_dword v2, v1, {WSR}, s94 offen offset:124")

def dma_lane_w(a, vdst, vt0, vt1, rowstride):
    a(f"v_lshrrev_b32 v{vt0}, 4, v0")
    a(f"v_bfe_u32 v{vt1}, v0, 2, 2")
    a(f"v_and_b32 v{vdst}, 1, v{vt0}")
    if "noswz" not in X: a(f"v_xor_b32 v{vt1}, v{vt1}, v{vdst}")
    a(f"v_lshrrev_b32 v{vdst}, 1, v{vt1}")
    a(f"v_lshl_add_u32 v{vt0}, v{vt0}, 1, v{vdst}")
    a(f"v_mul_u32_u24 v{vt0}, {rowstride}, v{vt0}")
    a(f"v_and_b32 v{vt1}, 1, v{vt1}")
    a(f"v_lshl_add_u32 v{vt0}, v{vt1}, 6, v{vt0}")
    a(f"v_and_b32 v{vt1}, 3, v0")
    a(f"v_lshl_add_u32 v{vdst}, v{vt1}, 4, v{vt0}")

def tr_lane_addr(a, vdst, vb, vt0, vt1, hlshift):
    a(f"v_bfe_u32 v{vt0}, v0, 4, 1")
    a(f"v_lshl_add_u32 v{vb}, v{vt0}, 5, v{vb}")
    a(f"v_and_b32 v{vt0}, 3, v0")
    a(f"v_lshl_add_u32 v{vb}, v{vt0}, 3, v{vb}")
    a(f"v_bfe_u32 v{vt0}, v0, 2, 1")
    a(f"v_lshrrev_b32 v{vt1}, 6, v{vb}")
    a(f"v_lshl_add_u32 v{vt0}, v{vt0}, 1, v{vt1}")
    a(f"v_bfe_u32 v{vt1}, v0, 3, 1")
    a(f"v_xor_b32 v{vt0}, v{vt0}, v{vt1}")
    a(f"v_and_b32 v{vb}, 63, v{vb}")
    a(f"v_lshl_add_u32 v{vb}, v{vt0}, 6, v{vb}")
    a(f"v_lshrrev_b32 v{vt0}, 5, v0")
    a(f"v_lshl_add_u32 v{vt0}, v{vt0}, {hlshift}, v{vt1}")
    a(f"v_lshl_add_u32 v{vdst}, v{vt0}, 8, v{vb}")

C_KV, C_A, C_OA, C_OB = WS_CNT, WS_CNT + 128*128, WS_CNT + 256*128, WS_CNT + 512*128
NFLAG = 768
def poll(a, tag, srdreg, soff, nl, vl, vt, sleep=0, first=True):
    a(f"s_mov_b64 exec, {(1 << nl) - 1}")
    a(f"s_mov_b32 s68, {SPIN}")
    if sleep and first: a(f"s_branch POLL_{tag}")
    a.label(f"POLLS_{tag}")
    if sleep: a(f"s_sleep {sleep}")
    a.label(f"POLL_{tag}")
    if tag in os.environ.get("PAT", "").split(","):
        a(f"v_mov_b32 v{vt}, 0")
        a(f"buffer_atomic_or v{vt}, v{vl}, {srdreg}, {soff} offen sc0 sc1")
    else:
        a(f"buffer_load_dword v{vt}, v{vl}, {srdreg}, {soff} offen sc1")
    a("s_sub_u32 s68, s68, 1")
    a(f"s_cbranch_scc1 POLLX_{tag}")
    a("s_waitcnt vmcnt(0)")
    a(f"v_cmp_eq_u32 vcc, 0, v{vt}" if tag.startswith("INIT") else f"v_cmp_ne_u32 vcc, s87, v{vt}")
    a(f"s_cbranch_vccnz POLLS_{tag}")
    a.label(f"POLLX_{tag}")
    a("s_mov_b64 exec, -1")

def poll2(a, tag, soff, nl, vl, vt, gap):
    a(f"s_mov_b64 exec, {(1 << nl) - 1}")
    a(f"s_mov_b32 s68, {SPIN}")
    a(f"buffer_load_dword v{vt}, v{vl}, {WSR}, {soff} offen sc1")
    a.label(f"POLL_{tag}")
    for i in range(2):
        if gap: a(f"s_sleep {gap}")
        a(f"buffer_load_dword v{vt+1-i}, v{vl}, {WSR}, {soff} offen sc1")
        a("s_waitcnt vmcnt(1)")
        a(f"v_cmp_ne_u32 vcc, s87, v{vt+i}")
        a(f"s_cbranch_vccz POLLX_{tag}")
    a("s_sub_u32 s68, s68, 1")
    a(f"s_cbranch_scc0 POLL_{tag}")
    a.label(f"POLLX_{tag}")
    a("s_mov_b64 exec, -1")

def lds_wait(a, tag, vaddr, off, target, vt, sleep=1):
    a("s_mov_b64 exec, 1")
    a(f"s_mov_b32 s68, {SPIN}")
    a.label(f"LW_{tag}")
    a(f"s_sleep {sleep}")
    a(f"ds_read_b32 v{vt}, v{vaddr} offset:{off}")
    a("s_waitcnt lgkmcnt(0)")
    a(f"v_readfirstlane_b32 s69, v{vt}")
    a("s_sub_u32 s68, s68, 1")
    a(f"s_cbranch_scc1 LWX_{tag}")
    a(f"s_cmp_ge_u32 s69, {target}")
    a(f"s_cbranch_scc0 LW_{tag}")
    a.label(f"LWX_{tag}")
    a("s_mov_b64 exec, -1")

def signal(a, soff, vz, vt, full=None):
    if full and os.environ.get("FL", "1") == "1":
        a("s_mov_b32 exec_hi, 0")
        a(f"v_lshlrev_b32 v{full}, 2, v0")
        a(f"v_mov_b32 v{vt}, s87")
        a(f"buffer_store_dword v{vt}, v{full}, {WSR}, {soff} offen {os.environ.get('SFL', 'sc1')}")
        a("s_mov_b32 exec_hi, -1")
        return
    a("s_mov_b64 exec, 1")
    a(f"v_mov_b32 v{vt}, s87")
    a(f"buffer_store_dword v{vt}, v{vz}, {WSR}, {soff} offen sc1")
    a("s_mov_b64 exec, -1")

def cvt(a, dst, src, lo=0, hi=8):
    for i in range(lo, hi):
        a(f"v_cvt_pk_bf16_f32 v{dst+i}, v{src+2*i}, v{src+2*i+1}")

def vadd(a, dst, src, n):
    for i in range(n): a(f"v_add_f32 v{dst+i}, v{dst+i}, v{src+i}")
def vmul(a, dst, mul, n):
    for i in range(n): a(f"v_mul_f32 v{dst+i}, {mul}, v{dst+i}")

def phi_list(src, T, n=16, grp=8):
    o = []
    for g0 in range(0, n, grp):
        o += [f"v_fma_f32 v{T+i}, v{src+g0+i}, s64, -s64" for i in range(grp)]
        o += [f"v_exp_f32_e64 v{T+i}, v{T+i} clamp" for i in range(grp)]
        o += [f"v_max_f32 v{src+g0+i}, v{src+g0+i}, v{T+i}" for i in range(grp)]
        o += [f"v_add_f32 v{src+g0+i}, s66, v{src+g0+i}" for i in range(grp)]
    return o

def p3_addr(a, v0a, mat_off_sgpr, swap_sgpr, vt0, vt1):
    a(f"v_mov_b32 v{v0a+1}, 0")
    tr_lane_addr(a, v0a, v0a+1, vt0, vt1, 1)
    a(f"v_add_u32 v{v0a}, {mat_off_sgpr}, v{v0a}")
    a(f"v_xor_b32 v{v0a}, {swap_sgpr}, v{v0a}")
    a(f"v_xor_b32 v{v0a+1}, 64, v{v0a}")
    a(f"v_lshrrev_b32 v{vt0}, 5, v0")
    a(f"v_lshlrev_b32 v{vt0}, 9, v{vt0}")
    a(f"v_sub_u32 v{v0a+2}, v{v0a}, v{vt0}")
    a(f"v_sub_u32 v{v0a+3}, v{v0a+1}, v{vt0}")

def p3_oload(ks, vlane16, so):
    o = [f"buffer_load_dwordx4 {ar(4*ks,4)}, v{vlane16}, {WSR}, {so} offen offset:{1024*(ks&3)} sc1"]
    if ks & 3 == 3 and ks < 15: o.append(f"s_add_u32 {so}, {so}, 4096")
    return o

def p3_gemm(a, va, ACC, WF, first_zero, npre, vlane16, so):
    def reads(ks):
        f = WF[ks & 1]; hh, m = ks >> 1, ks & 1
        o = (14*hh + 8*m) * 256
        last = (ks == 15)
        return [f"ds_read_b64_tr_b16 {vr(f,2)}, v{va} offset:{o}",
                f"ds_read_b64_tr_b16 {vr(f+2,2)}, v{va+2 if last else va} offset:{o+1024}",
                f"ds_read_b64_tr_b16 {vr(f+4,2)}, v{va+1} offset:{o}",
                f"ds_read_b64_tr_b16 {vr(f+6,2)}, v{va+3 if last else va+1} offset:{o+1024}"]
    for x in reads(0): a(x)
    issued = npre
    for ks in range(16):
        f = WF[ks & 1]
        rd = reads(ks+1) if ks < 15 else []
        c0 = "0" if (first_zero and ks == 0) else vr(ACC[0], 16)
        c1 = "0" if (first_zero and ks == 0) else vr(ACC[1], 16)
        if issued < 16:
            for x in p3_oload(issued, vlane16, so): a(x)
            issued += 1
        a(f"s_waitcnt vmcnt({issued-1-ks}) lgkmcnt(2)")
        a(f"{MF} {vr(ACC[0],16)}, {vr(f,4)}, {ar(4*ks,4)}, {c0}")
        for x in rd[:2]: a(x)
        a(f"s_waitcnt lgkmcnt({2 if rd else 0})")
        a(f"{MF} {vr(ACC[1],16)}, {vr(f+4,4)}, {ar(4*ks,4)}, {c1}")
        for x in rd[2:]: a(x)

def p3_block(a, va, ACC, WF, b):
    def reads(ks):
        f = WF[ks & 1]; hh, m = ks >> 1, ks & 1
        o = (14*hh + 8*m) * 256
        last = (ks == 15)
        return [f"ds_read_b64_tr_b16 {vr(f,2)}, v{va} offset:{o}",
                f"ds_read_b64_tr_b16 {vr(f+2,2)}, v{va+2 if last else va} offset:{o+1024}",
                f"ds_read_b64_tr_b16 {vr(f+4,2)}, v{va+1} offset:{o}",
                f"ds_read_b64_tr_b16 {vr(f+6,2)}, v{va+3 if last else va+1} offset:{o+1024}"]
    pre = reads(4*b)
    body = []
    for ks in range(4*b, 4*b+4):
        f = WF[ks & 1]
        rd = reads(ks+1) if ks < 4*b+3 else []
        body.append("s_waitcnt lgkmcnt(2)")
        body.append(f"{MF} {vr(ACC[0],16)}, {vr(f,4)}, {ar(4*ks,4)}, {vr(ACC[0],16)}")
        body += rd[:2]
        body.append(f"s_waitcnt lgkmcnt({2 if rd else 0})")
        body.append(f"{MF} {vr(ACC[1],16)}, {vr(f+4,4)}, {ar(4*ks,4)}, {vr(ACC[1],16)}")
        body += rd[2:]
    return pre, body

def p3_oloads(a, vlane16, so, n):
    for ks in range(n):
        for x in p3_oload(ks, vlane16, so): a(x)

E = lambda k, d: os.environ.get(k, d)
ROT = 1
XE = int(E("XE", "1"))
PT = E("PT", "0") == "1"
def gen(a):
    kernel_head(a, KN)
    a("s_cmp_ge_u32 s2, 256")
    a("s_cbranch_scc1 L_END")
    a("s_load_dwordx16 s[4:19], s[0:1], 0")
    a("s_load_dwordx4 s[20:23], s[0:1], 64")
    if STAMP or E("DIAGT", ""):
        a("s_memrealtime s[96:97]")
        a("s_memtime s[70:71]")
    if E("PC", "1") == "1":
        a("s_getpc_b64 s[40:41]")
        a.label("L_PC")
        a("s_mov_b32 s42, L_CODE_END-L_PC")
        a("s_mov_b32 s43, 0x20000")
        a("v_lshlrev_b32 v1, 7, v0")
        a("buffer_load_dword a89, v1, s[40:43], 0 offen")
    a("v_lshrrev_b32 v1, 6, v0")
    a("v_and_b32 v0, 63, v0")
    a("v_readfirstlane_b32 s27, v1")
    perm = [int(c) for c in E("PERM", "01234567")]
    a("s_and_b32 s25, s2, 7")
    if perm != list(range(8)):
        a("s_lshl_b32 s64, s25, 2")
        a("s_lshr_b32 s25, 0x%08x, s64" % sum(v << (4*i) for i, v in enumerate(perm)))
        a("s_and_b32 s25, s25, 7")
    a("s_lshr_b32 s24, s2, 4")
    a("s_bfe_u32 s26, s2, 0x10003")
    a("s_lshl_b32 s64, s25, 2")
    a("s_lshr_b32 s91, 0x04152630, s64")
    a("s_and_b32 s91, s91, 7")
    a("s_cmp_ge_u32 s27, 4")
    a("s_cbranch_scc0 L_COMPUTE")
    helper(a)
    compute(a)
    a.label("L_END")
    a("s_endpgm")
    a.label("L_CODE_END")

def decode(a):
    a("s_lshr_b32 s32, s2, 3")
    a("s_lshr_b32 s33, s25, 2")
    a("s_lshr_b32 s34, s24, 2")
    a("s_and_b32 s29, s24, 3")
    a("s_lshl_b32 s28, s25, 1")
    a("s_cmp_eq_u32 s26, s33")
    a("s_addc_u32 s28, s28, 0")
    a("s_mul_i32 s30, s32, 37")
    a("s_lshr_b32 s30, s30, 8")
    a("s_mul_i32 s31, s30, 7")
    a("s_sub_u32 s31, s32, s31")
    a("s_and_b32 s64, s2, 7")
    a("s_lshl_b32 s64, s64, 2")
    a("s_add_u32 s30, s30, s64")

def helper(a):
    if STAMP: a("s_mov_b32 s35, s27")
    a("s_sub_u32 s27, s27, 4")
    a("v_lshrrev_b32 v1, 3, v0")
    a("s_lshl_b32 s64, s24, 2")
    a("s_add_u32 s64, s64, s27")
    a("s_mul_i32 s64, s64, 28672")
    a("v_mul_u32_u24 v1, 896, v1")
    a("v_lshrrev_b32 v2, 4, v0")
    a("v_and_b32 v3, 7, v0")
    a("v_xor_b32 v2, v2, v3")
    a("v_lshlrev_b32 v2, 4, v2")
    a("v_add3_u32 v2, v2, v1, s64")
    a("v_xor_b32 v3, 64, v2")
    a("v_add_u32 v3, 7168, v3")
    a("v_add_u32 v4, 14336, v2")
    a("v_add_u32 v5, 14336, v3")
    a("s_lshl_b32 s66, s27, 12")
    a(f"s_mov_b32 s{SX+2}, 1835008")
    a(f"s_mov_b32 s{SX+3}, 0x20000")
    a("s_mov_b32 s80, s91")
    vm = []
    def xload(c):
        if ROT:
            a(f"s_lshl_b32 s64, s{80+c}, 14")
            a("s_add_u32 s69, s64, s66")
        for q in range(4):
            a(f"s_add_u32 m0, s69, {q*1024}" if ROT else f"s_add_u32 m0, s66, {c*16384 + q*1024}")
            a((f"s_lshl_b32 s64, s{80+c}, 7" if ROT else f"s_mov_b32 s64, {c*128}") if q == 0 else "s_nop 0")
            a(f"buffer_load_dwordx4 v{2+q}, {R(SX)}, s64 offen lds"); vm.append(("x", c))
    def wload(c):
        for pt in range(2):
            for u in range(2):
                a(f"s_add_u32 m0, s67, {(c%3)*16384 + pt*8192 + u*1024}")
                a((f"s_mul_i32 s65, s{80+c}, 172032" if ROT else f"s_mov_b32 s65, {c*172032}") if pt + u == 0 else "s_nop 0")
                a(f"buffer_load_dwordx4 v{6+2*pt+u}, {R(SW)}, s65 offen lds"); vm.append(("w", c))
    def qload(mat, part):
        slot = {(1, 0): 1, (1, 1): 2, (0, 0): 0, (0, 1): 1}[(mat, part)]
        for u in range(3 if part else 4):
            a(f"s_add_u32 m0, s{89 if part else 88}, {slot*16384 + u*1024}")
            a(f"s_mov_b32 s65, {u*43008}")
            a(f"buffer_load_dwordx4 v{10+part}, {R(SWA if mat == 0 else SWB)}, s65 offen lds"); vm.append(("q", mat, part))
    def waitfor(*tags):
        last = max(i for i, tg in enumerate(vm) if tg in tags)
        a(f"s_waitcnt vmcnt({len(vm)-1-last})")
    def patch(part):
        if part: a("s_mov_b32 exec_hi, 0xffff")
        a(f"ds_write_b16 v{15+part}, v{12+part}")
        if part: a("s_mov_b32 exec_hi, -1")
    def initcheck(tag):
        a("v_readfirstlane_b32 s87, v17")
        a("s_nop 0")
        a("s_cmp_lg_u32 s87, 0")
        a(f"s_cbranch_scc1 H_INIT_OK{tag}")
        poll(a, "INIT" + tag, R(SD), "0", 1, 18, 17)
        a("v_readfirstlane_b32 s87, v17")
        a.label(f"H_INIT_OK{tag}")
    a("s_waitcnt lgkmcnt(0)")
    a(f"s_mov_b32 s{SX}, s4")
    a(f"s_mov_b32 s{SX+1}, s5")
    stamp(a, 1, 2); stamp(a, 1, 9)
    xload(0)
    stamp(a, 2, 9)
    dma_lane_w(a, 6, 10, 11, 2688)
    if E("P7", "1") == "1":
        a("v_and_b32 v10, 112, v6")
        a("v_cmp_eq_u32 vcc, 112, v10")
        a("v_subrev_u32 v10, 16, v6")
        a("s_nop 0")
        a("v_cndmask_b32 v6, v6, v10, vcc")
    a("s_mul_i32 s64, s27, 43008")
    a("s_mul_i32 s65, s25, 112")
    a("s_add_u32 s64, s64, s65")
    a("s_add_u32 s64, s64, 896")
    a("v_add_u32 v6, s64, v6")
    a("v_add_u32 v7, 21504, v6")
    a("v_add_u32 v8, 896, v6")
    a("v_add_u32 v9, 896, v7")
    a("s_lshl_b32 s67, s27, 11")
    a(f"s_add_u32 s67, s67, {RING}")
    a(f"s_mov_b32 s{SW+2}, 1204224")
    a(f"s_mov_b32 s{SW+3}, 0x20000")
    a("s_cmp_eq_u32 s26, 0")
    a(f"s_cselect_b32 s{SW}, s6, s12")
    a(f"s_cselect_b32 s{SW+1}, s7, s13")
    wload(0)
    stamp(a, 10, 9)
    for i in range(1, 7):
        a(f"s_add_u32 s{80+i}, s{79+i}, 1")
        a(f"s_cmp_eq_u32 s{80+i}, 7")
        a(f"s_cselect_b32 s{80+i}, 0, s{80+i}")
    xload(1); wload(1)
    for i in range(XE): xload(2+i)
    decode(a)
    srd(a, SWA, 6, 1204224); srd(a, SWB, 12, 1204224)
    srd(a, SWS, 22, WS_SIZE); srd(a, SD, 20, 256); srd(a, SG, 16, 896)
    a("v_lshrrev_b32 v10, 2, v0")
    a("v_mul_u32_u24 v10, 2688, v10")
    a("v_and_b32 v11, 3, v0")
    a("v_lshl_add_u32 v10, v11, 4, v10")
    a("s_mul_i32 s65, s28, 56")
    a("s_mul_i32 s64, s27, 129024")
    a("s_add_u32 s64, s64, s65")
    a(f"s_add_u32 s64, s64, {256*2688}")
    a("v_add_u32 v11, s64, v10")
    a("s_mul_i32 s64, s27, 172032")
    a("s_add_u32 s64, s64, s65")
    a("v_add_u32 v10, s64, v10")
    a("s_lshl_b32 s88, s27, 12")
    a(f"s_add_u32 s88, s88, {RING}")
    a("s_mul_i32 s89, s27, 3072")
    a(f"s_add_u32 s89, s89, {RING}")
    a(f"s_add_u32 s64, s88, {16384 + 56}")
    a("v_lshl_add_u32 v15, v0, 6, s64")
    a(f"s_add_u32 s64, s89, {32768 + 56}")
    a("v_lshl_add_u32 v16, v0, 6, s64")
    a("s_lshl_b32 s64, s27, 7")
    a("v_lshl_add_u32 v14, v0, 1, s64")
    a("s_mul_i32 s64, s27, 96")
    a("s_add_u32 s64, s64, 512")
    a("v_lshl_add_u32 v17, v0, 1, s64")
    a("v_mov_b32 v18, 0")
    stamp(a, 1); stamp(a, 2, 2)
    for c in range(5):
        waitfor(("x", c), ("w", c)); a("s_barrier"); stamp(a, 3+c, 2)
        if c == 0: stamp(a, 2)
        if not XE: xload(c+2)
        wload(c+2)
        if XE and c+2+XE < 7: xload(c+2+XE)
        if c == 1:
            a(f"buffer_load_ushort v12, v14, {R(SG)}, 0 offen"); vm.append(("g", 0))
            a(f"buffer_load_ushort v13, v17, {R(SG)}, 0 offen"); vm.append(("g", 1))
        if c == 3:
            a(f"buffer_load_dword v17, v18, {R(SD)}, 0 offen sc1"); vm.append(("d", 0))
    waitfor(("x",5),("w",5)); a("s_barrier"); stamp(a, 8, 2)
    qload(1, 0)
    def setup2():
        a(f"v_mov_b32 v1, {L_CNT}")
        for i in range(8, 12): a(f"v_mov_b32 v{i}, 0")
        a("ds_write_b128 v1, v[8:11]")
        a("s_nop 1")
        a("v_mov_b32 v9, s87")
        a("ds_write_b128 v1, v[8:11] offset:16")
        a("v_lshlrev_b32 v2, 4, v0")
        dma_lane_w(a, 3, 4, 5, 896)
        a("s_mul_i32 s64, s27, 7168")
        a("s_lshl_b32 s65, s31, 7")
        a("s_add_u32 s64, s64, s65")
        a("v_add_u32 v3, s64, v3")
        a("s_lshr_b32 s65, s27, 1")
        a("s_mul_i32 s64, s65, 28672")
        a("s_lshl_b32 s65, s65, 6")
        p3_addr(a, 4, "s64", "s65", 8, 9)
        srd(a, SWA, 8, 401408); srd(a, SWB, 14, 401408)
        a("s_lshl_b32 s65, s25, 2")
        a("s_add_u32 s65, s65, s27")
        a("s_lshl_b32 s65, s65, 9")
        a(f"s_add_u32 s65, s65, {C_KV}")
        a("v_lshlrev_b32 v10, 7, v0")
        stamp(a, 3)
    waitfor(("x",6),("w",6)); a("s_barrier"); stamp(a, 9, 2)
    a("s_lshl_b32 s64, s25, 4")
    a("s_add_u32 s64, s64, s24")
    a("s_lshl_b32 s64, s64, 7")
    a(f"s_add_u32 s66, s64, {C_KV}")
    initcheck("A")
    qload(1, 1)
    a("s_waitcnt vmcnt(3)"); patch(0)
    a("s_waitcnt vmcnt(0)"); patch(1)
    a("s_waitcnt lgkmcnt(0)")
    a("s_barrier"); stamp(a, 10, 2)
    qload(0, 0)
    a("s_barrier")
    qload(0, 1)
    a("s_xor_b32 s64, s27, 3")
    a("s_xor_b32 s65, s26, 1")
    a("s_or_b32 s90, s64, s65")
    a("s_barrier")
    a("s_cbranch_scc1 H_NOSIGKV")
    signal(a, "s66", 18, 19, 20)
    a.label("H_NOSIGKV")
    if E("ES", "0") == "1": setup2()
    a("s_waitcnt vmcnt(4)")
    a("s_cmp_eq_u32 s90, 0")
    a("s_cbranch_scc1 H_W4")
    a("s_waitcnt vmcnt(3)")
    a.label("H_W4")
    a("s_barrier")
    a("s_waitcnt vmcnt(1)")
    a("s_cbranch_scc1 H_SIGD")
    a("s_waitcnt vmcnt(0)")
    a.label("H_SIGD")
    a("s_barrier")
    if E("ES", "0") == "0": setup2()
    if E("K1", "1") == "1":
        a("s_cmp_eq_u32 s27, 0")
        a("s_cbranch_scc0 H_KVD")
        poll(a, "KV", WSR, "s65", 16, 10, 11, int(E("KS", "2")))
        a.label("H_KVD")
    else: poll(a, "KV", WSR, "s65", 4, 10, 11, int(E("KS", "0")))
    a("s_waitcnt lgkmcnt(0)")
    a("s_barrier")
    a("s_setprio %s" % E("HP", "2"))
    stamp(a, 4); stamp(a, 1, 3); stamp(a, 1, 7)
    PQ, G, KF, NUM, PA = 80, 88, 92, 100, 116
    def wo_dma(tag, srdreg, base, lo, hi, depth):
        if hi <= lo: return
        a("s_lshl_b32 s66, s27, 10")
        a(f"s_add_u32 s66, s66, {base + lo*4096}")
        a(f"s_mov_b32 s63, {lo*28672}")
        a.label(f"H_WO{tag}")
        a("s_mov_b32 m0, s66")
        a("s_add_u32 s66, s66, 4096")
        a(f"buffer_load_dwordx4 v3, {R(srdreg)}, s63 offen lds")
        a("s_add_u32 s63, s63, 28672")
        a(f"s_waitcnt vmcnt({depth})")
        a(f"s_cmp_lt_u32 s63, {hi*28672}")
        a(f"s_cbranch_scc1 H_WO{tag}")
    W1 = int(E("W1", "0"))
    a("s_cmp_ge_u32 s32, 28")
    a("s_cbranch_scc1 H_NOWO0")
    wo_dma("0", SWA, 0, 0, W1, int(E("WOD0", "2")))
    a.label("H_NOWO0")
    if "hskip" in X:
        a("s_branch H_SKIP")
    lds_wait(a, "C0", 1, 8, 4, 9)
    stamp(a, 2, 7)
    a("s_lshl_b32 s64, s27, 11")
    a(f"s_add_u32 s64, s64, {L_PQ}")
    a("v_add_u32 v8, s64, v2")
    a(f"ds_read_b128 {vr(PQ,4)}, v8")
    a(f"ds_read_b128 {vr(PQ+4,4)}, v8 offset:1024")
    a("s_lshl_b32 s64, s27, 8")
    a(f"s_add_u32 s64, s64, {L_G}")
    a("v_lshl_add_u32 v8, v0, 2, s64")
    a(f"ds_read_b32 v{G}, v8")
    a("s_cmp_ge_u32 s27, 2")
    a("s_cselect_b32 s64, s26, 1")
    a("s_cmp_eq_u32 s64, 0")
    a("s_cbranch_scc0 H_NOKVP")
    a("s_and_b32 s65, s27, 1")
    a("s_lshl_b32 s64, s65, 12")
    a(f"s_add_u32 s64, s64, {L_KVD}")
    a("v_add_u32 v8, s64, v2")
    for i in range(8):
        a(f"ds_read_b128 {vr(16+4*i,4)}, v8 offset:{1024*(i&3) + 8192*(i>>2)}")
    a("s_lshl_b32 s64, s25, 1")
    a("s_add_u32 s64, s64, s65")
    a(f"s_mul_i32 s64, s64, {PAD}")
    a("s_lshl_b32 s65, s24, 12")
    a("s_add_u32 s64, s64, s65")
    a(f"s_add_u32 s64, s64, {WS_KVP}")
    a("s_waitcnt lgkmcnt(0)")
    vadd(a, 16, 32, 16)
    for q in range(4):
        a(f"buffer_store_dwordx4 {vr(16+4*q,4)}, v2, {WSR}, s64 offen offset:{1024*q} sc1")
    a("s_lshl_b32 s64, s25, 4")
    a("s_add_u32 s64, s64, s24")
    a("s_lshl_b32 s64, s64, 7")
    a(f"s_add_u32 s64, s64, {C_A}")
    a("v_mov_b32 v11, 1")
    stamp(a, 3, 7)
    a("s_waitcnt vmcnt(0)")
    stamp(a, 4, 7)
    a("s_mov_b64 exec, 1")
    a("ds_add_rtn_u32 v9, v1, v11 offset:12")
    a("s_waitcnt lgkmcnt(0)")
    a("v_readfirstlane_b32 s69, v9")
    a("s_mov_b64 exec, -1")
    a("s_cmp_eq_u32 s69, 1")
    a("s_cbranch_scc0 H_NOKVP")
    signal(a, "s64", 10, 11, 9)
    a.label("H_NOKVP")
    stamp(a, 5, 7)
    lo = lambda: a("s_setprio 0") if PT else None
    hi = lambda: a("s_setprio 2") if PT else None
    lo()
    a("s_cmp_ge_u32 s32, 28")
    a("s_cbranch_scc1 H_NOWOA")
    if "nowo" not in X:
        wo_dma("A", SWA, 0, W1, 14, int(E("WOD", "5")))
        wo_dma("B", SWB, 57344, 0, 14, int(E("WOD", "5")))
    a.label("H_NOWOA")
    stamp(a, 2, 3); stamp(a, 6, 7)
    hi()
    a("s_lshl_b32 s64, s25, 11")
    a(f"s_add_u32 s64, s64, {C_A}")
    if "nopolla" not in X:
        a("s_cmp_eq_u32 s27, 0")
        a("s_cbranch_scc0 H_AW")
        poll(a, "A", WSR, "s64", 16, 10, 11, int(E("AS", "16")))
        a("v_mov_b32 v11, 1")
        a("ds_write_b32 v1, v11 offset:16")
        a("s_branch H_AD")
        a.label("H_AW")
        lds_wait(a, "A", 1, 16, 1, 9, 4)
        a.label("H_AD")
    stamp(a, 3, 3); stamp(a, 7, 7)
    a(f"s_mul_i32 s64, s28, {PAD}")
    a("s_lshl_b32 s65, s27, 10")
    a("s_add_u32 s64, s64, s65")
    a(f"s_add_u32 s64, s64, {WS_KVP}")
    KD = int(E("KD", "2"))
    lo()
    for i in range(16):
        if "nokvl" not in X: a(f"buffer_load_dwordx4 {vr(16+4*i,4)}, v2, {WSR}, s64 offen sc1")
        a("s_add_u32 s64, s64, 4096")
        if i > KD:
            a(f"s_waitcnt vmcnt({KD})")
            hi()
            if "nokva" not in X: vadd(a, 16, 16+4*(i-KD), 4)
            lo()
    stamp(a, 4, 3)
    hi()
    for j in range(16-KD, 16):
        a(f"s_waitcnt vmcnt({15-j})")
        vadd(a, 16, 16+4*j, 4)
    stamp(a, 5, 3)
    if "nofin" in X:
        a("s_branch H_SKIP")
    a("v_cvt_pk_bf16_f32 v16, v16, v17")
    a("v_cvt_pk_bf16_f32 v17, v18, v19")
    a("s_lshr_b32 s64, s27, 1")
    a("s_lshl_b32 s64, s64, 10")
    a("s_and_b32 s65, s27, 1")
    a("s_lshl_b32 s65, s65, 3")
    a("s_add_u32 s64, s64, s65")
    a(f"s_add_u32 s64, s64, {L_KVF}")
    a("v_add_u32 v8, s64, v2")
    a("ds_write_b64 v8, v[16:17]")
    a("v_mov_b32 v11, 1")
    a("s_waitcnt lgkmcnt(0)")
    a("s_mov_b64 exec, 1")
    a("ds_add_u32 v1, v11")
    lds_wait(a, "C1", 1, 0, 4, 9)
    stamp(a, 6, 3)
    a(f"v_add_u32 v8, {L_KVF}, v2")
    a(f"ds_read_b128 {vr(KF,4)}, v8")
    a(f"ds_read_b128 {vr(KF+4,4)}, v8 offset:1024")
    a("s_waitcnt lgkmcnt(0)")
    a(f"{MF} {vr(NUM,16)}, {vr(KF,4)}, {vr(PQ,4)}, 0")
    a(f"{MF} {vr(NUM,16)}, {vr(KF+4,4)}, {vr(PQ+4,4)}, {vr(NUM,16)}")
    a("s_lshl_b32 s64, s24, 2")
    a("s_add_u32 s64, s64, s27")
    a(f"s_mul_i32 s64, s64, {PAD}")
    a("s_lshl_b32 s65, s28, 11")
    a("s_add_u32 s64, s64, s65")
    a(f"s_add_u32 s64, s64, {WS_OF}")
    a(f"v_mov_b32 v{PA+6}, 0")
    a(f"v_mov_b32 v{PA+7}, 0")
    a("s_nop 15")
    a(f"v_mov_b32 v8, v{NUM+12}")
    a(f"v_mov_b32 v9, v{NUM+12}")
    a("s_nop 1")
    a("v_permlane32_swap_b32 v8, v9")
    a(f"v_add_f32 v9, {f32(EPS)}, v9")
    a("v_rcp_f32 v9, v9")
    a("s_nop 0")
    a(f"v_mul_f32 v9, v9, v{G}")
    vmul(a, NUM, "v9", 16)
    cvt(a, PA, NUM, 0, 6)
    a("s_mov_b32 exec_hi, 0")
    cvt(a, PA, NUM, 6, 8)
    a("s_mov_b32 exec_hi, -1")
    a(f"buffer_store_dwordx4 {vr(PA,4)}, v2, {WSR}, s64 offen sc1")
    a(f"buffer_store_dwordx4 {vr(PA+4,4)}, v2, {WSR}, s64 offen offset:1024 sc1")
    stamp(a, 7, 3)
    a("s_waitcnt vmcnt(0)")
    stamp(a, 8, 3)
    a("s_mov_b64 exec, 1")
    a("ds_add_rtn_u32 v9, v1, v11 offset:4")
    a("s_waitcnt lgkmcnt(0)")
    a("v_readfirstlane_b32 s69, v9")
    a("s_mov_b64 exec, -1")
    a("s_cmp_eq_u32 s69, 3")
    a("s_cbranch_scc0 H_NOSIGOA")
    if "hskip" in X or "nofin" in X:
        a.label("H_SKIP")
        a("s_cmp_eq_u32 s27, 0")
        a("s_cbranch_scc0 H_NOSIGOA")
    a("s_lshl_b32 s64, s24, 4")
    a("s_add_u32 s64, s64, s28")
    a("s_lshl_b32 s64, s64, 7")
    a(f"s_add_u32 s64, s64, {C_OA}")
    signal(a, "s64", 10, 11, 9)
    a.label("H_NOSIGOA")
    stamp(a, 5); stamp(a, 9, 3)
    a("s_setprio 0")
    a("s_barrier")
    a("s_cmp_ge_u32 s32, 28")
    a("s_cbranch_scc1 H_NOP3B")
    stamp(a, 6)
    a("s_and_b32 s64, s30, 0xfe")
    a("s_lshr_b32 s65, s27, 1")
    a("s_add_u32 s64, s64, s65")
    a("s_lshl_b32 s64, s64, 10")
    a(f"s_add_u32 s64, s64, {C_OA}")
    a("s_and_b32 s62, s27, 1")
    a("s_lshl_b32 s65, s30, 1")
    a("s_add_u32 s62, s62, s65")
    a(f"s_mul_i32 s62, s62, {PAD}")
    a("s_lshr_b32 s65, s27, 1")
    a("s_lshl_b32 s65, s65, 14")
    a("s_add_u32 s62, s62, s65")
    a(f"s_add_u32 s62, s62, {WS_OF}")
    NE = int(E("NE", "16"))
    a("s_mov_b64 exec, 0xff")
    a(f"buffer_load_dword v11, v10, {WSR}, s64 offen sc1")
    a("s_waitcnt vmcnt(0)")
    a("v_cmp_ne_u32 vcc, s87, v11")
    a("s_mov_b64 exec, -1")
    a("s_cbranch_vccnz H_OALATE")
    p3_oloads(a, 2, "s62", NE)
    a("s_barrier")
    a("s_barrier")
    a("s_branch H_OADONE")
    a.label("H_OALATE")
    a("s_barrier")
    a("s_barrier")
    poll(a, "OA", WSR, "s64", 8, 10, 11, 2)
    p3_oloads(a, 2, "s62", NE)
    a.label("H_OADONE")
    NPRE = 16
    for ks in range(NE, 16):
        for x in p3_oload(ks, 2, "s62"): a(x)
    stamp(a, 7); stamp(a, 10, 3)
    p3_gemm(a, 4, [16, 32], [48, 56], True, NPRE, 2, "s62")
    stamp(a, 8)
    a("s_lshl_b32 s64, s27, 13")
    a(f"s_add_u32 s64, s64, {RING}")
    a("v_add_u32 v8, s64, v2")
    a("s_nop 9")
    for i in range(8):
        a(f"ds_write_b128 v8, {vr(16+4*i,4)} offset:{1024*i}")
    a("s_waitcnt lgkmcnt(0)")
    stamp(a, 9)
    a("s_barrier")
    a("s_branch H_EXIT")
    a.label("H_NOP3B")
    a("s_barrier")
    a("s_barrier")
    a.label("H_EXIT")
    stamp(a, 10)
    stamp_out(a, 11)
    a("s_endpgm")

def compute(a):
    a.label("L_COMPUTE")
    if STAMP: a("s_mov_b32 s35, s27")
    decode(a)
    XA, WA, WB, XQ, WQ = 2, 6, 7, 8, 12
    FR = 16; accK = [64, 80]; accV = [96, 112]; pK = [128, 136]; pV = [144, 152]
    QA, QB = 96, 112
    a("s_waitcnt lgkmcnt(0)")
    if E("DIAGP", "") == "20": stampc(a, 20)
    if E("DIAGP", "") == "21":
        srd(a, SW, 4, 1835008)
        a("s_mul_i32 s60, s24, 114688")
        a("v_lshlrev_b32 v17, 4, v0")
        a(f"buffer_load_dwordx4 v[20:23], v17, {R(SW)}, s60 offen")
        a("s_waitcnt vmcnt(0)")
        stampc(a, 21)
    TW = int(E("TW", "0"))
    if TW:
        a(f"s_cmp_ge_u32 s27, {TW}")
        a("s_cbranch_scc1 C_NTW")
        a("s_cmp_ge_u32 s32, 16")
        a(f"s_cselect_b32 s{SW}, s12, s6")
        a(f"s_cselect_b32 s{SW+1}, s13, s7")
        a(f"s_mov_b32 s{SW+2}, 1204224")
        a(f"s_mov_b32 s{SW+3}, 0x20000")
        a("s_and_b32 s60, s32, 15")
        a("s_mul_i32 s60, s60, 28")
        a("v_lshrrev_b32 v17, 1, v0")
        a("v_add_u32 v17, s60, v17")
        a("v_mul_u32_u24 v17, 2688, v17")
        a("v_and_b32 v16, 1, v0")
        a("v_lshl_add_u32 v17, v16, 7, v17")
        a("s_mul_i32 s60, s25, 112")
        a("s_and_b32 s60, s60, 0xff80")
        a("s_mul_i32 s61, s27, 896")
        a("s_add_u32 s60, s60, s61")
        a("s_mov_b32 exec_hi, 0xffffff")
        a(f"buffer_load_dword a88, v17, {R(SW)}, s60 offen")
        a("s_mov_b64 exec, -1")
        a.label("C_NTW")
    srd(a, SWS, 22, WS_SIZE)
    a("s_xor_b32 s64, s27, 3")
    a("s_xor_b32 s65, s2, 8")
    a("s_or_b32 s64, s65, s64")
    a("s_cmp_eq_u32 s64, 0")
    a("s_cbranch_scc0 C_NOINIT")
    a("s_memrealtime s[64:65]")
    srd(a, SD, 20, 256)
    a("v_mov_b32 v21, 0")
    a("s_waitcnt lgkmcnt(0)")
    a("s_lshl_b32 s64, s64, 1")
    a("s_or_b32 s64, s64, 1")
    a("v_mov_b32 v22, s64")
    a("s_mov_b64 exec, 1")
    a(f"buffer_store_dword v22, v21, {R(SD)}, 0 offen sc1")
    a("s_mov_b64 exec, -1")
    a.label("C_NOINIT")
    a("s_lshr_b32 s92, s27, 1")
    a("s_and_b32 s93, s27, 1")
    a("v_and_b32 v13, 31, v0")
    a("v_lshrrev_b32 v14, 5, v0")
    a("v_bfe_u32 v15, v0, 1, 3")
    a("v_xor_b32 v15, v15, v14")
    a("s_lshl_b32 s64, s92, 13")
    a("v_lshl_add_u32 v1, v13, 7, s64")
    a("s_lshl_b32 s65, s27, 12")
    a("s_sub_u32 s65, s65, s64")
    for ks in range(4):
        a(f"v_xor_b32 v{XA+ks}, {2*ks}, v15")
        a(f"v_lshl_add_u32 v{XA+ks}, v{XA+ks}, 4, v1")
        a(f"v_add_u32 v{XQ+ks}, s65, v{XA+ks}")
    a("s_mul_i32 s64, s93, 56")
    a(f"v_mov_b32 v{WA}, s64")
    tr_lane_addr(a, WB, WA, 1, 15, 2)
    a(f"v_add_u32 v{WB}, {RING}, v{WB}")
    a(f"v_mov_b32 v{WA}, v{WB}")
    a("v_bfe_u32 v1, v0, 2, 2")
    a("v_lshl_add_u32 v1, v14, 3, v1")
    a("v_lshlrev_b32 v1, 1, v1")
    a("v_bfe_u32 v15, v0, 4, 1")
    a("v_add_u32 v1, v1, v15")
    a("v_lshlrev_b32 v1, 2, v1")
    a("v_and_b32 v15, 3, v0")
    a("v_add_u32 v1, v1, v15")
    a("v_lshlrev_b32 v1, 3, v1")
    a(f"v_add_u32 v{WQ}, {RING}, v1")
    a("v_cmp_eq_u32 vcc, 28, v13")
    a(f"v_mov_b32 v1, {ONE2}")
    a("s_nop 0")
    a("v_cndmask_b32 v15, 0, v1, vcc")
    for s in range(2):
        for i in range(8):
            a(f"v_mov_b32 v{pV[s]+i}, v15")
    a("s_mov_b32 s56, 0x0fffffff")
    a("s_mov_b32 s57, 0x0fffffff")
    a(f"s_mov_b32 s64, {f32(LOG2E)}")
    a(f"s_mov_b32 s65, {f32(QSCALE)}")
    a(f"s_mov_b32 s66, {f32(EPS)}")
    for i in range(32):
        a(f"v_mov_b32 v{accV[0]+i}, 0")
    a("v_lshlrev_b32 v13, 4, v0")
    a("s_cmp_eq_u32 s26, 0")
    a("s_cbranch_scc1 C_A")

    def scalars():
        for s in range(4):
            a(f"s_add_u32 s60, s27, {1+s}")
            a("s_and_b32 s60, s60, 3")
            a(f"s_lshl_b32 s{36+s}, s60, 11")
            a(f"s_add_u32 s{36+s}, s{36+s}, {L_QD}")
            a(f"s_mul_i32 s{40+s}, s60, 12288")
            a(f"s_add_u32 s{40+s}, s{40+s}, {RING + (4096*s if s < 3 else 0)}")
        a(f"s_mul_i32 s44, s28, {4*PAD}")
        a(f"s_mul_i32 s45, s27, {PAD}")
        a("s_add_u32 s45, s45, s44")
        a("s_lshl_b32 s46, s24, 2")
        a("s_add_u32 s46, s46, s27")
        a(f"s_mul_i32 s46, s46, {PAD}")
        a("s_lshl_b32 s60, s28, 11")
        a("s_add_u32 s46, s46, s60")
        a(f"s_add_u32 s46, s46, {WS_OF + 32768}")
        a("s_lshl_b32 s47, s27, 12")
        a(f"s_add_u32 s47, s47, {L_KVD}")
        a("s_lshl_b32 s48, s27, 8")
        a(f"s_add_u32 s48, s48, {L_G}")
    def reads(buf, ks):
        f = FR + 16*buf
        return [f"ds_read_b128 {vr(f,4)}, v{XA+ks}",
                f"ds_read_b64_tr_b16 {vr(f+8,2)}, v{WA} offset:{ks*2048}",
                f"ds_read_b64_tr_b16 {vr(f+10,2)}, v{WA} offset:{ks*2048+512}",
                f"ds_read_b128 {vr(f+4,4)}, v{XA+ks} offset:4096",
                f"ds_read_b64_tr_b16 {vr(f+12,2)}, v{WA} offset:{8192+ks*2048}",
                f"ds_read_b64_tr_b16 {vr(f+14,2)}, v{WA} offset:{8192+ks*2048+512}"]
    def mfmas(buf, kT):
        f = FR + 16*buf
        Xf = [vr(f, 4), vr(f+4, 4)]; Wk, Wv = vr(f+8, 4), vr(f+12, 4)
        m = []
        for s in range(2): m.append(f"{MF} {vr(accV[s],16)}, {Xf[s]}, {Wk}, {vr(accV[s],16)}")
        for s in range(2):
            if kT: m.append(f"{MF} {vr(accK[s],16)}, {Wv}, {Xf[s]}, {vr(accK[s],16)}")
            else:  m.append(f"{MF} {vr(accK[s],16)}, {Xf[s]}, {Wv}, {vr(accK[s],16)}")
        return m
    def mainloop(tag, kT):
        a("s_mov_b32 s60, 0")
        a("s_mov_b32 s61, 0")
        if ROT:
            a("s_mov_b32 s49, 16384")
            a("s_lshl_b32 s62, s91, 14")
            for ks in range(4): a(f"v_add_u32 v{XA+ks}, s62, v{XA+ks}")
            a("s_cmp_eq_u32 s91, 6")
            a("s_cselect_b32 s62, 0xfffe8000, s49")
        if STAMP not in (4, 8): stampc(a, 1)
        a("s_barrier")
        if STAMP not in (4, 8): stampc(a, 2)
        for r in reads(0, 0): a(r)
        a(".p2align 6")
        a.label(f"C_{tag}_LOOP")
        for ks in range(4):
            m = mfmas(ks & 1, kT); r = reads((ks+1) & 1, (ks+1) & 3)
            if ks < 3:
                a("s_waitcnt lgkmcnt(3)"); a(m[0]); a(r[0]); a(r[1]); a(r[2])
                a("s_waitcnt lgkmcnt(5)"); a(m[1]); a(r[3]); a(r[4]); a(r[5])
                a("s_waitcnt lgkmcnt(6)"); a(m[2])
                a(f"v_add_u32 v{XA+ks}, {'s62' if ROT else 16384}, v{XA+ks}")
                if ks == 2:
                    a("s_add_u32 s60, s60, 1")
                    a("s_add_u32 s61, s61, 16384")
                    a("s_cmp_eq_u32 s61, 49152")
                    a("s_cselect_b32 s61, 0, s61")
                a(m[3])
            else:
                a(f"v_add_u32 v{WA}, s61, v{WB}")
                a("s_cmp_eq_u32 s60, 7")
                a("s_waitcnt lgkmcnt(0)")
                a(f"s_cbranch_scc1 C_{tag}_TAIL")
                a("s_barrier")
                a(m[0]); a(r[0]); a(r[1]); a(r[2])
                a(m[1]); a(r[3]); a(r[4]); a(r[5])
                a(m[2])
                a(f"v_add_u32 v{XA+3}, {'s62' if ROT else 16384}, v{XA+3}")
                if ROT:
                    a("s_add_u32 s63, s60, s91")
                    a("s_cmp_eq_u32 s63, 6")
                    a("s_cselect_b32 s62, 0xfffe8000, s49")
                a(m[3])
                a(f"s_branch C_{tag}_LOOP")
                a.label(f"C_{tag}_TAIL")
                for x in m: a(x)
        if STAMP != 8: stampc(a, 3)
        if "nords" in X or "nomf" in X:
            i0 = max(i for i, l in enumerate(a.lines) if l.startswith(f"C_{tag}_LOOP"))
            for i in range(i0, len(a.lines)):
                l = a.lines[i].strip()
                if "nords" in X and l.startswith("ds_read"): a.lines[i] = "    s_nop 0"
                if "nomf" in X and l.startswith("v_mfma"): a.lines[i] = "    s_nop 7"
    _reads = reads
    def reads(buf, ks):
        r = _reads(buf, ks)
        f = FR + 16*buf
        r[1] = f"ds_read_b64_tr_b16 {vr(f+8,2)}, v{WA} offset:{8192+ks*2048}"
        r[2] = f"ds_read_b64_tr_b16 {vr(f+10,2)}, v{WA} offset:{8192+ks*2048+512}"
        r[4] = f"ds_read_b64_tr_b16 {vr(f+12,2)}, v{WA} offset:{ks*2048}"
        r[5] = f"ds_read_b64_tr_b16 {vr(f+14,2)}, v{WA} offset:{ks*2048+512}"
        return r
    def cvt_v():
        a("s_nop 9")
        a("s_mov_b64 exec, s[56:57]")
        for s in range(2): cvt(a, pV[s], accV[s])
        a("s_mov_b64 exec, -1")
    def qpass(mat, acc, c0, bars):
        def qreads(k):
            f = FR + 8*(k % 4)
            slot = {(1, 0): 1, (1, 1): 2, (0, 0): 0, (0, 1): 1}[(mat, k >> 4)]
            o = slot*16384 + (k & 15)*1024
            xr = (XQ if k < 16 else XA) + (k & 3)
            return [f"ds_read_b128 {vr(f,4)}, v{xr} offset:{((k >> 2) & 3)*16384}",
                    f"ds_read_b64_tr_b16 {vr(f+4,2)}, v{WQ} offset:{o}",
                    f"ds_read_b64_tr_b16 {vr(f+6,2)}, v{WQ} offset:{o+256}"]
        for k in range(3):
            for r in qreads(k): a(r)
        for k in range(28):
            f = FR + 8*(k % 4)
            for x in bars.get(k+3, []): a(x)
            a(f"s_waitcnt lgkmcnt({3*min(2, 27-k)})")
            a(f"{MF} {vr(acc,16)}, {vr(f+4,4)}, {vr(f,4)}, {c0 if k == 0 else vr(acc,16)}")
            if k+3 < 28:
                for x in qreads(k+3): a(x)
    def phase1b(late):
        for i in range(4): a(f"v_add_u32 v{XA+i}, 65536, v{XQ+i}")
        if STAMP != 8: stampc(a, 4)
        a("s_barrier")
        if STAMP == 6: stampc(a, 15)
        bars = {20: ["s_barrier"]}
        if late: bars[16] = ["s_waitcnt vmcnt(0)", "s_barrier", "s_barrier"]
        qpass(1, QB, "0", bars)
        if STAMP == 6: stampc(a, 9)
        a("v_add_u32 v1, s39, v13")
        a("s_waitcnt vmcnt(0)")
        a("s_barrier")
        if STAMP == 6: stampc(a, 10)
        a("v_mov_b32 v54, 0")
        a("v_mov_b32 v55, 0")
        a("s_nop 7")
        a(f"v_mov_b32 v14, v{QB+12}")
        a(f"v_mov_b32 v15, v{QB+12}")
        vmul(a, QB, "s65", 8)
        a("v_permlane32_swap_b32 v15, v14")
        cvt(a, 48, QB, 0, 4)
        a("ds_write_b128 v1, v[48:51]")
        vmul(a, QB+8, "s65", 8)
        cvt(a, 48, QB, 4, 6)
        a("s_mov_b32 exec_hi, 0")
        cvt(a, 48, QB, 6, 8)
        a("s_mov_b32 exec_hi, -1")
        a("ds_write_b128 v1, v[52:55] offset:1024")
        if STAMP == 6: stampc(a, 11)
        a("s_waitcnt lgkmcnt(0)")
        a("s_barrier")
        if STAMP == 6: stampc(a, 12)
        qpass(0, QA, "1.0", {16: ["s_barrier"]})
        if STAMP != 8: stampc(a, 5)
    def defer_q(a, mats):
        PP = QB + 8
        w = [f"v_mul_f32 v14, {f32(-LOG2E)}, v14", "v_exp_f32 v14, v14", f"v_mov_b32 v{PP+6}, 0", f"v_mov_b32 v{PP+7}, 0",
             "v_add_f32 v14, 1.0, v14", "v_rcp_f32 v14, v14"] + phi_list(QA, QB)
        for i, x in enumerate(w):
            if mats and i % 7 == 0: a(mats.pop(0))
            a(x)
        for x in mats: a(x)
        cvt(a, PP, QA, 0, 6)
        a("s_mov_b32 exec_hi, 0")
        cvt(a, PP, QA, 6, 8)
        a("s_mov_b32 exec_hi, -1")
        a(f"ds_write_b128 v1, {vr(PP,4)} offset:8192")
        a(f"ds_write_b128 v1, {vr(PP+4,4)} offset:9216")
        a("v_lshl_add_u32 v15, v0, 2, s48")
        a("ds_write_b32 v15, v14")
        a("v_sub_f32 v14, 1.0, v14")
    O = [16, 32, 48, 64]; S = [80, 96, 112, 128]; Q = [0, 8, 16, 24]; KV = [32, 48, 64, 80]
    RA = 144
    def ld(dst, off, v="v1", so="s58"):
        return f"buffer_load_dwordx4 {ar(dst,4)}, {v}, {WSR}, {so} offen" + (f" offset:{off}" if off else "") + " sc1"
    adv = ["s_add_u32 s58, s58, 4096"]
    ZR = ar(KV[3]+12, 4)
    zero = lambda d: f"{MF} {vr(d,16)}, {ZR}, {ZR}, 0"
    def pre(a):
        for i in range(4): a(f"v_accvgpr_write_b32 a{KV[3]+12+i}, 0")
        a("v_add_u32 v4, s44, v13")
        a(f"v_mov_b32 v5, {L_CNT}")
        a("v_mov_b32 v6, 1")
    def first_loads(work):
        if STAMP != 8: stampc(a, 7)
        a("v_add_u32 v7, s45, v13")
        a("s_mov_b32 s58, 4096")
        a("s_mov_b32 s59, 8192")
        for f in range(4):
            a(ld(KV[0]+4*f, 1024*f, "v7", "0"))
            a(f"v_add_u32 v{8+f}, s{36+f}, v13")
            a(f"ds_read_b128 {ar(Q[f],4)}, v{8+f}")
            a(f"ds_read_b128 {ar(Q[f]+4,4)}, v{8+f} offset:1024")
        sub = Asm(); work(sub)
        lines = sub.lines
        rest = [ld(KV[n]+4*f, 1024*f, "v7", f"s{57+n}") for n in (1, 2) for f in range(4)]
        gap = int(E("LG", "8")); full = True
        for i, l in enumerate(lines):
            a.lines.append(l)
            if "exec" in l and l.strip().startswith("s_mov"): full = l.strip().endswith("-1")
            if rest and full and i % gap == gap - 1: a(rest.pop(0))
        for x in rest: a(x)
        a("s_mov_b32 s58, 12288")

    for i in range(32): a(f"v_mov_b32 v{accK[0]+i}, 0")
    for s in range(2):
        a(f"v_mov_b32 v{pK[s]+6}, v1"); a(f"v_mov_b32 v{pK[s]+7}, v1")
    a("v_and_b32 v15, 0x33, v0")
    a("v_bfe_u32 v1, v0, 2, 1")
    a("v_lshl_add_u32 v15, v1, 3, v15")
    a("v_bfe_u32 v1, v0, 3, 1")
    a("v_lshl_add_u32 v15, v1, 2, v15")
    a("v_lshlrev_b32 v15, 4, v15")
    a("s_lshl_b32 s58, s25, 1")
    a("s_add_u32 s58, s58, s93")
    a("s_lshl_b32 s58, s58, 2")
    a("s_add_u32 s58, s58, s34")
    a(f"s_mul_i32 s58, s58, {PAD}")
    a("s_lshl_b32 s59, s29, 1")
    a("s_add_u32 s59, s59, s92")
    a("s_lshl_b32 s59, s59, 13")
    a("s_add_u32 s58, s58, s59")
    a("s_add_u32 s59, s58, 4096")
    scalars()
    mainloop("B", True)
    cvt_v()
    st = []
    for s in range(2):
        st.append(f"buffer_store_dwordx4 {vr(pV[s],4)}, v13, {WSR}, s{58+s} offen offset:2048 sc1")
        st.append(f"buffer_store_dwordx4 {vr(pV[s]+4,4)}, v13, {WSR}, s{58+s} offen offset:3072 sc1")
    for s in range(2):
        st.append(f"buffer_store_dwordx4 {vr(pK[s],4)}, v15, {WSR}, s{58+s} offen sc1")
        st.append(f"buffer_store_dwordx4 {vr(pK[s]+4,4)}, v15, {WSR}, s{58+s} offen offset:1024 sc1")
    if "plainkv" in X: st = [x.replace(" sc1", "") for x in st]
    for x in st[:4]: a(x)
    for s in range(2):
        cvt(a, pK[s], accK[s], 0, 6)
        a("s_mov_b32 exec_hi, 0")
        cvt(a, pK[s], accK[s], 6, 8)
        a("s_mov_b32 exec_hi, -1")
        for x in st[4+2*s:6+2*s]: a(x)
    phase1b(False)
    DPRE = E("DPRE", "1") == "1"
    def workB(a):
        a("s_nop 7")
        pre(a)
        defer_q(a, [zero(d) for d in O + [S[3]]])
    if DPRE: workB(a)
    a("s_waitcnt lgkmcnt(0)")
    if STAMP != 8: stampc(a, 6)
    a("s_barrier")
    first_loads((lambda a: None) if DPRE else workB)
    a("s_branch C_2")

    a.label("C_A")
    for i in range(32): a(f"v_mov_b32 v{accK[0]+i}, 1.0")
    for s in range(2):
        for i in range(8): a(f"v_mov_b32 v{pK[s]+i}, 0")
    scalars()
    mainloop("A", False)
    cvt_v()
    pend = phi_list(accK[0], 52) + phi_list(accK[1], 52)
    phase1b(False)
    D = accK[1]
    APRE = int(E("APRE", "1"))
    kvm = [f"{MF} {vr(D,16)}, {vr(pK[0],4)}, {vr(pV[0],4)}, 0",
           f"{MF} {vr(D,16)}, {vr(pK[0]+4,4)}, {vr(pV[0]+4,4)}, {vr(D,16)}",
           f"{MF} {vr(D,16)}, {vr(pK[1],4)}, {vr(pV[1],4)}, {vr(D,16)}",
           f"{MF} {vr(D,16)}, {vr(pK[1]+4,4)}, {vr(pV[1]+4,4)}, {vr(D,16)}"]
    def part1(a):
        for x in pend: a(x)
        a("s_mov_b64 exec, s[56:57]")
        for s in range(2): cvt(a, pK[s], accK[s])
        a("s_mov_b64 exec, -1")
        a("s_nop 1")
    def part2(a):
        pre(a)
        defer_q(a, kvm + [zero(d) for d in O + [S[3]]])
        a("v_add_u32 v15, s47, v13")
        for q in range(4):
            a(f"ds_write_b128 v15, {vr(D+4*q,4)} offset:{1024*q}")
    if APRE >= 1: part1(a)
    if DPRE: part2(a)
    a("s_waitcnt lgkmcnt(0)")
    if STAMP != 8: stampc(a, 6)
    a("s_barrier")
    def workA(a):
        if APRE < 1: part1(a)
        if not DPRE: part2(a)
    first_loads(workA)

    a.label("C_2")
    if PT: a("s_setprio 1")
    a("v_mov_b32 v2, 0xdddd")
    a("v_mov_b32 v3, 0")
    a("v_mov_b32 v1, v7")
    a("s_mov_b32 s59, 3")
    for s in range(4): a(f"v_add_u32 v{RA+s}, s{40+s}, v13")
    a("s_waitcnt vmcnt(10) lgkmcnt(0)")
    stampc(a, 8)
    a("s_mov_b64 exec, 1")
    a("ds_add_u32 v5, v6 offset:8")
    a("ds_read_b32 v6, v5 offset:20")
    a("s_mov_b64 exec, -1")
    a(f"{MF} {vr(S[0],16)}, {ar(KV[0],4)}, {ar(Q[0],4)}, 0")
    a(f"{MF} {vr(S[0],16)}, {ar(KV[0]+4,4)}, {ar(Q[0]+4,4)}, {vr(S[0],16)}")
    a("s_waitcnt vmcnt(8) lgkmcnt(0)")
    a("v_readfirstlane_b32 s87, v6")
    a("s_nop 8")
    if E("STG", ""):
        for i in range(1, 4):
            a(f"s_cmp_ge_u32 s27, {i}")
            a("s_cbranch_scc0 C_STG")
            a("s_nop %s" % E("STG", ""))
        a.label("C_STG")
    def unit(pos, cur, nxt, prv, slot):
        sc = S[pos & 3]; sn = S[(pos+1) & 3]; sp = S[(pos-1) & 3]
        e = [f"v_exp_f32 v{sc+i}, v{sc+i}" for i in range(16)]
        if nxt: a(f"{MF} {vr(sn,16)}, {ar(KV[nxt[0]],4)}, {ar(Q[nxt[1]],4)}, 0")
        for x in slot[0]: a(x)
        for x in e[0:4]: a(x)
        a(f"{SM} {vr(O[prv[1]],16)}, {ar(KV[prv[0]]+12,4)}, {vr(sp+8,8)}, v2")
        for x in slot[1]: a(x)
        for x in e[4:8]: a(x)
        if nxt: a(f"{MF} {vr(sn,16)}, {ar(KV[nxt[0]]+4,4)}, {ar(Q[nxt[1]]+4,4)}, {vr(sn,16)}")
        for x in slot[2]: a(x)
        for x in e[8:12]: a(x)
        a(f"{SM} {vr(O[cur[1]],16)}, {ar(KV[cur[0]]+8,4)}, {vr(sc,8)}, v2")
        for x in slot[3]: a(x)
        if nxt:
            for _ in range(2 - min(2, len(slot[2]) + len(slot[3]))): a("s_nop 0")
        for x in e[12:16]: a(x)
    LP = int(E("LP", "2"))
    ER = E("ER", "1") == "1"
    PB = S[1] if ER else 16
    FW = int(E("FW", "2"))
    def plain(n, s):
        slot = [[], [], [], []]
        slot[2].append("s_nop 0" if "nold" in X else ld(KV[(n+3) & 3] + 4*s, 1024*s).replace(" sc1", "" if "plain" in X else " sc1"))
        if s == 3: slot[3] += adv
        if not FW:
            if s == 2: slot[3].append("s_waitcnt vmcnt(7)")
        elif FW == 2:
            if s == 2: slot[3].append("s_waitcnt vmcnt(9)")
            if s == 0: slot[1].append("s_waitcnt vmcnt(8)")
        else:
            if s == 2: slot[3].append("s_waitcnt vmcnt(10)")
            if s == 3: slot[1].append("s_waitcnt vmcnt(9)")
            if s == 0: slot[1].append("s_waitcnt vmcnt(9)")
            if s == 1: slot[0].append("s_waitcnt vmcnt(9)")
        return slot
    a(".p2align 6")
    a.label("C_ATT")
    for n in range(4):
        for s in range(4):
            slot = plain(n, s)
            if n == 3 and s == 1: slot[3].append("s_sub_u32 s59, s59, 1")
            if n == 3 and s == 3: slot[3].append("s_cmp_lg_u32 s59, 0")
            unit(s, (n, s), ((n + (s == 3)) & 3, (s+1) & 3), ((n - (s == 0)) & 3, (s-1) & 3), slot)
    a("s_cbranch_scc1 C_ATT")
    seq = [(0, s) for s in range(4)] + [(1, s) for s in range(4)] + [(n, s) for s in range(4) for n in (2, 3)]
    for i, cur in enumerate(seq):
        nxt = seq[i+1] if i < 15 else None
        prv = seq[i-1] if i > 0 else (3, 3)
        slot = plain(*cur) if i < 4 else [[], [], [], []]
        if not FW:
            if i == 6: slot[3].append("s_waitcnt vmcnt(0)")
        else:
            w = {4: (1, 8), 6: (3, 6), 7: (3, 2), 9: (1, 0)}.get(i) if FW == 2 else {4: (1, 9), 5: (0, 8), 6: (3, 6), 7: (3, 2), 9: (1, 1), 10: (0, 0)}.get(i)
            if w: slot[w[0]].append(f"s_waitcnt vmcnt({w[1]})")
        wr = lambda s_, q: f"ds_write_b128 v{RA+s_}, {vr(O[s_]+4*q,4)} offset:{1024*q}"
        if ER:
            plan = {11: {0: (0, 0), 2: (0, 1)}, 12: {0: (0, 2), 2: (0, 3)}, 13: {0: (1, 0), 1: (1, 1), 2: (1, 2), 3: (1, 3)},
                    15: {0: (2, 0)}}
            for sl, (s_, q) in plan.get(i, {}).items(): slot[sl].append(wr(s_, q))
            if i == 14: tail4 = [wr(2, 0), wr(2, 1)]
            if i == 15:
                slot[0] = [wr(2, 2), wr(2, 3)]
                slot[2] = ["s_waitcnt lgkmcnt(0)", "s_barrier"] + \
                          [f"ds_read_b128 {vr(O[0]+4*k,4)}, v{RA+3} offset:{1024*((k % 3)*4 + k // 3)}" for k in range(6)]
                slot[3] = [f"ds_read_b128 {vr(O[0]+4*k,4)}, v{RA+3} offset:{1024*((k % 3)*4 + k // 3)}" for k in range(6, 12)]
        else:
            for first, s_ in ((11, 0), (13, 1)):
                if i in (first, first+1):
                    for q in range(2):
                        slot[1 + 2*q].append(wr(s_, 2*(i - first) + q))
            if i == 15:
                for q in range(4): slot[q].append(wr(2, q))
        unit(i, cur, nxt, prv, slot)
        if ER and i == 14:
            for x in tail4: a(x)
        if i == int(E("XP", "5")):
            if STAMP == 4: stampc(a, 1)
            a("s_barrier")
            if STAMP == 4: stampc(a, 2)
    a("s_setprio 1")
    a(f"v_mov_b32 v{PB+6}, 0")
    a(f"{SM} {vr(O[3],16)}, {ar(KV[3]+12,4)}, {vr(S[3]+8,8)}, v2")
    a(f"v_mov_b32 v{PB+7}, 0")
    a(f"s_mov_b32 s62, {f32(2.0**-60)}")
    a(f"s_mov_b32 s63, {f32(2.0**120)}")
    RB = O[0] if ER else S[0]
    if not ER:
        a("s_waitcnt lgkmcnt(0)")
        a("s_barrier")
    if STAMP != 6: stampc(a, 9)
    if not ER:
        for i in range(12):
            a(f"ds_read_b128 {vr(RB+4*i,4)}, v{RA+3} offset:{1024*((i % 3)*4 + i // 3)}")
    for q in range(4):
        a(f"s_waitcnt lgkmcnt({9-3*q})")
        b = RB + 12*q
        vadd(a, b, b+4, 4)
        vadd(a, b, b+8, 4)
    for q in range(4):
        vadd(a, O[3]+4*(3-q), RB+12*(3-q), 4)
    if STAMP == 8: stampc(a, 1)
    a(f"v_mov_b32 v6, v{O[3]+12}")
    a(f"v_mov_b32 v7, v{O[3]+12}")
    a(f"v_maximum3_f32 v8, abs(v{O[3]+12}), abs(v{O[3]+13}), abs(v{O[3]+14})")
    a(f"v_maximum3_f32 v9, abs(v{O[3]+15}), abs(v{O[3]+8}), abs(v{O[3]+9})")
    a("v_permlane32_swap_b32 v6, v7")
    for i, (x, y) in enumerate(((10, 11), (4, 5), (6, 7), (0, 1), (2, 3))):
        a(f"v_maximum3_f32 v{8+(i&1)}, v{8+(i&1)}, abs(v{O[3]+x}), abs(v{O[3]+y})")
    a("v_cmp_nge_f32 vcc, v7, s62")
    a("v_maximum3_f32 v8, v8, v9, v9")
    a("v_rcp_f32 v7, v7")
    a("v_cmp_nlt_f32 s[64:65], v8, s63")
    a("s_or_b64 vcc, vcc, s[64:65]")
    a("s_cbranch_scc1 C_FALLBACK")
    a.label("C_FIN")
    if STAMP == 8: stampc(a, 2)
    a(f"v_mov_b32 v5, {RING + 49152 - 16}")
    a("s_cmp_eq_u32 s27, 3")
    a("s_cbranch_scc0 C_NOCLR")
    a("ds_write_b32 v5, v3")
    a.label("C_NOCLR")
    a("v_mul_f32 v7, v7, v14")
    vmul(a, O[3], "v7", 8)
    cvt(a, PB, O[3], 0, 4)
    a(f"buffer_store_dwordx4 {vr(PB,4)}, v13, {WSR}, s46 offen sc1")
    vmul(a, O[3]+8, "v7", 8)
    cvt(a, PB, O[3], 4, 6)
    a("s_mov_b32 exec_hi, 0")
    cvt(a, PB, O[3], 6, 8)
    a("s_mov_b32 exec_hi, -1")
    a(f"buffer_store_dwordx4 {vr(PB+4,4)}, v13, {WSR}, s46 offen offset:1024 sc1")
    if STAMP == 8: stampc(a, 3)
    a("s_waitcnt lgkmcnt(0)")
    a("s_barrier")
    if STAMP != 6: stampc(a, 10)
    a("s_mul_i32 s60, s92, 28672")
    a("s_add_u32 s60, s60, 57344")
    a("s_lshl_b32 s61, s92, 6")
    a("v_mov_b32 v1, v5")
    p3_addr(a, 4, "s60", "s61", 8, 9)
    a("s_lshl_b32 s60, s27, 13")
    a(f"s_add_u32 s60, s60, {RING}")
    a("v_add_u32 v8, s60, v13")
    a("s_lshl_b32 s60, s27, 12")
    a(f"s_add_u32 s60, s60, {RING + 32768}")
    a("v_add_u32 v9, s60, v13")
    a("v_xor_b32 v10, 8192, v9")
    a("s_lshl_b32 s60, s30, 1")
    a("s_add_u32 s60, s60, s93")
    if E("TS", "1") == "1":
        a("v_and_b32 v11, 31, v0")
        a("v_lshrrev_b32 v12, 5, v0")
        a("s_lshl_b32 s61, s92, 2")
        a("v_add_u32 v12, s61, v12")
        a("v_and_b32 v15, 7, v0")
        a("v_xor_b32 v12, v12, v15")
        a("s_lshl_b32 s61, s93, 12")
        a(f"s_add_u32 s61, s61, {RING}")
        a("v_lshl_add_u32 v11, v11, 7, s61")
        a("v_lshl_add_u32 v11, v12, 4, v11")
        a("v_xor_b32 v2, 32, v11")
        a("v_lshrrev_b32 v12, 3, v0")
        a("v_xor_b32 v15, v15, v12")
        a("s_lshl_b32 s61, s30, 6")
        a("s_lshl_b32 s63, s27, 4")
        a("s_add_u32 s61, s61, s63")
        a("v_add_u32 v12, s61, v12")
        a("v_mul_u32_u24 v12, 896, v12")
        a("v_lshl_add_u32 v15, v15, 4, v12")
    else:
        a("v_and_b32 v11, 31, v0")
        a("s_lshl_b32 s61, s60, 5")
        a("v_add_u32 v11, s61, v11")
        a("v_mul_u32_u24 v11, 896, v11")
        a("v_lshrrev_b32 v12, 5, v0")
        a("v_lshl_add_u32 v11, v12, 4, v11")
    a(f"s_mul_i32 s60, s60, {PAD}")
    a("s_lshl_b32 s61, s92, 14")
    a("s_add_u32 s60, s60, s61")
    a(f"s_add_u32 s60, s60, {WS_OF + 32768}")
    a("s_and_b32 s61, s30, 0xfe")
    a("s_lshl_b32 s61, s61, 10")
    a(f"s_add_u32 s61, s61, {C_OB}")
    a("s_lshl_b32 s62, s31, 7")
    if E("TS", "1") == "1":
        a("s_add_u32 s63, s62, 7168")
    else:
        a("s_lshl_b32 s63, s92, 6")
        a("s_add_u32 s62, s62, s63")
    srd(a, SX, 18, 1835008)
    a("s_lshl_b32 s64, s24, 4")
    a("s_add_u32 s64, s64, s28")
    a("s_lshl_b32 s64, s64, 7")
    a(f"s_add_u32 s64, s64, {C_OB}")
    a("v_mov_b32 v12, 1")
    a("s_mov_b64 exec, 1")
    a("s_waitcnt vmcnt(0)")
    a("ds_add_rtn_u32 v14, v1, v12")
    a("s_waitcnt lgkmcnt(0)")
    a("v_readfirstlane_b32 s69, v14")
    a("s_nop 0")
    a("s_cmp_eq_u32 s69, 3")
    a("s_mov_b64 exec, -1")
    a("s_cbranch_scc0 C_NOSIG")
    signal(a, "s64", 3, 12, 14)
    a.label("C_NOSIG")
    a("s_mov_b64 exec, -1")
    if STAMP != 6: stampc(a, 11)
    a("s_cmp_ge_u32 s32, 28")
    a("s_cbranch_scc1 C_EXIT")
    NPRE = int(E("NPRE", "10"))
    a("v_lshlrev_b32 v14, 7, v0")
    if E("DY", "0") == "1":
        a("s_lshl_b32 s64, s92, 10")
        a("s_add_u32 s61, s61, s64")
        for i in range(1, 4): a(f"s_add_u32 s{63+i}, s60, {4096*i}")
        a("s_mov_b32 s67, 0xff")
        a(f"s_mov_b32 s68, {SPIN}")
        a("s_barrier")
        for i in range(8):
            a(f"ds_read_b128 {vr(16+4*i,4)}, v8 offset:{1024*i}")
        a("s_mov_b64 exec, 0xff")
        a(f"buffer_load_dword v12, v14, {WSR}, s61 offen sc1")
        a.label("C_DYL")
        a("s_waitcnt vmcnt(0) lgkmcnt(0)")
        a("v_cmp_eq_u32 vcc, s87, v12")
        a("s_mov_b64 exec, -1")
        a("s_sub_u32 s68, s68, 1")
        a("s_cselect_b32 s69, 0xff, vcc_lo")
        a("s_lshr_b32 s49, s69, 1")
        a("s_and_b32 s69, s69, s49")
        a("s_and_b32 s69, s69, s67")
        a("s_and_b32 s69, s69, 0x55")
        a("s_cbranch_scc1 C_DYN")
        a("s_sleep %s" % E("OBS", "1"))
        a("s_mov_b32 exec_lo, s67")
        a("s_mov_b32 exec_hi, 0")
        a(f"buffer_load_dword v12, v14, {WSR}, s61 offen sc1")
        a("s_branch C_DYL")
        a.label("C_DYN")
        if STAMP not in (0, 5, 6): stampc(a, 12)
        for bb in range(4):
            a(f"s_bitcmp1_b32 s69, {2*bb}")
            a(f"s_cbranch_scc0 C_DL{bb}")
            for k in range(4):
                a(f"buffer_load_dwordx4 {ar(16*bb+4*k,4)}, v13, {WSR}, s{60 if bb == 0 else 63+bb} offen offset:{1024*k} sc1")
            a.label(f"C_DL{bb}")
        a("s_mul_i32 s49, s69, 3")
        a("s_andn2_b32 s67, s67, s49")
        a("s_max_u32 s49, s67, 1")
        a("s_mov_b32 exec_lo, s49")
        a("s_mov_b32 exec_hi, 0")
        a(f"buffer_load_dword v12, v14, {WSR}, s61 offen sc1")
        a("s_mov_b64 exec, -1")
        for bb in range(4):
            pre_, body_ = p3_block(a, 4, [16, 32], [48, 56], bb)
            a(f"s_bitcmp1_b32 s69, {2*bb}")
            a(f"s_cbranch_scc0 C_DG{bb}")
            for x in pre_: a(x)
            if bb < 3:
                a(f"s_lshr_b32 s49, s69, {2*bb+1}")
                a("s_bcnt1_i32_b32 s49, s49")
                for n in range(3 - bb, 0, -1):
                    a(f"s_waitcnt vmcnt({4*n+1})")
                    a(f"s_cmp_ge_u32 s49, {n}")
                    a(f"s_cbranch_scc1 C_DW{bb}")
            a("s_waitcnt vmcnt(1)")
            a.label(f"C_DW{bb}")
            for x in body_: a(x)
            a.label(f"C_DG{bb}")
        a("s_cmp_eq_u32 s67, 0")
        a("s_cbranch_scc1 C_DYX")
        a("s_mov_b32 exec_lo, s67")
        a("s_mov_b32 exec_hi, 0")
        a("s_branch C_DYL")
        a.label("C_DYX")
    else:
        a("s_cmp_eq_u32 s27, 0")
        a("s_cbranch_scc0 C_OBD")
        poll(a, "OB", WSR, "s61", 16, 14, 12, int(E("OBS", "1")), False)
        a.label("C_OBD")
        a("s_barrier")
        if STAMP != 6: stampc(a, 12)
        p3_oloads(a, 13, "s60", NPRE)
        for i in range(8):
            a(f"ds_read_b128 {vr(16+4*i,4)}, v8 offset:{1024*i}")
        p3_gemm(a, 4, [16, 32], [48, 56], False, NPRE, 13, "s60")
    if STAMP != 6: stampc(a, 13)
    if E("DY", "0") == "1": a("s_waitcnt vmcnt(0)")
    a("v_mov_b32 v12, v2")
    a("s_lshl_b32 s64, s27, 11")
    a(f"s_add_u32 s64, s64, {RING}")
    a("v_add_u32 v14, s64, v13")
    a("s_nop 7")
    for i in range(4):
        a(f"ds_write_b128 v9, {vr(32+4*i,4)} offset:{1024*i}")
    a("s_waitcnt lgkmcnt(0)")
    if STAMP == 8: stampc(a, 4)
    a("s_barrier")
    if STAMP == 8: stampc(a, 5)
    for i in range(4):
        a(f"ds_read_b128 {vr(32+4*i,4)}, v10 offset:{1024*i}")
    OFL = E("OFL", "sc1")
    TS = E("TS", "1") == "1"
    for hf in range(2):
        for q in (2*hf, 2*hf+1):
            a(f"s_waitcnt lgkmcnt({3-q + (1 if TS and hf else 0)})")
            vadd(a, 16+4*q, 32+4*q, 4)
        cvt(a, 48, 16, 4*hf, 4*hf+4)
        a("s_nop 1")
        a(f"v_permlane32_swap_b32 v{48+4*hf}, v{50+4*hf}")
        a(f"v_permlane32_swap_b32 v{49+4*hf}, v{51+4*hf}")
        if TS: a(f"ds_write_b128 v{11+hf}, {vr(48+4*hf,4)}")
        else: a(f"buffer_store_dwordx4 {vr(48+4*hf,4)}, v11, {R(SX)}, s62 offen offset:{32*hf} {OFL}")
    if TS:
        a("s_waitcnt lgkmcnt(0)")
        if STAMP == 8: stampc(a, 6)
        a("s_barrier")
        if STAMP == 8: stampc(a, 7)
        a("ds_read_b128 v[16:19], v14")
        a("ds_read_b128 v[20:23], v14 offset:1024")
        a("s_waitcnt lgkmcnt(1)")
        a(f"buffer_store_dwordx4 v[16:19], v15, {R(SX)}, s62 offen {OFL}")
        a("s_waitcnt lgkmcnt(0)")
        a(f"buffer_store_dwordx4 v[20:23], v15, {R(SX)}, s63 offen {OFL}")
    a.label("C_EXIT")
    if E("DIAGP", "") == "99":
        a("s_waitcnt vmcnt(0)")
        a("s_memrealtime s[100:101]")
        a("s_waitcnt lgkmcnt(0)")
    if E("DIAGT", ""):
        a("s_xor_b32 s64, s2, %s" % E("DIAGW", "0"))
        a("s_or_b32 s64, s64, s27")
        a("s_cmp_eq_u32 s64, 0")
        a("s_cbranch_scc0 C_DX")
        if E("DIAGP", ""):
            a("s_sub_u32 s100, s100, s96")
            a("s_lshl_b32 s100, s100, 1")
            a("s_add_u32 s96, s96, s100")
        a.label("C_DL")
        a("s_memrealtime s[98:99]")
        a("s_waitcnt lgkmcnt(0)")
        a("s_sub_u32 s98, s98, s96")
        a("s_cmp_lt_i32 s98, %s" % E("DIAGT", ""))
        a("s_cbranch_scc1 C_DL")
        a.label("C_DX")
    if STAMP != 6: stampc(a, 14)
    if STAMP: a("s_waitcnt vmcnt(0)")
    if STAMP != 6: stampc(a, 15)
    stamp_out(a, 16)
    a("s_endpgm")
    a.label("C_FALLBACK")
    Qo = Q[3]; K0 = KV[0]; Sx = S[0]
    def fb_adv():
        a("s_add_u32 s58, s58, 4096")
        a("s_add_u32 s59, s59, 1")
        a("s_and_b32 s61, s59, 15")
        a(f"s_cselect_b32 s61, 0, {PAD-65536}")
        a("s_add_u32 s58, s58, s61")
        a("s_nop 15")
    a("s_mov_b32 s58, 0")
    a("s_mov_b32 s59, 0")
    a(f"v_mov_b32 v8, {f32(float('-inf'))}")
    a.label("C_FB1")
    a(ld(K0, 0, "v4")); a(ld(K0+4, 1024, "v4"))
    a("s_waitcnt vmcnt(0)")
    a(f"{MF} {vr(Sx,16)}, {ar(K0,4)}, {ar(Qo,4)}, 0")
    a(f"{MF} {vr(Sx,16)}, {ar(K0+4,4)}, {ar(Qo+4,4)}, {vr(Sx,16)}")
    fb_adv()
    a("s_nop 15")
    for i in range(8):
        a(f"v_max3_f32 v8, v8, v{Sx+2*i}, v{Sx+2*i+1}")
    a("s_cmp_lt_u32 s59, 64")
    a("s_cbranch_scc1 C_FB1")
    a("v_mov_b32 v9, v8")
    a("s_nop 1")
    a("v_permlane32_swap_b32 v8, v9")
    a("v_max_f32 v8, v8, v9")
    a("v_and_b32 v9, 0xffff0000, v8")
    a("v_sub_f32 v8, v8, v9")
    a("v_and_b32 v10, 0xffff0000, v8")
    a("v_sub_f32 v8, v8, v10")
    a("v_cvt_pk_bf16_f32 v9, -v9, -v10")
    a("v_cvt_pk_bf16_f32 v8, -v8, 0")
    a("s_mov_b32 exec_lo, 0")
    a(f"v_accvgpr_write_b32 a{Qo+6}, v9")
    a(f"v_accvgpr_write_b32 a{Qo+7}, v8")
    a("s_mov_b32 exec_lo, -1")
    for i in range(16): a(f"v_mov_b32 v{O[3]+i}, 0")
    a("s_mov_b32 s58, 0")
    a("s_mov_b32 s59, 0")
    a.label("C_FB2")
    for f in range(4): a(ld(K0+4*f, 1024*f, "v4"))
    a("s_waitcnt vmcnt(0)")
    a(f"{MF} {vr(Sx,16)}, {ar(K0,4)}, {ar(Qo,4)}, 0")
    a(f"{MF} {vr(Sx,16)}, {ar(K0+4,4)}, {ar(Qo+4,4)}, {vr(Sx,16)}")
    fb_adv()
    a("s_nop 15")
    for i in range(16): a(f"v_exp_f32 v{Sx+i}, v{Sx+i}")
    a("s_nop 1")
    a(f"{SM} {vr(O[3],16)}, {ar(K0+8,4)}, {vr(Sx,8)}, v2")
    a(f"{SM} {vr(O[3],16)}, {ar(K0+12,4)}, {vr(Sx+8,8)}, v2")
    a("s_cmp_lt_u32 s59, 64")
    a("s_cbranch_scc1 C_FB2")
    a("s_nop 15")
    a("s_nop 15")
    a(f"v_mov_b32 v6, v{O[3]+12}")
    a(f"v_mov_b32 v7, v{O[3]+12}")
    a("s_nop 1")
    a("v_permlane32_swap_b32 v6, v7")
    a("v_rcp_f32 v7, v7")
    a("s_nop 0")
    a("s_branch C_FIN")

def main():
    a = Asm()
    head = f"""; out = g * linear_attention(x) + (1 - g) * softmax_attention(x),  S = 2048, D = 448, 16 heads of 28.
;      not tiny, nothing near overflow, no NaN) sends a query tile that is out of range to C_FALLBACK, which finds the
; Hand-offs between workgroups: write-through (sc1) stores, drained by every storing wave, then one flag line per
; producer; consumers poll with sc1 loads (bounded) and read the data with sc1 loads. A flag is up when it holds this
; @launch grid=(256,1,1) block=(512,1,1) lds=163840
.amdgcn_target "amdgcn-amd-amdhsa--gfx950"
.text
"""
    gen(a)
    out = head + a.text() + '.section .rodata,"a"\n' + kernel_desc(KN, 256, 102, 160)
    path = sys.argv[1] if len(sys.argv) > 1 else f"cdna_kernels/{NAME}.s"
    open(path, "w").write(out)
main()
```

```python
import math, sys, os, struct
from asmlib import *

NAME = "gated_mix__linear_attn_block__mha_block__prompt"
KN = NAME + "_kernel"
WS_KV  = 0
WS_CNT = 5 << 20
WS_KVP = 6 << 20
WS_OF  = 8 << 20
PAD = int(os.environ.get("PAD", "69632"))
WS_ST  = 14 << 20
WS_SIZE = 16 << 20
LOG2E = 1.4426950408889634
QSCALE = LOG2E * 28 ** -0.5
EPS = 1e-6
ONE2 = 0x3F803F80
RING = 114688
L_KVD = RING
L_G   = RING + 16384 + 15360
L_KVF = RING + 16384 + 12288
L_CNT = RING + 16384 + 14336
L_QD  = RING + 32768
L_PQ  = RING + 32768 + 8192
STAMP = int(os.environ.get("STAMP", "0"))
X = set(os.environ.get("X", "").split(","))
MF = "v_mfma_f32_32x32x16_bf16"
SM = "v_smfmac_f32_32x32x32_bf16"
SX, SW, SWA, SWB, SWS, SD, SG = 36, 40, 44, 48, 52, 56, 60
WSR = f"s[{SWS}:{SWS+3}]"
SPIN = 200000
WFL = os.environ.get("WFL", "")
XFL = os.environ.get("XFL", "")

def srd(a, d, lo, size):
    a(f"s_mov_b32 s{d}, s{lo}")
    a(f"s_mov_b32 s{d+1}, s{lo+1}")
    a(f"s_mov_b32 s{d+2}, {size}")
    a(f"s_mov_b32 s{d+3}, 0x20000")
def R(d): return f"s[{d}:{d+3}]"

def stamp(a, i, mode=1):
    if not STAMP: return
    if mode is not None and mode != STAMP: return
    if i == 0: a("s_memrealtime s[96:97]")
    a("s_memrealtime s[94:95]" if os.environ.get("RT") else "s_memtime s[94:95]")
    a("s_waitcnt lgkmcnt(0)")
    a(f"s_mov_b32 s{70+i}, s94")
def stampc(a, i):
    if os.environ.get("DIAGP") == str(i):
        a("s_memrealtime s[100:101]")
        a("s_waitcnt lgkmcnt(0)")
    if STAMP == 5: return
    stamp(a, i, None)
def stamp_out(a, n):
    if not STAMP: return
    a("s_memrealtime s[98:99]")
    a("s_waitcnt lgkmcnt(0)")
    a("s_mov_b64 exec, 1")
    a("s_lshl_b32 s94, s2, 3")
    a("s_add_u32 s94, s94, s35")
    a("s_lshl_b32 s94, s94, 7")
    a(f"s_add_u32 s94, s94, {WS_ST}")
    a("v_mov_b32 v1, 0")
    for i in range(n if STAMP != 5 else 0):
        a(f"v_mov_b32 v2, s{70+i}")
        a(f"buffer_store_dword v2, v1, {WSR}, s94 offen offset:{4*i}")
    a("v_mov_b32 v2, s96")
    a(f"buffer_store_dword v2, v1, {WSR}, s94 offen offset:120")
    a("v_mov_b32 v2, s98")
    a(f"buffer_store_dword v2, v1, {WSR}, s94 offen offset:124")

def dma_lane_w(a, vdst, vt0, vt1, rowstride):
    a(f"v_lshrrev_b32 v{vt0}, 4, v0")
    a(f"v_bfe_u32 v{vt1}, v0, 2, 2")
    a(f"v_and_b32 v{vdst}, 1, v{vt0}")
    if "noswz" not in X: a(f"v_xor_b32 v{vt1}, v{vt1}, v{vdst}")
    a(f"v_lshrrev_b32 v{vdst}, 1, v{vt1}")
    a(f"v_lshl_add_u32 v{vt0}, v{vt0}, 1, v{vdst}")
    a(f"v_mul_u32_u24 v{vt0}, {rowstride}, v{vt0}")
    a(f"v_and_b32 v{vt1}, 1, v{vt1}")
    a(f"v_lshl_add_u32 v{vt0}, v{vt1}, 6, v{vt0}")
    a(f"v_and_b32 v{vt1}, 3, v0")
    a(f"v_lshl_add_u32 v{vdst}, v{vt1}, 4, v{vt0}")

def tr_lane_addr(a, vdst, vb, vt0, vt1, hlshift):
    a(f"v_bfe_u32 v{vt0}, v0, 4, 1")
    a(f"v_lshl_add_u32 v{vb}, v{vt0}, 5, v{vb}")
    a(f"v_and_b32 v{vt0}, 3, v0")
    a(f"v_lshl_add_u32 v{vb}, v{vt0}, 3, v{vb}")
    a(f"v_bfe_u32 v{vt0}, v0, 2, 1")
    a(f"v_lshrrev_b32 v{vt1}, 6, v{vb}")
    a(f"v_lshl_add_u32 v{vt0}, v{vt0}, 1, v{vt1}")
    a(f"v_bfe_u32 v{vt1}, v0, 3, 1")
    a(f"v_xor_b32 v{vt0}, v{vt0}, v{vt1}")
    a(f"v_and_b32 v{vb}, 63, v{vb}")
    a(f"v_lshl_add_u32 v{vb}, v{vt0}, 6, v{vb}")
    a(f"v_lshrrev_b32 v{vt0}, 5, v0")
    a(f"v_lshl_add_u32 v{vt0}, v{vt0}, {hlshift}, v{vt1}")
    a(f"v_lshl_add_u32 v{vdst}, v{vt0}, 8, v{vb}")

C_KV, C_A, C_OA, C_OB = WS_CNT, WS_CNT + 128*128, WS_CNT + 256*128, WS_CNT + 512*128
NFLAG = 768
def poll(a, tag, srdreg, soff, nl, vl, vt, sleep=0, first=True):
    a(f"s_mov_b64 exec, {(1 << nl) - 1}")
    a(f"s_mov_b32 s68, {SPIN}")
    if sleep and first: a(f"s_branch POLL_{tag}")
    a.label(f"POLLS_{tag}")
    if sleep: a(f"s_sleep {sleep}")
    a.label(f"POLL_{tag}")
    if tag in os.environ.get("PAT", "").split(","):
        a(f"v_mov_b32 v{vt}, 0")
        a(f"buffer_atomic_or v{vt}, v{vl}, {srdreg}, {soff} offen sc0 sc1")
    else:
        a(f"buffer_load_dword v{vt}, v{vl}, {srdreg}, {soff} offen sc1")
    a("s_sub_u32 s68, s68, 1")
    a(f"s_cbranch_scc1 POLLX_{tag}")
    a("s_waitcnt vmcnt(0)")
    a(f"v_cmp_eq_u32 vcc, 0, v{vt}" if tag.startswith("INIT") else f"v_cmp_ne_u32 vcc, s87, v{vt}")
    a(f"s_cbranch_vccnz POLLS_{tag}")
    a.label(f"POLLX_{tag}")
    a("s_mov_b64 exec, -1")

def poll2(a, tag, soff, nl, vl, vt, gap):
    a(f"s_mov_b64 exec, {(1 << nl) - 1}")
    a(f"s_mov_b32 s68, {SPIN}")
    a(f"buffer_load_dword v{vt}, v{vl}, {WSR}, {soff} offen sc1")
    a.label(f"POLL_{tag}")
    for i in range(2):
        if gap: a(f"s_sleep {gap}")
        a(f"buffer_load_dword v{vt+1-i}, v{vl}, {WSR}, {soff} offen sc1")
        a("s_waitcnt vmcnt(1)")
        a(f"v_cmp_ne_u32 vcc, s87, v{vt+i}")
        a(f"s_cbranch_vccz POLLX_{tag}")
    a("s_sub_u32 s68, s68, 1")
    a(f"s_cbranch_scc0 POLL_{tag}")
    a.label(f"POLLX_{tag}")
    a("s_mov_b64 exec, -1")

def lds_wait(a, tag, vaddr, off, target, vt, sleep=1):
    a("s_mov_b64 exec, 1")
    a(f"s_mov_b32 s68, {SPIN}")
    a.label(f"LW_{tag}")
    a(f"s_sleep {sleep}")
    a(f"ds_read_b32 v{vt}, v{vaddr} offset:{off}")
    a("s_waitcnt lgkmcnt(0)")
    a(f"v_readfirstlane_b32 s69, v{vt}")
    a("s_sub_u32 s68, s68, 1")
    a(f"s_cbranch_scc1 LWX_{tag}")
    a(f"s_cmp_ge_u32 s69, {target}")
    a(f"s_cbranch_scc0 LW_{tag}")
    a.label(f"LWX_{tag}")
    a("s_mov_b64 exec, -1")

def signal(a, soff, vz, vt, full=None):
    if full and os.environ.get("FL", "1") == "1":
        a("s_mov_b32 exec_hi, 0")
        a(f"v_lshlrev_b32 v{full}, 2, v0")
        a(f"v_mov_b32 v{vt}, s87")
        a(f"buffer_store_dword v{vt}, v{full}, {WSR}, {soff} offen {os.environ.get('SFL', 'sc1')}")
        a("s_mov_b32 exec_hi, -1")
        return
    a("s_mov_b64 exec, 1")
    a(f"v_mov_b32 v{vt}, s87")
    a(f"buffer_store_dword v{vt}, v{vz}, {WSR}, {soff} offen sc1")
    a("s_mov_b64 exec, -1")

def cvt(a, dst, src, lo=0, hi=8):
    for i in range(lo, hi):
        a(f"v_cvt_pk_bf16_f32 v{dst+i}, v{src+2*i}, v{src+2*i+1}")

def vadd(a, dst, src, n):
    for i in range(n): a(f"v_add_f32 v{dst+i}, v{dst+i}, v{src+i}")
def vmul(a, dst, mul, n):
    for i in range(n): a(f"v_mul_f32 v{dst+i}, {mul}, v{dst+i}")

def phi_list(src, T, n=16, grp=8):
    o = []
    for g0 in range(0, n, grp):
        o += [f"v_fma_f32 v{T+i}, v{src+g0+i}, s64, -s64" for i in range(grp)]
        o += [f"v_exp_f32_e64 v{T+i}, v{T+i} clamp" for i in range(grp)]
        o += [f"v_max_f32 v{src+g0+i}, v{src+g0+i}, v{T+i}" for i in range(grp)]
        o += [f"v_add_f32 v{src+g0+i}, s66, v{src+g0+i}" for i in range(grp)]
    return o

def p3_addr(a, v0a, mat_off_sgpr, swap_sgpr, vt0, vt1):
    a(f"v_mov_b32 v{v0a+1}, 0")
    tr_lane_addr(a, v0a, v0a+1, vt0, vt1, 1)
    a(f"v_add_u32 v{v0a}, {mat_off_sgpr}, v{v0a}")
    a(f"v_xor_b32 v{v0a}, {swap_sgpr}, v{v0a}")
    a(f"v_xor_b32 v{v0a+1}, 64, v{v0a}")
    a(f"v_lshrrev_b32 v{vt0}, 5, v0")
    a(f"v_lshlrev_b32 v{vt0}, 9, v{vt0}")
    a(f"v_sub_u32 v{v0a+2}, v{v0a}, v{vt0}")
    a(f"v_sub_u32 v{v0a+3}, v{v0a+1}, v{vt0}")

def p3_oload(ks, vlane16, so):
    o = [f"buffer_load_dwordx4 {ar(4*ks,4)}, v{vlane16}, {WSR}, {so} offen offset:{1024*(ks&3)} sc1"]
    if ks & 3 == 3 and ks < 15: o.append(f"s_add_u32 {so}, {so}, 4096")
    return o

def p3_gemm(a, va, ACC, WF, first_zero, npre, vlane16, so):
    def reads(ks):
        f = WF[ks & 1]; hh, m = ks >> 1, ks & 1
        o = (14*hh + 8*m) * 256
        last = (ks == 15)
        return [f"ds_read_b64_tr_b16 {vr(f,2)}, v{va} offset:{o}",
                f"ds_read_b64_tr_b16 {vr(f+2,2)}, v{va+2 if last else va} offset:{o+1024}",
                f"ds_read_b64_tr_b16 {vr(f+4,2)}, v{va+1} offset:{o}",
                f"ds_read_b64_tr_b16 {vr(f+6,2)}, v{va+3 if last else va+1} offset:{o+1024}"]
    for x in reads(0): a(x)
    issued = npre
    for ks in range(16):
        f = WF[ks & 1]
        rd = reads(ks+1) if ks < 15 else []
        c0 = "0" if (first_zero and ks == 0) else vr(ACC[0], 16)
        c1 = "0" if (first_zero and ks == 0) else vr(ACC[1], 16)
        if issued < 16:
            for x in p3_oload(issued, vlane16, so): a(x)
            issued += 1
        a(f"s_waitcnt vmcnt({issued-1-ks}) lgkmcnt(2)")
        a(f"{MF} {vr(ACC[0],16)}, {vr(f,4)}, {ar(4*ks,4)}, {c0}")
        for x in rd[:2]: a(x)
        a(f"s_waitcnt lgkmcnt({2 if rd else 0})")
        a(f"{MF} {vr(ACC[1],16)}, {vr(f+4,4)}, {ar(4*ks,4)}, {c1}")
        for x in rd[2:]: a(x)

def p3_block(a, va, ACC, WF, b):
    def reads(ks):
        f = WF[ks & 1]; hh, m = ks >> 1, ks & 1
        o = (14*hh + 8*m) * 256
        last = (ks == 15)
        return [f"ds_read_b64_tr_b16 {vr(f,2)}, v{va} offset:{o}",
                f"ds_read_b64_tr_b16 {vr(f+2,2)}, v{va+2 if last else va} offset:{o+1024}",
                f"ds_read_b64_tr_b16 {vr(f+4,2)}, v{va+1} offset:{o}",
                f"ds_read_b64_tr_b16 {vr(f+6,2)}, v{va+3 if last else va+1} offset:{o+1024}"]
    pre = reads(4*b)
    body = []
    for ks in range(4*b, 4*b+4):
        f = WF[ks & 1]
        rd = reads(ks+1) if ks < 4*b+3 else []
        body.append("s_waitcnt lgkmcnt(2)")
        body.append(f"{MF} {vr(ACC[0],16)}, {vr(f,4)}, {ar(4*ks,4)}, {vr(ACC[0],16)}")
        body += rd[:2]
        body.append(f"s_waitcnt lgkmcnt({2 if rd else 0})")
        body.append(f"{MF} {vr(ACC[1],16)}, {vr(f+4,4)}, {ar(4*ks,4)}, {vr(ACC[1],16)}")
        body += rd[2:]
    return pre, body

def p3_oloads(a, vlane16, so, n):
    for ks in range(n):
        for x in p3_oload(ks, vlane16, so): a(x)

E = lambda k, d: os.environ.get(k, d)
ROT = 1
XE = int(E("XE", "1"))
SWP = E("SWP", "0") == "1"
M1, M2 = (0, 1) if SWP else (1, 0)
QSLOT = {(M1, 0): 1, (M1, 1): 2, (M2, 0): 0, (M2, 1): 1}
PT = E("PT", "0") == "1"
def gen(a):
    kernel_head(a, KN)
    a("s_cmp_ge_u32 s2, 256")
    a("s_cbranch_scc1 L_END")
    a("s_load_dwordx16 s[4:19], s[0:1], 0")
    a("s_load_dwordx4 s[20:23], s[0:1], 64")
    if STAMP or E("DIAGT", ""):
        a("s_memrealtime s[96:97]")
        a("s_memtime s[70:71]")
    if E("PC", "1") == "1":
        a("s_getpc_b64 s[40:41]")
        a.label("L_PC")
        a("s_mov_b32 s42, L_CODE_END-L_PC")
        a("s_mov_b32 s43, 0x20000")
        a("v_lshlrev_b32 v1, 7, v0")
        a("buffer_load_dword a89, v1, s[40:43], 0 offen")
    a("v_lshrrev_b32 v1, 6, v0")
    a("v_and_b32 v0, 63, v0")
    a("v_readfirstlane_b32 s27, v1")
    perm = [int(c) for c in E("PERM", "01234567")]
    a("s_and_b32 s25, s2, 7")
    if perm != list(range(8)):
        a("s_lshl_b32 s64, s25, 2")
        a("s_lshr_b32 s25, 0x%08x, s64" % sum(v << (4*i) for i, v in enumerate(perm)))
        a("s_and_b32 s25, s25, 7")
    a("s_lshr_b32 s24, s2, 4")
    a("s_bfe_u32 s26, s2, 0x10003")
    a("s_lshl_b32 s64, s25, 2")
    a("s_lshr_b32 s91, 0x04152630, s64")
    a("s_and_b32 s91, s91, 7")
    a("s_cmp_ge_u32 s27, 4")
    a("s_cbranch_scc0 L_COMPUTE")
    helper(a)
    compute(a)
    a.label("L_END")
    a("s_endpgm")
    a.label("L_CODE_END")

def decode(a):
    a("s_lshr_b32 s32, s2, 3")
    a("s_lshr_b32 s33, s25, 2")
    a("s_lshr_b32 s34, s24, 2")
    a("s_and_b32 s29, s24, 3")
    a("s_lshl_b32 s28, s25, 1")
    a("s_cmp_eq_u32 s26, s33" if E("HS", "0") == "0" else "s_cmp_lg_u32 s26, s33")
    a("s_addc_u32 s28, s28, 0")
    a("s_mul_i32 s30, s32, 37")
    a("s_lshr_b32 s30, s30, 8")
    a("s_mul_i32 s31, s30, 7")
    a("s_sub_u32 s31, s32, s31")
    a("s_and_b32 s64, s2, 7")
    a("s_lshl_b32 s64, s64, 2")
    a("s_add_u32 s30, s30, s64")

def helper(a):
    if STAMP: a("s_mov_b32 s35, s27")
    a("s_sub_u32 s27, s27, 4")
    a("v_lshrrev_b32 v1, 3, v0")
    a("s_lshl_b32 s64, s24, 2")
    a("s_add_u32 s64, s64, s27")
    a("s_mul_i32 s64, s64, 28672")
    a("v_mul_u32_u24 v1, 896, v1")
    a("v_lshrrev_b32 v2, 4, v0")
    a("v_and_b32 v3, 7, v0")
    a("v_xor_b32 v2, v2, v3")
    a("v_lshlrev_b32 v2, 4, v2")
    a("v_add3_u32 v2, v2, v1, s64")
    a("v_xor_b32 v3, 64, v2")
    a("v_add_u32 v3, 7168, v3")
    a("v_add_u32 v4, 14336, v2")
    a("v_add_u32 v5, 14336, v3")
    a("s_lshl_b32 s66, s27, 12")
    a(f"s_mov_b32 s{SX+2}, 1835008")
    a(f"s_mov_b32 s{SX+3}, 0x20000")
    a("s_mov_b32 s80, s91")
    vm = []
    def xload(c):
        if ROT:
            a(f"s_lshl_b32 s64, s{80+c}, 14")
            a("s_add_u32 s69, s64, s66")
        for q in range(4):
            a(f"s_add_u32 m0, s69, {q*1024}" if ROT else f"s_add_u32 m0, s66, {c*16384 + q*1024}")
            a((f"s_lshl_b32 s64, s{80+c}, 7" if ROT else f"s_mov_b32 s64, {c*128}") if q == 0 else "s_nop 0")
            a(f"buffer_load_dwordx4 v{2+q}, {R(SX)}, s64 offen lds"); vm.append(("x", c))
    def wload(c):
        for pt in range(2):
            for u in range(2):
                a(f"s_add_u32 m0, s67, {(c%3)*16384 + pt*8192 + u*1024}")
                a((f"s_mul_i32 s65, s{80+c}, 172032" if ROT else f"s_mov_b32 s65, {c*172032}") if pt + u == 0 else "s_nop 0")
                a(f"buffer_load_dwordx4 v{6+2*pt+u}, {R(SW)}, s65 offen lds"); vm.append(("w", c))
    def qload(mat, part):
        slot = QSLOT[(mat, part)]
        for u in range(3 if part else 4):
            a(f"s_add_u32 m0, s{89 if part else 88}, {slot*16384 + u*1024}")
            a(f"s_mov_b32 s65, {u*43008}")
            a(f"buffer_load_dwordx4 v{10+part}, {R(SWA if mat == 0 else SWB)}, s65 offen lds"); vm.append(("q", mat, part))
    def waitfor(*tags):
        last = max(i for i, tg in enumerate(vm) if tg in tags)
        a(f"s_waitcnt vmcnt({len(vm)-1-last})")
    def patch(part):
        if part: a("s_mov_b32 exec_hi, 0xffff")
        a(f"ds_write_b16 v{15+part}, v{12+part}")
        if part: a("s_mov_b32 exec_hi, -1")
    def initcheck(tag):
        a("v_readfirstlane_b32 s87, v17")
        a("s_nop 0")
        a("s_cmp_lg_u32 s87, 0")
        a(f"s_cbranch_scc1 H_INIT_OK{tag}")
        poll(a, "INIT" + tag, R(SD), "0", 1, 18, 17)
        a("v_readfirstlane_b32 s87, v17")
        a.label(f"H_INIT_OK{tag}")
    a("s_waitcnt lgkmcnt(0)")
    a(f"s_mov_b32 s{SX}, s4")
    a(f"s_mov_b32 s{SX+1}, s5")
    stamp(a, 1, 2); stamp(a, 1, 9)
    xload(0)
    stamp(a, 2, 9)
    dma_lane_w(a, 6, 10, 11, 2688)
    if E("P7", "1") == "1":
        a("v_and_b32 v10, 112, v6")
        a("v_cmp_eq_u32 vcc, 112, v10")
        a("v_subrev_u32 v10, 16, v6")
        a("s_nop 0")
        a("v_cndmask_b32 v6, v6, v10, vcc")
    a("s_mul_i32 s64, s27, 43008")
    a("s_mul_i32 s65, s25, 112")
    a("s_add_u32 s64, s64, s65")
    a("s_add_u32 s64, s64, 896")
    a("v_add_u32 v6, s64, v6")
    a("v_add_u32 v7, 21504, v6")
    a("v_add_u32 v8, 896, v6")
    a("v_add_u32 v9, 896, v7")
    a("s_lshl_b32 s67, s27, 11")
    a(f"s_add_u32 s67, s67, {RING}")
    a(f"s_mov_b32 s{SW+2}, 1204224")
    a(f"s_mov_b32 s{SW+3}, 0x20000")
    a("s_cmp_eq_u32 s26, 0")
    a(f"s_cselect_b32 s{SW}, s6, s12")
    a(f"s_cselect_b32 s{SW+1}, s7, s13")
    wload(0)
    stamp(a, 10, 9)
    for i in range(1, 7):
        a(f"s_add_u32 s{80+i}, s{79+i}, 1")
        a(f"s_cmp_eq_u32 s{80+i}, 7")
        a(f"s_cselect_b32 s{80+i}, 0, s{80+i}")
    xload(1); wload(1)
    for i in range(XE): xload(2+i)
    decode(a)
    srd(a, SWA, 6, 1204224); srd(a, SWB, 12, 1204224)
    srd(a, SWS, 22, WS_SIZE); srd(a, SD, 20, 256); srd(a, SG, 16, 896)
    a("v_lshrrev_b32 v10, 2, v0")
    a("v_mul_u32_u24 v10, 2688, v10")
    a("v_and_b32 v11, 3, v0")
    a("v_lshl_add_u32 v10, v11, 4, v10")
    a("s_mul_i32 s65, s28, 56")
    a("s_mul_i32 s64, s27, 129024")
    a("s_add_u32 s64, s64, s65")
    a(f"s_add_u32 s64, s64, {256*2688}")
    a("v_add_u32 v11, s64, v10")
    a("s_mul_i32 s64, s27, 172032")
    a("s_add_u32 s64, s64, s65")
    a("v_add_u32 v10, s64, v10")
    a("s_lshl_b32 s88, s27, 12")
    a(f"s_add_u32 s88, s88, {RING}")
    a("s_mul_i32 s89, s27, 3072")
    a(f"s_add_u32 s89, s89, {RING}")
    a(f"s_add_u32 s64, s88, {QSLOT[(1, 0)]*16384 + 56}")
    a("v_lshl_add_u32 v15, v0, 6, s64")
    a(f"s_add_u32 s64, s89, {QSLOT[(1, 1)]*16384 + 56}")
    a("v_lshl_add_u32 v16, v0, 6, s64")
    a("s_lshl_b32 s64, s27, 7")
    a("v_lshl_add_u32 v14, v0, 1, s64")
    a("s_mul_i32 s64, s27, 96")
    a("s_add_u32 s64, s64, 512")
    a("v_lshl_add_u32 v17, v0, 1, s64")
    a("v_mov_b32 v18, 0")
    stamp(a, 1); stamp(a, 2, 2)
    for c in range(5):
        waitfor(("x", c), ("w", c)); a("s_barrier"); stamp(a, 3+c, 2)
        if c == 0: stamp(a, 2)
        if not XE: xload(c+2)
        wload(c+2)
        if XE and c+2+XE < 7: xload(c+2+XE)
        if c == 1:
            a(f"buffer_load_ushort v12, v14, {R(SG)}, 0 offen"); vm.append(("g", 0))
            a(f"buffer_load_ushort v13, v17, {R(SG)}, 0 offen"); vm.append(("g", 1))
        if c == 3:
            a(f"buffer_load_dword v17, v18, {R(SD)}, 0 offen sc1"); vm.append(("d", 0))
    waitfor(("x",5),("w",5)); a("s_barrier"); stamp(a, 8, 2)
    qload(M1, 0)
    def setup2():
        a(f"v_mov_b32 v1, {L_CNT}")
        for i in range(8, 12): a(f"v_mov_b32 v{i}, 0")
        a("ds_write_b128 v1, v[8:11]")
        a("s_nop 1")
        a("v_mov_b32 v9, s87")
        a("ds_write_b128 v1, v[8:11] offset:16")
        a("v_lshlrev_b32 v2, 4, v0")
        dma_lane_w(a, 3, 4, 5, 896)
        a("s_mul_i32 s64, s27, 7168")
        a("s_lshl_b32 s65, s31, 7")
        a("s_add_u32 s64, s64, s65")
        a("v_add_u32 v3, s64, v3")
        a("s_lshr_b32 s65, s27, 1")
        a("s_mul_i32 s64, s65, 28672")
        a("s_lshl_b32 s65, s65, 6")
        p3_addr(a, 4, "s64", "s65", 8, 9)
        srd(a, SWA, 8, 401408); srd(a, SWB, 14, 401408)
        a("s_lshl_b32 s65, s25, 2")
        a("s_add_u32 s65, s65, s27")
        a("s_lshl_b32 s65, s65, 9")
        a(f"s_add_u32 s65, s65, {C_KV}")
        a("v_lshlrev_b32 v10, 7, v0")
        stamp(a, 3)
    waitfor(("x",6),("w",6)); a("s_barrier"); stamp(a, 9, 2)
    a("s_lshl_b32 s64, s25, 4")
    a("s_add_u32 s64, s64, s24")
    a("s_lshl_b32 s64, s64, 7")
    a(f"s_add_u32 s66, s64, {C_KV}")
    initcheck("A")
    qload(M1, 1)
    if SWP: a("s_waitcnt vmcnt(0)")
    else:
        a("s_waitcnt vmcnt(3)"); patch(0)
        a("s_waitcnt vmcnt(0)"); patch(1)
        a("s_waitcnt lgkmcnt(0)")
    a("s_barrier"); stamp(a, 10, 2)
    qload(M2, 0)
    a("s_barrier")
    qload(M2, 1)
    a("s_xor_b32 s64, s27, 3")
    a("s_xor_b32 s65, s26, 1")
    a("s_or_b32 s90, s64, s65")
    a("s_barrier")
    a("s_cbranch_scc1 H_NOSIGKV")
    signal(a, "s66", 18, 19, 20)
    a.label("H_NOSIGKV")
    if E("ES", "0") == "1": setup2()
    a("s_waitcnt vmcnt(4)")
    a("s_cmp_eq_u32 s90, 0")
    a("s_cbranch_scc1 H_W4")
    a("s_waitcnt vmcnt(3)")
    a.label("H_W4")
    if SWP:
        patch(0); a("s_waitcnt lgkmcnt(0)")
    a("s_barrier")
    a("s_waitcnt vmcnt(1)")
    a("s_cbranch_scc1 H_SIGD")
    a("s_waitcnt vmcnt(0)")
    a.label("H_SIGD")
    if SWP:
        patch(1); a("s_waitcnt lgkmcnt(0)")
    a("s_barrier")
    if E("ES", "0") == "0": setup2()
    if E("K1", "1") == "1":
        a("s_cmp_eq_u32 s27, 0")
        a("s_cbranch_scc0 H_KVD")
        poll(a, "KV", WSR, "s65", 16, 10, 11, int(E("KS", "2")))
        a.label("H_KVD")
    else: poll(a, "KV", WSR, "s65", 4, 10, 11, int(E("KS", "0")))
    a("s_waitcnt lgkmcnt(0)")
    a("s_barrier")
    a("s_setprio %s" % E("HP", "2"))
    stamp(a, 4); stamp(a, 1, 3); stamp(a, 1, 7)
    PQ, G, KF, NUM, PA = 80, 88, 92, 100, 116
    def wo_dma(tag, srdreg, base, lo, hi, depth):
        if hi <= lo: return
        a("s_lshl_b32 s66, s27, 10")
        a(f"s_add_u32 s66, s66, {base + lo*4096}")
        a(f"s_mov_b32 s63, {lo*28672}")
        a.label(f"H_WO{tag}")
        a("s_mov_b32 m0, s66")
        a("s_add_u32 s66, s66, 4096")
        a(f"buffer_load_dwordx4 v3, {R(srdreg)}, s63 offen lds")
        a("s_add_u32 s63, s63, 28672")
        a(f"s_waitcnt vmcnt({depth})")
        a(f"s_cmp_lt_u32 s63, {hi*28672}")
        a(f"s_cbranch_scc1 H_WO{tag}")
    W1 = 0
    if "hskip" in X:
        a("s_branch H_SKIP")
    lds_wait(a, "C0", 1, 8, 4, 9)
    stamp(a, 2, 7)
    a("s_lshl_b32 s64, s27, 11")
    a(f"s_add_u32 s64, s64, {L_PQ}")
    a("v_add_u32 v8, s64, v2")
    a(f"ds_read_b128 {vr(PQ,4)}, v8")
    a(f"ds_read_b128 {vr(PQ+4,4)}, v8 offset:1024")
    a("s_lshl_b32 s64, s27, 8")
    a(f"s_add_u32 s64, s64, {L_G}")
    a("v_lshl_add_u32 v8, v0, 2, s64")
    a(f"ds_read_b32 v{G}, v8")
    a("s_cmp_ge_u32 s27, 2")
    a("s_cselect_b32 s64, s26, 1")
    a("s_cmp_eq_u32 s64, 0")
    a("s_cbranch_scc0 H_NOKVP")
    a("s_and_b32 s65, s27, 1")
    a("s_lshl_b32 s64, s65, 12")
    a(f"s_add_u32 s64, s64, {L_KVD}")
    a("v_add_u32 v8, s64, v2")
    for i in range(8):
        a(f"ds_read_b128 {vr(16+4*i,4)}, v8 offset:{1024*(i&3) + 8192*(i>>2)}")
    a("s_lshl_b32 s64, s25, 1")
    a("s_add_u32 s64, s64, s65")
    a(f"s_mul_i32 s64, s64, {PAD}")
    a("s_lshl_b32 s65, s24, 12")
    a("s_add_u32 s64, s64, s65")
    a(f"s_add_u32 s64, s64, {WS_KVP}")
    a("s_waitcnt lgkmcnt(0)")
    vadd(a, 16, 32, 16)
    for q in range(4):
        a(f"buffer_store_dwordx4 {vr(16+4*q,4)}, v2, {WSR}, s64 offen offset:{1024*q} sc1")
    a("s_lshl_b32 s64, s25, 4")
    a("s_add_u32 s64, s64, s24")
    a("s_lshl_b32 s64, s64, 7")
    a(f"s_add_u32 s64, s64, {C_A}")
    a("v_mov_b32 v11, 1")
    stamp(a, 3, 7)
    a("s_waitcnt vmcnt(0)")
    stamp(a, 4, 7)
    a("s_mov_b64 exec, 1")
    a("ds_add_rtn_u32 v9, v1, v11 offset:12")
    a("s_waitcnt lgkmcnt(0)")
    a("v_readfirstlane_b32 s69, v9")
    a("s_mov_b64 exec, -1")
    a("s_cmp_eq_u32 s69, 1")
    a("s_cbranch_scc0 H_NOKVP")
    signal(a, "s64", 10, 11, 9)
    a.label("H_NOKVP")
    stamp(a, 5, 7)
    lo = lambda: a("s_setprio 0") if PT else None
    hi = lambda: a("s_setprio 2") if PT else None
    lo()
    a("s_cmp_ge_u32 s32, 28")
    a("s_cbranch_scc1 H_NOWOA")
    if "nowo" not in X:
        wo_dma("A", SWA, 0, W1, 14, int(E("WOD", "5")))
        wo_dma("B", SWB, 57344, 0, 14, int(E("WOD", "5")))
    a.label("H_NOWOA")
    stamp(a, 2, 3); stamp(a, 6, 7)
    hi()
    a("s_lshl_b32 s64, s25, 11")
    a(f"s_add_u32 s64, s64, {C_A}")
    if "nopolla" not in X:
        a("s_cmp_eq_u32 s27, 0")
        a("s_cbranch_scc0 H_AW")
        poll(a, "A", WSR, "s64", 16, 10, 11, int(E("AS", "16")))
        a("v_mov_b32 v11, 1")
        a("ds_write_b32 v1, v11 offset:16")
        a("s_branch H_AD")
        a.label("H_AW")
        lds_wait(a, "A", 1, 16, 1, 9, 4)
        a.label("H_AD")
    stamp(a, 3, 3); stamp(a, 7, 7)
    a(f"s_mul_i32 s64, s28, {PAD}")
    a("s_lshl_b32 s65, s27, 10")
    a("s_add_u32 s64, s64, s65")
    a(f"s_add_u32 s64, s64, {WS_KVP}")
    KD = int(E("KD", "2"))
    lo()
    for i in range(16):
        if "nokvl" not in X: a(f"buffer_load_dwordx4 {vr(16+4*i,4)}, v2, {WSR}, s64 offen sc1")
        a("s_add_u32 s64, s64, 4096")
        if i > KD:
            a(f"s_waitcnt vmcnt({KD})")
            hi()
            if "nokva" not in X: vadd(a, 16, 16+4*(i-KD), 4)
            lo()
    stamp(a, 4, 3)
    hi()
    for j in range(16-KD, 16):
        a(f"s_waitcnt vmcnt({15-j})")
        vadd(a, 16, 16+4*j, 4)
    stamp(a, 5, 3)
    if "nofin" in X:
        a("s_branch H_SKIP")
    a("v_cvt_pk_bf16_f32 v16, v16, v17")
    a("v_cvt_pk_bf16_f32 v17, v18, v19")
    a("s_lshr_b32 s64, s27, 1")
    a("s_lshl_b32 s64, s64, 10")
    a("s_and_b32 s65, s27, 1")
    a("s_lshl_b32 s65, s65, 3")
    a("s_add_u32 s64, s64, s65")
    a(f"s_add_u32 s64, s64, {L_KVF}")
    a("v_add_u32 v8, s64, v2")
    a("ds_write_b64 v8, v[16:17]")
    a("v_mov_b32 v11, 1")
    a("s_waitcnt lgkmcnt(0)")
    a("s_mov_b64 exec, 1")
    a("ds_add_u32 v1, v11")
    lds_wait(a, "C1", 1, 0, 4, 9)
    stamp(a, 6, 3)
    a(f"v_add_u32 v8, {L_KVF}, v2")
    a(f"ds_read_b128 {vr(KF,4)}, v8")
    a(f"ds_read_b128 {vr(KF+4,4)}, v8 offset:1024")
    a("s_waitcnt lgkmcnt(0)")
    a(f"{MF} {vr(NUM,16)}, {vr(KF,4)}, {vr(PQ,4)}, 0")
    a(f"{MF} {vr(NUM,16)}, {vr(KF+4,4)}, {vr(PQ+4,4)}, {vr(NUM,16)}")
    a("s_lshl_b32 s64, s24, 2")
    a("s_add_u32 s64, s64, s27")
    a(f"s_mul_i32 s64, s64, {PAD}")
    a("s_lshl_b32 s65, s28, 11")
    a("s_add_u32 s64, s64, s65")
    a(f"s_add_u32 s64, s64, {WS_OF}")
    a(f"v_mov_b32 v{PA+6}, 0")
    a(f"v_mov_b32 v{PA+7}, 0")
    a("s_nop 15")
    a(f"v_mov_b32 v8, v{NUM+12}")
    a(f"v_mov_b32 v9, v{NUM+12}")
    a("s_nop 1")
    a("v_permlane32_swap_b32 v8, v9")
    a(f"v_add_f32 v9, {f32(EPS)}, v9")
    a("v_rcp_f32 v9, v9")
    a("s_nop 0")
    a(f"v_mul_f32 v9, v9, v{G}")
    vmul(a, NUM, "v9", 16)
    cvt(a, PA, NUM, 0, 6)
    a("s_mov_b32 exec_hi, 0")
    cvt(a, PA, NUM, 6, 8)
    a("s_mov_b32 exec_hi, -1")
    a(f"buffer_store_dwordx4 {vr(PA,4)}, v2, {WSR}, s64 offen sc1")
    a(f"buffer_store_dwordx4 {vr(PA+4,4)}, v2, {WSR}, s64 offen offset:1024 sc1")
    stamp(a, 7, 3)
    a("s_waitcnt vmcnt(0)")
    stamp(a, 8, 3)
    a("s_mov_b64 exec, 1")
    a("ds_add_rtn_u32 v9, v1, v11 offset:4")
    a("s_waitcnt lgkmcnt(0)")
    a("v_readfirstlane_b32 s69, v9")
    a("s_mov_b64 exec, -1")
    a("s_cmp_eq_u32 s69, 3")
    a("s_cbranch_scc0 H_NOSIGOA")
    if "hskip" in X or "nofin" in X:
        a.label("H_SKIP")
        a("s_cmp_eq_u32 s27, 0")
        a("s_cbranch_scc0 H_NOSIGOA")
    a("s_lshl_b32 s64, s24, 4")
    a("s_add_u32 s64, s64, s28")
    a("s_lshl_b32 s64, s64, 7")
    a(f"s_add_u32 s64, s64, {C_OA}")
    signal(a, "s64", 10, 11, 9)
    a.label("H_NOSIGOA")
    stamp(a, 5); stamp(a, 9, 3)
    a("s_setprio 0")
    a("s_barrier")
    a("s_cmp_ge_u32 s32, 28")
    a("s_cbranch_scc1 H_NOP3B")
    stamp(a, 6)
    a("s_and_b32 s64, s30, 0xfe")
    a("s_lshr_b32 s65, s27, 1")
    a("s_add_u32 s64, s64, s65")
    a("s_lshl_b32 s64, s64, 10")
    a(f"s_add_u32 s64, s64, {C_OA}")
    a("s_and_b32 s62, s27, 1")
    a("s_lshl_b32 s65, s30, 1")
    a("s_add_u32 s62, s62, s65")
    a(f"s_mul_i32 s62, s62, {PAD}")
    a("s_lshr_b32 s65, s27, 1")
    a("s_lshl_b32 s65, s65, 14")
    a("s_add_u32 s62, s62, s65")
    a(f"s_add_u32 s62, s62, {WS_OF}")
    NE = int(E("NE", "16"))
    a("s_mov_b64 exec, 0xff")
    a(f"buffer_load_dword v11, v10, {WSR}, s64 offen sc1")
    a("s_waitcnt vmcnt(0)")
    a("v_cmp_ne_u32 vcc, s87, v11")
    a("s_mov_b64 exec, -1")
    a("s_cbranch_vccnz H_OALATE")
    p3_oloads(a, 2, "s62", NE)
    a("s_barrier")
    a("s_barrier")
    a("s_branch H_OADONE")
    a.label("H_OALATE")
    a("s_barrier")
    a("s_barrier")
    poll(a, "OA", WSR, "s64", 8, 10, 11, 2)
    p3_oloads(a, 2, "s62", NE)
    a.label("H_OADONE")
    NPRE = 16
    for ks in range(NE, 16):
        for x in p3_oload(ks, 2, "s62"): a(x)
    stamp(a, 7); stamp(a, 10, 3)
    p3_gemm(a, 4, [16, 32], [48, 56], True, NPRE, 2, "s62")
    stamp(a, 8)
    a("s_lshl_b32 s64, s27, 13")
    a(f"s_add_u32 s64, s64, {RING}")
    a("v_add_u32 v8, s64, v2")
    a("s_nop 9")
    for i in range(8):
        a(f"ds_write_b128 v8, {vr(16+4*i,4)} offset:{1024*i}")
    a("s_waitcnt lgkmcnt(0)")
    stamp(a, 9)
    a("s_barrier")
    a("s_branch H_EXIT")
    a.label("H_NOP3B")
    a("s_barrier")
    a("s_barrier")
    a.label("H_EXIT")
    stamp(a, 10)
    stamp_out(a, 11)
    a("s_endpgm")

def compute(a):
    a.label("L_COMPUTE")
    if STAMP: a("s_mov_b32 s35, s27")
    decode(a)
    XA, WA, WB, XQ, WQ = 2, 6, 7, 8, 12
    FR = 16; accK = [64, 80]; accV = [96, 112]; pK = [128, 136]; pV = [144, 152]
    QA, QB = 96, 112
    a("s_waitcnt lgkmcnt(0)")
    if E("DIAGP", "") == "20": stampc(a, 20)
    if E("DIAGP", "") == "21":
        srd(a, SW, 4, 1835008)
        a("s_mul_i32 s60, s24, 114688")
        a("v_lshlrev_b32 v17, 4, v0")
        a(f"buffer_load_dwordx4 v[20:23], v17, {R(SW)}, s60 offen")
        a("s_waitcnt vmcnt(0)")
        stampc(a, 21)
    TW = int(E("TW", "1"))
    if TW:
        a(f"s_cmp_ge_u32 s27, {TW}")
        a("s_cbranch_scc1 C_NTW")
        a("s_cmp_ge_u32 s32, 16")
        a(f"s_cselect_b32 s{SW}, s12, s6")
        a(f"s_cselect_b32 s{SW+1}, s13, s7")
        a(f"s_mov_b32 s{SW+2}, 1204224")
        a(f"s_mov_b32 s{SW+3}, 0x20000")
        a("s_and_b32 s60, s32, 15")
        a("s_mul_i32 s60, s60, 28")
        a("v_lshrrev_b32 v17, 1, v0")
        a("v_add_u32 v17, s60, v17")
        a("v_mul_u32_u24 v17, 2688, v17")
        a("v_and_b32 v16, 1, v0")
        a("v_lshl_add_u32 v17, v16, 7, v17")
        a("s_mul_i32 s60, s25, 112")
        a("s_and_b32 s60, s60, 0xff80")
        a("s_mul_i32 s61, s27, 896")
        a("s_add_u32 s60, s60, s61")
        a("s_mov_b32 exec_hi, 0xffffff")
        a(f"buffer_load_dword a88, v17, {R(SW)}, s60 offen")
        a("s_mov_b64 exec, -1")
        a.label("C_NTW")
    srd(a, SWS, 22, WS_SIZE)
    a("s_xor_b32 s64, s27, 3")
    a("s_xor_b32 s65, s2, 8")
    a("s_or_b32 s64, s65, s64")
    a("s_cmp_eq_u32 s64, 0")
    a("s_cbranch_scc0 C_NOINIT")
    a("s_memrealtime s[64:65]")
    srd(a, SD, 20, 256)
    a("v_mov_b32 v21, 0")
    a("s_waitcnt lgkmcnt(0)")
    a("s_lshl_b32 s64, s64, 1")
    a("s_or_b32 s64, s64, 1")
    a("v_mov_b32 v22, s64")
    a("s_mov_b64 exec, 1")
    a(f"buffer_store_dword v22, v21, {R(SD)}, 0 offen sc1")
    a("s_mov_b64 exec, -1")
    a.label("C_NOINIT")
    a("s_lshr_b32 s92, s27, 1")
    a("s_and_b32 s93, s27, 1")
    a("v_and_b32 v13, 31, v0")
    a("v_lshrrev_b32 v14, 5, v0")
    a("v_bfe_u32 v15, v0, 1, 3")
    a("v_xor_b32 v15, v15, v14")
    a("s_lshl_b32 s64, s92, 13")
    a("v_lshl_add_u32 v1, v13, 7, s64")
    a("s_lshl_b32 s65, s27, 12")
    a("s_sub_u32 s65, s65, s64")
    for ks in range(4):
        a(f"v_xor_b32 v{XA+ks}, {2*ks}, v15")
        a(f"v_lshl_add_u32 v{XA+ks}, v{XA+ks}, 4, v1")
        a(f"v_add_u32 v{XQ+ks}, s65, v{XA+ks}")
    a("s_mul_i32 s64, s93, 56")
    a(f"v_mov_b32 v{WA}, s64")
    tr_lane_addr(a, WB, WA, 1, 15, 2)
    a(f"v_add_u32 v{WB}, {RING}, v{WB}")
    a(f"v_mov_b32 v{WA}, v{WB}")
    a("v_bfe_u32 v1, v0, 2, 2")
    a("v_lshl_add_u32 v1, v14, 3, v1")
    a("v_lshlrev_b32 v1, 1, v1")
    a("v_bfe_u32 v15, v0, 4, 1")
    a("v_add_u32 v1, v1, v15")
    a("v_lshlrev_b32 v1, 2, v1")
    a("v_and_b32 v15, 3, v0")
    a("v_add_u32 v1, v1, v15")
    a("v_lshlrev_b32 v1, 3, v1")
    a(f"v_add_u32 v{WQ}, {RING}, v1")
    a("v_cmp_eq_u32 vcc, 28, v13")
    a(f"v_mov_b32 v1, {ONE2}")
    a("s_nop 0")
    a("v_cndmask_b32 v15, 0, v1, vcc")
    for s in range(2):
        for i in range(8):
            a(f"v_mov_b32 v{pV[s]+i}, v15")
    a("s_mov_b32 s56, 0x0fffffff")
    a("s_mov_b32 s57, 0x0fffffff")
    a(f"s_mov_b32 s64, {f32(LOG2E)}")
    a(f"s_mov_b32 s65, {f32(QSCALE)}")
    a(f"s_mov_b32 s66, {f32(EPS)}")
    for i in range(32):
        a(f"v_mov_b32 v{accV[0]+i}, 0")
    a("v_lshlrev_b32 v13, 4, v0")
    a("s_cmp_eq_u32 s26, 0")
    a("s_cbranch_scc1 C_A")

    def scalars():
        for s in range(4):
            a(f"s_add_u32 s60, s27, {1+s}")
            a("s_and_b32 s60, s60, 3")
            a(f"s_lshl_b32 s{36+s}, s60, 11")
            a(f"s_add_u32 s{36+s}, s{36+s}, {L_QD}")
            a(f"s_mul_i32 s{40+s}, s60, 12288")
            a(f"s_add_u32 s{40+s}, s{40+s}, {RING + (4096*s if s < 3 else 0)}")
        a(f"s_mul_i32 s44, s28, {4*PAD}")
        a(f"s_mul_i32 s45, s27, {PAD}")
        a("s_add_u32 s45, s45, s44")
        a("s_lshl_b32 s46, s24, 2")
        a("s_add_u32 s46, s46, s27")
        a(f"s_mul_i32 s46, s46, {PAD}")
        a("s_lshl_b32 s60, s28, 11")
        a("s_add_u32 s46, s46, s60")
        a(f"s_add_u32 s46, s46, {WS_OF + 32768}")
        a("s_lshl_b32 s47, s27, 12")
        a(f"s_add_u32 s47, s47, {L_KVD}")
        a("s_lshl_b32 s48, s27, 8")
        a(f"s_add_u32 s48, s48, {L_G}")
    def reads(buf, ks):
        f = FR + 16*buf
        return [f"ds_read_b128 {vr(f,4)}, v{XA+ks}",
                f"ds_read_b64_tr_b16 {vr(f+8,2)}, v{WA} offset:{ks*2048}",
                f"ds_read_b64_tr_b16 {vr(f+10,2)}, v{WA} offset:{ks*2048+512}",
                f"ds_read_b128 {vr(f+4,4)}, v{XA+ks} offset:4096",
                f"ds_read_b64_tr_b16 {vr(f+12,2)}, v{WA} offset:{8192+ks*2048}",
                f"ds_read_b64_tr_b16 {vr(f+14,2)}, v{WA} offset:{8192+ks*2048+512}"]
    def mfmas(buf, kT):
        f = FR + 16*buf
        Xf = [vr(f, 4), vr(f+4, 4)]; Wk, Wv = vr(f+8, 4), vr(f+12, 4)
        m = []
        for s in range(2): m.append(f"{MF} {vr(accV[s],16)}, {Xf[s]}, {Wk}, {vr(accV[s],16)}")
        for s in range(2):
            if kT: m.append(f"{MF} {vr(accK[s],16)}, {Wv}, {Xf[s]}, {vr(accK[s],16)}")
            else:  m.append(f"{MF} {vr(accK[s],16)}, {Xf[s]}, {Wv}, {vr(accK[s],16)}")
        return m
    def mainloop(tag, kT):
        a("s_mov_b32 s60, 0")
        a("s_mov_b32 s61, 0")
        if ROT:
            a("s_mov_b32 s49, 16384")
            a("s_lshl_b32 s62, s91, 14")
            for ks in range(4): a(f"v_add_u32 v{XA+ks}, s62, v{XA+ks}")
            a("s_cmp_eq_u32 s91, 6")
            a("s_cselect_b32 s62, 0xfffe8000, s49")
        if STAMP not in (4, 8): stampc(a, 1)
        a("s_barrier")
        if STAMP not in (4, 8): stampc(a, 2)
        for r in reads(0, 0): a(r)
        a(".p2align 6")
        a.label(f"C_{tag}_LOOP")
        for ks in range(4):
            m = mfmas(ks & 1, kT); r = reads((ks+1) & 1, (ks+1) & 3)
            if ks < 3:
                a("s_waitcnt lgkmcnt(3)"); a(m[0]); a(r[0]); a(r[1]); a(r[2])
                a("s_waitcnt lgkmcnt(5)"); a(m[1]); a(r[3]); a(r[4]); a(r[5])
                a("s_waitcnt lgkmcnt(6)"); a(m[2])
                a(f"v_add_u32 v{XA+ks}, {'s62' if ROT else 16384}, v{XA+ks}")
                if ks == 2:
                    a("s_add_u32 s60, s60, 1")
                    a("s_add_u32 s61, s61, 16384")
                    a("s_cmp_eq_u32 s61, 49152")
                    a("s_cselect_b32 s61, 0, s61")
                a(m[3])
            else:
                a(f"v_add_u32 v{WA}, s61, v{WB}")
                a("s_cmp_eq_u32 s60, 7")
                a("s_waitcnt lgkmcnt(0)")
                a(f"s_cbranch_scc1 C_{tag}_TAIL")
                a("s_barrier")
                a(m[0]); a(r[0]); a(r[1]); a(r[2])
                a(m[1]); a(r[3]); a(r[4]); a(r[5])
                a(m[2])
                a(f"v_add_u32 v{XA+3}, {'s62' if ROT else 16384}, v{XA+3}")
                if ROT:
                    a("s_add_u32 s63, s60, s91")
                    a("s_cmp_eq_u32 s63, 6")
                    a("s_cselect_b32 s62, 0xfffe8000, s49")
                a(m[3])
                a(f"s_branch C_{tag}_LOOP")
                a.label(f"C_{tag}_TAIL")
                for x in m: a(x)
        if STAMP != 8: stampc(a, 3)
        if "nords" in X or "nomf" in X:
            i0 = max(i for i, l in enumerate(a.lines) if l.startswith(f"C_{tag}_LOOP"))
            for i in range(i0, len(a.lines)):
                l = a.lines[i].strip()
                if "nords" in X and l.startswith("ds_read"): a.lines[i] = "    s_nop 0"
                if "nomf" in X and l.startswith("v_mfma"): a.lines[i] = "    s_nop 7"
    _reads = reads
    def reads(buf, ks):
        r = _reads(buf, ks)
        f = FR + 16*buf
        r[1] = f"ds_read_b64_tr_b16 {vr(f+8,2)}, v{WA} offset:{8192+ks*2048}"
        r[2] = f"ds_read_b64_tr_b16 {vr(f+10,2)}, v{WA} offset:{8192+ks*2048+512}"
        r[4] = f"ds_read_b64_tr_b16 {vr(f+12,2)}, v{WA} offset:{ks*2048}"
        r[5] = f"ds_read_b64_tr_b16 {vr(f+14,2)}, v{WA} offset:{ks*2048+512}"
        return r
    def cvt_v():
        a("s_nop 9")
        a("s_mov_b64 exec, s[56:57]")
        for s in range(2): cvt(a, pV[s], accV[s])
        a("s_mov_b64 exec, -1")
    def qpass(mat, acc, c0, bars):
        def qreads(k):
            f = FR + 8*(k % 4)
            slot = QSLOT[(mat, k >> 4)]
            o = slot*16384 + (k & 15)*1024
            xr = (XQ if k < 16 else XA) + (k & 3)
            return [f"ds_read_b128 {vr(f,4)}, v{xr} offset:{((k >> 2) & 3)*16384}",
                    f"ds_read_b64_tr_b16 {vr(f+4,2)}, v{WQ} offset:{o}",
                    f"ds_read_b64_tr_b16 {vr(f+6,2)}, v{WQ} offset:{o+256}"]
        for k in range(3):
            for r in qreads(k): a(r)
        for k in range(28):
            f = FR + 8*(k % 4)
            for x in bars.get(k+3, []): a(x)
            a(f"s_waitcnt lgkmcnt({3*min(2, 27-k)})")
            a(f"{MF} {vr(acc,16)}, {vr(f+4,4)}, {vr(f,4)}, {c0 if k == 0 else vr(acc,16)}")
            if k+3 < 28:
                for x in qreads(k+3): a(x)
    def q_epi(a):
        a("v_mov_b32 v54, 0")
        a("v_mov_b32 v55, 0")
        a(f"v_mov_b32 v14, v{QB+12}")
        a(f"v_mov_b32 v15, v{QB+12}")
        vmul(a, QB, "s65", 8)
        a("v_permlane32_swap_b32 v15, v14")
        cvt(a, 48, QB, 0, 4)
        a("ds_write_b128 v1, v[48:51]")
        vmul(a, QB+8, "s65", 8)
        cvt(a, 48, QB, 4, 6)
        a("s_mov_b32 exec_hi, 0")
        cvt(a, 48, QB, 6, 8)
        a("s_mov_b32 exec_hi, -1")
        a("ds_write_b128 v1, v[52:55] offset:1024")
    def pq_epi(a, mats, T, PP):
        w = [f"v_mov_b32 v{PP+6}, 0", f"v_mov_b32 v{PP+7}, 0"] + phi_list(QA, T)
        for i, x in enumerate(w):
            if mats and i % 7 == 0: a(mats.pop(0))
            a(x)
        for x in mats: a(x)
        cvt(a, PP, QA, 0, 6)
        a("s_mov_b32 exec_hi, 0")
        cvt(a, PP, QA, 6, 8)
        a("s_mov_b32 exec_hi, -1")
        a(f"ds_write_b128 v1, {vr(PP,4)} offset:8192")
        a(f"ds_write_b128 v1, {vr(PP+4,4)} offset:9216")
    def gate(a):
        a(f"v_mul_f32 v14, {f32(-LOG2E)}, v14")
        a("v_exp_f32 v14, v14")
        a("v_lshl_add_u32 v15, v0, 2, s48")
        a("v_add_f32 v14, 1.0, v14")
        a("v_rcp_f32 v14, v14")
        a("s_nop 0")
        a("ds_write_b32 v15, v14")
        a("v_sub_f32 v14, 1.0, v14")
    def phase1b(late):
        for i in range(4): a(f"v_add_u32 v{XA+i}, 65536, v{XQ+i}")
        if STAMP != 8: stampc(a, 4)
        a("s_barrier")
        if STAMP == 6: stampc(a, 15)
        acc = {0: (QA, "1.0"), 1: (QB, "0")}
        qpass(M1, *acc[M1], {20: ["s_barrier"]})
        if STAMP == 6: stampc(a, 9)
        a("v_add_u32 v1, s39, v13")
        if SWP:
            sub = Asm(); pq_epi(sub, [], 48, 56)
            a("s_nop 8")
            a.lines += sub.lines[:-2]
        a("s_waitcnt vmcnt(0)")
        a("s_barrier")
        if STAMP == 6: stampc(a, 10)
        if SWP: a.lines += sub.lines[-2:]
        else:
            a("s_nop 7")
            q_epi(a)
        if STAMP == 6: stampc(a, 11)
        a("s_waitcnt lgkmcnt(0)")
        a("s_barrier")
        if STAMP == 6: stampc(a, 12)
        qpass(M2, *acc[M2], {16: ["s_barrier"]})
        if STAMP != 8: stampc(a, 5)
    def defer_q(a, mats):
        if SWP:
            sub = Asm(); q_epi(sub); gate(sub)
            full = True
            for i, l in enumerate(sub.lines):
                if "exec" in l: full = l.strip().endswith("-1")
                if mats and full and i % 5 == 0: a(mats.pop(0))
                a.lines.append(l)
            for x in mats: a(x)
        else:
            gate(a)
            pq_epi(a, mats, QB, QB + 8)
    O = [16, 32, 48, 64]; S = [80, 96, 112, 128]; Q = [0, 8, 16, 24]; KV = [32, 48, 64, 80]
    RA = 144
    def ld(dst, off, v="v1", so="s58"):
        return f"buffer_load_dwordx4 {ar(dst,4)}, {v}, {WSR}, {so} offen" + (f" offset:{off}" if off else "") + " sc1"
    adv = ["s_add_u32 s58, s58, 4096"]
    ZR = ar(KV[3]+12, 4)
    zero = lambda d: f"{MF} {vr(d,16)}, {ZR}, {ZR}, 0"
    ZL = [O[0], O[1], O[3], S[3]] if SWP else O + [S[3]]
    def pre(a):
        for i in range(4): a(f"v_accvgpr_write_b32 a{KV[3]+12+i}, 0")
        a("v_add_u32 v4, s44, v13")
        a(f"v_mov_b32 v5, {L_CNT}")
        a("v_mov_b32 v6, 1")
    def first_loads(work):
        if STAMP != 8: stampc(a, 7)
        a("v_add_u32 v7, s45, v13")
        a("s_mov_b32 s58, 4096")
        a("s_mov_b32 s59, 8192")
        for f in range(4):
            a(ld(KV[0]+4*f, 1024*f, "v7", "0"))
            a(f"v_add_u32 v{8+f}, s{36+f}, v13")
            a(f"ds_read_b128 {ar(Q[f],4)}, v{8+f}")
            a(f"ds_read_b128 {ar(Q[f]+4,4)}, v{8+f} offset:1024")
        sub = Asm(); work(sub)
        lines = sub.lines
        rest = [ld(KV[n]+4*f, 1024*f, "v7", f"s{57+n}") for n in (1, 2) for f in range(4)]
        gap = int(E("LG", "8")); full = True
        for i, l in enumerate(lines):
            a.lines.append(l)
            if "exec" in l and l.strip().startswith("s_mov"): full = l.strip().endswith("-1")
            if rest and full and i % gap == gap - 1: a(rest.pop(0))
        for x in rest: a(x)
        a("s_mov_b32 s58, 12288")

    for i in range(32): a(f"v_mov_b32 v{accK[0]+i}, 0")
    for s in range(2):
        a(f"v_mov_b32 v{pK[s]+6}, v1"); a(f"v_mov_b32 v{pK[s]+7}, v1")
    a("v_and_b32 v15, 0x33, v0")
    a("v_bfe_u32 v1, v0, 2, 1")
    a("v_lshl_add_u32 v15, v1, 3, v15")
    a("v_bfe_u32 v1, v0, 3, 1")
    a("v_lshl_add_u32 v15, v1, 2, v15")
    a("v_lshlrev_b32 v15, 4, v15")
    a("s_lshl_b32 s58, s25, 1")
    a("s_add_u32 s58, s58, s93")
    a("s_lshl_b32 s58, s58, 2")
    a("s_add_u32 s58, s58, s34")
    a(f"s_mul_i32 s58, s58, {PAD}")
    a("s_lshl_b32 s59, s29, 1")
    a("s_add_u32 s59, s59, s92")
    a("s_lshl_b32 s59, s59, 13")
    a("s_add_u32 s58, s58, s59")
    a("s_add_u32 s59, s58, 4096")
    scalars()
    mainloop("B", True)
    cvt_v()
    st = []
    for s in range(2):
        st.append(f"buffer_store_dwordx4 {vr(pV[s],4)}, v13, {WSR}, s{58+s} offen offset:2048 sc1")
        st.append(f"buffer_store_dwordx4 {vr(pV[s]+4,4)}, v13, {WSR}, s{58+s} offen offset:3072 sc1")
    for s in range(2):
        st.append(f"buffer_store_dwordx4 {vr(pK[s],4)}, v15, {WSR}, s{58+s} offen sc1")
        st.append(f"buffer_store_dwordx4 {vr(pK[s]+4,4)}, v15, {WSR}, s{58+s} offen offset:1024 sc1")
    if "plainkv" in X: st = [x.replace(" sc1", "") for x in st]
    for x in st[:4]: a(x)
    for s in range(2):
        cvt(a, pK[s], accK[s], 0, 6)
        a("s_mov_b32 exec_hi, 0")
        cvt(a, pK[s], accK[s], 6, 8)
        a("s_mov_b32 exec_hi, -1")
        for x in st[4+2*s:6+2*s]: a(x)
    phase1b(False)
    DPRE = E("DPRE", "1") == "1"
    def workB(a):
        a("s_nop 7")
        pre(a)
        defer_q(a, [zero(d) for d in ZL])
    if DPRE: workB(a)
    a("s_waitcnt lgkmcnt(0)")
    if STAMP != 8: stampc(a, 6)
    a("s_barrier")
    first_loads((lambda a: None) if DPRE else workB)
    a("s_branch C_2")

    a.label("C_A")
    for i in range(32): a(f"v_mov_b32 v{accK[0]+i}, 1.0")
    for s in range(2):
        for i in range(8): a(f"v_mov_b32 v{pK[s]+i}, 0")
    scalars()
    mainloop("A", False)
    cvt_v()
    pend = phi_list(accK[0], 52) + phi_list(accK[1], 52)
    phase1b(False)
    D = accK[1]
    APRE = int(E("APRE", "1"))
    kvm = [f"{MF} {vr(D,16)}, {vr(pK[0],4)}, {vr(pV[0],4)}, 0",
           f"{MF} {vr(D,16)}, {vr(pK[0]+4,4)}, {vr(pV[0]+4,4)}, {vr(D,16)}",
           f"{MF} {vr(D,16)}, {vr(pK[1],4)}, {vr(pV[1],4)}, {vr(D,16)}",
           f"{MF} {vr(D,16)}, {vr(pK[1]+4,4)}, {vr(pV[1]+4,4)}, {vr(D,16)}"]
    def part1(a):
        for x in pend: a(x)
        a("s_mov_b64 exec, s[56:57]")
        for s in range(2): cvt(a, pK[s], accK[s])
        a("s_mov_b64 exec, -1")
        a("s_nop 1")
    def part2(a):
        pre(a)
        defer_q(a, kvm + [zero(d) for d in ZL])
        a("v_add_u32 v15, s47, v13")
        for q in range(4):
            a(f"ds_write_b128 v15, {vr(D+4*q,4)} offset:{1024*q}")
    if APRE >= 1: part1(a)
    if DPRE: part2(a)
    a("s_waitcnt lgkmcnt(0)")
    if STAMP != 8: stampc(a, 6)
    a("s_barrier")
    def workA(a):
        if APRE < 1: part1(a)
        if not DPRE: part2(a)
    first_loads(workA)

    a.label("C_2")
    if PT: a("s_setprio 1")
    if SWP: a(zero(O[2]))
    a("v_mov_b32 v2, 0xdddd")
    a("v_mov_b32 v3, 0")
    a("v_mov_b32 v1, v7")
    a("s_mov_b32 s59, 3")
    for s in range(4): a(f"v_add_u32 v{RA+s}, s{40+s}, v13")
    a("s_waitcnt vmcnt(10) lgkmcnt(0)")
    stampc(a, 8)
    a("s_mov_b64 exec, 1")
    a("ds_add_u32 v5, v6 offset:8")
    a("ds_read_b32 v6, v5 offset:20")
    a("s_mov_b64 exec, -1")
    a(f"{MF} {vr(S[0],16)}, {ar(KV[0],4)}, {ar(Q[0],4)}, 0")
    a(f"{MF} {vr(S[0],16)}, {ar(KV[0]+4,4)}, {ar(Q[0]+4,4)}, {vr(S[0],16)}")
    a("s_waitcnt vmcnt(8) lgkmcnt(0)")
    a("v_readfirstlane_b32 s87, v6")
    a("s_nop 8")
    if E("STG", ""):
        for i in range(1, 4):
            a(f"s_cmp_ge_u32 s27, {i}")
            a("s_cbranch_scc0 C_STG")
            a("s_nop %s" % E("STG", ""))
        a.label("C_STG")
    def unit(pos, cur, nxt, prv, slot):
        sc = S[pos & 3]; sn = S[(pos+1) & 3]; sp = S[(pos-1) & 3]
        e = [f"v_exp_f32 v{sc+i}, v{sc+i}" for i in range(16)]
        if nxt: a(f"{MF} {vr(sn,16)}, {ar(KV[nxt[0]],4)}, {ar(Q[nxt[1]],4)}, 0")
        for x in slot[0]: a(x)
        for x in e[0:4]: a(x)
        a(f"{SM} {vr(O[prv[1]],16)}, {ar(KV[prv[0]]+12,4)}, {vr(sp+8,8)}, v2")
        for x in slot[1]: a(x)
        for x in e[4:8]: a(x)
        if nxt: a(f"{MF} {vr(sn,16)}, {ar(KV[nxt[0]]+4,4)}, {ar(Q[nxt[1]]+4,4)}, {vr(sn,16)}")
        for x in slot[2]: a(x)
        for x in e[8:12]: a(x)
        a(f"{SM} {vr(O[cur[1]],16)}, {ar(KV[cur[0]]+8,4)}, {vr(sc,8)}, v2")
        for x in slot[3]: a(x)
        if nxt:
            for _ in range(2 - min(2, len(slot[2]) + len(slot[3]))): a("s_nop 0")
        for x in e[12:16]: a(x)
    LP = int(E("LP", "2"))
    ER = E("ER", "1") == "1"
    PB = S[1] if ER else 16
    FW = int(E("FW", "2"))
    def plain(n, s):
        slot = [[], [], [], []]
        slot[2].append("s_nop 0" if "nold" in X else ld(KV[(n+3) & 3] + 4*s, 1024*s).replace(" sc1", "" if "plain" in X else " sc1"))
        if s == 3: slot[3] += adv
        if not FW:
            if s == 2: slot[3].append("s_waitcnt vmcnt(7)")
        elif FW == 2:
            if s == 2: slot[3].append("s_waitcnt vmcnt(9)")
            if s == 0: slot[1].append("s_waitcnt vmcnt(8)")
        else:
            if s == 2: slot[3].append("s_waitcnt vmcnt(10)")
            if s == 3: slot[1].append("s_waitcnt vmcnt(9)")
            if s == 0: slot[1].append("s_waitcnt vmcnt(9)")
            if s == 1: slot[0].append("s_waitcnt vmcnt(9)")
        return slot
    a(".p2align 6")
    a.label("C_ATT")
    for n in range(4):
        for s in range(4):
            slot = plain(n, s)
            if n == 3 and s == 1: slot[3].append("s_sub_u32 s59, s59, 1")
            if n == 3 and s == 3: slot[3].append("s_cmp_lg_u32 s59, 0")
            unit(s, (n, s), ((n + (s == 3)) & 3, (s+1) & 3), ((n - (s == 0)) & 3, (s-1) & 3), slot)
    a("s_cbranch_scc1 C_ATT")
    seq = [(0, s) for s in range(4)] + [(1, s) for s in range(4)] + [(n, s) for s in range(4) for n in (2, 3)]
    for i, cur in enumerate(seq):
        nxt = seq[i+1] if i < 15 else None
        prv = seq[i-1] if i > 0 else (3, 3)
        slot = plain(*cur) if i < 4 else [[], [], [], []]
        if not FW:
            if i == 6: slot[3].append("s_waitcnt vmcnt(0)")
        else:
            w = {4: (1, 8), 6: (3, 6), 7: (3, 2), 9: (1, 0)}.get(i) if FW == 2 else {4: (1, 9), 5: (0, 8), 6: (3, 6), 7: (3, 2), 9: (1, 1), 10: (0, 0)}.get(i)
            if w: slot[w[0]].append(f"s_waitcnt vmcnt({w[1]})")
        wr = lambda s_, q: f"ds_write_b128 v{RA+s_}, {vr(O[s_]+4*q,4)} offset:{1024*q}"
        if ER:
            plan = {11: {0: (0, 0), 2: (0, 1)}, 12: {0: (0, 2), 2: (0, 3)}, 13: {0: (1, 0), 1: (1, 1), 2: (1, 2), 3: (1, 3)},
                    15: {0: (2, 0)}}
            for sl, (s_, q) in plan.get(i, {}).items(): slot[sl].append(wr(s_, q))
            if i == 14: tail4 = [wr(2, 0), wr(2, 1)]
            if i == 15:
                slot[0] = [wr(2, 2), wr(2, 3)]
                slot[2] = ["s_waitcnt lgkmcnt(0)", "s_barrier"] + \
                          [f"ds_read_b128 {vr(O[0]+4*k,4)}, v{RA+3} offset:{1024*((k % 3)*4 + k // 3)}" for k in range(6)]
                slot[3] = [f"ds_read_b128 {vr(O[0]+4*k,4)}, v{RA+3} offset:{1024*((k % 3)*4 + k // 3)}" for k in range(6, 12)]
        else:
            for first, s_ in ((11, 0), (13, 1)):
                if i in (first, first+1):
                    for q in range(2):
                        slot[1 + 2*q].append(wr(s_, 2*(i - first) + q))
            if i == 15:
                for q in range(4): slot[q].append(wr(2, q))
        unit(i, cur, nxt, prv, slot)
        if ER and i == 14:
            for x in tail4: a(x)
        if i == int(E("XP", "5")):
            if STAMP == 4: stampc(a, 1)
            a("s_barrier")
            if STAMP == 4: stampc(a, 2)
    a("s_setprio 1")
    a(f"v_mov_b32 v{PB+6}, 0")
    a(f"{SM} {vr(O[3],16)}, {ar(KV[3]+12,4)}, {vr(S[3]+8,8)}, v2")
    a(f"v_mov_b32 v{PB+7}, 0")
    a(f"s_mov_b32 s62, {f32(2.0**-60)}")
    a(f"s_mov_b32 s63, {f32(2.0**120)}")
    RB = O[0] if ER else S[0]
    if not ER:
        a("s_waitcnt lgkmcnt(0)")
        a("s_barrier")
    if STAMP != 6: stampc(a, 9)
    if not ER:
        for i in range(12):
            a(f"ds_read_b128 {vr(RB+4*i,4)}, v{RA+3} offset:{1024*((i % 3)*4 + i // 3)}")
    for q in range(4):
        a(f"s_waitcnt lgkmcnt({9-3*q})")
        b = RB + 12*q
        vadd(a, b, b+4, 4)
        vadd(a, b, b+8, 4)
    for q in range(4):
        vadd(a, O[3]+4*(3-q), RB+12*(3-q), 4)
    if STAMP == 8: stampc(a, 1)
    a(f"v_mov_b32 v6, v{O[3]+12}")
    a(f"v_mov_b32 v7, v{O[3]+12}")
    a(f"v_maximum3_f32 v8, abs(v{O[3]+12}), abs(v{O[3]+13}), abs(v{O[3]+14})")
    a(f"v_maximum3_f32 v9, abs(v{O[3]+15}), abs(v{O[3]+8}), abs(v{O[3]+9})")
    a("v_permlane32_swap_b32 v6, v7")
    for i, (x, y) in enumerate(((10, 11), (4, 5), (6, 7), (0, 1), (2, 3))):
        a(f"v_maximum3_f32 v{8+(i&1)}, v{8+(i&1)}, abs(v{O[3]+x}), abs(v{O[3]+y})")
    a("v_cmp_nge_f32 vcc, v7, s62")
    a("v_maximum3_f32 v8, v8, v9, v9")
    a("v_rcp_f32 v7, v7")
    a("v_cmp_nlt_f32 s[64:65], v8, s63")
    a("s_or_b64 vcc, vcc, s[64:65]")
    a("s_cbranch_scc1 C_FALLBACK")
    a.label("C_FIN")
    if STAMP == 8: stampc(a, 2)
    a(f"v_mov_b32 v5, {RING + 49152 - 16}")
    a("s_cmp_eq_u32 s27, 3")
    a("s_cbranch_scc0 C_NOCLR")
    a("ds_write_b32 v5, v3")
    a.label("C_NOCLR")
    a("v_mul_f32 v7, v7, v14")
    vmul(a, O[3], "v7", 8)
    cvt(a, PB, O[3], 0, 4)
    a(f"buffer_store_dwordx4 {vr(PB,4)}, v13, {WSR}, s46 offen sc1")
    vmul(a, O[3]+8, "v7", 8)
    cvt(a, PB, O[3], 4, 6)
    a("s_mov_b32 exec_hi, 0")
    cvt(a, PB, O[3], 6, 8)
    a("s_mov_b32 exec_hi, -1")
    a(f"buffer_store_dwordx4 {vr(PB+4,4)}, v13, {WSR}, s46 offen offset:1024 sc1")
    if STAMP == 8: stampc(a, 3)
    a("s_waitcnt lgkmcnt(0)")
    a("s_barrier")
    if STAMP != 6: stampc(a, 10)
    a("s_mul_i32 s60, s92, 28672")
    a("s_add_u32 s60, s60, 57344")
    a("s_lshl_b32 s61, s92, 6")
    a("v_mov_b32 v1, v5")
    p3_addr(a, 4, "s60", "s61", 8, 9)
    a("s_lshl_b32 s60, s27, 13")
    a(f"s_add_u32 s60, s60, {RING}")
    a("v_add_u32 v8, s60, v13")
    a("s_lshl_b32 s60, s27, 12")
    a(f"s_add_u32 s60, s60, {RING + 32768}")
    a("v_add_u32 v9, s60, v13")
    a("v_xor_b32 v10, 8192, v9")
    a("s_lshl_b32 s60, s30, 1")
    a("s_add_u32 s60, s60, s93")
    if E("TS", "1") == "1":
        a("v_and_b32 v11, 31, v0")
        a("v_lshrrev_b32 v12, 5, v0")
        a("s_lshl_b32 s61, s92, 2")
        a("v_add_u32 v12, s61, v12")
        a("v_and_b32 v15, 7, v0")
        a("v_xor_b32 v12, v12, v15")
        a("s_lshl_b32 s61, s93, 12")
        a(f"s_add_u32 s61, s61, {RING}")
        a("v_lshl_add_u32 v11, v11, 7, s61")
        a("v_lshl_add_u32 v11, v12, 4, v11")
        a("v_xor_b32 v2, 32, v11")
        a("v_lshrrev_b32 v12, 3, v0")
        a("v_xor_b32 v15, v15, v12")
        a("s_lshl_b32 s61, s30, 6")
        a("s_lshl_b32 s63, s27, 4")
        a("s_add_u32 s61, s61, s63")
        a("v_add_u32 v12, s61, v12")
        a("v_mul_u32_u24 v12, 896, v12")
        a("v_lshl_add_u32 v15, v15, 4, v12")
    else:
        a("v_and_b32 v11, 31, v0")
        a("s_lshl_b32 s61, s60, 5")
        a("v_add_u32 v11, s61, v11")
        a("v_mul_u32_u24 v11, 896, v11")
        a("v_lshrrev_b32 v12, 5, v0")
        a("v_lshl_add_u32 v11, v12, 4, v11")
    a(f"s_mul_i32 s60, s60, {PAD}")
    a("s_lshl_b32 s61, s92, 14")
    a("s_add_u32 s60, s60, s61")
    a(f"s_add_u32 s60, s60, {WS_OF + 32768}")
    a("s_and_b32 s61, s30, 0xfe")
    a("s_lshl_b32 s61, s61, 10")
    a(f"s_add_u32 s61, s61, {C_OB}")
    a("s_lshl_b32 s62, s31, 7")
    if E("TS", "1") == "1":
        a("s_add_u32 s63, s62, 7168")
    else:
        a("s_lshl_b32 s63, s92, 6")
        a("s_add_u32 s62, s62, s63")
    srd(a, SX, 18, 1835008)
    a("s_lshl_b32 s64, s24, 4")
    a("s_add_u32 s64, s64, s28")
    a("s_lshl_b32 s64, s64, 7")
    a(f"s_add_u32 s64, s64, {C_OB}")
    a("v_mov_b32 v12, 1")
    a("s_mov_b64 exec, 1")
    a("s_waitcnt vmcnt(0)")
    a("ds_add_rtn_u32 v14, v1, v12")
    a("s_waitcnt lgkmcnt(0)")
    a("v_readfirstlane_b32 s69, v14")
    a("s_nop 0")
    a("s_cmp_eq_u32 s69, 3")
    a("s_mov_b64 exec, -1")
    a("s_cbranch_scc0 C_NOSIG")
    signal(a, "s64", 3, 12, 14)
    a.label("C_NOSIG")
    a("s_mov_b64 exec, -1")
    if STAMP != 6: stampc(a, 11)
    a("s_cmp_ge_u32 s32, 28")
    a("s_cbranch_scc1 C_EXIT")
    NPRE = int(E("NPRE", "10"))
    a("v_lshlrev_b32 v14, 7, v0")
    if E("DY", "0") == "1":
        a("s_lshl_b32 s64, s92, 10")
        a("s_add_u32 s61, s61, s64")
        for i in range(1, 4): a(f"s_add_u32 s{63+i}, s60, {4096*i}")
        a("s_mov_b32 s67, 0xff")
        a(f"s_mov_b32 s68, {SPIN}")
        a("s_barrier")
        for i in range(8):
            a(f"ds_read_b128 {vr(16+4*i,4)}, v8 offset:{1024*i}")
        a("s_mov_b64 exec, 0xff")
        a(f"buffer_load_dword v12, v14, {WSR}, s61 offen sc1")
        a.label("C_DYL")
        a("s_waitcnt vmcnt(0) lgkmcnt(0)")
        a("v_cmp_eq_u32 vcc, s87, v12")
        a("s_mov_b64 exec, -1")
        a("s_sub_u32 s68, s68, 1")
        a("s_cselect_b32 s69, 0xff, vcc_lo")
        a("s_lshr_b32 s49, s69, 1")
        a("s_and_b32 s69, s69, s49")
        a("s_and_b32 s69, s69, s67")
        a("s_and_b32 s69, s69, 0x55")
        a("s_cbranch_scc1 C_DYN")
        a("s_sleep %s" % E("OBS", "1"))
        a("s_mov_b32 exec_lo, s67")
        a("s_mov_b32 exec_hi, 0")
        a(f"buffer_load_dword v12, v14, {WSR}, s61 offen sc1")
        a("s_branch C_DYL")
        a.label("C_DYN")
        if STAMP not in (0, 5, 6): stampc(a, 12)
        for bb in range(4):
            a(f"s_bitcmp1_b32 s69, {2*bb}")
            a(f"s_cbranch_scc0 C_DL{bb}")
            for k in range(4):
                a(f"buffer_load_dwordx4 {ar(16*bb+4*k,4)}, v13, {WSR}, s{60 if bb == 0 else 63+bb} offen offset:{1024*k} sc1")
            a.label(f"C_DL{bb}")
        a("s_mul_i32 s49, s69, 3")
        a("s_andn2_b32 s67, s67, s49")
        a("s_max_u32 s49, s67, 1")
        a("s_mov_b32 exec_lo, s49")
        a("s_mov_b32 exec_hi, 0")
        a(f"buffer_load_dword v12, v14, {WSR}, s61 offen sc1")
        a("s_mov_b64 exec, -1")
        for bb in range(4):
            pre_, body_ = p3_block(a, 4, [16, 32], [48, 56], bb)
            a(f"s_bitcmp1_b32 s69, {2*bb}")
            a(f"s_cbranch_scc0 C_DG{bb}")
            for x in pre_: a(x)
            if bb < 3:
                a(f"s_lshr_b32 s49, s69, {2*bb+1}")
                a("s_bcnt1_i32_b32 s49, s49")
                for n in range(3 - bb, 0, -1):
                    a(f"s_waitcnt vmcnt({4*n+1})")
                    a(f"s_cmp_ge_u32 s49, {n}")
                    a(f"s_cbranch_scc1 C_DW{bb}")
            a("s_waitcnt vmcnt(1)")
            a.label(f"C_DW{bb}")
            for x in body_: a(x)
            a.label(f"C_DG{bb}")
        a("s_cmp_eq_u32 s67, 0")
        a("s_cbranch_scc1 C_DYX")
        a("s_mov_b32 exec_lo, s67")
        a("s_mov_b32 exec_hi, 0")
        a("s_branch C_DYL")
        a.label("C_DYX")
    else:
        a("s_cmp_eq_u32 s27, 0")
        a("s_cbranch_scc0 C_OBD")
        poll(a, "OB", WSR, "s61", 16, 14, 12, int(E("OBS", "1")), False)
        a.label("C_OBD")
        a("s_barrier")
        if STAMP != 6: stampc(a, 12)
        p3_oloads(a, 13, "s60", NPRE)
        for i in range(8):
            a(f"ds_read_b128 {vr(16+4*i,4)}, v8 offset:{1024*i}")
        p3_gemm(a, 4, [16, 32], [48, 56], False, NPRE, 13, "s60")
    if STAMP != 6: stampc(a, 13)
    if E("DY", "0") == "1": a("s_waitcnt vmcnt(0)")
    a("v_mov_b32 v12, v2")
    a("s_lshl_b32 s64, s27, 11")
    a(f"s_add_u32 s64, s64, {RING}")
    a("v_add_u32 v14, s64, v13")
    a("s_nop 7")
    for i in range(4):
        a(f"ds_write_b128 v9, {vr(32+4*i,4)} offset:{1024*i}")
    a("s_waitcnt lgkmcnt(0)")
    if STAMP == 8: stampc(a, 4)
    a("s_barrier")
    if STAMP == 8: stampc(a, 5)
    for i in range(4):
        a(f"ds_read_b128 {vr(32+4*i,4)}, v10 offset:{1024*i}")
    OFL = E("OFL", "sc1")
    TS = E("TS", "1") == "1"
    for hf in range(2):
        for q in (2*hf, 2*hf+1):
            a(f"s_waitcnt lgkmcnt({3-q + (1 if TS and hf else 0)})")
            vadd(a, 16+4*q, 32+4*q, 4)
        cvt(a, 48, 16, 4*hf, 4*hf+4)
        a("s_nop 1")
        a(f"v_permlane32_swap_b32 v{48+4*hf}, v{50+4*hf}")
        a(f"v_permlane32_swap_b32 v{49+4*hf}, v{51+4*hf}")
        if TS: a(f"ds_write_b128 v{11+hf}, {vr(48+4*hf,4)}")
        else: a(f"buffer_store_dwordx4 {vr(48+4*hf,4)}, v11, {R(SX)}, s62 offen offset:{32*hf} {OFL}")
    if TS:
        a("s_waitcnt lgkmcnt(0)")
        if STAMP == 8: stampc(a, 6)
        a("s_barrier")
        if STAMP == 8: stampc(a, 7)
        a("ds_read_b128 v[16:19], v14")
        a("ds_read_b128 v[20:23], v14 offset:1024")
        a("s_waitcnt lgkmcnt(1)")
        a(f"buffer_store_dwordx4 v[16:19], v15, {R(SX)}, s62 offen {OFL}")
        a("s_waitcnt lgkmcnt(0)")
        a(f"buffer_store_dwordx4 v[20:23], v15, {R(SX)}, s63 offen {OFL}")
    a.label("C_EXIT")
    if E("DIAGP", "") == "99":
        a("s_waitcnt vmcnt(0)")
        a("s_memrealtime s[100:101]")
        a("s_waitcnt lgkmcnt(0)")
    if E("DIAGT", ""):
        a("s_xor_b32 s64, s2, %s" % E("DIAGW", "0"))
        a("s_or_b32 s64, s64, s27")
        a("s_cmp_eq_u32 s64, 0")
        a("s_cbranch_scc0 C_DX")
        if E("DIAGP", ""):
            a("s_sub_u32 s100, s100, s96")
            a("s_lshl_b32 s100, s100, 1")
            a("s_add_u32 s96, s96, s100")
        a.label("C_DL")
        a("s_memrealtime s[98:99]")
        a("s_waitcnt lgkmcnt(0)")
        a("s_sub_u32 s98, s98, s96")
        a("s_cmp_lt_i32 s98, %s" % E("DIAGT", ""))
        a("s_cbranch_scc1 C_DL")
        a.label("C_DX")
    if STAMP != 6: stampc(a, 14)
    if STAMP: a("s_waitcnt vmcnt(0)")
    if STAMP != 6: stampc(a, 15)
    stamp_out(a, 16)
    a("s_endpgm")
    a.label("C_FALLBACK")
    Qo = Q[3]; K0 = KV[0]; Sx = S[0]
    def fb_adv():
        a("s_add_u32 s58, s58, 4096")
        a("s_add_u32 s59, s59, 1")
        a("s_and_b32 s61, s59, 15")
        a(f"s_cselect_b32 s61, 0, {PAD-65536}")
        a("s_add_u32 s58, s58, s61")
        a("s_nop 15")
    a("s_mov_b32 s58, 0")
    a("s_mov_b32 s59, 0")
    a(f"v_mov_b32 v8, {f32(float('-inf'))}")
    a.label("C_FB1")
    a(ld(K0, 0, "v4")); a(ld(K0+4, 1024, "v4"))
    a("s_waitcnt vmcnt(0)")
    a(f"{MF} {vr(Sx,16)}, {ar(K0,4)}, {ar(Qo,4)}, 0")
    a(f"{MF} {vr(Sx,16)}, {ar(K0+4,4)}, {ar(Qo+4,4)}, {vr(Sx,16)}")
    fb_adv()
    a("s_nop 15")
    for i in range(8):
        a(f"v_max3_f32 v8, v8, v{Sx+2*i}, v{Sx+2*i+1}")
    a("s_cmp_lt_u32 s59, 64")
    a("s_cbranch_scc1 C_FB1")
    a("v_mov_b32 v9, v8")
    a("s_nop 1")
    a("v_permlane32_swap_b32 v8, v9")
    a("v_max_f32 v8, v8, v9")
    a("v_and_b32 v9, 0xffff0000, v8")
    a("v_sub_f32 v8, v8, v9")
    a("v_and_b32 v10, 0xffff0000, v8")
    a("v_sub_f32 v8, v8, v10")
    a("v_cvt_pk_bf16_f32 v9, -v9, -v10")
    a("v_cvt_pk_bf16_f32 v8, -v8, 0")
    a("s_mov_b32 exec_lo, 0")
    a(f"v_accvgpr_write_b32 a{Qo+6}, v9")
    a(f"v_accvgpr_write_b32 a{Qo+7}, v8")
    a("s_mov_b32 exec_lo, -1")
    for i in range(16): a(f"v_mov_b32 v{O[3]+i}, 0")
    a("s_mov_b32 s58, 0")
    a("s_mov_b32 s59, 0")
    a.label("C_FB2")
    for f in range(4): a(ld(K0+4*f, 1024*f, "v4"))
    a("s_waitcnt vmcnt(0)")
    a(f"{MF} {vr(Sx,16)}, {ar(K0,4)}, {ar(Qo,4)}, 0")
    a(f"{MF} {vr(Sx,16)}, {ar(K0+4,4)}, {ar(Qo+4,4)}, {vr(Sx,16)}")
    fb_adv()
    a("s_nop 15")
    for i in range(16): a(f"v_exp_f32 v{Sx+i}, v{Sx+i}")
    a("s_nop 1")
    a(f"{SM} {vr(O[3],16)}, {ar(K0+8,4)}, {vr(Sx,8)}, v2")
    a(f"{SM} {vr(O[3],16)}, {ar(K0+12,4)}, {vr(Sx+8,8)}, v2")
    a("s_cmp_lt_u32 s59, 64")
    a("s_cbranch_scc1 C_FB2")
    a("s_nop 15")
    a("s_nop 15")
    a(f"v_mov_b32 v6, v{O[3]+12}")
    a(f"v_mov_b32 v7, v{O[3]+12}")
    a("s_nop 1")
    a("v_permlane32_swap_b32 v6, v7")
    a("v_rcp_f32 v7, v7")
    a("s_nop 0")
    a("s_branch C_FIN")

def main():
    a = Asm()
    head = f"""; out = g * linear_attention(x) + (1 - g) * softmax_attention(x),  S = 2048, D = 448, 16 heads of 28.
;      not tiny, nothing near overflow, no NaN) sends a query tile that is out of range to C_FALLBACK, which finds the
; Hand-offs between workgroups: write-through (sc1) stores, drained by every storing wave, then one flag line per
; producer; consumers poll with sc1 loads (bounded) and read the data with sc1 loads. A flag is up when it holds this
; @launch grid=(256,1,1) block=(512,1,1) lds=163840
.amdgcn_target "amdgcn-amd-amdhsa--gfx950"
.text
"""
    gen(a)
    out = head + a.text() + '.section .rodata,"a"\n' + kernel_desc(KN, 256, 102, 160)
    path = sys.argv[1] if len(sys.argv) > 1 else f"cdna_kernels/{NAME}.s"
    open(path, "w").write(out)
main()
```

```python
import math, sys, os, struct
from asmlib import *

NAME = "gated_mix__linear_attn_block__mha_block__prompt"
KN = NAME + "_kernel"
WS_KV  = 0
WS_CNT = 5 << 20
WS_KVP = 6 << 20
WS_OF  = 8 << 20
PAD = int(os.environ.get("PAD", "69632"))
WS_ST  = 14 << 20
WS_SIZE = 16 << 20
LOG2E = 1.4426950408889634
QSCALE = LOG2E * 28 ** -0.5
EPS = 1e-6
ONE2 = 0x3F803F80
RING = 114688
L_KVD = RING
L_G   = RING + 16384 + 15360
L_KVF = RING + 16384 + 12288
L_CNT = RING + 16384 + 14336
L_QD  = RING + 32768
L_PQ  = RING + 32768 + 8192
STAMP = int(os.environ.get("STAMP", "0"))
X = set(os.environ.get("X", "").split(","))
MF = "v_mfma_f32_32x32x16_bf16"
SM = "v_smfmac_f32_32x32x32_bf16"
SX, SW, SWA, SWB, SWS, SD, SG = 36, 40, 44, 48, 52, 56, 60
WSR = f"s[{SWS}:{SWS+3}]"
SPIN = 200000
WFL = os.environ.get("WFL", "")
XFL = os.environ.get("XFL", "")

def srd(a, d, lo, size):
    a(f"s_mov_b32 s{d}, s{lo}")
    a(f"s_mov_b32 s{d+1}, s{lo+1}")
    a(f"s_mov_b32 s{d+2}, {size}")
    a(f"s_mov_b32 s{d+3}, 0x20000")
def R(d): return f"s[{d}:{d+3}]"

def stamp(a, i, mode=1):
    if not STAMP: return
    if mode is not None and mode != STAMP: return
    if i == 0: a("s_memrealtime s[96:97]")
    a("s_memrealtime s[94:95]" if os.environ.get("RT") else "s_memtime s[94:95]")
    a("s_waitcnt lgkmcnt(0)")
    a(f"s_mov_b32 s{70+i}, s94")
def stampc(a, i):
    if os.environ.get("DIAGP") == str(i):
        a("s_memrealtime s[100:101]")
        a("s_waitcnt lgkmcnt(0)")
    if STAMP == 5: return
    stamp(a, i, None)
def stamp_out(a, n):
    if not STAMP: return
    a("s_memrealtime s[98:99]")
    a("s_waitcnt lgkmcnt(0)")
    a("s_mov_b64 exec, 1")
    a("s_lshl_b32 s94, s2, 3")
    a("s_add_u32 s94, s94, s35")
    a("s_lshl_b32 s94, s94, 7")
    a(f"s_add_u32 s94, s94, {WS_ST}")
    a("v_mov_b32 v1, 0")
    for i in range(n if STAMP != 5 else 0):
        a(f"v_mov_b32 v2, s{70+i}")
        a(f"buffer_store_dword v2, v1, {WSR}, s94 offen offset:{4*i}")
    a("v_mov_b32 v2, s96")
    a(f"buffer_store_dword v2, v1, {WSR}, s94 offen offset:120")
    a("v_mov_b32 v2, s98")
    a(f"buffer_store_dword v2, v1, {WSR}, s94 offen offset:124")

def dma_lane_w(a, vdst, vt0, vt1, rowstride):
    a(f"v_lshrrev_b32 v{vt0}, 4, v0")
    a(f"v_bfe_u32 v{vt1}, v0, 2, 2")
    a(f"v_and_b32 v{vdst}, 1, v{vt0}")
    if "noswz" not in X: a(f"v_xor_b32 v{vt1}, v{vt1}, v{vdst}")
    a(f"v_lshrrev_b32 v{vdst}, 1, v{vt1}")
    a(f"v_lshl_add_u32 v{vt0}, v{vt0}, 1, v{vdst}")
    a(f"v_mul_u32_u24 v{vt0}, {rowstride}, v{vt0}")
    a(f"v_and_b32 v{vt1}, 1, v{vt1}")
    a(f"v_lshl_add_u32 v{vt0}, v{vt1}, 6, v{vt0}")
    a(f"v_and_b32 v{vt1}, 3, v0")
    a(f"v_lshl_add_u32 v{vdst}, v{vt1}, 4, v{vt0}")

def tr_lane_addr(a, vdst, vb, vt0, vt1, hlshift):
    a(f"v_bfe_u32 v{vt0}, v0, 4, 1")
    a(f"v_lshl_add_u32 v{vb}, v{vt0}, 5, v{vb}")
    a(f"v_and_b32 v{vt0}, 3, v0")
    a(f"v_lshl_add_u32 v{vb}, v{vt0}, 3, v{vb}")
    a(f"v_bfe_u32 v{vt0}, v0, 2, 1")
    a(f"v_lshrrev_b32 v{vt1}, 6, v{vb}")
    a(f"v_lshl_add_u32 v{vt0}, v{vt0}, 1, v{vt1}")
    a(f"v_bfe_u32 v{vt1}, v0, 3, 1")
    a(f"v_xor_b32 v{vt0}, v{vt0}, v{vt1}")
    a(f"v_and_b32 v{vb}, 63, v{vb}")
    a(f"v_lshl_add_u32 v{vb}, v{vt0}, 6, v{vb}")
    a(f"v_lshrrev_b32 v{vt0}, 5, v0")
    a(f"v_lshl_add_u32 v{vt0}, v{vt0}, {hlshift}, v{vt1}")
    a(f"v_lshl_add_u32 v{vdst}, v{vt0}, 8, v{vb}")

C_KV, C_A, C_OA, C_OB = WS_CNT, WS_CNT + 128*128, WS_CNT + 256*128, WS_CNT + 512*128
NFLAG = 768
def poll(a, tag, srdreg, soff, nl, vl, vt, sleep=0, first=True):
    a("s_mov_b32 exec_hi, 0" if nl == 32 else f"s_mov_b64 exec, {(1 << nl) - 1}")
    a(f"s_mov_b32 s68, {SPIN}")
    if sleep and first: a(f"s_branch POLL_{tag}")
    if os.environ.get("PM", "1") == "1" and not (sleep and first): a("s_mov_b64 vcc, exec")
    a.label(f"POLLS_{tag}")
    if os.environ.get("PM", "1") == "1": a("s_mov_b64 exec, vcc")
    if sleep: a(f"s_sleep {sleep}")
    a.label(f"POLL_{tag}")
    if tag in os.environ.get("PAT", "").split(","):
        a(f"v_mov_b32 v{vt}, 0")
        a(f"buffer_atomic_or v{vt}, v{vl}, {srdreg}, {soff} offen sc0 sc1")
    else:
        a(f"buffer_load_dword v{vt}, v{vl}, {srdreg}, {soff} offen sc1")
    a("s_sub_u32 s68, s68, 1")
    a(f"s_cbranch_scc1 POLLX_{tag}")
    a("s_waitcnt vmcnt(0)")
    a(f"v_cmp_eq_u32 vcc, 0, v{vt}" if tag.startswith("INIT") else f"v_cmp_ne_u32 vcc, s87, v{vt}")
    a(f"s_cbranch_vccnz POLLS_{tag}")
    a.label(f"POLLX_{tag}")
    a("s_mov_b64 exec, -1")

def poll2(a, tag, soff, nl, vl, vt, gap):
    a(f"s_mov_b64 exec, {(1 << nl) - 1}")
    a(f"s_mov_b32 s68, {SPIN}")
    a(f"buffer_load_dword v{vt}, v{vl}, {WSR}, {soff} offen sc1")
    a.label(f"POLL_{tag}")
    for i in range(2):
        if gap: a(f"s_sleep {gap}")
        a(f"buffer_load_dword v{vt+1-i}, v{vl}, {WSR}, {soff} offen sc1")
        a("s_waitcnt vmcnt(1)")
        a(f"v_cmp_ne_u32 vcc, s87, v{vt+i}")
        a(f"s_cbranch_vccz POLLX_{tag}")
    a("s_sub_u32 s68, s68, 1")
    a(f"s_cbranch_scc0 POLL_{tag}")
    a.label(f"POLLX_{tag}")
    a("s_mov_b64 exec, -1")

def lds_wait(a, tag, vaddr, off, target, vt, sleep=1):
    a("s_mov_b64 exec, 1")
    a(f"s_mov_b32 s68, {SPIN}")
    a.label(f"LW_{tag}")
    a(f"s_sleep {sleep}")
    a(f"ds_read_b32 v{vt}, v{vaddr} offset:{off}")
    a("s_waitcnt lgkmcnt(0)")
    a(f"v_readfirstlane_b32 s69, v{vt}")
    a("s_sub_u32 s68, s68, 1")
    a(f"s_cbranch_scc1 LWX_{tag}")
    a(f"s_cmp_ge_u32 s69, {target}")
    a(f"s_cbranch_scc0 LW_{tag}")
    a.label(f"LWX_{tag}")
    a("s_mov_b64 exec, -1")

def signal(a, soff, vz, vt, full=None):
    if full and os.environ.get("FL", "1") == "1":
        a("s_mov_b32 exec_hi, 0")
        a(f"v_lshlrev_b32 v{full}, 2, v0")
        a(f"v_mov_b32 v{vt}, s87")
        a(f"buffer_store_dword v{vt}, v{full}, {WSR}, {soff} offen {os.environ.get('SFL', 'sc1')}")
        a("s_mov_b32 exec_hi, -1")
        return
    a("s_mov_b64 exec, 1")
    a(f"v_mov_b32 v{vt}, s87")
    a(f"buffer_store_dword v{vt}, v{vz}, {WSR}, {soff} offen sc1")
    a("s_mov_b64 exec, -1")

def cvt(a, dst, src, lo=0, hi=8):
    for i in range(lo, hi):
        a(f"v_cvt_pk_bf16_f32 v{dst+i}, v{src+2*i}, v{src+2*i+1}")

def vadd(a, dst, src, n):
    for i in range(n): a(f"v_add_f32 v{dst+i}, v{dst+i}, v{src+i}")
def vmul(a, dst, mul, n):
    for i in range(n): a(f"v_mul_f32 v{dst+i}, {mul}, v{dst+i}")

def phi_list(src, T, n=16, grp=8):
    o = []
    for g0 in range(0, n, grp):
        o += [f"v_fma_f32 v{T+i}, v{src+g0+i}, s64, -s64" for i in range(grp)]
        o += [f"v_exp_f32_e64 v{T+i}, v{T+i} clamp" for i in range(grp)]
        o += [f"v_max_f32 v{src+g0+i}, v{src+g0+i}, v{T+i}" for i in range(grp)]
        o += [f"v_add_f32 v{src+g0+i}, s66, v{src+g0+i}" for i in range(grp)]
    return o

def p3_addr(a, v0a, mat_off_sgpr, swap_sgpr, vt0, vt1):
    a(f"v_mov_b32 v{v0a+1}, 0")
    tr_lane_addr(a, v0a, v0a+1, vt0, vt1, 1)
    a(f"v_add_u32 v{v0a}, {mat_off_sgpr}, v{v0a}")
    a(f"v_xor_b32 v{v0a}, {swap_sgpr}, v{v0a}")
    a(f"v_xor_b32 v{v0a+1}, 64, v{v0a}")
    a(f"v_lshrrev_b32 v{vt0}, 5, v0")
    a(f"v_lshlrev_b32 v{vt0}, 9, v{vt0}")
    a(f"v_sub_u32 v{v0a+2}, v{v0a}, v{vt0}")
    a(f"v_sub_u32 v{v0a+3}, v{v0a+1}, v{vt0}")

def p3_oload(ks, vlane16, so):
    o = [f"buffer_load_dwordx4 {ar(4*ks,4)}, v{vlane16}, {WSR}, {so} offen offset:{1024*(ks&3)} sc1"]
    if ks & 3 == 3 and ks < 15: o.append(f"s_add_u32 {so}, {so}, 4096")
    return o

def p3_gemm(a, va, ACC, WF, first_zero, npre, vlane16, so):
    def reads(ks):
        f = WF[ks & 1]; hh, m = ks >> 1, ks & 1
        o = (14*hh + 8*m) * 256
        last = (ks == 15)
        return [f"ds_read_b64_tr_b16 {vr(f,2)}, v{va} offset:{o}",
                f"ds_read_b64_tr_b16 {vr(f+2,2)}, v{va+2 if last else va} offset:{o+1024}",
                f"ds_read_b64_tr_b16 {vr(f+4,2)}, v{va+1} offset:{o}",
                f"ds_read_b64_tr_b16 {vr(f+6,2)}, v{va+3 if last else va+1} offset:{o+1024}"]
    for x in reads(0): a(x)
    issued = npre
    for ks in range(16):
        f = WF[ks & 1]
        rd = reads(ks+1) if ks < 15 else []
        c0 = "0" if (first_zero and ks == 0) else vr(ACC[0], 16)
        c1 = "0" if (first_zero and ks == 0) else vr(ACC[1], 16)
        if issued < 16:
            for x in p3_oload(issued, vlane16, so): a(x)
            issued += 1
        a(f"s_waitcnt vmcnt({issued-1-ks}) lgkmcnt(2)")
        a(f"{MF} {vr(ACC[0],16)}, {vr(f,4)}, {ar(4*ks,4)}, {c0}")
        for x in rd[:2]: a(x)
        a(f"s_waitcnt lgkmcnt({2 if rd else 0})")
        a(f"{MF} {vr(ACC[1],16)}, {vr(f+4,4)}, {ar(4*ks,4)}, {c1}")
        for x in rd[2:]: a(x)

def p3_block(a, va, ACC, WF, b):
    def reads(ks):
        f = WF[ks & 1]; hh, m = ks >> 1, ks & 1
        o = (14*hh + 8*m) * 256
        last = (ks == 15)
        return [f"ds_read_b64_tr_b16 {vr(f,2)}, v{va} offset:{o}",
                f"ds_read_b64_tr_b16 {vr(f+2,2)}, v{va+2 if last else va} offset:{o+1024}",
                f"ds_read_b64_tr_b16 {vr(f+4,2)}, v{va+1} offset:{o}",
                f"ds_read_b64_tr_b16 {vr(f+6,2)}, v{va+3 if last else va+1} offset:{o+1024}"]
    pre = reads(4*b)
    body = []
    for ks in range(4*b, 4*b+4):
        f = WF[ks & 1]
        rd = reads(ks+1) if ks < 4*b+3 else []
        body.append("s_waitcnt lgkmcnt(2)")
        body.append(f"{MF} {vr(ACC[0],16)}, {vr(f,4)}, {ar(4*ks,4)}, {vr(ACC[0],16)}")
        body += rd[:2]
        body.append(f"s_waitcnt lgkmcnt({2 if rd else 0})")
        body.append(f"{MF} {vr(ACC[1],16)}, {vr(f+4,4)}, {ar(4*ks,4)}, {vr(ACC[1],16)}")
        body += rd[2:]
    return pre, body

def p3_oloads(a, vlane16, so, n):
    for ks in range(n):
        for x in p3_oload(ks, vlane16, so): a(x)

E = lambda k, d: os.environ.get(k, d)
ROT = 1
XE = int(E("XE", "1"))
PF = E("PF", "0") == "1"
SWP = E("SWP", "0") == "1"
M1, M2 = (0, 1) if SWP else (1, 0)
QSLOT = {(M1, 0): 1, (M1, 1): 2, (M2, 0): 0, (M2, 1): 1}
PT = E("PT", "0") == "1"
def gen(a):
    kernel_head(a, KN)
    a("s_cmp_ge_u32 s2, 256")
    a("s_cbranch_scc1 L_END")
    a("s_load_dwordx16 s[4:19], s[0:1], 0")
    a("s_load_dwordx4 s[20:23], s[0:1], 64")
    if STAMP or E("DIAGT", ""):
        a("s_memrealtime s[96:97]")
        a("s_memtime s[70:71]")
    if E("PC", "1") == "1":
        a("s_getpc_b64 s[40:41]")
        a.label("L_PC")
        a("s_mov_b32 s42, L_CODE_END-L_PC")
        a("s_mov_b32 s43, 0x20000")
        a("v_lshlrev_b32 v1, 7, v0")
        a("buffer_load_dword a89, v1, s[40:43], 0 offen")
    a("v_lshrrev_b32 v1, 6, v0")
    a("v_and_b32 v0, 63, v0")
    a("v_readfirstlane_b32 s27, v1")
    perm = [int(c) for c in E("PERM", "51274063")]
    a("s_and_b32 s25, s2, 7")
    if perm != list(range(8)):
        a("s_lshl_b32 s64, s25, 2")
        a("s_lshr_b32 s25, 0x%08x, s64" % sum(v << (4*i) for i, v in enumerate(perm)))
        a("s_and_b32 s25, s25, 7")
    a("s_lshr_b32 s24, s2, 4")
    a("s_bfe_u32 s26, s2, 0x10003")
    a("s_lshl_b32 s64, s25, 2")
    a("s_lshr_b32 s91, 0x04152630, s64")
    a("s_and_b32 s91, s91, 7")
    a("s_cmp_ge_u32 s27, 4")
    a("s_cbranch_scc0 L_COMPUTE")
    helper(a)
    compute(a)
    a.label("L_END")
    a("s_endpgm")
    a.label("L_CODE_END")

def decode(a):
    a("s_lshr_b32 s32, s2, 3")
    a("s_lshr_b32 s33, s25, 2")
    a("s_lshr_b32 s34, s24, 2")
    a("s_and_b32 s29, s24, 3")
    a("s_lshl_b32 s28, s25, 1")
    a("s_cmp_eq_u32 s26, s33" if E("HS", "0") == "0" else "s_cmp_lg_u32 s26, s33")
    a("s_addc_u32 s28, s28, 0")
    a("s_mul_i32 s30, s32, 37")
    a("s_lshr_b32 s30, s30, 8")
    a("s_mul_i32 s31, s30, 7")
    a("s_sub_u32 s31, s32, s31")
    a("s_and_b32 s64, s2, 7")
    a("s_lshl_b32 s64, s64, 2")
    a("s_add_u32 s30, s30, s64")

def helper(a):
    if STAMP: a("s_mov_b32 s35, s27")
    a("s_sub_u32 s27, s27, 4")
    a("v_lshrrev_b32 v1, 3, v0")
    a("s_lshl_b32 s64, s24, 2")
    a("s_add_u32 s64, s64, s27")
    a("s_mul_i32 s64, s64, 28672")
    a("v_mul_u32_u24 v1, 896, v1")
    a("v_lshrrev_b32 v2, 4, v0")
    a("v_and_b32 v3, 7, v0")
    a("v_xor_b32 v2, v2, v3")
    a("v_lshlrev_b32 v2, 4, v2")
    a("v_add3_u32 v2, v2, v1, s64")
    a("v_xor_b32 v3, 64, v2")
    a("v_add_u32 v3, 7168, v3")
    a("v_add_u32 v4, 14336, v2")
    a("v_add_u32 v5, 14336, v3")
    a("s_lshl_b32 s66, s27, 12")
    a(f"s_mov_b32 s{SX+2}, 1835008")
    a(f"s_mov_b32 s{SX+3}, 0x20000")
    a("s_mov_b32 s80, s91")
    vm = []
    def xload(c):
        if ROT:
            a(f"s_lshl_b32 s64, s{80+c}, 14")
            a("s_add_u32 s69, s64, s66")
        for q in range(4):
            a(f"s_add_u32 m0, s69, {q*1024}" if ROT else f"s_add_u32 m0, s66, {c*16384 + q*1024}")
            a((f"s_lshl_b32 s64, s{80+c}, 7" if ROT else f"s_mov_b32 s64, {c*128}") if q == 0 else "s_nop 0")
            a(f"buffer_load_dwordx4 v{2+q}, {R(SX)}, s64 offen lds"); vm.append(("x", c))
    def wload(c):
        for pt in range(2):
            for u in range(2):
                a(f"s_add_u32 m0, s67, {(c%3)*16384 + pt*8192 + u*1024}")
                a((f"s_mul_i32 s65, s{80+c}, 172032" if ROT else f"s_mov_b32 s65, {c*172032}") if pt + u == 0 else "s_nop 0")
                a(f"buffer_load_dwordx4 v{6+2*pt+u}, {R(SW)}, s65 offen lds"); vm.append(("w", c))
    def qload(mat, part):
        slot = QSLOT[(mat, part)]
        for u in range(3 if part else 4):
            a(f"s_add_u32 m0, s{89 if part else 88}, {slot*16384 + u*1024}")
            a(f"s_mov_b32 s65, {u*43008}")
            a(f"buffer_load_dwordx4 v{10+part}, {R(SWA if mat == 0 else SWB)}, s65 offen lds"); vm.append(("q", mat, part))
    def waitfor(*tags):
        last = max(i for i, tg in enumerate(vm) if tg in tags)
        a(f"s_waitcnt vmcnt({len(vm)-1-last})")
    def patch(part):
        if part: a("s_mov_b32 exec_hi, 0xffff")
        a(f"ds_write_b16 v{15+part}, v{12+part}")
        if part: a("s_mov_b32 exec_hi, -1")
    def initcheck(tag):
        a("v_readfirstlane_b32 s87, v17")
        a("s_nop 0")
        a("s_cmp_lg_u32 s87, 0")
        a(f"s_cbranch_scc1 H_INIT_OK{tag}")
        poll(a, "INIT" + tag, R(SD), "0", 1, 18, 17)
        a("v_readfirstlane_b32 s87, v17")
        a.label(f"H_INIT_OK{tag}")
    a("s_waitcnt lgkmcnt(0)")
    a(f"s_mov_b32 s{SX}, s4")
    a(f"s_mov_b32 s{SX+1}, s5")
    stamp(a, 1, 2); stamp(a, 1, 9)
    xload(0)
    stamp(a, 2, 9)
    dma_lane_w(a, 6, 10, 11, 2688)
    if E("P7", "1") == "1":
        a("v_and_b32 v10, 112, v6")
        a("v_cmp_eq_u32 vcc, 112, v10")
        a("v_subrev_u32 v10, 16, v6")
        a("s_nop 0")
        a("v_cndmask_b32 v6, v6, v10, vcc")
    a("s_mul_i32 s64, s27, 43008")
    a("s_mul_i32 s65, s25, 112")
    a("s_add_u32 s64, s64, s65")
    a("s_add_u32 s64, s64, 896")
    a("v_add_u32 v6, s64, v6")
    a("v_add_u32 v7, 21504, v6")
    a("v_add_u32 v8, 896, v6")
    a("v_add_u32 v9, 896, v7")
    a("s_lshl_b32 s67, s27, 11")
    a(f"s_add_u32 s67, s67, {RING}")
    a(f"s_mov_b32 s{SW+2}, 1204224")
    a(f"s_mov_b32 s{SW+3}, 0x20000")
    a("s_cmp_eq_u32 s26, 0")
    a(f"s_cselect_b32 s{SW}, s6, s12")
    a(f"s_cselect_b32 s{SW+1}, s7, s13")
    wload(0)
    stamp(a, 10, 9)
    for i in range(1, 7):
        a(f"s_add_u32 s{80+i}, s{79+i}, 1")
        a(f"s_cmp_eq_u32 s{80+i}, 7")
        a(f"s_cselect_b32 s{80+i}, 0, s{80+i}")
    xload(1); wload(1)
    for i in range(XE): xload(2+i)
    decode(a)
    srd(a, SWA, 6, 1204224); srd(a, SWB, 12, 1204224)
    srd(a, SWS, 22, WS_SIZE); srd(a, SD, 20, 256); srd(a, SG, 16, 896)
    a("v_lshrrev_b32 v10, 2, v0")
    a("v_mul_u32_u24 v10, 2688, v10")
    a("v_and_b32 v11, 3, v0")
    a("v_lshl_add_u32 v10, v11, 4, v10")
    a("s_mul_i32 s65, s28, 56")
    a("s_mul_i32 s64, s27, 129024")
    a("s_add_u32 s64, s64, s65")
    a(f"s_add_u32 s64, s64, {256*2688}")
    a("v_add_u32 v11, s64, v10")
    a("s_mul_i32 s64, s27, 172032")
    a("s_add_u32 s64, s64, s65")
    a("v_add_u32 v10, s64, v10")
    a("s_lshl_b32 s88, s27, 12")
    a(f"s_add_u32 s88, s88, {RING}")
    a("s_mul_i32 s89, s27, 3072")
    a(f"s_add_u32 s89, s89, {RING}")
    a(f"s_add_u32 s64, s88, {QSLOT[(1, 0)]*16384 + 56}")
    a("v_lshl_add_u32 v15, v0, 6, s64")
    a(f"s_add_u32 s64, s89, {QSLOT[(1, 1)]*16384 + 56}")
    a("v_lshl_add_u32 v16, v0, 6, s64")
    a("s_lshl_b32 s64, s27, 7")
    a("v_lshl_add_u32 v14, v0, 1, s64")
    a("s_mul_i32 s64, s27, 96")
    a("s_add_u32 s64, s64, 512")
    a("v_lshl_add_u32 v17, v0, 1, s64")
    a("v_mov_b32 v18, 0")
    stamp(a, 1); stamp(a, 2, 2)
    for c in range(5):
        waitfor(("x", c), ("w", c)); a("s_barrier"); stamp(a, 3+c, 2)
        if c == 0: stamp(a, 2)
        if not XE: xload(c+2)
        wload(c+2)
        if XE and c+2+XE < 7: xload(c+2+XE)
        if c == 1:
            a(f"buffer_load_ushort v12, v14, {R(SG)}, 0 offen"); vm.append(("g", 0))
            a(f"buffer_load_ushort v13, v17, {R(SG)}, 0 offen"); vm.append(("g", 1))
        if c == 3:
            a(f"buffer_load_dword v17, v18, {R(SD)}, 0 offen sc1"); vm.append(("d", 0))
    waitfor(("x",5),("w",5)); a("s_barrier"); stamp(a, 8, 2)
    qload(M1, 0)
    def setup2():
        a(f"v_mov_b32 v1, {L_CNT}")
        for i in range(8, 12): a(f"v_mov_b32 v{i}, 0")
        a("ds_write_b128 v1, v[8:11]")
        a("s_nop 1")
        a("v_mov_b32 v9, s87")
        a("ds_write_b128 v1, v[8:11] offset:16")
        a("v_lshlrev_b32 v2, 4, v0")
        dma_lane_w(a, 3, 4, 5, 896)
        a("s_mul_i32 s64, s27, 7168")
        a("s_lshl_b32 s65, s31, 7")
        a("s_add_u32 s64, s64, s65")
        a("v_add_u32 v3, s64, v3")
        a("s_lshr_b32 s65, s27, 1")
        a("s_mul_i32 s64, s65, 28672")
        a("s_lshl_b32 s65, s65, 6")
        p3_addr(a, 4, "s64", "s65", 8, 9)
        srd(a, SWA, 8, 401408); srd(a, SWB, 14, 401408)
        a("s_lshl_b32 s65, s25, 2")
        a("s_add_u32 s65, s65, s27")
        a("s_lshl_b32 s65, s65, 9")
        a(f"s_add_u32 s65, s65, {C_KV}")
        a("v_lshlrev_b32 v10, 7, v0")
        stamp(a, 3)
    waitfor(("x",6),("w",6)); a("s_barrier"); stamp(a, 9, 2)
    a("s_lshl_b32 s64, s25, 4")
    a("s_add_u32 s64, s64, s24")
    a("s_lshl_b32 s64, s64, 7")
    a(f"s_add_u32 s66, s64, {C_KV}")
    initcheck("A")
    qload(M1, 1)
    if SWP: a("s_waitcnt vmcnt(0)")
    else:
        a("s_waitcnt vmcnt(3)"); patch(0)
        a("s_waitcnt vmcnt(0)"); patch(1)
        a("s_waitcnt lgkmcnt(0)")
    a("s_barrier"); stamp(a, 10, 2)
    qload(M2, 0)
    a("s_barrier")
    qload(M2, 1)
    a("s_xor_b32 s64, s27, 3")
    a("s_xor_b32 s65, s26, 1")
    a("s_or_b32 s90, s64, s65")
    a("s_barrier")
    a("s_cbranch_scc1 H_NOSIGKV")
    signal(a, "s66", 18, 19, 20)
    a.label("H_NOSIGKV")
    if E("ES", "0") == "1": setup2()
    a("s_waitcnt vmcnt(4)")
    a("s_cmp_eq_u32 s90, 0")
    a("s_cbranch_scc1 H_W4")
    a("s_waitcnt vmcnt(3)")
    a.label("H_W4")
    if SWP:
        patch(0); a("s_waitcnt lgkmcnt(0)")
    a("s_barrier")
    a("s_waitcnt vmcnt(1)")
    a("s_cbranch_scc1 H_SIGD")
    a("s_waitcnt vmcnt(0)")
    a.label("H_SIGD")
    if SWP:
        patch(1); a("s_waitcnt lgkmcnt(0)")
    a("s_barrier")
    if E("ES", "0") == "0": setup2()
    if E("K1", "1") == "1":
        a("s_cmp_eq_u32 s27, 0")
        a("s_cbranch_scc0 H_KVD")
        poll(a, "KV", WSR, "s65", 16, 10, 11, int(E("KS", "6")))
        a.label("H_KVD")
    else: poll(a, "KV", WSR, "s65", 4, 10, 11, int(E("KS", "0")))
    a("s_waitcnt lgkmcnt(0)")
    a("s_barrier")
    a("s_setprio %s" % E("HP", "2"))
    stamp(a, 4); stamp(a, 1, 3); stamp(a, 1, 7)
    PQ, G, KF, NUM, PA = 80, 88, 92, 100, 116
    def wo_dma(tag, srdreg, base, lo, hi, depth):
        if hi <= lo: return
        a("s_lshl_b32 s66, s27, 10")
        a(f"s_add_u32 s66, s66, {base + lo*4096}")
        a(f"s_mov_b32 s63, {lo*28672}")
        a.label(f"H_WO{tag}")
        a("s_mov_b32 m0, s66")
        a("s_add_u32 s66, s66, 4096")
        a(f"buffer_load_dwordx4 v3, {R(srdreg)}, s63 offen lds")
        a("s_add_u32 s63, s63, 28672")
        a(f"s_waitcnt vmcnt({depth})")
        a(f"s_cmp_lt_u32 s63, {hi*28672}")
        a(f"s_cbranch_scc1 H_WO{tag}")
    W1 = 0
    if "hskip" in X:
        a("s_branch H_SKIP")
    lds_wait(a, "C0", 1, 8, 4, 9)
    stamp(a, 2, 7)
    a("s_lshl_b32 s64, s27, 11")
    a(f"s_add_u32 s64, s64, {L_PQ}")
    a("v_add_u32 v8, s64, v2")
    a(f"ds_read_b128 {vr(PQ,4)}, v8")
    a(f"ds_read_b128 {vr(PQ+4,4)}, v8 offset:1024")
    a("s_lshl_b32 s64, s27, 8")
    a(f"s_add_u32 s64, s64, {L_G}")
    a("v_lshl_add_u32 v8, v0, 2, s64")
    a(f"ds_read_b32 v{G}, v8")
    a("s_cmp_ge_u32 s27, 2")
    a("s_cselect_b32 s64, s26, 1")
    a("s_cmp_eq_u32 s64, 0")
    a("s_cbranch_scc0 H_NOKVP")
    a("s_and_b32 s65, s27, 1")
    a("s_lshl_b32 s64, s65, 12")
    a(f"s_add_u32 s64, s64, {L_KVD}")
    a("v_add_u32 v8, s64, v2")
    for i in range(8):
        a(f"ds_read_b128 {vr(16+4*i,4)}, v8 offset:{1024*(i&3) + 8192*(i>>2)}")
    a("s_lshl_b32 s64, s25, 1")
    a("s_add_u32 s64, s64, s65")
    a(f"s_mul_i32 s64, s64, {PAD}")
    a("s_lshl_b32 s65, s24, 12")
    a("s_add_u32 s64, s64, s65")
    a(f"s_add_u32 s64, s64, {WS_KVP}")
    a("s_waitcnt lgkmcnt(0)")
    vadd(a, 16, 32, 16)
    for q in range(4):
        a(f"buffer_store_dwordx4 {vr(16+4*q,4)}, v2, {WSR}, s64 offen offset:{1024*q} sc1")
    a("s_lshl_b32 s64, s25, 4")
    a("s_add_u32 s64, s64, s24")
    a("s_lshl_b32 s64, s64, 7")
    a(f"s_add_u32 s64, s64, {C_A}")
    a("v_mov_b32 v11, 1")
    stamp(a, 3, 7)
    a("s_waitcnt vmcnt(0)")
    stamp(a, 4, 7)
    a("s_mov_b64 exec, 1")
    a("ds_add_rtn_u32 v9, v1, v11 offset:12")
    a("s_waitcnt lgkmcnt(0)")
    a("v_readfirstlane_b32 s69, v9")
    a("s_mov_b64 exec, -1")
    a("s_cmp_eq_u32 s69, 1")
    a("s_cbranch_scc0 H_NOKVP")
    signal(a, "s64", 10, 11, 9)
    a.label("H_NOKVP")
    stamp(a, 5, 7)
    lo = lambda: a("s_setprio 0") if PT else None
    hi = lambda: a("s_setprio 2") if PT else None
    a("s_cmp_ge_u32 s32, 28")
    a("s_cbranch_scc1 H_NOWOA")
    if "nowo" not in X:
        wo_dma("A", SWA, 0, W1, 14, int(E("WOD", "5")))
        wo_dma("B", SWB, 57344, 0, 14, int(E("WOD", "5")))
    a.label("H_NOWOA")
    stamp(a, 2, 3); stamp(a, 6, 7)
    a("s_lshl_b32 s64, s25, 11")
    a(f"s_add_u32 s64, s64, {C_A}")
    if "nopolla" not in X:
        a("s_cmp_eq_u32 s27, 0")
        a("s_cbranch_scc0 H_AW")
        poll(a, "A", WSR, "s64", 16, 10, 11, int(E("AS", "16")))
        a("v_mov_b32 v11, 1")
        a("ds_write_b32 v1, v11 offset:16")
        a("s_branch H_AD")
        a.label("H_AW")
        lds_wait(a, "A", 1, 16, 1, 9, 4)
        a.label("H_AD")
    stamp(a, 3, 3); stamp(a, 7, 7)
    a(f"s_mul_i32 s64, s28, {PAD}")
    a("s_lshl_b32 s65, s27, 10")
    a("s_add_u32 s64, s64, s65")
    a(f"s_add_u32 s64, s64, {WS_KVP}")
    KD = int(E("KD", "2"))
    LA = E("LA", "0") == "1"
    if LA:
        a("s_lshl_b32 s65, s27, 10")
        a(f"s_add_u32 s65, s65, {RING + 16384}")
        a("v_lshl_add_u32 v8, v0, 2, s65")
    def kvadd(j):
        if not LA:
            if j: vadd(a, 16, 16+4*j, 4)
            return
        for k in range(4):
            a(f"{'ds_add_f32' if j else 'ds_write_b32'} v8, v{16+4*j+k} offset:{256*k}")
        a("s_waitcnt lgkmcnt(4)")
    for i in range(16):
        a(f"buffer_load_dwordx4 {vr(16+4*i,4)}, v2, {WSR}, s64 offen sc1")
        a("s_add_u32 s64, s64, 4096")
        if i >= KD:
            a(f"s_waitcnt vmcnt({KD})")
            kvadd(i-KD)
    stamp(a, 4, 3)
    for j in range(16-KD, 16):
        a(f"s_waitcnt vmcnt({15-j})")
        kvadd(j)
    if LA:
        for k in range(4): a(f"ds_read_b32 v{16+k}, v8 offset:{256*k}")
        a("s_waitcnt lgkmcnt(0)")
    stamp(a, 5, 3)
    if "nofin" in X:
        a("s_branch H_SKIP")
    a("v_cvt_pk_bf16_f32 v16, v16, v17")
    a("v_cvt_pk_bf16_f32 v17, v18, v19")
    a("s_lshr_b32 s64, s27, 1")
    a("s_lshl_b32 s64, s64, 10")
    a("s_and_b32 s65, s27, 1")
    a("s_lshl_b32 s65, s65, 3")
    a("s_add_u32 s64, s64, s65")
    a(f"s_add_u32 s64, s64, {L_KVF}")
    a("v_add_u32 v8, s64, v2")
    a("ds_write_b64 v8, v[16:17]")
    a("v_mov_b32 v11, 1")
    a("s_waitcnt lgkmcnt(0)")
    a("s_mov_b64 exec, 1")
    a("ds_add_u32 v1, v11")
    lds_wait(a, "C1", 1, 0, 4, 9)
    stamp(a, 6, 3)
    a(f"v_add_u32 v8, {L_KVF}, v2")
    a(f"ds_read_b128 {vr(KF,4)}, v8")
    a(f"ds_read_b128 {vr(KF+4,4)}, v8 offset:1024")
    a("s_waitcnt lgkmcnt(0)")
    a(f"{MF} {vr(NUM,16)}, {vr(KF,4)}, {vr(PQ,4)}, 0")
    a(f"{MF} {vr(NUM,16)}, {vr(KF+4,4)}, {vr(PQ+4,4)}, {vr(NUM,16)}")
    a("s_lshl_b32 s64, s24, 2")
    a("s_add_u32 s64, s64, s27")
    a(f"s_mul_i32 s64, s64, {PAD}")
    a("s_lshl_b32 s65, s28, 11")
    a("s_add_u32 s64, s64, s65")
    a(f"s_add_u32 s64, s64, {WS_OF}")
    a(f"v_mov_b32 v{PA+6}, 0")
    a(f"v_mov_b32 v{PA+7}, 0")
    a("s_nop 15")
    a(f"v_mov_b32 v8, v{NUM+12}")
    a(f"v_mov_b32 v9, v{NUM+12}")
    a("s_nop 1")
    a("v_permlane32_swap_b32 v8, v9")
    a(f"v_add_f32 v9, {f32(EPS)}, v9")
    a("v_rcp_f32 v9, v9")
    a("s_nop 0")
    a(f"v_mul_f32 v9, v9, v{G}")
    vmul(a, NUM, "v9", 16)
    cvt(a, PA, NUM, 0, 6)
    a("s_mov_b32 exec_hi, 0")
    cvt(a, PA, NUM, 6, 8)
    a("s_mov_b32 exec_hi, -1")
    a(f"buffer_store_dwordx4 {vr(PA,4)}, v2, {WSR}, s64 offen sc1")
    a(f"buffer_store_dwordx4 {vr(PA+4,4)}, v2, {WSR}, s64 offen offset:1024 sc1")
    stamp(a, 7, 3)
    a("s_waitcnt vmcnt(0)")
    stamp(a, 8, 3)
    a("s_mov_b64 exec, 1")
    a("ds_add_rtn_u32 v9, v1, v11 offset:4")
    a("s_waitcnt lgkmcnt(0)")
    a("v_readfirstlane_b32 s69, v9")
    a("s_mov_b64 exec, -1")
    a("s_cmp_eq_u32 s69, 3")
    a("s_cbranch_scc0 H_NOSIGOA")
    if "hskip" in X or "nofin" in X:
        a.label("H_SKIP")
        a("s_cmp_eq_u32 s27, 0")
        a("s_cbranch_scc0 H_NOSIGOA")
    a("s_lshl_b32 s64, s24, 4")
    a("s_add_u32 s64, s64, s28")
    a("s_lshl_b32 s64, s64, 7")
    a(f"s_add_u32 s64, s64, {C_OA}")
    signal(a, "s64", 10, 11, 9)
    a.label("H_NOSIGOA")
    stamp(a, 5); stamp(a, 9, 3)
    a("s_setprio 0")
    a("s_barrier")
    a("s_cmp_ge_u32 s32, 28")
    a("s_cbranch_scc1 H_NOP3B")
    stamp(a, 6)
    a("s_and_b32 s64, s30, 0xfe")
    a("s_lshr_b32 s65, s27, 1")
    a("s_add_u32 s64, s64, s65")
    a("s_lshl_b32 s64, s64, 10")
    a(f"s_add_u32 s64, s64, {C_OA}")
    a("s_and_b32 s62, s27, 1")
    a("s_lshl_b32 s65, s30, 1")
    a("s_add_u32 s62, s62, s65")
    a(f"s_mul_i32 s62, s62, {PAD}")
    a("s_lshr_b32 s65, s27, 1")
    a("s_lshl_b32 s65, s65, 14")
    a("s_add_u32 s62, s62, s65")
    a(f"s_add_u32 s62, s62, {WS_OF}")
    NE = int(E("NE", "16"))
    a("s_mov_b64 exec, 0xff")
    a(f"buffer_load_dword v11, v10, {WSR}, s64 offen sc1")
    a("s_waitcnt vmcnt(0)")
    a("v_cmp_ne_u32 vcc, s87, v11")
    a("s_mov_b64 exec, -1")
    a("s_cbranch_vccnz H_OALATE")
    p3_oloads(a, 2, "s62", NE)
    a("s_barrier")
    a("s_barrier")
    a("s_branch H_OADONE")
    a.label("H_OALATE")
    a("s_barrier")
    a("s_barrier")
    poll(a, "OA", WSR, "s64", 8, 10, 11, 2)
    p3_oloads(a, 2, "s62", NE)
    a.label("H_OADONE")
    NPRE = 16
    for ks in range(NE, 16):
        for x in p3_oload(ks, 2, "s62"): a(x)
    stamp(a, 7); stamp(a, 10, 3)
    p3_gemm(a, 4, [16, 32], [48, 56], True, NPRE, 2, "s62")
    stamp(a, 8)
    a("s_lshl_b32 s64, s27, 13")
    a(f"s_add_u32 s64, s64, {RING}")
    a("v_add_u32 v8, s64, v2")
    a("s_nop 9")
    for i in range(8):
        a(f"ds_write_b128 v8, {vr(16+4*i,4)} offset:{1024*i}")
    a("s_waitcnt lgkmcnt(0)")
    stamp(a, 9)
    a("s_barrier")
    a("s_branch H_EXIT")
    a.label("H_NOP3B")
    a("s_barrier")
    a("s_barrier")
    a.label("H_EXIT")
    stamp(a, 10)
    stamp_out(a, 11)
    a("s_endpgm")

def compute(a):
    a.label("L_COMPUTE")
    if STAMP: a("s_mov_b32 s35, s27")
    decode(a)
    XA, WA, WB, XQ, WQ = 2, 6, 7, 8, 12
    FR = 16; accK = [64, 80]; accV = [96, 112]; pK = [128, 136]; pV = [144, 152]
    QA, QB = 96, 112
    a("s_waitcnt lgkmcnt(0)")
    if E("DIAGP", "") == "20": stampc(a, 20)
    if E("DIAGP", "") == "21":
        srd(a, SW, 4, 1835008)
        a("s_mul_i32 s60, s24, 114688")
        a("v_lshlrev_b32 v17, 4, v0")
        a(f"buffer_load_dwordx4 v[20:23], v17, {R(SW)}, s60 offen")
        a("s_waitcnt vmcnt(0)")
        stampc(a, 21)
    TW = int(E("TW", "1"))
    if TW:
        a(f"s_cmp_ge_u32 s27, {TW}")
        a("s_cbranch_scc1 C_NTW")
        a("s_cmp_ge_u32 s32, 16")
        a(f"s_cselect_b32 s{SW}, s12, s6")
        a(f"s_cselect_b32 s{SW+1}, s13, s7")
        a(f"s_mov_b32 s{SW+2}, 1204224")
        a(f"s_mov_b32 s{SW+3}, 0x20000")
        a("s_and_b32 s60, s32, 15")
        a("s_mul_i32 s60, s60, 28")
        a("v_lshrrev_b32 v17, 1, v0")
        a("v_add_u32 v17, s60, v17")
        a("v_mul_u32_u24 v17, 2688, v17")
        a("v_and_b32 v16, 1, v0")
        a("v_lshl_add_u32 v17, v16, 7, v17")
        a("s_mul_i32 s60, s25, 112")
        a("s_and_b32 s60, s60, 0xff80")
        a("s_mul_i32 s61, s27, 896")
        a("s_add_u32 s60, s60, s61")
        a("s_mov_b32 exec_hi, 0xffffff")
        a(f"buffer_load_dword a88, v17, {R(SW)}, s60 offen")
        a("s_mov_b64 exec, -1")
        a.label("C_NTW")
    srd(a, SWS, 22, WS_SIZE)
    a("s_xor_b32 s64, s27, 3")
    a("s_xor_b32 s65, s2, 8")
    a("s_or_b32 s64, s65, s64")
    a("s_cmp_eq_u32 s64, 0")
    a("s_cbranch_scc0 C_NOINIT")
    a("s_memrealtime s[64:65]")
    srd(a, SD, 20, 256)
    a("v_mov_b32 v21, 0")
    a("s_waitcnt lgkmcnt(0)")
    a("s_lshl_b32 s64, s64, 1")
    a("s_or_b32 s64, s64, 1")
    a("v_mov_b32 v22, s64")
    a("s_mov_b64 exec, 1")
    a(f"buffer_store_dword v22, v21, {R(SD)}, 0 offen sc1")
    a("s_mov_b64 exec, -1")
    a.label("C_NOINIT")
    a("s_lshr_b32 s92, s27, 1")
    a("s_and_b32 s93, s27, 1")
    a("v_and_b32 v13, 31, v0")
    a("v_lshrrev_b32 v14, 5, v0")
    a("v_bfe_u32 v15, v0, 1, 3")
    a("v_xor_b32 v15, v15, v14")
    a("s_lshl_b32 s64, s92, 13")
    a("v_lshl_add_u32 v1, v13, 7, s64")
    a("s_lshl_b32 s65, s27, 12")
    a("s_sub_u32 s65, s65, s64")
    for ks in range(4):
        a(f"v_xor_b32 v{XA+ks}, {2*ks}, v15")
        a(f"v_lshl_add_u32 v{XA+ks}, v{XA+ks}, 4, v1")
        a(f"v_add_u32 v{XQ+ks}, s65, v{XA+ks}")
    a("s_mul_i32 s64, s93, 56")
    a(f"v_mov_b32 v{WA}, s64")
    tr_lane_addr(a, WB, WA, 1, 15, 2)
    a(f"v_add_u32 v{WB}, {RING}, v{WB}")
    a(f"v_mov_b32 v{WA}, v{WB}")
    a("v_bfe_u32 v1, v0, 2, 2")
    a("v_lshl_add_u32 v1, v14, 3, v1")
    a("v_lshlrev_b32 v1, 1, v1")
    a("v_bfe_u32 v15, v0, 4, 1")
    a("v_add_u32 v1, v1, v15")
    a("v_lshlrev_b32 v1, 2, v1")
    a("v_and_b32 v15, 3, v0")
    a("v_add_u32 v1, v1, v15")
    a("v_lshlrev_b32 v1, 3, v1")
    a(f"v_add_u32 v{WQ}, {RING}, v1")
    a("v_cmp_eq_u32 vcc, 28, v13")
    a(f"v_mov_b32 v1, {ONE2}")
    a("s_nop 0")
    a("v_cndmask_b32 v15, 0, v1, vcc")
    for s in range(2):
        for i in range(8):
            a(f"v_mov_b32 v{pV[s]+i}, v15")
    a("s_mov_b32 s56, 0x0fffffff")
    a("s_mov_b32 s57, 0x0fffffff")
    a(f"s_mov_b32 s64, {f32(LOG2E)}")
    a(f"s_mov_b32 s65, {f32(QSCALE)}")
    a(f"s_mov_b32 s66, {f32(EPS)}")
    for i in range(32):
        a(f"v_mov_b32 v{accV[0]+i}, 0")
    a("v_lshlrev_b32 v13, 4, v0")
    a("s_cmp_eq_u32 s26, 0")
    a("s_cbranch_scc1 C_A")

    def scalars():
        for s in range(4):
            a(f"s_add_u32 s60, s27, {1+s}")
            a("s_and_b32 s60, s60, 3")
            a(f"s_lshl_b32 s{36+s}, s60, 11")
            a(f"s_add_u32 s{36+s}, s{36+s}, {L_QD}")
            a(f"s_mul_i32 s{40+s}, s60, 12288")
            a(f"s_add_u32 s{40+s}, s{40+s}, {RING + (4096*s if s < 3 else 0)}")
        a(f"s_mul_i32 s44, s28, {4*PAD}")
        a(f"s_mul_i32 s45, s27, {PAD}")
        a("s_add_u32 s45, s45, s44")
        a("s_lshl_b32 s46, s24, 2")
        a("s_add_u32 s46, s46, s27")
        a(f"s_mul_i32 s46, s46, {PAD}")
        a("s_lshl_b32 s60, s28, 11")
        a("s_add_u32 s46, s46, s60")
        a(f"s_add_u32 s46, s46, {WS_OF + 32768}")
        a("s_lshl_b32 s47, s27, 12")
        a(f"s_add_u32 s47, s47, {L_KVD}")
        a("s_lshl_b32 s48, s27, 8")
        a(f"s_add_u32 s48, s48, {L_G}")
    def reads(buf, ks):
        f = FR + 16*buf
        return [f"ds_read_b128 {vr(f,4)}, v{XA+ks}",
                f"ds_read_b64_tr_b16 {vr(f+8,2)}, v{WA} offset:{ks*2048}",
                f"ds_read_b64_tr_b16 {vr(f+10,2)}, v{WA} offset:{ks*2048+512}",
                f"ds_read_b128 {vr(f+4,4)}, v{XA+ks} offset:4096",
                f"ds_read_b64_tr_b16 {vr(f+12,2)}, v{WA} offset:{8192+ks*2048}",
                f"ds_read_b64_tr_b16 {vr(f+14,2)}, v{WA} offset:{8192+ks*2048+512}"]
    def mfmas(buf, kT):
        f = FR + 16*buf
        Xf = [vr(f, 4), vr(f+4, 4)]; Wk, Wv = vr(f+8, 4), vr(f+12, 4)
        m = []
        for s in range(2): m.append(f"{MF} {vr(accV[s],16)}, {Xf[s]}, {Wk}, {vr(accV[s],16)}")
        for s in range(2):
            if kT: m.append(f"{MF} {vr(accK[s],16)}, {Wv}, {Xf[s]}, {vr(accK[s],16)}")
            else:  m.append(f"{MF} {vr(accK[s],16)}, {Xf[s]}, {Wv}, {vr(accK[s],16)}")
        return m
    def mainloop(tag, kT):
        a("s_mov_b32 s60, 0")
        a("s_mov_b32 s61, 0")
        if ROT:
            a("s_mov_b32 s49, 16384")
            a("s_lshl_b32 s62, s91, 14")
            for ks in range(4): a(f"v_add_u32 v{XA+ks}, s62, v{XA+ks}")
            a("s_cmp_eq_u32 s91, 6")
            a("s_cselect_b32 s62, 0xfffe8000, s49")
        if STAMP not in (4, 8): stampc(a, 1)
        a("s_barrier")
        if STAMP not in (4, 8): stampc(a, 2)
        for r in reads(0, 0): a(r)
        a(".p2align 6")
        a.label(f"C_{tag}_LOOP")
        for ks in range(4):
            m = mfmas(ks & 1, kT); r = reads((ks+1) & 1, (ks+1) & 3)
            if ks < 3:
                a("s_waitcnt lgkmcnt(3)"); a(m[0]); a(r[0]); a(r[1]); a(r[2])
                a("s_waitcnt lgkmcnt(5)"); a(m[1]); a(r[3]); a(r[4]); a(r[5])
                a("s_waitcnt lgkmcnt(6)"); a(m[2])
                a(f"v_add_u32 v{XA+ks}, {'s62' if ROT else 16384}, v{XA+ks}")
                if ks == 2:
                    a("s_add_u32 s60, s60, 1")
                    a("s_add_u32 s61, s61, 16384")
                    a("s_cmp_eq_u32 s61, 49152")
                    a("s_cselect_b32 s61, 0, s61")
                a(m[3])
            else:
                a(f"v_add_u32 v{WA}, s61, v{WB}")
                a("s_cmp_eq_u32 s60, 7")
                a("s_waitcnt lgkmcnt(0)")
                a(f"s_cbranch_scc1 C_{tag}_TAIL")
                a("s_barrier")
                a(m[0]); a(r[0]); a(r[1]); a(r[2])
                a(m[1]); a(r[3]); a(r[4]); a(r[5])
                a(m[2])
                a(f"v_add_u32 v{XA+3}, {'s62' if ROT else 16384}, v{XA+3}")
                if ROT:
                    a("s_add_u32 s63, s60, s91")
                    a("s_cmp_eq_u32 s63, 6")
                    a("s_cselect_b32 s62, 0xfffe8000, s49")
                a(m[3])
                a(f"s_branch C_{tag}_LOOP")
                a.label(f"C_{tag}_TAIL")
                for x in m: a(x)
        if STAMP != 8: stampc(a, 3)
        if "nords" in X or "nomf" in X:
            i0 = max(i for i, l in enumerate(a.lines) if l.startswith(f"C_{tag}_LOOP"))
            for i in range(i0, len(a.lines)):
                l = a.lines[i].strip()
                if "nords" in X and l.startswith("ds_read"): a.lines[i] = "    s_nop 0"
                if "nomf" in X and l.startswith("v_mfma"): a.lines[i] = "    s_nop 7"
    _reads = reads
    def reads(buf, ks):
        r = _reads(buf, ks)
        f = FR + 16*buf
        r[1] = f"ds_read_b64_tr_b16 {vr(f+8,2)}, v{WA} offset:{8192+ks*2048}"
        r[2] = f"ds_read_b64_tr_b16 {vr(f+10,2)}, v{WA} offset:{8192+ks*2048+512}"
        r[4] = f"ds_read_b64_tr_b16 {vr(f+12,2)}, v{WA} offset:{ks*2048}"
        r[5] = f"ds_read_b64_tr_b16 {vr(f+14,2)}, v{WA} offset:{ks*2048+512}"
        return r
    def cvt_v():
        a("s_nop 9")
        a("s_mov_b64 exec, s[56:57]")
        for s in range(2): cvt(a, pV[s], accV[s])
        a("s_mov_b64 exec, -1")
    XK = int(E("XK", "0"))
    def qpass(mat, acc, c0, bars, second=False, fill=None):
        xf = lambda k: ar(4*k, 4) if k < XK else vr(FR + 8*(k % 4), 4)
        def qreads(k):
            f = FR + 8*(k % 4)
            slot = QSLOT[(mat, k >> 4)]
            o = slot*16384 + (k & 15)*1024
            xr = (XQ if k < 16 else XA) + (k & 3)
            r = [] if (second and k < XK) else [f"ds_read_b128 {xf(k)}, v{xr} offset:{((k >> 2) & 3)*16384}"]
            return r + [f"ds_read_b64_tr_b16 {vr(f+4,2)}, v{WQ} offset:{o}",
                        f"ds_read_b64_tr_b16 {vr(f+6,2)}, v{WQ} offset:{o+256}"]
        for k in range(3):
            for r in qreads(k): a(r)
        for k in range(28):
            f = FR + 8*(k % 4)
            for x in bars.get(k+3, []): a(x)
            a(f"s_waitcnt lgkmcnt({sum(len(qreads(j)) for j in (k+1, k+2) if j < 28)})")
            a(f"{MF} {vr(acc,16)}, {vr(f+4,4)}, {xf(k)}, {c0 if k == 0 else vr(acc,16)}")
            if k+3 < 28:
                for x in qreads(k+3): a(x)
            budget = int(E("FB", "12")) if (fill and k+3 < XK) else 0
            while fill and budget >= (8 if fill[0].startswith(("v_exp", "v_rcp")) else 4):
                budget -= 8 if fill[0].startswith(("v_exp", "v_rcp")) else 4
                a(fill.pop(0))
    def q_epi(a):
        a("v_mov_b32 v54, 0")
        a("v_mov_b32 v55, 0")
        a(f"v_mov_b32 v14, v{QB+12}")
        a(f"v_mov_b32 v15, v{QB+12}")
        vmul(a, QB, "s65", 8)
        a("v_permlane32_swap_b32 v15, v14")
        cvt(a, 48, QB, 0, 4)
        a("ds_write_b128 v1, v[48:51]")
        vmul(a, QB+8, "s65", 8)
        cvt(a, 48, QB, 4, 6)
        a("s_mov_b32 exec_hi, 0")
        cvt(a, 48, QB, 6, 8)
        a("s_mov_b32 exec_hi, -1")
        a("ds_write_b128 v1, v[52:55] offset:1024")
    def pq_epi(a, mats, T, PP):
        w = [f"v_mov_b32 v{PP+6}, 0", f"v_mov_b32 v{PP+7}, 0"] + phi_list(QA, T)
        for i, x in enumerate(w):
            if mats and i % 7 == 0: a(mats.pop(0))
            a(x)
        for x in mats: a(x)
        cvt(a, PP, QA, 0, 6)
        a("s_mov_b32 exec_hi, 0")
        cvt(a, PP, QA, 6, 8)
        a("s_mov_b32 exec_hi, -1")
        a(f"ds_write_b128 v1, {vr(PP,4)} offset:8192")
        a(f"ds_write_b128 v1, {vr(PP+4,4)} offset:9216")
    def gate(a):
        a(f"v_mul_f32 v14, {f32(-LOG2E)}, v14")
        a("v_exp_f32 v14, v14")
        a("v_lshl_add_u32 v15, v0, 2, s48")
        a("v_add_f32 v14, 1.0, v14")
        a("v_rcp_f32 v14, v14")
        a("s_nop 0")
        a("ds_write_b32 v15, v14")
        a("v_sub_f32 v14, 1.0, v14")
    def phase1b(fill):
        for i in range(4): a(f"v_add_u32 v{XA+i}, 65536, v{XQ+i}")
        if STAMP != 8: stampc(a, 4)
        a("s_barrier")
        if STAMP == 6: stampc(a, 15)
        acc = {0: (QA, "1.0"), 1: (QB, "0")}
        qpass(M1, *acc[M1], {20: ["s_barrier"]})
        if STAMP == 6: stampc(a, 9)
        a("v_add_u32 v1, s39, v13")
        if SWP:
            sub = Asm(); pq_epi(sub, [], 48, 56)
            a("s_nop 8")
            a.lines += sub.lines[:-2]
        a("s_waitcnt vmcnt(0)")
        a("s_barrier")
        if STAMP == 6: stampc(a, 10)
        if SWP: a.lines += sub.lines[-2:]
        else:
            a("s_nop 7")
            q_epi(a)
        if STAMP == 6: stampc(a, 11)
        a("s_waitcnt lgkmcnt(0)")
        a("s_barrier")
        if STAMP == 6: stampc(a, 12)
        qpass(M2, *acc[M2], {16: ["s_barrier"]}, True, fill)
        if STAMP != 8: stampc(a, 5)
    def defer_q(a, mats):
        if SWP:
            sub = Asm(); q_epi(sub); gate(sub)
            full = True
            for i, l in enumerate(sub.lines):
                if "exec" in l: full = l.strip().endswith("-1")
                if mats and full and i % 5 == 0: a(mats.pop(0))
                a.lines.append(l)
            for x in mats: a(x)
        else:
            gate(a)
            pq_epi(a, mats, QB, QB + 8)
    O = [16, 32, 48, 64]; S = [80, 96, 112, 128]; Q = [0, 8, 16, 24]; KV = [32, 48, 64, 80]
    RA = 144
    def ld(dst, off, v="v1", so="s58"):
        return f"buffer_load_dwordx4 {ar(dst,4)}, {v}, {WSR}, {so} offen" + (f" offset:{off}" if off else "") + " sc1"
    adv = ["s_add_u32 s58, s58, 4096"]
    ZR = ar(KV[3]+12, 4)
    zero = lambda d: f"{MF} {vr(d,16)}, {ZR}, {ZR}, 0"
    ZL = ([O[0], O[1], O[3]] if SWP else list(O)) + ([] if PF else [S[3]])
    def pre(a):
        for i in range(4): a(f"v_accvgpr_write_b32 a{KV[3]+12+i}, 0")
        a("v_add_u32 v4, s44, v13")
        a(f"v_mov_b32 v5, {L_CNT}")
        a("v_mov_b32 v6, 1")
    def first_loads(work):
        if STAMP != 8: stampc(a, 7)
        a("v_add_u32 v7, s45, v13")
        a("s_mov_b32 s58, 4096")
        a("s_mov_b32 s59, 8192")
        for f in range(4):
            a(ld(KV[0]+4*f, 1024*f, "v7", "0"))
            a(f"v_add_u32 v{8+f}, s{36+f}, v13")
            a(f"ds_read_b128 {ar(Q[f],4)}, v{8+f}")
            a(f"ds_read_b128 {ar(Q[f]+4,4)}, v{8+f} offset:1024")
        if PF: return
        sub = Asm(); work(sub)
        lines = sub.lines
        rest = [ld(KV[n]+4*f, 1024*f, "v7", f"s{57+n}") for n in (1, 2) for f in range(4)]
        gap = int(E("LG", "8")); full = True
        for i, l in enumerate(lines):
            a.lines.append(l)
            if "exec" in l and l.strip().startswith("s_mov"): full = l.strip().endswith("-1")
            if rest and full and i % gap == gap - 1: a(rest.pop(0))
        for x in rest: a(x)
        a("s_mov_b32 s58, 12288")

    for i in range(32): a(f"v_mov_b32 v{accK[0]+i}, 0")
    for s in range(2):
        a(f"v_mov_b32 v{pK[s]+6}, v1"); a(f"v_mov_b32 v{pK[s]+7}, v1")
    a("v_and_b32 v15, 0x33, v0")
    a("v_bfe_u32 v1, v0, 2, 1")
    a("v_lshl_add_u32 v15, v1, 3, v15")
    a("v_bfe_u32 v1, v0, 3, 1")
    a("v_lshl_add_u32 v15, v1, 2, v15")
    a("v_lshlrev_b32 v15, 4, v15")
    a("s_lshl_b32 s58, s25, 1")
    a("s_add_u32 s58, s58, s93")
    a("s_lshl_b32 s58, s58, 2")
    a("s_add_u32 s58, s58, s34")
    a(f"s_mul_i32 s58, s58, {PAD}")
    a("s_lshl_b32 s59, s29, 1")
    a("s_add_u32 s59, s59, s92")
    a("s_lshl_b32 s59, s59, 13")
    a("s_add_u32 s58, s58, s59")
    a("s_add_u32 s59, s58, 4096")
    scalars()
    mainloop("B", True)
    cvt_v()
    st = []
    for s in range(2):
        st.append(f"buffer_store_dwordx4 {vr(pV[s],4)}, v13, {WSR}, s{58+s} offen offset:2048 sc1")
        st.append(f"buffer_store_dwordx4 {vr(pV[s]+4,4)}, v13, {WSR}, s{58+s} offen offset:3072 sc1")
    for s in range(2):
        st.append(f"buffer_store_dwordx4 {vr(pK[s],4)}, v15, {WSR}, s{58+s} offen sc1")
        st.append(f"buffer_store_dwordx4 {vr(pK[s]+4,4)}, v15, {WSR}, s{58+s} offen offset:1024 sc1")
    if "plainkv" in X: st = [x.replace(" sc1", "") for x in st]
    for x in st[:4]: a(x)
    for s in range(2):
        cvt(a, pK[s], accK[s], 0, 6)
        a("s_mov_b32 exec_hi, 0")
        cvt(a, pK[s], accK[s], 6, 8)
        a("s_mov_b32 exec_hi, -1")
        for x in st[4+2*s:6+2*s]: a(x)
    phase1b(None)
    DPRE = E("DPRE", "1") == "1"
    def workB(a):
        a("s_nop 7")
        pre(a)
        defer_q(a, [zero(d) for d in ZL])
    if DPRE: workB(a)
    a("s_waitcnt lgkmcnt(0)")
    if STAMP != 8: stampc(a, 6)
    a("s_barrier")
    first_loads((lambda a: None) if DPRE else workB)
    a("s_branch C_2")

    a.label("C_A")
    for i in range(32): a(f"v_mov_b32 v{accK[0]+i}, 1.0")
    for s in range(2):
        for i in range(8): a(f"v_mov_b32 v{pK[s]+i}, 0")
    scalars()
    mainloop("A", False)
    cvt_v()
    pend = phi_list(accK[0], 52) + phi_list(accK[1], 52)
    phase1b(pend)
    D = accK[1]
    APRE = int(E("APRE", "1"))
    kvm = [f"{MF} {vr(D,16)}, {vr(pK[0],4)}, {vr(pV[0],4)}, 0",
           f"{MF} {vr(D,16)}, {vr(pK[0]+4,4)}, {vr(pV[0]+4,4)}, {vr(D,16)}",
           f"{MF} {vr(D,16)}, {vr(pK[1],4)}, {vr(pV[1],4)}, {vr(D,16)}",
           f"{MF} {vr(D,16)}, {vr(pK[1]+4,4)}, {vr(pV[1]+4,4)}, {vr(D,16)}"]
    def part1(a):
        for x in pend: a(x)
        a("s_mov_b64 exec, s[56:57]")
        for s in range(2): cvt(a, pK[s], accK[s])
        a("s_mov_b64 exec, -1")
        a("s_nop 1")
    def part2(a):
        pre(a)
        defer_q(a, kvm + [zero(d) for d in ZL])
        a("v_add_u32 v15, s47, v13")
        for q in range(4):
            a(f"ds_write_b128 v15, {vr(D+4*q,4)} offset:{1024*q}")
    if APRE >= 1: part1(a)
    if DPRE: part2(a)
    a("s_waitcnt lgkmcnt(0)")
    if STAMP != 8: stampc(a, 6)
    a("s_barrier")
    def workA(a):
        if APRE < 1: part1(a)
        if not DPRE: part2(a)
    first_loads(workA)

    a.label("C_2")
    if PT: a("s_setprio 1")
    if SWP: a(zero(O[2]))
    a("v_mov_b32 v2, 0xdddd")
    a("v_mov_b32 v3, 0")
    a("v_mov_b32 v1, v7")
    a("s_mov_b32 s49, 3")
    for s in range(4): a(f"v_add_u32 v{RA+s}, s{40+s}, v13")
    a(f"s_waitcnt vmcnt({2 if PF else 10}) lgkmcnt(0)")
    stampc(a, 8)
    a("s_mov_b64 exec, 1")
    if not PF: a("ds_add_u32 v5, v6 offset:8")
    a("ds_read_b32 v12, v5 offset:20")
    a("s_mov_b64 exec, -1")
    a(f"{MF} {vr(S[0],16)}, {ar(KV[0],4)}, {ar(Q[0],4)}, 0")
    a(f"{MF} {vr(S[0],16)}, {ar(KV[0]+4,4)}, {ar(Q[0]+4,4)}, {vr(S[0],16)}")
    a("s_waitcnt lgkmcnt(0)" if PF else "s_waitcnt vmcnt(8) lgkmcnt(0)")
    a("v_readfirstlane_b32 s87, v12")
    a("s_nop 8")
    if E("STG", ""):
        for i in range(1, 4):
            a(f"s_cmp_ge_u32 s27, {i}")
            a("s_cbranch_scc0 C_STG")
            a("s_nop %s" % E("STG", ""))
        a.label("C_STG")
    def unit(pos, cur, nxt, prv, slot):
        sc = S[pos & 3]; sn = S[(pos+1) & 3]; sp = S[(pos-1) & 3]
        e = [f"v_exp_f32 v{sc+i}, v{sc+i}" for i in range(16)]
        if nxt: a(f"{MF} {vr(sn,16)}, {ar(KV[nxt[0]],4)}, {ar(Q[nxt[1]],4)}, 0")
        for x in slot[0]: a(x)
        for x in e[0:4]: a(x)
        if prv: a(f"{SM} {vr(O[prv[1]],16)}, {ar(KV[prv[0]]+12,4)}, {vr(sp+8,8)}, v2")
        for x in slot[1]: a(x)
        for x in e[4:8]: a(x)
        if nxt: a(f"{MF} {vr(sn,16)}, {ar(KV[nxt[0]]+4,4)}, {ar(Q[nxt[1]]+4,4)}, {vr(sn,16)}")
        for x in slot[2]: a(x)
        for x in e[8:12]: a(x)
        a(f"{SM} {vr(O[cur[1]],16)}, {ar(KV[cur[0]]+8,4)}, {vr(sc,8)}, v2")
        for x in slot[3]: a(x)
        if nxt:
            for _ in range(2 - min(2, len(slot[2]) + len(slot[3]))): a("s_nop 0")
        for x in e[12:16]: a(x)
    LP = int(E("LP", "2"))
    ER = E("ER", "1") == "1"
    W64 = E("W64", "0") == "1"
    PB = S[1] if ER else 16
    FW = int(E("FW", "2"))
    def plain(n, s):
        slot = [[], [], [], []]
        slot[2].append("s_nop 0" if "nold" in X else ld(KV[(n+3) & 3] + 4*s, 1024*s).replace(" sc1", "" if "plain" in X else " sc1"))
        if s == 3: slot[3] += adv
        if not FW:
            if s == 2: slot[3].append("s_waitcnt vmcnt(7)")
        elif FW == 2:
            if s == 2: slot[3].append("s_waitcnt vmcnt(9)")
            if s == 0: slot[1].append("s_waitcnt vmcnt(8)")
        else:
            if s == 2: slot[3].append("s_waitcnt vmcnt(10)")
            if s == 3: slot[1].append("s_waitcnt vmcnt(9)")
            if s == 0: slot[1].append("s_waitcnt vmcnt(9)")
            if s == 1: slot[0].append("s_waitcnt vmcnt(9)")
        return slot
    if PF:
        a("s_mov_b32 s60, 12288")
        q3 = [ld(KV[n]+4*f, 1024*f, "v1", f"s{57+n}") for n in (1, 2, 3) for f in range(4)]
        for s in range(4):
            slot = [[q3[3*s]], [q3[3*s+1]], [q3[3*s+2]], []]
            if s == 0: slot[2].append("s_waitcnt vmcnt(3)")
            if s == 2: slot[3].append("s_waitcnt vmcnt(7)")
            if s == 3: slot[3] += ["s_mov_b32 s58, 16384", "s_mov_b64 exec, 1", "ds_add_u32 v5, v6 offset:8", "s_mov_b64 exec, -1"]
            unit(s, (0, s), (s == 3, (s+1) & 3), (0, s-1) if s else None, slot)
    tiles = (1, 2, 3, 0) if PF else (0, 1, 2, 3)
    a(".p2align 6")
    a.label("C_ATT")
    for n in tiles:
        for s in range(4):
            slot = plain(n, s)
            if n == tiles[3] and s == 1: slot[3].append("s_sub_u32 s49, s49, 1")
            if n == tiles[3] and s == 3: slot[3].append("s_cmp_lg_u32 s49, 0")
            unit(s, (n, s), ((n + (s == 3)) & 3, (s+1) & 3), ((n - (s == 0)) & 3, (s-1) & 3), slot)
    a("s_cbranch_scc1 C_ATT")
    seq = [(0, s) for s in range(4)] + [(1, s) for s in range(4)] + [(n, s) for s in range(4) for n in (2, 3)]
    for i, cur in enumerate(seq):
        if PF and i < 4: continue
        nxt = seq[i+1] if i < 15 else None
        prv = seq[i-1] if i > 0 else (3, 3)
        slot = plain(*cur) if i < 4 else [[], [], [], []]
        w = {4: (1, 8), 6: (3, 6), 7: (3, 2), 9: (1, 0)}.get(i)
        if w: slot[w[0]].append(f"s_waitcnt vmcnt({w[1]})")
        wr = lambda s_, q: f"ds_write_b128 v{RA+s_}, {vr(O[s_]+4*q,4)} offset:{1024*q}"
        if ER:
            if W64:
                w8 = lambda s_, q: f"ds_write_b64 v{RA+s_}, {vr(O[s_]+2*q,2)} offset:{1024*(q>>1) + 8*(q&1)}"
                base = {11: (0, 0), 12: (0, 4), 13: (1, 0), 14: (1, 4)}.get(i)
                if base:
                    for sl in range(4): slot[sl].append(w8(base[0], base[1] + sl))
                if i == 14: tail4 = [wr(2, 0), wr(2, 1)]
            else:
                plan = {11: {0: (0, 0), 2: (0, 1)}, 12: {0: (0, 2), 2: (0, 3)}, 13: {0: (1, 0), 1: (1, 1), 2: (1, 2), 3: (1, 3)}}
                for sl, (s_, q) in plan.get(i, {}).items(): slot[sl].append(wr(s_, q))
                if i == 14: tail4 = [wr(2, 0), wr(2, 1)]
            if i == 15:
                slot[0] = [wr(2, 2), wr(2, 3)]
                slot[2] = ["s_waitcnt lgkmcnt(0)", "s_barrier"] + \
                          [f"ds_read_b128 {vr(O[0]+4*k,4)}, v{RA+3} offset:{1024*((k % 3)*4 + k // 3)}" for k in range(6)]
                slot[3] = [f"ds_read_b128 {vr(O[0]+4*k,4)}, v{RA+3} offset:{1024*((k % 3)*4 + k // 3)}" for k in range(6, 12)]
        else:
            for first, s_ in ((11, 0), (13, 1)):
                if i in (first, first+1):
                    for q in range(2):
                        slot[1 + 2*q].append(wr(s_, 2*(i - first) + q))
            if i == 15:
                for q in range(4): slot[q].append(wr(2, q))
        unit(i, cur, nxt, prv, slot)
        if ER and i == 14:
            for x in tail4: a(x)
        if i == int(E("XP", "5")):
            if STAMP == 4: stampc(a, 1)
            a("s_barrier")
            if STAMP == 4: stampc(a, 2)
    a("s_setprio 1")
    a(f"v_mov_b32 v{PB+6}, 0")
    a(f"{SM} {vr(O[3],16)}, {ar(KV[3]+12,4)}, {vr(S[3]+8,8)}, v2")
    a(f"v_mov_b32 v{PB+7}, 0")
    a(f"s_mov_b32 s62, {f32(2.0**-60)}")
    a(f"s_mov_b32 s63, {f32(2.0**120)}")
    RB = O[0] if ER else S[0]
    if not ER:
        a("s_waitcnt lgkmcnt(0)")
        a("s_barrier")
    if STAMP != 6: stampc(a, 9)
    if not ER:
        for i in range(12):
            a(f"ds_read_b128 {vr(RB+4*i,4)}, v{RA+3} offset:{1024*((i % 3)*4 + i // 3)}")
    for q in range(4):
        a(f"s_waitcnt lgkmcnt({9-3*q})")
        b = RB + 12*q
        vadd(a, b, b+4, 4)
        vadd(a, b, b+8, 4)
    for q in range(4):
        vadd(a, O[3]+4*(3-q), RB+12*(3-q), 4)
    if STAMP == 8: stampc(a, 1)
    a("s_mov_b32 s59, 0")
    a.label("C_FIN")
    a(f"v_mov_b32 v6, v{O[3]+12}")
    a(f"v_mov_b32 v7, v{O[3]+12}")
    a(f"v_maximum3_f32 v8, abs(v{O[3]+12}), abs(v{O[3]+13}), abs(v{O[3]+14})")
    a(f"v_maximum3_f32 v9, abs(v{O[3]+15}), abs(v{O[3]+8}), abs(v{O[3]+9})")
    a("v_permlane32_swap_b32 v6, v7")
    a("v_rcp_f32 v6, v7")
    a(f"v_mov_b32 v5, {RING + 49152 - 16}")
    a("v_mul_f32 v6, v6, v14")
    SC = S[2]
    for i in range(8): a(f"v_mul_f32 v{SC+i}, v6, v{O[3]+i}")
    cvt(a, PB, SC, 0, 4)
    a(f"buffer_store_dwordx4 {vr(PB,4)}, v13, {WSR}, s46 offen sc1")
    for i in range(8, 16): a(f"v_mul_f32 v{SC+i}, v6, v{O[3]+i}")
    cvt(a, PB, SC, 4, 6)
    a("s_mov_b32 exec_hi, 0")
    cvt(a, PB, SC, 6, 8)
    a("s_mov_b32 exec_hi, -1")
    a(f"buffer_store_dwordx4 {vr(PB+4,4)}, v13, {WSR}, s46 offen offset:1024 sc1")
    if STAMP == 8: stampc(a, 2)
    for i, (x, y) in enumerate(((10, 11), (4, 5), (6, 7), (0, 1), (2, 3))):
        a(f"v_maximum3_f32 v{8+(i&1)}, v{8+(i&1)}, abs(v{O[3]+x}), abs(v{O[3]+y})")
    a("v_cmp_nge_f32 vcc, v7, s62")
    a("v_maximum3_f32 v8, v8, v9, v9")
    a("s_cmp_lg_u32 s59, 0")
    a("v_cmp_nlt_f32 s[64:65], v8, s63")
    a("s_cbranch_scc1 C_CHKD")
    a("s_or_b64 vcc, vcc, s[64:65]")
    a("s_cbranch_scc1 C_FALLBACK")
    a.label("C_CHKD")
    if E("WF", "0") != "1":
        a("s_cmp_eq_u32 s27, 3")
        a("s_cbranch_scc0 C_NOCLR")
        a("ds_write_b32 v5, v3")
        a.label("C_NOCLR")
    if STAMP == 8: stampc(a, 3)
    a("s_waitcnt lgkmcnt(0)")
    a("s_barrier")
    if STAMP != 6: stampc(a, 10)
    a("s_mul_i32 s60, s92, 28672")
    a("s_add_u32 s60, s60, 57344")
    a("s_lshl_b32 s61, s92, 6")
    a("v_mov_b32 v1, v5")
    p3_addr(a, 4, "s60", "s61", 8, 9)
    a("s_lshl_b32 s60, s27, 13")
    a(f"s_add_u32 s60, s60, {RING}")
    a("v_add_u32 v8, s60, v13")
    a("s_lshl_b32 s60, s27, 12")
    a(f"s_add_u32 s60, s60, {RING + 32768}")
    a("v_add_u32 v9, s60, v13")
    a("v_xor_b32 v10, 8192, v9")
    a("s_lshl_b32 s60, s30, 1")
    a("s_add_u32 s60, s60, s93")
    if E("TS", "1") == "1":
        a("v_and_b32 v11, 31, v0")
        a("v_lshrrev_b32 v12, 5, v0")
        a("s_lshl_b32 s61, s92, 2")
        a("v_add_u32 v12, s61, v12")
        a("v_and_b32 v15, 7, v0")
        a("v_xor_b32 v12, v12, v15")
        a("s_lshl_b32 s61, s93, 12")
        a(f"s_add_u32 s61, s61, {RING}")
        a("v_lshl_add_u32 v11, v11, 7, s61")
        a("v_lshl_add_u32 v11, v12, 4, v11")
        a("v_xor_b32 v2, 32, v11")
        a("v_lshrrev_b32 v12, 3, v0")
        a("v_xor_b32 v15, v15, v12")
        a("s_lshl_b32 s61, s30, 6")
        a("s_lshl_b32 s63, s27, 4")
        a("s_add_u32 s61, s61, s63")
        a("v_add_u32 v12, s61, v12")
        a("v_mul_u32_u24 v12, 896, v12")
        a("v_lshl_add_u32 v15, v15, 4, v12")
    else:
        a("v_and_b32 v11, 31, v0")
        a("s_lshl_b32 s61, s60, 5")
        a("v_add_u32 v11, s61, v11")
        a("v_mul_u32_u24 v11, 896, v11")
        a("v_lshrrev_b32 v12, 5, v0")
        a("v_lshl_add_u32 v11, v12, 4, v11")
    a(f"s_mul_i32 s60, s60, {PAD}")
    a("s_lshl_b32 s61, s92, 14")
    a("s_add_u32 s60, s60, s61")
    a(f"s_add_u32 s60, s60, {WS_OF + 32768}")
    if E("WF", "0") == "1": a("s_lshl_b32 s61, s30, 12")
    else:
        a("s_and_b32 s61, s30, 0xfe")
        a("s_lshl_b32 s61, s61, 10")
    a(f"s_add_u32 s61, s61, {C_OB}")
    a("s_lshl_b32 s62, s31, 7")
    if E("TS", "1") == "1":
        a("s_add_u32 s63, s62, 7168")
    else:
        a("s_lshl_b32 s63, s92, 6")
        a("s_add_u32 s62, s62, s63")
    srd(a, SX, 18, 1835008)
    WF_ = E("WF", "0") == "1"
    if WF_:
        a("s_lshl_b32 s64, s24, 2")
        a("s_add_u32 s64, s64, s27")
        a("s_lshl_b32 s64, s64, 4")
    else:
        a("s_lshl_b32 s64, s24, 4")
    a("s_add_u32 s64, s64, s28")
    a("s_lshl_b32 s64, s64, 7")
    a(f"s_add_u32 s64, s64, {C_OB}")
    if WF_:
        a("v_lshlrev_b32 v14, 2, v0")
        a("v_mov_b32 v12, s87")
        a("s_mov_b32 exec_hi, 0")
        a("s_waitcnt vmcnt(0)")
        a(f"buffer_store_dword v12, v14, {WSR}, s64 offen sc1")
        a("s_mov_b32 exec_hi, -1")
    else:
        a("v_mov_b32 v12, 1")
        a("s_mov_b64 exec, 1")
        a("s_waitcnt vmcnt(0)")
        a("ds_add_rtn_u32 v14, v1, v12")
        a("s_waitcnt lgkmcnt(0)")
        a("v_readfirstlane_b32 s69, v14")
        a("s_nop 0")
        a("s_cmp_eq_u32 s69, 3")
        a("s_mov_b64 exec, -1")
        a("s_cbranch_scc0 C_NOSIG")
        signal(a, "s64", 3, 12, 14)
        a.label("C_NOSIG")
        a("s_mov_b64 exec, -1")
    if STAMP != 6: stampc(a, 11)
    a("s_cmp_ge_u32 s32, 28")
    a("s_cbranch_scc1 C_EXIT")
    NPRE = int(E("NPRE", "10"))
    a("v_lshlrev_b32 v14, 7, v0")
    if E("DY", "0") == "1":
        a("s_lshl_b32 s64, s92, 10")
        a("s_add_u32 s61, s61, s64")
        for i in range(1, 4): a(f"s_add_u32 s{63+i}, s60, {4096*i}")
        a("s_mov_b32 s67, 0xff")
        a(f"s_mov_b32 s68, {SPIN}")
        a("s_barrier")
        for i in range(8):
            a(f"ds_read_b128 {vr(16+4*i,4)}, v8 offset:{1024*i}")
        a("s_mov_b64 exec, 0xff")
        a(f"buffer_load_dword v12, v14, {WSR}, s61 offen sc1")
        a.label("C_DYL")
        a("s_waitcnt vmcnt(0) lgkmcnt(0)")
        a("v_cmp_eq_u32 vcc, s87, v12")
        a("s_mov_b64 exec, -1")
        a("s_sub_u32 s68, s68, 1")
        a("s_cselect_b32 s69, 0xff, vcc_lo")
        a("s_lshr_b32 s49, s69, 1")
        a("s_and_b32 s69, s69, s49")
        a("s_and_b32 s69, s69, s67")
        a("s_and_b32 s69, s69, 0x55")
        a("s_cbranch_scc1 C_DYN")
        a("s_sleep %s" % E("OBS", "8"))
        a("s_mov_b32 exec_lo, s67")
        a("s_mov_b32 exec_hi, 0")
        a(f"buffer_load_dword v12, v14, {WSR}, s61 offen sc1")
        a("s_branch C_DYL")
        a.label("C_DYN")
        if STAMP not in (0, 5, 6): stampc(a, 12)
        for bb in range(4):
            a(f"s_bitcmp1_b32 s69, {2*bb}")
            a(f"s_cbranch_scc0 C_DL{bb}")
            for k in range(4):
                a(f"buffer_load_dwordx4 {ar(16*bb+4*k,4)}, v13, {WSR}, s{60 if bb == 0 else 63+bb} offen offset:{1024*k} sc1")
            a.label(f"C_DL{bb}")
        a("s_mul_i32 s49, s69, 3")
        a("s_andn2_b32 s67, s67, s49")
        a("s_max_u32 s49, s67, 1")
        a("s_mov_b32 exec_lo, s49")
        a("s_mov_b32 exec_hi, 0")
        a(f"buffer_load_dword v12, v14, {WSR}, s61 offen sc1")
        a("s_mov_b64 exec, -1")
        for bb in range(4):
            pre_, body_ = p3_block(a, 4, [16, 32], [48, 56], bb)
            a(f"s_bitcmp1_b32 s69, {2*bb}")
            a(f"s_cbranch_scc0 C_DG{bb}")
            for x in pre_: a(x)
            if bb < 3:
                a(f"s_lshr_b32 s49, s69, {2*bb+1}")
                a("s_bcnt1_i32_b32 s49, s49")
                for n in range(3 - bb, 0, -1):
                    a(f"s_waitcnt vmcnt({4*n+1})")
                    a(f"s_cmp_ge_u32 s49, {n}")
                    a(f"s_cbranch_scc1 C_DW{bb}")
            a("s_waitcnt vmcnt(1)")
            a.label(f"C_DW{bb}")
            for x in body_: a(x)
            a.label(f"C_DG{bb}")
        a("s_cmp_eq_u32 s67, 0")
        a("s_cbranch_scc1 C_DYX")
        a("s_mov_b32 exec_lo, s67")
        a("s_mov_b32 exec_hi, 0")
        a("s_branch C_DYL")
        a.label("C_DYX")
    else:
        a("s_cmp_eq_u32 s27, 0")
        a("s_cbranch_scc0 C_OBD")
        poll(a, "OB", WSR, "s61", 32 if WF_ else 16, 14, 12, int(E("OBS", "8")), False)
        a.label("C_OBD")
        a("s_barrier")
        if STAMP != 6: stampc(a, 12)
        p3_oloads(a, 13, "s60", NPRE)
        for i in range(8):
            a(f"ds_read_b128 {vr(16+4*i,4)}, v8 offset:{1024*i}")
        p3_gemm(a, 4, [16, 32], [48, 56], False, NPRE, 13, "s60")
    if STAMP != 6: stampc(a, 13)
    if E("DY", "0") == "1": a("s_waitcnt vmcnt(0)")
    a("v_mov_b32 v12, v2")
    a("s_lshl_b32 s64, s27, 11")
    a(f"s_add_u32 s64, s64, {RING}")
    a("v_add_u32 v14, s64, v13")
    a("s_nop 7")
    for i in range(4):
        a(f"ds_write_b128 v9, {vr(32+4*i,4)} offset:{1024*i}")
    a("s_waitcnt lgkmcnt(0)")
    if STAMP == 8: stampc(a, 4)
    a("s_barrier")
    if STAMP == 8: stampc(a, 5)
    for i in range(4):
        a(f"ds_read_b128 {vr(32+4*i,4)}, v10 offset:{1024*i}")
    OFL = E("OFL", "sc1")
    TS = E("TS", "1") == "1"
    for hf in range(2):
        for q in (2*hf, 2*hf+1):
            a(f"s_waitcnt lgkmcnt({3-q + (1 if TS and hf else 0)})")
            vadd(a, 16+4*q, 32+4*q, 4)
        cvt(a, 48, 16, 4*hf, 4*hf+4)
        a("s_nop 1")
        a(f"v_permlane32_swap_b32 v{48+4*hf}, v{50+4*hf}")
        a(f"v_permlane32_swap_b32 v{49+4*hf}, v{51+4*hf}")
        if TS: a(f"ds_write_b128 v{11+hf}, {vr(48+4*hf,4)}")
        else: a(f"buffer_store_dwordx4 {vr(48+4*hf,4)}, v11, {R(SX)}, s62 offen offset:{32*hf} {OFL}")
    if TS:
        a("s_waitcnt lgkmcnt(0)")
        if STAMP == 8: stampc(a, 6)
        a("s_barrier")
        if STAMP == 8: stampc(a, 7)
        a("ds_read_b128 v[16:19], v14")
        a("ds_read_b128 v[20:23], v14 offset:1024")
        a("s_waitcnt lgkmcnt(1)")
        a(f"buffer_store_dwordx4 v[16:19], v15, {R(SX)}, s62 offen {OFL}")
        a("s_waitcnt lgkmcnt(0)")
        a(f"buffer_store_dwordx4 v[20:23], v15, {R(SX)}, s63 offen {OFL}")
    a.label("C_EXIT")
    if E("DIAGP", "") == "99":
        a("s_waitcnt vmcnt(0)")
        a("s_memrealtime s[100:101]")
        a("s_waitcnt lgkmcnt(0)")
    if E("DIAGT", ""):
        a("s_xor_b32 s64, s2, %s" % E("DIAGW", "0"))
        a("s_or_b32 s64, s64, s27")
        a("s_cmp_eq_u32 s64, 0")
        a("s_cbranch_scc0 C_DX")
        if E("DIAGP", ""):
            a("s_sub_u32 s100, s100, s96")
            a("s_lshl_b32 s100, s100, 1")
            a("s_add_u32 s96, s96, s100")
        a.label("C_DL")
        a("s_memrealtime s[98:99]")
        a("s_waitcnt lgkmcnt(0)")
        a("s_sub_u32 s98, s98, s96")
        a("s_cmp_lt_i32 s98, %s" % E("DIAGT", ""))
        a("s_cbranch_scc1 C_DL")
        a.label("C_DX")
    if STAMP != 6: stampc(a, 14)
    if STAMP: a("s_waitcnt vmcnt(0)")
    if STAMP != 6: stampc(a, 15)
    stamp_out(a, 16)
    a("s_endpgm")
    a.label("C_FALLBACK")
    Qo = Q[3]; K0 = KV[0]; Sx = S[0]
    def fb_adv():
        a("s_add_u32 s58, s58, 4096")
        a("s_add_u32 s59, s59, 1")
        a("s_and_b32 s61, s59, 15")
        a(f"s_cselect_b32 s61, 0, {PAD-65536}")
        a("s_add_u32 s58, s58, s61")
        a("s_nop 15")
    a("s_mov_b32 s58, 0")
    a("s_mov_b32 s59, 0")
    a(f"v_mov_b32 v8, {f32(float('-inf'))}")
    a.label("C_FB1")
    a(ld(K0, 0, "v4")); a(ld(K0+4, 1024, "v4"))
    a("s_waitcnt vmcnt(0)")
    a(f"{MF} {vr(Sx,16)}, {ar(K0,4)}, {ar(Qo,4)}, 0")
    a(f"{MF} {vr(Sx,16)}, {ar(K0+4,4)}, {ar(Qo+4,4)}, {vr(Sx,16)}")
    fb_adv()
    a("s_nop 15")
    for i in range(8):
        a(f"v_max3_f32 v8, v8, v{Sx+2*i}, v{Sx+2*i+1}")
    a("s_cmp_lt_u32 s59, 64")
    a("s_cbranch_scc1 C_FB1")
    a("v_mov_b32 v9, v8")
    a("s_nop 1")
    a("v_permlane32_swap_b32 v8, v9")
    a("v_max_f32 v8, v8, v9")
    a("v_and_b32 v9, 0xffff0000, v8")
    a("v_sub_f32 v8, v8, v9")
    a("v_and_b32 v10, 0xffff0000, v8")
    a("v_sub_f32 v8, v8, v10")
    a("v_cvt_pk_bf16_f32 v9, -v9, -v10")
    a("v_cvt_pk_bf16_f32 v8, -v8, 0")
    a("s_mov_b32 exec_lo, 0")
    a(f"v_accvgpr_write_b32 a{Qo+6}, v9")
    a(f"v_accvgpr_write_b32 a{Qo+7}, v8")
    a("s_mov_b32 exec_lo, -1")
    for i in range(16): a(f"v_mov_b32 v{O[3]+i}, 0")
    a("s_mov_b32 s58, 0")
    a("s_mov_b32 s59, 0")
    a.label("C_FB2")
    for f in range(4): a(ld(K0+4*f, 1024*f, "v4"))
    a("s_waitcnt vmcnt(0)")
    a(f"{MF} {vr(Sx,16)}, {ar(K0,4)}, {ar(Qo,4)}, 0")
    a(f"{MF} {vr(Sx,16)}, {ar(K0+4,4)}, {ar(Qo+4,4)}, {vr(Sx,16)}")
    fb_adv()
    a("s_nop 15")
    for i in range(16): a(f"v_exp_f32 v{Sx+i}, v{Sx+i}")
    a("s_nop 1")
    a(f"{SM} {vr(O[3],16)}, {ar(K0+8,4)}, {vr(Sx,8)}, v2")
    a(f"{SM} {vr(O[3],16)}, {ar(K0+12,4)}, {vr(Sx+8,8)}, v2")
    a("s_cmp_lt_u32 s59, 64")
    a("s_cbranch_scc1 C_FB2")
    a("s_nop 15")
    a("s_branch C_FIN")

def main():
    a = Asm()
    head = f"""; out = g * linear_attention(x) + (1 - g) * softmax_attention(x),  S = 2048, D = 448, 16 heads of 28.
;      not tiny, nothing near overflow, no NaN) sends a query tile that is out of range to C_FALLBACK, which finds the
; Hand-offs between workgroups: write-through (sc1) stores, drained by every storing wave, then one flag line per
; producer; consumers poll with sc1 loads (bounded) and read the data with sc1 loads. A flag is up when it holds this
; @launch grid=(256,1,1) block=(512,1,1) lds=163840
.amdgcn_target "amdgcn-amd-amdhsa--gfx950"
.text
"""
    gen(a)
    out = head + a.text() + '.section .rodata,"a"\n' + kernel_desc(KN, 256, 102, 160)
    path = sys.argv[1] if len(sys.argv) > 1 else f"cdna_kernels/{NAME}.s"
    open(path, "w").write(out)
main()
```
